```python
import torch

def _softmax(x, axis=-1):
    return torch.softmax(x, dim=axis)

def _gelu(x):
    return torch.nn.functional.gelu(x, approximate='tanh')

def _silu(x):
    return torch.nn.functional.silu(x)

def _sigmoid(x):
    return torch.sigmoid(x)

def _layernorm(x, axis=-1, eps=1e-05):
    m = x.mean(dim=axis, keepdim=True)
    v = x.var(dim=axis, keepdim=True, unbiased=False)
    return (x - m) / torch.sqrt(v + eps)

def _scatter_add(tgt, idx, src, axis=0):
    return tgt.clone().index_add_(axis, idx, src)

def _segment_sum(src, seg, n):
    out = torch.zeros((n,) + src.shape[1:], dtype=src.dtype)
    return out.index_add_(0, seg, src)

def _pad(x, pw):
    flat = tuple((v for pair in reversed(pw) for v in pair))
    return torch.nn.functional.pad(x, flat)
kernel_name = 'adaLN_cond__ssm_conv_h3__dense_activation_silu__prompt'

def setup_inputs():

    _w = lambda a: (lambda t: t.to(torch.bfloat16) if t.is_floating_point() else t)(torch.as_tensor(a))

    def _A_setup():
        B, S, D = (1, 2048, 448)
        ks = 4
        return {'q': _w((lambda *s: torch.randn(*s, dtype=torch.bfloat16) * 0.05)(B, S, D)), 'k': _w((lambda *s: torch.randn(*s, dtype=torch.bfloat16) * 0.8)(B, S, D)), 'v': _w((lambda *s: torch.randn(*s, dtype=torch.bfloat16) * 0.8)(B, S, D)), 'shift_k': _w((lambda *s: torch.randn(*s, dtype=torch.bfloat16) * 0.8)(D, ks) * 0.5), 'ssm_k': _w((lambda *s: torch.randn(*s, dtype=torch.bfloat16) * 0.8)(D, S) * (1.0 / S ** 0.5)), 'ssm_D': _w((lambda *s: torch.randn(*s, dtype=torch.bfloat16) * 0.8)(D))}
    _A_in = _A_setup()

    def _B_setup():
        B, S, D, F = (1, 2048, 448, 1792)
        return {'x': _w((lambda *s: torch.randn(*s, dtype=torch.bfloat16) * 0.05)(B, S, D)), 'w1': _w((lambda *s: torch.randn(*s, dtype=torch.bfloat16) * 3.2)(D, F) * D ** (-0.5)), 'w2': _w((lambda *s: torch.randn(*s, dtype=torch.bfloat16) * 0.8)(F, D) * F ** (-0.5))}
    _B_in = _B_setup()
    return {'A_q': _A_in['q'], 'A_k': _A_in['k'], 'A_v': _A_in['v'], 'A_shift_k': _A_in['shift_k'], 'A_ssm_k': _A_in['ssm_k'], 'A_ssm_D': _A_in['ssm_D'], 'B_x': _B_in['x'], 'B_w1': _B_in['w1'], 'B_w2': _B_in['w2'], 'c': _w((lambda *s: torch.randn(*s, dtype=torch.bfloat16) * 0.2)(1, 448) * 8.0), 'w_mod': _w((lambda *s: torch.randn(*s, dtype=torch.bfloat16) * 0.2)(448, 6 * 448) * 448 ** (-0.5) * 8.0)}

def reference(A_q, A_k, A_v, A_shift_k, A_ssm_k, A_ssm_D, B_x, B_w1, B_w2, c, w_mod):

    def _A_ref(q, k, v, shift_k, ssm_k, ssm_D):
        B, S, D = q.shape
        ks = shift_k.shape[-1]
        k_pad = _pad(k, ((0, 0), (ks - 1, 0), (0, 0)))
        k_shift = torch.zeros_like(k)
        for t in range(ks):
            k_shift = k_shift + k_pad[:, t:t + S, :] * shift_k[:, ks - 1 - t][None, None, :]
        kv = k_shift * v
        L = 2 * S
        kv_pad = _pad(kv, ((0, 0), (0, S), (0, 0)))
        kf_pad = _pad(ssm_k, ((0, 0), (0, S)))
        kv_f = (lambda x, axes=(-2, -1): torch.fft.rfft2(x.float(), dim=axes))(kv_pad[:, None, :, :], axes=(1, 2))
        kf_f = (lambda x, axes=(-2, -1): torch.fft.rfft2(x.float(), dim=axes))(kf_pad[:, None, :], axes=(1, 2))
        kf_f = (lambda x, *d: x.permute(*d))(kf_f, 1, 2, 0)
        y_f = kv_f * kf_f[None, :, :, :]
        y = (lambda x, s, axes=(-2, -1): torch.fft.irfft2(x, s=s, dim=axes).to(torch.bfloat16))(y_f, (1, L), axes=(1, 2))[:, 0, :S, :]
        y = y + kv * ssm_D[None, None, :]
        return q * y

    def _B_ref(x, w1, w2):
        h = torch.einsum('bsd,df->bsf', x, w1)
        h = _silu(h)
        out = torch.einsum('bsf,fd->bsd', h, w2)
        return out
    x = A_q
    mod = (_silu(c) @ w_mod).reshape(c.shape[0], 6, 1, -1)
    sa, ca, ga, sb, cb, gb = (mod[:, 0].clone(), mod[:, 1].clone(), mod[:, 2].clone(), mod[:, 3].clone(), mod[:, 4].clone(), mod[:, 5].clone())
    h = _layernorm(x, axis=-1) * (1 + ca) + sa
    x = x + ga * _A_ref(h, A_k, A_v, A_shift_k, A_ssm_k, A_ssm_D)
    h = _layernorm(x, axis=-1) * (1 + cb) + sb
    x = x + gb * _B_ref(h, B_w1, B_w2)
    return x
```

```python
import re

TRANS = ("v_exp_f32", "v_log_f32", "v_rcp_f32", "v_rsq_f32", "v_sqrt_f32", "v_sin_f32", "v_cos_f32",
         "v_rcp_iflag_f32")


def v(i, n=1):
    return f"v{i}" if n == 1 else f"v[{i}:{i + n - 1}]"


def a(i, n=1):
    return f"a{i}" if n == 1 else f"a[{i}:{i + n - 1}]"


def s(i, n=1):
    return f"s{i}" if n == 1 else f"s[{i}:{i + n - 1}]"


_reg_re = re.compile(r"^(-?)(abs\()?([vas])(\d+|\[(\d+):(\d+)\])\)?$")


def regs_of(tok):
    tok = tok.strip()
    if tok == "vcc":
        return {("s", 106), ("s", 107)}
    if tok == "exec":
        return {("s", 126), ("s", 127)}
    if tok == "m0":
        return {("s", 124)}
    m = _reg_re.match(tok)
    if not m:
        return set()
    k = m.group(3)
    if m.group(5) is not None:
        return {(k, i) for i in range(int(m.group(5)), int(m.group(6)) + 1)}
    return {(k, int(m.group(4)))}


class Ins:
    __slots__ = ("text", "mn", "dst", "src", "kind", "passes", "srcC", "srcAB", "data", "ws", "dpp")

    def __init__(self, text):
        self.text = text
        t = text.split(";")[0].strip()
        parts = t.split(None, 1)
        self.mn = parts[0]
        rest = parts[1] if len(parts) > 1 else ""
        ops, depth, cur = [], 0, ""
        for ch in rest:
            if ch in "[(":
                depth += 1
            if ch in "])":
                depth -= 1
            if ch == "," and depth == 0:
                ops.append(cur.strip())
                cur = ""
            else:
                cur += ch
        if cur.strip():
            ops.append(cur.strip())
        mods = ""
        if ops:
            last = ops[-1].split(None, 1)
            ops[-1] = last[0]
            if len(last) > 1:
                mods = last[1]
        mn = self.mn
        R = [regs_of(o) for o in ops]
        allr = lambda lst: set().union(*lst) if lst else set()
        self.dst, self.src = set(), set()
        self.passes = 0
        self.srcC, self.srcAB, self.data = set(), set(), set()
        self.ws = 1
        self.dpp = ("quad_perm" in mods or "row_" in mods or "wave_" in mods)
        if mn.startswith("v_mfma"):
            self.kind = "mfma"
            self.dst = R[0]
            self.srcAB = R[1] | R[2]
            self.srcC = R[3] if len(R) > 3 else set()
            self.src = self.srcAB | self.srcC
            self.passes = 8 if "32x32" in mn else 4
        elif mn.startswith("buffer_load") or mn.startswith("global_load"):
            self.kind = "vload"
            if " lds" in " " + mods or mn.startswith("global_load_lds"):
                self.src = allr(R) | {("s", 124)}
            else:
                self.dst = R[0]
                self.src = allr(R[1:])
        elif mn.startswith("buffer_store") or mn.startswith("global_store"):
            self.kind = "vstore"
            self.src = allr(R)
            self.data = R[0] if mn.startswith("buffer_store") else R[1]
            if not ("x3" in mn or "x4" in mn):
                self.data = set()
        elif mn.startswith("buffer_atomic") or mn.startswith("global_atomic"):
            self.kind = "vstore"
            self.src = allr(R)
        elif mn.startswith("ds_read") or mn.startswith("ds_bpermute") or mn.startswith("ds_swizzle"):
            self.kind = "dsread"
            self.dst = R[0]
            self.src = allr(R[1:])
        elif mn.startswith("ds_write"):
            self.kind = "dswrite"
            self.src = allr(R)
        elif mn.startswith("s_load") or mn.startswith("s_memrealtime") or mn.startswith("s_memtime"):
            self.kind = "smem"
            self.dst = R[0]
            self.src = allr(R[1:])
        elif mn.startswith("v_"):
            self.kind = "valu"
            if mn.startswith("v_cmp"):
                self.dst = R[0]
                self.src = allr(R[1:])
            elif mn.startswith("v_permlane") and "swap" in mn:
                self.dst = R[0] | R[1]
                self.src = R[0] | R[1]
            elif mn.startswith("v_add_co") or mn.startswith("v_addc_co") or mn.startswith("v_sub_co"):
                self.dst = R[0] | R[1]
                self.src = allr(R[2:])
            else:
                self.dst = R[0]
                self.src = allr(R[1:])
                if mn.startswith(("v_fmac", "v_dot2c", "v_pk_fmac", "v_writelane")):
                    self.src |= R[0]
                if mn.startswith("v_cndmask") and len(ops) == 3:
                    self.src |= regs_of("vcc")
                if self.dpp:
                    self.src |= R[0]
        elif mn == "s_nop":
            self.kind = "nop"
            self.ws = int(ops[0], 0) + 1
        elif mn.startswith("s_"):
            self.kind = "salu"
            nodst = ("s_cmp", "s_waitcnt", "s_barrier", "s_branch", "s_cbranch", "s_endpgm", "s_setprio",
                     "s_sleep", "s_bitcmp", "s_setpc")
            if mn.startswith(nodst):
                self.src = allr(R)
            else:
                self.dst = R[0] if R else set()
                self.src = allr(R[1:])
                if mn.startswith(("s_addk", "s_mulk")):
                    self.src |= R[0]
                if "saveexec" in mn:
                    self.dst |= regs_of("exec")
                    self.src |= regs_of("exec")
        else:
            raise ValueError("unknown instruction: " + text)


class Asm:
    def __init__(self):
        self.out = []
        self.hist = []
        self.vq = []
        self.lq = []
        self.cond_depth = 0
        self.n_nops = 0
        self.n_ins = 0
        self.nbytes_est = 0

    def raw(self, text):
        self.out.append(text)

    def comment(self, text):
        self.out.append("    ; " + text)

    def label(self, name):
        self.out.append(name + ":")

    def _emit(self, ins):
        self.out.append("    " + ins.text)
        self.hist.append(ins)
        if len(self.hist) > 40:
            self.hist = self.hist[-40:]
        self.n_ins += 1

    def _wait_needed(self, q, regs):
        for i in range(len(q) - 1, -1, -1):
            if q[i]["dst"] & regs:
                return i
        return -1

    def _do_wait(self, vi, li):
        parts = []
        if vi >= 0:
            n = sum(1 for o in self.vq[vi + 1:] if not o["maybe"])
            self.vq = self.vq[vi + 1:]
            if n <= 62:
                parts.append(f"vmcnt({n})")
        if li >= 0:
            if any(o["smem"] for o in self.lq):
                self.lq = []
                parts.append("lgkmcnt(0)")
            else:
                n = sum(1 for o in self.lq[li + 1:] if not o["maybe"])
                self.lq = self.lq[li + 1:]
                if n <= 14:
                    parts.append(f"lgkmcnt({n})")
        if parts:
            self._emit(Ins("s_waitcnt " + " ".join(parts)))

    def wait_vm(self, n=0):
        self._emit(Ins(f"s_waitcnt vmcnt({n})"))
        if n == 0:
            self.vq = []
        else:
            cnt, cut = 0, 0
            for i in range(len(self.vq) - 1, -1, -1):
                if not self.vq[i]["maybe"]:
                    cnt += 1
                    if cnt == n:
                        cut = i
                        break
            else:
                cut = 0
            self.vq = self.vq[cut:]

    def wait_lgkm0(self):
        self._emit(Ins("s_waitcnt lgkmcnt(0)"))
        self.lq = []

    def wait_all(self):
        self._emit(Ins("s_waitcnt vmcnt(0) lgkmcnt(0)"))
        self.vq, self.lq = [], []

    def barrier(self):
        if self.lq:
            self.wait_lgkm0()
        self._emit(Ins("s_barrier"))

    def _hazard(self, ins):
        need = 0
        dist = 0
        for p in reversed(self.hist):
            req = 0
            if p.kind == "valu":
                vd = {r for r in p.dst if r[0] in "va"}
                sd = {r for r in p.dst if r[0] == "s"}
                if ins.kind == "mfma" and vd & ins.src:
                    req = max(req, 2)
                if ins.kind in ("vload", "vstore") and sd & ins.src:
                    req = max(req, 5)
                if ins.kind == "valu" and sd & ins.src:
                    req = max(req, 2)
                    if ins.mn.startswith(("v_readlane", "v_writelane")):
                        req = max(req, 4)
                if ins.kind == "salu" and sd & ins.src:
                    req = max(req, 1)
                if ins.mn.startswith(("v_readfirstlane", "v_readlane")) and vd & ins.src:
                    req = max(req, 1)
                if p.mn.rsplit("_e", 1)[0] in TRANS or p.mn in TRANS:
                    if ins.kind == "valu" and vd & ins.src:
                        req = max(req, 1)
                if ins.kind == "valu" and (ins.dpp or ins.mn.startswith("v_permlane")) and vd & ins.src:
                    req = max(req, 2)
            elif p.kind == "mfma":
                long = 12 if p.passes == 8 else 8
                if ins.kind == "mfma":
                    if p.dst & ins.srcAB:
                        req = max(req, long)
                    if p.dst & ins.srcC and p.dst != ins.srcC:
                        req = max(req, long - 2)
                    if (p.dst & ins.dst) and p.dst != ins.dst:
                        req = max(req, long)
                else:
                    if p.dst & (ins.src | ins.dst):
                        req = max(req, long)
                    if ins.kind == "valu" and p.srcC & ins.dst:
                        req = max(req, 7 if p.passes == 8 else 3)
            elif p.kind == "vstore":
                if p.data & ins.dst:
                    req = max(req, 2)
            elif p.kind == "salu":
                if ("s", 124) in p.dst and ins.kind == "vload" and ("s", 124) in ins.src:
                    req = max(req, 1)
            if req > dist:
                need = max(need, req - dist)
            dist += p.ws
            if dist >= 20:
                break
        return need

    def __call__(self, text):
        ins = Ins(text)
        regs = ins.src | ins.dst
        vi = self._wait_needed(self.vq, regs)
        li = self._wait_needed(self.lq, regs)
        if vi >= 0 or li >= 0:
            self._do_wait(vi, li)
        need = self._hazard(ins)
        while need > 0:
            k = min(need, 16)
            self._emit(Ins(f"s_nop {k - 1}"))
            self.n_nops += 1
            need -= k
        self._emit(ins)
        maybe = self.cond_depth > 0
        if ins.kind == "vload":
            self.vq.append(dict(dst=set(ins.dst), maybe=maybe))
        elif ins.kind == "vstore":
            self.vq.append(dict(dst=set(), maybe=maybe))
        elif ins.kind == "dsread":
            self.lq.append(dict(dst=set(ins.dst), maybe=maybe, smem=False))
        elif ins.kind == "dswrite":
            self.lq.append(dict(dst=set(), maybe=maybe, smem=False))
        elif ins.kind == "smem":
            self.lq.append(dict(dst=set(ins.dst), maybe=maybe, smem=True))

    def nop(self, n):
        while n > 0:
            k = min(n, 16)
            self._emit(Ins(f"s_nop {k - 1}"))
            n -= k

    def cond_begin(self):
        self.cond_depth += 1

    def cond_end(self):
        self.cond_depth -= 1

    def snapshot(self):
        import copy
        return (list(self.hist), copy.deepcopy(self.vq), copy.deepcopy(self.lq))

    def restore(self, st):
        import copy
        self.hist = list(st[0])
        self.vq = copy.deepcopy(st[1])
        self.lq = copy.deepcopy(st[2])

    def text(self):
        return "\n".join(self.out) + "\n"
```

```python
import sys
import argparse
from asmdsl import Asm, v, a, s

NAME = "adaLN_cond__ssm_conv_h3__dense_activation_silu__prompt_kernel"

FL = 4096
F1, FQ, FM, F2, F3 = 0, 256, 512, 544, 800
STAMP = 0x30000
T2D = 224 * 8192
KVP = 0x40000
QP = KVP + T2D
N1P = QP + T2D
X1P = N1P + T2D
W1F = X1P + T2D
W2F = W1F + 1605632
MODF = W2F + 1605632
HF = MODF + 16384
WS_END = HF + 32 * 112 * 2048
assert WS_END < (1 << 28)

L_H2 = 0
L_TPK = 0
L_TPQ = 8704
L_TPN = 17408
L_WB = 26112
L_UR = 43520
assert L_UR + 9216 <= 57344
L_KC = 57344
CS = 4160
L_RED = L_KC + 8 * CS
L_RED2 = 57344
L_PAR = L_RED + 40960
L_STAT = L_PAR + 4096
L_X1S = L_STAT + 2048
L_GB = L_X1S + 9216
LDS_END = L_GB + 256
assert L_RED2 + 69632 <= L_PAR
assert LDS_END <= 163840
L_SC = 0
L_MR = 2048

S_RB, S_J, S_WV, S_CP = 4, 5, 6, 7
P_Q, P_K, P_V, P_SH, P_SK, P_D, P_BX, P_W1, P_W2, P_C, P_WM, P_OUT, P_DBG, P_WS = range(8, 36, 2)
R_WS, R_A, R_B, R_C, R_D = 36, 40, 44, 48, 52
S_NONCE = 56
S_T = 57
S_M = 80
S_MASKHI = 80
S_PERM_LO = 81
S_PERM_HI = 82
S_OFF = 84
S_SPIN = 96
S_ST0 = 98

SRD3 = 0x00020000
SPIN_MAX = 1 << 17


class Gen:
    def __init__(self, stop=None, stamps=False):
        self.A = Asm()
        self.stop = stop
        self.stamps = stamps
        self.nlab = 0
        self.nstamp = 0

    def lab(self, base):
        self.nlab += 1
        return f"L_{base}_{self.nlab}"

    def srd(self, r, ptr, nbytes, add=None):
        A = self.A
        if add is None:
            A(f"s_mov_b32 {s(r)}, {s(ptr)}")
            A(f"s_mov_b32 {s(r + 1)}, {s(ptr + 1)}")
        else:
            A(f"s_add_u32 {s(r)}, {s(ptr)}, {add}")
            A(f"s_addc_u32 {s(r + 1)}, {s(ptr + 1)}, 0")
        A(f"s_mov_b32 {s(r + 2)}, {nbytes}")
        A(f"s_mov_b32 {s(r + 3)}, 0x{SRD3:08x}")

    def stamp(self, idx):
        if not self.stamps:
            return
        A = self.A
        A(f"s_memrealtime {s(S_ST0, 2)}")
        A.wait_lgkm0()
        A(f"v_writelane_b32 v255, {s(S_ST0)}, {idx}")

    def stamp_flush(self):
        if not self.stamps:
            return
        A = self.A
        skip = self.lab("sf")
        A(f"s_cmp_lg_u32 {s(S_WV)}, 0")
        A(f"s_cbranch_scc1 {skip}")
        A.cond_begin()
        A("v_lshlrev_b32 v254, 2, v1")
        A(f"s_lshl_b32 {s(S_SPIN + 1)}, s2, 8")
        A(f"s_add_u32 {s(S_SPIN + 1)}, {s(S_SPIN + 1)}, {STAMP}")
        A(f"buffer_store_dword v255, v254, {s(R_WS, 4)}, {s(S_SPIN + 1)} offen")
        A.cond_end()
        A.label(skip)

    def flag_store(self, soff_sgpr, vtmp=252):
        A = self.A
        skip = self.lab("fl")
        A(f"s_cmp_lg_u32 {s(S_WV)}, 0")
        A(f"s_cbranch_scc1 {skip}")
        A.cond_begin()
        A(f"v_mov_b32 {v(vtmp)}, {s(S_NONCE)}")
        A(f"v_mov_b32 {v(vtmp + 1)}, {s(soff_sgpr)}")
        A("s_mov_b64 exec, 1")
        A(f"buffer_store_dword {v(vtmp)}, {v(vtmp + 1)}, {s(R_WS, 4)}, 0 offen sc1")
        A("s_mov_b64 exec, -1")
        A.cond_end()
        A.label(skip)

    def poll(self, vaddr, vtmp):
        A = self.A
        loop, done = self.lab("poll"), self.lab("polld")
        A(f"s_mov_b32 {s(S_SPIN)}, 0")
        A.label(loop)
        A(f"buffer_load_dword {v(vtmp)}, {v(vaddr)}, {s(R_WS, 4)}, 0 offen sc1")
        A.wait_vm(0)
        A(f"v_cmp_ne_u32 vcc, {s(S_NONCE)}, {v(vtmp)}")
        A(f"s_add_u32 {s(S_SPIN)}, {s(S_SPIN)}, 1")
        A("s_nop 3")
        A("s_cmp_eq_u64 vcc, 0")
        A(f"s_cbranch_scc1 {done}")
        A(f"s_cmp_lt_u32 {s(S_SPIN)}, {SPIN_MAX}")
        A(f"s_cbranch_scc1 {loop}")
        A.label(done)

    def finish(self):
        self.A("s_endpgm")

    def prologue(self):
        A = self.A
        A("s_cmp_ge_u32 s2, 256")
        A("s_cbranch_scc1 L_exit")
        A(f"s_load_dwordx16 {s(8, 16)}, s[0:1], 0")
        A(f"s_load_dwordx8 {s(24, 8)}, s[0:1], 64")
        A(f"s_load_dwordx4 {s(32, 4)}, s[0:1], 96")
        A("v_lshrrev_b32 v2, 6, v0")
        A("v_and_b32 v1, 63, v0")
        A(f"s_and_b32 {s(S_T)}, s2, 7")
        A(f"s_lshr_b32 {s(S_T + 1)}, s2, 3")
        A(f"v_readfirstlane_b32 {s(S_WV)}, v2")
        A(f"s_mov_b32 {s(S_MASKHI)}, 0xffff0000")
        A(f"s_mov_b32 {s(S_PERM_LO)}, 0x05040100")
        A(f"s_mov_b32 {s(S_PERM_HI)}, 0x07060302")
        A(f"s_mul_i32 {s(S_T + 2)}, {s(S_T + 1)}, 37")
        A(f"s_lshr_b32 {s(S_T + 2)}, {s(S_T + 2)}, 8")
        A(f"s_mul_i32 {s(S_T + 3)}, {s(S_T + 2)}, 7")
        A(f"s_sub_u32 {s(S_J)}, {s(S_T + 1)}, {s(S_T + 3)}")
        A(f"s_lshl_b32 {s(S_RB)}, {s(S_T)}, 2")
        A(f"s_add_u32 {s(S_RB)}, {s(S_RB)}, {s(S_T + 2)}")
        A(f"s_lshl_b32 {s(S_CP)}, {s(S_J)}, 5")
        A(f"s_add_u32 {s(S_CP)}, {s(S_CP)}, {s(S_RB)}")
        A.wait_lgkm0()
        self.srd(R_WS, P_WS, WS_END)
        A(f"s_load_dword {s(S_NONCE)}, {s(P_WS, 2)}, 0")
        A(f"s_cmp_ge_u32 {s(S_T + 1)}, 28")
        A("s_cbranch_scc1 L_helper")

    def phase_p(self):
        A = self.A
        T = S_T
        vC, vRG = 2, 3
        A(f"v_and_b32 {v(vC)}, 7, v1")
        A(f"v_lshrrev_b32 {v(vRG)}, 3, v1")
        vOffR, vOffO = 4, 5
        A(f"s_lshl_b32 {s(T)}, {s(S_RB)}, 6")
        A(f"s_lshl_b32 {s(T + 1)}, {s(S_WV)}, 4")
        A(f"s_add_u32 {s(T)}, {s(T)}, {s(T + 1)}")
        A(f"v_lshl_add_u32 {v(vOffR)}, {v(vRG)}, 1, {s(T)}")
        A(f"v_mul_u32_u24 {v(vOffR)}, 896, {v(vOffR)}")
        A(f"v_lshl_add_u32 {v(vOffR)}, {v(vC)}, 4, {v(vOffR)}")
        A(f"s_lshl_b32 {s(T + 2)}, {s(S_J)}, 7")
        A(f"v_add_u32 {v(vOffO)}, {s(T + 2)}, {v(vOffR)}")
        vKa = 6
        for i in range(5):
            d = (i - 3) * 896
            if d < 0:
                A(f"v_subrev_u32 {v(vKa + i)}, {-d}, {v(vOffO)}")
            elif d == 0:
                A(f"v_mov_b32 {v(vKa + i)}, {v(vOffO)}")
            else:
                A(f"v_add_u32 {v(vKa + i)}, {d}, {v(vOffO)}")
        NB = 2048 * 896
        self.srd(R_A, P_K, NB)
        self.srd(R_B, P_V, NB)
        self.srd(R_C, P_SH, 448 * 8)
        vK, vV, vSH = 16, 36, 44
        for i in range(5):
            A(f"buffer_load_dwordx4 {v(vK + 4 * i, 4)}, {v(vKa + i)}, {s(R_A, 4)}, 0 offen")
        for i in range(2):
            A(f"buffer_load_dwordx4 {v(vV + 4 * i, 4)}, {v(vOffO)}, {s(R_B, 4)}, 0 offen offset:{896 * i}")
        vt = 11
        A(f"s_lshl_b32 {s(T + 3)}, {s(S_J)}, 9")
        A(f"v_lshl_add_u32 {v(vt)}, {v(vC)}, 6, {s(T + 3)}")
        for i in range(4):
            A(f"buffer_load_dwordx4 {v(vSH + 4 * i, 4)}, {v(vt)}, {s(R_C, 4)}, 0 offen offset:{16 * i}")
        sWB, sIsW2, sSrc, sStride, sA, sR1, sD0, sDS = T + 4, T + 5, T + 6, T + 7, T + 8, T + 9, T + 10, T + 11
        A(f"s_mul_i32 {s(sWB)}, {s(S_RB)}, 7")
        A(f"s_add_u32 {s(sWB)}, {s(sWB)}, {s(S_J)}")
        t0, t1, t2, t3 = T + 12, T + 13, T + 14, T + 15
        A(f"s_lshr_b32 {s(t0)}, {s(sWB)}, 2")
        A(f"s_and_b32 {s(t1)}, {s(sWB)}, 3")
        A(f"s_mul_i32 {s(sSrc)}, {s(t0)}, {16 * 3584}")
        A(f"s_mul_i32 {s(t2)}, {s(t1)}, 896")
        A(f"s_add_u32 {s(sSrc)}, {s(sSrc)}, {s(t2)}")
        A(f"s_mul_i32 {s(t2)}, {s(t1)}, 14")
        A(f"s_add_u32 {s(t2)}, {s(t2)}, {s(S_WV)}")
        A(f"s_mul_i32 {s(t2)}, {s(t2)}, 28")
        A(f"s_add_u32 {s(sD0)}, {s(t2)}, {s(t0)}")
        A(f"s_lshl_b32 {s(sD0)}, {s(sD0)}, 10")
        A(f"s_add_u32 {s(sD0)}, {s(sD0)}, {W1F}")
        u0, u1, u2, uSrc, uD0 = T + 16, T + 17, T + 18, T + 19, T + 20
        A(f"s_sub_u32 {s(u0)}, {s(sWB)}, 112")
        A(f"s_mul_i32 {s(uSrc)}, {s(u0)}, {16 * 896}")
        A(f"s_mul_i32 {s(u1)}, {s(u0)}, 147")
        A(f"s_lshr_b32 {s(u1)}, {s(u1)}, 12")
        A(f"s_mul_i32 {s(u2)}, {s(u1)}, 28")
        A(f"s_sub_u32 {s(u2)}, {s(u0)}, {s(u2)}")
        A(f"s_mul_i32 {s(uD0)}, {s(u1)}, 56")
        A(f"s_lshl_b32 {s(u2)}, {s(u2)}, 1")
        A(f"s_add_u32 {s(uD0)}, {s(uD0)}, {s(u2)}")
        A(f"s_lshr_b32 {s(u1)}, {s(S_WV)}, 1")
        A(f"s_mul_i32 {s(u1)}, {s(u1)}, 224")
        A(f"s_add_u32 {s(uD0)}, {s(uD0)}, {s(u1)}")
        A(f"s_and_b32 {s(u1)}, {s(S_WV)}, 1")
        A(f"s_add_u32 {s(uD0)}, {s(uD0)}, {s(u1)}")
        A(f"s_lshl_b32 {s(uD0)}, {s(uD0)}, 10")
        A(f"s_add_u32 {s(uD0)}, {s(uD0)}, {W2F}")
        A(f"s_cmp_ge_u32 {s(sWB)}, 112")
        A(f"s_cselect_b32 {s(sSrc)}, {s(uSrc)}, {s(sSrc)}")
        A(f"s_cselect_b32 {s(sD0)}, {s(uD0)}, {s(sD0)}")
        A(f"s_mov_b32 {s(sStride)}, 3584")
        A(f"s_cselect_b32 {s(sStride)}, 896, {s(sStride)}")
        A(f"s_cselect_b32 {s(sA)}, 4, 8")
        A(f"s_mov_b32 {s(sR1)}, {4 * 1088}")
        A(f"s_cselect_b32 {s(sR1)}, {8 * 1088}, {s(sR1)}")
        A(f"s_mov_b32 {s(sDS)}, {112 * 1024}")
        A(f"s_cselect_b32 {s(sDS)}, {448 * 1024}, {s(sDS)}")
        A(f"s_cselect_b32 {s(R_D)}, {s(P_W2)}, {s(P_W1)}")
        A(f"s_cselect_b32 {s(R_D + 1)}, {s(P_W2 + 1)}, {s(P_W1 + 1)}")
        A(f"s_mov_b32 {s(R_D + 2)}, 1605632")
        A(f"s_mov_b32 {s(R_D + 3)}, 0x{SRD3:08x}")
        A(f"s_lshl_b32 {s(t0)}, {s(S_WV)}, 2")
        A(f"s_mul_i32 {s(t0)}, {s(t0)}, {s(sStride)}")
        A(f"s_add_u32 {s(sSrc)}, {s(sSrc)}, {s(t0)}")
        vL16 = 12
        A(f"v_lshlrev_b32 {v(vL16)}, 4, v1")
        vW = 60
        vWa = 13
        A(f"v_add_u32 {v(vWa)}, {s(sSrc)}, {v(vL16)}")
        for i in range(4):
            A(f"buffer_load_dwordx4 {v(vW + 4 * i, 4)}, {v(vWa)}, {s(R_D, 4)}, 0 offen")
            if i < 3:
                A(f"v_add_u32 {v(vWa)}, {s(sStride)}, {v(vWa)}")
        self.srd(R_A, P_Q, NB)
        vQ = 76
        vQO = 132
        for r in range(2):
            A(f"buffer_load_dwordx4 {v(vQO + 4 * r, 4)}, {v(vOffO)}, {s(R_A, 4)}, 0 offen offset:{896 * r}")
        for r in range(2):
            for i in range(7):
                A(f"buffer_load_dwordx4 {v(vQ + 28 * r + 4 * i, 4)}, {v(vOffR)}, {s(R_A, 4)}, 0 offen offset:{896 * r + 128 * i}")
        A(f"s_lshl_b32 {s(t0)}, {s(S_CP)}, 13")
        self.srd(R_B, P_SK, 4096, add=s(t0))
        A(f"s_add_u32 {s(t0)}, {s(t0)}, 4096")
        self.srd(R_C, P_SK, 4096, add=s(t0))
        vKA, vKB, vKA2, vKB2 = 14, 15, 140, 141
        A(f"v_lshlrev_b32 {v(vKA)}, 4, v0")
        A(f"v_subrev_u32 {v(vKB)}, 16, {v(vKA)}")
        A(f"v_subrev_u32 {v(vKA)}, 32, {v(vKA)}")
        A(f"v_and_b32 {v(vKA2)}, 1, v1")
        A(f"v_lshlrev_b32 {v(vKA2)}, 4, {v(vKA2)}")
        A(f"v_add_u32 {v(vKB2)}, 4080, {v(vKA2)}")
        A(f"v_add_u32 {v(vKA2)}, 4064, {v(vKA2)}")
        vKD = 144
        for e in range(2):
            R = R_B if e == 0 else R_C
            for ps in range(2):
                b = vKD + 8 * (2 * e + ps)
                A(f"buffer_load_dwordx4 {v(b, 4)}, {v(vKA if ps == 0 else vKA2)}, {s(R, 4)}, 0 offen")
                A(f"buffer_load_dwordx2 {v(b + 4, 2)}, {v(vKB if ps == 0 else vKB2)}, {s(R, 4)}, 0 offen")
        pc = u0 if u0 % 2 == 0 else u0 + 1
        A(f"s_getpc_b64 {s(pc, 2)}")
        A.label("L_pc")
        vPF = 142
        A(f"v_lshlrev_b32 {v(vPF)}, 7, v0")
        A(f"v_min_u32 {v(vPF)}, L_code_end-L_pc-4, {v(vPF)}")
        A(f"global_load_dword {v(vPF + 1)}, {v(vPF)}, {s(pc, 2)}")
        self.stamp(1)

        vT, vWP, vS0, vS1, vO = 176, 186, 194, 196, 200
        for p in range(4):
            for i in range(5):
                src = vK + 4 * i + p
                A(f"v_lshlrev_b32 {v(vT + 2 * i)}, 16, {v(src)}")
                A(f"v_and_b32 {v(vT + 2 * i + 1)}, {s(S_MASKHI)}, {v(src)}")
            for e in range(2):
                d0 = vSH + 2 * (2 * p + e)
                A(f"v_lshlrev_b32 {v(vWP + 0 + e)}, 16, {v(d0)}")
                A(f"v_and_b32 {v(vWP + 2 + e)}, {s(S_MASKHI)}, {v(d0)}")
                A(f"v_lshlrev_b32 {v(vWP + 4 + e)}, 16, {v(d0 + 1)}")
                A(f"v_and_b32 {v(vWP + 6 + e)}, {s(S_MASKHI)}, {v(d0 + 1)}")
            for row, acc in ((0, vS0), (1, vS1)):
                A(f"v_pk_mul_f32 {v(acc, 2)}, {v(vT + 2 * (3 + row), 2)}, {v(vWP, 2)}")
            for tap in range(1, 4):
                for row, acc in ((0, vS0), (1, vS1)):
                    A(f"v_pk_fma_f32 {v(acc, 2)}, {v(vT + 2 * (3 + row - tap), 2)}, {v(vWP + 2 * tap, 2)}, {v(acc, 2)}")
            for row, acc in ((0, vS0), (1, vS1)):
                src = vV + 4 * row + p
                A(f"v_lshlrev_b32 {v(vT + 2 * row)}, 16, {v(src)}")
                A(f"v_and_b32 {v(vT + 2 * row + 1)}, {s(S_MASKHI)}, {v(src)}")
            for row, acc in ((0, vS0), (1, vS1)):
                A(f"v_pk_mul_f32 {v(acc, 2)}, {v(acc, 2)}, {v(vT + 2 * row, 2)}")
            for row, acc in ((0, vS0), (1, vS1)):
                A(f"v_cvt_pk_bf16_f32 {v(vO + 2 * p + row)}, {v(acc)}, {v(acc + 1)}")
        vTPW = 208
        A(f"v_mul_u32_u24 {v(vTPW)}, 1088, {v(vC)}")
        A(f"v_lshl_add_u32 {v(vTPW)}, {v(vRG)}, 3, {v(vTPW)}")
        A(f"s_lshl_b32 {s(t0)}, {s(S_WV)}, 6")
        A(f"v_add_u32 {v(vTPW)}, {s(t0)}, {v(vTPW)}")
        for p in range(4):
            A(f"ds_write_b64 {v(vTPW)}, {v(vO + 2 * p, 2)} offset:{L_TPK + 272 * p}")
        vWw = 209
        A(f"s_mul_i32 {s(t0)}, {s(S_WV)}, {4 * 1088}")
        A(f"v_add_u32 {v(vWw)}, {s(t0)}, {v(vL16)}")
        for i in range(4):
            A(f"ds_write_b128 {v(vWw)}, {v(vW + 4 * i, 4)} offset:{L_WB + 1088 * i}")
        vTPR, vG, vTR0, vTR1, vx = 210, 211, 212, 213, 214
        A(f"v_lshrrev_b32 {v(vG)}, 4, v0")
        A(f"v_mul_u32_u24 {v(vTPR)}, 272, {v(vG)}")
        A(f"v_and_b32 {v(vx)}, 15, v0")
        A(f"v_lshl_add_u32 {v(vTPR)}, {v(vx)}, 4, {v(vTPR)}")
        vStO = 215
        A(f"v_lshlrev_b32 {v(vStO)}, 13, {v(vG)}")
        A(f"v_lshl_add_u32 {v(vStO)}, {v(vx)}, 4, {v(vStO)}")
        A(f"v_lshrrev_b32 {v(vTR0)}, 5, v1")
        A(f"v_mul_lo_u32 {v(vTR0)}, {v(vTR0)}, {s(sA)}")
        A(f"v_bfe_u32 {v(vx)}, v1, 2, 2")
        A(f"v_add_u32 {v(vTR0)}, {v(vTR0)}, {v(vx)}")
        A(f"v_mul_u32_u24 {v(vTR0)}, 1088, {v(vTR0)}")
        A(f"v_bfe_u32 {v(vx)}, v1, 4, 1")
        A(f"v_lshl_add_u32 {v(vTR0)}, {v(vx)}, 5, {v(vTR0)}")
        A(f"v_and_b32 {v(vx)}, 3, v1")
        A(f"v_lshl_add_u32 {v(vTR0)}, {v(vx)}, 3, {v(vTR0)}")
        A(f"s_lshl_b32 {s(t0)}, {s(S_WV)}, 6")
        A(f"v_add_u32 {v(vTR0)}, {s(t0)}, {v(vTR0)}")
        A(f"v_add_u32 {v(vTR1)}, {s(sR1)}, {v(vTR0)}")
        A.barrier()
        vRB = 16
        for i in range(2):
            A(f"ds_read_b128 {v(vRB + 4 * i, 4)}, {v(vTPR)} offset:{L_TPK + 4352 * i}")
        vF = 24
        for i in range(4):
            A(f"ds_read_b64_tr_b16 {v(vF + 4 * i, 2)}, {v(vTR0)} offset:{L_WB + 256 * i}")
            A(f"ds_read_b64_tr_b16 {v(vF + 4 * i + 2, 2)}, {v(vTR1)} offset:{L_WB + 256 * i}")
        sTile = S_OFF
        A(f"s_lshl_b32 {s(sTile)}, {s(S_J)}, 18")
        A(f"s_lshl_b32 {s(t0)}, {s(S_RB)}, 8")
        A(f"s_add_u32 {s(sTile)}, {s(sTile)}, {s(t0)}")
        for i in range(2):
            A(f"s_add_u32 {s(t0)}, {s(sTile)}, {KVP + 131072 * i}")
            A(f"buffer_store_dwordx4 {v(vRB + 4 * i, 4)}, {v(vStO)}, {s(R_WS, 4)}, {s(t0)} offen sc1")
        for i in range(3):
            A(f"buffer_store_dwordx4 {v(vF + 4 * i, 4)}, {v(vL16)}, {s(R_WS, 4)}, {s(sD0)} offen sc1")
            A(f"s_add_u32 {s(sD0)}, {s(sD0)}, {s(sDS)}")
        skip = self.lab("w4")
        A(f"s_cmp_ge_u32 {s(S_WV)}, 2")
        A(f"s_cbranch_scc1 {skip}")
        A.cond_begin()
        A(f"buffer_store_dwordx4 {v(vF + 12, 4)}, {v(vL16)}, {s(R_WS, 4)}, {s(sD0)} offen sc1")
        A.cond_end()
        A.label(skip)
        self.stamp(2)

        vKW, vx4 = 216, 40
        A(f"v_lshlrev_b32 {v(vKW)}, 4, v0")
        A(f"v_and_b32 {v(vKW + 1)}, 1, v1")
        A(f"v_lshlrev_b32 {v(vKW + 1)}, 4, {v(vKW + 1)}")
        A(f"v_add_u32 {v(vKW + 1)}, {4096 + L_KC}, {v(vKW + 1)}")
        A(f"v_add_u32 {v(vKW)}, {L_KC}, {v(vKW)}")
        for e in range(2):
            for ps in range(2):
                b = vKD + 8 * (2 * e + ps)
                base = e * 4 * CS
                ad = vKW + ps
                A(f"ds_write_b128 {v(ad)}, {v(b, 4)} offset:{base}")
                for i in range(4):
                    A(f"v_alignbit_b32 {v(vx4 + i)}, {v(b + i + 1)}, {v(b + i)}, 16")
                A(f"ds_write_b128 {v(ad)}, {v(vx4, 4)} offset:{base + CS}")
                for i in range(4):
                    A(f"v_mov_b32 {v(vx4 + 4 + i)}, {v(b + i + 1)}")
                A(f"ds_write_b128 {v(ad)}, {v(vx4 + 4, 4)} offset:{base + 2 * CS}")
                for i in range(4):
                    A(f"v_alignbit_b32 {v(vx4 + 8 + i)}, {v(b + i + 2)}, {v(b + i + 1)}, 16")
                A(f"ds_write_b128 {v(ad)}, {v(vx4 + 8, 4)} offset:{base + 3 * CS}")

        vS = 52
        vU = 176
        for r in range(2):
            for i in range(28):
                src = vQ + 28 * r + i
                u = vU + 2 * ((i + r) % 4)
                A(f"v_lshlrev_b32 {v(u)}, 16, {v(src)}")
                A(f"v_and_b32 {v(u + 1)}, {s(S_MASKHI)}, {v(src)}")
                if i == 0:
                    A(f"v_mov_b32 {v(vS + 4 * r)}, {v(u)}")
                    A(f"v_mov_b32 {v(vS + 4 * r + 1)}, {v(u + 1)}")
                    A(f"v_pk_mul_f32 {v(vS + 4 * r + 2, 2)}, {v(u, 2)}, {v(u, 2)}")
                else:
                    A(f"v_pk_add_f32 {v(vS + 4 * r, 2)}, {v(vS + 4 * r, 2)}, {v(u, 2)}")
                    A(f"v_pk_fma_f32 {v(vS + 4 * r + 2, 2)}, {v(u, 2)}, {v(u, 2)}, {v(vS + 4 * r + 2, 2)}")
        chains = [vS, vS + 2, vS + 4, vS + 6]
        for c_ in chains:
            A(f"v_add_f32 {v(c_)}, {v(c_)}, {v(c_ + 1)}")
        for mod in ("quad_perm:[1,0,3,2]", "quad_perm:[2,3,0,1]", "row_half_mirror"):
            for c_ in chains:
                A(f"v_add_f32_dpp {v(c_)}, {v(c_)}, {v(c_)} {mod} row_mask:0xf bank_mask:0xf")
        sInv, sEps = t0, t1
        A(f"s_mov_b32 {s(sInv)}, 0x{f32bits(1.0 / 448):08x}")
        A(f"s_mov_b32 {s(sEps)}, 0x{f32bits(1e-5):08x}")
        for r in range(2):
            m, q2 = vS + 4 * r, vS + 4 * r + 2
            A(f"v_mul_f32 {v(m)}, {s(sInv)}, {v(m)}")
            A(f"v_mul_f32 {v(q2)}, {s(sInv)}, {v(q2)}")
        for r in range(2):
            m, q2 = vS + 4 * r, vS + 4 * r + 2
            A(f"v_fma_f32 {v(q2)}, -{v(m)}, {v(m)}, {v(q2)}")
        for r in range(2):
            q2 = vS + 4 * r + 2
            A(f"v_max_f32 {v(q2)}, 0, {v(q2)}")
            A(f"v_add_f32 {v(q2)}, {s(sEps)}, {v(q2)}")
        for r in range(2):
            q2 = vS + 4 * r + 2
            A(f"v_rsq_f32 {v(q2)}, {v(q2)}")
        for r in range(2):
            m, q2 = vS + 4 * r, vS + 4 * r + 2
            A(f"v_mul_f32 {v(m)}, {v(m)}, {v(q2)}")
        vN = 200
        for r in range(2):
            m, q2 = vS + 4 * r, vS + 4 * r + 2
            for p in range(4):
                src = vQO + 4 * r + p
                u = vU + 2 * p
                A(f"v_lshlrev_b32 {v(u)}, 16, {v(src)}")
                A(f"v_and_b32 {v(u + 1)}, {s(S_MASKHI)}, {v(src)}")
            for p in range(4):
                u = vU + 2 * p
                A(f"v_pk_fma_f32 {v(u, 2)}, {v(u, 2)}, {v(q2, 2)}, {v(m, 2)} op_sel_hi:[1,0,0] neg_lo:[0,0,1] neg_hi:[0,0,1]")
            for p in range(4):
                u = vU + 2 * p
                A(f"v_cvt_pk_bf16_f32 {v(vN + 2 * p + r)}, {v(u)}, {v(u + 1)}")
        for p in range(4):
            A(f"ds_write_b64 {v(vTPW)}, {v(vN + 2 * p, 2)} offset:{L_TPN + 272 * p}")
        A(f"v_add_u32 {v(vx)}, {L_TPQ}, {v(vTPW)}")
        for p in range(4):
            A(f"ds_write2_b32 {v(vx)}, {v(vQO + p)}, {v(vQO + 4 + p)} offset0:{68 * p} offset1:{68 * p + 1}")
        A.wait_vm(0)
        A.barrier()
        sFl = S_OFF + 1
        A(f"s_add_u32 {s(S_NONCE)}, {s(S_NONCE)}, 1")
        A(f"s_lshl_b32 {s(sFl)}, {s(S_CP)}, 7")
        A(f"s_add_u32 {s(t0)}, {s(sFl)}, {FL + F1 * 128}")
        self.flag_store(t0)
        self.stamp(3)
        for i in range(2):
            A(f"ds_read_b128 {v(vRB + 4 * i, 4)}, {v(vTPR)} offset:{L_TPQ + 4352 * i}")
            A(f"ds_read_b128 {v(vRB + 8 + 4 * i, 4)}, {v(vTPR)} offset:{L_TPN + 4352 * i}")
        for i in range(2):
            A(f"s_add_u32 {s(t0)}, {s(sTile)}, {QP + 131072 * i}")
            A(f"buffer_store_dwordx4 {v(vRB + 4 * i, 4)}, {v(vStO)}, {s(R_WS, 4)}, {s(t0)} offen sc1")
            A(f"s_add_u32 {s(t0)}, {s(sTile)}, {N1P + 131072 * i}")
            A(f"buffer_store_dwordx4 {v(vRB + 8 + 4 * i, 4)}, {v(vStO)}, {s(R_WS, 4)}, {s(t0)} offen sc1")
        A("v_mov_b32 v40, 0")
        A("v_mov_b32 v41, 0")
        A("v_lshlrev_b32 v42, 3, v1")
        for e in range(2):
            A(f"ds_write_b64 v42, v[40:41] offset:{L_UR + 4608 * e + 4096}")
        A.wait_vm(0)
        A.barrier()
        A(f"s_add_u32 {s(t0)}, {s(sFl)}, {FL + FQ * 128}")
        self.flag_store(t0)
        self.stamp(4)

    def phase_a(self):
        A = self.A
        T = S_T
        t0, t1, t2 = T, T + 1, T + 2
        vPa, vPt = 2, 3
        A(f"v_min_u32 {v(vPa)}, 55, v1")
        A(f"s_mul_i32 {s(t0)}, {s(S_WV)}, 56")
        A(f"v_add_u32 {v(vPa)}, {s(t0)}, {v(vPa)}")
        A(f"v_lshlrev_b32 {v(vPa)}, 7, {v(vPa)}")
        A(f"v_add_u32 {v(vPa)}, {FL + F1 * 128}, {v(vPa)}")
        self.poll(vPa, vPt)
        A.barrier()
        self.stamp(5)
        vL16 = 4
        A(f"v_lshlrev_b32 {v(vL16)}, 4, v1")
        sKV = S_OFF + 2
        A(f"s_lshl_b32 {s(sKV)}, {s(S_CP)}, 13")
        A(f"s_lshl_b32 {s(t0)}, {s(S_WV)}, 11")
        A(f"s_add_u32 {s(sKV)}, {s(sKV)}, {s(t0)}")
        vKV = 8
        A(f"s_add_u32 {s(t0)}, {s(sKV)}, {KVP}")
        for h in range(2):
            A(f"buffer_load_dwordx4 {v(vKV + 4 * h, 4)}, {v(vL16)}, {s(R_WS, 4)}, {s(t0)} offen offset:{1024 * h} sc1")
        vUW, vaA, vaB, vx, vy = 5, 6, 7, 16, 17
        A(f"s_lshl_b32 {s(t0)}, {s(S_WV)}, 10")
        A(f"s_sub_u32 {s(t0)}, {4088 - 512}, {s(t0)}")
        A(f"v_lshlrev_b32 {v(vx)}, 3, v1")
        A(f"v_sub_u32 {v(vUW)}, {s(t0)}, {v(vx)}")
        A(f"v_and_b32 {v(vx)}, 15, v1")
        A(f"v_add_u32 {v(vx)}, 1, {v(vx)}")
        A(f"v_and_b32 {v(vy)}, 3, {v(vx)}")
        A(f"v_sub_u32 {v(vx)}, {v(vx)}, {v(vy)}")
        A(f"v_lshlrev_b32 {v(vx)}, 1, {v(vx)}")
        A(f"v_mul_u32_u24 {v(vy)}, {CS}, {v(vy)}")
        A(f"v_add_u32 {v(vaA)}, {v(vx)}, {v(vy)}")
        A(f"v_lshrrev_b32 {v(vy)}, 4, v1")
        A(f"v_lshl_add_u32 {v(vaA)}, {v(vy)}, 4, {v(vaA)}")
        A(f"s_lshr_b32 {s(t0)}, {s(S_WV)}, 1")
        A(f"s_and_b32 {s(t1)}, {s(S_WV)}, 1")
        A(f"s_mul_i32 {s(t2)}, {s(t0)}, {4 * CS}")
        A(f"s_lshl_b32 {s(t1)}, {s(t1)}, 8")
        A(f"s_add_u32 {s(t2)}, {s(t2)}, {s(t1)}")
        A(f"s_add_u32 {s(t2)}, {s(t2)}, {L_KC}")
        A(f"v_add_u32 {v(vaA)}, {s(t2)}, {v(vaA)}")
        A(f"v_and_b32 {v(vx)}, 15, v1")
        A(f"v_lshlrev_b32 {v(vx)}, 5, {v(vx)}")
        A(f"v_lshlrev_b32 {v(vy)}, 4, {v(vy)}")
        A(f"v_sub_u32 {v(vaB)}, {v(vy)}, {v(vx)}")
        A(f"s_mul_i32 {s(t2)}, {s(t0)}, 4608")
        A(f"s_add_u32 {s(t2)}, {s(t2)}, {s(t1)}")
        A(f"s_add_u32 {s(t2)}, {s(t2)}, {L_UR + 480}")
        A(f"v_add_u32 {v(vaB)}, {s(t2)}, {v(vaB)}")
        vP = 20
        for h in range(2):
            d = vKV + 4 * h
            for e, sel in ((0, S_PERM_LO), (1, S_PERM_HI)):
                o = vP + 4 * h + 2 * e
                A(f"v_perm_b32 {v(o)}, {v(d + 2)}, {v(d + 3)}, {s(sel)}")
                A(f"v_perm_b32 {v(o + 1)}, {v(d)}, {v(d + 1)}, {s(sel)}")
                A(f"ds_write_b64 {v(vUW)}, {v(o, 2)} offset:{L_UR + 4608 * e + (512 if h == 0 else 0)}")
        A.barrier()
        self.stamp(6)
        ACC = 32
        BS = [64, 96]
        AR = 128

        def ldB(rp, m):
            A(f"ds_read_b128 {v(BS[rp & 1] + 4 * m, 4)}, {v(vaB)} offset:{64 * rp + 512 * (7 - m)}")

        def ldA(idx):
            rp, q = divmod(idx, 8)
            r = AR + 4 * (idx % 4)
            A(f"ds_read_b64 {v(r, 2)}, {v(vaA)} offset:{64 * rp + 512 * q}")
            A(f"ds_read_b64 {v(r + 2, 2)}, {v(vaA)} offset:{64 * rp + 512 * q + 8}")

        for m in range(8):
            ldB(0, m)
        for idx in range(3):
            ldA(idx)
        for rp in range(4):
            for q in range(8):
                idx = rp * 8 + q
                if idx + 3 < 32:
                    ldA(idx + 3)
                if rp < 3 and 1 <= q <= 4:
                    ldB(rp + 1, 2 * (q - 1))
                    ldB(rp + 1, 2 * (q - 1) + 1)
                ar = AR + 4 * (idx % 4)
                for n in range(q, 8):
                    c = "0" if (rp == 0 and q == 0) else v(ACC + 4 * n, 4)
                    A(f"v_mfma_f32_16x16x32_bf16 {v(ACC + 4 * n, 4)}, {v(ar, 4)}, {v(BS[rp & 1] + 4 * (n - q), 4)}, {c}")
        self.stamp(7)
        vq = 18
        A(f"v_min_u32 {v(vq)}, 52, v1")
        A(f"v_cmp_gt_u32 vcc, 32, {v(vq)}")
        A(f"s_lshl_b32 {s(t0)}, {s(S_J)}, 5")
        A(f"s_add_u32 {s(t0)}, {s(t0)}, {FQ}")
        A(f"v_mov_b32 {v(vx)}, {FM - 32}")
        A(f"v_mov_b32 {v(vy)}, {s(t0)}")
        A(f"v_cndmask_b32 {v(vx)}, {v(vx)}, {v(vy)}, vcc")
        A(f"v_add_u32 {v(vq)}, {v(vq)}, {v(vx)}")
        A(f"v_lshlrev_b32 {v(vq)}, 7, {v(vq)}")
        A(f"v_add_u32 {v(vq)}, {FL}, {v(vq)}")
        vRW, vRR = 19, 28
        A(f"v_and_b32 {v(vx)}, 15, v1")
        A(f"v_mul_u32_u24 {v(vRW)}, 80, {v(vx)}")
        A(f"v_lshrrev_b32 {v(vy)}, 4, v1")
        A(f"v_lshl_add_u32 {v(vRW)}, {v(vy)}, 4, {v(vRW)}")
        A(f"s_mul_i32 {s(t0)}, {s(S_WV)}, 10240")
        A(f"s_add_u32 {s(t0)}, {s(t0)}, {L_RED}")
        A(f"v_add_u32 {v(vRW)}, {s(t0)}, {v(vRW)}")
        for n in range(8):
            A(f"ds_write_b128 {v(vRW)}, {v(ACC + 4 * n, 4)} offset:{1280 * n}")
        self.poll(vq, 3)
        vQn, vNn = 64, 72
        A(f"s_add_u32 {s(t0)}, {s(sKV)}, {QP}")
        A(f"s_add_u32 {s(t1)}, {s(sKV)}, {N1P}")
        for h in range(2):
            A(f"buffer_load_dwordx4 {v(vQn + 4 * h, 4)}, {v(vL16)}, {s(R_WS, 4)}, {s(t0)} offen offset:{1024 * h} sc1")
            A(f"buffer_load_dwordx4 {v(vNn + 4 * h, 4)}, {v(vL16)}, {s(R_WS, 4)}, {s(t1)} offen offset:{1024 * h} sc1")
        vPS, vPA, vPG, vPD = 80, 82, 84, 86
        A(f"s_lshl_b32 {s(t0)}, {s(S_CP)}, 3")
        A(f"v_mov_b32 {v(vx)}, {s(t0)}")
        for reg, sec in ((vPS, 0), (vPA, 1), (vPG, 2)):
            A(f"s_mov_b32 {s(t1)}, {MODF + sec * 1792}")
            A(f"buffer_load_dwordx2 {v(reg, 2)}, {v(vx)}, {s(R_WS, 4)}, {s(t1)} offen sc1")
        self.srd(R_A, P_D, 896)
        A(f"s_lshl_b32 {s(t0)}, {s(S_CP)}, 2")
        A(f"v_mov_b32 {v(vy)}, {s(t0)}")
        A(f"buffer_load_dword {v(vPD + 1)}, {v(vy)}, {s(R_A, 4)}, 0 offen")
        A(f"v_lshrrev_b32 {v(vx)}, 2, v1")
        A(f"v_mul_u32_u24 {v(vRR)}, 80, {v(vx)}")
        A(f"v_and_b32 {v(vy)}, 3, v1")
        A(f"v_lshl_add_u32 {v(vRR)}, {v(vy)}, 4, {v(vRR)}")
        A(f"s_mul_i32 {s(t0)}, {s(S_WV)}, 2560")
        A(f"s_add_u32 {s(t0)}, {s(t0)}, {L_RED}")
        A(f"v_add_u32 {v(vRR)}, {s(t0)}, {v(vRR)}")
        A.barrier()
        vY = 96
        for h in range(2):
            for w in range(4):
                A(f"ds_read_b128 {v(vY + 16 * h + 4 * w, 4)}, {v(vRR)} offset:{10240 * w + 1280 * h}")
        A(f"v_lshlrev_b32 {v(vPD)}, 16, {v(vPD + 1)}")
        A(f"v_and_b32 {v(vPD + 1)}, {s(S_MASKHI)}, {v(vPD + 1)}")
        vSt = 29
        A(f"v_lshrrev_b32 {v(vx)}, 4, v1")
        A(f"v_mul_u32_u24 {v(vSt)}, 57344, {v(vx)}")
        A(f"v_and_b32 {v(vy)}, 15, v1")
        A(f"v_lshl_add_u32 {v(vSt)}, {v(vy)}, 4, {v(vSt)}")
        sX = S_OFF + 3
        A(f"s_mul_i32 {s(sX)}, {s(S_WV)}, {2 * 229376}")
        A(f"s_lshl_b32 {s(t0)}, {s(S_CP)}, 8")
        A(f"s_add_u32 {s(sX)}, {s(sX)}, {s(t0)}")
        A(f"s_add_u32 {s(sX)}, {s(sX)}, {X1P}")
        vU, vQq, vNN, vXo = 128, 132, 136, 144
        vOut = 152
        for h in range(2):
            for e in range(2):
                y = vY + 16 * h + 8 * e
                sel = f"op_sel:[0,{e},0] op_sel_hi:[1,{e},1]"
                A(f"v_pk_add_f32 {v(y, 2)}, {v(y, 2)}, {v(y + 4, 2)}")
                A(f"v_pk_add_f32 {v(y + 2, 2)}, {v(y + 2, 2)}, {v(y + 6, 2)}")
                for r in range(4):
                    for dst, src in ((vU, vKV), (vQq, vQn), (vNN, vNn)):
                        if e == 0:
                            A(f"v_lshlrev_b32 {v(dst + r)}, 16, {v(src + 4 * h + r)}")
                        else:
                            A(f"v_and_b32 {v(dst + r)}, {s(S_MASKHI)}, {v(src + 4 * h + r)}")
                for k in (0, 2):
                    A(f"v_pk_fma_f32 {v(y + k, 2)}, {v(vU + k, 2)}, {v(vPD, 2)}, {v(y + k, 2)} {sel}")
                for k in (0, 2):
                    A(f"v_pk_fma_f32 {v(vNN + k, 2)}, {v(vNN + k, 2)}, {v(vPA, 2)}, {v(vPS, 2)} op_sel:[0,{e},{e}] op_sel_hi:[1,{e},{e}]")
                for k in (0, 2):
                    A(f"v_pk_mul_f32 {v(vNN + k, 2)}, {v(vNN + k, 2)}, {v(y + k, 2)}")
                for k in (0, 2):
                    A(f"v_pk_fma_f32 {v(vXo + 4 * e + k, 2)}, {v(vNN + k, 2)}, {v(vPG, 2)}, {v(vQq + k, 2)} {sel}")
            for r in range(4):
                A(f"v_cvt_pk_bf16_f32 {v(vOut + 4 * h + r)}, {v(vXo + r)}, {v(vXo + 4 + r)}")
            A(f"buffer_store_dwordx4 {v(vOut + 4 * h, 4)}, {v(vSt)}, {s(R_WS, 4)}, {s(sX)} offen sc1")
            if h == 0:
                A(f"s_add_u32 {s(sX)}, {s(sX)}, 229376")
        self.stamp(8)
        vpa = 16
        A(f"v_lshlrev_b32 {v(vpa)}, 3, v0")
        A(f"s_mov_b32 {s(t0)}, {MODF + 4 * 1792}")
        A(f"s_mov_b32 {s(t1)}, {MODF + 3 * 1792}")
        A(f"buffer_load_dwordx2 v[20:21], {v(vpa)}, {s(R_WS, 4)}, {s(t0)} offen sc1")
        A(f"buffer_load_dwordx2 v[22:23], {v(vpa)}, {s(R_WS, 4)}, {s(t1)} offen sc1")
        A(f"v_lshlrev_b32 v17, 2, v1")
        A(f"s_lshl_b32 {s(t0)}, {s(S_J)}, 8")
        A(f"s_add_u32 {s(t0)}, {s(t0)}, {MODF + 5 * 1792}")
        A(f"buffer_load_dword v24, v17, {s(R_WS, 4)}, {s(t0)} offen sc1")
        A(f"v_lshlrev_b32 v18, 4, v0")
        A(f"v_add_u32 v18, {L_PAR}, v18")
        A(f"v_add_u32 v19, {L_GB}, v17")
        A(f"ds_write_b128 v18, v[20:23]")
        A(f"ds_write_b32 v19, v24")
        A.wait_vm(0)
        A.barrier()
        A(f"s_lshl_b32 {s(t0)}, {s(S_CP)}, 7")
        A(f"s_add_u32 {s(t0)}, {s(t0)}, {FL + F2 * 128}")
        self.flag_store(t0)
        self.stamp(9)

    def phase_b(self):
        A = self.A
        T = S_T
        t0, t1, t2 = T, T + 1, T + 2
        vPa, vPt = 2, 3
        A(f"v_min_u32 {v(vPa)}, 55, v1")
        A(f"s_mul_i32 {s(t0)}, {s(S_WV)}, 56")
        A(f"v_add_u32 {v(vPa)}, {s(t0)}, {v(vPa)}")
        A(f"v_lshlrev_b32 {v(vPa)}, 7, {v(vPa)}")
        A(f"v_add_u32 {v(vPa)}, {FL + F2 * 128}, {v(vPa)}")
        self.poll(vPa, vPt)
        A.barrier()
        self.stamp(10)
        skip = self.lab("ep")
        A(f"s_cmp_lg_u32 {s(S_CP)}, 0")
        A(f"s_cbranch_scc1 {skip}")
        A.cond_begin()
        A(f"s_mov_b32 {s(t0)}, 0")
        self.flag_store(t0)
        A.cond_end()
        A.label(skip)
        vL4 = 4
        A(f"v_lshlrev_b32 {v(vL4)}, 2, v1")
        X = 88
        sX = S_OFF
        A(f"s_mul_i32 {s(sX)}, {s(S_RB)}, 57344")
        A(f"s_add_u32 {s(sX)}, {s(sX)}, {X1P}")
        A(f"s_mul_i32 {s(t0)}, {s(S_WV)}, 14336")
        A(f"s_add_u32 {s(t0)}, {s(t0)}, {s(sX)}")
        for e in range(56):
            if e and e % 16 == 0:
                A(f"s_add_u32 {s(t0)}, {s(t0)}, 4096")
            A(f"buffer_load_dword {v(X + 2 * e + 1)}, {v(vL4)}, {s(R_WS, 4)}, {s(t0)} offen offset:{256 * (e % 16)} sc1")
        XS = 200
        A(f"s_lshl_b32 {s(t0)}, {s(S_J)}, 13")
        A(f"s_lshl_b32 {s(t1)}, {s(S_WV)}, 11")
        A(f"s_add_u32 {s(t0)}, {s(t0)}, {s(t1)}")
        A(f"s_add_u32 {s(t0)}, {s(t0)}, {s(sX)}")
        for e in range(7):
            A(f"buffer_load_dword {v(XS + e)}, {v(vL4)}, {s(R_WS, 4)}, {s(t0)} offen offset:{256 * e} sc1")
        vS = 8
        for e in range(56):
            r = X + 2 * e
            A(f"v_lshlrev_b32 {v(r)}, 16, {v(r + 1)}")
            A(f"v_and_b32 {v(r + 1)}, {s(S_MASKHI)}, {v(r + 1)}")
            s1, s2 = vS + 2 * (e & 1), vS + 4 + 2 * (e & 1)
            if e < 2:
                A(f"v_mov_b32 {v(s1)}, {v(r)}")
                A(f"v_mov_b32 {v(s1 + 1)}, {v(r + 1)}")
                A(f"v_pk_mul_f32 {v(s2, 2)}, {v(r, 2)}, {v(r, 2)}")
            else:
                A(f"v_pk_add_f32 {v(s1, 2)}, {v(s1, 2)}, {v(r, 2)}")
                A(f"v_pk_fma_f32 {v(s2, 2)}, {v(r, 2)}, {v(r, 2)}, {v(s2, 2)}")
            if e == 8:
                A(f"buffer_load_dword {v(XS + 7)}, {v(vL4)}, {s(R_WS, 4)}, {s(t0)} offen offset:{256 * 7} sc1")
        A(f"v_pk_add_f32 {v(vS, 2)}, {v(vS, 2)}, {v(vS + 2, 2)}")
        A(f"v_pk_add_f32 {v(vS + 4, 2)}, {v(vS + 4, 2)}, {v(vS + 6, 2)}")
        A(f"v_add_f32 {v(vS)}, {v(vS)}, {v(vS + 1)}")
        A(f"v_add_f32 {v(vS + 1)}, {v(vS + 4)}, {v(vS + 5)}")
        vSW = 5
        A(f"v_lshlrev_b32 {v(vSW)}, 3, v1")
        A(f"v_add_u32 {v(vSW)}, {L_STAT}, {v(vSW)}")
        A(f"s_lshl_b32 {s(t0)}, {s(S_WV)}, 9")
        A(f"v_add_u32 v6, {s(t0)}, {v(vSW)}")
        A(f"ds_write_b64 v6, {v(vS, 2)}")
        A(f"v_mul_u32_u24 v7, 144, v1")
        A(f"s_lshl_b32 {s(t0)}, {s(S_WV)}, 5")
        A(f"s_add_u32 {s(t0)}, {s(t0)}, {L_X1S}")
        A(f"v_add_u32 v7, {s(t0)}, v7")
        A(f"ds_write_b128 v7, {v(XS, 4)}")
        A(f"ds_write_b128 v7, {v(XS + 4, 4)} offset:16")
        A.barrier()
        for w in range(4):
            A(f"ds_read_b64 {v(16 + 2 * w, 2)}, {v(vSW)} offset:{512 * w}")
        A("v_pk_add_f32 v[16:17], v[16:17], v[18:19]")
        A("v_pk_add_f32 v[20:21], v[20:21], v[22:23]")
        A("v_pk_add_f32 v[16:17], v[16:17], v[20:21]")
        A(f"s_mov_b32 {s(t0)}, 0x{f32bits(1.0 / 448):08x}")
        A(f"s_mov_b32 {s(t1)}, 0x{f32bits(1e-5):08x}")
        A(f"v_mul_f32 v16, {s(t0)}, v16")
        A(f"v_mul_f32 v17, {s(t0)}, v17")
        A("v_fma_f32 v17, -v16, v16, v17")
        A("v_max_f32 v17, 0, v17")
        A(f"v_add_f32 v17, {s(t1)}, v17")
        A("v_rsq_f32 v17, v17")
        A("s_nop 0")
        A("v_mul_f32 v16, v16, v17")
        vR, vM = 18, 20
        A(f"v_mov_b32 {v(vR)}, v17")
        A(f"v_mov_b32 {v(vM)}, v16")
        vPb = 6
        A(f"s_mul_i32 {s(t0)}, {s(S_WV)}, 896")
        A(f"s_add_u32 {s(t0)}, {s(t0)}, {L_PAR}")
        A(f"v_mov_b32 {v(vPb)}, {s(t0)}")
        vHW = 7
        A(f"v_lshrrev_b32 v22, 5, v1")
        A(f"v_lshlrev_b32 {v(vHW)}, 10, v22")
        A(f"v_and_b32 v22, 31, v1")
        A(f"v_lshl_add_u32 {v(vHW)}, v22, 4, {v(vHW)}")
        A(f"s_mul_i32 {s(t0)}, {s(S_WV)}, {7 * 2048}")
        A(f"v_add_u32 {v(vHW)}, {s(t0)}, {v(vHW)}")
        PR = 24
        OUT = 56

        def ldP(e):
            A(f"ds_read_b128 {v(PR + 4 * (e % 8), 4)}, {v(vPb)} offset:{16 * e}")

        for e in range(6):
            ldP(e)
        for e in range(56):
            if e + 6 < 56:
                ldP(e + 6)
            r = X + 2 * e
            p = PR + 4 * (e % 8)
            sp, k = divmod(e, 8)
            o = OUT + 8 * (sp & 1)
            A(f"v_pk_fma_f32 {v(r, 2)}, {v(r, 2)}, {v(vR, 2)}, {v(vM, 2)} op_sel_hi:[1,0,0] neg_lo:[0,0,1] neg_hi:[0,0,1]")
            A(f"v_pk_fma_f32 {v(r, 2)}, {v(r, 2)}, {v(p, 2)}, {v(p + 2, 2)}")
            A(f"v_cvt_pk_bf16_f32 {v(o + k)}, {v(r)}, {v(r + 1)}")
            if k == 3:
                A(f"ds_write_b128 {v(vHW)}, {v(o, 4)} offset:{L_H2 + 2048 * sp}")
            if k == 7:
                A(f"ds_write_b128 {v(vHW)}, {v(o + 4, 4)} offset:{L_H2 + 2048 * sp + 512}")
        A.barrier()
        self.stamp(11)

    def load_w1(self, lo, hi):
        A = self.A
        t0, t1 = S_T, S_T + 1
        A(f"s_lshl_b32 {s(t0)}, {s(S_J)}, 3")
        A(f"s_lshl_b32 {s(t1)}, {s(S_WV)}, 1")
        A(f"s_add_u32 {s(t0)}, {s(t0)}, {s(t1)}")
        A(f"s_mul_i32 {s(t0)}, {s(t0)}, {28 * 1024}")
        A(f"s_add_u32 {s(t0)}, {s(t0)}, {W1F + 1024 * (lo - lo % 4)}")
        A(f"v_lshlrev_b32 v3, 4, v1")
        for f in range(lo, hi):
            if f != lo and f % 4 == 0:
                A(f"s_add_u32 {s(t0)}, {s(t0)}, 4096")
            A(f"buffer_load_dwordx4 {a(4 * f, 4)}, v3, {s(R_WS, 4)}, {s(t0)} offen offset:{1024 * (f % 4)} sc1")

    def w2reg(self, f):
        if f < 41:
            return v(88 + 4 * f, 4)
        if f < 49:
            return a(224 + 4 * (f - 41), 4)
        return a(4 * (f - 49), 4)

    def w2_load_list(self, lo, hi, sreg):
        out = []
        for f in range(lo, hi):
            if f % 4 == 0 and f != 0:
                out.append(f"s_add_u32 {s(sreg)}, {s(sreg)}, 4096")
            out.append(f"buffer_load_dwordx4 {self.w2reg(f)}, v3, {s(R_WS, 4)}, {s(sreg)} offen offset:{1024 * (f % 4)} sc1")
        return out

    def phase_c(self):
        A = self.A
        T = S_T
        t0, t1 = T, T + 1
        sW2, sH = S_OFF + 4, S_OFF + 5
        A(f"v_lshlrev_b32 v3, 4, v1")
        A(f"s_lshl_b32 {s(t0)}, {s(S_J)}, 2")
        A(f"s_add_u32 {s(t0)}, {s(t0)}, {s(S_WV)}")
        A(f"s_mul_i32 {s(sW2)}, {s(t0)}, {56 * 1024}")
        A(f"s_add_u32 {s(sW2)}, {s(sW2)}, {W2F}")
        A(f"s_mul_i32 {s(t0)}, {s(S_RB)}, 112")
        A(f"s_lshl_b32 {s(t1)}, {s(S_J)}, 4")
        A(f"s_add_u32 {s(t0)}, {s(t0)}, {s(t1)}")
        A(f"s_lshl_b32 {s(t1)}, {s(S_WV)}, 2")
        A(f"s_add_u32 {s(t0)}, {s(t0)}, {s(t1)}")
        A(f"s_lshl_b32 {s(sH)}, {s(t0)}, 11")
        A(f"s_add_u32 {s(sH)}, {s(sH)}, {HF}")
        sC = S_OFF + 6
        A(f"s_mov_b32 {s(sC)}, 0x{f32bits(-1.4426950408889634):08x}")
        ACC = [24, 40]
        RING = 56
        TMP = 68
        OUT = 76
        w2ld = self.w2_load_list(0, 49, sW2)
        w2pos = 0

        def silu_ops(tile):
            ft, th = divmod(tile, 2)
            acc = ACC[tile & 1]
            ops = []
            for g in range(2):
                base = acc + 8 * g
                for i in range(8):
                    ops.append(f"v_mul_f32 {v(TMP + i)}, {s(sC)}, {v(base + i)}")
                for i in range(8):
                    ops.append(f"v_exp_f32 {v(TMP + i)}, {v(TMP + i)}")
                for i in range(8):
                    ops.append(f"v_add_f32 {v(TMP + i)}, 1.0, {v(TMP + i)}")
                for i in range(8):
                    ops.append(f"v_rcp_f32 {v(TMP + i)}, {v(TMP + i)}")
                for i in range(8):
                    ops.append(f"v_mul_f32 {v(base + i)}, {v(base + i)}, {v(TMP + i)}")
                for i in range(4):
                    ops.append(f"v_cvt_pk_bf16_f32 {v(OUT + 4 * g + i)}, {v(base + 2 * i)}, {v(base + 2 * i + 1)}")
                off = (2 * (2 * ft + g) + th) * 1024
                if off >= 4096:
                    ops.append(f"s_add_u32 {s(t1)}, {s(sH)}, 4096")
                    ops.append(f"buffer_store_dwordx4 {v(OUT + 4 * g, 4)}, v3, {s(R_WS, 4)}, {s(t1)} offen offset:{off - 4096} sc1")
                else:
                    ops.append(f"buffer_store_dwordx4 {v(OUT + 4 * g, 4)}, v3, {s(R_WS, 4)}, {s(sH)} offen offset:{off} sc1")
            return ops

        def ldH(idx):
            tile, st = divmod(idx, 28)
            th = tile & 1
            A(f"ds_read_b128 {v(RING + 4 * (idx % 3), 4)}, v3 offset:{L_H2 + 2048 * st + 1024 * th}")

        ldH(0)
        ldH(1)
        pend = []
        for tile in range(4):
            ft = tile >> 1
            acc = ACC[tile & 1]
            for st in range(28):
                idx = tile * 28 + st
                if idx + 2 < 112:
                    ldH(idx + 2)
                c = "0" if st == 0 else v(acc, 16)
                A(f"v_mfma_f32_32x32x16_bf16 {v(acc, 16)}, {a(4 * (28 * ft + st), 4)}, {v(RING + 4 * (idx % 3), 4)}, {c}")
                if pend and st >= 2:
                    for _ in range(4):
                        if pend:
                            A(pend.pop(0))
                nld = 0
                while w2pos < len(w2ld) and nld < 1:
                    ins = w2ld[w2pos]
                    A(ins)
                    w2pos += 1
                    if ins.startswith("buffer"):
                        nld += 1
            assert not pend, len(pend)
            pend = silu_ops(tile)
        for ins in pend:
            A(ins)
        while w2pos < len(w2ld):
            A(w2ld[w2pos])
            w2pos += 1
        self.stamp(12)
        A.wait_vm(0)
        A.barrier()
        A(f"s_lshl_b32 {s(t0)}, {s(S_RB)}, 3")
        A(f"s_add_u32 {s(t0)}, {s(t0)}, {s(S_J)}")
        A(f"s_lshl_b32 {s(t0)}, {s(t0)}, 7")
        A(f"s_add_u32 {s(t0)}, {s(t0)}, {FL + F3 * 128}")
        self.flag_store(t0)
        for ins in self.w2_load_list(49, 56, sW2):
            A(ins)
        self.stamp(13)

    def phase_d(self):
        A = self.A
        T = S_T
        t0, t1 = T, T + 1
        vPa, vPt = 2, 4
        A(f"v_min_u32 {v(vPa)}, 6, v1")
        A(f"s_lshl_b32 {s(t0)}, {s(S_RB)}, 3")
        A(f"v_add_u32 {v(vPa)}, {s(t0)}, {v(vPa)}")
        A(f"v_lshlrev_b32 {v(vPa)}, 7, {v(vPa)}")
        A(f"v_add_u32 {v(vPa)}, {FL + F3 * 128}, {v(vPa)}")
        self.poll(vPa, vPt)
        self.stamp(14)
        sH = S_OFF
        A(f"s_mul_i32 {s(t0)}, {s(S_RB)}, 112")
        A(f"s_mul_i32 {s(t1)}, {s(S_WV)}, 28")
        A(f"s_add_u32 {s(t0)}, {s(t0)}, {s(t1)}")
        A(f"s_lshl_b32 {s(sH)}, {s(t0)}, 11")
        A(f"s_add_u32 {s(sH)}, {s(sH)}, {HF}")
        NSLOT = 49
        HB = 28

        def hreg(i):
            return a(HB + 4 * (i % NSLOT), 4)

        def ldH(i):
            if i % 4 == 0 and i:
                A(f"s_add_u32 {s(sH)}, {s(sH)}, 4096")
            A(f"buffer_load_dwordx4 {hreg(i)}, v3, {s(R_WS, 4)}, {s(sH)} offen offset:{1024 * (i % 4)} sc1")

        for i in range(NSLOT):
            ldH(i)
        ACC = 24
        nxt = NSLOT
        for st in range(28):
            for th in range(2):
                i = 2 * st + th
                for dt in range(2):
                    acc = ACC + 16 * (2 * dt + th)
                    c = "0" if st == 0 else v(acc, 16)
                    A(f"v_mfma_f32_32x32x16_bf16 {v(acc, 16)}, {self.w2reg(2 * st + dt)}, {hreg(i)}, {c}")
            for _ in range(2):
                if st >= 1 and nxt < 56:
                    ldH(nxt)
                    nxt += 1
        self.stamp(15)
        vW = 88
        A(f"v_and_b32 v89, 31, v1")
        A(f"v_mul_u32_u24 {v(vW)}, 272, v89")
        A(f"v_lshrrev_b32 v89, 5, v1")
        A(f"v_lshl_add_u32 {v(vW)}, v89, 4, {v(vW)}")
        A(f"s_mul_i32 {s(t0)}, {s(S_WV)}, 17408")
        A(f"s_add_u32 {s(t0)}, {s(t0)}, {L_RED2}")
        A(f"v_add_u32 {v(vW)}, {s(t0)}, {v(vW)}")
        for dt in range(2):
            for th in range(2):
                acc = ACC + 16 * (2 * dt + th)
                for g in range(4):
                    A(f"ds_write_b128 {v(vW)}, {v(acc + 4 * g, 4)} offset:{32 * 272 * th + 128 * dt + 32 * g}")
        vR, vX, vG, vO = 90, 91, 92, 93
        A(f"v_lshrrev_b32 v94, 3, v0")
        A(f"v_and_b32 v95, 7, v0")
        A(f"v_mul_u32_u24 {v(vR)}, 272, v94")
        A(f"v_lshl_add_u32 {v(vR)}, v95, 5, {v(vR)}")
        A(f"v_add_u32 {v(vR)}, {L_RED2}, {v(vR)}")
        A(f"v_mul_u32_u24 {v(vX)}, 144, v94")
        A(f"v_lshl_add_u32 {v(vX)}, v95, 4, {v(vX)}")
        A(f"v_add_u32 {v(vX)}, {L_X1S}, {v(vX)}")
        A(f"v_lshlrev_b32 {v(vG)}, 5, v95")
        A(f"v_add_u32 {v(vG)}, {L_GB}, {v(vG)}")
        A(f"s_lshl_b32 {s(t0)}, {s(S_RB)}, 6")
        A(f"v_add_u32 {v(vO)}, {s(t0)}, v94")
        A(f"v_mul_u32_u24 {v(vO)}, 896, {v(vO)}")
        A(f"v_lshl_add_u32 {v(vO)}, v95, 4, {v(vO)}")
        A(f"s_lshl_b32 {s(t0)}, {s(S_J)}, 7")
        A(f"v_add_u32 {v(vO)}, {s(t0)}, {v(vO)}")
        self.srd(R_A, P_OUT, 2048 * 896)
        A.barrier()
        GB = 96
        A(f"ds_read_b128 {v(GB, 4)}, {v(vG)}")
        A(f"ds_read_b128 {v(GB + 4, 4)}, {v(vG)} offset:16")
        for p in range(2):
            P = 104 + 48 * p
            for w in range(4):
                for hh in range(2):
                    A(f"ds_read_b128 {v(P + 8 * w + 4 * hh, 4)}, {v(vR)} offset:{17408 * w + 32 * 272 * p + 16 * hh}")
            A(f"ds_read_b128 {v(P + 32, 4)}, {v(vX)} offset:{32 * 144 * p}")
        for p in range(2):
            P = 104 + 48 * p
            for k in range(4):
                A(f"v_pk_add_f32 {v(P + 2 * k, 2)}, {v(P + 2 * k, 2)}, {v(P + 8 + 2 * k, 2)}")
                A(f"v_pk_add_f32 {v(P + 16 + 2 * k, 2)}, {v(P + 16 + 2 * k, 2)}, {v(P + 24 + 2 * k, 2)}")
            for k in range(4):
                A(f"v_pk_add_f32 {v(P + 2 * k, 2)}, {v(P + 2 * k, 2)}, {v(P + 16 + 2 * k, 2)}")
            U = P + 8
            for k in range(4):
                A(f"v_cvt_pk_bf16_f32 {v(U + k)}, {v(P + 2 * k)}, {v(P + 2 * k + 1)}")
            for k in range(4):
                A(f"v_lshlrev_b32 {v(P + 2 * k)}, 16, {v(U + k)}")
                A(f"v_and_b32 {v(P + 2 * k + 1)}, {s(S_MASKHI)}, {v(U + k)}")
            for k in range(4):
                A(f"v_pk_mul_f32 {v(P + 2 * k, 2)}, {v(P + 2 * k, 2)}, {v(GB + 2 * k, 2)}")
            for k in range(4):
                A(f"v_cvt_pk_bf16_f32 {v(U + k)}, {v(P + 2 * k)}, {v(P + 2 * k + 1)}")
            for k in range(4):
                A(f"v_lshlrev_b32 {v(P + 2 * k)}, 16, {v(U + k)}")
                A(f"v_and_b32 {v(P + 2 * k + 1)}, {s(S_MASKHI)}, {v(U + k)}")
            for k in range(4):
                A(f"v_lshlrev_b32 {v(U + 4 + 2 * k)}, 16, {v(P + 32 + k)}")
                A(f"v_and_b32 {v(U + 5 + 2 * k)}, {s(S_MASKHI)}, {v(P + 32 + k)}")
            for k in range(4):
                A(f"v_pk_add_f32 {v(P + 2 * k, 2)}, {v(P + 2 * k, 2)}, {v(U + 4 + 2 * k, 2)}")
            for k in range(4):
                A(f"v_cvt_pk_bf16_f32 {v(U + k)}, {v(P + 2 * k)}, {v(P + 2 * k + 1)}")
            A(f"buffer_store_dwordx4 {v(U, 4)}, {v(vO)}, {s(R_A, 4)}, 0 offen")
            if p == 0:
                A(f"v_add_u32 {v(vO)}, {32 * 896}, {v(vO)}")
        self.stamp(16)

    def helper(self):
        A = self.A
        T = S_T
        t0, t1, t2 = T + 4, T + 5, T + 6
        sH = S_RB
        A.label("L_helper")
        A(f"s_sub_u32 {s(t0)}, {s(T + 1)}, 28")
        A(f"s_lshl_b32 {s(t0)}, {s(t0)}, 3")
        A(f"s_add_u32 {s(sH)}, {s(t0)}, {s(T)}")
        A(f"s_cmp_ge_u32 {s(sH)}, 21")
        A("s_cbranch_scc1 L_exit")
        self.srd(R_A, P_WM, 448 * 5376)
        self.srd(R_B, P_C, 896)
        A("v_lshrrev_b32 v2, 4, v0")
        A("v_and_b32 v3, 15, v0")
        A("v_mul_u32_u24 v4, 5376, v2")
        A("v_lshl_add_u32 v4, v3, 4, v4")
        A(f"s_lshl_b32 {s(t0)}, {s(sH)}, 8")
        A(f"v_add_u32 v4, {s(t0)}, v4")
        A("v_lshlrev_b32 v5, 2, v0")
        A(f"buffer_load_dword v6, v5, {s(R_B, 4)}, 0 offen")
        W = 16
        A(f"s_mov_b32 {s(t0)}, 0")
        for i in range(28):
            A(f"buffer_load_dwordx4 {v(W + 4 * i, 4)}, v4, {s(R_A, 4)}, {s(t0)} offen")
            if i < 27:
                A(f"s_add_u32 {s(t0)}, {s(t0)}, {16 * 5376}")
        A(f"s_mov_b32 {s(t1)}, 0x{f32bits(-1.4426950408889634):08x}")
        A("v_lshlrev_b32 v8, 16, v6")
        A(f"v_and_b32 v9, {s(S_MASKHI)}, v6")
        for r in (8, 9):
            A(f"v_mul_f32 {v(r + 2)}, {s(t1)}, {v(r)}")
        for r in (8, 9):
            A(f"v_exp_f32 {v(r + 2)}, {v(r + 2)}")
        for r in (8, 9):
            A(f"v_add_f32 {v(r + 2)}, 1.0, {v(r + 2)}")
        for r in (8, 9):
            A(f"v_rcp_f32 {v(r + 2)}, {v(r + 2)}")
        for r in (8, 9):
            A(f"v_mul_f32 {v(r)}, {v(r)}, {v(r + 2)}")
        A("v_cvt_pk_bf16_f32 v6, v8, v9")
        A("v_lshlrev_b32 v8, 16, v6")
        A(f"v_and_b32 v9, {s(S_MASKHI)}, v6")
        A("v_lshlrev_b32 v7, 3, v0")
        A(f"ds_write_b64 v7, v[8:9] offset:{L_SC}")
        A.barrier()
        A("v_lshlrev_b32 v7, 2, v2")
        SC = 128
        for i in range(28):
            A(f"ds_read_b32 {v(SC + 2 * i)}, v7 offset:{L_SC + 64 * i}")
        AC = 192
        U = 200
        for i in range(28):
            for k in range(4):
                src = W + 4 * i + k
                u = U + 2 * k
                A(f"v_lshlrev_b32 {v(u)}, 16, {v(src)}")
                A(f"v_and_b32 {v(u + 1)}, {s(S_MASKHI)}, {v(src)}")
            for k in range(4):
                u = U + 2 * k
                if i == 0:
                    A(f"v_pk_mul_f32 {v(AC + 2 * k, 2)}, {v(u, 2)}, {v(SC + 2 * i, 2)} op_sel_hi:[1,0]")
                else:
                    A(f"v_pk_fma_f32 {v(AC + 2 * k, 2)}, {v(u, 2)}, {v(SC + 2 * i, 2)}, {v(AC + 2 * k, 2)} op_sel_hi:[1,0,1]")
        A("v_mul_u32_u24 v7, 528, v2")
        A("v_lshl_add_u32 v7, v3, 5, v7")
        A(f"ds_write_b128 v7, {v(AC, 4)} offset:{L_MR}")
        A(f"ds_write_b128 v7, {v(AC + 4, 4)} offset:{L_MR + 16}")
        A.barrier()
        A("v_and_b32 v8, 127, v0")
        A("v_lshlrev_b32 v7, 2, v8")
        for g in range(16):
            A(f"ds_read_b32 {v(16 + g)}, v7 offset:{L_MR + 528 * g}")
        for stp in (8, 4, 2, 1):
            for g in range(stp):
                A(f"v_add_f32 {v(16 + g)}, {v(16 + g)}, {v(16 + g + stp)}")
        A("v_cvt_pk_bf16_f32 v16, v16, v16")
        A(f"v_and_b32 v16, {s(S_MASKHI)}, v16")
        A("v_add_f32 v17, 1.0, v16")
        A("v_cvt_pk_bf16_f32 v17, v17, v17")
        A(f"v_and_b32 v17, {s(S_MASKHI)}, v17")
        A(f"s_lshl_b32 {s(t0)}, {s(sH)}, 7")
        A(f"v_add_u32 v8, {s(t0)}, v8")
        A("v_subrev_u32 v9, 448, v8")
        A("v_subrev_u32 v10, 1792, v8")
        A("v_min_u32 v9, v9, v10")
        A("v_mov_b32 v11, 448")
        A("v_cmp_lt_u32 vcc, v9, v11")
        A("s_nop 1")
        A("v_cndmask_b32 v16, v16, v17, vcc")
        A("v_lshlrev_b32 v8, 2, v8")
        A(f"s_mov_b32 {s(t0)}, {MODF}")
        skip = self.lab("ms")
        A(f"s_cmp_ge_u32 {s(S_WV)}, 2")
        A(f"s_cbranch_scc1 {skip}")
        A.cond_begin()
        A(f"buffer_store_dword v16, v8, {s(R_WS, 4)}, {s(t0)} offen sc1")
        A.cond_end()
        A.label(skip)
        A.wait_vm(0)
        A.barrier()
        A(f"s_add_u32 {s(S_NONCE)}, {s(S_NONCE)}, 1")
        A(f"s_lshl_b32 {s(t0)}, {s(sH)}, 7")
        A(f"s_add_u32 {s(t0)}, {s(t0)}, {FL + FM * 128}")
        self.flag_store(t0)
        self.stamp(3)
        self.stamp_flush()
        A("s_endpgm")

    def build(self):
        A = self.A
        self.prologue()
        if self.stamps:
            A("v_mov_b32 v255, 0")
        st = A.snapshot()
        self.stamp(0)
        self.phase_p()
        stages = [("p", None), ("a", self.phase_a), ("b", self.phase_b), ("c", self.phase_c), ("d", self.phase_d)]
        done = self.stop == "p"
        for name, fn in stages[1:]:
            if done:
                break
            if name == "b":
                fn()
                self.load_w1(0, 56)
            else:
                fn()
            done = self.stop == name
        self.stamp_flush()
        A("s_endpgm")
        A.restore(st)
        self.helper()
        A.label("L_exit")
        A("s_endpgm")
        A.label("L_code_end")
        return A.text()


def f32bits(x):
    import struct
    return struct.unpack("<I", struct.pack("<f", x))[0]


HEADER = """; Fused adaLN + H3 long convolution + SiLU MLP, one persistent launch (generated by gen/gen.py).
; @launch grid=(256,1,1) block=(256,1,1) lds={lds}
.amdgcn_target "amdgcn-amd-amdhsa--gfx950"
.text
.globl {name}
.p2align 8
.type {name},@function
{name}:
"""

FOOTER = """.section .rodata,"a"
.p2align 6
.amdhsa_kernel {name}
  .amdhsa_next_free_vgpr 512
  .amdhsa_next_free_sgpr 102
  .amdhsa_accum_offset 256
  .amdhsa_group_segment_fixed_size 0
  .amdhsa_kernarg_size 112
  .amdhsa_user_sgpr_count 2
  .amdhsa_user_sgpr_kernarg_segment_ptr 1
  .amdhsa_system_sgpr_workgroup_id_x 1
  .amdhsa_float_denorm_mode_32 3
.end_amdhsa_kernel
"""


def main():
    ap = argparse.ArgumentParser()
    ap.add_argument("--stop", default=None)
    ap.add_argument("--stamps", action="store_true")
    ap.add_argument("-o", default="/dev/stdout")
    args = ap.parse_args()
    g = Gen(stop=args.stop, stamps=args.stamps)
    body = g.build()
    txt = HEADER.format(name=NAME, lds=LDS_END) + body + FOOTER.format(name=NAME)
    with open(args.o, "w") as f:
        f.write(txt)
    print(f"instructions: {g.A.n_ins}, auto nops: {g.A.n_nops}, lds {LDS_END}", file=sys.stderr)


if __name__ == "__main__":
    main()
```

```python
import re

TRANS = ("v_exp_f32", "v_log_f32", "v_rcp_f32", "v_rsq_f32", "v_sqrt_f32", "v_sin_f32", "v_cos_f32",
         "v_rcp_iflag_f32")


def v(i, n=1):
    return f"v{i}" if n == 1 else f"v[{i}:{i + n - 1}]"


def a(i, n=1):
    return f"a{i}" if n == 1 else f"a[{i}:{i + n - 1}]"


def s(i, n=1):
    return f"s{i}" if n == 1 else f"s[{i}:{i + n - 1}]"


_reg_re = re.compile(r"^(-?)(abs\()?([vas])(\d+|\[(\d+):(\d+)\])\)?$")


def regs_of(tok):
    tok = tok.strip()
    if tok == "vcc":
        return {("s", 106), ("s", 107)}
    if tok == "exec":
        return {("s", 126), ("s", 127)}
    if tok == "m0":
        return {("s", 124)}
    m = _reg_re.match(tok)
    if not m:
        return set()
    k = m.group(3)
    if m.group(5) is not None:
        return {(k, i) for i in range(int(m.group(5)), int(m.group(6)) + 1)}
    return {(k, int(m.group(4)))}


class Ins:
    __slots__ = ("text", "mn", "dst", "src", "kind", "passes", "srcC", "srcAB", "data", "ws", "dpp")

    def __init__(self, text):
        self.text = text
        t = text.split(";")[0].strip()
        parts = t.split(None, 1)
        self.mn = parts[0]
        rest = parts[1] if len(parts) > 1 else ""
        ops, depth, cur = [], 0, ""
        for ch in rest:
            if ch in "[(":
                depth += 1
            if ch in "])":
                depth -= 1
            if ch == "," and depth == 0:
                ops.append(cur.strip())
                cur = ""
            else:
                cur += ch
        if cur.strip():
            ops.append(cur.strip())
        mods = ""
        if ops:
            last = ops[-1].split(None, 1)
            ops[-1] = last[0]
            if len(last) > 1:
                mods = last[1]
        mn = self.mn
        R = [regs_of(o) for o in ops]
        allr = lambda lst: set().union(*lst) if lst else set()
        self.dst, self.src = set(), set()
        self.passes = 0
        self.srcC, self.srcAB, self.data = set(), set(), set()
        self.ws = 1
        self.dpp = ("quad_perm" in mods or "row_" in mods or "wave_" in mods)
        if mn.startswith("v_mfma"):
            self.kind = "mfma"
            self.dst = R[0]
            self.srcAB = R[1] | R[2]
            self.srcC = R[3] if len(R) > 3 else set()
            self.src = self.srcAB | self.srcC
            self.passes = 8 if "32x32" in mn else 4
        elif mn.startswith("buffer_load") or mn.startswith("global_load"):
            self.kind = "vload"
            if " lds" in " " + mods or mn.startswith("global_load_lds"):
                self.src = allr(R) | {("s", 124)}
            else:
                self.dst = R[0]
                self.src = allr(R[1:])
        elif mn.startswith("buffer_store") or mn.startswith("global_store"):
            self.kind = "vstore"
            self.src = allr(R)
            self.data = R[0] if mn.startswith("buffer_store") else R[1]
            if not ("x3" in mn or "x4" in mn):
                self.data = set()
        elif mn.startswith("buffer_atomic") or mn.startswith("global_atomic"):
            self.kind = "vstore"
            self.src = allr(R)
        elif mn.startswith("ds_read") or mn.startswith("ds_bpermute") or mn.startswith("ds_swizzle"):
            self.kind = "dsread"
            self.dst = R[0]
            self.src = allr(R[1:])
        elif mn.startswith("ds_write"):
            self.kind = "dswrite"
            self.src = allr(R)
        elif mn.startswith("s_load") or mn.startswith("s_memrealtime") or mn.startswith("s_memtime"):
            self.kind = "smem"
            self.dst = R[0]
            self.src = allr(R[1:])
        elif mn.startswith("v_"):
            self.kind = "valu"
            if mn.startswith("v_cmp"):
                self.dst = R[0]
                self.src = allr(R[1:])
            elif mn.startswith("v_permlane") and "swap" in mn:
                self.dst = R[0] | R[1]
                self.src = R[0] | R[1]
            elif mn.startswith("v_add_co") or mn.startswith("v_addc_co") or mn.startswith("v_sub_co"):
                self.dst = R[0] | R[1]
                self.src = allr(R[2:])
            else:
                self.dst = R[0]
                self.src = allr(R[1:])
                if mn.startswith(("v_fmac", "v_dot2c", "v_pk_fmac", "v_writelane")):
                    self.src |= R[0]
                if mn.startswith("v_cndmask") and len(ops) == 3:
                    self.src |= regs_of("vcc")
                if self.dpp:
                    self.src |= R[0]
        elif mn == "s_nop":
            self.kind = "nop"
            self.ws = int(ops[0], 0) + 1
        elif mn.startswith("s_"):
            self.kind = "salu"
            nodst = ("s_cmp", "s_waitcnt", "s_barrier", "s_branch", "s_cbranch", "s_endpgm", "s_setprio",
                     "s_sleep", "s_bitcmp", "s_setpc")
            if mn.startswith(nodst):
                self.src = allr(R)
            else:
                self.dst = R[0] if R else set()
                self.src = allr(R[1:])
                if mn.startswith(("s_addk", "s_mulk")):
                    self.src |= R[0]
                if "saveexec" in mn:
                    self.dst |= regs_of("exec")
                    self.src |= regs_of("exec")
        else:
            raise ValueError("unknown instruction: " + text)


class Asm:
    def __init__(self):
        self.out = []
        self.hist = []
        self.vq = []
        self.lq = []
        self.cond_depth = 0
        self.n_nops = 0
        self.n_ins = 0
        self.nbytes_est = 0

    def raw(self, text):
        self.out.append(text)

    def comment(self, text):
        self.out.append("    ; " + text)

    def label(self, name):
        self.out.append(name + ":")

    def _emit(self, ins):
        self.out.append("    " + ins.text)
        self.hist.append(ins)
        if len(self.hist) > 40:
            self.hist = self.hist[-40:]
        self.n_ins += 1

    def _wait_needed(self, q, regs):
        for i in range(len(q) - 1, -1, -1):
            if q[i]["dst"] & regs:
                return i
        return -1

    def _do_wait(self, vi, li):
        parts = []
        if vi >= 0:
            n = sum(1 for o in self.vq[vi + 1:] if not o["maybe"])
            self.vq = self.vq[vi + 1:]
            if n <= 62:
                parts.append(f"vmcnt({n})")
        if li >= 0:
            if any(o["smem"] for o in self.lq):
                self.lq = []
                parts.append("lgkmcnt(0)")
            else:
                n = sum(1 for o in self.lq[li + 1:] if not o["maybe"])
                self.lq = self.lq[li + 1:]
                if n <= 14:
                    parts.append(f"lgkmcnt({n})")
        if parts:
            self._emit(Ins("s_waitcnt " + " ".join(parts)))

    def wait_vm(self, n=0):
        self._emit(Ins(f"s_waitcnt vmcnt({n})"))
        if n == 0:
            self.vq = []
        else:
            cnt, cut = 0, 0
            for i in range(len(self.vq) - 1, -1, -1):
                if not self.vq[i]["maybe"]:
                    cnt += 1
                    if cnt == n:
                        cut = i
                        break
            else:
                cut = 0
            self.vq = self.vq[cut:]

    def wait_lgkm0(self):
        self._emit(Ins("s_waitcnt lgkmcnt(0)"))
        self.lq = []

    def wait_all(self):
        self._emit(Ins("s_waitcnt vmcnt(0) lgkmcnt(0)"))
        self.vq, self.lq = [], []

    def barrier(self):
        if self.lq:
            self.wait_lgkm0()
        self._emit(Ins("s_barrier"))

    def _hazard(self, ins):
        need = 0
        dist = 0
        for p in reversed(self.hist):
            req = 0
            if p.kind == "valu":
                vd = {r for r in p.dst if r[0] in "va"}
                sd = {r for r in p.dst if r[0] == "s"}
                if ins.kind == "mfma" and vd & ins.src:
                    req = max(req, 2)
                if ins.kind in ("vload", "vstore") and sd & ins.src:
                    req = max(req, 5)
                if ins.kind == "valu" and sd & ins.src:
                    req = max(req, 2)
                    if ins.mn.startswith(("v_readlane", "v_writelane")):
                        req = max(req, 4)
                if ins.kind == "salu" and sd & ins.src:
                    req = max(req, 1)
                if ins.mn.startswith(("v_readfirstlane", "v_readlane")) and vd & ins.src:
                    req = max(req, 1)
                if p.mn.rsplit("_e", 1)[0] in TRANS or p.mn in TRANS:
                    if ins.kind == "valu" and vd & ins.src:
                        req = max(req, 1)
                if ins.kind == "valu" and (ins.dpp or ins.mn.startswith("v_permlane")) and vd & ins.src:
                    req = max(req, 2)
            elif p.kind == "mfma":
                long = 12 if p.passes == 8 else 8
                if ins.kind == "mfma":
                    if p.dst & ins.srcAB:
                        req = max(req, long)
                    if p.dst & ins.srcC and p.dst != ins.srcC:
                        req = max(req, long - 2)
                    if (p.dst & ins.dst) and p.dst != ins.dst:
                        req = max(req, long)
                else:
                    if p.dst & (ins.src | ins.dst):
                        req = max(req, long)
                    if ins.kind == "valu" and p.srcC & ins.dst:
                        req = max(req, 7 if p.passes == 8 else 3)
            elif p.kind == "vstore":
                if p.data & ins.dst:
                    req = max(req, 2)
            elif p.kind == "salu":
                if ("s", 124) in p.dst and ins.kind == "vload" and ("s", 124) in ins.src:
                    req = max(req, 1)
            if req > dist:
                need = max(need, req - dist)
            dist += p.ws
            if dist >= 20:
                break
        return need

    def __call__(self, text):
        ins = Ins(text)
        regs = ins.src | ins.dst
        vi = self._wait_needed(self.vq, regs)
        li = self._wait_needed(self.lq, regs)
        if vi >= 0 or li >= 0:
            self._do_wait(vi, li)
        need = self._hazard(ins)
        while need > 0:
            k = min(need, 16)
            self._emit(Ins(f"s_nop {k - 1}"))
            self.n_nops += 1
            need -= k
        self._emit(ins)
        maybe = self.cond_depth > 0
        if ins.kind == "vload":
            self.vq.append(dict(dst=set(ins.dst), maybe=maybe))
        elif ins.kind == "vstore":
            self.vq.append(dict(dst=set(), maybe=maybe))
        elif ins.kind == "dsread":
            self.lq.append(dict(dst=set(ins.dst), maybe=maybe, smem=False))
        elif ins.kind == "dswrite":
            self.lq.append(dict(dst=set(), maybe=maybe, smem=False))
        elif ins.kind == "smem":
            self.lq.append(dict(dst=set(ins.dst), maybe=maybe, smem=True))

    def dma(self, text, tag):
        self(text)
        self.vq[-1]["dst"] = {("t", tag)}

    def need(self, tag):
        vi = self._wait_needed(self.vq, {("t", tag)})
        if vi >= 0:
            self._do_wait(vi, -1)

    def nop(self, n):
        while n > 0:
            k = min(n, 16)
            self._emit(Ins(f"s_nop {k - 1}"))
            n -= k

    def cond_begin(self):
        self.cond_depth += 1

    def cond_end(self):
        self.cond_depth -= 1

    def snapshot(self):
        import copy
        return (list(self.hist), copy.deepcopy(self.vq), copy.deepcopy(self.lq))

    def restore(self, st):
        import copy
        self.hist = list(st[0])
        self.vq = copy.deepcopy(st[1])
        self.lq = copy.deepcopy(st[2])

    def text(self):
        return "\n".join(self.out) + "\n"
```

```python
import sys
import argparse
from asmdsl import Asm, v, a, s

NAME = "adaLN_cond__ssm_conv_h3__dense_activation_silu__prompt_kernel"

FL = 4096
F1, FQ, FM, F2, F3 = 0, 256, 512, 544, 800
STAMP = 0x30000
T2D = 224 * 8192
KVP = 0x40000
QP = KVP + T2D
STR = QP + T2D
STM = STR + 8192
X1P = STR + 16384
W1F = X1P + T2D
W2F = W1F + 1605632
MODF = W2F + 1605632
HF = MODF + 16384
WS_END = HF + 32 * 112 * 2048
assert WS_END < (1 << 28)

L_H2 = 0
L_TPK = 0
L_TPQ = 8704
L_TPN = 17408
L_WB = 26112
L_UR = 43520
assert L_UR + 9216 <= 57344
L_KC = 57344
CS = 4160
L_RED = L_KC + 8 * CS
L_RED2 = 0
L_XD = 69632
L_PAR = L_RED + 40960
L_STAT = L_PAR + 4096
L_GB = L_STAT + 2048
LDS_END = L_GB + 256
assert L_XD + 57344 <= L_PAR
assert LDS_END <= 163840
L_SC = 0
L_MR = 2048

S_RB, S_J, S_WV, S_CP = 4, 5, 6, 7
P_Q, P_K, P_V, P_SH, P_SK, P_D, P_BX, P_W1, P_W2, P_C, P_WM, P_OUT, P_DBG, P_WS = range(8, 36, 2)
R_WS, R_A, R_B, R_C, R_D = 36, 40, 44, 48, 52
S_NONCE = 56
S_T = 57
S_M = 80
S_MASKHI = 80
S_PERM_LO = 81
S_PERM_HI = 82
S_OFF = 84
S_SPIN = 96
S_PC = 100
S_ST0 = 98

SRD3 = 0x00020000
SPIN_MAX = 1 << 17


class Gen:
    def __init__(self, stop=None, stamps=False):
        self.A = Asm()
        self.stop = stop
        self.stamps = stamps
        self.nlab = 0
        self.nstamp = 0
        self.w1_split = 28

    def lab(self, base):
        self.nlab += 1
        return f"L_{base}_{self.nlab}"

    def srd(self, r, ptr, nbytes, add=None):
        A = self.A
        if add is None:
            A(f"s_mov_b32 {s(r)}, {s(ptr)}")
            A(f"s_mov_b32 {s(r + 1)}, {s(ptr + 1)}")
        else:
            A(f"s_add_u32 {s(r)}, {s(ptr)}, {add}")
            A(f"s_addc_u32 {s(r + 1)}, {s(ptr + 1)}, 0")
        A(f"s_mov_b32 {s(r + 2)}, {nbytes}")
        A(f"s_mov_b32 {s(r + 3)}, 0x{SRD3:08x}")

    def stamp(self, idx):
        if not self.stamps:
            return
        A = self.A
        A(f"s_memrealtime {s(S_ST0, 2)}")
        A.wait_lgkm0()
        A(f"v_writelane_b32 v255, {s(S_ST0)}, {idx}")

    def stamp_flush(self):
        if not self.stamps:
            return
        A = self.A
        skip = self.lab("sf")
        A(f"s_cmp_lg_u32 {s(S_WV)}, 0")
        A(f"s_cbranch_scc1 {skip}")
        A.cond_begin()
        A("v_lshlrev_b32 v254, 2, v1")
        A(f"s_lshl_b32 {s(S_SPIN + 1)}, s2, 8")
        A(f"s_add_u32 {s(S_SPIN + 1)}, {s(S_SPIN + 1)}, {STAMP}")
        A(f"buffer_store_dword v255, v254, {s(R_WS, 4)}, {s(S_SPIN + 1)} offen")
        A.cond_end()
        A.label(skip)

    def flag_store(self, soff_sgpr, vtmp=252):
        A = self.A
        skip = self.lab("fl")
        A(f"s_cmp_lg_u32 {s(S_WV)}, 0")
        A(f"s_cbranch_scc1 {skip}")
        A.cond_begin()
        A(f"v_mov_b32 {v(vtmp)}, {s(S_NONCE)}")
        A(f"v_mov_b32 {v(vtmp + 1)}, {s(soff_sgpr)}")
        A("s_mov_b64 exec, 1")
        A(f"buffer_store_dword {v(vtmp)}, {v(vtmp + 1)}, {s(R_WS, 4)}, 0 offen sc1")
        A("s_mov_b64 exec, -1")
        A.cond_end()
        A.label(skip)

    def poll(self, vaddr, vtmp):
        A = self.A
        loop, done = self.lab("poll"), self.lab("polld")
        A(f"s_mov_b32 {s(S_SPIN)}, 0")
        A.label(loop)
        A(f"buffer_load_dword {v(vtmp)}, {v(vaddr)}, {s(R_WS, 4)}, 0 offen sc1")
        A.wait_vm(0)
        A(f"v_cmp_ne_u32 vcc, {s(S_NONCE)}, {v(vtmp)}")
        A(f"s_add_u32 {s(S_SPIN)}, {s(S_SPIN)}, 1")
        A("s_nop 3")
        A("s_cmp_eq_u64 vcc, 0")
        A(f"s_cbranch_scc1 {done}")
        A(f"s_cmp_lt_u32 {s(S_SPIN)}, {SPIN_MAX}")
        A(f"s_cbranch_scc1 {loop}")
        A.label(done)

    def finish(self):
        self.A("s_endpgm")

    def prologue(self):
        A = self.A
        A("s_cmp_ge_u32 s2, 256")
        A("s_cbranch_scc1 L_exit")
        A(f"s_load_dwordx16 {s(8, 16)}, s[0:1], 0")
        A(f"s_load_dwordx8 {s(24, 8)}, s[0:1], 64")
        A(f"s_load_dwordx4 {s(32, 4)}, s[0:1], 96")
        A(f"s_getpc_b64 {s(S_PC, 2)}")
        A.label("L_pc")
        A("v_lshlrev_b32 v253, 7, v0")
        A("v_min_u32 v253, L_code_end-L_pc-4, v253")
        A(f"global_load_dword v254, v253, {s(S_PC, 2)}")
        A("v_lshrrev_b32 v2, 6, v0")
        A("v_and_b32 v1, 63, v0")
        A(f"s_and_b32 {s(S_T)}, s2, 7")
        A(f"s_lshr_b32 {s(S_T + 1)}, s2, 3")
        A(f"v_readfirstlane_b32 {s(S_WV)}, v2")
        A(f"s_mov_b32 {s(S_MASKHI)}, 0xffff0000")
        A(f"s_mov_b32 {s(S_PERM_LO)}, 0x05040100")
        A(f"s_mov_b32 {s(S_PERM_HI)}, 0x07060302")
        A(f"s_mul_i32 {s(S_T + 2)}, {s(S_T + 1)}, 37")
        A(f"s_lshr_b32 {s(S_T + 2)}, {s(S_T + 2)}, 8")
        A(f"s_mul_i32 {s(S_T + 3)}, {s(S_T + 2)}, 7")
        A(f"s_sub_u32 {s(S_J)}, {s(S_T + 1)}, {s(S_T + 3)}")
        A(f"s_lshl_b32 {s(S_RB)}, {s(S_T)}, 2")
        A(f"s_add_u32 {s(S_RB)}, {s(S_RB)}, {s(S_T + 2)}")
        A(f"s_lshl_b32 {s(S_CP)}, {s(S_J)}, 5")
        A(f"s_add_u32 {s(S_CP)}, {s(S_CP)}, {s(S_RB)}")
        A.wait_lgkm0()
        self.srd(R_WS, P_WS, WS_END)
        A(f"s_load_dword {s(S_NONCE)}, {s(P_WS, 2)}, 0")
        A(f"s_cmp_ge_u32 {s(S_T + 1)}, 28")
        A("s_cbranch_scc1 L_helper")

    def phase_p(self):
        A = self.A
        T = S_T
        NB = 2048 * 896
        vC, vRG = 2, 3
        A(f"v_and_b32 {v(vC)}, 7, v1")
        A(f"v_lshrrev_b32 {v(vRG)}, 3, v1")
        vOffO = 5
        A(f"s_lshl_b32 {s(T)}, {s(S_RB)}, 6")
        A(f"s_lshl_b32 {s(T + 1)}, {s(S_WV)}, 4")
        A(f"s_add_u32 {s(T)}, {s(T)}, {s(T + 1)}")
        A(f"v_lshl_add_u32 {v(vOffO)}, {v(vRG)}, 1, {s(T)}")
        A(f"v_mul_u32_u24 {v(vOffO)}, 896, {v(vOffO)}")
        A(f"v_lshl_add_u32 {v(vOffO)}, {v(vC)}, 4, {v(vOffO)}")
        A(f"s_lshl_b32 {s(T + 2)}, {s(S_J)}, 7")
        A(f"v_add_u32 {v(vOffO)}, {s(T + 2)}, {v(vOffO)}")
        vKa = 6
        for i in range(5):
            d = (i - 3) * 896
            if d < 0:
                A(f"v_subrev_u32 {v(vKa + i)}, {-d}, {v(vOffO)}")
            elif d > 0:
                A(f"v_add_u32 {v(vKa + i)}, {d}, {v(vOffO)}")
        self.srd(R_A, P_K, NB)
        self.srd(R_B, P_V, NB)
        self.srd(R_C, P_SH, 448 * 8)
        vK, vV, vSH = 16, 36, 44
        for i in range(5):
            ad = vOffO if i == 3 else vKa + i
            A(f"buffer_load_dwordx4 {v(vK + 4 * i, 4)}, {v(ad)}, {s(R_A, 4)}, 0 offen")
        for i in range(2):
            A(f"buffer_load_dwordx4 {v(vV + 4 * i, 4)}, {v(vOffO)}, {s(R_B, 4)}, 0 offen offset:{896 * i}")
        vt = 11
        A(f"s_lshl_b32 {s(T + 3)}, {s(S_J)}, 9")
        A(f"v_lshl_add_u32 {v(vt)}, {v(vC)}, 6, {s(T + 3)}")
        for i in range(4):
            A(f"buffer_load_dwordx4 {v(vSH + 4 * i, 4)}, {v(vt)}, {s(R_C, 4)}, 0 offen offset:{16 * i}")
        self.srd(R_A, P_Q, NB)
        vQO = 132
        for r in range(2):
            A(f"buffer_load_dwordx4 {v(vQO + 4 * r, 4)}, {v(vOffO)}, {s(R_A, 4)}, 0 offen offset:{896 * r}")
        sWB, sSrc, sStride, sA, sR1, sD0, sDS = T + 4, T + 6, T + 7, T + 8, T + 9, T + 10, T + 11
        A(f"s_mul_i32 {s(sWB)}, {s(S_RB)}, 7")
        A(f"s_add_u32 {s(sWB)}, {s(sWB)}, {s(S_J)}")
        t0, t1, t2, t3 = T + 12, T + 13, T + 14, T + 15
        A(f"s_lshr_b32 {s(t0)}, {s(sWB)}, 2")
        A(f"s_and_b32 {s(t1)}, {s(sWB)}, 3")
        A(f"s_mul_i32 {s(sSrc)}, {s(t0)}, {16 * 3584}")
        A(f"s_mul_i32 {s(t2)}, {s(t1)}, 896")
        A(f"s_add_u32 {s(sSrc)}, {s(sSrc)}, {s(t2)}")
        A(f"s_mul_i32 {s(t2)}, {s(t1)}, 14")
        A(f"s_add_u32 {s(t2)}, {s(t2)}, {s(S_WV)}")
        A(f"s_mul_i32 {s(t2)}, {s(t2)}, 28")
        A(f"s_add_u32 {s(sD0)}, {s(t2)}, {s(t0)}")
        A(f"s_lshl_b32 {s(sD0)}, {s(sD0)}, 10")
        A(f"s_add_u32 {s(sD0)}, {s(sD0)}, {W1F}")
        u0, u1, u2, uSrc, uD0 = T + 16, T + 17, T + 18, T + 19, T + 20
        A(f"s_sub_u32 {s(u0)}, {s(sWB)}, 112")
        A(f"s_mul_i32 {s(uSrc)}, {s(u0)}, {16 * 896}")
        A(f"s_mul_i32 {s(u1)}, {s(u0)}, 147")
        A(f"s_lshr_b32 {s(u1)}, {s(u1)}, 12")
        A(f"s_mul_i32 {s(u2)}, {s(u1)}, 28")
        A(f"s_sub_u32 {s(u2)}, {s(u0)}, {s(u2)}")
        A(f"s_mul_i32 {s(uD0)}, {s(u1)}, 56")
        A(f"s_lshl_b32 {s(u2)}, {s(u2)}, 1")
        A(f"s_add_u32 {s(uD0)}, {s(uD0)}, {s(u2)}")
        A(f"s_lshr_b32 {s(u1)}, {s(S_WV)}, 1")
        A(f"s_mul_i32 {s(u1)}, {s(u1)}, 224")
        A(f"s_add_u32 {s(uD0)}, {s(uD0)}, {s(u1)}")
        A(f"s_and_b32 {s(u1)}, {s(S_WV)}, 1")
        A(f"s_add_u32 {s(uD0)}, {s(uD0)}, {s(u1)}")
        A(f"s_lshl_b32 {s(uD0)}, {s(uD0)}, 10")
        A(f"s_add_u32 {s(uD0)}, {s(uD0)}, {W2F}")
        A(f"s_cmp_ge_u32 {s(sWB)}, 112")
        A(f"s_cselect_b32 {s(sSrc)}, {s(uSrc)}, {s(sSrc)}")
        A(f"s_cselect_b32 {s(sD0)}, {s(uD0)}, {s(sD0)}")
        A(f"s_mov_b32 {s(sStride)}, 3584")
        A(f"s_cselect_b32 {s(sStride)}, 896, {s(sStride)}")
        A(f"s_cselect_b32 {s(sA)}, 4, 8")
        A(f"s_mov_b32 {s(sR1)}, {4 * 1088}")
        A(f"s_cselect_b32 {s(sR1)}, {8 * 1088}, {s(sR1)}")
        A(f"s_mov_b32 {s(sDS)}, {112 * 1024}")
        A(f"s_cselect_b32 {s(sDS)}, {448 * 1024}, {s(sDS)}")
        A(f"s_cselect_b32 {s(R_D)}, {s(P_W2)}, {s(P_W1)}")
        A(f"s_cselect_b32 {s(R_D + 1)}, {s(P_W2 + 1)}, {s(P_W1 + 1)}")
        A(f"s_mov_b32 {s(R_D + 2)}, 1605632")
        A(f"s_mov_b32 {s(R_D + 3)}, 0x{SRD3:08x}")
        A(f"s_lshl_b32 {s(t0)}, {s(S_WV)}, 2")
        A(f"s_mul_i32 {s(t0)}, {s(t0)}, {s(sStride)}")
        A(f"s_add_u32 {s(sSrc)}, {s(sSrc)}, {s(t0)}")
        vL16 = 12
        A(f"v_lshlrev_b32 {v(vL16)}, 4, v1")
        vW = 60
        vWa = 13
        A(f"v_add_u32 {v(vWa)}, {s(sSrc)}, {v(vL16)}")
        for i in range(4):
            A(f"buffer_load_dwordx4 {v(vW + 4 * i, 4)}, {v(vWa)}, {s(R_D, 4)}, 0 offen")
            if i < 3:
                A(f"v_add_u32 {v(vWa)}, {s(sStride)}, {v(vWa)}")
        vRow, vSa, vSb = 140, 141, 142
        vQ = 76
        A(f"s_lshl_b32 {s(t0)}, {s(S_RB)}, 6")
        A(f"s_lshl_b32 {s(t1)}, {s(S_J)}, 3")
        A(f"s_add_u32 {s(t0)}, {s(t0)}, {s(t1)}")
        A(f"s_lshl_b32 {s(t1)}, {s(S_WV)}, 2")
        A(f"s_add_u32 {s(t0)}, {s(t0)}, {s(t1)}")
        A(f"v_lshrrev_b32 {v(vRow)}, 4, v1")
        A(f"v_add_u32 {v(vRow)}, {s(t0)}, {v(vRow)}")
        A(f"v_mul_u32_u24 {v(vSa)}, 896, {v(vRow)}")
        A(f"v_and_b32 {v(vSb)}, 15, v1")
        A(f"v_lshl_add_u32 {v(vSa)}, {v(vSb)}, 4, {v(vSa)}")
        A(f"v_cmp_gt_u32 vcc, 8, {v(vSb)}")
        A(f"v_add_u32 {v(vSb)}, 768, {v(vSa)}")
        A(f"v_mov_b32 {v(143)}, -1")
        A(f"v_cndmask_b32 {v(vSb)}, {v(143)}, {v(vSb)}, vcc")
        for i in range(3):
            A(f"buffer_load_dwordx4 {v(vQ + 4 * i, 4)}, {v(vSa)}, {s(R_A, 4)}, 0 offen offset:{256 * i}")
        A(f"buffer_load_dwordx4 {v(vQ + 12, 4)}, {v(vSb)}, {s(R_A, 4)}, 0 offen")
        A(f"s_lshl_b32 {s(t0)}, {s(S_CP)}, 13")
        self.srd(R_B, P_SK, 4096, add=s(t0))
        A(f"s_add_u32 {s(t0)}, {s(t0)}, 4096")
        self.srd(R_C, P_SK, 4096, add=s(t0))
        vKA, vKB, vKA2, vKB2 = 14, 15, 144, 145
        A(f"v_lshlrev_b32 {v(vKA)}, 4, v0")
        A(f"v_subrev_u32 {v(vKB)}, 16, {v(vKA)}")
        A(f"v_subrev_u32 {v(vKA)}, 32, {v(vKA)}")
        A(f"v_and_b32 {v(vKA2)}, 1, v1")
        A(f"v_lshlrev_b32 {v(vKA2)}, 4, {v(vKA2)}")
        A(f"v_add_u32 {v(vKB2)}, 4080, {v(vKA2)}")
        A(f"v_add_u32 {v(vKA2)}, 4064, {v(vKA2)}")
        vKD = 96
        for e in range(2):
            R = R_B if e == 0 else R_C
            for ps in range(2):
                b = vKD + 8 * (2 * e + ps)
                A(f"buffer_load_dwordx4 {v(b, 4)}, {v(vKA if ps == 0 else vKA2)}, {s(R, 4)}, 0 offen")
                A(f"buffer_load_dwordx2 {v(b + 4, 2)}, {v(vKB if ps == 0 else vKB2)}, {s(R, 4)}, 0 offen")
        self.stamp(1)

        vTPW, vWw, vTPR, vG, vTR0, vTR1, vx, vStO = 208, 209, 210, 211, 212, 213, 214, 215
        A(f"v_mul_u32_u24 {v(vTPW)}, 1088, {v(vC)}")
        A(f"v_lshl_add_u32 {v(vTPW)}, {v(vRG)}, 3, {v(vTPW)}")
        A(f"s_lshl_b32 {s(t0)}, {s(S_WV)}, 6")
        A(f"v_add_u32 {v(vTPW)}, {s(t0)}, {v(vTPW)}")
        A(f"s_mul_i32 {s(t0)}, {s(S_WV)}, {4 * 1088}")
        A(f"v_add_u32 {v(vWw)}, {s(t0)}, {v(vL16)}")
        A(f"v_lshrrev_b32 {v(vG)}, 4, v0")
        A(f"v_mul_u32_u24 {v(vTPR)}, 272, {v(vG)}")
        A(f"v_and_b32 {v(vx)}, 15, v0")
        A(f"v_lshl_add_u32 {v(vTPR)}, {v(vx)}, 4, {v(vTPR)}")
        A(f"v_lshlrev_b32 {v(vStO)}, 13, {v(vG)}")
        A(f"v_lshl_add_u32 {v(vStO)}, {v(vx)}, 4, {v(vStO)}")
        A(f"v_lshrrev_b32 {v(vTR0)}, 5, v1")
        A(f"v_mul_lo_u32 {v(vTR0)}, {v(vTR0)}, {s(sA)}")
        A(f"v_bfe_u32 {v(vx)}, v1, 2, 2")
        A(f"v_add_u32 {v(vTR0)}, {v(vTR0)}, {v(vx)}")
        A(f"v_mul_u32_u24 {v(vTR0)}, 1088, {v(vTR0)}")
        A(f"v_bfe_u32 {v(vx)}, v1, 4, 1")
        A(f"v_lshl_add_u32 {v(vTR0)}, {v(vx)}, 5, {v(vTR0)}")
        A(f"v_and_b32 {v(vx)}, 3, v1")
        A(f"v_lshl_add_u32 {v(vTR0)}, {v(vx)}, 3, {v(vTR0)}")
        A(f"s_lshl_b32 {s(t0)}, {s(S_WV)}, 6")
        A(f"v_add_u32 {v(vTR0)}, {s(t0)}, {v(vTR0)}")
        A(f"v_add_u32 {v(vTR1)}, {s(sR1)}, {v(vTR0)}")
        sTile = S_OFF
        A(f"s_lshl_b32 {s(sTile)}, {s(S_J)}, 18")
        A(f"s_lshl_b32 {s(t0)}, {s(S_RB)}, 8")
        A(f"s_add_u32 {s(sTile)}, {s(sTile)}, {s(t0)}")

        vT, vWP, vS0, vS1, vO = 176, 186, 194, 196, 200
        for p in range(4):
            for e in range(2):
                d0 = vSH + 2 * (2 * p + e)
                A(f"v_lshlrev_b32 {v(vWP + 0 + e)}, 16, {v(d0)}")
                A(f"v_and_b32 {v(vWP + 2 + e)}, {s(S_MASKHI)}, {v(d0)}")
                A(f"v_lshlrev_b32 {v(vWP + 4 + e)}, 16, {v(d0 + 1)}")
                A(f"v_and_b32 {v(vWP + 6 + e)}, {s(S_MASKHI)}, {v(d0 + 1)}")
            for i in range(5):
                src = vK + 4 * i + p
                A(f"v_lshlrev_b32 {v(vT + 2 * i)}, 16, {v(src)}")
                A(f"v_and_b32 {v(vT + 2 * i + 1)}, {s(S_MASKHI)}, {v(src)}")
            for row, acc in ((0, vS0), (1, vS1)):
                A(f"v_pk_mul_f32 {v(acc, 2)}, {v(vT + 2 * (3 + row), 2)}, {v(vWP, 2)}")
            for tap in range(1, 4):
                for row, acc in ((0, vS0), (1, vS1)):
                    A(f"v_pk_fma_f32 {v(acc, 2)}, {v(vT + 2 * (3 + row - tap), 2)}, {v(vWP + 2 * tap, 2)}, {v(acc, 2)}")
            for row, acc in ((0, vS0), (1, vS1)):
                src = vV + 4 * row + p
                A(f"v_lshlrev_b32 {v(vT + 2 * row)}, 16, {v(src)}")
                A(f"v_and_b32 {v(vT + 2 * row + 1)}, {s(S_MASKHI)}, {v(src)}")
            for row, acc in ((0, vS0), (1, vS1)):
                A(f"v_pk_mul_f32 {v(acc, 2)}, {v(acc, 2)}, {v(vT + 2 * row, 2)}")
            for row, acc in ((0, vS0), (1, vS1)):
                A(f"v_cvt_pk_bf16_f32 {v(vO + 2 * p + row)}, {v(acc)}, {v(acc + 1)}")
            A(f"ds_write_b64 {v(vTPW)}, {v(vO + 2 * p, 2)} offset:{L_TPK + 272 * p}")
        A(f"v_add_u32 {v(vx)}, {L_TPQ}, {v(vTPW)}")
        for p in range(4):
            A(f"ds_write2_b32 {v(vx)}, {v(vQO + p)}, {v(vQO + 4 + p)} offset0:{68 * p} offset1:{68 * p + 1}")
        for i in range(4):
            A(f"ds_write_b128 {v(vWw)}, {v(vW + 4 * i, 4)} offset:{L_WB + 1088 * i}")
        A.barrier()
        vRB = 16
        for i in range(2):
            A(f"ds_read_b128 {v(vRB + 4 * i, 4)}, {v(vTPR)} offset:{L_TPK + 4352 * i}")
        vF = 32
        for i in range(4):
            A(f"ds_read_b64_tr_b16 {v(vF + 4 * i, 2)}, {v(vTR0)} offset:{L_WB + 256 * i}")
            A(f"ds_read_b64_tr_b16 {v(vF + 4 * i + 2, 2)}, {v(vTR1)} offset:{L_WB + 256 * i}")
        for i in range(2):
            A(f"ds_read_b128 {v(vRB + 8 + 4 * i, 4)}, {v(vTPR)} offset:{L_TPQ + 4352 * i}")
        for i in range(2):
            A(f"s_add_u32 {s(t0)}, {s(sTile)}, {KVP + 131072 * i}")
            A(f"buffer_store_dwordx4 {v(vRB + 4 * i, 4)}, {v(vStO)}, {s(R_WS, 4)}, {s(t0)} offen sc1")
        for i in range(3):
            A(f"buffer_store_dwordx4 {v(vF + 4 * i, 4)}, {v(vL16)}, {s(R_WS, 4)}, {s(sD0)} offen sc1")
            A(f"s_add_u32 {s(sD0)}, {s(sD0)}, {s(sDS)}")
        for i in range(2):
            A(f"s_add_u32 {s(t0)}, {s(sTile)}, {QP + 131072 * i}")
            A(f"buffer_store_dwordx4 {v(vRB + 8 + 4 * i, 4)}, {v(vStO)}, {s(R_WS, 4)}, {s(t0)} offen sc1")
        skip = self.lab("w4")
        A(f"s_cmp_ge_u32 {s(S_WV)}, 2")
        A(f"s_cbranch_scc1 {skip}")
        A.cond_begin()
        A(f"buffer_store_dwordx4 {v(vF + 12, 4)}, {v(vL16)}, {s(R_WS, 4)}, {s(sD0)} offen sc1")
        A.cond_end()
        A.label(skip)

        vS = 52
        vU = 176
        for i in range(16):
            src = vQ + i
            u = vU + 2 * (i % 4)
            A(f"v_lshlrev_b32 {v(u)}, 16, {v(src)}")
            A(f"v_and_b32 {v(u + 1)}, {s(S_MASKHI)}, {v(src)}")
            if i == 0:
                A(f"v_mov_b32 {v(vS)}, {v(u)}")
                A(f"v_mov_b32 {v(vS + 1)}, {v(u + 1)}")
                A(f"v_pk_mul_f32 {v(vS + 2, 2)}, {v(u, 2)}, {v(u, 2)}")
            else:
                A(f"v_pk_add_f32 {v(vS, 2)}, {v(vS, 2)}, {v(u, 2)}")
                A(f"v_pk_fma_f32 {v(vS + 2, 2)}, {v(u, 2)}, {v(u, 2)}, {v(vS + 2, 2)}")
        m, q2 = vS, vS + 2
        A(f"v_add_f32 {v(m)}, {v(m)}, {v(m + 1)}")
        A(f"v_add_f32 {v(q2)}, {v(q2)}, {v(q2 + 1)}")
        for mod in ("quad_perm:[1,0,3,2]", "quad_perm:[2,3,0,1]", "row_half_mirror", "row_mirror"):
            for c_ in (m, q2):
                A(f"v_add_f32_dpp {v(c_)}, {v(c_)}, {v(c_)} {mod} row_mask:0xf bank_mask:0xf")
        A(f"s_mov_b32 {s(t0)}, 0x{f32bits(1.0 / 448):08x}")
        A(f"s_mov_b32 {s(t1)}, 0x{f32bits(1e-5):08x}")
        A(f"v_mul_f32 {v(m)}, {s(t0)}, {v(m)}")
        A(f"v_mul_f32 {v(q2)}, {s(t0)}, {v(q2)}")
        A(f"v_fma_f32 {v(q2)}, -{v(m)}, {v(m)}, {v(q2)}")
        A(f"v_max_f32 {v(q2)}, 0, {v(q2)}")
        A(f"v_add_f32 {v(q2)}, {s(t1)}, {v(q2)}")
        A(f"v_rsq_f32 {v(q2)}, {v(q2)}")
        A(f"v_lshlrev_b32 {v(vRow)}, 2, {v(vRow)}")
        A(f"v_mul_f32 {v(m)}, {v(m)}, {v(q2)}")
        A(f"s_mov_b32 {s(t0)}, {STR}")
        A(f"s_mov_b32 {s(t1)}, {STM}")
        A(f"s_mov_b32 {s(t2)}, 0x00010001")
        A(f"s_mov_b32 exec_lo, {s(t2)}")
        A(f"s_mov_b32 exec_hi, {s(t2)}")
        A(f"buffer_store_dword {v(q2)}, {v(vRow)}, {s(R_WS, 4)}, {s(t0)} offen sc1")
        A(f"buffer_store_dword {v(m)}, {v(vRow)}, {s(R_WS, 4)}, {s(t1)} offen sc1")
        A("s_mov_b64 exec, -1")
        self.stamp(2)

        vKW, vx4 = 216, 60
        A(f"v_lshlrev_b32 {v(vKW)}, 4, v0")
        A(f"v_and_b32 {v(vKW + 1)}, 1, v1")
        A(f"v_lshlrev_b32 {v(vKW + 1)}, 4, {v(vKW + 1)}")
        A(f"v_add_u32 {v(vKW + 1)}, {4096 + L_KC}, {v(vKW + 1)}")
        A(f"v_add_u32 {v(vKW)}, {L_KC}, {v(vKW)}")
        for e in range(2):
            for ps in range(2):
                b = vKD + 8 * (2 * e + ps)
                base = e * 4 * CS
                ad = vKW + ps
                A(f"ds_write_b128 {v(ad)}, {v(b, 4)} offset:{base}")
                for i in range(4):
                    A(f"v_alignbit_b32 {v(vx4 + i)}, {v(b + i + 1)}, {v(b + i)}, 16")
                A(f"ds_write_b128 {v(ad)}, {v(vx4, 4)} offset:{base + CS}")
                for i in range(4):
                    A(f"v_mov_b32 {v(vx4 + 4 + i)}, {v(b + i + 1)}")
                A(f"ds_write_b128 {v(ad)}, {v(vx4 + 4, 4)} offset:{base + 2 * CS}")
                for i in range(4):
                    A(f"v_alignbit_b32 {v(vx4 + 8 + i)}, {v(b + i + 2)}, {v(b + i + 1)}, 16")
                A(f"ds_write_b128 {v(ad)}, {v(vx4 + 8, 4)} offset:{base + 3 * CS}")
        A("v_mov_b32 v72, 0")
        A("v_mov_b32 v73, 0")
        A("v_lshlrev_b32 v74, 3, v1")
        for e in range(2):
            A(f"ds_write_b64 v74, v[72:73] offset:{L_UR + 4608 * e + 4096}")
        A.wait_vm(0)
        A.barrier()
        A(f"s_add_u32 {s(S_NONCE)}, {s(S_NONCE)}, 1")
        A(f"s_lshl_b32 {s(t0)}, {s(S_CP)}, 7")
        A(f"s_add_u32 {s(t0)}, {s(t0)}, {FL + F1 * 128}")
        self.flag_store(t0)
        self.stamp(3)

    def phase_a(self):
        A = self.A
        T = S_T
        t0, t1, t2 = T, T + 1, T + 2
        vPa, vPt, vx, vy = 2, 3, 16, 17
        A(f"s_mul_i32 {s(t0)}, {s(S_WV)}, 56")
        A(f"v_add_u32 {v(vPa)}, {s(t0)}, v1")
        A(f"s_lshl_b32 {s(t0)}, {s(S_WV)}, 3")
        A(f"s_add_u32 {s(t0)}, {s(t0)}, {FM - 56}")
        A(f"v_add_u32 {v(vx)}, {s(t0)}, v1")
        A(f"v_min_u32 {v(vx)}, {FM + 20}, {v(vx)}")
        A(f"v_cmp_gt_u32 vcc, 56, v1")
        A(f"v_cndmask_b32 {v(vPa)}, {v(vx)}, {v(vPa)}, vcc")
        A(f"v_lshlrev_b32 {v(vPa)}, 7, {v(vPa)}")
        A(f"v_add_u32 {v(vPa)}, {FL}, {v(vPa)}")
        self.poll(vPa, vPt)
        A.barrier()
        self.stamp(5)
        vL16 = 4
        A(f"v_lshlrev_b32 {v(vL16)}, 4, v1")
        sKV = S_OFF + 2
        A(f"s_lshl_b32 {s(sKV)}, {s(S_CP)}, 13")
        A(f"s_lshl_b32 {s(t0)}, {s(S_WV)}, 11")
        A(f"s_add_u32 {s(sKV)}, {s(sKV)}, {s(t0)}")
        vKV = 8
        A(f"s_add_u32 {s(t1)}, {s(sKV)}, {KVP}")
        for h in range(2):
            A(f"buffer_load_dwordx4 {v(vKV + 4 * h, 4)}, {v(vL16)}, {s(R_WS, 4)}, {s(t1)} offen offset:{1024 * h} sc1")
        vQn, vRs, vMs = 144, 152, 160
        A(f"s_add_u32 {s(t1)}, {s(sKV)}, {QP}")
        for h in range(2):
            A(f"buffer_load_dwordx4 {v(vQn + 4 * h, 4)}, {v(vL16)}, {s(R_WS, 4)}, {s(t1)} offen offset:{1024 * h} sc1")
        A(f"s_add_u32 {s(t1)}, {s(t0)}, {STR}")
        A(f"s_add_u32 {s(t2)}, {s(t0)}, {STM}")
        for h in range(2):
            A(f"buffer_load_dwordx4 {v(vRs + 4 * h, 4)}, {v(vL16)}, {s(R_WS, 4)}, {s(t1)} offen offset:{1024 * h} sc1")
            A(f"buffer_load_dwordx4 {v(vMs + 4 * h, 4)}, {v(vL16)}, {s(R_WS, 4)}, {s(t2)} offen offset:{1024 * h} sc1")
        vPS, vPA, vPG, vPD = 168, 170, 172, 174
        A(f"s_lshl_b32 {s(t0)}, {s(S_CP)}, 3")
        A(f"v_mov_b32 {v(vx)}, {s(t0)}")
        for reg, sec in ((vPS, 0), (vPA, 1), (vPG, 2)):
            A(f"s_mov_b32 {s(t1)}, {MODF + sec * 1792}")
            A(f"buffer_load_dwordx2 {v(reg, 2)}, {v(vx)}, {s(R_WS, 4)}, {s(t1)} offen sc1")
        self.srd(R_A, P_D, 896)
        A(f"s_lshl_b32 {s(t0)}, {s(S_CP)}, 2")
        A(f"v_mov_b32 {v(vy)}, {s(t0)}")
        A(f"buffer_load_dword {v(vPD + 1)}, {v(vy)}, {s(R_A, 4)}, 0 offen")
        vUW, vaA, vaB = 5, 6, 7
        A(f"s_lshl_b32 {s(t0)}, {s(S_WV)}, 10")
        A(f"s_sub_u32 {s(t0)}, {4088 - 512}, {s(t0)}")
        A(f"v_lshlrev_b32 {v(vx)}, 3, v1")
        A(f"v_sub_u32 {v(vUW)}, {s(t0)}, {v(vx)}")
        A(f"v_and_b32 {v(vx)}, 15, v1")
        A(f"v_add_u32 {v(vx)}, 1, {v(vx)}")
        A(f"v_and_b32 {v(vy)}, 3, {v(vx)}")
        A(f"v_sub_u32 {v(vx)}, {v(vx)}, {v(vy)}")
        A(f"v_lshlrev_b32 {v(vx)}, 1, {v(vx)}")
        A(f"v_mul_u32_u24 {v(vy)}, {CS}, {v(vy)}")
        A(f"v_add_u32 {v(vaA)}, {v(vx)}, {v(vy)}")
        A(f"v_lshrrev_b32 {v(vy)}, 4, v1")
        A(f"v_lshl_add_u32 {v(vaA)}, {v(vy)}, 4, {v(vaA)}")
        A(f"s_lshr_b32 {s(t0)}, {s(S_WV)}, 1")
        A(f"s_and_b32 {s(t1)}, {s(S_WV)}, 1")
        A(f"s_mul_i32 {s(t2)}, {s(t0)}, {4 * CS}")
        A(f"s_lshl_b32 {s(t1)}, {s(t1)}, 8")
        A(f"s_add_u32 {s(t2)}, {s(t2)}, {s(t1)}")
        A(f"s_add_u32 {s(t2)}, {s(t2)}, {L_KC}")
        A(f"v_add_u32 {v(vaA)}, {s(t2)}, {v(vaA)}")
        A(f"v_and_b32 {v(vx)}, 15, v1")
        A(f"v_lshlrev_b32 {v(vx)}, 5, {v(vx)}")
        A(f"v_lshlrev_b32 {v(vy)}, 4, {v(vy)}")
        A(f"v_sub_u32 {v(vaB)}, {v(vy)}, {v(vx)}")
        A(f"s_mul_i32 {s(t2)}, {s(t0)}, 4608")
        A(f"s_add_u32 {s(t2)}, {s(t2)}, {s(t1)}")
        A(f"s_add_u32 {s(t2)}, {s(t2)}, {L_UR + 480}")
        A(f"v_add_u32 {v(vaB)}, {s(t2)}, {v(vaB)}")
        vP = 20
        for h in range(2):
            d = vKV + 4 * h
            for e, sel in ((0, S_PERM_LO), (1, S_PERM_HI)):
                o = vP + 4 * h + 2 * e
                A(f"v_perm_b32 {v(o)}, {v(d + 2)}, {v(d + 3)}, {s(sel)}")
                A(f"v_perm_b32 {v(o + 1)}, {v(d)}, {v(d + 1)}, {s(sel)}")
                A(f"ds_write_b64 {v(vUW)}, {v(o, 2)} offset:{L_UR + 4608 * e + (512 if h == 0 else 0)}")
        self.load_w1(0, self.w1_split)
        A.barrier()
        self.stamp(6)
        ACC = 32
        BS = [64, 96]
        AR = 128

        def ldB(rp, m):
            A(f"ds_read_b128 {v(BS[rp & 1] + 4 * m, 4)}, {v(vaB)} offset:{64 * rp + 512 * (7 - m)}")

        def ldA(idx):
            rp, q = divmod(idx, 8)
            r = AR + 4 * (idx % 4)
            A(f"ds_read_b64 {v(r, 2)}, {v(vaA)} offset:{64 * rp + 512 * q}")
            A(f"ds_read_b64 {v(r + 2, 2)}, {v(vaA)} offset:{64 * rp + 512 * q + 8}")

        ldA(0)
        for m in range(8):
            ldB(0, m)
        ldA(1)
        ldA(2)
        for rp in range(4):
            for q in range(8):
                idx = rp * 8 + q
                ar = AR + 4 * (idx % 4)
                first = True
                for n in range(q, 8):
                    c = "0" if (rp == 0 and q == 0) else v(ACC + 4 * n, 4)
                    A(f"v_mfma_f32_16x16x32_bf16 {v(ACC + 4 * n, 4)}, {v(ar, 4)}, {v(BS[rp & 1] + 4 * (n - q), 4)}, {c}")
                    if first:
                        first = False
                        if idx + 3 < 32:
                            ldA(idx + 3)
                        if rp < 3 and 0 <= q <= 3:
                            ldB(rp + 1, 2 * q)
                            ldB(rp + 1, 2 * q + 1)
        self.stamp(7)
        vRW, vRR = 19, 28
        A(f"v_and_b32 {v(vx)}, 15, v1")
        A(f"v_mul_u32_u24 {v(vRW)}, 80, {v(vx)}")
        A(f"v_lshrrev_b32 {v(vy)}, 4, v1")
        A(f"v_lshl_add_u32 {v(vRW)}, {v(vy)}, 4, {v(vRW)}")
        A(f"s_mul_i32 {s(t0)}, {s(S_WV)}, 10240")
        A(f"s_add_u32 {s(t0)}, {s(t0)}, {L_RED}")
        A(f"v_add_u32 {v(vRW)}, {s(t0)}, {v(vRW)}")
        A(f"v_lshrrev_b32 {v(vx)}, 2, v1")
        A(f"v_mul_u32_u24 {v(vRR)}, 80, {v(vx)}")
        A(f"v_and_b32 {v(vy)}, 3, v1")
        A(f"v_lshl_add_u32 {v(vRR)}, {v(vy)}, 4, {v(vRR)}")
        A(f"s_mul_i32 {s(t0)}, {s(S_WV)}, 2560")
        A(f"s_add_u32 {s(t0)}, {s(t0)}, {L_RED}")
        A(f"v_add_u32 {v(vRR)}, {s(t0)}, {v(vRR)}")
        for n in range(8):
            A(f"ds_write_b128 {v(vRW)}, {v(ACC + 4 * n, 4)} offset:{1280 * n}")
        vSt = 29
        A(f"v_lshrrev_b32 {v(vx)}, 4, v1")
        A(f"v_mul_u32_u24 {v(vSt)}, 57344, {v(vx)}")
        A(f"v_and_b32 {v(vy)}, 15, v1")
        A(f"v_lshl_add_u32 {v(vSt)}, {v(vy)}, 4, {v(vSt)}")
        sX = S_OFF + 3
        A(f"s_mul_i32 {s(sX)}, {s(S_WV)}, {2 * 229376}")
        A(f"s_lshl_b32 {s(t0)}, {s(S_CP)}, 8")
        A(f"s_add_u32 {s(sX)}, {s(sX)}, {s(t0)}")
        A(f"s_add_u32 {s(sX)}, {s(sX)}, {X1P}")
        A(f"v_lshlrev_b32 {v(vPD)}, 16, {v(vPD + 1)}")
        A(f"v_and_b32 {v(vPD + 1)}, {s(S_MASKHI)}, {v(vPD + 1)}")
        A.barrier()
        vY = 96
        for h in range(2):
            for w in range(4):
                A(f"ds_read_b128 {v(vY + 16 * h + 4 * w, 4)}, {v(vRR)} offset:{10240 * w + 1280 * h}")
        vU, vQq, vNN, vXo = 128, 132, 136, 64
        vOut = 72
        for h in range(2):
            for e in range(2):
                y = vY + 16 * h + 8 * e
                sel = f"op_sel:[0,{e},0] op_sel_hi:[1,{e},1]"
                for r in range(4):
                    for dst, src in ((vU, vKV), (vQq, vQn)):
                        if e == 0:
                            A(f"v_lshlrev_b32 {v(dst + r)}, 16, {v(src + 4 * h + r)}")
                        else:
                            A(f"v_and_b32 {v(dst + r)}, {s(S_MASKHI)}, {v(src + 4 * h + r)}")
                for k in (0, 2):
                    A(f"v_pk_fma_f32 {v(vNN + k, 2)}, {v(vQq + k, 2)}, {v(vRs + 4 * h + k, 2)}, {v(vMs + 4 * h + k, 2)} neg_lo:[0,0,1] neg_hi:[0,0,1]")
                for k in (0, 2):
                    A(f"v_pk_fma_f32 {v(vNN + k, 2)}, {v(vNN + k, 2)}, {v(vPA, 2)}, {v(vPS, 2)} op_sel:[0,{e},{e}] op_sel_hi:[1,{e},{e}]")
                A(f"v_pk_add_f32 {v(y, 2)}, {v(y, 2)}, {v(y + 4, 2)}")
                A(f"v_pk_add_f32 {v(y + 2, 2)}, {v(y + 2, 2)}, {v(y + 6, 2)}")
                for k in (0, 2):
                    A(f"v_pk_fma_f32 {v(y + k, 2)}, {v(vU + k, 2)}, {v(vPD, 2)}, {v(y + k, 2)} {sel}")
                for k in (0, 2):
                    A(f"v_pk_mul_f32 {v(vNN + k, 2)}, {v(vNN + k, 2)}, {v(y + k, 2)}")
                for k in (0, 2):
                    A(f"v_pk_fma_f32 {v(vXo + 4 * e + k, 2)}, {v(vNN + k, 2)}, {v(vPG, 2)}, {v(vQq + k, 2)} {sel}")
            for r in range(4):
                A(f"v_cvt_pk_bf16_f32 {v(vOut + 4 * h + r)}, {v(vXo + r)}, {v(vXo + 4 + r)}")
            A(f"buffer_store_dwordx4 {v(vOut + 4 * h, 4)}, {v(vSt)}, {s(R_WS, 4)}, {s(sX)} offen sc1")
            if h == 0:
                A(f"s_add_u32 {s(sX)}, {s(sX)}, 229376")
        self.stamp(8)
        vpa = 16
        A(f"v_lshlrev_b32 {v(vpa)}, 3, v0")
        A(f"s_mov_b32 {s(t0)}, {MODF + 4 * 1792}")
        A(f"s_mov_b32 {s(t1)}, {MODF + 3 * 1792}")
        A(f"buffer_load_dwordx2 v[20:21], {v(vpa)}, {s(R_WS, 4)}, {s(t0)} offen sc1")
        A(f"buffer_load_dwordx2 v[22:23], {v(vpa)}, {s(R_WS, 4)}, {s(t1)} offen sc1")
        A(f"v_lshlrev_b32 v17, 2, v1")
        A(f"s_lshl_b32 {s(t0)}, {s(S_J)}, 8")
        A(f"s_add_u32 {s(t0)}, {s(t0)}, {MODF + 5 * 1792}")
        A(f"buffer_load_dword v24, v17, {s(R_WS, 4)}, {s(t0)} offen sc1")
        A(f"v_lshlrev_b32 v18, 4, v0")
        A(f"v_add_u32 v18, {L_PAR}, v18")
        A(f"v_add_u32 v19, {L_GB}, v17")
        A(f"ds_write_b128 v18, v[20:23]")
        A(f"ds_write_b32 v19, v24")
        A.wait_vm(0)
        A.barrier()
        A(f"s_lshl_b32 {s(t0)}, {s(S_CP)}, 7")
        A(f"s_add_u32 {s(t0)}, {s(t0)}, {FL + F2 * 128}")
        self.flag_store(t0)
        self.load_w1(self.w1_split, 56)
        self.stamp(9)

    def phase_b(self):
        A = self.A
        T = S_T
        t0, t1, t2 = T, T + 1, T + 2
        vPa, vPt = 2, 4
        A(f"v_min_u32 {v(vPa)}, 55, v1")
        A(f"s_mul_i32 {s(t0)}, {s(S_WV)}, 56")
        A(f"v_add_u32 {v(vPa)}, {s(t0)}, {v(vPa)}")
        A(f"v_lshlrev_b32 {v(vPa)}, 7, {v(vPa)}")
        A(f"v_add_u32 {v(vPa)}, {FL + F2 * 128}, {v(vPa)}")
        self.poll(vPa, vPt)
        A.barrier()
        self.stamp(10)
        vL16 = 4
        A(f"v_lshlrev_b32 {v(vL16)}, 4, v1")
        A(f"s_mul_i32 {s(t1)}, {s(S_WV)}, 14336")
        A(f"s_mul_i32 {s(t0)}, {s(S_RB)}, 57344")
        A(f"s_add_u32 {s(t0)}, {s(t0)}, {s(t1)}")
        A(f"s_add_u32 {s(t0)}, {s(t0)}, {X1P}")
        A(f"s_add_u32 {s(t1)}, {s(t1)}, {L_XD}")
        A(f"s_mov_b32 m0, {s(t1)}")
        for i in range(14):
            if i and i % 4 == 0:
                A(f"s_add_u32 {s(t0)}, {s(t0)}, 4096")
                A(f"s_add_u32 m0, m0, 4096")
            A.dma(f"buffer_load_dwordx4 {v(vL16)}, {s(R_WS, 4)}, {s(t0)} offen offset:{1024 * (i % 4)} sc1 lds", f"x{i}")
        skip = self.lab("ep")
        A(f"s_cmp_lg_u32 {s(S_CP)}, 0")
        A(f"s_cbranch_scc1 {skip}")
        A.cond_begin()
        A(f"s_mov_b32 {s(t0)}, 0")
        self.flag_store(t0)
        A.cond_end()
        A.label(skip)
        X = 88
        vXR = 5
        A(f"v_lshlrev_b32 {v(vXR)}, 2, v1")
        A(f"v_add_u32 {v(vXR)}, {s(t1)}, {v(vXR)}")

        def ldX(e):
            if e % 4 == 0:
                A.need(f"x{e // 4}")
            A(f"ds_read_b32 {v(X + 2 * e + 1)}, {v(vXR)} offset:{256 * e}")

        vS = 8
        AHEAD = 12
        for e in range(AHEAD):
            ldX(e)
        for e in range(56):
            if e + AHEAD < 56:
                ldX(e + AHEAD)
            r = X + 2 * e
            A(f"v_lshlrev_b32 {v(r)}, 16, {v(r + 1)}")
            A(f"v_and_b32 {v(r + 1)}, {s(S_MASKHI)}, {v(r + 1)}")
            s1, s2 = vS + 2 * (e & 1), vS + 4 + 2 * (e & 1)
            if e < 2:
                A(f"v_mov_b32 {v(s1)}, {v(r)}")
                A(f"v_mov_b32 {v(s1 + 1)}, {v(r + 1)}")
                A(f"v_pk_mul_f32 {v(s2, 2)}, {v(r, 2)}, {v(r, 2)}")
            else:
                A(f"v_pk_add_f32 {v(s1, 2)}, {v(s1, 2)}, {v(r, 2)}")
                A(f"v_pk_fma_f32 {v(s2, 2)}, {v(r, 2)}, {v(r, 2)}, {v(s2, 2)}")
        A(f"v_pk_add_f32 {v(vS, 2)}, {v(vS, 2)}, {v(vS + 2, 2)}")
        A(f"v_pk_add_f32 {v(vS + 4, 2)}, {v(vS + 4, 2)}, {v(vS + 6, 2)}")
        A(f"v_add_f32 {v(vS)}, {v(vS)}, {v(vS + 1)}")
        A(f"v_add_f32 {v(vS + 1)}, {v(vS + 4)}, {v(vS + 5)}")
        vSW = 5
        A(f"v_lshlrev_b32 {v(vSW)}, 3, v1")
        A(f"v_add_u32 {v(vSW)}, {L_STAT}, {v(vSW)}")
        A(f"s_lshl_b32 {s(t0)}, {s(S_WV)}, 9")
        A(f"v_add_u32 v6, {s(t0)}, {v(vSW)}")
        A(f"ds_write_b64 v6, {v(vS, 2)}")
        vPb = 6
        vHW = 7
        A(f"v_lshrrev_b32 v22, 5, v1")
        A(f"v_lshlrev_b32 {v(vHW)}, 10, v22")
        A(f"v_and_b32 v22, 31, v1")
        A(f"v_lshl_add_u32 {v(vHW)}, v22, 4, {v(vHW)}")
        A(f"s_mul_i32 {s(t0)}, {s(S_WV)}, {7 * 2048}")
        A(f"v_add_u32 {v(vHW)}, {s(t0)}, {v(vHW)}")
        A(f"s_mul_i32 {s(t0)}, {s(S_WV)}, 896")
        A(f"s_add_u32 {s(t0)}, {s(t0)}, {L_PAR}")
        A.barrier()
        for w in range(4):
            A(f"ds_read_b64 {v(16 + 2 * w, 2)}, {v(vSW)} offset:{512 * w}")
        A(f"v_mov_b32 {v(vPb)}, {s(t0)}")
        PR = 24
        OUT = 56

        def ldP(e):
            A(f"ds_read_b128 {v(PR + 4 * (e % 8), 4)}, {v(vPb)} offset:{16 * e}")

        for e in range(6):
            ldP(e)
        A("v_pk_add_f32 v[16:17], v[16:17], v[18:19]")
        A("v_pk_add_f32 v[20:21], v[20:21], v[22:23]")
        A("v_pk_add_f32 v[16:17], v[16:17], v[20:21]")
        A(f"s_mov_b32 {s(t0)}, 0x{f32bits(1.0 / 448):08x}")
        A(f"s_mov_b32 {s(t1)}, 0x{f32bits(1e-5):08x}")
        A(f"v_mul_f32 v16, {s(t0)}, v16")
        A(f"v_mul_f32 v17, {s(t0)}, v17")
        A("v_fma_f32 v17, -v16, v16, v17")
        A("v_max_f32 v17, 0, v17")
        A(f"v_add_f32 v17, {s(t1)}, v17")
        vR, vM = 18, 20
        A(f"v_rsq_f32 {v(vR)}, v17")
        A(f"v_mul_f32 {v(vM)}, v16, {v(vR)}")
        for e in range(56):
            if e + 6 < 56:
                ldP(e + 6)
            r = X + 2 * e
            p = PR + 4 * (e % 8)
            sp, k = divmod(e, 8)
            o = OUT + 8 * (sp & 1)
            A(f"v_pk_fma_f32 {v(r, 2)}, {v(r, 2)}, {v(vR, 2)}, {v(vM, 2)} op_sel_hi:[1,0,0] neg_lo:[0,0,1] neg_hi:[0,0,1]")
            A(f"v_pk_fma_f32 {v(r, 2)}, {v(r, 2)}, {v(p, 2)}, {v(p + 2, 2)}")
            A(f"v_cvt_pk_bf16_f32 {v(o + k)}, {v(r)}, {v(r + 1)}")
            if k == 3:
                A(f"ds_write_b128 {v(vHW)}, {v(o, 4)} offset:{L_H2 + 2048 * sp}")
            if k == 7:
                A(f"ds_write_b128 {v(vHW)}, {v(o + 4, 4)} offset:{L_H2 + 2048 * sp + 512}")
        A.barrier()
        self.stamp(11)

    def load_w1(self, lo, hi):
        A = self.A
        t0, t1 = S_T, S_T + 1
        A(f"s_lshl_b32 {s(t0)}, {s(S_J)}, 3")
        A(f"s_lshl_b32 {s(t1)}, {s(S_WV)}, 1")
        A(f"s_add_u32 {s(t0)}, {s(t0)}, {s(t1)}")
        A(f"s_mul_i32 {s(t0)}, {s(t0)}, {28 * 1024}")
        A(f"s_add_u32 {s(t0)}, {s(t0)}, {W1F + 1024 * (lo - lo % 4)}")
        A(f"v_lshlrev_b32 v30, 4, v1")
        for f in range(lo, hi):
            if f != lo and f % 4 == 0:
                A(f"s_add_u32 {s(t0)}, {s(t0)}, 4096")
            A(f"buffer_load_dwordx4 {a(4 * f, 4)}, v30, {s(R_WS, 4)}, {s(t0)} offen offset:{1024 * (f % 4)} sc1")

    def w2reg(self, f):
        if f < 41:
            return v(88 + 4 * f, 4)
        if f < 49:
            return a(224 + 4 * (f - 41), 4)
        return a(4 * (f - 49), 4)

    def w2_load_list(self, lo, hi, sreg):
        out = []
        for f in range(lo, hi):
            if f % 4 == 0 and f != 0:
                out.append(f"s_add_u32 {s(sreg)}, {s(sreg)}, 4096")
            out.append(f"buffer_load_dwordx4 {self.w2reg(f)}, v3, {s(R_WS, 4)}, {s(sreg)} offen offset:{1024 * (f % 4)} sc1")
        return out

    def phase_c(self):
        A = self.A
        T = S_T
        t0, t1 = T, T + 1
        sW2, sH = S_OFF + 4, S_OFF + 5
        A(f"v_lshlrev_b32 v3, 4, v1")
        A(f"s_lshl_b32 {s(t0)}, {s(S_J)}, 2")
        A(f"s_add_u32 {s(t0)}, {s(t0)}, {s(S_WV)}")
        A(f"s_mul_i32 {s(sW2)}, {s(t0)}, {56 * 1024}")
        A(f"s_add_u32 {s(sW2)}, {s(sW2)}, {W2F}")
        A(f"s_mul_i32 {s(t0)}, {s(S_RB)}, 112")
        A(f"s_lshl_b32 {s(t1)}, {s(S_J)}, 4")
        A(f"s_add_u32 {s(t0)}, {s(t0)}, {s(t1)}")
        A(f"s_lshl_b32 {s(t1)}, {s(S_WV)}, 2")
        A(f"s_add_u32 {s(t0)}, {s(t0)}, {s(t1)}")
        A(f"s_lshl_b32 {s(sH)}, {s(t0)}, 11")
        A(f"s_add_u32 {s(sH)}, {s(sH)}, {HF}")
        sC = S_OFF + 6
        A(f"s_mov_b32 {s(sC)}, 0x{f32bits(-1.4426950408889634):08x}")
        ACC = [24, 40]
        RING = 56
        TMP = 68
        OUT = 76
        w2ld = self.w2_load_list(0, 49, sW2)
        w2pos = 0

        def silu_ops(tile):
            ft, th = divmod(tile, 2)
            acc = ACC[tile & 1]
            ops = []
            for g in range(2):
                base = acc + 8 * g
                for i in range(8):
                    ops.append(f"v_mul_f32 {v(TMP + i)}, {s(sC)}, {v(base + i)}")
                for i in range(8):
                    ops.append(f"v_exp_f32 {v(TMP + i)}, {v(TMP + i)}")
                for i in range(8):
                    ops.append(f"v_add_f32 {v(TMP + i)}, 1.0, {v(TMP + i)}")
                for i in range(8):
                    ops.append(f"v_rcp_f32 {v(TMP + i)}, {v(TMP + i)}")
                for i in range(8):
                    ops.append(f"v_mul_f32 {v(base + i)}, {v(base + i)}, {v(TMP + i)}")
                for i in range(4):
                    ops.append(f"v_cvt_pk_bf16_f32 {v(OUT + 4 * g + i)}, {v(base + 2 * i)}, {v(base + 2 * i + 1)}")
                off = (2 * (2 * ft + g) + th) * 1024
                if off >= 4096:
                    ops.append(f"s_add_u32 {s(t1)}, {s(sH)}, 4096")
                    ops.append(f"buffer_store_dwordx4 {v(OUT + 4 * g, 4)}, v3, {s(R_WS, 4)}, {s(t1)} offen offset:{off - 4096} sc1")
                else:
                    ops.append(f"buffer_store_dwordx4 {v(OUT + 4 * g, 4)}, v3, {s(R_WS, 4)}, {s(sH)} offen offset:{off} sc1")
            return ops

        def ldH(idx):
            tile, st = divmod(idx, 28)
            th = tile & 1
            A(f"ds_read_b128 {v(RING + 4 * (idx % 3), 4)}, v3 offset:{L_H2 + 2048 * st + 1024 * th}")

        ldH(0)
        ldH(1)
        pend = []
        for tile in range(4):
            ft = tile >> 1
            acc = ACC[tile & 1]
            for st in range(28):
                idx = tile * 28 + st
                if idx + 2 < 112:
                    ldH(idx + 2)
                c = "0" if st == 0 else v(acc, 16)
                A(f"v_mfma_f32_32x32x16_bf16 {v(acc, 16)}, {a(4 * (28 * ft + st), 4)}, {v(RING + 4 * (idx % 3), 4)}, {c}")
                if pend and st >= 2:
                    for _ in range(4):
                        if pend:
                            A(pend.pop(0))
                nld = 0
                while w2pos < len(w2ld) and nld < 1:
                    ins = w2ld[w2pos]
                    A(ins)
                    w2pos += 1
                    if ins.startswith("buffer"):
                        nld += 1
            assert not pend, len(pend)
            pend = silu_ops(tile)
        for ins in pend:
            A(ins)
        while w2pos < len(w2ld):
            A(w2ld[w2pos])
            w2pos += 1
        self.stamp(12)
        A.wait_vm(0)
        A.barrier()
        A(f"s_lshl_b32 {s(t0)}, {s(S_RB)}, 3")
        A(f"s_add_u32 {s(t0)}, {s(t0)}, {s(S_J)}")
        A(f"s_lshl_b32 {s(t0)}, {s(t0)}, 7")
        A(f"s_add_u32 {s(t0)}, {s(t0)}, {FL + F3 * 128}")
        self.flag_store(t0)
        for ins in self.w2_load_list(49, 56, sW2):
            A(ins)
        self.stamp(13)

    def phase_d(self):
        A = self.A
        T = S_T
        t0, t1 = T, T + 1
        vPa, vPt = 2, 4
        A(f"v_min_u32 {v(vPa)}, 6, v1")
        A(f"s_lshl_b32 {s(t0)}, {s(S_RB)}, 3")
        A(f"v_add_u32 {v(vPa)}, {s(t0)}, {v(vPa)}")
        A(f"v_lshlrev_b32 {v(vPa)}, 7, {v(vPa)}")
        A(f"v_add_u32 {v(vPa)}, {FL + F3 * 128}, {v(vPa)}")
        self.poll(vPa, vPt)
        self.stamp(14)
        sH = S_OFF
        A(f"s_mul_i32 {s(t0)}, {s(S_RB)}, 112")
        A(f"s_mul_i32 {s(t1)}, {s(S_WV)}, 28")
        A(f"s_add_u32 {s(t0)}, {s(t0)}, {s(t1)}")
        A(f"s_lshl_b32 {s(sH)}, {s(t0)}, 11")
        A(f"s_add_u32 {s(sH)}, {s(sH)}, {HF}")
        NSLOT = 49
        HB = 28

        def hreg(i):
            return a(HB + 4 * (i % NSLOT), 4)

        def ldH(i):
            if i % 4 == 0 and i:
                A(f"s_add_u32 {s(sH)}, {s(sH)}, 4096")
            A(f"buffer_load_dwordx4 {hreg(i)}, v3, {s(R_WS, 4)}, {s(sH)} offen offset:{1024 * (i % 4)} sc1")

        for i in range(NSLOT):
            ldH(i)
        ACC = 24
        nxt = NSLOT
        for st in range(28):
            for th in range(2):
                i = 2 * st + th
                for dt in range(2):
                    acc = ACC + 16 * (2 * dt + th)
                    c = "0" if st == 0 else v(acc, 16)
                    A(f"v_mfma_f32_32x32x16_bf16 {v(acc, 16)}, {self.w2reg(2 * st + dt)}, {hreg(i)}, {c}")
            for _ in range(2):
                if st >= 1 and nxt < 56:
                    ldH(nxt)
                    nxt += 1
        self.stamp(15)
        vW = 88
        A(f"v_and_b32 v89, 31, v1")
        A(f"v_mul_u32_u24 {v(vW)}, 272, v89")
        A(f"v_lshrrev_b32 v89, 5, v1")
        A(f"v_lshl_add_u32 {v(vW)}, v89, 4, {v(vW)}")
        A(f"s_mul_i32 {s(t0)}, {s(S_WV)}, 17408")
        A(f"s_add_u32 {s(t0)}, {s(t0)}, {L_RED2}")
        A(f"v_add_u32 {v(vW)}, {s(t0)}, {v(vW)}")
        for dt in range(2):
            for th in range(2):
                acc = ACC + 16 * (2 * dt + th)
                for g in range(4):
                    A(f"ds_write_b128 {v(vW)}, {v(acc + 4 * g, 4)} offset:{32 * 272 * th + 128 * dt + 32 * g}")
        vR, vX, vG, vO = 90, 91, 92, 93
        A(f"v_lshrrev_b32 v94, 3, v0")
        A(f"v_and_b32 v95, 7, v0")
        A(f"v_mul_u32_u24 {v(vR)}, 272, v94")
        A(f"v_lshl_add_u32 {v(vR)}, v95, 5, {v(vR)}")
        A(f"v_add_u32 {v(vR)}, {L_RED2}, {v(vR)}")
        A(f"v_lshlrev_b32 {v(vX)}, 10, v95")
        A(f"v_lshl_add_u32 {v(vX)}, v94, 2, {v(vX)}")
        A(f"s_lshl_b32 {s(t0)}, {s(S_J)}, 13")
        A(f"s_add_u32 {s(t0)}, {s(t0)}, {L_XD}")
        A(f"v_add_u32 {v(vX)}, {s(t0)}, {v(vX)}")
        A(f"v_lshlrev_b32 {v(vG)}, 5, v95")
        A(f"v_add_u32 {v(vG)}, {L_GB}, {v(vG)}")
        A(f"s_lshl_b32 {s(t0)}, {s(S_RB)}, 6")
        A(f"v_add_u32 {v(vO)}, {s(t0)}, v94")
        A(f"v_mul_u32_u24 {v(vO)}, 896, {v(vO)}")
        A(f"v_lshl_add_u32 {v(vO)}, v95, 4, {v(vO)}")
        A(f"s_lshl_b32 {s(t0)}, {s(S_J)}, 7")
        A(f"v_add_u32 {v(vO)}, {s(t0)}, {v(vO)}")
        self.srd(R_A, P_OUT, 2048 * 896)
        A.barrier()
        GB = 96
        A(f"ds_read_b128 {v(GB, 4)}, {v(vG)}")
        A(f"ds_read_b128 {v(GB + 4, 4)}, {v(vG)} offset:16")
        for p in range(2):
            P = 104 + 48 * p
            for w in range(4):
                for hh in range(2):
                    A(f"ds_read_b128 {v(P + 8 * w + 4 * hh, 4)}, {v(vR)} offset:{17408 * w + 32 * 272 * p + 16 * hh}")
            for k in range(4):
                A(f"ds_read_b32 {v(P + 32 + k)}, {v(vX)} offset:{256 * k + 128 * p}")
        for p in range(2):
            P = 104 + 48 * p
            for k in range(4):
                A(f"v_pk_add_f32 {v(P + 2 * k, 2)}, {v(P + 2 * k, 2)}, {v(P + 8 + 2 * k, 2)}")
                A(f"v_pk_add_f32 {v(P + 16 + 2 * k, 2)}, {v(P + 16 + 2 * k, 2)}, {v(P + 24 + 2 * k, 2)}")
            for k in range(4):
                A(f"v_pk_add_f32 {v(P + 2 * k, 2)}, {v(P + 2 * k, 2)}, {v(P + 16 + 2 * k, 2)}")
            U = P + 8
            for k in range(4):
                A(f"v_cvt_pk_bf16_f32 {v(U + k)}, {v(P + 2 * k)}, {v(P + 2 * k + 1)}")
            for k in range(4):
                A(f"v_lshlrev_b32 {v(P + 2 * k)}, 16, {v(U + k)}")
                A(f"v_and_b32 {v(P + 2 * k + 1)}, {s(S_MASKHI)}, {v(U + k)}")
            for k in range(4):
                A(f"v_pk_mul_f32 {v(P + 2 * k, 2)}, {v(P + 2 * k, 2)}, {v(GB + 2 * k, 2)}")
            for k in range(4):
                A(f"v_cvt_pk_bf16_f32 {v(U + k)}, {v(P + 2 * k)}, {v(P + 2 * k + 1)}")
            for k in range(4):
                A(f"v_lshlrev_b32 {v(P + 2 * k)}, 16, {v(U + k)}")
                A(f"v_and_b32 {v(P + 2 * k + 1)}, {s(S_MASKHI)}, {v(U + k)}")
            for k in range(4):
                A(f"v_lshlrev_b32 {v(U + 4 + 2 * k)}, 16, {v(P + 32 + k)}")
                A(f"v_and_b32 {v(U + 5 + 2 * k)}, {s(S_MASKHI)}, {v(P + 32 + k)}")
            for k in range(4):
                A(f"v_pk_add_f32 {v(P + 2 * k, 2)}, {v(P + 2 * k, 2)}, {v(U + 4 + 2 * k, 2)}")
            for k in range(4):
                A(f"v_cvt_pk_bf16_f32 {v(U + k)}, {v(P + 2 * k)}, {v(P + 2 * k + 1)}")
            A(f"buffer_store_dwordx4 {v(U, 4)}, {v(vO)}, {s(R_A, 4)}, 0 offen")
            if p == 0:
                A(f"v_add_u32 {v(vO)}, {32 * 896}, {v(vO)}")
        self.stamp(16)

    def helper(self):
        A = self.A
        T = S_T
        t0, t1, t2 = T + 4, T + 5, T + 6
        sH = S_RB
        A.label("L_helper")
        A(f"s_sub_u32 {s(t0)}, {s(T + 1)}, 28")
        A(f"s_lshl_b32 {s(t0)}, {s(t0)}, 3")
        A(f"s_add_u32 {s(sH)}, {s(t0)}, {s(T)}")
        A(f"s_cmp_ge_u32 {s(sH)}, 21")
        A("s_cbranch_scc1 L_exit")
        self.srd(R_A, P_WM, 448 * 5376)
        self.srd(R_B, P_C, 896)
        A("v_lshrrev_b32 v2, 4, v0")
        A("v_and_b32 v3, 15, v0")
        A("v_mul_u32_u24 v4, 5376, v2")
        A("v_lshl_add_u32 v4, v3, 4, v4")
        A(f"s_lshl_b32 {s(t0)}, {s(sH)}, 8")
        A(f"v_add_u32 v4, {s(t0)}, v4")
        A("v_lshlrev_b32 v5, 2, v0")
        A(f"buffer_load_dword v6, v5, {s(R_B, 4)}, 0 offen")
        W = 16
        A(f"s_mov_b32 {s(t0)}, 0")
        for i in range(28):
            A(f"buffer_load_dwordx4 {v(W + 4 * i, 4)}, v4, {s(R_A, 4)}, {s(t0)} offen")
            if i < 27:
                A(f"s_add_u32 {s(t0)}, {s(t0)}, {16 * 5376}")
        A(f"s_mov_b32 {s(t1)}, 0x{f32bits(-1.4426950408889634):08x}")
        A("v_lshlrev_b32 v8, 16, v6")
        A(f"v_and_b32 v9, {s(S_MASKHI)}, v6")
        for r in (8, 9):
            A(f"v_mul_f32 {v(r + 2)}, {s(t1)}, {v(r)}")
        for r in (8, 9):
            A(f"v_exp_f32 {v(r + 2)}, {v(r + 2)}")
        for r in (8, 9):
            A(f"v_add_f32 {v(r + 2)}, 1.0, {v(r + 2)}")
        for r in (8, 9):
            A(f"v_rcp_f32 {v(r + 2)}, {v(r + 2)}")
        for r in (8, 9):
            A(f"v_mul_f32 {v(r)}, {v(r)}, {v(r + 2)}")
        A("v_cvt_pk_bf16_f32 v6, v8, v9")
        A("v_lshlrev_b32 v8, 16, v6")
        A(f"v_and_b32 v9, {s(S_MASKHI)}, v6")
        A("v_lshlrev_b32 v7, 3, v0")
        A(f"ds_write_b64 v7, v[8:9] offset:{L_SC}")
        A.barrier()
        A("v_lshlrev_b32 v7, 2, v2")
        SC = 128
        for i in range(28):
            A(f"ds_read_b32 {v(SC + 2 * i)}, v7 offset:{L_SC + 64 * i}")
        AC = 192
        U = 200
        for i in range(28):
            for k in range(4):
                src = W + 4 * i + k
                u = U + 2 * k
                A(f"v_lshlrev_b32 {v(u)}, 16, {v(src)}")
                A(f"v_and_b32 {v(u + 1)}, {s(S_MASKHI)}, {v(src)}")
            for k in range(4):
                u = U + 2 * k
                if i == 0:
                    A(f"v_pk_mul_f32 {v(AC + 2 * k, 2)}, {v(u, 2)}, {v(SC + 2 * i, 2)} op_sel_hi:[1,0]")
                else:
                    A(f"v_pk_fma_f32 {v(AC + 2 * k, 2)}, {v(u, 2)}, {v(SC + 2 * i, 2)}, {v(AC + 2 * k, 2)} op_sel_hi:[1,0,1]")
        A("v_mul_u32_u24 v7, 528, v2")
        A("v_lshl_add_u32 v7, v3, 5, v7")
        A(f"ds_write_b128 v7, {v(AC, 4)} offset:{L_MR}")
        A(f"ds_write_b128 v7, {v(AC + 4, 4)} offset:{L_MR + 16}")
        A.barrier()
        A("v_and_b32 v8, 127, v0")
        A("v_lshlrev_b32 v7, 2, v8")
        for g in range(16):
            A(f"ds_read_b32 {v(16 + g)}, v7 offset:{L_MR + 528 * g}")
        for stp in (8, 4, 2, 1):
            for g in range(stp):
                A(f"v_add_f32 {v(16 + g)}, {v(16 + g)}, {v(16 + g + stp)}")
        A("v_cvt_pk_bf16_f32 v16, v16, v16")
        A(f"v_and_b32 v16, {s(S_MASKHI)}, v16")
        A("v_add_f32 v17, 1.0, v16")
        A("v_cvt_pk_bf16_f32 v17, v17, v17")
        A(f"v_and_b32 v17, {s(S_MASKHI)}, v17")
        A(f"s_lshl_b32 {s(t0)}, {s(sH)}, 7")
        A(f"v_add_u32 v8, {s(t0)}, v8")
        A("v_subrev_u32 v9, 448, v8")
        A("v_subrev_u32 v10, 1792, v8")
        A("v_min_u32 v9, v9, v10")
        A("v_mov_b32 v11, 448")
        A("v_cmp_lt_u32 vcc, v9, v11")
        A("s_nop 1")
        A("v_cndmask_b32 v16, v16, v17, vcc")
        A("v_lshlrev_b32 v8, 2, v8")
        A(f"s_mov_b32 {s(t0)}, {MODF}")
        skip = self.lab("ms")
        A(f"s_cmp_ge_u32 {s(S_WV)}, 2")
        A(f"s_cbranch_scc1 {skip}")
        A.cond_begin()
        A(f"buffer_store_dword v16, v8, {s(R_WS, 4)}, {s(t0)} offen sc1")
        A.cond_end()
        A.label(skip)
        A.wait_vm(0)
        A.barrier()
        A(f"s_add_u32 {s(S_NONCE)}, {s(S_NONCE)}, 1")
        A(f"s_lshl_b32 {s(t0)}, {s(sH)}, 7")
        A(f"s_add_u32 {s(t0)}, {s(t0)}, {FL + FM * 128}")
        self.flag_store(t0)
        self.stamp(3)
        self.stamp_flush()
        A("s_endpgm")

    def build(self):
        A = self.A
        self.prologue()
        if self.stamps:
            A("v_mov_b32 v255, 0")
        st = A.snapshot()
        self.stamp(0)
        self.phase_p()
        stages = [("p", None), ("a", self.phase_a), ("b", self.phase_b), ("c", self.phase_c), ("d", self.phase_d)]
        done = self.stop == "p"
        for name, fn in stages[1:]:
            if done:
                break
            fn()
            done = self.stop == name
        self.stamp_flush()
        A("s_endpgm")
        A.restore(st)
        self.helper()
        A.label("L_exit")
        A("s_endpgm")
        A.label("L_code_end")
        return A.text()


def f32bits(x):
    import struct
    return struct.unpack("<I", struct.pack("<f", x))[0]


HEADER = """; Fused adaLN + H3 long convolution + SiLU MLP, one persistent launch (generated by gen/gen.py).
; @launch grid=(256,1,1) block=(256,1,1) lds={lds}
.amdgcn_target "amdgcn-amd-amdhsa--gfx950"
.text
.globl {name}
.p2align 8
.type {name},@function
{name}:
"""

FOOTER = """.section .rodata,"a"
.p2align 6
.amdhsa_kernel {name}
  .amdhsa_next_free_vgpr 512
  .amdhsa_next_free_sgpr 102
  .amdhsa_accum_offset 256
  .amdhsa_group_segment_fixed_size 0
  .amdhsa_kernarg_size 112
  .amdhsa_user_sgpr_count 2
  .amdhsa_user_sgpr_kernarg_segment_ptr 1
  .amdhsa_system_sgpr_workgroup_id_x 1
  .amdhsa_float_denorm_mode_32 3
.end_amdhsa_kernel
"""


def main():
    ap = argparse.ArgumentParser()
    ap.add_argument("--stop", default=None)
    ap.add_argument("--stamps", action="store_true")
    ap.add_argument("-o", default="/dev/stdout")
    args = ap.parse_args()
    g = Gen(stop=args.stop, stamps=args.stamps)
    body = g.build()
    txt = HEADER.format(name=NAME, lds=LDS_END) + body + FOOTER.format(name=NAME)
    with open(args.o, "w") as f:
        f.write(txt)
    print(f"instructions: {g.A.n_ins}, auto nops: {g.A.n_nops}, lds {LDS_END}", file=sys.stderr)


if __name__ == "__main__":
    main()
```

```python
import re

TRANS = ("v_exp_f32", "v_log_f32", "v_rcp_f32", "v_rsq_f32", "v_sqrt_f32", "v_sin_f32", "v_cos_f32",
         "v_rcp_iflag_f32")


def v(i, n=1):
    return f"v{i}" if n == 1 else f"v[{i}:{i + n - 1}]"


def a(i, n=1):
    return f"a{i}" if n == 1 else f"a[{i}:{i + n - 1}]"


def s(i, n=1):
    return f"s{i}" if n == 1 else f"s[{i}:{i + n - 1}]"


_reg_re = re.compile(r"^(-?)(abs\()?([vas])(\d+|\[(\d+):(\d+)\])\)?$")


def regs_of(tok):
    tok = tok.strip()
    if tok == "vcc":
        return {("s", 106), ("s", 107)}
    if tok == "exec":
        return {("s", 126), ("s", 127)}
    if tok == "m0":
        return {("s", 124)}
    m = _reg_re.match(tok)
    if not m:
        return set()
    k = m.group(3)
    if m.group(5) is not None:
        return {(k, i) for i in range(int(m.group(5)), int(m.group(6)) + 1)}
    return {(k, int(m.group(4)))}


class Ins:
    __slots__ = ("text", "mn", "dst", "src", "kind", "passes", "srcC", "srcAB", "data", "ws", "dpp")

    def __init__(self, text):
        self.text = text
        t = text.split(";")[0].strip()
        parts = t.split(None, 1)
        self.mn = parts[0]
        rest = parts[1] if len(parts) > 1 else ""
        ops, depth, cur = [], 0, ""
        for ch in rest:
            if ch in "[(":
                depth += 1
            if ch in "])":
                depth -= 1
            if ch == "," and depth == 0:
                ops.append(cur.strip())
                cur = ""
            else:
                cur += ch
        if cur.strip():
            ops.append(cur.strip())
        mods = ""
        if ops:
            last = ops[-1].split(None, 1)
            ops[-1] = last[0]
            if len(last) > 1:
                mods = last[1]
        mn = self.mn
        R = [regs_of(o) for o in ops]
        allr = lambda lst: set().union(*lst) if lst else set()
        self.dst, self.src = set(), set()
        self.passes = 0
        self.srcC, self.srcAB, self.data = set(), set(), set()
        self.ws = 1
        self.dpp = ("quad_perm" in mods or "row_" in mods or "wave_" in mods)
        if mn.startswith("v_mfma"):
            self.kind = "mfma"
            self.dst = R[0]
            self.srcAB = R[1] | R[2]
            self.srcC = R[3] if len(R) > 3 else set()
            self.src = self.srcAB | self.srcC
            self.passes = 8 if "32x32" in mn else 4
        elif mn.startswith("buffer_load") or mn.startswith("global_load"):
            self.kind = "vload"
            if " lds" in " " + mods or mn.startswith("global_load_lds"):
                self.src = allr(R) | {("s", 124)}
            else:
                self.dst = R[0]
                self.src = allr(R[1:])
        elif mn.startswith("buffer_store") or mn.startswith("global_store"):
            self.kind = "vstore"
            self.src = allr(R)
            self.data = R[0] if mn.startswith("buffer_store") else R[1]
            if not ("x3" in mn or "x4" in mn):
                self.data = set()
        elif mn.startswith("buffer_atomic") or mn.startswith("global_atomic"):
            self.kind = "vstore"
            self.src = allr(R)
        elif mn.startswith("ds_read") or mn.startswith("ds_bpermute") or mn.startswith("ds_swizzle"):
            self.kind = "dsread"
            self.dst = R[0]
            self.src = allr(R[1:])
        elif mn.startswith("ds_write"):
            self.kind = "dswrite"
            self.src = allr(R)
        elif mn.startswith("s_load") or mn.startswith("s_memrealtime") or mn.startswith("s_memtime"):
            self.kind = "smem"
            self.dst = R[0]
            self.src = allr(R[1:])
        elif mn.startswith("v_"):
            self.kind = "valu"
            if mn.startswith("v_cmp"):
                self.dst = R[0]
                self.src = allr(R[1:])
            elif mn.startswith("v_permlane") and "swap" in mn:
                self.dst = R[0] | R[1]
                self.src = R[0] | R[1]
            elif mn.startswith("v_add_co") or mn.startswith("v_addc_co") or mn.startswith("v_sub_co"):
                self.dst = R[0] | R[1]
                self.src = allr(R[2:])
            else:
                self.dst = R[0]
                self.src = allr(R[1:])
                if mn.startswith(("v_fmac", "v_dot2c", "v_pk_fmac", "v_writelane")):
                    self.src |= R[0]
                if mn.startswith("v_cndmask") and len(ops) == 3:
                    self.src |= regs_of("vcc")
                if self.dpp:
                    self.src |= R[0]
        elif mn == "s_nop":
            self.kind = "nop"
            self.ws = int(ops[0], 0) + 1
        elif mn.startswith("s_"):
            self.kind = "salu"
            nodst = ("s_cmp", "s_waitcnt", "s_barrier", "s_branch", "s_cbranch", "s_endpgm", "s_setprio",
                     "s_sleep", "s_bitcmp", "s_setpc")
            if mn.startswith(nodst):
                self.src = allr(R)
            else:
                self.dst = R[0] if R else set()
                self.src = allr(R[1:])
                if mn.startswith(("s_addk", "s_mulk")):
                    self.src |= R[0]
                if "saveexec" in mn:
                    self.dst |= regs_of("exec")
                    self.src |= regs_of("exec")
        else:
            raise ValueError("unknown instruction: " + text)


class Asm:
    def __init__(self):
        self.out = []
        self.hist = []
        self.vq = []
        self.lq = []
        self.cond_depth = 0
        self.n_nops = 0
        self.n_ins = 0
        self.vm_count = 0
        self.nbytes_est = 0

    def raw(self, text):
        self.out.append(text)

    def comment(self, text):
        self.out.append("    ; " + text)

    def label(self, name):
        self.out.append(name + ":")

    def _emit(self, ins):
        self.out.append("    " + ins.text)
        self.hist.append(ins)
        if len(self.hist) > 40:
            self.hist = self.hist[-40:]
        self.n_ins += 1

    def _wait_needed(self, q, regs):
        for i in range(len(q) - 1, -1, -1):
            if q[i]["dst"] & regs:
                return i
        return -1

    def _do_wait(self, vi, li):
        parts = []
        if vi >= 0:
            n = sum(1 for o in self.vq[vi + 1:] if not o["maybe"])
            self.vq = self.vq[vi + 1:]
            if n <= 62:
                parts.append(f"vmcnt({n})")
        if li >= 0:
            if any(o["smem"] for o in self.lq):
                self.lq = []
                parts.append("lgkmcnt(0)")
            else:
                n = sum(1 for o in self.lq[li + 1:] if not o["maybe"])
                self.lq = self.lq[li + 1:]
                if n <= 14:
                    parts.append(f"lgkmcnt({n})")
        if parts:
            self._emit(Ins("s_waitcnt " + " ".join(parts)))

    def wait_vm(self, n=0):
        self._emit(Ins(f"s_waitcnt vmcnt({n})"))
        if n == 0:
            self.vq = []
        else:
            cnt, cut = 0, 0
            for i in range(len(self.vq) - 1, -1, -1):
                if not self.vq[i]["maybe"]:
                    cnt += 1
                    if cnt == n:
                        cut = i
                        break
            else:
                cut = 0
            self.vq = self.vq[cut:]

    def wait_lgkm0(self):
        self._emit(Ins("s_waitcnt lgkmcnt(0)"))
        self.lq = []

    def wait_all(self):
        self._emit(Ins("s_waitcnt vmcnt(0) lgkmcnt(0)"))
        self.vq, self.lq = [], []

    def barrier(self):
        if self.lq:
            self.wait_lgkm0()
        self._emit(Ins("s_barrier"))

    def _hazard(self, ins):
        need = 0
        dist = 0
        for p in reversed(self.hist):
            req = 0
            if p.kind == "valu":
                vd = {r for r in p.dst if r[0] in "va"}
                sd = {r for r in p.dst if r[0] == "s"}
                if ins.kind == "mfma" and vd & ins.src:
                    req = max(req, 2)
                if ins.kind in ("vload", "vstore") and sd & ins.src:
                    req = max(req, 5)
                if ins.kind == "valu" and sd & ins.src:
                    req = max(req, 2)
                    if ins.mn.startswith(("v_readlane", "v_writelane")):
                        req = max(req, 4)
                if ins.kind == "salu" and sd & ins.src:
                    req = max(req, 1)
                if ins.mn.startswith(("v_readfirstlane", "v_readlane")) and vd & ins.src:
                    req = max(req, 1)
                if p.mn.rsplit("_e", 1)[0] in TRANS or p.mn in TRANS:
                    if ins.kind == "valu" and vd & ins.src:
                        req = max(req, 1)
                if ins.kind == "valu" and (ins.dpp or ins.mn.startswith("v_permlane")) and vd & ins.src:
                    req = max(req, 2)
            elif p.kind == "mfma":
                long = 12 if p.passes == 8 else 8
                if ins.kind == "mfma":
                    if p.dst & ins.srcAB:
                        req = max(req, long)
                    if p.dst & ins.srcC and p.dst != ins.srcC:
                        req = max(req, long - 2)
                    if (p.dst & ins.dst) and p.dst != ins.dst:
                        req = max(req, long)
                else:
                    if p.dst & (ins.src | ins.dst):
                        req = max(req, long)
                    if ins.kind == "valu" and p.srcC & ins.dst:
                        req = max(req, 7 if p.passes == 8 else 3)
            elif p.kind == "vstore":
                if p.data & ins.dst:
                    req = max(req, 2)
            elif p.kind == "salu":
                if ("s", 124) in p.dst and ins.kind == "vload" and ("s", 124) in ins.src:
                    req = max(req, 1)
            if req > dist:
                need = max(need, req - dist)
            dist += p.ws
            if dist >= 20:
                break
        return need

    def __call__(self, text):
        ins = Ins(text)
        regs = ins.src | ins.dst
        vi = self._wait_needed(self.vq, regs)
        li = self._wait_needed(self.lq, regs)
        if vi >= 0 or li >= 0:
            self._do_wait(vi, li)
        need = self._hazard(ins)
        while need > 0:
            k = min(need, 16)
            self._emit(Ins(f"s_nop {k - 1}"))
            self.n_nops += 1
            need -= k
        self._emit(ins)
        maybe = self.cond_depth > 0
        if ins.kind in ("vload", "vstore") and not maybe:
            self.vm_count += 1
        if ins.kind == "vload":
            self.vq.append(dict(dst=set(ins.dst), maybe=maybe))
        elif ins.kind == "vstore":
            self.vq.append(dict(dst=set(), maybe=maybe))
        elif ins.kind == "dsread":
            self.lq.append(dict(dst=set(ins.dst), maybe=maybe, smem=False))
        elif ins.kind == "dswrite":
            self.lq.append(dict(dst=set(), maybe=maybe, smem=False))
        elif ins.kind == "smem":
            self.lq.append(dict(dst=set(ins.dst), maybe=maybe, smem=True))

    def dma(self, text, tag):
        self(text)
        self.vq[-1]["dst"] = {("t", tag)}

    def need(self, tag):
        vi = self._wait_needed(self.vq, {("t", tag)})
        if vi >= 0:
            self._do_wait(vi, -1)

    def await_regs(self, *toks):
        regs = set()
        for tk in toks:
            regs |= regs_of(tk)
        vi = self._wait_needed(self.vq, regs)
        li = self._wait_needed(self.lq, regs)
        if vi >= 0 or li >= 0:
            self._do_wait(vi, li)

    def nop(self, n):
        while n > 0:
            k = min(n, 16)
            self._emit(Ins(f"s_nop {k - 1}"))
            n -= k

    def cond_begin(self):
        self.cond_depth += 1

    def cond_end(self):
        self.cond_depth -= 1

    def snapshot(self):
        import copy
        return (list(self.hist), copy.deepcopy(self.vq), copy.deepcopy(self.lq))

    def restore(self, st):
        import copy
        self.hist = list(st[0])
        self.vq = copy.deepcopy(st[1])
        self.lq = copy.deepcopy(st[2])

    def text(self):
        return "\n".join(self.out) + "\n"
```

```python
import sys
import argparse
from asmdsl import Asm, v, a, s

NAME = "adaLN_cond__ssm_conv_h3__dense_activation_silu__prompt_kernel"

FL = 4096
F1, FQ, FM, F2, F3 = 0, 256, 512, 544, 800
STAMP = 0x30000
T2D = 224 * 8192
KVP = 0x40000
QP = KVP + T2D
STR = QP + T2D
STM = STR + 8192
X1P = STR + 16384
W1F = X1P + T2D
W2F = W1F + 1605632
MODF = W2F + 1605632
HF = MODF + 16384
WS_END = HF + 32 * 112 * 2048
assert WS_END < (1 << 28)

L_H2 = 0
L_TPK = 0
L_TPQ = 8704
L_TPN = 17408
L_WB = 26112
L_UR = 43520
assert L_UR + 9216 <= 57344
L_KC = 57344
CS = 4160
L_RED = L_KC + 8 * CS
L_RED2 = 0
L_XD = 69632
L_PAR = L_RED + 40960
L_STAT = L_PAR + 4096
L_GB = L_STAT + 2048
LDS_END = L_GB + 256
assert L_XD + 57344 <= L_PAR
assert LDS_END <= 163840
L_SC = 0
L_MR = 2048

S_RB, S_J, S_WV, S_CP = 4, 5, 6, 7
P_Q, P_K, P_V, P_SH, P_SK, P_D, P_BX, P_W1, P_W2, P_C, P_WM, P_OUT, P_DBG, P_WS = range(8, 36, 2)
R_WS, R_A, R_B, R_C, R_D = 36, 40, 44, 48, 52
S_NONCE = 56
S_T = 57
S_M = 80
S_MASKHI = 80
S_PERM_LO = 81
S_PERM_HI = 82
S_OFF = 84
S_SPIN = 96
S_PC = 100
S_W1B, S_W2B = 78, 79
S_XCC, S_LOCAL = 83, 95
V_W2O = 84
V_L16 = 3
S_ST0 = 98

SRD3 = 0x00020000
LOG2E = 1.4426950408889634
SPIN_MAX = 1 << 17


class Gen:
    def __init__(self, stop=None, stamps=False, opts=None):
        self.o = dict(cring=3, repf=0, burst_before_flag=0, n_burst_t2=24, n_bg_c=40, bg_b=1, nobg=0)
        self.o.update(opts or {})
        self.A = Asm()
        self.stop = stop
        self.stamps = stamps
        self.nlab = 0
        self.nstamp = 0
        self.n_burst_t2 = self.o["n_burst_t2"]
        self.n_bg_c = self.o["n_bg_c"]
        self.w2_order = list(range(56))

    def lab(self, base):
        self.nlab += 1
        return f"L_{base}_{self.nlab}"

    def srd(self, r, ptr, nbytes, add=None):
        A = self.A
        if add is None:
            A(f"s_mov_b32 {s(r)}, {s(ptr)}")
            A(f"s_mov_b32 {s(r + 1)}, {s(ptr + 1)}")
        else:
            A(f"s_add_u32 {s(r)}, {s(ptr)}, {add}")
            A(f"s_addc_u32 {s(r + 1)}, {s(ptr + 1)}, 0")
        A(f"s_mov_b32 {s(r + 2)}, {nbytes}")
        A(f"s_mov_b32 {s(r + 3)}, 0x{SRD3:08x}")

    def stamp(self, idx):
        if not self.stamps:
            return
        A = self.A
        A(f"s_memrealtime {s(S_ST0, 2)}")
        A.wait_lgkm0()
        A(f"v_writelane_b32 v255, {s(S_ST0)}, {idx}")
        if self.o.get("cyc"):
            A(f"s_memtime {s(S_ST0, 2)}")
            A.wait_lgkm0()
            A(f"v_writelane_b32 v255, {s(S_ST0)}, {32 + idx}")

    def stamp_flush(self):
        if not self.stamps:
            return
        A = self.A
        skip = self.lab("sf")
        A(f"s_cmp_lg_u32 {s(S_WV)}, 0")
        A(f"s_cbranch_scc1 {skip}")
        A.cond_begin()
        A("v_lshlrev_b32 v254, 2, v1")
        A(f"s_lshl_b32 {s(S_SPIN + 1)}, s2, 8")
        A(f"s_add_u32 {s(S_SPIN + 1)}, {s(S_SPIN + 1)}, {STAMP}")
        A(f"buffer_store_dword v255, v254, {s(R_WS, 4)}, {s(S_SPIN + 1)} offen")
        A.cond_end()
        A.label(skip)

    def flag_store(self, soff_sgpr, vtmp=252, with_xcc=False, sc=" sc1"):
        A = self.A
        skip = self.lab("fl")
        A(f"s_cmp_lg_u32 {s(S_WV)}, 0")
        A(f"s_cbranch_scc1 {skip}")
        A.cond_begin()
        A(f"v_mov_b32 {v(vtmp)}, {s(S_NONCE)}")
        if with_xcc:
            A(f"v_mov_b32 {v(vtmp + 1)}, {s(S_XCC)}")
        A(f"v_mov_b32 {v(vtmp + 2)}, {s(soff_sgpr)}")
        A("s_mov_b64 exec, 1")
        if with_xcc:
            A(f"buffer_store_dwordx2 {v(vtmp, 2)}, {v(vtmp + 2)}, {s(R_WS, 4)}, 0 offen{sc}")
        else:
            A(f"buffer_store_dword {v(vtmp)}, {v(vtmp + 2)}, {s(R_WS, 4)}, 0 offen{sc}")
        A("s_mov_b64 exec, -1")
        A.cond_end()
        A.label(skip)

    def poll(self, vaddr, vtmp):
        A = self.A
        loop, done = self.lab("poll"), self.lab("polld")
        A(f"s_mov_b32 {s(S_SPIN)}, 0")
        A.label(loop)
        A(f"buffer_load_dword {v(vtmp)}, {v(vaddr)}, {s(R_WS, 4)}, 0 offen sc1")
        A.wait_vm(0)
        A(f"v_cmp_ne_u32 vcc, {s(S_NONCE)}, {v(vtmp)}")
        A(f"s_add_u32 {s(S_SPIN)}, {s(S_SPIN)}, 1")
        A("s_nop 3")
        A("s_cmp_eq_u64 vcc, 0")
        A(f"s_cbranch_scc1 {done}")
        A(f"s_cmp_lt_u32 {s(S_SPIN)}, {SPIN_MAX}")
        A(f"s_cbranch_scc1 {loop}")
        A.label(done)

    def code_prefetch(self):
        A = self.A
        A("v_lshlrev_b32 v253, 7, v0")
        A("v_min_u32 v253, L_code_end-L_pc-4, v253")
        A(f"global_load_dword v254, v253, {s(S_PC, 2)}")

    def finish(self):
        self.A("s_endpgm")

    def prologue(self):
        A = self.A
        A("s_cmp_ge_u32 s2, 256")
        A("s_cbranch_scc1 L_exit")
        A(f"s_load_dwordx16 {s(8, 16)}, s[0:1], 0")
        A(f"s_load_dwordx8 {s(24, 8)}, s[0:1], 64")
        A(f"s_load_dwordx4 {s(32, 4)}, s[0:1], 96")
        A(f"s_getpc_b64 {s(S_PC, 2)}")
        A.label("L_pc")
        A("v_lshlrev_b32 v253, 7, v0")
        A("v_min_u32 v253, L_code_end-L_pc-4, v253")
        A(f"global_load_dword v254, v253, {s(S_PC, 2)}")
        A("v_lshrrev_b32 v2, 6, v0")
        A("v_and_b32 v1, 63, v0")
        A(f"s_and_b32 {s(S_T)}, s2, 7")
        A(f"s_lshr_b32 {s(S_T + 1)}, s2, 3")
        A(f"v_readfirstlane_b32 {s(S_WV)}, v2")
        A(f"s_getreg_b32 {s(S_XCC)}, hwreg(HW_REG_XCC_ID, 0, 4)")
        A(f"s_mov_b32 {s(S_MASKHI)}, 0xffff0000")
        A(f"s_mov_b32 {s(S_PERM_LO)}, 0x05040100")
        A(f"s_mov_b32 {s(S_PERM_HI)}, 0x07060302")
        A(f"s_mul_i32 {s(S_T + 2)}, {s(S_T + 1)}, 37")
        A(f"s_lshr_b32 {s(S_T + 2)}, {s(S_T + 2)}, 8")
        A(f"s_mul_i32 {s(S_T + 3)}, {s(S_T + 2)}, 7")
        A(f"s_sub_u32 {s(S_J)}, {s(S_T + 1)}, {s(S_T + 3)}")
        A(f"s_lshl_b32 {s(S_RB)}, {s(S_T)}, 2")
        A(f"s_add_u32 {s(S_RB)}, {s(S_RB)}, {s(S_T + 2)}")
        A(f"s_lshl_b32 {s(S_CP)}, {s(S_J)}, 5")
        A(f"s_add_u32 {s(S_CP)}, {s(S_CP)}, {s(S_RB)}")
        A.wait_lgkm0()
        self.srd(R_WS, P_WS, WS_END)
        A(f"s_load_dword {s(S_NONCE)}, {s(P_WS, 2)}, 0")
        A(f"s_cmp_ge_u32 {s(S_T + 1)}, 28")
        A("s_cbranch_scc1 L_helper")

    def phase_p(self):
        A = self.A
        T = S_T
        NB = 2048 * 896
        t0, t1, t2 = T + 12, T + 13, T + 14
        vC, vRG, vL16, vOffO, vKa, vSh, vSa, vSb, vRow, vWa, vx = 2, 3, 4, 5, 6, 10, 11, 12, 13, 14, 15
        vK, vV, vSH, vQO, vQ, vW, vKD = 16, 36, 44, 60, 68, 84, 100
        A(f"v_and_b32 {v(vC)}, 7, v1")
        A(f"v_lshrrev_b32 {v(vRG)}, 3, v1")
        A(f"s_lshl_b32 {s(T)}, {s(S_RB)}, 6")
        A(f"s_lshl_b32 {s(T + 1)}, {s(S_WV)}, 4")
        A(f"s_add_u32 {s(T + 1)}, {s(T)}, {s(T + 1)}")
        A(f"v_lshl_add_u32 {v(vOffO)}, {v(vRG)}, 1, {s(T + 1)}")
        A(f"v_mul_u32_u24 {v(vOffO)}, 896, {v(vOffO)}")
        A(f"v_lshl_add_u32 {v(vOffO)}, {v(vC)}, 4, {v(vOffO)}")
        A(f"s_lshl_b32 {s(T + 2)}, {s(S_J)}, 7")
        A(f"v_add_u32 {v(vOffO)}, {s(T + 2)}, {v(vOffO)}")
        kad = {}
        for n_, i in enumerate((0, 1, 2, 4)):
            d = (i - 3) * 896
            kad[i] = vKa + n_
            if d < 0:
                A(f"v_subrev_u32 {v(kad[i])}, {-d}, {v(vOffO)}")
            else:
                A(f"v_add_u32 {v(kad[i])}, {d}, {v(vOffO)}")
        kad[3] = vOffO
        self.srd(R_A, P_K, NB)
        self.srd(R_B, P_V, NB)
        for i in range(5):
            A(f"buffer_load_dwordx4 {v(vK + 4 * i, 4)}, {v(kad[i])}, {s(R_A, 4)}, 0 offen")
        for i in range(2):
            A(f"buffer_load_dwordx4 {v(vV + 4 * i, 4)}, {v(vOffO)}, {s(R_B, 4)}, 0 offen offset:{896 * i}")
        self.srd(R_C, P_SH, 448 * 8)
        A(f"s_lshl_b32 {s(T + 3)}, {s(S_J)}, 9")
        A(f"v_lshl_add_u32 {v(vSh)}, {v(vC)}, 6, {s(T + 3)}")
        for i in range(4):
            A(f"buffer_load_dwordx4 {v(vSH + 4 * i, 4)}, {v(vSh)}, {s(R_C, 4)}, 0 offen offset:{16 * i}")
        self.srd(R_A, P_Q, NB)
        for r in range(2):
            A(f"buffer_load_dwordx4 {v(vQO + 4 * r, 4)}, {v(vOffO)}, {s(R_A, 4)}, 0 offen offset:{896 * r}")
        A(f"s_lshl_b32 {s(t1)}, {s(S_J)}, 3")
        A(f"s_add_u32 {s(t0)}, {s(T)}, {s(t1)}")
        A(f"s_lshl_b32 {s(t1)}, {s(S_WV)}, 2")
        A(f"s_add_u32 {s(t0)}, {s(t0)}, {s(t1)}")
        A(f"v_lshrrev_b32 {v(vRow)}, 4, v1")
        A(f"v_add_u32 {v(vRow)}, {s(t0)}, {v(vRow)}")
        A(f"v_mul_u32_u24 {v(vSa)}, 896, {v(vRow)}")
        A(f"v_and_b32 {v(vSb)}, 15, v1")
        A(f"v_lshl_add_u32 {v(vSa)}, {v(vSb)}, 4, {v(vSa)}")
        A(f"v_cmp_gt_u32 vcc, 8, {v(vSb)}")
        A(f"v_add_u32 {v(vSb)}, 768, {v(vSa)}")
        A(f"v_mov_b32 {v(vx)}, -1")
        A(f"v_cndmask_b32 {v(vSb)}, {v(vx)}, {v(vSb)}, vcc")
        for i in range(3):
            A(f"buffer_load_dwordx4 {v(vQ + 4 * i, 4)}, {v(vSa)}, {s(R_A, 4)}, 0 offen offset:{256 * i}")
        A(f"buffer_load_dwordx4 {v(vQ + 12, 4)}, {v(vSb)}, {s(R_A, 4)}, 0 offen")
        self.stamp(1)

        sWB, sSrc, sStride, sA, sR1, sD0, sDS = T + 4, T + 6, T + 7, T + 8, T + 9, T + 10, T + 11
        A(f"s_mul_i32 {s(sWB)}, {s(S_RB)}, 7")
        A(f"s_add_u32 {s(sWB)}, {s(sWB)}, {s(S_J)}")
        A(f"s_lshr_b32 {s(t0)}, {s(sWB)}, 2")
        A(f"s_and_b32 {s(t1)}, {s(sWB)}, 3")
        A(f"s_mul_i32 {s(sSrc)}, {s(t0)}, {16 * 3584}")
        A(f"s_mul_i32 {s(t2)}, {s(t1)}, 896")
        A(f"s_add_u32 {s(sSrc)}, {s(sSrc)}, {s(t2)}")
        A(f"s_mul_i32 {s(t2)}, {s(t1)}, 14")
        A(f"s_add_u32 {s(t2)}, {s(t2)}, {s(S_WV)}")
        A(f"s_mul_i32 {s(t2)}, {s(t2)}, 28")
        A(f"s_add_u32 {s(sD0)}, {s(t2)}, {s(t0)}")
        A(f"s_lshl_b32 {s(sD0)}, {s(sD0)}, 10")
        A(f"s_add_u32 {s(sD0)}, {s(sD0)}, {W1F}")
        u0, u1, u2, uSrc, uD0 = T + 16, T + 17, T + 18, T + 19, T + 20
        A(f"s_sub_u32 {s(u0)}, {s(sWB)}, 112")
        A(f"s_mul_i32 {s(uSrc)}, {s(u0)}, {16 * 896}")
        A(f"s_mul_i32 {s(u1)}, {s(u0)}, 147")
        A(f"s_lshr_b32 {s(u1)}, {s(u1)}, 12")
        A(f"s_mul_i32 {s(u2)}, {s(u1)}, 28")
        A(f"s_sub_u32 {s(u2)}, {s(u0)}, {s(u2)}")
        A(f"s_mul_i32 {s(uD0)}, {s(u1)}, 56")
        A(f"s_lshl_b32 {s(u2)}, {s(u2)}, 1")
        A(f"s_add_u32 {s(uD0)}, {s(uD0)}, {s(u2)}")
        A(f"s_lshr_b32 {s(u1)}, {s(S_WV)}, 1")
        A(f"s_mul_i32 {s(u1)}, {s(u1)}, 224")
        A(f"s_add_u32 {s(uD0)}, {s(uD0)}, {s(u1)}")
        A(f"s_and_b32 {s(u1)}, {s(S_WV)}, 1")
        A(f"s_add_u32 {s(uD0)}, {s(uD0)}, {s(u1)}")
        A(f"s_lshl_b32 {s(uD0)}, {s(uD0)}, 10")
        A(f"s_add_u32 {s(uD0)}, {s(uD0)}, {W2F}")
        A(f"s_cmp_ge_u32 {s(sWB)}, 112")
        A(f"s_cselect_b32 {s(sSrc)}, {s(uSrc)}, {s(sSrc)}")
        A(f"s_cselect_b32 {s(sD0)}, {s(uD0)}, {s(sD0)}")
        A(f"s_mov_b32 {s(sStride)}, 3584")
        A(f"s_cselect_b32 {s(sStride)}, 896, {s(sStride)}")
        A(f"s_cselect_b32 {s(sA)}, 4, 8")
        A(f"s_mov_b32 {s(sR1)}, {4 * 1088}")
        A(f"s_cselect_b32 {s(sR1)}, {8 * 1088}, {s(sR1)}")
        A(f"s_mov_b32 {s(sDS)}, {112 * 1024}")
        A(f"s_cselect_b32 {s(sDS)}, {448 * 1024}, {s(sDS)}")
        A(f"s_cselect_b32 {s(R_D)}, {s(P_W2)}, {s(P_W1)}")
        A(f"s_cselect_b32 {s(R_D + 1)}, {s(P_W2 + 1)}, {s(P_W1 + 1)}")
        A(f"s_mov_b32 {s(R_D + 2)}, 1605632")
        A(f"s_mov_b32 {s(R_D + 3)}, 0x{SRD3:08x}")
        A(f"s_lshl_b32 {s(t0)}, {s(S_WV)}, 2")
        A(f"s_mul_i32 {s(t0)}, {s(t0)}, {s(sStride)}")
        A(f"s_add_u32 {s(sSrc)}, {s(sSrc)}, {s(t0)}")
        A(f"v_lshlrev_b32 {v(vL16)}, 4, v1")
        A(f"v_add_u32 {v(vWa)}, {s(sSrc)}, {v(vL16)}")
        A(f"s_lshl_b32 {s(t0)}, {s(S_CP)}, 13")
        self.srd(R_B, P_SK, 4096, add=s(t0))
        A(f"s_add_u32 {s(t0)}, {s(t0)}, 4096")
        self.srd(R_C, P_SK, 4096, add=s(t0))
        vKA, vKB, vKA2, vKB2 = 132, 133, 134, 135
        A(f"v_lshlrev_b32 {v(vKA)}, 4, v0")
        A(f"v_subrev_u32 {v(vKB)}, 16, {v(vKA)}")
        A(f"v_subrev_u32 {v(vKA)}, 32, {v(vKA)}")
        A(f"v_and_b32 {v(vKA2)}, 1, v1")
        A(f"v_lshlrev_b32 {v(vKA2)}, 4, {v(vKA2)}")
        A(f"v_add_u32 {v(vKB2)}, 4080, {v(vKA2)}")
        vTPW, vWw, vTPR, vStO, vTR0, vTR1, vKW = 136, 137, 138, 139, 140, 141, 142
        A(f"v_add_u32 {v(vKW + 1)}, {4096 + L_KC}, {v(vKA2)}")
        A(f"v_add_u32 {v(vKA2)}, 4064, {v(vKA2)}")
        A(f"v_lshlrev_b32 {v(vKW)}, 4, v0")
        A(f"v_add_u32 {v(vKW)}, {L_KC}, {v(vKW)}")
        A(f"v_mul_u32_u24 {v(vTPW)}, 1088, {v(vC)}")
        A(f"v_lshl_add_u32 {v(vTPW)}, {v(vRG)}, 3, {v(vTPW)}")
        A(f"s_lshl_b32 {s(t0)}, {s(S_WV)}, 6")
        A(f"v_add_u32 {v(vTPW)}, {s(t0)}, {v(vTPW)}")
        A(f"s_mul_i32 {s(t1)}, {s(S_WV)}, {4 * 1088}")
        A(f"v_add_u32 {v(vWw)}, {s(t1)}, {v(vL16)}")
        A(f"v_lshrrev_b32 {v(vStO)}, 4, v0")
        A(f"v_mul_u32_u24 {v(vTPR)}, 272, {v(vStO)}")
        A(f"v_and_b32 {v(vx)}, 15, v0")
        A(f"v_lshl_add_u32 {v(vTPR)}, {v(vx)}, 4, {v(vTPR)}")
        A(f"v_lshlrev_b32 {v(vStO)}, 13, {v(vStO)}")
        A(f"v_lshl_add_u32 {v(vStO)}, {v(vx)}, 4, {v(vStO)}")
        A(f"v_lshrrev_b32 {v(vTR0)}, 5, v1")
        A(f"v_mul_lo_u32 {v(vTR0)}, {v(vTR0)}, {s(sA)}")
        A(f"v_bfe_u32 {v(vx)}, v1, 2, 2")
        A(f"v_add_u32 {v(vTR0)}, {v(vTR0)}, {v(vx)}")
        A(f"v_mul_u32_u24 {v(vTR0)}, 1088, {v(vTR0)}")
        A(f"v_bfe_u32 {v(vx)}, v1, 4, 1")
        A(f"v_lshl_add_u32 {v(vTR0)}, {v(vx)}, 5, {v(vTR0)}")
        A(f"v_and_b32 {v(vx)}, 3, v1")
        A(f"v_lshl_add_u32 {v(vTR0)}, {v(vx)}, 3, {v(vTR0)}")
        A(f"v_add_u32 {v(vTR0)}, {s(t0)}, {v(vTR0)}")
        A(f"v_add_u32 {v(vTR1)}, {s(sR1)}, {v(vTR0)}")
        sTile = S_OFF
        A(f"s_lshl_b32 {s(sTile)}, {s(S_J)}, 18")
        A(f"s_lshl_b32 {s(t0)}, {s(S_RB)}, 8")
        A(f"s_add_u32 {s(sTile)}, {s(sTile)}, {s(t0)}")
        A(f"v_lshlrev_b32 {v(vRow)}, 2, {v(vRow)}")
        A("v_mov_b32 v240, 0")
        A("v_mov_b32 v241, 0")
        A("v_lshlrev_b32 v242, 3, v1")
        for e in range(2):
            A(f"ds_write_b64 v242, v[240:241] offset:{L_UR + 4608 * e + 4096}")

        TT, WP, AC, vO = 144, 184, 216, 232
        A.await_regs(v(vSH, 16))
        for p in range(4):
            for e in range(2):
                d0 = vSH + 2 * (2 * p + e)
                w = WP + 8 * p
                A(f"v_lshlrev_b32 {v(w + 0 + e)}, 16, {v(d0)}")
                A(f"v_and_b32 {v(w + 2 + e)}, {s(S_MASKHI)}, {v(d0)}")
                A(f"v_lshlrev_b32 {v(w + 4 + e)}, 16, {v(d0 + 1)}")
                A(f"v_and_b32 {v(w + 6 + e)}, {s(S_MASKHI)}, {v(d0 + 1)}")
        self.stamp(21)
        for i in range(5):
            for p in range(4):
                src = vK + 4 * i + p
                A(f"v_lshlrev_b32 {v(TT + 10 * p + 2 * i)}, 16, {v(src)}")
                A(f"v_and_b32 {v(TT + 10 * p + 2 * i + 1)}, {s(S_MASKHI)}, {v(src)}")
        for tap in range(4):
            for p in range(4):
                for row in range(2):
                    acc = AC + 4 * p + 2 * row
                    x = v(TT + 10 * p + 2 * (3 + row - tap), 2)
                    w = v(WP + 8 * p + 2 * tap, 2)
                    if tap == 0:
                        A(f"v_pk_mul_f32 {v(acc, 2)}, {x}, {w}")
                    else:
                        A(f"v_pk_fma_f32 {v(acc, 2)}, {x}, {w}, {v(acc, 2)}")
        for row in range(2):
            for p in range(4):
                src = vV + 4 * row + p
                A(f"v_lshlrev_b32 {v(TT + 10 * p + 2 * row)}, 16, {v(src)}")
                A(f"v_and_b32 {v(TT + 10 * p + 2 * row + 1)}, {s(S_MASKHI)}, {v(src)}")
        for p in range(4):
            for row in range(2):
                acc = AC + 4 * p + 2 * row
                A(f"v_pk_mul_f32 {v(acc, 2)}, {v(acc, 2)}, {v(TT + 10 * p + 2 * row, 2)}")
        for p in range(4):
            for row in range(2):
                acc = AC + 4 * p + 2 * row
                A(f"v_cvt_pk_bf16_f32 {v(vO + 2 * p + row)}, {v(acc)}, {v(acc + 1)}")
        for p in range(4):
            A(f"ds_write_b64 {v(vTPW)}, {v(vO + 2 * p, 2)} offset:{L_TPK + 272 * p}")
        self.stamp(22)
        A(f"v_add_u32 {v(vx)}, {L_TPQ}, {v(vTPW)}")
        A.await_regs(v(vQO, 8))
        for p in range(4):
            A(f"ds_write2_b32 {v(vx)}, {v(vQO + p)}, {v(vQO + 4 + p)} offset0:{68 * p} offset1:{68 * p + 1}")
        vS, vU = 240, 144
        A.await_regs(v(vQ, 16))
        for i in range(16):
            A(f"v_lshlrev_b32 {v(vU + 2 * i)}, 16, {v(vQ + i)}")
            A(f"v_and_b32 {v(vU + 2 * i + 1)}, {s(S_MASKHI)}, {v(vQ + i)}")
        S1, S2 = (240, 242), (244, 246)
        for i in range(16):
            u = v(vU + 2 * i, 2)
            if i < 2:
                A(f"v_pk_mul_f32 {v(S2[i], 2)}, {u}, {u}")
            else:
                A(f"v_pk_fma_f32 {v(S2[i & 1], 2)}, {u}, {u}, {v(S2[i & 1], 2)}")
            if i in (2, 3):
                A(f"v_pk_add_f32 {v(S1[i & 1], 2)}, {v(vU + 2 * (i - 2), 2)}, {u}")
            elif i > 3:
                A(f"v_pk_add_f32 {v(S1[i & 1], 2)}, {v(S1[i & 1], 2)}, {u}")
        A(f"v_pk_add_f32 {v(240, 2)}, {v(240, 2)}, {v(242, 2)}")
        A(f"v_pk_add_f32 {v(244, 2)}, {v(244, 2)}, {v(246, 2)}")
        m, q2 = 240, 244
        A(f"v_add_f32 {v(m)}, {v(m)}, {v(m + 1)}")
        A(f"v_add_f32 {v(q2)}, {v(q2)}, {v(q2 + 1)}")
        for mod in ("quad_perm:[1,0,3,2]", "quad_perm:[2,3,0,1]", "row_half_mirror", "row_mirror"):
            for c_ in (m, q2):
                A(f"v_add_f32_dpp {v(c_)}, {v(c_)}, {v(c_)} {mod} row_mask:0xf bank_mask:0xf")
        A(f"s_mov_b32 {s(t0)}, 0x{f32bits(1.0 / 448):08x}")
        A(f"s_mov_b32 {s(t1)}, 0x{f32bits(1e-5):08x}")
        A(f"v_mul_f32 {v(m)}, {s(t0)}, {v(m)}")
        A(f"v_mul_f32 {v(q2)}, {s(t0)}, {v(q2)}")
        A(f"v_fma_f32 {v(q2)}, -{v(m)}, {v(m)}, {v(q2)}")
        A(f"v_max_f32 {v(q2)}, 0, {v(q2)}")
        A(f"v_add_f32 {v(q2)}, {s(t1)}, {v(q2)}")
        A(f"v_rsq_f32 {v(q2)}, {v(q2)}")
        A.barrier()
        self.stamp(23)
        vRB = 16
        for i in range(2):
            A(f"ds_read_b128 {v(vRB + 4 * i, 4)}, {v(vTPR)} offset:{L_TPK + 4352 * i}")
        for i in range(2):
            A(f"ds_read_b128 {v(vRB + 8 + 4 * i, 4)}, {v(vTPR)} offset:{L_TPQ + 4352 * i}")
        A(f"v_mul_f32 {v(m)}, {v(m)}, {v(q2)}")
        A(f"s_add_u32 {s(t0)}, {s(sTile)}, {KVP}")
        A(f"s_add_u32 {s(t1)}, {s(sTile)}, {KVP + 131072}")
        A(f"s_add_u32 {s(t2)}, {s(sTile)}, {QP}")
        A(f"s_add_u32 {s(u0)}, {s(sTile)}, {QP + 131072}")
        A.await_regs(v(vRB, 8))
        A(f"buffer_store_dwordx4 {v(vRB, 4)}, {v(vStO)}, {s(R_WS, 4)}, {s(t0)} offen sc1")
        A(f"buffer_store_dwordx4 {v(vRB + 4, 4)}, {v(vStO)}, {s(R_WS, 4)}, {s(t1)} offen sc1")
        A.await_regs(v(vRB + 8, 8))
        A(f"buffer_store_dwordx4 {v(vRB + 8, 4)}, {v(vStO)}, {s(R_WS, 4)}, {s(t2)} offen sc1")
        A(f"buffer_store_dwordx4 {v(vRB + 12, 4)}, {v(vStO)}, {s(R_WS, 4)}, {s(u0)} offen sc1")
        A(f"s_mov_b32 {s(t0)}, {STR}")
        A(f"s_mov_b32 {s(t1)}, {STM}")
        A(f"s_mov_b32 exec_lo, 0x00010001")
        A(f"s_mov_b32 exec_hi, 0x00010001")
        A(f"buffer_store_dword {v(q2)}, {v(vRow)}, {s(R_WS, 4)}, {s(t0)} offen sc1")
        A(f"buffer_store_dword {v(m)}, {v(vRow)}, {s(R_WS, 4)}, {s(t1)} offen sc1")
        A("s_mov_b64 exec, -1")
        self.stamp(24)
        mark = A.vm_count
        for i in range(4):
            A(f"buffer_load_dwordx4 {v(vW + 4 * i, 4)}, {v(vWa)}, {s(R_D, 4)}, 0 offen")
            if i < 3:
                A(f"v_add_u32 {v(vWa)}, {s(sStride)}, {v(vWa)}")
        for e in range(2):
            R = R_B if e == 0 else R_C
            for ps in range(2):
                b = vKD + 8 * (2 * e + ps)
                A(f"buffer_load_dwordx4 {v(b, 4)}, {v(vKA if ps == 0 else vKA2)}, {s(R, 4)}, 0 offen")
                A(f"buffer_load_dwordx2 {v(b + 4, 2)}, {v(vKB if ps == 0 else vKB2)}, {s(R, 4)}, 0 offen")
        A(f"s_add_u32 {s(S_NONCE)}, {s(S_NONCE)}, 1")
        A(f"s_lshl_b32 {s(t0)}, {s(S_CP)}, 7")
        A(f"s_add_u32 {s(t0)}, {s(t0)}, {FL + F1 * 128}")
        A.wait_vm(A.vm_count - mark)
        A.barrier()
        self.flag_store(t0, with_xcc=True)
        self.stamp(3)
        A.await_regs(v(vW, 16))
        for i in range(4):
            A(f"ds_write_b128 {v(vWw)}, {v(vW + 4 * i, 4)} offset:{L_WB + 1088 * i}")
        vx4 = 48
        for e in range(2):
            for ps in range(2):
                b = vKD + 8 * (2 * e + ps)
                base = e * 4 * CS
                ad = vKW + ps
                A.await_regs(v(b, 6))
                for i in range(4):
                    A(f"v_alignbit_b32 {v(vx4 + i)}, {v(b + i + 1)}, {v(b + i)}, 16")
                for i in range(4):
                    A(f"v_mov_b32 {v(vx4 + 4 + i)}, {v(b + i + 1)}")
                for i in range(4):
                    A(f"v_alignbit_b32 {v(vx4 + 8 + i)}, {v(b + i + 2)}, {v(b + i + 1)}, 16")
                A(f"ds_write_b128 {v(ad)}, {v(b, 4)} offset:{base}")
                A(f"ds_write_b128 {v(ad)}, {v(vx4, 4)} offset:{base + CS}")
                A(f"ds_write_b128 {v(ad)}, {v(vx4 + 4, 4)} offset:{base + 2 * CS}")
                A(f"ds_write_b128 {v(ad)}, {v(vx4 + 8, 4)} offset:{base + 3 * CS}")
        A.barrier()
        self.stamp(25)
        vF = 32
        for i in range(4):
            A(f"ds_read_b64_tr_b16 {v(vF + 4 * i, 2)}, {v(vTR0)} offset:{L_WB + 256 * i}")
            A(f"ds_read_b64_tr_b16 {v(vF + 4 * i + 2, 2)}, {v(vTR1)} offset:{L_WB + 256 * i}")
        A.await_regs(v(vF, 16))
        for i in range(3):
            A(f"buffer_store_dwordx4 {v(vF + 4 * i, 4)}, {v(vL16)}, {s(R_WS, 4)}, {s(sD0)} offen sc1")
            A(f"s_add_u32 {s(sD0)}, {s(sD0)}, {s(sDS)}")
        skip = self.lab("w4")
        A(f"s_cmp_ge_u32 {s(S_WV)}, 2")
        A(f"s_cbranch_scc1 {skip}")
        A.cond_begin()
        A(f"buffer_store_dwordx4 {v(vF + 12, 4)}, {v(vL16)}, {s(R_WS, 4)}, {s(sD0)} offen sc1")
        A.cond_end()
        A.label(skip)
        self.sWB = sWB
        self.stamp(26)

    def poll2_issue(self, va, vb, vt):
        A = self.A
        A(f"buffer_load_dword {v(vt)}, {v(va)}, {s(R_WS, 4)}, 0 offen sc1")
        A(f"buffer_load_dword {v(vt + 1)}, {v(vb)}, {s(R_WS, 4)}, 0 offen sc1")

    def poll2_check(self, va, vb, vt):
        A = self.A
        loop, done = self.lab("p2"), self.lab("p2d")
        A(f"v_cmp_ne_u32 vcc, {s(S_NONCE)}, {v(vt)}")
        A(f"v_cmp_ne_u32 {s(S_SPIN + 2, 2)}, {s(S_NONCE)}, {v(vt + 1)}")
        A(f"s_mov_b32 {s(S_SPIN)}, 0")
        A("s_nop 1")
        A(f"s_or_b64 vcc, vcc, {s(S_SPIN + 2, 2)}")
        A("s_cmp_eq_u64 vcc, 0")
        A(f"s_cbranch_scc1 {done}")
        st = A.snapshot()
        A.label(loop)
        A(f"buffer_load_dword {v(vt)}, {v(va)}, {s(R_WS, 4)}, 0 offen sc1")
        A(f"buffer_load_dword {v(vt + 1)}, {v(vb)}, {s(R_WS, 4)}, 0 offen sc1")
        A.wait_vm(0)
        A(f"v_cmp_ne_u32 vcc, {s(S_NONCE)}, {v(vt)}")
        A(f"v_cmp_ne_u32 {s(S_SPIN + 2, 2)}, {s(S_NONCE)}, {v(vt + 1)}")
        A(f"s_add_u32 {s(S_SPIN)}, {s(S_SPIN)}, 1")
        A("s_nop 1")
        A(f"s_or_b64 vcc, vcc, {s(S_SPIN + 2, 2)}")
        A("s_cmp_eq_u64 vcc, 0")
        A(f"s_cbranch_scc1 {done}")
        A(f"s_cmp_lt_u32 {s(S_SPIN)}, {SPIN_MAX}")
        A(f"s_cbranch_scc1 {loop}")
        A.restore(st)
        A.label(done)

    def phase_a(self):
        A = self.A
        T = S_T
        t0, t1, t2 = T, T + 1, T + 2
        vPa, vPt, vx, vy = 2, 3, 16, 17
        A(f"v_min_u32 {v(vPa)}, 55, v1")
        A(f"s_mul_i32 {s(t0)}, {s(S_WV)}, 56")
        A(f"v_add_u32 {v(vPa)}, {s(t0)}, {v(vPa)}")
        A(f"v_lshlrev_b32 {v(vPa)}, 7, {v(vPa)}")
        A(f"v_add_u32 {v(vPa)}, {FL + F1 * 128}, {v(vPa)}")
        vL16 = 4
        sKV = S_OFF + 2
        A(f"s_lshl_b32 {s(sKV)}, {s(S_CP)}, 13")
        A(f"s_lshl_b32 {s(t2)}, {s(S_WV)}, 11")
        A(f"s_add_u32 {s(sKV)}, {s(sKV)}, {s(t2)}")
        vUW, vaA, vaB = 5, 6, 7
        A(f"s_lshl_b32 {s(t0)}, {s(S_WV)}, 10")
        A(f"s_sub_u32 {s(t0)}, {4088 - 512}, {s(t0)}")
        A(f"v_lshlrev_b32 {v(vx)}, 3, v1")
        A(f"v_sub_u32 {v(vUW)}, {s(t0)}, {v(vx)}")
        A(f"v_and_b32 {v(vx)}, 15, v1")
        A(f"v_add_u32 {v(vx)}, 1, {v(vx)}")
        A(f"v_and_b32 {v(vy)}, 3, {v(vx)}")
        A(f"v_sub_u32 {v(vx)}, {v(vx)}, {v(vy)}")
        A(f"v_lshlrev_b32 {v(vx)}, 1, {v(vx)}")
        A(f"v_mul_u32_u24 {v(vy)}, {CS}, {v(vy)}")
        A(f"v_add_u32 {v(vaA)}, {v(vx)}, {v(vy)}")
        A(f"v_lshrrev_b32 {v(vy)}, 4, v1")
        A(f"v_lshl_add_u32 {v(vaA)}, {v(vy)}, 4, {v(vaA)}")
        A(f"s_lshr_b32 {s(t0)}, {s(S_WV)}, 1")
        A(f"s_and_b32 {s(t1)}, {s(S_WV)}, 1")
        A(f"s_mul_i32 {s(t2)}, {s(t0)}, {4 * CS}")
        A(f"s_lshl_b32 {s(t1)}, {s(t1)}, 8")
        A(f"s_add_u32 {s(t2)}, {s(t2)}, {s(t1)}")
        A(f"s_add_u32 {s(t2)}, {s(t2)}, {L_KC}")
        A(f"v_add_u32 {v(vaA)}, {s(t2)}, {v(vaA)}")
        A(f"v_and_b32 {v(vx)}, 15, v1")
        A(f"v_lshlrev_b32 {v(vx)}, 5, {v(vx)}")
        A(f"v_lshlrev_b32 {v(vy)}, 4, {v(vy)}")
        A(f"v_sub_u32 {v(vaB)}, {v(vy)}, {v(vx)}")
        A(f"s_mul_i32 {s(t2)}, {s(t0)}, 4608")
        A(f"s_add_u32 {s(t2)}, {s(t2)}, {s(t1)}")
        A(f"s_add_u32 {s(t2)}, {s(t2)}, {L_UR + 480}")
        A(f"v_add_u32 {v(vaB)}, {s(t2)}, {v(vaB)}")
        vPW, vPM, vPR = 18, 19, 20
        A(f"s_lshl_b32 {s(t0)}, {s(S_J)}, 3")
        A(f"s_lshl_b32 {s(t1)}, {s(S_WV)}, 1")
        A(f"s_add_u32 {s(t0)}, {s(t0)}, {s(t1)}")
        A(f"s_mul_i32 {s(t0)}, {s(t0)}, 147")
        A(f"s_lshr_b32 {s(t0)}, {s(t0)}, 11")
        A(f"v_min_u32 {v(vx)}, 27, v1")
        A(f"v_lshl_add_u32 {v(vPW)}, {v(vx)}, 2, {s(t0)}")
        A(f"s_mul_i32 {s(t1)}, {s(S_WV)}, 28")
        A(f"s_add_u32 {s(t1)}, {s(t1)}, {112 - 32}")
        A(f"v_min_u32 {v(vy)}, 59, v1")
        A(f"v_add_u32 {v(vy)}, {s(t1)}, {v(vy)}")
        A(f"v_cmp_gt_u32 vcc, 32, v1")
        A(f"v_cndmask_b32 {v(vPW)}, {v(vy)}, {v(vPW)}, vcc")
        A(f"v_lshlrev_b32 {v(vPW)}, 7, {v(vPW)}")
        A(f"v_add_u32 {v(vPW)}, {FL + FQ * 128}, {v(vPW)}")
        A(f"v_min_u32 {v(vPM)}, 20, v1")
        A(f"v_lshlrev_b32 {v(vPM)}, 7, {v(vPM)}")
        A(f"v_add_u32 {v(vPM)}, {FL + FM * 128}, {v(vPM)}")
        A(f"s_add_u32 {s(t1)}, {s(sKV)}, {KVP}")
        A(f"s_lshl_b32 {s(t0)}, {s(self.sWB)}, 7")
        A(f"s_add_u32 {s(t0)}, {s(t0)}, {FL + FQ * 128}")
        self.poll(vPa, vPt)
        A.barrier()
        self.flag_store(t0)
        self.stamp(5)
        vKV = 8
        for h in range(2):
            A(f"buffer_load_dwordx4 {v(vKV + 4 * h, 4)}, {v(vL16)}, {s(R_WS, 4)}, {s(t1)} offen offset:{1024 * h} sc1")
        vQn, vRs, vMs = 144, 152, 160
        A(f"s_add_u32 {s(t1)}, {s(sKV)}, {QP}")
        for h in range(2):
            A(f"buffer_load_dwordx4 {v(vQn + 4 * h, 4)}, {v(vL16)}, {s(R_WS, 4)}, {s(t1)} offen offset:{1024 * h} sc1")
        A(f"s_lshl_b32 {s(t0)}, {s(S_WV)}, 11")
        A(f"s_add_u32 {s(t1)}, {s(t0)}, {STR}")
        A(f"s_add_u32 {s(t2)}, {s(t0)}, {STM}")
        for h in range(2):
            A(f"buffer_load_dwordx4 {v(vRs + 4 * h, 4)}, {v(vL16)}, {s(R_WS, 4)}, {s(t1)} offen offset:{1024 * h} sc1")
            A(f"buffer_load_dwordx4 {v(vMs + 4 * h, 4)}, {v(vL16)}, {s(R_WS, 4)}, {s(t2)} offen offset:{1024 * h} sc1")
        vXc = 30
        A(f"v_min_u32 {v(vXc)}, 6, v1")
        A(f"v_lshlrev_b32 {v(vXc)}, 12, {v(vXc)}")
        A(f"s_lshl_b32 {s(t0)}, {s(S_RB)}, 7")
        A(f"s_add_u32 {s(t0)}, {s(t0)}, {FL + F1 * 128 + 4}")
        A(f"buffer_load_dword {v(vXc + 1)}, {v(vXc)}, {s(R_WS, 4)}, {s(t0)} offen sc1")
        vP = 22
        A.await_regs(v(vKV, 8))
        for h in range(2):
            d = vKV + 4 * h
            for e, sel in ((0, S_PERM_LO), (1, S_PERM_HI)):
                o = vP + 4 * h + 2 * e
                A(f"v_perm_b32 {v(o)}, {v(d + 2)}, {v(d + 3)}, {s(sel)}")
                A(f"v_perm_b32 {v(o + 1)}, {v(d)}, {v(d + 1)}, {s(sel)}")
        for h in range(2):
            for e in range(2):
                o = vP + 4 * h + 2 * e
                A(f"ds_write_b64 {v(vUW)}, {v(o, 2)} offset:{L_UR + 4608 * e + (512 if h == 0 else 0)}")
        A.barrier()
        self.stamp(6)
        ACC = 32
        BS = [64, 96]
        AR = 128

        def ldB(rp, m):
            A(f"ds_read_b128 {v(BS[rp & 1] + 4 * m, 4)}, {v(vaB)} offset:{64 * rp + 512 * (7 - m)}")

        def ldA(idx):
            rp, q = divmod(idx, 8)
            r = AR + 4 * (idx % 4)
            A(f"ds_read_b64 {v(r, 2)}, {v(vaA)} offset:{64 * rp + 512 * q}")
            A(f"ds_read_b64 {v(r + 2, 2)}, {v(vaA)} offset:{64 * rp + 512 * q + 8}")

        ldA(0)
        for m in range(8):
            ldB(0, m)
        ldA(1)
        ldA(2)
        vPS, vPA, vPG, vPD, vPar = 168, 170, 172, 174, 176
        nm = 0
        for rp in range(4):
            if rp == 1:
                self.poll2_issue(vPW, vPM, vPR)
            if rp == 2:
                self.poll2_check(vPW, vPM, vPR)
                A(f"s_lshl_b32 {s(t0)}, {s(S_CP)}, 3")
                A(f"v_mov_b32 {v(vx)}, {s(t0)}")
                for reg, sec in ((vPS, 0), (vPA, 1), (vPG, 2)):
                    A(f"s_mov_b32 {s(t1)}, {MODF + sec * 1792}")
                    A(f"buffer_load_dwordx2 {v(reg, 2)}, {v(vx)}, {s(R_WS, 4)}, {s(t1)} offen sc1")
                self.srd(R_A, P_D, 896)
                A(f"s_lshl_b32 {s(t0)}, {s(S_CP)}, 2")
                A(f"v_mov_b32 {v(vy)}, {s(t0)}")
                A(f"buffer_load_dword {v(vPD + 1)}, {v(vy)}, {s(R_A, 4)}, 0 offen")
                A(f"v_lshlrev_b32 {v(vx)}, 3, v0")
                A(f"s_mov_b32 {s(t0)}, {MODF + 4 * 1792}")
                A(f"s_mov_b32 {s(t1)}, {MODF + 3 * 1792}")
                A(f"buffer_load_dwordx2 {v(vPar, 2)}, {v(vx)}, {s(R_WS, 4)}, {s(t0)} offen sc1")
                A(f"buffer_load_dwordx2 {v(vPar + 2, 2)}, {v(vx)}, {s(R_WS, 4)}, {s(t1)} offen sc1")
                A(f"v_lshlrev_b32 {v(vy)}, 2, v1")
                A(f"s_lshl_b32 {s(t0)}, {s(S_J)}, 8")
                A(f"s_add_u32 {s(t0)}, {s(t0)}, {MODF + 5 * 1792}")
                A(f"buffer_load_dword {v(vPar + 4)}, {v(vy)}, {s(R_WS, 4)}, {s(t0)} offen sc1")
                self.bg_setup()
            for q in range(8):
                idx = rp * 8 + q
                ar = AR + 4 * (idx % 4)
                first = True
                for n in range(q, 8):
                    c = "0" if (rp == 0 and q == 0) else v(ACC + 4 * n, 4)
                    if first:
                        regs = [v(ar, 4)]
                        if q == 0:
                            regs.append(v(BS[rp & 1], 32))
                        A.await_regs(*regs)
                    A(f"v_mfma_f32_16x16x32_bf16 {v(ACC + 4 * n, 4)}, {v(ar, 4)}, {v(BS[rp & 1] + 4 * (n - q), 4)}, {c}")
                    nm += 1
                    if first:
                        first = False
                        if idx + 3 < 32:
                            ldA(idx + 3)
                        if rp < 3 and 0 <= q <= 3:
                            ldB(rp + 1, 2 * q)
                            ldB(rp + 1, 2 * q + 1)
                    if rp >= 2 and nm % self.o.get("conv_pace", 6) == 0:
                        self.bg_emit(1)
        self.stamp(7)
        vRW, vRR, vSt = 18, 19, 20
        A(f"v_and_b32 {v(vx)}, 15, v1")
        A(f"v_mul_u32_u24 {v(vRW)}, 80, {v(vx)}")
        A(f"v_lshrrev_b32 {v(vy)}, 4, v1")
        A(f"v_lshl_add_u32 {v(vRW)}, {v(vy)}, 4, {v(vRW)}")
        A(f"s_mul_i32 {s(t0)}, {s(S_WV)}, 10240")
        A(f"s_add_u32 {s(t0)}, {s(t0)}, {L_RED}")
        A(f"v_add_u32 {v(vRW)}, {s(t0)}, {v(vRW)}")
        A(f"v_mul_u32_u24 {v(vSt)}, 57344, {v(vy)}")
        A(f"v_lshl_add_u32 {v(vSt)}, {v(vx)}, 4, {v(vSt)}")
        for n in range(8):
            A(f"ds_write_b128 {v(vRW)}, {v(ACC + 4 * n, 4)} offset:{1280 * n}")
        A(f"v_lshrrev_b32 {v(vx)}, 2, v1")
        A(f"v_mul_u32_u24 {v(vRR)}, 80, {v(vx)}")
        A(f"v_and_b32 {v(vy)}, 3, v1")
        A(f"v_lshl_add_u32 {v(vRR)}, {v(vy)}, 4, {v(vRR)}")
        A(f"s_mul_i32 {s(t0)}, {s(S_WV)}, 2560")
        A(f"s_add_u32 {s(t0)}, {s(t0)}, {L_RED}")
        A(f"v_add_u32 {v(vRR)}, {s(t0)}, {v(vRR)}")
        sX = S_OFF + 3
        A(f"s_mul_i32 {s(sX)}, {s(S_WV)}, {2 * 229376}")
        A(f"s_lshl_b32 {s(t0)}, {s(S_CP)}, 8")
        A(f"s_add_u32 {s(sX)}, {s(sX)}, {s(t0)}")
        A(f"s_add_u32 {s(sX)}, {s(sX)}, {X1P}")
        A(f"s_add_u32 {s(t1)}, {s(sX)}, 229376")
        U, Q, N = 64, 80, 200
        A.await_regs(v(vQn, 8), v(vRs, 8), v(vMs, 8), v(vPS, 2), v(vPA, 2), v(vPG, 2), v(vPD + 1))
        A(f"v_lshlrev_b32 {v(vPD)}, 16, {v(vPD + 1)}")
        A(f"v_and_b32 {v(vPD + 1)}, {s(S_MASKHI)}, {v(vPD + 1)}")
        for h in range(2):
            for e in range(2):
                for r in range(4):
                    for dst, src in ((U, vKV), (Q, vQn)):
                        d = dst + 8 * h + 4 * e + r
                        if e == 0:
                            A(f"v_lshlrev_b32 {v(d)}, 16, {v(src + 4 * h + r)}")
                        else:
                            A(f"v_and_b32 {v(d)}, {s(S_MASKHI)}, {v(src + 4 * h + r)}")
        for h in range(2):
            for e in range(2):
                for k in (0, 2):
                    o = 8 * h + 4 * e + k
                    A(f"v_pk_fma_f32 {v(N + o, 2)}, {v(Q + o, 2)}, {v(vRs + 4 * h + k, 2)}, {v(vMs + 4 * h + k, 2)} neg_lo:[0,0,1] neg_hi:[0,0,1]")
        for h in range(2):
            for e in range(2):
                for k in (0, 2):
                    o = 8 * h + 4 * e + k
                    A(f"v_pk_fma_f32 {v(N + o, 2)}, {v(N + o, 2)}, {v(vPA, 2)}, {v(vPS, 2)} op_sel:[0,{e},{e}] op_sel_hi:[1,{e},{e}]")
        for h in range(2):
            for e in range(2):
                for k in (0, 2):
                    o = 8 * h + 4 * e + k
                    A(f"v_pk_mul_f32 {v(N + o, 2)}, {v(N + o, 2)}, {v(vPG, 2)} op_sel:[0,{e}] op_sel_hi:[1,{e}]")
        A.barrier()
        self.stamp(30)
        vY = 96
        for h in range(2):
            for w in range(4):
                A(f"ds_read_b128 {v(vY + 16 * h + 4 * w, 4)}, {v(vRR)} offset:{10240 * w + 1280 * h}")
        A(f"s_mov_b32 {s(t2)}, 0x{f32bits(LOG2E):08x}")
        A(f"v_lshlrev_b32 {v(vx)}, 4, v0")
        A(f"v_add_u32 {v(vx)}, {L_PAR}, {v(vx)}")
        A(f"v_lshlrev_b32 {v(vy)}, 2, v1")
        A(f"v_add_u32 {v(vy)}, {L_GB}, {v(vy)}")
        A.await_regs(v(vPar, 4), v(vPar + 4))
        for r_ in range(vPar, vPar + 4):
            A(f"v_mul_f32 {v(r_)}, {s(t2)}, {v(r_)}")
        A(f"ds_write_b128 {v(vx)}, {v(vPar, 4)}")
        A(f"ds_write_b32 {v(vy)}, {v(vPar + 4)}")
        vOut = 128
        for h in range(2):
            A.await_regs(v(vY + 16 * h, 16))
            ys = [(e, k, vY + 16 * h + 8 * e + k, 8 * h + 4 * e + k) for e in range(2) for k in (0, 2)]
            for e, k, y, o in ys:
                A(f"v_pk_add_f32 {v(y, 2)}, {v(y, 2)}, {v(y + 4, 2)}")
            for e, k, y, o in ys:
                A(f"v_pk_fma_f32 {v(y, 2)}, {v(U + o, 2)}, {v(vPD, 2)}, {v(y, 2)} op_sel:[0,{e},0] op_sel_hi:[1,{e},1]")
            for e, k, y, o in ys:
                A(f"v_pk_fma_f32 {v(y, 2)}, {v(N + o, 2)}, {v(y, 2)}, {v(Q + o, 2)}")
            for r in range(4):
                A(f"v_cvt_pk_bf16_f32 {v(vOut + 4 * h + r)}, {v(vY + 16 * h + r)}, {v(vY + 16 * h + 8 + r)}")
            A(f"buffer_store_dwordx4 {v(vOut + 4 * h, 4)}, {v(vSt)}, {s(R_WS, 4)}, {s(sX if h == 0 else t1)} offen sc1")
        self.stamp(8)
        A(f"v_cmp_ne_u32 vcc, {s(S_XCC)}, v31")
        A(f"s_lshl_b32 {s(t0)}, {s(S_CP)}, 7")
        A(f"s_add_u32 {s(t0)}, {s(t0)}, {FL + F2 * 128}")
        A("s_cmp_eq_u64 vcc, 0")
        A(f"s_cselect_b32 {s(S_LOCAL)}, 1, 0")
        if self.o.get("force_global"):
            A(f"s_mov_b32 {s(S_LOCAL)}, 0")
        A.wait_vm(0)
        A.barrier()
        self.flag_store(t0)
        self.bg_emit(self.n_burst_t2)
        self.stamp(9)

    def phase_b(self):
        A = self.A
        T = S_T
        t0, t1, t2 = T, T + 1, T + 2
        vPa, vPt = 2, 4
        A(f"v_min_u32 {v(vPa)}, 55, v1")
        A(f"s_mul_i32 {s(t0)}, {s(S_WV)}, 56")
        A(f"v_add_u32 {v(vPa)}, {s(t0)}, {v(vPa)}")
        A(f"v_lshlrev_b32 {v(vPa)}, 7, {v(vPa)}")
        A(f"v_add_u32 {v(vPa)}, {FL + F2 * 128}, {v(vPa)}")
        self.poll(vPa, vPt)
        A.barrier()
        self.stamp(10)
        vL16 = 4
        A(f"v_lshlrev_b32 {v(vL16)}, 4, v1")
        A(f"s_mul_i32 {s(t1)}, {s(S_WV)}, 14336")
        A(f"s_mul_i32 {s(t0)}, {s(S_RB)}, 57344")
        A(f"s_add_u32 {s(t0)}, {s(t0)}, {s(t1)}")
        A(f"s_add_u32 {s(t0)}, {s(t0)}, {X1P}")
        A(f"s_add_u32 {s(t1)}, {s(t1)}, {L_XD}")
        A(f"s_mov_b32 m0, {s(t1)}")
        for i in range(14):
            if i and i % 4 == 0:
                A(f"s_add_u32 {s(t0)}, {s(t0)}, 4096")
                A(f"s_add_u32 m0, m0, 4096")
            A.dma(f"buffer_load_dwordx4 {v(vL16)}, {s(R_WS, 4)}, {s(t0)} offen offset:{1024 * (i % 4)} sc1 lds", f"x{i}")
        skip = self.lab("ep")
        A(f"s_cmp_lg_u32 {s(S_CP)}, 0")
        A(f"s_cbranch_scc1 {skip}")
        A.cond_begin()
        A(f"s_mov_b32 {s(t0)}, 0")
        self.flag_store(t0)
        A.cond_end()
        A.label(skip)
        if self.o.get("pretouch", 1):
            A(f"s_mul_i32 {s(t0)}, {s(S_RB)}, 112")
            A(f"s_lshl_b32 {s(t2)}, {s(S_J)}, 4")
            A(f"s_add_u32 {s(t0)}, {s(t0)}, {s(t2)}")
            A(f"s_lshl_b32 {s(t2)}, {s(S_WV)}, 2")
            A(f"s_add_u32 {s(t0)}, {s(t0)}, {s(t2)}")
            A(f"s_lshl_b32 {s(t0)}, {s(t0)}, 11")
            A(f"s_add_u32 {s(t0)}, {s(t0)}, {HF}")
            A(f"v_lshlrev_b32 v6, 7, v1")
            A(f"buffer_load_dword v253, v6, {s(R_WS, 4)}, {s(t0)} offen")
        X = 88
        vXR = 5
        A(f"v_lshlrev_b32 {v(vXR)}, 2, v1")
        A(f"v_add_u32 {v(vXR)}, {s(t1)}, {v(vXR)}")

        XR = 72

        def ldX(g):
            A.need(f"x{g}")
            r = XR + 4 * (g % 4)
            A(f"ds_read2st64_b32 {v(r, 2)}, {v(vXR)} offset0:{4 * g} offset1:{4 * g + 1}")
            A(f"ds_read2st64_b32 {v(r + 2, 2)}, {v(vXR)} offset0:{4 * g + 2} offset1:{4 * g + 3}")

        vS = 8
        for g in range(3):
            ldX(g)
        self.stamp(27)
        for g in range(14):
            src = XR + 4 * (g % 4)
            A.await_regs(v(src, 4))
            if g + 3 < 14:
                ldX(g + 3)
            for k in range(4):
                e = 4 * g + k
                r = X + 2 * e
                A(f"v_lshlrev_b32 {v(r)}, 16, {v(src + k)}")
                A(f"v_and_b32 {v(r + 1)}, {s(S_MASKHI)}, {v(src + k)}")
            for k in range(4):
                e = 4 * g + k
                r = X + 2 * e
                s1, s2 = vS + 2 * (e & 1), vS + 4 + 2 * (e & 1)
                if e < 2:
                    A(f"v_mov_b32 {v(s1)}, {v(r)}")
                    A(f"v_mov_b32 {v(s1 + 1)}, {v(r + 1)}")
                    A(f"v_pk_mul_f32 {v(s2, 2)}, {v(r, 2)}, {v(r, 2)}")
                else:
                    A(f"v_pk_add_f32 {v(s1, 2)}, {v(s1, 2)}, {v(r, 2)}")
                    A(f"v_pk_fma_f32 {v(s2, 2)}, {v(r, 2)}, {v(r, 2)}, {v(s2, 2)}")
            if g >= 11 - 3 and self.bg_left("w1") > self.o.get("b_norm_left", 14):
                self.bg_emit(1)
        A(f"v_pk_add_f32 {v(vS, 2)}, {v(vS, 2)}, {v(vS + 2, 2)}")
        A(f"v_pk_add_f32 {v(vS + 4, 2)}, {v(vS + 4, 2)}, {v(vS + 6, 2)}")
        A(f"v_add_f32 {v(vS)}, {v(vS)}, {v(vS + 1)}")
        A(f"v_add_f32 {v(vS + 1)}, {v(vS + 4)}, {v(vS + 5)}")
        vSW = 5
        A(f"v_lshlrev_b32 {v(vSW)}, 3, v1")
        A(f"v_add_u32 {v(vSW)}, {L_STAT}, {v(vSW)}")
        A(f"s_lshl_b32 {s(t0)}, {s(S_WV)}, 9")
        A(f"v_add_u32 v6, {s(t0)}, {v(vSW)}")
        A(f"ds_write_b64 v6, {v(vS, 2)}")
        self.stamp(28)
        vPb = 6
        vHW = 7
        A(f"v_lshrrev_b32 v22, 5, v1")
        A(f"v_lshlrev_b32 {v(vHW)}, 10, v22")
        A(f"v_and_b32 v22, 31, v1")
        A(f"v_lshl_add_u32 {v(vHW)}, v22, 4, {v(vHW)}")
        A(f"s_mul_i32 {s(t0)}, {s(S_WV)}, {7 * 2048}")
        A(f"v_add_u32 {v(vHW)}, {s(t0)}, {v(vHW)}")
        A(f"s_mul_i32 {s(t0)}, {s(S_WV)}, 896")
        A(f"s_add_u32 {s(t0)}, {s(t0)}, {L_PAR}")
        A.barrier()
        for w in range(4):
            A(f"ds_read_b64 {v(16 + 2 * w, 2)}, {v(vSW)} offset:{512 * w}")
        A(f"v_mov_b32 {v(vPb)}, {s(t0)}")
        PR = 200
        OUT = 56

        def ldP(e):
            if self.o.get("b_nopar"):
                return
            A(f"ds_read_b128 {v(PR + 4 * (e % 12), 4)}, {v(vPb)} offset:{16 * e}")

        for e in range(8):
            ldP(e)
        A("v_pk_add_f32 v[16:17], v[16:17], v[18:19]")
        A("v_pk_add_f32 v[20:21], v[20:21], v[22:23]")
        A("v_pk_add_f32 v[16:17], v[16:17], v[20:21]")
        A(f"s_mov_b32 {s(t0)}, 0x{f32bits(1.0 / 448):08x}")
        A(f"s_mov_b32 {s(t1)}, 0x{f32bits(1e-5):08x}")
        A(f"v_mul_f32 v16, {s(t0)}, v16")
        A(f"v_mul_f32 v17, {s(t0)}, v17")
        A("v_fma_f32 v17, -v16, v16, v17")
        A("v_max_f32 v17, 0, v17")
        A(f"v_add_f32 v17, {s(t1)}, v17")
        vR, vM = 18, 20
        A(f"v_rsq_f32 {v(vR)}, v17")
        A(f"v_mul_f32 {v(vM)}, v16, {v(vR)}")
        self.stamp(29)
        for e0 in range(0, 56, 4):
            A.await_regs(*[v(PR + 4 * ((e0 + k) % 12), 4) for k in range(4)])
            for k in range(8, 12):
                if e0 + k < 56:
                    ldP(e0 + k)
            for e in range(e0, e0 + 4):
                r = X + 2 * e
                A(f"v_pk_fma_f32 {v(r, 2)}, {v(r, 2)}, {v(vR, 2)}, {v(vM, 2)} op_sel_hi:[1,0,0] neg_lo:[0,0,1] neg_hi:[0,0,1]")
            for e in range(e0, e0 + 4):
                r = X + 2 * e
                p = PR + 4 * (e % 12)
                A(f"v_pk_fma_f32 {v(r, 2)}, {v(r, 2)}, {v(p, 2)}, {v(p + 2, 2)}")
            sp, k0 = divmod(e0, 8)
            o = OUT + 8 * (sp & 1)
            for e in range(e0, e0 + 4):
                r = X + 2 * e
                A(f"v_cvt_pk_bf16_f32 {v(o + e % 8)}, {v(r)}, {v(r + 1)}")
            if not self.o.get("b_nowr"):
                A(f"ds_write_b128 {v(vHW)}, {v(o + k0, 4)} offset:{L_H2 + 2048 * sp + (512 if k0 else 0)}")
            if self.bg_left("w1") > 0:
                self.bg_emit(1)
            if (e0 // 4) % 4 == 0 and self.bg_left("w1") > 0:
                self.bg_emit(1)
        while self.bg_left("w1") > 0:
            self.bg_emit(1)
        A.barrier()
        self.stamp(11)

    def w2reg(self, f):
        if f < 41:
            return v(88 + 4 * f, 4)
        if f < 49:
            return a(224 + 4 * (f - 41), 4)
        return a(4 * (f - 49), 4)

    def bg_setup(self):
        A = self.A
        t0, t1 = S_T, S_T + 1
        A(f"s_lshl_b32 {s(t0)}, {s(S_J)}, 3")
        A(f"s_lshl_b32 {s(t1)}, {s(S_WV)}, 1")
        A(f"s_add_u32 {s(t0)}, {s(t0)}, {s(t1)}")
        A(f"s_mul_i32 {s(S_W1B)}, {s(t0)}, {28 * 1024}")
        A(f"s_add_u32 {s(S_W1B)}, {s(S_W1B)}, {W1F}")
        A(f"s_lshl_b32 {s(t0)}, {s(S_J)}, 2")
        A(f"s_add_u32 {s(t0)}, {s(t0)}, {s(S_WV)}")
        A(f"s_mul_i32 {s(S_W2B)}, {s(t0)}, {56 * 1024}")
        A(f"s_add_u32 {s(S_W2B)}, {s(S_W2B)}, {W2F}")
        A(f"v_lshlrev_b32 v{V_L16}, 4, v1")
        self.bgq = [("w1", f) for f in range(56)] + [("w2", f) for f in self.w2_order]
        self.bg_cur = {"w1": 0, "w2": 0}

    def bg_emit(self, n=1):
        A = self.A
        if self.o["nobg"]:
            del self.bgq[:n]
            return
        for _ in range(n):
            if not self.bgq:
                return
            kind, f = self.bgq.pop(0)
            base = S_W1B if kind == "w1" else S_W2B
            blk = f // 4
            if blk != self.bg_cur[kind]:
                d = (blk - self.bg_cur[kind]) * 4096
                A(f"s_add_u32 {s(base)}, {s(base)}, {d}" if d > 0 else f"s_sub_u32 {s(base)}, {s(base)}, {-d}")
                self.bg_cur[kind] = blk
            if kind == "w1":
                A(f"buffer_load_dwordx4 {a(4 * f, 4)}, v{V_L16}, {s(R_WS, 4)}, {s(base)} offen offset:{1024 * (f % 4)} sc1")
            else:
                A(f"buffer_load_dwordx4 {self.w2reg(f)}, v{V_W2O + (f & 1)}, {s(R_WS, 4)}, {s(base)} offen offset:{2048 * ((f % 4) >> 1)} sc1")

    def bg_left(self, kind):
        return sum(1 for k, _ in self.bgq if k == kind)

    def phase_c(self):
        A = self.A
        t0 = S_T
        A(f"s_lshr_b32 {s(t0)}, {s(S_WV)}, 1")
        A(f"s_lshl_b32 {s(t0)}, {s(t0)}, 10")
        A(f"v_add_u32 v{V_W2O}, {s(t0)}, v{V_L16}")
        A(f"s_sub_u32 {s(t0)}, 1024, {s(t0)}")
        A(f"v_add_u32 v{V_W2O + 1}, {s(t0)}, v{V_L16}")
        glob, join = self.lab("cglob"), self.lab("cjoin")
        A(f"s_cmp_eq_u32 {s(S_LOCAL)}, 0")
        A(f"s_cbranch_scc1 {glob}")
        st, q, cur = A.snapshot(), list(self.bgq), dict(self.bg_cur)
        self.phase_c_body("")
        A(f"s_branch {join}")
        A.restore(st)
        self.bgq, self.bg_cur = q, cur
        A.label(glob)
        self.phase_c_body(" sc1")
        A.label(join)

    def phase_c_body(self, sc):
        A = self.A
        T = S_T
        t0, t1 = T, T + 1
        sH, sH2 = S_OFF + 5, S_OFF + 7
        A(f"s_mul_i32 {s(t0)}, {s(S_RB)}, 112")
        A(f"s_lshl_b32 {s(t1)}, {s(S_J)}, 4")
        A(f"s_add_u32 {s(t0)}, {s(t0)}, {s(t1)}")
        A(f"s_lshl_b32 {s(t1)}, {s(S_WV)}, 2")
        A(f"s_add_u32 {s(t0)}, {s(t0)}, {s(t1)}")
        A(f"s_lshl_b32 {s(sH)}, {s(t0)}, 11")
        A(f"s_add_u32 {s(sH)}, {s(sH)}, {HF}")
        A(f"s_add_u32 {s(sH2)}, {s(sH)}, 4096")
        sC = S_OFF + 6
        A(f"s_mov_b32 {s(sC)}, 0x{f32bits(LOG2E):08x}")
        ACC = [24, 40]
        NR = 6
        RING = 4
        TMP = 68
        OUT = 76

        def ring(i):
            k = i % NR
            return RING + 4 * k if k < 5 else 56

        def store(g, off):
            base, o = (sH2, off - 4096) if off >= 4096 else (sH, off)
            return f"buffer_store_dwordx4 {v(OUT + 4 * g, 4)}, v{V_L16}, {s(R_WS, 4)}, {s(base)} offen offset:{o}{sc}"

        def silu_ops(tile):
            ft, th = divmod(tile, 2)
            acc = ACC[tile & 1]
            seq = []
            lag = (0, 2, 3, 5)
            for step in range(16 + lag[-1] + 2):
                for k in range(4):
                    i = step - lag[k]
                    if 0 <= i < 16:
                        x, tmp = acc + i, TMP + (i % 8)
                        if k == 0:
                            seq.append((8, f"v_exp_f32 {v(tmp)}, -{v(x)}"))
                        elif k == 1:
                            seq.append((4, f"v_fma_f32 {v(tmp)}, {v(tmp)}, {s(sC)}, {s(sC)}"))
                        elif k == 2:
                            seq.append((8, f"v_rcp_f32 {v(tmp)}, {v(tmp)}"))
                        else:
                            seq.append((4, f"v_mul_f32 {v(x)}, {v(x)}, {v(tmp)}"))
                i = step - lag[-1] - 1
                if 0 <= i < 16 and i % 2 == 1:
                    g, kk = divmod(i // 2, 4)
                    seq.append((4, f"v_cvt_pk_bf16_f32 {v(OUT + 4 * g + kk)}, {v(acc + i - 1)}, {v(acc + i)}"))
                    if kk == 3:
                        off = (2 * (2 * ft + g) + th) * 1024
                        seq.append((4, store(g, off)))
            return seq

        def ldH(idx):
            tile, st = divmod(idx, 28)
            th = tile & 1
            A(f"ds_read_b128 {v(ring(idx), 4)}, v{V_L16} offset:{L_H2 + 2048 * st + 1024 * th}")

        for i_ in range(NR - 2):
            ldH(i_)
        pend = []
        nbg = self.n_bg_c
        done_bg = 0
        for tile in range(4):
            ft = tile >> 1
            acc = ACC[tile & 1]
            total = sum(c for c, _ in pend)
            for st in range(28):
                idx = tile * 28 + st
                if idx % 2 == 0:
                    A.await_regs(*[v(ring(i_), 4) for i_ in (idx, idx + 1) if i_ < 112])
                    for i_ in (idx + NR - 2, idx + NR - 1):
                        if i_ < 112:
                            ldH(i_)
                c = "0" if st == 0 else v(acc, 16)
                A(f"v_mfma_f32_32x32x16_bf16 {v(acc, 16)}, {a(4 * (28 * ft + st), 4)}, {v(ring(idx), 4)}, {c}")
                if pend and st >= 2:
                    left_slots = 28 - st
                    budget = -(-sum(c for c, _ in pend) // left_slots)
                    spent = 0
                    while pend and spent < budget:
                        cst, ins = pend.pop(0)
                        A(ins)
                        spent += cst
                while done_bg < nbg * (idx + 1) // 112:
                    self.bg_emit(1)
                    done_bg += 1
            assert not pend, len(pend)
            pend = silu_ops(tile)
        for _, ins in pend:
            A(ins)
        self.stamp(12)
        A.wait_vm(0)
        A.barrier()
        A(f"s_lshl_b32 {s(t0)}, {s(S_RB)}, 3")
        A(f"s_add_u32 {s(t0)}, {s(t0)}, {s(S_J)}")
        A(f"s_lshl_b32 {s(t0)}, {s(t0)}, 7")
        A(f"s_add_u32 {s(t0)}, {s(t0)}, {FL + F3 * 128}")
        self.flag_store(t0, sc=sc)
        self.bg_emit(len(self.bgq))
        self.stamp(13)

    def phase_d(self):
        A = self.A
        T = S_T
        t0, t1 = T, T + 1
        vPa, vPt = 2, 4
        A(f"v_min_u32 {v(vPa)}, 6, v1")
        A(f"s_lshl_b32 {s(t0)}, {s(S_RB)}, 3")
        A(f"v_add_u32 {v(vPa)}, {s(t0)}, {v(vPa)}")
        A(f"v_lshlrev_b32 {v(vPa)}, 7, {v(vPa)}")
        A(f"v_add_u32 {v(vPa)}, {FL + F3 * 128}, {v(vPa)}")
        self.poll(vPa, vPt)
        self.stamp(14)
        sH = S_OFF
        A(f"s_mul_i32 {s(t0)}, {s(S_RB)}, 112")
        A(f"s_mul_i32 {s(t1)}, {s(S_WV)}, 28")
        A(f"s_add_u32 {s(t0)}, {s(t0)}, {s(t1)}")
        A(f"s_lshl_b32 {s(sH)}, {s(t0)}, 11")
        A(f"s_add_u32 {s(sH)}, {s(sH)}, {HF}")
        NSLOT = 49
        HB = 28
        hl = {0: " sc1", 1: "", 2: " nt", 3: " sc0"}[self.o.get("hload", 0)]
        vH = 4
        A(f"s_and_b32 {s(t0)}, {s(S_WV)}, 1")
        A(f"s_lshl_b32 {s(t0)}, {s(t0)}, 10")
        A(f"v_add_u32 {v(vH)}, {s(t0)}, v{V_L16}")
        A(f"s_sub_u32 {s(t0)}, 1024, {s(t0)}")
        A(f"v_add_u32 {v(vH + 1)}, {s(t0)}, v{V_L16}")

        def hreg(i):
            return a(HB + 4 * (i % NSLOT), 4)

        def ldH(i):
            if i % 4 == 0 and i:
                A(f"s_add_u32 {s(sH)}, {s(sH)}, 4096")
            A(f"buffer_load_dwordx4 {hreg(i)}, {v(vH + (i & 1))}, {s(R_WS, 4)}, {s(sH)} offen offset:{2048 * ((i % 4) >> 1)}{hl}")

        PRE = self.o.get("d_pre", 12)
        for i in range(PRE):
            ldH(i)
        vWr, vRd, vG, vX, vO, vt = 8, 11, 12, 13, 14, 15
        for x in range(1, 4):
            A(f"s_xor_b32 {s(t0)}, {s(S_WV)}, {x}")
            A(f"s_mul_i32 {s(t0)}, {s(t0)}, 12288")
            A(f"s_add_u32 {s(t0)}, {s(t0)}, {L_RED2 + (x - 1) * 4096}")
            A(f"v_add_u32 {v(vWr + x - 1)}, {s(t0)}, v{V_L16}")
        A(f"s_mul_i32 {s(t0)}, {s(S_WV)}, 12288")
        A(f"s_add_u32 {s(t0)}, {s(t0)}, {L_RED2}")
        A(f"v_add_u32 {v(vRd)}, {s(t0)}, v{V_L16}")
        A(f"s_lshr_b32 {s(t0)}, {s(S_WV)}, 1")
        A(f"s_and_b32 {s(t1)}, {s(S_WV)}, 1")
        A(f"v_lshrrev_b32 {v(vt)}, 5, v1")
        t2, t3 = T + 2, T + 3
        A(f"s_lshl_b32 {s(t2)}, {s(t0)}, 7")
        A(f"s_add_u32 {s(t2)}, {s(t2)}, {L_GB}")
        A(f"v_lshl_add_u32 {v(vG)}, {v(vt)}, 4, {s(t2)}")
        A(f"s_lshl_b32 {s(t2)}, {s(S_J)}, 13")
        A(f"s_lshl_b32 {s(t3)}, {s(t0)}, 12")
        A(f"s_add_u32 {s(t2)}, {s(t2)}, {s(t3)}")
        A(f"s_lshl_b32 {s(t3)}, {s(t1)}, 7")
        A(f"s_add_u32 {s(t2)}, {s(t2)}, {s(t3)}")
        A(f"s_add_u32 {s(t2)}, {s(t2)}, {L_XD}")
        A(f"v_lshl_add_u32 {v(vX)}, {v(vt)}, 9, {s(t2)}")
        A(f"v_and_b32 {v(vO)}, 31, v1")
        A(f"v_lshl_add_u32 {v(vX)}, {v(vO)}, 2, {v(vX)}")
        A(f"s_lshl_b32 {s(t2)}, {s(S_RB)}, 6")
        A(f"s_lshl_b32 {s(t3)}, {s(t1)}, 5")
        A(f"s_add_u32 {s(t2)}, {s(t2)}, {s(t3)}")
        A(f"v_add_u32 {v(vO)}, {s(t2)}, {v(vO)}")
        A(f"v_mul_u32_u24 {v(vO)}, 896, {v(vO)}")
        A(f"s_lshl_b32 {s(t2)}, {s(S_J)}, 7")
        A(f"s_lshl_b32 {s(t3)}, {s(t0)}, 6")
        A(f"s_add_u32 {s(t2)}, {s(t2)}, {s(t3)}")
        A(f"v_lshl_add_u32 {v(vt)}, {v(vt)}, 4, {s(t2)}")
        A(f"v_add_u32 {v(vO)}, {v(vO)}, {v(vt)}")
        self.srd(R_A, P_OUT, 2048 * 896)
        ACC = 24
        nxt = PRE
        for st in range(28):
            for _ in range(2):
                if nxt < 56:
                    ldH(nxt)
                    nxt += 1
            for e1 in range(2):
                i = 2 * st + e1
                for e in range(2):
                    acc = ACC + 16 * (2 * e + e1)
                    c = "0" if st == 0 else v(acc, 16)
                    if self.o.get("d_nomfma"):
                        A.await_regs(hreg(i))
                        continue
                    A(f"v_mfma_f32_32x32x16_bf16 {v(acc, 16)}, {self.w2reg(2 * st + e)}, {hreg(i)}, {c}")
        self.stamp(15)
        GB, XP = 16, 88
        GB = 104
        X1 = 120
        PT = 144
        for g in range(4):
            A(f"ds_read_b128 {v(GB + 4 * g, 4)}, {v(vG)} offset:{32 * g}")
            A(f"ds_read2st64_b32 {v(X1 + 2 * g, 2)}, {v(vX)} offset0:{4 * g} offset1:{4 * g + 1}")
        for x in range(1, 4):
            for g in range(4):
                A(f"ds_write_b128 {v(vWr + x - 1)}, {v(ACC + 16 * x + 4 * g, 4)} offset:{1024 * g}")
        for k in range(8):
            A(f"v_lshlrev_b32 {v(128 + 2 * k)}, 16, {v(X1 + k)}")
            A(f"v_and_b32 {v(129 + 2 * k)}, {s(S_MASKHI)}, {v(X1 + k)}")
        self.stamp(17)
        A.barrier()
        self.stamp(18)
        for k in range(3):
            for g in range(4):
                A(f"ds_read_b128 {v(PT + 16 * k + 4 * g, 4)}, {v(vRd)} offset:{4096 * k + 1024 * g}")
        for k in range(3):
            A.await_regs(v(PT + 16 * k, 16))
            for i in range(8):
                A(f"v_pk_add_f32 {v(ACC + 2 * i, 2)}, {v(ACC + 2 * i, 2)}, {v(PT + 16 * k + 2 * i, 2)}")
        for i in range(8):
            A(f"v_pk_fma_f32 {v(ACC + 2 * i, 2)}, {v(ACC + 2 * i, 2)}, {v(GB + 2 * i, 2)}, {v(128 + 2 * i, 2)}")
        OUT = 192
        for i in range(8):
            A(f"v_cvt_pk_bf16_f32 {v(OUT + i)}, {v(ACC + 2 * i)}, {v(ACC + 2 * i + 1)}")
        for k in (0, 2):
            for i in range(2):
                A(f"v_permlane32_swap_b32 {v(OUT + 2 * k + i)}, {v(OUT + 2 * k + 2 + i)}")
        for k in (0, 2):
            A(f"buffer_store_dwordx4 {v(OUT + 2 * k, 4)}, {v(vO)}, {s(R_A, 4)}, 0 offen offset:{16 * k}")
        self.stamp(16)

    def helper(self):
        A = self.A
        T = S_T
        t0, t1, t2 = T + 4, T + 5, T + 6
        sH = S_RB
        A.label("L_helper")
        A(f"s_sub_u32 {s(t0)}, {s(T + 1)}, 28")
        A(f"s_lshl_b32 {s(t0)}, {s(t0)}, 3")
        A(f"s_add_u32 {s(sH)}, {s(t0)}, {s(T)}")
        A(f"s_cmp_ge_u32 {s(sH)}, 21")
        A("s_cbranch_scc1 L_exit")
        self.srd(R_A, P_WM, 448 * 5376)
        self.srd(R_B, P_C, 896)
        A("v_lshrrev_b32 v2, 4, v0")
        A("v_and_b32 v3, 15, v0")
        A("v_mul_u32_u24 v4, 5376, v2")
        A("v_lshl_add_u32 v4, v3, 4, v4")
        A(f"s_lshl_b32 {s(t0)}, {s(sH)}, 8")
        A(f"v_add_u32 v4, {s(t0)}, v4")
        A("v_lshlrev_b32 v5, 2, v0")
        A(f"buffer_load_dword v6, v5, {s(R_B, 4)}, 0 offen")
        W = 16
        A(f"s_mov_b32 {s(t0)}, 0")
        for i in range(28):
            A(f"buffer_load_dwordx4 {v(W + 4 * i, 4)}, v4, {s(R_A, 4)}, {s(t0)} offen")
            if i < 27:
                A(f"s_add_u32 {s(t0)}, {s(t0)}, {16 * 5376}")
        A(f"s_mov_b32 {s(t1)}, 0x{f32bits(-1.4426950408889634):08x}")
        A("v_lshlrev_b32 v8, 16, v6")
        A(f"v_and_b32 v9, {s(S_MASKHI)}, v6")
        for r in (8, 9):
            A(f"v_mul_f32 {v(r + 2)}, {s(t1)}, {v(r)}")
        for r in (8, 9):
            A(f"v_exp_f32 {v(r + 2)}, {v(r + 2)}")
        for r in (8, 9):
            A(f"v_add_f32 {v(r + 2)}, 1.0, {v(r + 2)}")
        for r in (8, 9):
            A(f"v_rcp_f32 {v(r + 2)}, {v(r + 2)}")
        for r in (8, 9):
            A(f"v_mul_f32 {v(r)}, {v(r)}, {v(r + 2)}")
        A("v_cvt_pk_bf16_f32 v6, v8, v9")
        A("v_lshlrev_b32 v8, 16, v6")
        A(f"v_and_b32 v9, {s(S_MASKHI)}, v6")
        A("v_lshlrev_b32 v7, 3, v0")
        A(f"ds_write_b64 v7, v[8:9] offset:{L_SC}")
        A.barrier()
        A("v_lshlrev_b32 v7, 2, v2")
        SC = 128
        for i in range(28):
            A(f"ds_read_b32 {v(SC + 2 * i)}, v7 offset:{L_SC + 64 * i}")
        AC = 192
        U = 200
        for i in range(28):
            for k in range(4):
                src = W + 4 * i + k
                u = U + 2 * k
                A(f"v_lshlrev_b32 {v(u)}, 16, {v(src)}")
                A(f"v_and_b32 {v(u + 1)}, {s(S_MASKHI)}, {v(src)}")
            for k in range(4):
                u = U + 2 * k
                if i == 0:
                    A(f"v_pk_mul_f32 {v(AC + 2 * k, 2)}, {v(u, 2)}, {v(SC + 2 * i, 2)} op_sel_hi:[1,0]")
                else:
                    A(f"v_pk_fma_f32 {v(AC + 2 * k, 2)}, {v(u, 2)}, {v(SC + 2 * i, 2)}, {v(AC + 2 * k, 2)} op_sel_hi:[1,0,1]")
        A("v_mul_u32_u24 v7, 528, v2")
        A("v_lshl_add_u32 v7, v3, 5, v7")
        A(f"ds_write_b128 v7, {v(AC, 4)} offset:{L_MR}")
        A(f"ds_write_b128 v7, {v(AC + 4, 4)} offset:{L_MR + 16}")
        A.barrier()
        A("v_and_b32 v8, 127, v0")
        A("v_lshlrev_b32 v7, 2, v8")
        for g in range(16):
            A(f"ds_read_b32 {v(16 + g)}, v7 offset:{L_MR + 528 * g}")
        for stp in (8, 4, 2, 1):
            for g in range(stp):
                A(f"v_add_f32 {v(16 + g)}, {v(16 + g)}, {v(16 + g + stp)}")
        A("v_cvt_pk_bf16_f32 v16, v16, v16")
        A(f"v_and_b32 v16, {s(S_MASKHI)}, v16")
        A("v_add_f32 v17, 1.0, v16")
        A("v_cvt_pk_bf16_f32 v17, v17, v17")
        A(f"v_and_b32 v17, {s(S_MASKHI)}, v17")
        A(f"s_lshl_b32 {s(t0)}, {s(sH)}, 7")
        A(f"v_add_u32 v8, {s(t0)}, v8")
        A("v_subrev_u32 v9, 448, v8")
        A("v_subrev_u32 v10, 1792, v8")
        A("v_min_u32 v9, v9, v10")
        A("v_mov_b32 v11, 448")
        A("v_cmp_lt_u32 vcc, v9, v11")
        A("s_nop 1")
        A("v_cndmask_b32 v16, v16, v17, vcc")
        A("v_lshlrev_b32 v8, 2, v8")
        A(f"s_mov_b32 {s(t0)}, {MODF}")
        skip = self.lab("ms")
        A(f"s_cmp_ge_u32 {s(S_WV)}, 2")
        A(f"s_cbranch_scc1 {skip}")
        A.cond_begin()
        A(f"buffer_store_dword v16, v8, {s(R_WS, 4)}, {s(t0)} offen sc1")
        A.cond_end()
        A.label(skip)
        A.wait_vm(0)
        A.barrier()
        A(f"s_add_u32 {s(S_NONCE)}, {s(S_NONCE)}, 1")
        A(f"s_lshl_b32 {s(t0)}, {s(sH)}, 7")
        A(f"s_add_u32 {s(t0)}, {s(t0)}, {FL + FM * 128}")
        self.flag_store(t0)
        self.stamp(3)
        self.stamp_flush()
        A("s_endpgm")

    def build(self):
        A = self.A
        self.prologue()
        if self.stamps:
            A("v_mov_b32 v255, 0")
        st = A.snapshot()
        self.stamp(0)
        self.phase_p()
        stages = [("p", None), ("a", self.phase_a), ("b", self.phase_b), ("c", self.phase_c), ("d", self.phase_d)]
        done = self.stop == "p"
        for name, fn in stages[1:]:
            if done:
                break
            fn()
            done = self.stop == name
        self.stamp_flush()
        A("s_endpgm")
        A.restore(st)
        self.helper()
        A.label("L_exit")
        A("s_endpgm")
        A.label("L_code_end")
        return A.text()


def f32bits(x):
    import struct
    return struct.unpack("<I", struct.pack("<f", x))[0]


HEADER = """; Fused adaLN + H3 long convolution + SiLU MLP, one persistent launch (generated by gen/gen.py).
; Kernarg: q k v shift_k ssm_k ssm_D B_x w1 w2 c w_mod out debug ws (8-byte pointers).
; @launch grid=(256,1,1) block=(256,1,1) lds={lds}
.amdgcn_target "amdgcn-amd-amdhsa--gfx950"
.text
.globl {name}
.p2align 8
.type {name},@function
{name}:
"""

FOOTER = """.section .rodata,"a"
.p2align 6
.amdhsa_kernel {name}
  .amdhsa_next_free_vgpr 512
  .amdhsa_next_free_sgpr 102
  .amdhsa_accum_offset 256
  .amdhsa_group_segment_fixed_size 0
  .amdhsa_kernarg_size 112
  .amdhsa_user_sgpr_count 2
  .amdhsa_user_sgpr_kernarg_segment_ptr 1
  .amdhsa_system_sgpr_workgroup_id_x 1
  .amdhsa_float_denorm_mode_32 3
.end_amdhsa_kernel
"""


def main():
    ap = argparse.ArgumentParser()
    ap.add_argument("--stop", default=None)
    ap.add_argument("--stamps", action="store_true")
    ap.add_argument("-o", default="/dev/stdout")
    ap.add_argument("--opt", action="append", default=[])
    args = ap.parse_args()
    opts = {}
    for kv in args.opt:
        k, val = kv.split("=")
        opts[k] = int(val)
    g = Gen(stop=args.stop, stamps=args.stamps, opts=opts)
    body = g.build()
    txt = HEADER.format(name=NAME, lds=LDS_END) + body + FOOTER.format(name=NAME)
    with open(args.o, "w") as f:
        f.write(txt)
    print(f"instructions: {g.A.n_ins}, auto nops: {g.A.n_nops}, lds {LDS_END}", file=sys.stderr)


if __name__ == "__main__":
    main()
```

```python
import sys
import argparse
from asmdsl import Asm, v, a, s

NAME = "adaLN_cond__ssm_conv_h3__dense_activation_silu__prompt_kernel"

FL = 4096
F1, FQ, FM, F2, F3 = 0, 256, 512, 544, 800
STAMP = 0x30000
T2D = 224 * 8192
KVP = 0x40000
QP = KVP + T2D
STR = QP + T2D
STM = STR + 8192
X1P = STR + 16384
W1F = X1P + T2D
W2F = W1F + 1605632
MODF = W2F + 1605632
HF = MODF + 16384
WS_END = HF + 32 * 112 * 2048
assert WS_END < (1 << 28)

L_H2 = 0
L_TPK = 0
L_TPQ = 8704
L_TPN = 17408
L_WB = 26112
L_UR = 43520
assert L_UR + 9216 <= 57344
L_KC = 57344
CS = 4160
L_RED = L_KC + 8 * CS
L_RED2 = 0
L_XD = 69632
L_PAR = L_RED + 40960
L_STAT = L_PAR + 4096
L_GB = L_STAT + 2048
LDS_END = L_GB + 256
assert L_XD + 57344 <= L_PAR
assert LDS_END <= 163840
L_SC = 0
L_MR = 2048

S_RB, S_J, S_WV, S_CP = 4, 5, 6, 7
P_Q, P_K, P_V, P_SH, P_SK, P_D, P_BX, P_W1, P_W2, P_C, P_WM, P_OUT, P_DBG, P_WS = range(8, 36, 2)
R_WS, R_A, R_B, R_C, R_D = 36, 40, 44, 48, 52
S_NONCE = 56
S_T = 57
S_M = 80
S_MASKHI = 80
S_PERM_LO = 81
S_PERM_HI = 82
S_OFF = 84
S_SPIN = 96
S_PC = 100
S_W1B, S_W2B = 78, 79
S_XCC, S_LOCAL = 83, 95
V_W2O = (2, 253)
V_L16 = 3
S_ST0 = 98

SRD3 = 0x00020000
LOG2E = 1.4426950408889634
SPIN_MAX = 1 << 17


class Gen:
    def __init__(self, stop=None, stamps=False, opts=None):
        self.o = dict(cring=3, repf=0, burst_before_flag=0, n_burst_t2=28, n_bg_c=40, bg_b=1, nobg=0)
        self.o.update(opts or {})
        self.A = Asm()
        self.stop = stop
        self.stamps = stamps
        self.nlab = 0
        self.nstamp = 0
        self.n_burst_t2 = self.o["n_burst_t2"]
        self.n_bg_c = self.o["n_bg_c"]
        self.w2_order = list(range(41, 49)) + list(range(28, 41)) + list(range(28)) + list(range(49, 56))

    def lab(self, base):
        self.nlab += 1
        return f"L_{base}_{self.nlab}"

    def srd(self, r, ptr, nbytes, add=None):
        A = self.A
        if add is None:
            A(f"s_mov_b32 {s(r)}, {s(ptr)}")
            A(f"s_mov_b32 {s(r + 1)}, {s(ptr + 1)}")
        else:
            A(f"s_add_u32 {s(r)}, {s(ptr)}, {add}")
            A(f"s_addc_u32 {s(r + 1)}, {s(ptr + 1)}, 0")
        A(f"s_mov_b32 {s(r + 2)}, {nbytes}")
        A(f"s_mov_b32 {s(r + 3)}, 0x{SRD3:08x}")

    def stamp(self, idx):
        if not self.stamps:
            return
        A = self.A
        A(f"s_memrealtime {s(S_ST0, 2)}")
        A.wait_lgkm0()
        A(f"v_writelane_b32 v255, {s(S_ST0)}, {idx}")
        if self.o.get("cyc"):
            A(f"s_memtime {s(S_ST0, 2)}")
            A.wait_lgkm0()
            A(f"v_writelane_b32 v255, {s(S_ST0)}, {32 + idx}")

    def stamp_flush(self):
        if not self.stamps:
            return
        A = self.A
        skip = self.lab("sf")
        A(f"s_cmp_lg_u32 {s(S_WV)}, 0")
        A(f"s_cbranch_scc1 {skip}")
        A.cond_begin()
        A("v_lshlrev_b32 v254, 2, v1")
        A(f"s_lshl_b32 {s(S_SPIN + 1)}, s2, 8")
        A(f"s_add_u32 {s(S_SPIN + 1)}, {s(S_SPIN + 1)}, {STAMP}")
        A(f"buffer_store_dword v255, v254, {s(R_WS, 4)}, {s(S_SPIN + 1)} offen")
        A.cond_end()
        A.label(skip)

    def flag_store(self, soff_sgpr, vtmp=252, with_xcc=False, sc=" sc1"):
        A = self.A
        skip = self.lab("fl")
        A(f"s_cmp_lg_u32 {s(S_WV)}, 0")
        A(f"s_cbranch_scc1 {skip}")
        A.cond_begin()
        A(f"v_mov_b32 {v(vtmp)}, {s(S_NONCE)}")
        if with_xcc:
            A(f"v_mov_b32 {v(vtmp + 1)}, {s(S_XCC)}")
        A(f"v_mov_b32 {v(vtmp + 2)}, {s(soff_sgpr)}")
        A("s_mov_b64 exec, 1")
        if with_xcc:
            A(f"buffer_store_dwordx2 {v(vtmp, 2)}, {v(vtmp + 2)}, {s(R_WS, 4)}, 0 offen{sc}")
        else:
            A(f"buffer_store_dword {v(vtmp)}, {v(vtmp + 2)}, {s(R_WS, 4)}, 0 offen{sc}")
        A("s_mov_b64 exec, -1")
        A.cond_end()
        A.label(skip)

    def poll(self, vaddr, vtmp):
        A = self.A
        loop, done = self.lab("poll"), self.lab("polld")
        A(f"s_mov_b32 {s(S_SPIN)}, 0")
        A.label(loop)
        A(f"buffer_load_dword {v(vtmp)}, {v(vaddr)}, {s(R_WS, 4)}, 0 offen sc1")
        A.wait_vm(0)
        A(f"v_cmp_ne_u32 vcc, {s(S_NONCE)}, {v(vtmp)}")
        A(f"s_add_u32 {s(S_SPIN)}, {s(S_SPIN)}, 1")
        A("s_nop 3")
        A("s_cmp_eq_u64 vcc, 0")
        A(f"s_cbranch_scc1 {done}")
        A(f"s_cmp_lt_u32 {s(S_SPIN)}, {SPIN_MAX}")
        A(f"s_cbranch_scc1 {loop}")
        A.label(done)

    def code_prefetch(self):
        A = self.A
        A("v_lshlrev_b32 v253, 7, v0")
        A("v_min_u32 v253, L_code_end-L_pc-4, v253")
        A(f"global_load_dword v254, v253, {s(S_PC, 2)}")

    def finish(self):
        self.A("s_endpgm")

    def prologue(self):
        A = self.A
        A("s_cmp_ge_u32 s2, 256")
        A("s_cbranch_scc1 L_exit")
        A(f"s_load_dwordx16 {s(8, 16)}, s[0:1], 0")
        A(f"s_load_dwordx8 {s(24, 8)}, s[0:1], 64")
        A(f"s_load_dwordx4 {s(32, 4)}, s[0:1], 96")
        A(f"s_getpc_b64 {s(S_PC, 2)}")
        A.label("L_pc")
        A("v_lshlrev_b32 v253, 7, v0")
        A("v_min_u32 v253, L_code_end-L_pc-4, v253")
        A(f"global_load_dword v254, v253, {s(S_PC, 2)}")
        A("v_lshrrev_b32 v2, 6, v0")
        A("v_and_b32 v1, 63, v0")
        A(f"s_and_b32 {s(S_T)}, s2, 7")
        A(f"s_lshr_b32 {s(S_T + 1)}, s2, 3")
        A(f"v_readfirstlane_b32 {s(S_WV)}, v2")
        A(f"s_getreg_b32 {s(S_XCC)}, hwreg(HW_REG_XCC_ID, 0, 4)")
        A(f"s_mov_b32 {s(S_MASKHI)}, 0xffff0000")
        A(f"s_mov_b32 {s(S_PERM_LO)}, 0x05040100")
        A(f"s_mov_b32 {s(S_PERM_HI)}, 0x07060302")
        A(f"s_mul_i32 {s(S_T + 2)}, {s(S_T + 1)}, 37")
        A(f"s_lshr_b32 {s(S_T + 2)}, {s(S_T + 2)}, 8")
        A(f"s_mul_i32 {s(S_T + 3)}, {s(S_T + 2)}, 7")
        A(f"s_sub_u32 {s(S_J)}, {s(S_T + 1)}, {s(S_T + 3)}")
        A(f"s_lshl_b32 {s(S_RB)}, {s(S_T)}, 2")
        A(f"s_add_u32 {s(S_RB)}, {s(S_RB)}, {s(S_T + 2)}")
        A(f"s_lshl_b32 {s(S_CP)}, {s(S_J)}, 5")
        A(f"s_add_u32 {s(S_CP)}, {s(S_CP)}, {s(S_RB)}")
        A.wait_lgkm0()
        self.srd(R_WS, P_WS, WS_END)
        A(f"s_load_dword {s(S_NONCE)}, {s(P_WS, 2)}, 0")
        A(f"s_cmp_ge_u32 {s(S_T + 1)}, 28")
        A("s_cbranch_scc1 L_helper")

    def phase_p(self):
        A = self.A
        T = S_T
        NB = 2048 * 896
        t0, t1, t2 = T + 12, T + 13, T + 14
        vC, vRG, vL16, vOffO, vKa, vSh, vSa, vSb, vRow, vWa, vx = 2, 3, 4, 5, 6, 10, 11, 12, 13, 14, 15
        vK, vV, vSH, vQO, vQ, vW, vKD = 16, 36, 44, 60, 68, 84, 100
        A(f"v_and_b32 {v(vC)}, 7, v1")
        A(f"v_lshrrev_b32 {v(vRG)}, 3, v1")
        A(f"s_lshl_b32 {s(T)}, {s(S_RB)}, 6")
        A(f"s_lshl_b32 {s(T + 1)}, {s(S_WV)}, 4")
        A(f"s_add_u32 {s(T + 1)}, {s(T)}, {s(T + 1)}")
        A(f"v_lshl_add_u32 {v(vOffO)}, {v(vRG)}, 1, {s(T + 1)}")
        A(f"v_mul_u32_u24 {v(vOffO)}, 896, {v(vOffO)}")
        A(f"v_lshl_add_u32 {v(vOffO)}, {v(vC)}, 4, {v(vOffO)}")
        A(f"s_lshl_b32 {s(T + 2)}, {s(S_J)}, 7")
        A(f"v_add_u32 {v(vOffO)}, {s(T + 2)}, {v(vOffO)}")
        kad = {}
        for n_, i in enumerate((0, 1, 2, 4)):
            d = (i - 3) * 896
            kad[i] = vKa + n_
            if d < 0:
                A(f"v_subrev_u32 {v(kad[i])}, {-d}, {v(vOffO)}")
            else:
                A(f"v_add_u32 {v(kad[i])}, {d}, {v(vOffO)}")
        kad[3] = vOffO
        self.srd(R_A, P_K, NB)
        self.srd(R_B, P_V, NB)
        for i in range(5):
            A(f"buffer_load_dwordx4 {v(vK + 4 * i, 4)}, {v(kad[i])}, {s(R_A, 4)}, 0 offen")
        for i in range(2):
            A(f"buffer_load_dwordx4 {v(vV + 4 * i, 4)}, {v(vOffO)}, {s(R_B, 4)}, 0 offen offset:{896 * i}")
        self.srd(R_C, P_SH, 448 * 8)
        A(f"s_lshl_b32 {s(T + 3)}, {s(S_J)}, 9")
        A(f"v_lshl_add_u32 {v(vSh)}, {v(vC)}, 6, {s(T + 3)}")
        for i in range(4):
            A(f"buffer_load_dwordx4 {v(vSH + 4 * i, 4)}, {v(vSh)}, {s(R_C, 4)}, 0 offen offset:{16 * i}")
        self.srd(R_A, P_Q, NB)
        for r in range(2):
            A(f"buffer_load_dwordx4 {v(vQO + 4 * r, 4)}, {v(vOffO)}, {s(R_A, 4)}, 0 offen offset:{896 * r}")
        A(f"s_lshl_b32 {s(t1)}, {s(S_J)}, 3")
        A(f"s_add_u32 {s(t0)}, {s(T)}, {s(t1)}")
        A(f"s_lshl_b32 {s(t1)}, {s(S_WV)}, 2")
        A(f"s_add_u32 {s(t0)}, {s(t0)}, {s(t1)}")
        A(f"v_lshrrev_b32 {v(vRow)}, 4, v1")
        A(f"v_add_u32 {v(vRow)}, {s(t0)}, {v(vRow)}")
        A(f"v_mul_u32_u24 {v(vSa)}, 896, {v(vRow)}")
        A(f"v_and_b32 {v(vSb)}, 15, v1")
        A(f"v_lshl_add_u32 {v(vSa)}, {v(vSb)}, 4, {v(vSa)}")
        A(f"v_cmp_gt_u32 vcc, 8, {v(vSb)}")
        A(f"v_add_u32 {v(vSb)}, 768, {v(vSa)}")
        A(f"v_mov_b32 {v(vx)}, -1")
        A(f"v_cndmask_b32 {v(vSb)}, {v(vx)}, {v(vSb)}, vcc")
        for i in range(3):
            A(f"buffer_load_dwordx4 {v(vQ + 4 * i, 4)}, {v(vSa)}, {s(R_A, 4)}, 0 offen offset:{256 * i}")
        A(f"buffer_load_dwordx4 {v(vQ + 12, 4)}, {v(vSb)}, {s(R_A, 4)}, 0 offen")
        self.stamp(1)

        sWB, sSrc, sStride, sA, sR1, sD0, sDS = T + 4, T + 6, T + 7, T + 8, T + 9, T + 10, T + 11
        A(f"s_mul_i32 {s(sWB)}, {s(S_RB)}, 7")
        A(f"s_add_u32 {s(sWB)}, {s(sWB)}, {s(S_J)}")
        A(f"s_lshr_b32 {s(t0)}, {s(sWB)}, 2")
        A(f"s_and_b32 {s(t1)}, {s(sWB)}, 3")
        A(f"s_mul_i32 {s(sSrc)}, {s(t0)}, {16 * 3584}")
        A(f"s_mul_i32 {s(t2)}, {s(t1)}, 896")
        A(f"s_add_u32 {s(sSrc)}, {s(sSrc)}, {s(t2)}")
        A(f"s_mul_i32 {s(t2)}, {s(t1)}, 14")
        A(f"s_add_u32 {s(t2)}, {s(t2)}, {s(S_WV)}")
        A(f"s_mul_i32 {s(t2)}, {s(t2)}, 28")
        A(f"s_add_u32 {s(sD0)}, {s(t2)}, {s(t0)}")
        A(f"s_lshl_b32 {s(sD0)}, {s(sD0)}, 10")
        A(f"s_add_u32 {s(sD0)}, {s(sD0)}, {W1F}")
        u0, u1, u2, uSrc, uD0 = T + 16, T + 17, T + 18, T + 19, T + 20
        A(f"s_sub_u32 {s(u0)}, {s(sWB)}, 112")
        A(f"s_mul_i32 {s(uSrc)}, {s(u0)}, {16 * 896}")
        A(f"s_mul_i32 {s(u1)}, {s(u0)}, 147")
        A(f"s_lshr_b32 {s(u1)}, {s(u1)}, 12")
        A(f"s_mul_i32 {s(u2)}, {s(u1)}, 28")
        A(f"s_sub_u32 {s(u2)}, {s(u0)}, {s(u2)}")
        A(f"s_mul_i32 {s(uD0)}, {s(u1)}, 56")
        A(f"s_lshl_b32 {s(u2)}, {s(u2)}, 1")
        A(f"s_add_u32 {s(uD0)}, {s(uD0)}, {s(u2)}")
        A(f"s_lshr_b32 {s(u1)}, {s(S_WV)}, 1")
        A(f"s_mul_i32 {s(u1)}, {s(u1)}, 224")
        A(f"s_add_u32 {s(uD0)}, {s(uD0)}, {s(u1)}")
        A(f"s_and_b32 {s(u1)}, {s(S_WV)}, 1")
        A(f"s_add_u32 {s(uD0)}, {s(uD0)}, {s(u1)}")
        A(f"s_lshl_b32 {s(uD0)}, {s(uD0)}, 10")
        A(f"s_add_u32 {s(uD0)}, {s(uD0)}, {W2F}")
        A(f"s_cmp_ge_u32 {s(sWB)}, 112")
        A(f"s_cselect_b32 {s(sSrc)}, {s(uSrc)}, {s(sSrc)}")
        A(f"s_cselect_b32 {s(sD0)}, {s(uD0)}, {s(sD0)}")
        A(f"s_mov_b32 {s(sStride)}, 3584")
        A(f"s_cselect_b32 {s(sStride)}, 896, {s(sStride)}")
        A(f"s_cselect_b32 {s(sA)}, 4, 8")
        A(f"s_mov_b32 {s(sR1)}, {4 * 1088}")
        A(f"s_cselect_b32 {s(sR1)}, {8 * 1088}, {s(sR1)}")
        A(f"s_mov_b32 {s(sDS)}, {112 * 1024}")
        A(f"s_cselect_b32 {s(sDS)}, {448 * 1024}, {s(sDS)}")
        A(f"s_cselect_b32 {s(R_D)}, {s(P_W2)}, {s(P_W1)}")
        A(f"s_cselect_b32 {s(R_D + 1)}, {s(P_W2 + 1)}, {s(P_W1 + 1)}")
        A(f"s_mov_b32 {s(R_D + 2)}, 1605632")
        A(f"s_mov_b32 {s(R_D + 3)}, 0x{SRD3:08x}")
        A(f"s_lshl_b32 {s(t0)}, {s(S_WV)}, 2")
        A(f"s_mul_i32 {s(t0)}, {s(t0)}, {s(sStride)}")
        A(f"s_add_u32 {s(sSrc)}, {s(sSrc)}, {s(t0)}")
        A(f"v_lshlrev_b32 {v(vL16)}, 4, v1")
        A(f"v_add_u32 {v(vWa)}, {s(sSrc)}, {v(vL16)}")
        A(f"s_lshl_b32 {s(t0)}, {s(S_CP)}, 13")
        self.srd(R_B, P_SK, 4096, add=s(t0))
        A(f"s_add_u32 {s(t0)}, {s(t0)}, 4096")
        self.srd(R_C, P_SK, 4096, add=s(t0))
        vKA, vKB, vKA2, vKB2 = 132, 133, 134, 135
        A(f"v_lshlrev_b32 {v(vKA)}, 4, v0")
        A(f"v_subrev_u32 {v(vKB)}, 16, {v(vKA)}")
        A(f"v_subrev_u32 {v(vKA)}, 32, {v(vKA)}")
        A(f"v_and_b32 {v(vKA2)}, 1, v1")
        A(f"v_lshlrev_b32 {v(vKA2)}, 4, {v(vKA2)}")
        A(f"v_add_u32 {v(vKB2)}, 4080, {v(vKA2)}")
        vTPW, vWw, vTPR, vStO, vTR0, vTR1, vKW = 136, 137, 138, 139, 140, 141, 142
        A(f"v_add_u32 {v(vKW + 1)}, {4096 + L_KC}, {v(vKA2)}")
        A(f"v_add_u32 {v(vKA2)}, 4064, {v(vKA2)}")
        A(f"v_lshlrev_b32 {v(vKW)}, 4, v0")
        A(f"v_add_u32 {v(vKW)}, {L_KC}, {v(vKW)}")
        A(f"v_mul_u32_u24 {v(vTPW)}, 1088, {v(vC)}")
        A(f"v_lshl_add_u32 {v(vTPW)}, {v(vRG)}, 3, {v(vTPW)}")
        A(f"s_lshl_b32 {s(t0)}, {s(S_WV)}, 6")
        A(f"v_add_u32 {v(vTPW)}, {s(t0)}, {v(vTPW)}")
        A(f"s_mul_i32 {s(t1)}, {s(S_WV)}, {4 * 1088}")
        A(f"v_add_u32 {v(vWw)}, {s(t1)}, {v(vL16)}")
        A(f"v_lshrrev_b32 {v(vStO)}, 4, v0")
        A(f"v_mul_u32_u24 {v(vTPR)}, 272, {v(vStO)}")
        A(f"v_and_b32 {v(vx)}, 15, v0")
        A(f"v_lshl_add_u32 {v(vTPR)}, {v(vx)}, 4, {v(vTPR)}")
        A(f"v_lshlrev_b32 {v(vStO)}, 13, {v(vStO)}")
        A(f"v_lshl_add_u32 {v(vStO)}, {v(vx)}, 4, {v(vStO)}")
        A(f"v_lshrrev_b32 {v(vTR0)}, 5, v1")
        A(f"v_mul_lo_u32 {v(vTR0)}, {v(vTR0)}, {s(sA)}")
        A(f"v_bfe_u32 {v(vx)}, v1, 2, 2")
        A(f"v_add_u32 {v(vTR0)}, {v(vTR0)}, {v(vx)}")
        A(f"v_mul_u32_u24 {v(vTR0)}, 1088, {v(vTR0)}")
        A(f"v_bfe_u32 {v(vx)}, v1, 4, 1")
        A(f"v_lshl_add_u32 {v(vTR0)}, {v(vx)}, 5, {v(vTR0)}")
        A(f"v_and_b32 {v(vx)}, 3, v1")
        A(f"v_lshl_add_u32 {v(vTR0)}, {v(vx)}, 3, {v(vTR0)}")
        A(f"v_add_u32 {v(vTR0)}, {s(t0)}, {v(vTR0)}")
        A(f"v_add_u32 {v(vTR1)}, {s(sR1)}, {v(vTR0)}")
        sTile = S_OFF
        A(f"s_lshl_b32 {s(sTile)}, {s(S_J)}, 18")
        A(f"s_lshl_b32 {s(t0)}, {s(S_RB)}, 8")
        A(f"s_add_u32 {s(sTile)}, {s(sTile)}, {s(t0)}")
        A(f"v_lshlrev_b32 {v(vRow)}, 2, {v(vRow)}")
        A("v_mov_b32 v240, 0")
        A("v_mov_b32 v241, 0")
        A("v_lshlrev_b32 v242, 3, v1")
        for e in range(2):
            A(f"ds_write_b64 v242, v[240:241] offset:{L_UR + 4608 * e + 4096}")

        TT, WP, AC, vO = 144, 184, 216, 232
        A.await_regs(v(vSH, 16))
        for p in range(4):
            for e in range(2):
                d0 = vSH + 2 * (2 * p + e)
                w = WP + 8 * p
                A(f"v_lshlrev_b32 {v(w + 0 + e)}, 16, {v(d0)}")
                A(f"v_and_b32 {v(w + 2 + e)}, {s(S_MASKHI)}, {v(d0)}")
                A(f"v_lshlrev_b32 {v(w + 4 + e)}, 16, {v(d0 + 1)}")
                A(f"v_and_b32 {v(w + 6 + e)}, {s(S_MASKHI)}, {v(d0 + 1)}")
        self.stamp(21)
        for i in range(5):
            for p in range(4):
                src = vK + 4 * i + p
                A(f"v_lshlrev_b32 {v(TT + 10 * p + 2 * i)}, 16, {v(src)}")
                A(f"v_and_b32 {v(TT + 10 * p + 2 * i + 1)}, {s(S_MASKHI)}, {v(src)}")
        for tap in range(4):
            for p in range(4):
                for row in range(2):
                    acc = AC + 4 * p + 2 * row
                    x = v(TT + 10 * p + 2 * (3 + row - tap), 2)
                    w = v(WP + 8 * p + 2 * tap, 2)
                    if tap == 0:
                        A(f"v_pk_mul_f32 {v(acc, 2)}, {x}, {w}")
                    else:
                        A(f"v_pk_fma_f32 {v(acc, 2)}, {x}, {w}, {v(acc, 2)}")
        for row in range(2):
            for p in range(4):
                src = vV + 4 * row + p
                A(f"v_lshlrev_b32 {v(TT + 10 * p + 2 * row)}, 16, {v(src)}")
                A(f"v_and_b32 {v(TT + 10 * p + 2 * row + 1)}, {s(S_MASKHI)}, {v(src)}")
        for p in range(4):
            for row in range(2):
                acc = AC + 4 * p + 2 * row
                A(f"v_pk_mul_f32 {v(acc, 2)}, {v(acc, 2)}, {v(TT + 10 * p + 2 * row, 2)}")
        for p in range(4):
            for row in range(2):
                acc = AC + 4 * p + 2 * row
                A(f"v_cvt_pk_bf16_f32 {v(vO + 2 * p + row)}, {v(acc)}, {v(acc + 1)}")
        for p in range(4):
            A(f"ds_write_b64 {v(vTPW)}, {v(vO + 2 * p, 2)} offset:{L_TPK + 272 * p}")
        self.stamp(22)
        A(f"v_add_u32 {v(vx)}, {L_TPQ}, {v(vTPW)}")
        A.await_regs(v(vQO, 8))
        for p in range(4):
            A(f"ds_write2_b32 {v(vx)}, {v(vQO + p)}, {v(vQO + 4 + p)} offset0:{68 * p} offset1:{68 * p + 1}")
        vS, vU = 240, 144
        A.await_regs(v(vQ, 16))
        for i in range(16):
            A(f"v_lshlrev_b32 {v(vU + 2 * i)}, 16, {v(vQ + i)}")
            A(f"v_and_b32 {v(vU + 2 * i + 1)}, {s(S_MASKHI)}, {v(vQ + i)}")
        S1, S2 = (240, 242), (244, 246)
        for i in range(16):
            u = v(vU + 2 * i, 2)
            if i < 2:
                A(f"v_pk_mul_f32 {v(S2[i], 2)}, {u}, {u}")
            else:
                A(f"v_pk_fma_f32 {v(S2[i & 1], 2)}, {u}, {u}, {v(S2[i & 1], 2)}")
            if i in (2, 3):
                A(f"v_pk_add_f32 {v(S1[i & 1], 2)}, {v(vU + 2 * (i - 2), 2)}, {u}")
            elif i > 3:
                A(f"v_pk_add_f32 {v(S1[i & 1], 2)}, {v(S1[i & 1], 2)}, {u}")
        A(f"v_pk_add_f32 {v(240, 2)}, {v(240, 2)}, {v(242, 2)}")
        A(f"v_pk_add_f32 {v(244, 2)}, {v(244, 2)}, {v(246, 2)}")
        m, q2 = 240, 244
        A(f"v_add_f32 {v(m)}, {v(m)}, {v(m + 1)}")
        A(f"v_add_f32 {v(q2)}, {v(q2)}, {v(q2 + 1)}")
        for mod in ("quad_perm:[1,0,3,2]", "quad_perm:[2,3,0,1]", "row_half_mirror", "row_mirror"):
            for c_ in (m, q2):
                A(f"v_add_f32_dpp {v(c_)}, {v(c_)}, {v(c_)} {mod} row_mask:0xf bank_mask:0xf")
        A(f"s_mov_b32 {s(t0)}, 0x{f32bits(1.0 / 448):08x}")
        A(f"s_mov_b32 {s(t1)}, 0x{f32bits(1e-5):08x}")
        A(f"v_mul_f32 {v(m)}, {s(t0)}, {v(m)}")
        A(f"v_mul_f32 {v(q2)}, {s(t0)}, {v(q2)}")
        A(f"v_fma_f32 {v(q2)}, -{v(m)}, {v(m)}, {v(q2)}")
        A(f"v_max_f32 {v(q2)}, 0, {v(q2)}")
        A(f"v_add_f32 {v(q2)}, {s(t1)}, {v(q2)}")
        A(f"v_rsq_f32 {v(q2)}, {v(q2)}")
        A.barrier()
        self.stamp(23)
        vRB = 16
        for i in range(2):
            A(f"ds_read_b128 {v(vRB + 4 * i, 4)}, {v(vTPR)} offset:{L_TPK + 4352 * i}")
        for i in range(2):
            A(f"ds_read_b128 {v(vRB + 8 + 4 * i, 4)}, {v(vTPR)} offset:{L_TPQ + 4352 * i}")
        A(f"v_mul_f32 {v(m)}, {v(m)}, {v(q2)}")
        A(f"s_add_u32 {s(t0)}, {s(sTile)}, {KVP}")
        A(f"s_add_u32 {s(t1)}, {s(sTile)}, {KVP + 131072}")
        A(f"s_add_u32 {s(t2)}, {s(sTile)}, {QP}")
        A(f"s_add_u32 {s(u0)}, {s(sTile)}, {QP + 131072}")
        A.await_regs(v(vRB, 8))
        A(f"buffer_store_dwordx4 {v(vRB, 4)}, {v(vStO)}, {s(R_WS, 4)}, {s(t0)} offen sc1")
        A(f"buffer_store_dwordx4 {v(vRB + 4, 4)}, {v(vStO)}, {s(R_WS, 4)}, {s(t1)} offen sc1")
        A.await_regs(v(vRB + 8, 8))
        A(f"buffer_store_dwordx4 {v(vRB + 8, 4)}, {v(vStO)}, {s(R_WS, 4)}, {s(t2)} offen sc1")
        A(f"buffer_store_dwordx4 {v(vRB + 12, 4)}, {v(vStO)}, {s(R_WS, 4)}, {s(u0)} offen sc1")
        A(f"s_mov_b32 {s(t0)}, {STR}")
        A(f"s_mov_b32 {s(t1)}, {STM}")
        A(f"s_mov_b32 exec_lo, 0x00010001")
        A(f"s_mov_b32 exec_hi, 0x00010001")
        A(f"buffer_store_dword {v(q2)}, {v(vRow)}, {s(R_WS, 4)}, {s(t0)} offen sc1")
        A(f"buffer_store_dword {v(m)}, {v(vRow)}, {s(R_WS, 4)}, {s(t1)} offen sc1")
        A("s_mov_b64 exec, -1")
        self.stamp(24)
        mark = A.vm_count
        for i in range(4):
            A(f"buffer_load_dwordx4 {v(vW + 4 * i, 4)}, {v(vWa)}, {s(R_D, 4)}, 0 offen")
            if i < 3:
                A(f"v_add_u32 {v(vWa)}, {s(sStride)}, {v(vWa)}")
        for e in range(2):
            R = R_B if e == 0 else R_C
            for ps in range(2):
                b = vKD + 8 * (2 * e + ps)
                A(f"buffer_load_dwordx4 {v(b, 4)}, {v(vKA if ps == 0 else vKA2)}, {s(R, 4)}, 0 offen")
                A(f"buffer_load_dwordx2 {v(b + 4, 2)}, {v(vKB if ps == 0 else vKB2)}, {s(R, 4)}, 0 offen")
        A(f"s_add_u32 {s(S_NONCE)}, {s(S_NONCE)}, 1")
        A(f"s_lshl_b32 {s(t0)}, {s(S_CP)}, 7")
        A(f"s_add_u32 {s(t0)}, {s(t0)}, {FL + F1 * 128}")
        A.wait_vm(A.vm_count - mark)
        A.barrier()
        self.flag_store(t0, with_xcc=True)
        self.stamp(3)
        A.await_regs(v(vW, 16))
        for i in range(4):
            A(f"ds_write_b128 {v(vWw)}, {v(vW + 4 * i, 4)} offset:{L_WB + 1088 * i}")
        vx4 = 48
        for e in range(2):
            for ps in range(2):
                b = vKD + 8 * (2 * e + ps)
                base = e * 4 * CS
                ad = vKW + ps
                A.await_regs(v(b, 6))
                for i in range(4):
                    A(f"v_alignbit_b32 {v(vx4 + i)}, {v(b + i + 1)}, {v(b + i)}, 16")
                for i in range(4):
                    A(f"v_mov_b32 {v(vx4 + 4 + i)}, {v(b + i + 1)}")
                for i in range(4):
                    A(f"v_alignbit_b32 {v(vx4 + 8 + i)}, {v(b + i + 2)}, {v(b + i + 1)}, 16")
                A(f"ds_write_b128 {v(ad)}, {v(b, 4)} offset:{base}")
                A(f"ds_write_b128 {v(ad)}, {v(vx4, 4)} offset:{base + CS}")
                A(f"ds_write_b128 {v(ad)}, {v(vx4 + 4, 4)} offset:{base + 2 * CS}")
                A(f"ds_write_b128 {v(ad)}, {v(vx4 + 8, 4)} offset:{base + 3 * CS}")
        A.barrier()
        self.stamp(25)
        vF = 32
        for i in range(4):
            A(f"ds_read_b64_tr_b16 {v(vF + 4 * i, 2)}, {v(vTR0)} offset:{L_WB + 256 * i}")
            A(f"ds_read_b64_tr_b16 {v(vF + 4 * i + 2, 2)}, {v(vTR1)} offset:{L_WB + 256 * i}")
        A.await_regs(v(vF, 16))
        for i in range(3):
            A(f"buffer_store_dwordx4 {v(vF + 4 * i, 4)}, {v(vL16)}, {s(R_WS, 4)}, {s(sD0)} offen sc1")
            A(f"s_add_u32 {s(sD0)}, {s(sD0)}, {s(sDS)}")
        skip = self.lab("w4")
        A(f"s_cmp_ge_u32 {s(S_WV)}, 2")
        A(f"s_cbranch_scc1 {skip}")
        A.cond_begin()
        A(f"buffer_store_dwordx4 {v(vF + 12, 4)}, {v(vL16)}, {s(R_WS, 4)}, {s(sD0)} offen sc1")
        A.cond_end()
        A.label(skip)
        self.sWB = sWB
        self.stamp(26)

    def poll2_issue(self, va, vb, vt):
        A = self.A
        A(f"buffer_load_dword {v(vt)}, {v(va)}, {s(R_WS, 4)}, 0 offen sc1")
        A(f"buffer_load_dword {v(vt + 1)}, {v(vb)}, {s(R_WS, 4)}, 0 offen sc1")

    def poll1_check(self, va, vt):
        A = self.A
        done = self.lab("p1d")
        A(f"v_cmp_ne_u32 vcc, {s(S_NONCE)}, {v(vt)}")
        A("s_nop 1")
        A("s_cmp_eq_u64 vcc, 0")
        A(f"s_cbranch_scc1 {done}")
        st = A.snapshot()
        self.poll(va, vt)
        A.restore(st)
        A.label(done)

    def poll2_check(self, va, vb, vt):
        A = self.A
        loop, done = self.lab("p2"), self.lab("p2d")
        A(f"v_cmp_ne_u32 vcc, {s(S_NONCE)}, {v(vt)}")
        A(f"v_cmp_ne_u32 {s(S_SPIN + 2, 2)}, {s(S_NONCE)}, {v(vt + 1)}")
        A(f"s_mov_b32 {s(S_SPIN)}, 0")
        A("s_nop 1")
        A(f"s_or_b64 vcc, vcc, {s(S_SPIN + 2, 2)}")
        A("s_cmp_eq_u64 vcc, 0")
        A(f"s_cbranch_scc1 {done}")
        st = A.snapshot()
        A.label(loop)
        A(f"buffer_load_dword {v(vt)}, {v(va)}, {s(R_WS, 4)}, 0 offen sc1")
        A(f"buffer_load_dword {v(vt + 1)}, {v(vb)}, {s(R_WS, 4)}, 0 offen sc1")
        A.wait_vm(0)
        A(f"v_cmp_ne_u32 vcc, {s(S_NONCE)}, {v(vt)}")
        A(f"v_cmp_ne_u32 {s(S_SPIN + 2, 2)}, {s(S_NONCE)}, {v(vt + 1)}")
        A(f"s_add_u32 {s(S_SPIN)}, {s(S_SPIN)}, 1")
        A("s_nop 1")
        A(f"s_or_b64 vcc, vcc, {s(S_SPIN + 2, 2)}")
        A("s_cmp_eq_u64 vcc, 0")
        A(f"s_cbranch_scc1 {done}")
        A(f"s_cmp_lt_u32 {s(S_SPIN)}, {SPIN_MAX}")
        A(f"s_cbranch_scc1 {loop}")
        A.restore(st)
        A.label(done)

    def phase_a(self):
        A = self.A
        T = S_T
        t0, t1, t2 = T, T + 1, T + 2
        vPa, vPt, vx, vy = 2, 3, 16, 17
        A(f"v_min_u32 {v(vPa)}, 55, v1")
        A(f"s_mul_i32 {s(t0)}, {s(S_WV)}, 56")
        A(f"v_add_u32 {v(vPa)}, {s(t0)}, {v(vPa)}")
        A(f"v_lshlrev_b32 {v(vPa)}, 7, {v(vPa)}")
        A(f"v_add_u32 {v(vPa)}, {FL + F1 * 128}, {v(vPa)}")
        vL16 = 4
        sKV = S_OFF + 2
        A(f"s_lshl_b32 {s(sKV)}, {s(S_CP)}, 13")
        A(f"s_lshl_b32 {s(t2)}, {s(S_WV)}, 11")
        A(f"s_add_u32 {s(sKV)}, {s(sKV)}, {s(t2)}")
        vUW, vaA, vaB = 5, 6, 7
        A(f"s_lshl_b32 {s(t0)}, {s(S_WV)}, 10")
        A(f"s_sub_u32 {s(t0)}, {4088 - 512}, {s(t0)}")
        A(f"v_lshlrev_b32 {v(vx)}, 3, v1")
        A(f"v_sub_u32 {v(vUW)}, {s(t0)}, {v(vx)}")
        A(f"v_and_b32 {v(vx)}, 15, v1")
        A(f"v_add_u32 {v(vx)}, 1, {v(vx)}")
        A(f"v_and_b32 {v(vy)}, 3, {v(vx)}")
        A(f"v_sub_u32 {v(vx)}, {v(vx)}, {v(vy)}")
        A(f"v_lshlrev_b32 {v(vx)}, 1, {v(vx)}")
        A(f"v_mul_u32_u24 {v(vy)}, {CS}, {v(vy)}")
        A(f"v_add_u32 {v(vaA)}, {v(vx)}, {v(vy)}")
        A(f"v_lshrrev_b32 {v(vy)}, 4, v1")
        A(f"v_lshl_add_u32 {v(vaA)}, {v(vy)}, 4, {v(vaA)}")
        A(f"s_lshr_b32 {s(t0)}, {s(S_WV)}, 1")
        A(f"s_and_b32 {s(t1)}, {s(S_WV)}, 1")
        A(f"s_mul_i32 {s(t2)}, {s(t0)}, {4 * CS}")
        A(f"s_lshl_b32 {s(t1)}, {s(t1)}, 8")
        A(f"s_add_u32 {s(t2)}, {s(t2)}, {s(t1)}")
        A(f"s_add_u32 {s(t2)}, {s(t2)}, {L_KC}")
        A(f"v_add_u32 {v(vaA)}, {s(t2)}, {v(vaA)}")
        A(f"v_and_b32 {v(vx)}, 15, v1")
        A(f"v_lshlrev_b32 {v(vx)}, 5, {v(vx)}")
        A(f"v_lshlrev_b32 {v(vy)}, 4, {v(vy)}")
        A(f"v_sub_u32 {v(vaB)}, {v(vy)}, {v(vx)}")
        A(f"s_mul_i32 {s(t2)}, {s(t0)}, 4608")
        A(f"s_add_u32 {s(t2)}, {s(t2)}, {s(t1)}")
        A(f"s_add_u32 {s(t2)}, {s(t2)}, {L_UR + 480}")
        A(f"v_add_u32 {v(vaB)}, {s(t2)}, {v(vaB)}")
        vPW, vPM, vPR = 18, 19, 20
        A(f"v_add_u32 {v(vPW)}, {(FQ - F1) * 128}, {v(vPa)}")
        A(f"v_and_b32 {v(vPM)}, 31, v1")
        A(f"v_lshlrev_b32 {v(vPM)}, 7, {v(vPM)}")
        A(f"v_add_u32 {v(vPM)}, {FL + FM * 128}, {v(vPM)}")
        A(f"s_add_u32 {s(t1)}, {s(sKV)}, {KVP}")
        A(f"s_lshl_b32 {s(t0)}, {s(self.sWB)}, 7")
        A(f"s_add_u32 {s(t0)}, {s(t0)}, {FL + FQ * 128}")
        self.poll(vPa, vPt)
        A.barrier()
        self.flag_store(t0)
        self.stamp(5)
        vKV = 8
        for h in range(2):
            A(f"buffer_load_dwordx4 {v(vKV + 4 * h, 4)}, {v(vL16)}, {s(R_WS, 4)}, {s(t1)} offen offset:{1024 * h} sc1")
        vQn, vRs, vMs = 144, 152, 160
        A(f"s_add_u32 {s(t1)}, {s(sKV)}, {QP}")
        for h in range(2):
            A(f"buffer_load_dwordx4 {v(vQn + 4 * h, 4)}, {v(vL16)}, {s(R_WS, 4)}, {s(t1)} offen offset:{1024 * h} sc1")
        A(f"s_lshl_b32 {s(t0)}, {s(S_WV)}, 11")
        A(f"s_add_u32 {s(t1)}, {s(t0)}, {STR}")
        A(f"s_add_u32 {s(t2)}, {s(t0)}, {STM}")
        for h in range(2):
            A(f"buffer_load_dwordx4 {v(vRs + 4 * h, 4)}, {v(vL16)}, {s(R_WS, 4)}, {s(t1)} offen offset:{1024 * h} sc1")
            A(f"buffer_load_dwordx4 {v(vMs + 4 * h, 4)}, {v(vL16)}, {s(R_WS, 4)}, {s(t2)} offen offset:{1024 * h} sc1")
        vXc = 30
        A(f"v_min_u32 {v(vXc)}, 6, v1")
        A(f"v_lshlrev_b32 {v(vXc)}, 12, {v(vXc)}")
        A(f"s_lshl_b32 {s(t0)}, {s(S_RB)}, 7")
        A(f"s_add_u32 {s(t0)}, {s(t0)}, {FL + F1 * 128 + 4}")
        A(f"buffer_load_dword {v(vXc + 1)}, {v(vXc)}, {s(R_WS, 4)}, {s(t0)} offen sc1")
        vP = 22
        A.await_regs(v(vKV, 8))
        for h in range(2):
            d = vKV + 4 * h
            for e, sel in ((0, S_PERM_LO), (1, S_PERM_HI)):
                o = vP + 4 * h + 2 * e
                A(f"v_perm_b32 {v(o)}, {v(d + 2)}, {v(d + 3)}, {s(sel)}")
                A(f"v_perm_b32 {v(o + 1)}, {v(d)}, {v(d + 1)}, {s(sel)}")
        for h in range(2):
            for e in range(2):
                o = vP + 4 * h + 2 * e
                A(f"ds_write_b64 {v(vUW)}, {v(o, 2)} offset:{L_UR + 4608 * e + (512 if h == 0 else 0)}")
        A.barrier()
        self.stamp(6)
        ACC = 32
        BS = [64, 96]
        AR = 128

        def ldB(rp, m):
            A(f"ds_read_b128 {v(BS[rp & 1] + 4 * m, 4)}, {v(vaB)} offset:{64 * rp + 512 * (7 - m)}")

        def ldA(idx):
            rp, q = divmod(idx, 8)
            r = AR + 4 * (idx % 4)
            A(f"ds_read_b64 {v(r, 2)}, {v(vaA)} offset:{64 * rp + 512 * q}")
            A(f"ds_read_b64 {v(r + 2, 2)}, {v(vaA)} offset:{64 * rp + 512 * q + 8}")

        ldA(0)
        for m in range(8):
            ldB(0, m)
        ldA(1)
        ldA(2)
        vPS, vPA, vPG, vPD, vPar = 168, 170, 172, 174, 176
        nm = 0
        for rp in range(4):
            if rp == 1:
                A(f"buffer_load_dword {v(vPR + 1)}, {v(vPM)}, {s(R_WS, 4)}, 0 offen sc1")
            if rp == 3:
                A(f"buffer_load_dword {v(vPR)}, {v(vPW)}, {s(R_WS, 4)}, 0 offen sc1")
            if rp == 2:
                self.poll1_check(vPM, vPR + 1)
                A(f"s_lshl_b32 {s(t0)}, {s(S_CP)}, 3")
                A(f"v_mov_b32 {v(vx)}, {s(t0)}")
                for reg, sec in ((vPS, 0), (vPA, 1), (vPG, 2)):
                    A(f"s_mov_b32 {s(t1)}, {MODF + sec * 1792}")
                    A(f"buffer_load_dwordx2 {v(reg, 2)}, {v(vx)}, {s(R_WS, 4)}, {s(t1)} offen sc1")
                self.srd(R_A, P_D, 896)
                A(f"s_lshl_b32 {s(t0)}, {s(S_CP)}, 2")
                A(f"v_mov_b32 {v(vy)}, {s(t0)}")
                A(f"buffer_load_dword {v(vPD + 1)}, {v(vy)}, {s(R_A, 4)}, 0 offen")
                A(f"v_lshlrev_b32 {v(vx)}, 3, v0")
                A(f"s_mov_b32 {s(t0)}, {MODF + 4 * 1792}")
                A(f"s_mov_b32 {s(t1)}, {MODF + 3 * 1792}")
                A(f"buffer_load_dwordx2 {v(vPar, 2)}, {v(vx)}, {s(R_WS, 4)}, {s(t0)} offen sc1")
                A(f"buffer_load_dwordx2 {v(vPar + 2, 2)}, {v(vx)}, {s(R_WS, 4)}, {s(t1)} offen sc1")
                A(f"v_lshlrev_b32 {v(vy)}, 2, v1")
                A(f"s_lshl_b32 {s(t0)}, {s(S_J)}, 8")
                A(f"s_add_u32 {s(t0)}, {s(t0)}, {MODF + 5 * 1792}")
                A(f"buffer_load_dword {v(vPar + 4)}, {v(vy)}, {s(R_WS, 4)}, {s(t0)} offen sc1")
                self.bg_setup()
            for q in range(8):
                idx = rp * 8 + q
                ar = AR + 4 * (idx % 4)
                first = True
                for n in range(q, 8):
                    c = "0" if (rp == 0 and q == 0) else v(ACC + 4 * n, 4)
                    if first:
                        regs = [v(ar, 4)]
                        if q == 0:
                            regs.append(v(BS[rp & 1], 32))
                        A.await_regs(*regs)
                    A(f"v_mfma_f32_16x16x32_bf16 {v(ACC + 4 * n, 4)}, {v(ar, 4)}, {v(BS[rp & 1] + 4 * (n - q), 4)}, {c}")
                    nm += 1
                    if first:
                        first = False
                        if idx + 3 < 32:
                            ldA(idx + 3)
                        if rp < 3 and 0 <= q <= 3:
                            ldB(rp + 1, 2 * q)
                            ldB(rp + 1, 2 * q + 1)
                    if rp >= 2 and self.o.get("conv_pace", 0) and nm % self.o["conv_pace"] == 0:
                        self.bg_emit(1)
        self.stamp(7)
        vRW, vRR, vSt = 183, 19, 184
        A(f"v_and_b32 {v(vx)}, 15, v1")
        A(f"v_mul_u32_u24 {v(vRW)}, 80, {v(vx)}")
        A(f"v_lshrrev_b32 {v(vy)}, 4, v1")
        A(f"v_lshl_add_u32 {v(vRW)}, {v(vy)}, 4, {v(vRW)}")
        A(f"s_mul_i32 {s(t0)}, {s(S_WV)}, 10240")
        A(f"s_add_u32 {s(t0)}, {s(t0)}, {L_RED}")
        A(f"v_add_u32 {v(vRW)}, {s(t0)}, {v(vRW)}")
        A(f"v_mul_u32_u24 {v(vSt)}, 57344, {v(vy)}")
        A(f"v_lshl_add_u32 {v(vSt)}, {v(vx)}, 4, {v(vSt)}")
        for n in range(8):
            A(f"ds_write_b128 {v(vRW)}, {v(ACC + 4 * n, 4)} offset:{1280 * n}")
        A(f"v_lshrrev_b32 {v(vx)}, 2, v1")
        A(f"v_mul_u32_u24 {v(vRR)}, 80, {v(vx)}")
        A(f"v_and_b32 {v(vy)}, 3, v1")
        A(f"v_lshl_add_u32 {v(vRR)}, {v(vy)}, 4, {v(vRR)}")
        A(f"s_mul_i32 {s(t0)}, {s(S_WV)}, 2560")
        A(f"s_add_u32 {s(t0)}, {s(t0)}, {L_RED}")
        A(f"v_add_u32 {v(vRR)}, {s(t0)}, {v(vRR)}")
        sX = S_OFF + 3
        A(f"s_mul_i32 {s(sX)}, {s(S_WV)}, {2 * 229376}")
        A(f"s_lshl_b32 {s(t0)}, {s(S_CP)}, 8")
        A(f"s_add_u32 {s(sX)}, {s(sX)}, {s(t0)}")
        A(f"s_add_u32 {s(sX)}, {s(sX)}, {X1P}")
        A(f"s_add_u32 {s(t1)}, {s(sX)}, 229376")
        U, Q, N = 64, 80, 200
        A.await_regs(v(vQn, 8), v(vRs, 8), v(vMs, 8), v(vPS, 2), v(vPA, 2), v(vPG, 2), v(vPD + 1))
        A(f"v_lshlrev_b32 {v(vPD)}, 16, {v(vPD + 1)}")
        A(f"v_and_b32 {v(vPD + 1)}, {s(S_MASKHI)}, {v(vPD + 1)}")
        for h in range(2):
            for e in range(2):
                for r in range(4):
                    for dst, src in ((U, vKV), (Q, vQn)):
                        d = dst + 8 * h + 4 * e + r
                        if e == 0:
                            A(f"v_lshlrev_b32 {v(d)}, 16, {v(src + 4 * h + r)}")
                        else:
                            A(f"v_and_b32 {v(d)}, {s(S_MASKHI)}, {v(src + 4 * h + r)}")
        for h in range(2):
            for e in range(2):
                for k in (0, 2):
                    o = 8 * h + 4 * e + k
                    A(f"v_pk_fma_f32 {v(N + o, 2)}, {v(Q + o, 2)}, {v(vRs + 4 * h + k, 2)}, {v(vMs + 4 * h + k, 2)} neg_lo:[0,0,1] neg_hi:[0,0,1]")
        for h in range(2):
            for e in range(2):
                for k in (0, 2):
                    o = 8 * h + 4 * e + k
                    A(f"v_pk_fma_f32 {v(N + o, 2)}, {v(N + o, 2)}, {v(vPA, 2)}, {v(vPS, 2)} op_sel:[0,{e},{e}] op_sel_hi:[1,{e},{e}]")
        for h in range(2):
            for e in range(2):
                for k in (0, 2):
                    o = 8 * h + 4 * e + k
                    A(f"v_pk_mul_f32 {v(N + o, 2)}, {v(N + o, 2)}, {v(vPG, 2)} op_sel:[0,{e}] op_sel_hi:[1,{e}]")
        self.poll1_check(vPW, vPR)
        A.barrier()
        self.stamp(30)
        vY = 96
        for h in range(2):
            for w in range(4):
                A(f"ds_read_b128 {v(vY + 16 * h + 4 * w, 4)}, {v(vRR)} offset:{10240 * w + 1280 * h}")
        A(f"s_mov_b32 {s(t2)}, 0x{f32bits(LOG2E):08x}")
        A(f"v_lshlrev_b32 {v(vx)}, 4, v0")
        A(f"v_add_u32 {v(vx)}, {L_PAR}, {v(vx)}")
        A(f"v_lshlrev_b32 {v(vy)}, 2, v1")
        A(f"v_add_u32 {v(vy)}, {L_GB}, {v(vy)}")
        A.await_regs(v(vPar, 4), v(vPar + 4))
        for r_ in range(vPar, vPar + 4):
            A(f"v_mul_f32 {v(r_)}, {s(t2)}, {v(r_)}")
        A(f"ds_write_b128 {v(vx)}, {v(vPar, 4)}")
        A(f"ds_write_b32 {v(vy)}, {v(vPar + 4)}")
        vOut = 128
        for h in range(2):
            A.await_regs(v(vY + 16 * h, 16))
            ys = [(e, k, vY + 16 * h + 8 * e + k, 8 * h + 4 * e + k) for e in range(2) for k in (0, 2)]
            for e, k, y, o in ys:
                A(f"v_pk_add_f32 {v(y, 2)}, {v(y, 2)}, {v(y + 4, 2)}")
            for e, k, y, o in ys:
                A(f"v_pk_fma_f32 {v(y, 2)}, {v(U + o, 2)}, {v(vPD, 2)}, {v(y, 2)} op_sel:[0,{e},0] op_sel_hi:[1,{e},1]")
            for e, k, y, o in ys:
                A(f"v_pk_fma_f32 {v(y, 2)}, {v(N + o, 2)}, {v(y, 2)}, {v(Q + o, 2)}")
            for r in range(4):
                A(f"v_cvt_pk_bf16_f32 {v(vOut + 4 * h + r)}, {v(vY + 16 * h + r)}, {v(vY + 16 * h + 8 + r)}")
            A(f"buffer_store_dwordx4 {v(vOut + 4 * h, 4)}, {v(vSt)}, {s(R_WS, 4)}, {s(sX if h == 0 else t1)} offen sc1")
        self.stamp(8)
        A(f"v_cmp_ne_u32 vcc, {s(S_XCC)}, v31")
        A(f"s_lshl_b32 {s(t0)}, {s(S_CP)}, 7")
        A(f"s_add_u32 {s(t0)}, {s(t0)}, {FL + F2 * 128}")
        A("s_cmp_eq_u64 vcc, 0")
        A(f"s_cselect_b32 {s(S_LOCAL)}, 1, 0")
        if self.o.get("force_global"):
            A(f"s_mov_b32 {s(S_LOCAL)}, 0")
        mark = A.vm_count
        if self.o.get("touch_w1", 0):
            A(f"s_lshr_b32 {s(t1)}, s2, 3")
            A(f"s_lshl_b32 {s(t1)}, {s(t1)}, 2")
            A(f"s_add_u32 {s(t1)}, {s(t1)}, {s(S_WV)}")
            A(f"s_mul_i32 {s(t1)}, {s(t1)}, {112 * 128}")
            A(f"s_add_u32 {s(t1)}, {s(t1)}, {W1F}")
            A(f"v_lshlrev_b32 {v(vx)}, 7, v1")
            A(f"buffer_load_dword v181, {v(vx)}, {s(R_WS, 4)}, {s(t1)} offen sc1")
            A(f"v_min_u32 {v(vx)}, 47, v1")
            A(f"v_lshlrev_b32 {v(vx)}, 7, {v(vx)}")
            A(f"s_add_u32 {s(t1)}, {s(t1)}, {64 * 128}")
            A(f"buffer_load_dword v182, {v(vx)}, {s(R_WS, 4)}, {s(t1)} offen sc1")
        A.wait_vm(A.vm_count - mark)
        A.barrier()
        self.flag_store(t0)
        self.bg_emit(self.n_burst_t2)
        self.stamp(9)

    def phase_b(self):
        A = self.A
        T = S_T
        t0, t1, t2 = T, T + 1, T + 2
        vPa, vPt = 2, 4
        A(f"v_min_u32 {v(vPa)}, 55, v1")
        A(f"s_mul_i32 {s(t0)}, {s(S_WV)}, 56")
        A(f"v_add_u32 {v(vPa)}, {s(t0)}, {v(vPa)}")
        A(f"v_lshlrev_b32 {v(vPa)}, 7, {v(vPa)}")
        A(f"v_add_u32 {v(vPa)}, {FL + F2 * 128}, {v(vPa)}")
        self.poll(vPa, vPt)
        A.barrier()
        self.stamp(10)
        A(f"s_lshr_b32 {s(t0)}, {s(S_WV)}, 1")
        A(f"s_lshl_b32 {s(t0)}, {s(t0)}, 10")
        A(f"v_add_u32 v{V_W2O[0]}, {s(t0)}, v{V_L16}")
        A(f"s_sub_u32 {s(t0)}, 1024, {s(t0)}")
        A(f"v_add_u32 v{V_W2O[1]}, {s(t0)}, v{V_L16}")
        vL16 = 4
        A(f"v_lshlrev_b32 {v(vL16)}, 4, v1")
        A(f"s_mul_i32 {s(t1)}, {s(S_WV)}, 14336")
        A(f"s_mul_i32 {s(t0)}, {s(S_RB)}, 57344")
        A(f"s_add_u32 {s(t0)}, {s(t0)}, {s(t1)}")
        A(f"s_add_u32 {s(t0)}, {s(t0)}, {X1P}")
        A(f"s_add_u32 {s(t1)}, {s(t1)}, {L_XD}")
        A(f"s_mov_b32 m0, {s(t1)}")
        for i in range(14):
            if i and i % 4 == 0:
                A(f"s_add_u32 {s(t0)}, {s(t0)}, 4096")
                A(f"s_add_u32 m0, m0, 4096")
            A.dma(f"buffer_load_dwordx4 {v(vL16)}, {s(R_WS, 4)}, {s(t0)} offen offset:{1024 * (i % 4)} sc1 lds", f"x{i}")
        skip = self.lab("ep")
        A(f"s_cmp_lg_u32 {s(S_CP)}, 0")
        A(f"s_cbranch_scc1 {skip}")
        A.cond_begin()
        A(f"s_mov_b32 {s(t0)}, 0")
        self.flag_store(t0)
        A.cond_end()
        A.label(skip)
        if self.o.get("pretouch", 0):
            A(f"s_mul_i32 {s(t0)}, {s(S_RB)}, 112")
            A(f"s_lshl_b32 {s(t2)}, {s(S_J)}, 4")
            A(f"s_add_u32 {s(t0)}, {s(t0)}, {s(t2)}")
            A(f"s_lshl_b32 {s(t2)}, {s(S_WV)}, 2")
            A(f"s_add_u32 {s(t0)}, {s(t0)}, {s(t2)}")
            A(f"s_lshl_b32 {s(t0)}, {s(t0)}, 11")
            A(f"s_add_u32 {s(t0)}, {s(t0)}, {HF}")
            A(f"v_lshlrev_b32 v6, 7, v1")
            A(f"buffer_load_dword v252, v6, {s(R_WS, 4)}, {s(t0)} offen")
        X = 88
        vXR = 5
        A(f"v_lshlrev_b32 {v(vXR)}, 2, v1")
        A(f"v_add_u32 {v(vXR)}, {s(t1)}, {v(vXR)}")

        XR = 72

        def ldX(g):
            A.need(f"x{g}")
            r = XR + 4 * (g % 4)
            A(f"ds_read2st64_b32 {v(r, 2)}, {v(vXR)} offset0:{4 * g} offset1:{4 * g + 1}")
            A(f"ds_read2st64_b32 {v(r + 2, 2)}, {v(vXR)} offset0:{4 * g + 2} offset1:{4 * g + 3}")

        vS = 8
        for g in range(3):
            ldX(g)
        self.stamp(27)
        for g in range(14):
            src = XR + 4 * (g % 4)
            A.await_regs(v(src, 4))
            if g + 3 < 14:
                ldX(g + 3)
            for k in range(4):
                e = 4 * g + k
                r = X + 2 * e
                A(f"v_lshlrev_b32 {v(r)}, 16, {v(src + k)}")
                A(f"v_and_b32 {v(r + 1)}, {s(S_MASKHI)}, {v(src + k)}")
            for k in range(4):
                e = 4 * g + k
                r = X + 2 * e
                s1, s2 = vS + 2 * (e & 1), vS + 4 + 2 * (e & 1)
                if e < 2:
                    A(f"v_mov_b32 {v(s1)}, {v(r)}")
                    A(f"v_mov_b32 {v(s1 + 1)}, {v(r + 1)}")
                    A(f"v_pk_mul_f32 {v(s2, 2)}, {v(r, 2)}, {v(r, 2)}")
                else:
                    A(f"v_pk_add_f32 {v(s1, 2)}, {v(s1, 2)}, {v(r, 2)}")
                    A(f"v_pk_fma_f32 {v(s2, 2)}, {v(r, 2)}, {v(r, 2)}, {v(s2, 2)}")
            if g >= 14 - self.o.get("n_bstat", 11):
                self.bg_emit(1)
        A(f"v_pk_add_f32 {v(vS, 2)}, {v(vS, 2)}, {v(vS + 2, 2)}")
        A(f"v_pk_add_f32 {v(vS + 4, 2)}, {v(vS + 4, 2)}, {v(vS + 6, 2)}")
        A(f"v_add_f32 {v(vS)}, {v(vS)}, {v(vS + 1)}")
        A(f"v_add_f32 {v(vS + 1)}, {v(vS + 4)}, {v(vS + 5)}")
        vSW = 5
        A(f"v_lshlrev_b32 {v(vSW)}, 3, v1")
        A(f"v_add_u32 {v(vSW)}, {L_STAT}, {v(vSW)}")
        A(f"s_lshl_b32 {s(t0)}, {s(S_WV)}, 9")
        A(f"v_add_u32 v6, {s(t0)}, {v(vSW)}")
        A(f"ds_write_b64 v6, {v(vS, 2)}")
        self.stamp(28)
        vPb = 6
        vHW = 7
        A(f"v_lshrrev_b32 v22, 5, v1")
        A(f"v_lshlrev_b32 {v(vHW)}, 10, v22")
        A(f"v_and_b32 v22, 31, v1")
        A(f"v_lshl_add_u32 {v(vHW)}, v22, 4, {v(vHW)}")
        A(f"s_mul_i32 {s(t0)}, {s(S_WV)}, {7 * 2048}")
        A(f"v_add_u32 {v(vHW)}, {s(t0)}, {v(vHW)}")
        A(f"s_mul_i32 {s(t0)}, {s(S_WV)}, 896")
        A(f"s_add_u32 {s(t0)}, {s(t0)}, {L_PAR}")
        A.barrier()
        for w in range(4):
            A(f"ds_read_b64 {v(16 + 2 * w, 2)}, {v(vSW)} offset:{512 * w}")
        A(f"v_mov_b32 {v(vPb)}, {s(t0)}")
        def PRq(e):
            k = e % 12
            return 24 + 4 * k if k < 8 else 72 + 4 * (k - 8)
        OUT = 56

        def ldP(e):
            if self.o.get("b_nopar"):
                return
            A(f"ds_read_b128 {v(PRq(e), 4)}, {v(vPb)} offset:{16 * e}")

        for e in range(8):
            ldP(e)
        A("v_pk_add_f32 v[16:17], v[16:17], v[18:19]")
        A("v_pk_add_f32 v[20:21], v[20:21], v[22:23]")
        A("v_pk_add_f32 v[16:17], v[16:17], v[20:21]")
        A(f"s_mov_b32 {s(t0)}, 0x{f32bits(1.0 / 448):08x}")
        A(f"s_mov_b32 {s(t1)}, 0x{f32bits(1e-5):08x}")
        A(f"v_mul_f32 v16, {s(t0)}, v16")
        A(f"v_mul_f32 v17, {s(t0)}, v17")
        A("v_fma_f32 v17, -v16, v16, v17")
        A("v_max_f32 v17, 0, v17")
        A(f"v_add_f32 v17, {s(t1)}, v17")
        vR, vM = 18, 20
        A(f"v_rsq_f32 {v(vR)}, v17")
        A(f"v_mul_f32 {v(vM)}, v16, {v(vR)}")
        self.stamp(29)
        for e0 in range(0, 56, 4):
            A.await_regs(*[v(PRq(e0 + k), 4) for k in range(4)])
            for k in range(8, 12):
                if e0 + k < 56:
                    ldP(e0 + k)
            for e in range(e0, e0 + 4):
                r = X + 2 * e
                A(f"v_pk_fma_f32 {v(r, 2)}, {v(r, 2)}, {v(vR, 2)}, {v(vM, 2)} op_sel_hi:[1,0,0] neg_lo:[0,0,1] neg_hi:[0,0,1]")
            for e in range(e0, e0 + 4):
                r = X + 2 * e
                p = PRq(e)
                A(f"v_pk_fma_f32 {v(r, 2)}, {v(r, 2)}, {v(p, 2)}, {v(p + 2, 2)}")
            sp, k0 = divmod(e0, 8)
            o = OUT + 8 * (sp & 1)
            for e in range(e0, e0 + 4):
                r = X + 2 * e
                A(f"v_cvt_pk_bf16_f32 {v(o + e % 8)}, {v(r)}, {v(r + 1)}")
            if not self.o.get("b_nowr"):
                A(f"ds_write_b128 {v(vHW)}, {v(o + k0, 4)} offset:{L_H2 + 2048 * sp + (512 if k0 else 0)}")
            nbn = self.o.get("n_bnorm", 17)
            g_ = e0 // 4
            self.bg_emit(nbn * (g_ + 1) // 14 - nbn * g_ // 14)
        while self.bg_left("w1") > 0:
            self.bg_emit(1)
        A.barrier()
        self.stamp(11)

    def w2reg(self, f):
        if f < 41:
            return v(88 + 4 * f, 4)
        if f < 49:
            return a(224 + 4 * (f - 41), 4)
        return a(4 * (f - 49), 4)

    def bg_setup(self):
        A = self.A
        t0, t1 = S_T, S_T + 1
        A(f"s_lshl_b32 {s(t0)}, {s(S_J)}, 3")
        A(f"s_lshl_b32 {s(t1)}, {s(S_WV)}, 1")
        A(f"s_add_u32 {s(t0)}, {s(t0)}, {s(t1)}")
        A(f"s_mul_i32 {s(S_W1B)}, {s(t0)}, {28 * 1024}")
        A(f"s_add_u32 {s(S_W1B)}, {s(S_W1B)}, {W1F}")
        A(f"s_lshl_b32 {s(t0)}, {s(S_J)}, 2")
        A(f"s_add_u32 {s(t0)}, {s(t0)}, {s(S_WV)}")
        A(f"s_mul_i32 {s(S_W2B)}, {s(t0)}, {56 * 1024}")
        A(f"s_add_u32 {s(S_W2B)}, {s(S_W2B)}, {W2F}")
        A(f"v_lshlrev_b32 v{V_L16}, 4, v1")
        self.bgq = [("w1", f) for f in range(56)] + [("w2", f) for f in self.w2_order]
        self.bg_cur = {"w1": 0, "w2": 0}

    def bg_emit(self, n=1):
        A = self.A
        if self.o["nobg"]:
            del self.bgq[:n]
            return
        for _ in range(n):
            if not self.bgq:
                return
            kind, f = self.bgq.pop(0)
            base = S_W1B if kind == "w1" else S_W2B
            blk = f // 4
            if blk != self.bg_cur[kind]:
                d = (blk - self.bg_cur[kind]) * 4096
                A(f"s_add_u32 {s(base)}, {s(base)}, {d}" if d > 0 else f"s_sub_u32 {s(base)}, {s(base)}, {-d}")
                self.bg_cur[kind] = blk
            if kind == "w1":
                A(f"buffer_load_dwordx4 {a(4 * f, 4)}, v{V_L16}, {s(R_WS, 4)}, {s(base)} offen offset:{1024 * (f % 4)} sc1")
            else:
                A(f"buffer_load_dwordx4 {self.w2reg(f)}, v{V_W2O[f & 1]}, {s(R_WS, 4)}, {s(base)} offen offset:{2048 * ((f % 4) >> 1)} sc1")

    def bg_left(self, kind):
        return sum(1 for k, _ in self.bgq if k == kind)

    def phase_c(self):
        A = self.A
        t0 = S_T
        glob, join = self.lab("cglob"), self.lab("cjoin")
        A(f"s_cmp_eq_u32 {s(S_LOCAL)}, 0")
        A(f"s_cbranch_scc1 {glob}")
        st, q, cur = A.snapshot(), list(self.bgq), dict(self.bg_cur)
        self.phase_c_body("")
        A(f"s_branch {join}")
        A.restore(st)
        self.bgq, self.bg_cur = q, cur
        A.label(glob)
        self.phase_c_body(" sc1")
        A.label(join)

    def phase_c_body(self, sc):
        A = self.A
        T = S_T
        t0, t1 = T, T + 1
        sH, sH2 = S_OFF + 5, S_OFF + 7
        A(f"s_mul_i32 {s(t0)}, {s(S_RB)}, 112")
        A(f"s_lshl_b32 {s(t1)}, {s(S_J)}, 4")
        A(f"s_add_u32 {s(t0)}, {s(t0)}, {s(t1)}")
        A(f"s_lshl_b32 {s(t1)}, {s(S_WV)}, 2")
        A(f"s_add_u32 {s(t0)}, {s(t0)}, {s(t1)}")
        A(f"s_lshl_b32 {s(sH)}, {s(t0)}, 11")
        A(f"s_add_u32 {s(sH)}, {s(sH)}, {HF}")
        A(f"s_add_u32 {s(sH2)}, {s(sH)}, 4096")
        sC = S_OFF + 6
        A(f"s_mov_b32 {s(sC)}, 0x{f32bits(LOG2E):08x}")
        ACC = [24, 40]
        NR = 6
        RING = 4
        TMP = 68
        OUT = 76

        def ring(i):
            k = i % NR
            return RING + 4 * k if k < 5 else 56

        def store(g, off):
            base, o = (sH2, off - 4096) if off >= 4096 else (sH, off)
            return f"buffer_store_dwordx4 {v(OUT + 4 * g, 4)}, v{V_L16}, {s(R_WS, 4)}, {s(base)} offen offset:{o}{sc}"

        def silu_ops(tile):
            ft, th = divmod(tile, 2)
            acc = ACC[tile & 1]
            seq = []
            lag = (0, 2, 3, 5)
            for step in range(16 + lag[-1] + 2):
                for k in range(4):
                    i = step - lag[k]
                    if 0 <= i < 16:
                        x, tmp = acc + i, TMP + (i % 8)
                        if k == 0:
                            seq.append((8, f"v_exp_f32 {v(tmp)}, -{v(x)}"))
                        elif k == 1:
                            seq.append((4, f"v_fma_f32 {v(tmp)}, {v(tmp)}, {s(sC)}, {s(sC)}"))
                        elif k == 2:
                            seq.append((8, f"v_rcp_f32 {v(tmp)}, {v(tmp)}"))
                        else:
                            seq.append((4, f"v_mul_f32 {v(x)}, {v(x)}, {v(tmp)}"))
                i = step - lag[-1] - 1
                if 0 <= i < 16 and i % 2 == 1:
                    g, kk = divmod(i // 2, 4)
                    seq.append((4, f"v_cvt_pk_bf16_f32 {v(OUT + 4 * g + kk)}, {v(acc + i - 1)}, {v(acc + i)}"))
                    if kk == 3:
                        off = (2 * (2 * ft + g) + th) * 1024
                        seq.append((4, store(g, off)))
            return seq

        def ldH(idx):
            tile, st = divmod(idx, 28)
            th = tile & 1
            A(f"ds_read_b128 {v(ring(idx), 4)}, v{V_L16} offset:{L_H2 + 2048 * st + 1024 * th}")

        for i_ in range(NR - 2):
            ldH(i_)
        pend = []
        nbg = self.n_bg_c
        done_bg = 0
        for tile in range(4):
            ft = tile >> 1
            acc = ACC[tile & 1]
            total = sum(c for c, _ in pend)
            for st in range(28):
                idx = tile * 28 + st
                if idx % 2 == 0:
                    A.await_regs(*[v(ring(i_), 4) for i_ in (idx, idx + 1) if i_ < 112])
                    for i_ in (idx + NR - 2, idx + NR - 1):
                        if i_ < 112:
                            ldH(i_)
                c = "0" if st == 0 else v(acc, 16)
                A(f"v_mfma_f32_32x32x16_bf16 {v(acc, 16)}, {a(4 * (28 * ft + st), 4)}, {v(ring(idx), 4)}, {c}")
                if pend and st >= 2:
                    left_slots = 28 - st
                    budget = -(-sum(c for c, _ in pend) // left_slots)
                    spent = 0
                    while pend and spent < budget:
                        cst, ins = pend.pop(0)
                        A(ins)
                        spent += cst
                while done_bg < nbg * (idx + 1) // 112 and self.bgq:
                    assert self.bgq[0][0] == "w1" or self.bgq[0][1] < 49 or idx >= 36
                    self.bg_emit(1)
                    done_bg += 1
            assert not pend, len(pend)
            pend = silu_ops(tile)
        for _, ins in pend:
            A(ins)
        self.stamp(12)
        A.wait_vm(0)
        A.barrier()
        A(f"s_lshl_b32 {s(t0)}, {s(S_RB)}, 3")
        A(f"s_add_u32 {s(t0)}, {s(t0)}, {s(S_J)}")
        A(f"s_lshl_b32 {s(t0)}, {s(t0)}, 7")
        A(f"s_add_u32 {s(t0)}, {s(t0)}, {FL + F3 * 128}")
        self.flag_store(t0, sc=sc)
        self.bg_emit(len(self.bgq))
        self.stamp(13)

    def phase_d(self):
        A = self.A
        T = S_T
        t0, t1 = T, T + 1
        vPa, vPt = 2, 4
        A(f"v_min_u32 {v(vPa)}, 6, v1")
        A(f"s_lshl_b32 {s(t0)}, {s(S_RB)}, 3")
        A(f"v_add_u32 {v(vPa)}, {s(t0)}, {v(vPa)}")
        A(f"v_lshlrev_b32 {v(vPa)}, 7, {v(vPa)}")
        A(f"v_add_u32 {v(vPa)}, {FL + F3 * 128}, {v(vPa)}")
        self.poll(vPa, vPt)
        self.stamp(14)
        sH = S_OFF
        A(f"s_mul_i32 {s(t0)}, {s(S_RB)}, 112")
        A(f"s_mul_i32 {s(t1)}, {s(S_WV)}, 28")
        A(f"s_add_u32 {s(t0)}, {s(t0)}, {s(t1)}")
        A(f"s_lshl_b32 {s(sH)}, {s(t0)}, 11")
        A(f"s_add_u32 {s(sH)}, {s(sH)}, {HF}")
        NSLOT = 49
        HB = 28
        hl = {0: " sc1", 1: "", 2: " nt", 3: " sc0"}[self.o.get("hload", 0)]
        vH = 4
        A(f"s_and_b32 {s(t0)}, {s(S_WV)}, 1")
        A(f"s_lshl_b32 {s(t0)}, {s(t0)}, 10")
        A(f"v_add_u32 {v(vH)}, {s(t0)}, v{V_L16}")
        A(f"s_sub_u32 {s(t0)}, 1024, {s(t0)}")
        A(f"v_add_u32 {v(vH + 1)}, {s(t0)}, v{V_L16}")

        def hreg(i):
            return a(HB + 4 * (i % NSLOT), 4)

        def ldH(i):
            if i % 4 == 0 and i:
                A(f"s_add_u32 {s(sH)}, {s(sH)}, 4096")
            A(f"buffer_load_dwordx4 {hreg(i)}, {v(vH + (i & 1))}, {s(R_WS, 4)}, {s(sH)} offen offset:{2048 * ((i % 4) >> 1)}{hl}")

        PRE = self.o.get("d_pre", 12)
        for i in range(PRE):
            ldH(i)
        vWr, vRd, vG, vX, vO, vt = 8, 11, 12, 13, 14, 15
        for x in range(1, 4):
            A(f"s_xor_b32 {s(t0)}, {s(S_WV)}, {x}")
            A(f"s_mul_i32 {s(t0)}, {s(t0)}, 12288")
            A(f"s_add_u32 {s(t0)}, {s(t0)}, {L_RED2 + (x - 1) * 4096}")
            A(f"v_add_u32 {v(vWr + x - 1)}, {s(t0)}, v{V_L16}")
        A(f"s_mul_i32 {s(t0)}, {s(S_WV)}, 12288")
        A(f"s_add_u32 {s(t0)}, {s(t0)}, {L_RED2}")
        A(f"v_add_u32 {v(vRd)}, {s(t0)}, v{V_L16}")
        A(f"s_lshr_b32 {s(t0)}, {s(S_WV)}, 1")
        A(f"s_and_b32 {s(t1)}, {s(S_WV)}, 1")
        A(f"v_lshrrev_b32 {v(vt)}, 5, v1")
        t2, t3 = T + 2, T + 3
        A(f"s_lshl_b32 {s(t2)}, {s(t0)}, 7")
        A(f"s_add_u32 {s(t2)}, {s(t2)}, {L_GB}")
        A(f"v_lshl_add_u32 {v(vG)}, {v(vt)}, 4, {s(t2)}")
        A(f"s_lshl_b32 {s(t2)}, {s(S_J)}, 13")
        A(f"s_lshl_b32 {s(t3)}, {s(t0)}, 12")
        A(f"s_add_u32 {s(t2)}, {s(t2)}, {s(t3)}")
        A(f"s_lshl_b32 {s(t3)}, {s(t1)}, 7")
        A(f"s_add_u32 {s(t2)}, {s(t2)}, {s(t3)}")
        A(f"s_add_u32 {s(t2)}, {s(t2)}, {L_XD}")
        A(f"v_lshl_add_u32 {v(vX)}, {v(vt)}, 9, {s(t2)}")
        A(f"v_and_b32 {v(vO)}, 31, v1")
        A(f"v_lshl_add_u32 {v(vX)}, {v(vO)}, 2, {v(vX)}")
        A(f"s_lshl_b32 {s(t2)}, {s(S_RB)}, 6")
        A(f"s_lshl_b32 {s(t3)}, {s(t1)}, 5")
        A(f"s_add_u32 {s(t2)}, {s(t2)}, {s(t3)}")
        A(f"v_add_u32 {v(vO)}, {s(t2)}, {v(vO)}")
        A(f"v_mul_u32_u24 {v(vO)}, 896, {v(vO)}")
        A(f"s_lshl_b32 {s(t2)}, {s(S_J)}, 7")
        A(f"s_lshl_b32 {s(t3)}, {s(t0)}, 6")
        A(f"s_add_u32 {s(t2)}, {s(t2)}, {s(t3)}")
        A(f"v_lshl_add_u32 {v(vt)}, {v(vt)}, 4, {s(t2)}")
        A(f"v_add_u32 {v(vO)}, {v(vO)}, {v(vt)}")
        self.srd(R_A, P_OUT, 2048 * 896)
        ACC = 24
        nxt = PRE
        for st in range(28):
            for _ in range(2):
                if nxt < 56:
                    ldH(nxt)
                    nxt += 1
            for e1 in range(2):
                i = 2 * st + e1
                for e in range(2):
                    acc = ACC + 16 * (2 * e + e1)
                    c = "0" if st == 0 else v(acc, 16)
                    if self.o.get("d_nomfma"):
                        A.await_regs(hreg(i))
                        continue
                    A(f"v_mfma_f32_32x32x16_bf16 {v(acc, 16)}, {self.w2reg(2 * st + e)}, {hreg(i)}, {c}")
        self.stamp(15)
        GB, XP = 16, 88
        GB = 104
        X1 = 120
        PT = 144
        for g in range(4):
            A(f"ds_read_b128 {v(GB + 4 * g, 4)}, {v(vG)} offset:{32 * g}")
            A(f"ds_read2st64_b32 {v(X1 + 2 * g, 2)}, {v(vX)} offset0:{4 * g} offset1:{4 * g + 1}")
        for x in range(1, 4):
            for g in range(4):
                A(f"ds_write_b128 {v(vWr + x - 1)}, {v(ACC + 16 * x + 4 * g, 4)} offset:{1024 * g}")
        for k in range(8):
            A(f"v_lshlrev_b32 {v(128 + 2 * k)}, 16, {v(X1 + k)}")
            A(f"v_and_b32 {v(129 + 2 * k)}, {s(S_MASKHI)}, {v(X1 + k)}")
        self.stamp(17)
        A.barrier()
        self.stamp(18)
        for k in range(3):
            for g in range(4):
                A(f"ds_read_b128 {v(PT + 16 * k + 4 * g, 4)}, {v(vRd)} offset:{4096 * k + 1024 * g}")
        for k in range(3):
            A.await_regs(v(PT + 16 * k, 16))
            for i in range(8):
                A(f"v_pk_add_f32 {v(ACC + 2 * i, 2)}, {v(ACC + 2 * i, 2)}, {v(PT + 16 * k + 2 * i, 2)}")
        for i in range(8):
            A(f"v_pk_fma_f32 {v(ACC + 2 * i, 2)}, {v(ACC + 2 * i, 2)}, {v(GB + 2 * i, 2)}, {v(128 + 2 * i, 2)}")
        OUT = 192
        for i in range(8):
            A(f"v_cvt_pk_bf16_f32 {v(OUT + i)}, {v(ACC + 2 * i)}, {v(ACC + 2 * i + 1)}")
        for k in (0, 2):
            for i in range(2):
                A(f"v_permlane32_swap_b32 {v(OUT + 2 * k + i)}, {v(OUT + 2 * k + 2 + i)}")
        for k in (0, 2):
            A(f"buffer_store_dwordx4 {v(OUT + 2 * k, 4)}, {v(vO)}, {s(R_A, 4)}, 0 offen offset:{16 * k}")
        self.stamp(16)

    def helper(self):
        A = self.A
        T = S_T
        t0, t1, t2 = T + 4, T + 5, T + 6
        sH = S_RB
        A.label("L_helper")
        A(f"s_sub_u32 {s(t0)}, {s(T + 1)}, 28")
        A(f"s_lshl_b32 {s(t0)}, {s(t0)}, 3")
        A(f"s_add_u32 {s(sH)}, {s(t0)}, {s(T)}")
        A(f"s_cmp_ge_u32 {s(sH)}, 21")
        A("s_cbranch_scc1 L_helper_flag")
        st_h = A.snapshot()
        self.srd(R_A, P_WM, 448 * 5376)
        self.srd(R_B, P_C, 896)
        A("v_lshrrev_b32 v2, 4, v0")
        A("v_and_b32 v3, 15, v0")
        A("v_mul_u32_u24 v4, 5376, v2")
        A("v_lshl_add_u32 v4, v3, 4, v4")
        A(f"s_lshl_b32 {s(t0)}, {s(sH)}, 8")
        A(f"v_add_u32 v4, {s(t0)}, v4")
        A("v_lshlrev_b32 v5, 2, v0")
        A(f"buffer_load_dword v6, v5, {s(R_B, 4)}, 0 offen")
        W = 16
        A(f"s_mov_b32 {s(t0)}, 0")
        for i in range(28):
            A(f"buffer_load_dwordx4 {v(W + 4 * i, 4)}, v4, {s(R_A, 4)}, {s(t0)} offen")
            if i < 27:
                A(f"s_add_u32 {s(t0)}, {s(t0)}, {16 * 5376}")
        A(f"s_mov_b32 {s(t1)}, 0x{f32bits(-1.4426950408889634):08x}")
        A("v_lshlrev_b32 v8, 16, v6")
        A(f"v_and_b32 v9, {s(S_MASKHI)}, v6")
        for r in (8, 9):
            A(f"v_mul_f32 {v(r + 2)}, {s(t1)}, {v(r)}")
        for r in (8, 9):
            A(f"v_exp_f32 {v(r + 2)}, {v(r + 2)}")
        for r in (8, 9):
            A(f"v_add_f32 {v(r + 2)}, 1.0, {v(r + 2)}")
        for r in (8, 9):
            A(f"v_rcp_f32 {v(r + 2)}, {v(r + 2)}")
        for r in (8, 9):
            A(f"v_mul_f32 {v(r)}, {v(r)}, {v(r + 2)}")
        A("v_cvt_pk_bf16_f32 v6, v8, v9")
        A("v_lshlrev_b32 v8, 16, v6")
        A(f"v_and_b32 v9, {s(S_MASKHI)}, v6")
        A("v_lshlrev_b32 v7, 3, v0")
        A(f"ds_write_b64 v7, v[8:9] offset:{L_SC}")
        A.barrier()
        A("v_lshlrev_b32 v7, 2, v2")
        SC = 128
        for i in range(28):
            A(f"ds_read_b32 {v(SC + 2 * i)}, v7 offset:{L_SC + 64 * i}")
        AC = 192
        U = 200
        for i in range(28):
            for k in range(4):
                src = W + 4 * i + k
                u = U + 2 * k
                A(f"v_lshlrev_b32 {v(u)}, 16, {v(src)}")
                A(f"v_and_b32 {v(u + 1)}, {s(S_MASKHI)}, {v(src)}")
            for k in range(4):
                u = U + 2 * k
                if i == 0:
                    A(f"v_pk_mul_f32 {v(AC + 2 * k, 2)}, {v(u, 2)}, {v(SC + 2 * i, 2)} op_sel_hi:[1,0]")
                else:
                    A(f"v_pk_fma_f32 {v(AC + 2 * k, 2)}, {v(u, 2)}, {v(SC + 2 * i, 2)}, {v(AC + 2 * k, 2)} op_sel_hi:[1,0,1]")
        A("v_mul_u32_u24 v7, 528, v2")
        A("v_lshl_add_u32 v7, v3, 5, v7")
        A(f"ds_write_b128 v7, {v(AC, 4)} offset:{L_MR}")
        A(f"ds_write_b128 v7, {v(AC + 4, 4)} offset:{L_MR + 16}")
        A.barrier()
        A("v_and_b32 v8, 127, v0")
        A("v_lshlrev_b32 v7, 2, v8")
        for g in range(16):
            A(f"ds_read_b32 {v(16 + g)}, v7 offset:{L_MR + 528 * g}")
        for stp in (8, 4, 2, 1):
            for g in range(stp):
                A(f"v_add_f32 {v(16 + g)}, {v(16 + g)}, {v(16 + g + stp)}")
        A("v_cvt_pk_bf16_f32 v16, v16, v16")
        A(f"v_and_b32 v16, {s(S_MASKHI)}, v16")
        A("v_add_f32 v17, 1.0, v16")
        A("v_cvt_pk_bf16_f32 v17, v17, v17")
        A(f"v_and_b32 v17, {s(S_MASKHI)}, v17")
        A(f"s_lshl_b32 {s(t0)}, {s(sH)}, 7")
        A(f"v_add_u32 v8, {s(t0)}, v8")
        A("v_subrev_u32 v9, 448, v8")
        A("v_subrev_u32 v10, 1792, v8")
        A("v_min_u32 v9, v9, v10")
        A("v_mov_b32 v11, 448")
        A("v_cmp_lt_u32 vcc, v9, v11")
        A("s_nop 1")
        A("v_cndmask_b32 v16, v16, v17, vcc")
        A("v_lshlrev_b32 v8, 2, v8")
        A(f"s_mov_b32 {s(t0)}, {MODF}")
        skip = self.lab("ms")
        A(f"s_cmp_ge_u32 {s(S_WV)}, 2")
        A(f"s_cbranch_scc1 {skip}")
        A.cond_begin()
        A(f"buffer_store_dword v16, v8, {s(R_WS, 4)}, {s(t0)} offen sc1")
        A.cond_end()
        A.label(skip)
        A.wait_vm(0)
        A.barrier()
        A.label("L_helper_flag")
        A.wait_lgkm0()
        A(f"s_add_u32 {s(S_NONCE)}, {s(S_NONCE)}, 1")
        A(f"s_lshl_b32 {s(t0)}, {s(sH)}, 7")
        A(f"s_add_u32 {s(t0)}, {s(t0)}, {FL + FM * 128}")
        self.flag_store(t0)
        self.stamp(3)
        if self.o.get("helper_warm", 1):
            A("v_min_u32 v2, 55, v1")
            A(f"s_mul_i32 {s(t0)}, {s(S_WV)}, 56")
            A(f"v_add_u32 v2, {s(t0)}, v2")
            A("v_lshlrev_b32 v2, 7, v2")
            A(f"v_add_u32 v2, {FL + self.o.get('warm_flag', F2) * 128}, v2")
            A(f"s_lshr_b32 {s(t0)}, s2, 3")
            A(f"s_sub_u32 {s(t0)}, {s(t0)}, 28")
            A(f"s_lshl_b32 {s(t0)}, {s(t0)}, 2")
            A(f"s_add_u32 {s(t0)}, {s(t0)}, {s(S_WV)}")
            A("v_lshlrev_b32 v4, 7, v1")
            A(f"s_and_b32 {s(t1)}, s2, 7")
            A(f"s_mul_i32 {s(t1)}, {s(t1)}, {4 * 229376}")
            A(f"s_mul_i32 {s(t2)}, {s(t0)}, {448 * 128}")
            A(f"s_add_u32 {s(t1)}, {s(t1)}, {s(t2)}")
            A(f"s_add_u32 {s(t1)}, {s(t1)}, {HF}")
            self.poll(2, 3)
            for k in range(7):
                A(f"buffer_load_dword {v(32 + k)}, v4, {s(R_WS, 4)}, {s(t1)} offen")
                A(f"s_add_u32 {s(t1)}, {s(t1)}, {64 * 128}")
            A.wait_vm(0)
        self.stamp(4)
        self.stamp_flush()
        A("s_endpgm")

    def build(self):
        A = self.A
        self.prologue()
        if self.stamps:
            A("v_mov_b32 v255, 0")
        st = A.snapshot()
        self.stamp(0)
        self.phase_p()
        stages = [("p", None), ("a", self.phase_a), ("b", self.phase_b), ("c", self.phase_c), ("d", self.phase_d)]
        done = self.stop == "p"
        for name, fn in stages[1:]:
            if done:
                break
            fn()
            done = self.stop == name
        self.stamp_flush()
        A("s_endpgm")
        A.restore(st)
        self.helper()
        A.label("L_exit")
        A("s_endpgm")
        A.label("L_code_end")
        return A.text()


def f32bits(x):
    import struct
    return struct.unpack("<I", struct.pack("<f", x))[0]


HEADER = """; Fused adaLN + H3 long convolution + SiLU MLP, one persistent launch (generated by gen/gen.py).
; Kernarg: q k v shift_k ssm_k ssm_D B_x w1 w2 c w_mod out debug ws (8-byte pointers).
; @launch grid=(256,1,1) block=(256,1,1) lds={lds}
.amdgcn_target "amdgcn-amd-amdhsa--gfx950"
.text
.globl {name}
.p2align 8
.type {name},@function
{name}:
"""

FOOTER = """.section .rodata,"a"
.p2align 6
.amdhsa_kernel {name}
  .amdhsa_next_free_vgpr 512
  .amdhsa_next_free_sgpr 102
  .amdhsa_accum_offset 256
  .amdhsa_group_segment_fixed_size 0
  .amdhsa_kernarg_size 112
  .amdhsa_user_sgpr_count 2
  .amdhsa_user_sgpr_kernarg_segment_ptr 1
  .amdhsa_system_sgpr_workgroup_id_x 1
  .amdhsa_float_denorm_mode_32 3
.end_amdhsa_kernel
"""


def main():
    ap = argparse.ArgumentParser()
    ap.add_argument("--stop", default=None)
    ap.add_argument("--stamps", action="store_true")
    ap.add_argument("-o", default="/dev/stdout")
    ap.add_argument("--opt", action="append", default=[])
    args = ap.parse_args()
    opts = {}
    for kv in args.opt:
        k, val = kv.split("=")
        opts[k] = int(val)
    g = Gen(stop=args.stop, stamps=args.stamps, opts=opts)
    body = g.build()
    txt = HEADER.format(name=NAME, lds=LDS_END) + body + FOOTER.format(name=NAME)
    with open(args.o, "w") as f:
        f.write(txt)
    print(f"instructions: {g.A.n_ins}, auto nops: {g.A.n_nops}, lds {LDS_END}", file=sys.stderr)


if __name__ == "__main__":
    main()
```

```python
import sys
import argparse
from asmdsl import Asm, v, a, s

NAME = "adaLN_cond__ssm_conv_h3__dense_activation_silu__prompt_kernel"

FL = 4096
F1, FQ, FM, F2, F3 = 0, 256, 512, 544, 800
STAMP = 0x30000
T2D = 224 * 8192
KVP = 0x40000
QP = KVP + T2D
STR = QP + T2D
STM = STR + 8192
X1P = STR + 16384
W1F = X1P + T2D
W2F = W1F + 1605632
MODF = W2F + 1605632
HF = MODF + 16384
WS_END = HF + 32 * 112 * 2048
assert WS_END < (1 << 28)

L_H2 = 0
L_TPK = 0
L_TPQ = 8704
L_TPN = 17408
L_WB = 26112
L_UR = 43520
assert L_UR + 9216 <= 57344
L_KC = 57344
CS = 4160
L_RED = L_KC + 8 * CS
L_RED2 = 0
L_XD = 69632
L_PAR = L_RED + 40960
L_STAT = L_PAR + 4096
L_GB = L_STAT + 2048
LDS_END = L_GB + 256
assert L_XD + 57344 <= L_PAR
assert LDS_END <= 163840
L_SC = 0
L_MR = 2048

S_RB, S_J, S_WV, S_CP = 4, 5, 6, 7
P_Q, P_K, P_V, P_SH, P_SK, P_D, P_BX, P_W1, P_W2, P_C, P_WM, P_OUT, P_DBG, P_WS = range(8, 36, 2)
R_WS, R_A, R_B, R_C, R_D = 36, 40, 44, 48, 52
S_NONCE = 56
S_T = 57
S_M = 80
S_MASKHI = 80
S_PERM_LO = 81
S_PERM_HI = 82
S_OFF = 84
S_SPIN = 96
S_PC = 100
S_W1B, S_W2B = 78, 79
S_XCC, S_LOCAL = 83, 95
S_WI = 94
V_W2O = (2, 253)
V_L16 = 3
S_ST0 = 98

SRD3 = 0x00020000
LOG2E = 1.4426950408889634
SPIN_MAX = 1 << 17


class Gen:
    def __init__(self, stop=None, stamps=False, opts=None):
        self.o = dict(cring=3, repf=0, burst_before_flag=0, n_burst_t2=28, n_bg_c=36, bg_b=1, nobg=0)
        self.o.update(opts or {})
        self.A = Asm()
        self.stop = stop
        self.stamps = stamps
        self.nlab = 0
        self.nstamp = 0
        self.n_burst_t2 = self.o["n_burst_t2"]
        self.n_bg_c = self.o["n_bg_c"]
        self.w2_order = list(range(41, 49)) + list(range(28, 41)) + list(range(28)) + list(range(49, 56))

    def lab(self, base):
        self.nlab += 1
        return f"L_{base}_{self.nlab}"

    def srd(self, r, ptr, nbytes, add=None):
        A = self.A
        if add is None:
            A(f"s_mov_b32 {s(r)}, {s(ptr)}")
            A(f"s_mov_b32 {s(r + 1)}, {s(ptr + 1)}")
        else:
            A(f"s_add_u32 {s(r)}, {s(ptr)}, {add}")
            A(f"s_addc_u32 {s(r + 1)}, {s(ptr + 1)}, 0")
        A(f"s_mov_b32 {s(r + 2)}, {nbytes}")
        A(f"s_mov_b32 {s(r + 3)}, 0x{SRD3:08x}")

    def stamp(self, idx):
        if not self.stamps:
            return
        A = self.A
        A(f"s_memrealtime {s(S_ST0, 2)}")
        A.wait_lgkm0()
        A(f"v_writelane_b32 v255, {s(S_ST0)}, {idx}")
        if self.o.get("cyc"):
            A(f"s_memtime {s(S_ST0, 2)}")
            A.wait_lgkm0()
            A(f"v_writelane_b32 v255, {s(S_ST0)}, {32 + idx}")

    def stamp_flush(self):
        if not self.stamps:
            return
        A = self.A
        skip = self.lab("sf")
        A(f"s_cmp_lg_u32 {s(S_WV)}, 0")
        A(f"s_cbranch_scc1 {skip}")
        A.cond_begin()
        A("v_lshlrev_b32 v254, 2, v1")
        A(f"s_lshl_b32 {s(S_SPIN + 1)}, s2, 8")
        A(f"s_add_u32 {s(S_SPIN + 1)}, {s(S_SPIN + 1)}, {STAMP}")
        A(f"buffer_store_dword v255, v254, {s(R_WS, 4)}, {s(S_SPIN + 1)} offen")
        A.cond_end()
        A.label(skip)

    def flag_store(self, soff_sgpr, vtmp=252, with_xcc=False, sc=" sc1"):
        A = self.A
        skip = self.lab("fl")
        A(f"s_cmp_lg_u32 {s(S_WV)}, 0")
        A(f"s_cbranch_scc1 {skip}")
        A.cond_begin()
        A(f"v_mov_b32 {v(vtmp)}, {s(S_NONCE)}")
        if with_xcc:
            A(f"v_mov_b32 {v(vtmp + 1)}, {s(S_XCC)}")
        A(f"v_mov_b32 {v(vtmp + 2)}, {s(soff_sgpr)}")
        A("s_mov_b64 exec, 1")
        if with_xcc:
            A(f"buffer_store_dwordx2 {v(vtmp, 2)}, {v(vtmp + 2)}, {s(R_WS, 4)}, 0 offen{sc}")
        else:
            A(f"buffer_store_dword {v(vtmp)}, {v(vtmp + 2)}, {s(R_WS, 4)}, 0 offen{sc}")
        A("s_mov_b64 exec, -1")
        A.cond_end()
        A.label(skip)

    def poll(self, vaddr, vtmp):
        A = self.A
        loop, done = self.lab("poll"), self.lab("polld")
        A(f"s_mov_b32 {s(S_SPIN)}, 0")
        A.label(loop)
        A(f"buffer_load_dword {v(vtmp)}, {v(vaddr)}, {s(R_WS, 4)}, 0 offen sc1")
        A.wait_vm(0)
        A(f"v_cmp_ne_u32 vcc, {s(S_NONCE)}, {v(vtmp)}")
        A(f"s_add_u32 {s(S_SPIN)}, {s(S_SPIN)}, 1")
        A("s_nop 3")
        A("s_cmp_eq_u64 vcc, 0")
        A(f"s_cbranch_scc1 {done}")
        A(f"s_cmp_lt_u32 {s(S_SPIN)}, {SPIN_MAX}")
        A(f"s_cbranch_scc1 {loop}")
        A.label(done)

    def code_prefetch(self):
        A = self.A
        A("v_lshlrev_b32 v253, 7, v0")
        A("v_min_u32 v253, L_code_end-L_pc-4, v253")
        A(f"global_load_dword v254, v253, {s(S_PC, 2)}")

    def finish(self):
        self.A("s_endpgm")

    def prologue(self):
        A = self.A
        A("s_cmp_ge_u32 s2, 256")
        A("s_cbranch_scc1 L_exit")
        if self.stamps:
            A(f"s_memrealtime {s(92, 2)}")
        A(f"s_load_dwordx16 {s(8, 16)}, s[0:1], 0")
        A(f"s_load_dwordx8 {s(24, 8)}, s[0:1], 64")
        A(f"s_load_dwordx4 {s(32, 4)}, s[0:1], 96")
        A(f"s_getpc_b64 {s(S_PC, 2)}")
        A.label("L_pc")
        A("v_lshlrev_b32 v253, 7, v0")
        A("v_min_u32 v253, L_code_end-L_pc-4, v253")
        A(f"global_load_dword v254, v253, {s(S_PC, 2)}")
        A("v_lshrrev_b32 v2, 6, v0")
        A("v_and_b32 v1, 63, v0")
        A(f"s_and_b32 {s(S_T)}, s2, 7")
        A(f"s_lshr_b32 {s(S_T + 1)}, s2, 3")
        A(f"v_readfirstlane_b32 {s(S_WV)}, v2")
        A(f"s_getreg_b32 {s(S_XCC)}, hwreg(HW_REG_XCC_ID, 0, 4)")
        A(f"s_mov_b32 {s(S_MASKHI)}, 0xffff0000")
        A(f"s_mov_b32 {s(S_PERM_LO)}, 0x05040100")
        A(f"s_mov_b32 {s(S_PERM_HI)}, 0x07060302")
        A(f"s_sub_u32 {s(S_WI)}, {s(S_T + 1)}, 4")
        A(f"s_mul_i32 {s(S_T + 2)}, {s(S_WI)}, 37")
        A(f"s_lshr_b32 {s(S_T + 2)}, {s(S_T + 2)}, 8")
        A(f"s_mul_i32 {s(S_T + 3)}, {s(S_T + 2)}, 7")
        A(f"s_sub_u32 {s(S_J)}, {s(S_WI)}, {s(S_T + 3)}")
        A(f"s_lshl_b32 {s(S_RB)}, {s(S_T)}, 2")
        A(f"s_add_u32 {s(S_RB)}, {s(S_RB)}, {s(S_T + 2)}")
        A(f"s_lshl_b32 {s(S_CP)}, {s(S_J)}, 5")
        A(f"s_add_u32 {s(S_CP)}, {s(S_CP)}, {s(S_RB)}")
        A.wait_lgkm0()
        self.srd(R_WS, P_WS, WS_END)
        A(f"s_load_dword {s(S_NONCE)}, {s(P_WS, 2)}, 0")
        A(f"s_cmp_lt_u32 {s(S_T + 1)}, 4")
        A("s_cbranch_scc1 L_helper")

    def phase_p(self):
        A = self.A
        T = S_T
        NB = 2048 * 896
        t0, t1, t2 = T + 12, T + 13, T + 14
        vC, vRG, vL16, vOffO, vKa, vSh, vSa, vSb, vRow, vWa, vx = 2, 3, 4, 5, 6, 10, 11, 12, 13, 14, 15
        vK, vV, vSH, vQO, vQ, vW, vKD = 16, 36, 44, 60, 68, 84, 100
        A(f"v_and_b32 {v(vC)}, 7, v1")
        A(f"v_lshrrev_b32 {v(vRG)}, 3, v1")
        A(f"s_lshl_b32 {s(T)}, {s(S_RB)}, 6")
        A(f"s_lshl_b32 {s(T + 1)}, {s(S_WV)}, 4")
        A(f"s_add_u32 {s(T + 1)}, {s(T)}, {s(T + 1)}")
        A(f"v_lshl_add_u32 {v(vOffO)}, {v(vRG)}, 1, {s(T + 1)}")
        A(f"v_mul_u32_u24 {v(vOffO)}, 896, {v(vOffO)}")
        A(f"v_lshl_add_u32 {v(vOffO)}, {v(vC)}, 4, {v(vOffO)}")
        A(f"s_lshl_b32 {s(T + 2)}, {s(S_J)}, 7")
        A(f"v_add_u32 {v(vOffO)}, {s(T + 2)}, {v(vOffO)}")
        kad = {}
        for n_, i in enumerate((0, 1, 2, 4)):
            d = (i - 3) * 896
            kad[i] = vKa + n_
            if d < 0:
                A(f"v_subrev_u32 {v(kad[i])}, {-d}, {v(vOffO)}")
            else:
                A(f"v_add_u32 {v(kad[i])}, {d}, {v(vOffO)}")
        kad[3] = vOffO
        self.srd(R_A, P_K, NB)
        self.srd(R_B, P_V, NB)
        for i in range(5):
            A(f"buffer_load_dwordx4 {v(vK + 4 * i, 4)}, {v(kad[i])}, {s(R_A, 4)}, 0 offen")
        for i in range(2):
            A(f"buffer_load_dwordx4 {v(vV + 4 * i, 4)}, {v(vOffO)}, {s(R_B, 4)}, 0 offen offset:{896 * i}")
        self.srd(R_C, P_SH, 448 * 8)
        A(f"s_lshl_b32 {s(T + 3)}, {s(S_J)}, 9")
        A(f"v_lshl_add_u32 {v(vSh)}, {v(vC)}, 6, {s(T + 3)}")
        for i in range(4):
            A(f"buffer_load_dwordx4 {v(vSH + 4 * i, 4)}, {v(vSh)}, {s(R_C, 4)}, 0 offen offset:{16 * i}")
        self.srd(R_A, P_Q, NB)
        for r in range(2):
            A(f"buffer_load_dwordx4 {v(vQO + 4 * r, 4)}, {v(vOffO)}, {s(R_A, 4)}, 0 offen offset:{896 * r}")
        A(f"s_lshl_b32 {s(t1)}, {s(S_J)}, 3")
        A(f"s_add_u32 {s(t0)}, {s(T)}, {s(t1)}")
        A(f"s_lshl_b32 {s(t1)}, {s(S_WV)}, 2")
        A(f"s_add_u32 {s(t0)}, {s(t0)}, {s(t1)}")
        A(f"v_lshrrev_b32 {v(vRow)}, 4, v1")
        A(f"v_add_u32 {v(vRow)}, {s(t0)}, {v(vRow)}")
        A(f"v_mul_u32_u24 {v(vSa)}, 896, {v(vRow)}")
        A(f"v_and_b32 {v(vSb)}, 15, v1")
        A(f"v_lshl_add_u32 {v(vSa)}, {v(vSb)}, 4, {v(vSa)}")
        A(f"v_cmp_gt_u32 vcc, 8, {v(vSb)}")
        A(f"v_add_u32 {v(vSb)}, 768, {v(vSa)}")
        A(f"v_mov_b32 {v(vx)}, -1")
        A(f"v_cndmask_b32 {v(vSb)}, {v(vx)}, {v(vSb)}, vcc")
        for i in range(3):
            A(f"buffer_load_dwordx4 {v(vQ + 4 * i, 4)}, {v(vSa)}, {s(R_A, 4)}, 0 offen offset:{256 * i}")
        A(f"buffer_load_dwordx4 {v(vQ + 12, 4)}, {v(vSb)}, {s(R_A, 4)}, 0 offen")
        self.stamp(1)

        sWB, sSrc, sStride, sA, sR1, sD0, sDS = T + 4, T + 6, T + 7, T + 8, T + 9, T + 10, T + 11
        A(f"s_mul_i32 {s(sWB)}, {s(S_RB)}, 7")
        A(f"s_add_u32 {s(sWB)}, {s(sWB)}, {s(S_J)}")
        A(f"s_lshr_b32 {s(t0)}, {s(sWB)}, 2")
        A(f"s_and_b32 {s(t1)}, {s(sWB)}, 3")
        A(f"s_mul_i32 {s(sSrc)}, {s(t0)}, {16 * 3584}")
        A(f"s_mul_i32 {s(t2)}, {s(t1)}, 896")
        A(f"s_add_u32 {s(sSrc)}, {s(sSrc)}, {s(t2)}")
        A(f"s_mul_i32 {s(t2)}, {s(t1)}, 14")
        A(f"s_add_u32 {s(t2)}, {s(t2)}, {s(S_WV)}")
        A(f"s_mul_i32 {s(t2)}, {s(t2)}, 28")
        A(f"s_add_u32 {s(sD0)}, {s(t2)}, {s(t0)}")
        A(f"s_lshl_b32 {s(sD0)}, {s(sD0)}, 10")
        A(f"s_add_u32 {s(sD0)}, {s(sD0)}, {W1F}")
        u0, u1, u2, uSrc, uD0 = T + 16, T + 17, T + 18, T + 19, T + 20
        A(f"s_sub_u32 {s(u0)}, {s(sWB)}, 112")
        A(f"s_mul_i32 {s(uSrc)}, {s(u0)}, {16 * 896}")
        A(f"s_mul_i32 {s(u1)}, {s(u0)}, 147")
        A(f"s_lshr_b32 {s(u1)}, {s(u1)}, 12")
        A(f"s_mul_i32 {s(u2)}, {s(u1)}, 28")
        A(f"s_sub_u32 {s(u2)}, {s(u0)}, {s(u2)}")
        A(f"s_mul_i32 {s(uD0)}, {s(u1)}, 56")
        A(f"s_lshl_b32 {s(u2)}, {s(u2)}, 1")
        A(f"s_add_u32 {s(uD0)}, {s(uD0)}, {s(u2)}")
        A(f"s_lshr_b32 {s(u1)}, {s(S_WV)}, 1")
        A(f"s_mul_i32 {s(u1)}, {s(u1)}, 224")
        A(f"s_add_u32 {s(uD0)}, {s(uD0)}, {s(u1)}")
        A(f"s_and_b32 {s(u1)}, {s(S_WV)}, 1")
        A(f"s_add_u32 {s(uD0)}, {s(uD0)}, {s(u1)}")
        A(f"s_lshl_b32 {s(uD0)}, {s(uD0)}, 10")
        A(f"s_add_u32 {s(uD0)}, {s(uD0)}, {W2F}")
        A(f"s_cmp_ge_u32 {s(sWB)}, 112")
        A(f"s_cselect_b32 {s(sSrc)}, {s(uSrc)}, {s(sSrc)}")
        A(f"s_cselect_b32 {s(sD0)}, {s(uD0)}, {s(sD0)}")
        A(f"s_mov_b32 {s(sStride)}, 3584")
        A(f"s_cselect_b32 {s(sStride)}, 896, {s(sStride)}")
        A(f"s_cselect_b32 {s(sA)}, 4, 8")
        A(f"s_mov_b32 {s(sR1)}, {4 * 1088}")
        A(f"s_cselect_b32 {s(sR1)}, {8 * 1088}, {s(sR1)}")
        A(f"s_mov_b32 {s(sDS)}, {112 * 1024}")
        A(f"s_cselect_b32 {s(sDS)}, {448 * 1024}, {s(sDS)}")
        A(f"s_cselect_b32 {s(R_D)}, {s(P_W2)}, {s(P_W1)}")
        A(f"s_cselect_b32 {s(R_D + 1)}, {s(P_W2 + 1)}, {s(P_W1 + 1)}")
        A(f"s_mov_b32 {s(R_D + 2)}, 1605632")
        A(f"s_mov_b32 {s(R_D + 3)}, 0x{SRD3:08x}")
        A(f"s_lshl_b32 {s(t0)}, {s(S_WV)}, 2")
        A(f"s_mul_i32 {s(t0)}, {s(t0)}, {s(sStride)}")
        A(f"s_add_u32 {s(sSrc)}, {s(sSrc)}, {s(t0)}")
        A(f"v_lshlrev_b32 {v(vL16)}, 4, v1")
        A(f"v_add_u32 {v(vWa)}, {s(sSrc)}, {v(vL16)}")
        A(f"s_lshl_b32 {s(t0)}, {s(S_CP)}, 13")
        self.srd(R_B, P_SK, 4096, add=s(t0))
        A(f"s_add_u32 {s(t0)}, {s(t0)}, 4096")
        self.srd(R_C, P_SK, 4096, add=s(t0))
        vKA, vKB, vKA2, vKB2 = 132, 133, 134, 135
        A(f"v_lshlrev_b32 {v(vKA)}, 4, v0")
        A(f"v_subrev_u32 {v(vKB)}, 16, {v(vKA)}")
        A(f"v_subrev_u32 {v(vKA)}, 32, {v(vKA)}")
        A(f"v_and_b32 {v(vKA2)}, 1, v1")
        A(f"v_lshlrev_b32 {v(vKA2)}, 4, {v(vKA2)}")
        A(f"v_add_u32 {v(vKB2)}, 4080, {v(vKA2)}")
        vTPW, vWw, vTPR, vStO, vTR0, vTR1, vKW = 136, 137, 138, 139, 140, 141, 142
        A(f"v_add_u32 {v(vKW + 1)}, {4096 + L_KC}, {v(vKA2)}")
        A(f"v_add_u32 {v(vKA2)}, 4064, {v(vKA2)}")
        A(f"v_lshlrev_b32 {v(vKW)}, 4, v0")
        A(f"v_add_u32 {v(vKW)}, {L_KC}, {v(vKW)}")
        A(f"v_mul_u32_u24 {v(vTPW)}, 1088, {v(vC)}")
        A(f"v_lshl_add_u32 {v(vTPW)}, {v(vRG)}, 3, {v(vTPW)}")
        A(f"s_lshl_b32 {s(t0)}, {s(S_WV)}, 6")
        A(f"v_add_u32 {v(vTPW)}, {s(t0)}, {v(vTPW)}")
        A(f"s_mul_i32 {s(t1)}, {s(S_WV)}, {4 * 1088}")
        A(f"v_add_u32 {v(vWw)}, {s(t1)}, {v(vL16)}")
        A(f"v_lshrrev_b32 {v(vStO)}, 4, v0")
        A(f"v_mul_u32_u24 {v(vTPR)}, 272, {v(vStO)}")
        A(f"v_and_b32 {v(vx)}, 15, v0")
        A(f"v_lshl_add_u32 {v(vTPR)}, {v(vx)}, 4, {v(vTPR)}")
        A(f"v_lshlrev_b32 {v(vStO)}, 13, {v(vStO)}")
        A(f"v_lshl_add_u32 {v(vStO)}, {v(vx)}, 4, {v(vStO)}")
        A(f"v_lshrrev_b32 {v(vTR0)}, 5, v1")
        A(f"v_mul_lo_u32 {v(vTR0)}, {v(vTR0)}, {s(sA)}")
        A(f"v_bfe_u32 {v(vx)}, v1, 2, 2")
        A(f"v_add_u32 {v(vTR0)}, {v(vTR0)}, {v(vx)}")
        A(f"v_mul_u32_u24 {v(vTR0)}, 1088, {v(vTR0)}")
        A(f"v_bfe_u32 {v(vx)}, v1, 4, 1")
        A(f"v_lshl_add_u32 {v(vTR0)}, {v(vx)}, 5, {v(vTR0)}")
        A(f"v_and_b32 {v(vx)}, 3, v1")
        A(f"v_lshl_add_u32 {v(vTR0)}, {v(vx)}, 3, {v(vTR0)}")
        A(f"v_add_u32 {v(vTR0)}, {s(t0)}, {v(vTR0)}")
        A(f"v_add_u32 {v(vTR1)}, {s(sR1)}, {v(vTR0)}")
        sTile = S_OFF
        A(f"s_lshl_b32 {s(sTile)}, {s(S_J)}, 18")
        A(f"s_lshl_b32 {s(t0)}, {s(S_RB)}, 8")
        A(f"s_add_u32 {s(sTile)}, {s(sTile)}, {s(t0)}")
        A(f"v_lshlrev_b32 {v(vRow)}, 2, {v(vRow)}")
        A("v_mov_b32 v240, 0")
        A("v_mov_b32 v241, 0")
        A("v_lshlrev_b32 v242, 3, v1")
        for e in range(2):
            A(f"ds_write_b64 v242, v[240:241] offset:{L_UR + 4608 * e + 4096}")

        TT, WP, AC, vO = 144, 184, 216, 232
        A.await_regs(v(vSH, 16))
        for p in range(4):
            for e in range(2):
                d0 = vSH + 2 * (2 * p + e)
                w = WP + 8 * p
                A(f"v_lshlrev_b32 {v(w + 0 + e)}, 16, {v(d0)}")
                A(f"v_and_b32 {v(w + 2 + e)}, {s(S_MASKHI)}, {v(d0)}")
                A(f"v_lshlrev_b32 {v(w + 4 + e)}, 16, {v(d0 + 1)}")
                A(f"v_and_b32 {v(w + 6 + e)}, {s(S_MASKHI)}, {v(d0 + 1)}")
        self.stamp(21)
        for i in range(5):
            for p in range(4):
                src = vK + 4 * i + p
                A(f"v_lshlrev_b32 {v(TT + 10 * p + 2 * i)}, 16, {v(src)}")
                A(f"v_and_b32 {v(TT + 10 * p + 2 * i + 1)}, {s(S_MASKHI)}, {v(src)}")
        for tap in range(4):
            for p in range(4):
                for row in range(2):
                    acc = AC + 4 * p + 2 * row
                    x = v(TT + 10 * p + 2 * (3 + row - tap), 2)
                    w = v(WP + 8 * p + 2 * tap, 2)
                    if tap == 0:
                        A(f"v_pk_mul_f32 {v(acc, 2)}, {x}, {w}")
                    else:
                        A(f"v_pk_fma_f32 {v(acc, 2)}, {x}, {w}, {v(acc, 2)}")
        for row in range(2):
            for p in range(4):
                src = vV + 4 * row + p
                A(f"v_lshlrev_b32 {v(TT + 10 * p + 2 * row)}, 16, {v(src)}")
                A(f"v_and_b32 {v(TT + 10 * p + 2 * row + 1)}, {s(S_MASKHI)}, {v(src)}")
        for p in range(4):
            for row in range(2):
                acc = AC + 4 * p + 2 * row
                A(f"v_pk_mul_f32 {v(acc, 2)}, {v(acc, 2)}, {v(TT + 10 * p + 2 * row, 2)}")
        for p in range(4):
            for row in range(2):
                acc = AC + 4 * p + 2 * row
                A(f"v_cvt_pk_bf16_f32 {v(vO + 2 * p + row)}, {v(acc)}, {v(acc + 1)}")
        for p in range(4):
            A(f"ds_write_b64 {v(vTPW)}, {v(vO + 2 * p, 2)} offset:{L_TPK + 272 * p}")
        self.stamp(22)
        A(f"v_add_u32 {v(vx)}, {L_TPQ}, {v(vTPW)}")
        A.await_regs(v(vQO, 8))
        for p in range(4):
            A(f"ds_write2_b32 {v(vx)}, {v(vQO + p)}, {v(vQO + 4 + p)} offset0:{68 * p} offset1:{68 * p + 1}")
        vS, vU = 240, 144
        A.await_regs(v(vQ, 16))
        for i in range(16):
            A(f"v_lshlrev_b32 {v(vU + 2 * i)}, 16, {v(vQ + i)}")
            A(f"v_and_b32 {v(vU + 2 * i + 1)}, {s(S_MASKHI)}, {v(vQ + i)}")
        S1, S2 = (240, 242), (244, 246)
        for i in range(16):
            u = v(vU + 2 * i, 2)
            if i < 2:
                A(f"v_pk_mul_f32 {v(S2[i], 2)}, {u}, {u}")
            else:
                A(f"v_pk_fma_f32 {v(S2[i & 1], 2)}, {u}, {u}, {v(S2[i & 1], 2)}")
            if i in (2, 3):
                A(f"v_pk_add_f32 {v(S1[i & 1], 2)}, {v(vU + 2 * (i - 2), 2)}, {u}")
            elif i > 3:
                A(f"v_pk_add_f32 {v(S1[i & 1], 2)}, {v(S1[i & 1], 2)}, {u}")
        A(f"v_pk_add_f32 {v(240, 2)}, {v(240, 2)}, {v(242, 2)}")
        A(f"v_pk_add_f32 {v(244, 2)}, {v(244, 2)}, {v(246, 2)}")
        m, q2 = 240, 244
        A(f"v_add_f32 {v(m)}, {v(m)}, {v(m + 1)}")
        A(f"v_add_f32 {v(q2)}, {v(q2)}, {v(q2 + 1)}")
        for mod in ("quad_perm:[1,0,3,2]", "quad_perm:[2,3,0,1]", "row_half_mirror", "row_mirror"):
            for c_ in (m, q2):
                A(f"v_add_f32_dpp {v(c_)}, {v(c_)}, {v(c_)} {mod} row_mask:0xf bank_mask:0xf")
        A(f"s_mov_b32 {s(t0)}, 0x{f32bits(1.0 / 448):08x}")
        A(f"s_mov_b32 {s(t1)}, 0x{f32bits(1e-5):08x}")
        A(f"v_mul_f32 {v(m)}, {s(t0)}, {v(m)}")
        A(f"v_mul_f32 {v(q2)}, {s(t0)}, {v(q2)}")
        A(f"v_fma_f32 {v(q2)}, -{v(m)}, {v(m)}, {v(q2)}")
        A(f"v_max_f32 {v(q2)}, 0, {v(q2)}")
        A(f"v_add_f32 {v(q2)}, {s(t1)}, {v(q2)}")
        A(f"v_rsq_f32 {v(q2)}, {v(q2)}")
        A.barrier()
        self.stamp(23)
        vRB = 16
        for i in range(2):
            A(f"ds_read_b128 {v(vRB + 4 * i, 4)}, {v(vTPR)} offset:{L_TPK + 4352 * i}")
        for i in range(2):
            A(f"ds_read_b128 {v(vRB + 8 + 4 * i, 4)}, {v(vTPR)} offset:{L_TPQ + 4352 * i}")
        A(f"v_mul_f32 {v(m)}, {v(m)}, {v(q2)}")
        A(f"s_add_u32 {s(t0)}, {s(sTile)}, {KVP}")
        A(f"s_add_u32 {s(t1)}, {s(sTile)}, {KVP + 131072}")
        A(f"s_add_u32 {s(t2)}, {s(sTile)}, {QP}")
        A(f"s_add_u32 {s(u0)}, {s(sTile)}, {QP + 131072}")
        A.await_regs(v(vRB, 8))
        A(f"buffer_store_dwordx4 {v(vRB, 4)}, {v(vStO)}, {s(R_WS, 4)}, {s(t0)} offen sc1")
        A(f"buffer_store_dwordx4 {v(vRB + 4, 4)}, {v(vStO)}, {s(R_WS, 4)}, {s(t1)} offen sc1")
        A.await_regs(v(vRB + 8, 8))
        A(f"buffer_store_dwordx4 {v(vRB + 8, 4)}, {v(vStO)}, {s(R_WS, 4)}, {s(t2)} offen sc1")
        A(f"buffer_store_dwordx4 {v(vRB + 12, 4)}, {v(vStO)}, {s(R_WS, 4)}, {s(u0)} offen sc1")
        A(f"s_mov_b32 {s(t0)}, {STR}")
        A(f"s_mov_b32 {s(t1)}, {STM}")
        A(f"s_mov_b32 exec_lo, 0x00010001")
        A(f"s_mov_b32 exec_hi, 0x00010001")
        A(f"buffer_store_dword {v(q2)}, {v(vRow)}, {s(R_WS, 4)}, {s(t0)} offen sc1")
        A(f"buffer_store_dword {v(m)}, {v(vRow)}, {s(R_WS, 4)}, {s(t1)} offen sc1")
        A("s_mov_b64 exec, -1")
        self.stamp(24)
        def batch2():
            for e in range(2):
                R = R_B if e == 0 else R_C
                for ps in range(2):
                    b = vKD + 8 * (2 * e + ps)
                    A(f"buffer_load_dwordx4 {v(b, 4)}, {v(vKA if ps == 0 else vKA2)}, {s(R, 4)}, 0 offen")
                    A(f"buffer_load_dwordx2 {v(b + 4, 2)}, {v(vKB if ps == 0 else vKB2)}, {s(R, 4)}, 0 offen")

        mark = A.vm_count
        if not self.o.get("b2_late", 0):
            batch2()
        A(f"s_add_u32 {s(S_NONCE)}, {s(S_NONCE)}, 1")
        A(f"s_lshl_b32 {s(t0)}, {s(S_CP)}, 7")
        A(f"s_add_u32 {s(t0)}, {s(t0)}, {FL + F1 * 128}")
        A.wait_vm(A.vm_count - mark)
        A.barrier()
        self.flag_store(t0)
        if self.o.get("b2_late", 0):
            batch2()
        self.stamp(3)
        vx4 = 48
        for e in range(2):
            for ps in range(2):
                b = vKD + 8 * (2 * e + ps)
                base = e * 4 * CS
                ad = vKW + ps
                A.await_regs(v(b, 6))
                for i in range(4):
                    A(f"v_alignbit_b32 {v(vx4 + i)}, {v(b + i + 1)}, {v(b + i)}, 16")
                for i in range(4):
                    A(f"v_mov_b32 {v(vx4 + 4 + i)}, {v(b + i + 1)}")
                for i in range(4):
                    A(f"v_alignbit_b32 {v(vx4 + 8 + i)}, {v(b + i + 2)}, {v(b + i + 1)}, 16")
                A(f"ds_write_b128 {v(ad)}, {v(b, 4)} offset:{base}")
                A(f"ds_write_b128 {v(ad)}, {v(vx4, 4)} offset:{base + CS}")
                A(f"ds_write_b128 {v(ad)}, {v(vx4 + 4, 4)} offset:{base + 2 * CS}")
                A(f"ds_write_b128 {v(ad)}, {v(vx4 + 8, 4)} offset:{base + 3 * CS}")
        self.stamp(25)
        self.wr = dict(sWB=sWB, sD0=sD0, sDS=sDS, sStride=sStride, vWa=216, vWw=217, vTR0=218, vTR1=219)
        for dst, src in ((216, vWa), (217, vWw), (218, vTR0), (219, vTR1)):
            A(f"v_mov_b32 {v(dst)}, {v(src)}")
        self.stamp(26)

    def w_loads(self):
        A = self.A
        W = self.wr
        for i in range(4):
            A(f"buffer_load_dwordx4 {v(220 + 4 * i, 4)}, {v(W['vWa'])}, {s(R_D, 4)}, 0 offen")
            if i < 3:
                A(f"v_add_u32 {v(W['vWa'])}, {s(W['sStride'])}, {v(W['vWa'])}")

    def w_to_lds(self):
        A = self.A
        W = self.wr
        A.await_regs(v(220, 16))
        for i in range(4):
            A(f"ds_write_b128 {v(W['vWw'])}, {v(220 + 4 * i, 4)} offset:{L_WB + 1088 * i}")

    def w_tr_reads(self):
        A = self.A
        W = self.wr
        for i in range(4):
            A(f"ds_read_b64_tr_b16 {v(220 + 4 * i, 2)}, {v(W['vTR0'])} offset:{L_WB + 256 * i}")
            A(f"ds_read_b64_tr_b16 {v(220 + 4 * i + 2, 2)}, {v(W['vTR1'])} offset:{L_WB + 256 * i}")

    def w_stores(self):
        A = self.A
        vF, sD0, sDS = 220, self.wr["sD0"], self.wr["sDS"]
        A.await_regs(v(vF, 16))
        for i in range(3):
            A(f"buffer_store_dwordx4 {v(vF + 4 * i, 4)}, v4, {s(R_WS, 4)}, {s(sD0)} offen sc1")
            A(f"s_add_u32 {s(sD0)}, {s(sD0)}, {s(sDS)}")
        skip = self.lab("w4")
        A(f"s_cmp_ge_u32 {s(S_WV)}, 2")
        A(f"s_cbranch_scc1 {skip}")
        A.cond_begin()
        A(f"buffer_store_dwordx4 {v(vF + 12, 4)}, v4, {s(R_WS, 4)}, {s(sD0)} offen sc1")
        A.cond_end()
        A.label(skip)

    def poll2_issue(self, va, vb, vt):
        A = self.A
        A(f"buffer_load_dword {v(vt)}, {v(va)}, {s(R_WS, 4)}, 0 offen sc1")
        A(f"buffer_load_dword {v(vt + 1)}, {v(vb)}, {s(R_WS, 4)}, 0 offen sc1")

    def poll1_check(self, va, vt):
        A = self.A
        done = self.lab("p1d")
        A(f"v_cmp_ne_u32 vcc, {s(S_NONCE)}, {v(vt)}")
        A("s_nop 1")
        A("s_cmp_eq_u64 vcc, 0")
        A(f"s_cbranch_scc1 {done}")
        st = A.snapshot()
        self.poll(va, vt)
        A.restore(st)
        A.label(done)

    def poll2_check(self, va, vb, vt):
        A = self.A
        loop, done = self.lab("p2"), self.lab("p2d")
        A(f"v_cmp_ne_u32 vcc, {s(S_NONCE)}, {v(vt)}")
        A(f"v_cmp_ne_u32 {s(S_SPIN + 2, 2)}, {s(S_NONCE)}, {v(vt + 1)}")
        A(f"s_mov_b32 {s(S_SPIN)}, 0")
        A("s_nop 1")
        A(f"s_or_b64 vcc, vcc, {s(S_SPIN + 2, 2)}")
        A("s_cmp_eq_u64 vcc, 0")
        A(f"s_cbranch_scc1 {done}")
        st = A.snapshot()
        A.label(loop)
        A(f"buffer_load_dword {v(vt)}, {v(va)}, {s(R_WS, 4)}, 0 offen sc1")
        A(f"buffer_load_dword {v(vt + 1)}, {v(vb)}, {s(R_WS, 4)}, 0 offen sc1")
        A.wait_vm(0)
        A(f"v_cmp_ne_u32 vcc, {s(S_NONCE)}, {v(vt)}")
        A(f"v_cmp_ne_u32 {s(S_SPIN + 2, 2)}, {s(S_NONCE)}, {v(vt + 1)}")
        A(f"s_add_u32 {s(S_SPIN)}, {s(S_SPIN)}, 1")
        A("s_nop 1")
        A(f"s_or_b64 vcc, vcc, {s(S_SPIN + 2, 2)}")
        A("s_cmp_eq_u64 vcc, 0")
        A(f"s_cbranch_scc1 {done}")
        A(f"s_cmp_lt_u32 {s(S_SPIN)}, {SPIN_MAX}")
        A(f"s_cbranch_scc1 {loop}")
        A.restore(st)
        A.label(done)

    def phase_a(self):
        A = self.A
        T = S_T
        t0, t1, t2 = T, T + 1, T + 2
        vPa, vPt, vx, vy = 2, 3, 16, 17
        A(f"v_min_u32 {v(vPa)}, 55, v1")
        A(f"s_mul_i32 {s(t0)}, {s(S_WV)}, 56")
        A(f"v_add_u32 {v(vPa)}, {s(t0)}, {v(vPa)}")
        A(f"v_lshlrev_b32 {v(vPa)}, 7, {v(vPa)}")
        A(f"v_add_u32 {v(vPa)}, {FL + F1 * 128}, {v(vPa)}")
        vL16 = 4
        sKV = S_OFF + 2
        A(f"s_lshl_b32 {s(sKV)}, {s(S_CP)}, 13")
        A(f"s_lshl_b32 {s(t2)}, {s(S_WV)}, 11")
        A(f"s_add_u32 {s(sKV)}, {s(sKV)}, {s(t2)}")
        vUW, vaA, vaB = 5, 6, 7
        A(f"s_lshl_b32 {s(t0)}, {s(S_WV)}, 10")
        A(f"s_sub_u32 {s(t0)}, {4088 - 512}, {s(t0)}")
        A(f"v_lshlrev_b32 {v(vx)}, 3, v1")
        A(f"v_sub_u32 {v(vUW)}, {s(t0)}, {v(vx)}")
        A(f"v_and_b32 {v(vx)}, 15, v1")
        A(f"v_add_u32 {v(vx)}, 1, {v(vx)}")
        A(f"v_and_b32 {v(vy)}, 3, {v(vx)}")
        A(f"v_sub_u32 {v(vx)}, {v(vx)}, {v(vy)}")
        A(f"v_lshlrev_b32 {v(vx)}, 1, {v(vx)}")
        A(f"v_mul_u32_u24 {v(vy)}, {CS}, {v(vy)}")
        A(f"v_add_u32 {v(vaA)}, {v(vx)}, {v(vy)}")
        A(f"v_lshrrev_b32 {v(vy)}, 4, v1")
        A(f"v_lshl_add_u32 {v(vaA)}, {v(vy)}, 4, {v(vaA)}")
        A(f"s_lshr_b32 {s(t0)}, {s(S_WV)}, 1")
        A(f"s_and_b32 {s(t1)}, {s(S_WV)}, 1")
        A(f"s_mul_i32 {s(t2)}, {s(t0)}, {4 * CS}")
        A(f"s_lshl_b32 {s(t1)}, {s(t1)}, 8")
        A(f"s_add_u32 {s(t2)}, {s(t2)}, {s(t1)}")
        A(f"s_add_u32 {s(t2)}, {s(t2)}, {L_KC}")
        A(f"v_add_u32 {v(vaA)}, {s(t2)}, {v(vaA)}")
        A(f"v_and_b32 {v(vx)}, 15, v1")
        A(f"v_lshlrev_b32 {v(vx)}, 5, {v(vx)}")
        A(f"v_lshlrev_b32 {v(vy)}, 4, {v(vy)}")
        A(f"v_sub_u32 {v(vaB)}, {v(vy)}, {v(vx)}")
        A(f"s_mul_i32 {s(t2)}, {s(t0)}, 4608")
        A(f"s_add_u32 {s(t2)}, {s(t2)}, {s(t1)}")
        A(f"s_add_u32 {s(t2)}, {s(t2)}, {L_UR + 480}")
        A(f"v_add_u32 {v(vaB)}, {s(t2)}, {v(vaB)}")
        vPW, vPM, vPR = 18, 19, 20
        A(f"s_lshl_b32 {s(t0)}, {s(S_J)}, 3")
        A(f"s_lshl_b32 {s(t1)}, {s(S_WV)}, 1")
        A(f"s_add_u32 {s(t0)}, {s(t0)}, {s(t1)}")
        A(f"s_mul_i32 {s(t0)}, {s(t0)}, 147")
        A(f"s_lshr_b32 {s(t0)}, {s(t0)}, 11")
        A(f"v_min_u32 {v(vx)}, 27, v1")
        A(f"v_lshl_add_u32 {v(vPW)}, {v(vx)}, 2, {s(t0)}")
        A(f"s_mul_i32 {s(t1)}, {s(S_WV)}, 28")
        A(f"s_add_u32 {s(t1)}, {s(t1)}, {112 - 32}")
        A(f"v_min_u32 {v(vy)}, 59, v1")
        A(f"v_add_u32 {v(vy)}, {s(t1)}, {v(vy)}")
        A(f"v_cmp_gt_u32 vcc, 32, v1")
        A(f"v_cndmask_b32 {v(vPW)}, {v(vy)}, {v(vPW)}, vcc")
        A(f"v_lshlrev_b32 {v(vPW)}, 7, {v(vPW)}")
        A(f"v_add_u32 {v(vPW)}, {FL + FQ * 128}, {v(vPW)}")
        A(f"v_and_b32 {v(vPM)}, 31, v1")
        A(f"v_lshlrev_b32 {v(vPM)}, 7, {v(vPM)}")
        A(f"v_add_u32 {v(vPM)}, {FL + FM * 128}, {v(vPM)}")
        A(f"s_add_u32 {s(t1)}, {s(sKV)}, {KVP}")
        self.poll(vPa, vPt)
        A.barrier()
        self.stamp(5)
        vKV = 8
        for h in range(2):
            A(f"buffer_load_dwordx4 {v(vKV + 4 * h, 4)}, {v(vL16)}, {s(R_WS, 4)}, {s(t1)} offen offset:{1024 * h} sc1")
        vQn, vRs, vMs = 144, 152, 160
        A(f"s_add_u32 {s(t1)}, {s(sKV)}, {QP}")
        for h in range(2):
            A(f"buffer_load_dwordx4 {v(vQn + 4 * h, 4)}, {v(vL16)}, {s(R_WS, 4)}, {s(t1)} offen offset:{1024 * h} sc1")
        A(f"s_lshl_b32 {s(t0)}, {s(S_WV)}, 11")
        A(f"s_add_u32 {s(t1)}, {s(t0)}, {STR}")
        A(f"s_add_u32 {s(t2)}, {s(t0)}, {STM}")
        for h in range(2):
            A(f"buffer_load_dwordx4 {v(vRs + 4 * h, 4)}, {v(vL16)}, {s(R_WS, 4)}, {s(t1)} offen offset:{1024 * h} sc1")
            A(f"buffer_load_dwordx4 {v(vMs + 4 * h, 4)}, {v(vL16)}, {s(R_WS, 4)}, {s(t2)} offen offset:{1024 * h} sc1")
        self.w_loads()
        vP = 22
        A.await_regs(v(vKV, 8))
        for h in range(2):
            d = vKV + 4 * h
            for e, sel in ((0, S_PERM_LO), (1, S_PERM_HI)):
                o = vP + 4 * h + 2 * e
                A(f"v_perm_b32 {v(o)}, {v(d + 2)}, {v(d + 3)}, {s(sel)}")
                A(f"v_perm_b32 {v(o + 1)}, {v(d)}, {v(d + 1)}, {s(sel)}")
        for h in range(2):
            for e in range(2):
                o = vP + 4 * h + 2 * e
                A(f"ds_write_b64 {v(vUW)}, {v(o, 2)} offset:{L_UR + 4608 * e + (512 if h == 0 else 0)}")
        A.barrier()
        self.stamp(6)
        ACC = 32
        BS = [64, 96]
        AR = 128

        def ldB(rp, m):
            A(f"ds_read_b128 {v(BS[rp & 1] + 4 * m, 4)}, {v(vaB)} offset:{64 * rp + 512 * (7 - m)}")

        def ldA(idx):
            rp, q = divmod(idx, 8)
            r = AR + 4 * (idx % 4)
            A(f"ds_read_b64 {v(r, 2)}, {v(vaA)} offset:{64 * rp + 512 * q}")
            A(f"ds_read_b64 {v(r + 2, 2)}, {v(vaA)} offset:{64 * rp + 512 * q + 8}")

        ldA(0)
        for m in range(8):
            ldB(0, m)
        ldA(1)
        ldA(2)
        vPS, vPA, vPG, vPD, vPar = 168, 170, 172, 174, 176
        nm = 0
        for rp in range(4):
            if rp == 1:
                A(f"buffer_load_dword {v(vPR + 1)}, {v(vPM)}, {s(R_WS, 4)}, 0 offen sc1")
            pass
            if rp == 2:
                self.poll1_check(vPM, vPR + 1)
                self.w_to_lds()
                A.barrier()
                self.w_tr_reads()
                A(f"s_lshl_b32 {s(t0)}, {s(S_CP)}, 3")
                A(f"v_mov_b32 {v(vx)}, {s(t0)}")
                for reg, sec in ((vPS, 0), (vPA, 1), (vPG, 2)):
                    A(f"s_mov_b32 {s(t1)}, {MODF + sec * 1792}")
                    A(f"buffer_load_dwordx2 {v(reg, 2)}, {v(vx)}, {s(R_WS, 4)}, {s(t1)} offen sc1")
                self.srd(R_A, P_D, 896)
                A(f"s_lshl_b32 {s(t0)}, {s(S_CP)}, 2")
                A(f"v_mov_b32 {v(vy)}, {s(t0)}")
                A(f"buffer_load_dword {v(vPD + 1)}, {v(vy)}, {s(R_A, 4)}, 0 offen")
                A(f"v_lshlrev_b32 {v(vx)}, 3, v0")
                A(f"s_mov_b32 {s(t0)}, {MODF + 4 * 1792}")
                A(f"s_mov_b32 {s(t1)}, {MODF + 3 * 1792}")
                A(f"buffer_load_dwordx2 {v(vPar, 2)}, {v(vx)}, {s(R_WS, 4)}, {s(t0)} offen sc1")
                A(f"buffer_load_dwordx2 {v(vPar + 2, 2)}, {v(vx)}, {s(R_WS, 4)}, {s(t1)} offen sc1")
                A(f"v_lshlrev_b32 {v(vy)}, 2, v1")
                A(f"s_lshl_b32 {s(t0)}, {s(S_J)}, 8")
                A(f"s_add_u32 {s(t0)}, {s(t0)}, {MODF + 5 * 1792}")
                A(f"buffer_load_dword {v(vPar + 4)}, {v(vy)}, {s(R_WS, 4)}, {s(t0)} offen sc1")
                self.w_stores()
                self.bg_setup()
            for q in range(8):
                idx = rp * 8 + q
                ar = AR + 4 * (idx % 4)
                first = True
                for n in range(q, 8):
                    c = "0" if (rp == 0 and q == 0) else v(ACC + 4 * n, 4)
                    if first:
                        regs = [v(ar, 4)]
                        if q == 0:
                            regs.append(v(BS[rp & 1], 32))
                        A.await_regs(*regs)
                    A(f"v_mfma_f32_16x16x32_bf16 {v(ACC + 4 * n, 4)}, {v(ar, 4)}, {v(BS[rp & 1] + 4 * (n - q), 4)}, {c}")
                    nm += 1
                    if first:
                        first = False
                        if idx + 3 < 32:
                            ldA(idx + 3)
                        if rp < 3 and 0 <= q <= 3:
                            ldB(rp + 1, 2 * q)
                            ldB(rp + 1, 2 * q + 1)
                    if rp >= 2 and self.o.get("conv_pace", 0) and nm % self.o["conv_pace"] == 0:
                        self.bg_emit(1)
        self.stamp(7)
        vRW, vRR, vSt = 183, 19, 182
        A(f"v_and_b32 {v(vx)}, 15, v1")
        A(f"v_mul_u32_u24 {v(vRW)}, 80, {v(vx)}")
        A(f"v_lshrrev_b32 {v(vy)}, 4, v1")
        A(f"v_lshl_add_u32 {v(vRW)}, {v(vy)}, 4, {v(vRW)}")
        A(f"s_mul_i32 {s(t0)}, {s(S_WV)}, 10240")
        A(f"s_add_u32 {s(t0)}, {s(t0)}, {L_RED}")
        A(f"v_add_u32 {v(vRW)}, {s(t0)}, {v(vRW)}")
        A(f"v_mul_u32_u24 {v(vSt)}, 57344, {v(vy)}")
        A(f"v_lshl_add_u32 {v(vSt)}, {v(vx)}, 4, {v(vSt)}")
        for n in range(8):
            A(f"ds_write_b128 {v(vRW)}, {v(ACC + 4 * n, 4)} offset:{1280 * n}")
        A(f"v_lshrrev_b32 {v(vx)}, 2, v1")
        A(f"v_mul_u32_u24 {v(vRR)}, 80, {v(vx)}")
        A(f"v_and_b32 {v(vy)}, 3, v1")
        A(f"v_lshl_add_u32 {v(vRR)}, {v(vy)}, 4, {v(vRR)}")
        A(f"s_mul_i32 {s(t0)}, {s(S_WV)}, 2560")
        A(f"s_add_u32 {s(t0)}, {s(t0)}, {L_RED}")
        A(f"v_add_u32 {v(vRR)}, {s(t0)}, {v(vRR)}")
        sX = S_OFF + 3
        A(f"s_mul_i32 {s(sX)}, {s(S_WV)}, {2 * 229376}")
        A(f"s_lshl_b32 {s(t0)}, {s(S_CP)}, 8")
        A(f"s_add_u32 {s(sX)}, {s(sX)}, {s(t0)}")
        A(f"s_add_u32 {s(sX)}, {s(sX)}, {X1P}")
        A(f"s_add_u32 {s(t1)}, {s(sX)}, 229376")
        U, Q, N = 64, 80, 200
        A.await_regs(v(vQn, 8), v(vRs, 8), v(vMs, 8), v(vPS, 2), v(vPA, 2), v(vPG, 2), v(vPD + 1))
        A(f"v_lshlrev_b32 {v(vPD)}, 16, {v(vPD + 1)}")
        A(f"v_and_b32 {v(vPD + 1)}, {s(S_MASKHI)}, {v(vPD + 1)}")
        for h in range(2):
            for e in range(2):
                for r in range(4):
                    for dst, src in ((U, vKV), (Q, vQn)):
                        d = dst + 8 * h + 4 * e + r
                        if e == 0:
                            A(f"v_lshlrev_b32 {v(d)}, 16, {v(src + 4 * h + r)}")
                        else:
                            A(f"v_and_b32 {v(d)}, {s(S_MASKHI)}, {v(src + 4 * h + r)}")
        for h in range(2):
            for e in range(2):
                for k in (0, 2):
                    o = 8 * h + 4 * e + k
                    A(f"v_pk_fma_f32 {v(N + o, 2)}, {v(Q + o, 2)}, {v(vRs + 4 * h + k, 2)}, {v(vMs + 4 * h + k, 2)} neg_lo:[0,0,1] neg_hi:[0,0,1]")
        for h in range(2):
            for e in range(2):
                for k in (0, 2):
                    o = 8 * h + 4 * e + k
                    A(f"v_pk_fma_f32 {v(N + o, 2)}, {v(N + o, 2)}, {v(vPA, 2)}, {v(vPS, 2)} op_sel:[0,{e},{e}] op_sel_hi:[1,{e},{e}]")
        for h in range(2):
            for e in range(2):
                for k in (0, 2):
                    o = 8 * h + 4 * e + k
                    A(f"v_pk_mul_f32 {v(N + o, 2)}, {v(N + o, 2)}, {v(vPG, 2)} op_sel:[0,{e}] op_sel_hi:[1,{e}]")
        A.wait_vm(0)
        A.barrier()
        A(f"s_lshl_b32 {s(t0)}, {s(self.wr['sWB'])}, 7")
        A(f"s_add_u32 {s(t0)}, {s(t0)}, {FL + FQ * 128}")
        self.flag_store(t0)
        self.stamp(30)
        vY = 96
        for h in range(2):
            for w in range(4):
                A(f"ds_read_b128 {v(vY + 16 * h + 4 * w, 4)}, {v(vRR)} offset:{10240 * w + 1280 * h}")
        A(f"s_mov_b32 {s(t2)}, 0x{f32bits(LOG2E):08x}")
        A(f"v_lshlrev_b32 {v(vx)}, 4, v0")
        A(f"v_add_u32 {v(vx)}, {L_PAR}, {v(vx)}")
        A(f"v_lshlrev_b32 {v(vy)}, 2, v1")
        A(f"v_add_u32 {v(vy)}, {L_GB}, {v(vy)}")
        A.await_regs(v(vPar, 4), v(vPar + 4))
        for r_ in range(vPar, vPar + 4):
            A(f"v_mul_f32 {v(r_)}, {s(t2)}, {v(r_)}")
        A(f"ds_write_b128 {v(vx)}, {v(vPar, 4)}")
        A(f"ds_write_b32 {v(vy)}, {v(vPar + 4)}")
        vOut = 128
        for h in range(2):
            A.await_regs(v(vY + 16 * h, 16))
            ys = [(e, k, vY + 16 * h + 8 * e + k, 8 * h + 4 * e + k) for e in range(2) for k in (0, 2)]
            for e, k, y, o in ys:
                A(f"v_pk_add_f32 {v(y, 2)}, {v(y, 2)}, {v(y + 4, 2)}")
            for e, k, y, o in ys:
                A(f"v_pk_fma_f32 {v(y, 2)}, {v(U + o, 2)}, {v(vPD, 2)}, {v(y, 2)} op_sel:[0,{e},0] op_sel_hi:[1,{e},1]")
            for e, k, y, o in ys:
                A(f"v_pk_fma_f32 {v(y, 2)}, {v(N + o, 2)}, {v(y, 2)}, {v(Q + o, 2)}")
            for r in range(4):
                A(f"v_cvt_pk_bf16_f32 {v(vOut + 4 * h + r)}, {v(vY + 16 * h + r)}, {v(vY + 16 * h + 8 + r)}")
            A(f"buffer_store_dwordx4 {v(vOut + 4 * h, 4)}, {v(vSt)}, {s(R_WS, 4)}, {s(sX if h == 0 else t1)} offen sc1")
        self.stamp(8)
        A(f"s_lshl_b32 {s(t0)}, {s(S_CP)}, 7")
        A(f"s_add_u32 {s(t0)}, {s(t0)}, {FL + F2 * 128}")
        mark = A.vm_count
        A(f"buffer_load_dword {v(vPR)}, {v(vPW)}, {s(R_WS, 4)}, 0 offen sc1")
        A.wait_vm(A.vm_count - mark)
        A.barrier()
        self.flag_store(t0)
        self.poll1_check(vPW, vPR)
        self.bg_emit(self.n_burst_t2)
        self.stamp(9)

    def phase_b(self):
        A = self.A
        T = S_T
        t0, t1, t2 = T, T + 1, T + 2
        vPa, vPt = 2, 4
        A(f"v_min_u32 {v(vPa)}, 55, v1")
        A(f"s_mul_i32 {s(t0)}, {s(S_WV)}, 56")
        A(f"v_add_u32 {v(vPa)}, {s(t0)}, {v(vPa)}")
        A(f"v_lshlrev_b32 {v(vPa)}, 7, {v(vPa)}")
        A(f"v_add_u32 {v(vPa)}, {FL + F2 * 128}, {v(vPa)}")
        self.poll(vPa, vPt)
        A.barrier()
        self.stamp(10)
        A(f"s_lshr_b32 {s(t0)}, {s(S_WV)}, 1")
        A(f"s_lshl_b32 {s(t0)}, {s(t0)}, 10")
        A(f"v_add_u32 v{V_W2O[0]}, {s(t0)}, v{V_L16}")
        A(f"s_sub_u32 {s(t0)}, 1024, {s(t0)}")
        A(f"v_add_u32 v{V_W2O[1]}, {s(t0)}, v{V_L16}")
        vL16 = 4
        A(f"v_lshlrev_b32 {v(vL16)}, 4, v1")
        A(f"s_mul_i32 {s(t1)}, {s(S_WV)}, 14336")
        A(f"s_mul_i32 {s(t0)}, {s(S_RB)}, 57344")
        A(f"s_add_u32 {s(t0)}, {s(t0)}, {s(t1)}")
        A(f"s_add_u32 {s(t0)}, {s(t0)}, {X1P}")
        A(f"s_add_u32 {s(t1)}, {s(t1)}, {L_XD}")
        A(f"s_mov_b32 m0, {s(t1)}")
        for i in range(14):
            if i and i % 4 == 0:
                A(f"s_add_u32 {s(t0)}, {s(t0)}, 4096")
                A(f"s_add_u32 m0, m0, 4096")
            A.dma(f"buffer_load_dwordx4 {v(vL16)}, {s(R_WS, 4)}, {s(t0)} offen offset:{1024 * (i % 4)} sc1 lds", f"x{i}")
        skip = self.lab("ep")
        A(f"s_cmp_lg_u32 {s(S_CP)}, 0")
        A(f"s_cbranch_scc1 {skip}")
        A.cond_begin()
        A(f"s_mov_b32 {s(t0)}, 0")
        self.flag_store(t0)
        A.cond_end()
        A.label(skip)
        if self.o.get("pretouch", 0):
            A(f"s_mul_i32 {s(t0)}, {s(S_RB)}, 112")
            A(f"s_lshl_b32 {s(t2)}, {s(S_J)}, 4")
            A(f"s_add_u32 {s(t0)}, {s(t0)}, {s(t2)}")
            A(f"s_lshl_b32 {s(t2)}, {s(S_WV)}, 2")
            A(f"s_add_u32 {s(t0)}, {s(t0)}, {s(t2)}")
            A(f"s_lshl_b32 {s(t0)}, {s(t0)}, 11")
            A(f"s_add_u32 {s(t0)}, {s(t0)}, {HF}")
            A(f"v_lshlrev_b32 v6, 7, v1")
            A(f"buffer_load_dword v252, v6, {s(R_WS, 4)}, {s(t0)} offen")
        X = 88
        vXR = 5
        A(f"v_lshlrev_b32 {v(vXR)}, 2, v1")
        A(f"v_add_u32 {v(vXR)}, {s(t1)}, {v(vXR)}")

        XR = 72

        def ldX(g):
            A.need(f"x{g}")
            r = XR + 4 * (g % 4)
            A(f"ds_read2st64_b32 {v(r, 2)}, {v(vXR)} offset0:{4 * g} offset1:{4 * g + 1}")
            A(f"ds_read2st64_b32 {v(r + 2, 2)}, {v(vXR)} offset0:{4 * g + 2} offset1:{4 * g + 3}")

        vS = 8
        for g in range(3):
            ldX(g)
        self.stamp(27)
        for g in range(14):
            src = XR + 4 * (g % 4)
            A.await_regs(v(src, 4))
            if g + 3 < 14:
                ldX(g + 3)
            for k in range(4):
                e = 4 * g + k
                r = X + 2 * e
                A(f"v_lshlrev_b32 {v(r)}, 16, {v(src + k)}")
                A(f"v_and_b32 {v(r + 1)}, {s(S_MASKHI)}, {v(src + k)}")
            for k in range(4):
                e = 4 * g + k
                r = X + 2 * e
                s1, s2 = vS + 2 * (e & 1), vS + 4 + 2 * (e & 1)
                if e < 2:
                    A(f"v_mov_b32 {v(s1)}, {v(r)}")
                    A(f"v_mov_b32 {v(s1 + 1)}, {v(r + 1)}")
                    A(f"v_pk_mul_f32 {v(s2, 2)}, {v(r, 2)}, {v(r, 2)}")
                else:
                    A(f"v_pk_add_f32 {v(s1, 2)}, {v(s1, 2)}, {v(r, 2)}")
                    A(f"v_pk_fma_f32 {v(s2, 2)}, {v(r, 2)}, {v(r, 2)}, {v(s2, 2)}")
            if g >= 14 - self.o.get("n_bstat", 11):
                self.bg_emit(1)
        A(f"v_pk_add_f32 {v(vS, 2)}, {v(vS, 2)}, {v(vS + 2, 2)}")
        A(f"v_pk_add_f32 {v(vS + 4, 2)}, {v(vS + 4, 2)}, {v(vS + 6, 2)}")
        A(f"v_add_f32 {v(vS)}, {v(vS)}, {v(vS + 1)}")
        A(f"v_add_f32 {v(vS + 1)}, {v(vS + 4)}, {v(vS + 5)}")
        vSW = 5
        A(f"v_lshlrev_b32 {v(vSW)}, 3, v1")
        A(f"v_add_u32 {v(vSW)}, {L_STAT}, {v(vSW)}")
        A(f"s_lshl_b32 {s(t0)}, {s(S_WV)}, 9")
        A(f"v_add_u32 v6, {s(t0)}, {v(vSW)}")
        A(f"ds_write_b64 v6, {v(vS, 2)}")
        self.stamp(28)
        vPb = 6
        vHW = 7
        A(f"v_lshrrev_b32 v22, 5, v1")
        A(f"v_lshlrev_b32 {v(vHW)}, 10, v22")
        A(f"v_and_b32 v22, 31, v1")
        A(f"v_lshl_add_u32 {v(vHW)}, v22, 4, {v(vHW)}")
        A(f"s_mul_i32 {s(t0)}, {s(S_WV)}, {7 * 2048}")
        A(f"v_add_u32 {v(vHW)}, {s(t0)}, {v(vHW)}")
        A(f"s_mul_i32 {s(t0)}, {s(S_WV)}, 896")
        A(f"s_add_u32 {s(t0)}, {s(t0)}, {L_PAR}")
        A.barrier()
        for w in range(4):
            A(f"ds_read_b64 {v(16 + 2 * w, 2)}, {v(vSW)} offset:{512 * w}")
        A(f"v_mov_b32 {v(vPb)}, {s(t0)}")
        def PRq(e):
            k = e % 12
            return 24 + 4 * k if k < 8 else 72 + 4 * (k - 8)
        OUT = 56

        def ldP(e):
            if self.o.get("b_nopar"):
                return
            A(f"ds_read_b128 {v(PRq(e), 4)}, {v(vPb)} offset:{16 * e}")

        for e in range(8):
            ldP(e)
        A("v_pk_add_f32 v[16:17], v[16:17], v[18:19]")
        A("v_pk_add_f32 v[20:21], v[20:21], v[22:23]")
        A("v_pk_add_f32 v[16:17], v[16:17], v[20:21]")
        A(f"s_mov_b32 {s(t0)}, 0x{f32bits(1.0 / 448):08x}")
        A(f"s_mov_b32 {s(t1)}, 0x{f32bits(1e-5):08x}")
        A(f"v_mul_f32 v16, {s(t0)}, v16")
        A(f"v_mul_f32 v17, {s(t0)}, v17")
        A("v_fma_f32 v17, -v16, v16, v17")
        A("v_max_f32 v17, 0, v17")
        A(f"v_add_f32 v17, {s(t1)}, v17")
        vR, vM = 18, 20
        A(f"v_rsq_f32 {v(vR)}, v17")
        A(f"v_mul_f32 {v(vM)}, v16, {v(vR)}")
        self.stamp(29)
        for e0 in range(0, 56, 4):
            A.await_regs(*[v(PRq(e0 + k), 4) for k in range(4)])
            for k in range(8, 12):
                if e0 + k < 56:
                    ldP(e0 + k)
            for e in range(e0, e0 + 4):
                r = X + 2 * e
                A(f"v_pk_fma_f32 {v(r, 2)}, {v(r, 2)}, {v(vR, 2)}, {v(vM, 2)} op_sel_hi:[1,0,0] neg_lo:[0,0,1] neg_hi:[0,0,1]")
            for e in range(e0, e0 + 4):
                r = X + 2 * e
                p = PRq(e)
                A(f"v_pk_fma_f32 {v(r, 2)}, {v(r, 2)}, {v(p, 2)}, {v(p + 2, 2)}")
            sp, k0 = divmod(e0, 8)
            o = OUT + 8 * (sp & 1)
            for e in range(e0, e0 + 4):
                r = X + 2 * e
                A(f"v_cvt_pk_bf16_f32 {v(o + e % 8)}, {v(r)}, {v(r + 1)}")
            if not self.o.get("b_nowr"):
                A(f"ds_write_b128 {v(vHW)}, {v(o + k0, 4)} offset:{L_H2 + 2048 * sp + (512 if k0 else 0)}")
            nbn = self.o.get("n_bnorm", 27)
            g_ = e0 // 4
            self.bg_emit(nbn * (g_ + 1) // 14 - nbn * g_ // 14)
        while self.bg_left("w1") > 0:
            self.bg_emit(1)
        A.barrier()
        self.stamp(11)

    def w2reg(self, f):
        if f < 41:
            return v(88 + 4 * f, 4)
        if f < 49:
            return a(224 + 4 * (f - 41), 4)
        return a(4 * (f - 49), 4)

    def bg_setup(self):
        A = self.A
        t0, t1 = S_T, S_T + 1
        A(f"s_lshl_b32 {s(t0)}, {s(S_J)}, 3")
        A(f"s_lshl_b32 {s(t1)}, {s(S_WV)}, 1")
        A(f"s_add_u32 {s(t0)}, {s(t0)}, {s(t1)}")
        A(f"s_mul_i32 {s(S_W1B)}, {s(t0)}, {28 * 1024}")
        A(f"s_add_u32 {s(S_W1B)}, {s(S_W1B)}, {W1F}")
        A(f"s_lshl_b32 {s(t0)}, {s(S_J)}, 2")
        A(f"s_add_u32 {s(t0)}, {s(t0)}, {s(S_WV)}")
        A(f"s_mul_i32 {s(S_W2B)}, {s(t0)}, {56 * 1024}")
        A(f"s_add_u32 {s(S_W2B)}, {s(S_W2B)}, {W2F}")
        A(f"v_lshlrev_b32 v{V_L16}, 4, v1")
        self.bgq = [("w1", f) for f in range(56)] + [("w2", f) for f in self.w2_order]
        self.bg_cur = {"w1": 0, "w2": 0}

    def bg_emit(self, n=1):
        A = self.A
        if self.o["nobg"]:
            del self.bgq[:n]
            return
        for _ in range(n):
            if not self.bgq:
                return
            kind, f = self.bgq.pop(0)
            base = S_W1B if kind == "w1" else S_W2B
            blk = f // 4
            if blk != self.bg_cur[kind]:
                d = (blk - self.bg_cur[kind]) * 4096
                A(f"s_add_u32 {s(base)}, {s(base)}, {d}" if d > 0 else f"s_sub_u32 {s(base)}, {s(base)}, {-d}")
                self.bg_cur[kind] = blk
            if kind == "w1":
                A(f"buffer_load_dwordx4 {a(4 * f, 4)}, v{V_L16}, {s(R_WS, 4)}, {s(base)} offen offset:{1024 * (f % 4)} sc1")
            else:
                A(f"buffer_load_dwordx4 {self.w2reg(f)}, v{V_W2O[f & 1]}, {s(R_WS, 4)}, {s(base)} offen offset:{2048 * ((f % 4) >> 1)} sc1")

    def bg_left(self, kind):
        return sum(1 for k, _ in self.bgq if k == kind)

    def phase_c(self):
        A = self.A
        t0 = S_T
        if self.o.get("force_global", 1):
            self.phase_c_body(" sc1")
            return
        glob, join = self.lab("cglob"), self.lab("cjoin")
        A(f"s_cmp_eq_u32 {s(S_LOCAL)}, 0")
        A(f"s_cbranch_scc1 {glob}")
        st, q, cur = A.snapshot(), list(self.bgq), dict(self.bg_cur)
        self.phase_c_body("")
        A(f"s_branch {join}")
        A.restore(st)
        self.bgq, self.bg_cur = q, cur
        A.label(glob)
        self.phase_c_body(" sc1")
        A.label(join)

    def phase_c_body(self, sc):
        A = self.A
        T = S_T
        t0, t1 = T, T + 1
        sH, sH2 = S_OFF + 5, S_OFF + 7
        A(f"s_mul_i32 {s(t0)}, {s(S_RB)}, 112")
        A(f"s_lshl_b32 {s(t1)}, {s(S_J)}, 4")
        A(f"s_add_u32 {s(t0)}, {s(t0)}, {s(t1)}")
        A(f"s_lshl_b32 {s(t1)}, {s(S_WV)}, 2")
        A(f"s_add_u32 {s(t0)}, {s(t0)}, {s(t1)}")
        A(f"s_lshl_b32 {s(sH)}, {s(t0)}, 11")
        A(f"s_add_u32 {s(sH)}, {s(sH)}, {HF}")
        A(f"s_add_u32 {s(sH2)}, {s(sH)}, 4096")
        sC = S_OFF + 6
        A(f"s_mov_b32 {s(sC)}, 0x{f32bits(LOG2E):08x}")
        ACC = [24, 40]
        NR = 6
        RING = 4
        TMP = 68
        OUT = 76

        def ring(i):
            k = i % NR
            return RING + 4 * k if k < 5 else 56

        def store(g, off):
            base, o = (sH2, off - 4096) if off >= 4096 else (sH, off)
            return f"buffer_store_dwordx4 {v(OUT + 4 * g, 4)}, v{V_L16}, {s(R_WS, 4)}, {s(base)} offen offset:{o}{sc}"

        def silu_ops(tile):
            ft, th = divmod(tile, 2)
            acc = ACC[tile & 1]
            seq = []
            lag = (0, 2, 3, 5)
            for step in range(16 + lag[-1] + 2):
                for k in range(4):
                    i = step - lag[k]
                    if 0 <= i < 16:
                        x, tmp = acc + i, TMP + (i % 8)
                        if k == 0:
                            seq.append((8, f"v_exp_f32 {v(tmp)}, -{v(x)}"))
                        elif k == 1:
                            seq.append((4, f"v_fma_f32 {v(tmp)}, {v(tmp)}, {s(sC)}, {s(sC)}"))
                        elif k == 2:
                            seq.append((8, f"v_rcp_f32 {v(tmp)}, {v(tmp)}"))
                        else:
                            seq.append((4, f"v_mul_f32 {v(x)}, {v(x)}, {v(tmp)}"))
                i = step - lag[-1] - 1
                if 0 <= i < 16 and i % 2 == 1:
                    g, kk = divmod(i // 2, 4)
                    seq.append((4, f"v_cvt_pk_bf16_f32 {v(OUT + 4 * g + kk)}, {v(acc + i - 1)}, {v(acc + i)}"))
                    if kk == 3:
                        off = (2 * (2 * ft + g) + th) * 1024
                        seq.append((4, store(g, off)))
            return seq

        def ldH(idx):
            tile, st = divmod(idx, 28)
            th = tile & 1
            A(f"ds_read_b128 {v(ring(idx), 4)}, v{V_L16} offset:{L_H2 + 2048 * st + 1024 * th}")

        for i_ in range(NR - 2):
            ldH(i_)
        pend = []
        nbg = self.n_bg_c
        done_bg = 0
        for tile in range(4):
            ft = tile >> 1
            acc = ACC[tile & 1]
            total = sum(c for c, _ in pend)
            for st in range(28):
                idx = tile * 28 + st
                if idx % 2 == 0:
                    A.await_regs(*[v(ring(i_), 4) for i_ in (idx, idx + 1) if i_ < 112])
                    for i_ in (idx + NR - 2, idx + NR - 1):
                        if i_ < 112:
                            ldH(i_)
                c = "0" if st == 0 else v(acc, 16)
                A(f"v_mfma_f32_32x32x16_bf16 {v(acc, 16)}, {a(4 * (28 * ft + st), 4)}, {v(ring(idx), 4)}, {c}")
                if pend and st >= 2:
                    left_slots = 28 - st
                    budget = -(-sum(c for c, _ in pend) // left_slots)
                    spent = 0
                    while pend and spent < budget:
                        cst, ins = pend.pop(0)
                        A(ins)
                        spent += cst
                while done_bg < nbg * (idx + 1) // 112 and self.bgq:
                    assert self.bgq[0][0] == "w1" or self.bgq[0][1] < 49 or idx >= 36
                    self.bg_emit(1)
                    done_bg += 1
            assert not pend, len(pend)
            pend = silu_ops(tile)
        for _, ins in pend:
            A(ins)
        self.stamp(12)
        A.wait_vm(0)
        A.barrier()
        A(f"s_lshl_b32 {s(t0)}, {s(S_RB)}, 3")
        A(f"s_add_u32 {s(t0)}, {s(t0)}, {s(S_J)}")
        A(f"s_lshl_b32 {s(t0)}, {s(t0)}, 7")
        A(f"s_add_u32 {s(t0)}, {s(t0)}, {FL + F3 * 128}")
        self.flag_store(t0, sc=sc)
        self.bg_emit(len(self.bgq))
        self.stamp(13)

    def phase_d(self):
        A = self.A
        T = S_T
        t0, t1 = T, T + 1
        vPa, vPt = 2, 4
        A(f"v_min_u32 {v(vPa)}, 6, v1")
        A(f"s_lshl_b32 {s(t0)}, {s(S_RB)}, 3")
        A(f"v_add_u32 {v(vPa)}, {s(t0)}, {v(vPa)}")
        A(f"v_lshlrev_b32 {v(vPa)}, 7, {v(vPa)}")
        A(f"v_add_u32 {v(vPa)}, {FL + F3 * 128}, {v(vPa)}")
        self.poll(vPa, vPt)
        self.stamp(14)
        sH = S_OFF
        A(f"s_mul_i32 {s(t0)}, {s(S_RB)}, 112")
        A(f"s_mul_i32 {s(t1)}, {s(S_WV)}, 28")
        A(f"s_add_u32 {s(t0)}, {s(t0)}, {s(t1)}")
        A(f"s_lshl_b32 {s(sH)}, {s(t0)}, 11")
        A(f"s_add_u32 {s(sH)}, {s(sH)}, {HF}")
        NSLOT = 49
        HB = 28
        hl = {0: " sc1", 1: "", 2: " nt", 3: " sc0"}[self.o.get("hload", 0)]
        vH = 4
        A(f"s_and_b32 {s(t0)}, {s(S_WV)}, 1")
        A(f"s_lshl_b32 {s(t0)}, {s(t0)}, 10")
        A(f"v_add_u32 {v(vH)}, {s(t0)}, v{V_L16}")
        A(f"s_sub_u32 {s(t0)}, 1024, {s(t0)}")
        A(f"v_add_u32 {v(vH + 1)}, {s(t0)}, v{V_L16}")

        def hreg(i):
            return a(HB + 4 * (i % NSLOT), 4)

        def ldH(i):
            if i % 4 == 0 and i:
                A(f"s_add_u32 {s(sH)}, {s(sH)}, 4096")
            A(f"buffer_load_dwordx4 {hreg(i)}, {v(vH + (i & 1))}, {s(R_WS, 4)}, {s(sH)} offen offset:{2048 * ((i % 4) >> 1)}{hl}")

        PRE = self.o.get("d_pre", 12)
        for i in range(PRE):
            ldH(i)
        vWr, vRd, vG, vX, vO, vt = 8, 11, 12, 13, 14, 15
        for x in range(1, 4):
            A(f"s_xor_b32 {s(t0)}, {s(S_WV)}, {x}")
            A(f"s_mul_i32 {s(t0)}, {s(t0)}, 12288")
            A(f"s_add_u32 {s(t0)}, {s(t0)}, {L_RED2 + (x - 1) * 4096}")
            A(f"v_add_u32 {v(vWr + x - 1)}, {s(t0)}, v{V_L16}")
        A(f"s_mul_i32 {s(t0)}, {s(S_WV)}, 12288")
        A(f"s_add_u32 {s(t0)}, {s(t0)}, {L_RED2}")
        A(f"v_add_u32 {v(vRd)}, {s(t0)}, v{V_L16}")
        A(f"s_lshr_b32 {s(t0)}, {s(S_WV)}, 1")
        A(f"s_and_b32 {s(t1)}, {s(S_WV)}, 1")
        A(f"v_lshrrev_b32 {v(vt)}, 5, v1")
        t2, t3 = T + 2, T + 3
        A(f"s_lshl_b32 {s(t2)}, {s(t0)}, 7")
        A(f"s_add_u32 {s(t2)}, {s(t2)}, {L_GB}")
        A(f"v_lshl_add_u32 {v(vG)}, {v(vt)}, 4, {s(t2)}")
        A(f"s_lshl_b32 {s(t2)}, {s(S_J)}, 13")
        A(f"s_lshl_b32 {s(t3)}, {s(t0)}, 12")
        A(f"s_add_u32 {s(t2)}, {s(t2)}, {s(t3)}")
        A(f"s_lshl_b32 {s(t3)}, {s(t1)}, 7")
        A(f"s_add_u32 {s(t2)}, {s(t2)}, {s(t3)}")
        A(f"s_add_u32 {s(t2)}, {s(t2)}, {L_XD}")
        A(f"v_lshl_add_u32 {v(vX)}, {v(vt)}, 9, {s(t2)}")
        A(f"v_and_b32 {v(vO)}, 31, v1")
        A(f"v_lshl_add_u32 {v(vX)}, {v(vO)}, 2, {v(vX)}")
        A(f"s_lshl_b32 {s(t2)}, {s(S_RB)}, 6")
        A(f"s_lshl_b32 {s(t3)}, {s(t1)}, 5")
        A(f"s_add_u32 {s(t2)}, {s(t2)}, {s(t3)}")
        A(f"v_add_u32 {v(vO)}, {s(t2)}, {v(vO)}")
        A(f"v_mul_u32_u24 {v(vO)}, 896, {v(vO)}")
        A(f"s_lshl_b32 {s(t2)}, {s(S_J)}, 7")
        A(f"s_lshl_b32 {s(t3)}, {s(t0)}, 6")
        A(f"s_add_u32 {s(t2)}, {s(t2)}, {s(t3)}")
        A(f"v_lshl_add_u32 {v(vt)}, {v(vt)}, 4, {s(t2)}")
        A(f"v_add_u32 {v(vO)}, {v(vO)}, {v(vt)}")
        self.srd(R_A, P_OUT, 2048 * 896)
        ACC = 24
        nxt = PRE
        for st in range(28):
            for _ in range(2):
                if nxt < 56:
                    ldH(nxt)
                    nxt += 1
            for e1 in range(2):
                i = 2 * st + e1
                for e in range(2):
                    acc = ACC + 16 * (2 * e + e1)
                    c = "0" if st == 0 else v(acc, 16)
                    if self.o.get("d_nomfma"):
                        A.await_regs(hreg(i))
                        continue
                    A(f"v_mfma_f32_32x32x16_bf16 {v(acc, 16)}, {self.w2reg(2 * st + e)}, {hreg(i)}, {c}")
        self.stamp(15)
        GB, XP = 16, 88
        GB = 104
        X1 = 120
        PT = 144
        for g in range(4):
            A(f"ds_read_b128 {v(GB + 4 * g, 4)}, {v(vG)} offset:{32 * g}")
            A(f"ds_read2st64_b32 {v(X1 + 2 * g, 2)}, {v(vX)} offset0:{4 * g} offset1:{4 * g + 1}")
        for x in range(1, 4):
            for g in range(4):
                A(f"ds_write_b128 {v(vWr + x - 1)}, {v(ACC + 16 * x + 4 * g, 4)} offset:{1024 * g}")
        for k in range(8):
            A(f"v_lshlrev_b32 {v(128 + 2 * k)}, 16, {v(X1 + k)}")
            A(f"v_and_b32 {v(129 + 2 * k)}, {s(S_MASKHI)}, {v(X1 + k)}")
        self.stamp(17)
        A.barrier()
        self.stamp(18)
        for k in range(3):
            for g in range(4):
                A(f"ds_read_b128 {v(PT + 16 * k + 4 * g, 4)}, {v(vRd)} offset:{4096 * k + 1024 * g}")
        for k in range(3):
            A.await_regs(v(PT + 16 * k, 16))
            for i in range(8):
                A(f"v_pk_add_f32 {v(ACC + 2 * i, 2)}, {v(ACC + 2 * i, 2)}, {v(PT + 16 * k + 2 * i, 2)}")
        for i in range(8):
            A(f"v_pk_fma_f32 {v(ACC + 2 * i, 2)}, {v(ACC + 2 * i, 2)}, {v(GB + 2 * i, 2)}, {v(128 + 2 * i, 2)}")
        OUT = 192
        for i in range(8):
            A(f"v_cvt_pk_bf16_f32 {v(OUT + i)}, {v(ACC + 2 * i)}, {v(ACC + 2 * i + 1)}")
        for k in (0, 2):
            for i in range(2):
                A(f"v_permlane32_swap_b32 {v(OUT + 2 * k + i)}, {v(OUT + 2 * k + 2 + i)}")
        for k in (0, 2):
            A(f"buffer_store_dwordx4 {v(OUT + 2 * k, 4)}, {v(vO)}, {s(R_A, 4)}, 0 offen offset:{16 * k}")
        self.stamp(16)

    def helper(self):
        A = self.A
        T = S_T
        t0, t1, t2 = T + 4, T + 5, T + 6
        sH = S_RB
        A.label("L_helper")
        A(f"s_lshl_b32 {s(t0)}, {s(T + 1)}, 3")
        A(f"s_add_u32 {s(sH)}, {s(t0)}, {s(T)}")
        A(f"s_cmp_ge_u32 {s(sH)}, 21")
        A("s_cbranch_scc1 L_helper_flag")
        st_h = A.snapshot()
        self.srd(R_A, P_WM, 448 * 5376)
        self.srd(R_B, P_C, 896)
        A("v_lshrrev_b32 v2, 4, v0")
        A("v_and_b32 v3, 15, v0")
        A("v_mul_u32_u24 v4, 5376, v2")
        A("v_lshl_add_u32 v4, v3, 4, v4")
        A(f"s_lshl_b32 {s(t0)}, {s(sH)}, 8")
        A(f"v_add_u32 v4, {s(t0)}, v4")
        A("v_lshlrev_b32 v5, 2, v0")
        A(f"buffer_load_dword v6, v5, {s(R_B, 4)}, 0 offen")
        W = 16
        A(f"s_mov_b32 {s(t0)}, 0")
        for i in range(28):
            A(f"buffer_load_dwordx4 {v(W + 4 * i, 4)}, v4, {s(R_A, 4)}, {s(t0)} offen")
            if i < 27:
                A(f"s_add_u32 {s(t0)}, {s(t0)}, {16 * 5376}")
        A(f"s_mov_b32 {s(t1)}, 0x{f32bits(-1.4426950408889634):08x}")
        A("v_lshlrev_b32 v8, 16, v6")
        A(f"v_and_b32 v9, {s(S_MASKHI)}, v6")
        for r in (8, 9):
            A(f"v_mul_f32 {v(r + 2)}, {s(t1)}, {v(r)}")
        for r in (8, 9):
            A(f"v_exp_f32 {v(r + 2)}, {v(r + 2)}")
        for r in (8, 9):
            A(f"v_add_f32 {v(r + 2)}, 1.0, {v(r + 2)}")
        for r in (8, 9):
            A(f"v_rcp_f32 {v(r + 2)}, {v(r + 2)}")
        for r in (8, 9):
            A(f"v_mul_f32 {v(r)}, {v(r)}, {v(r + 2)}")
        A("v_cvt_pk_bf16_f32 v6, v8, v9")
        A("v_lshlrev_b32 v8, 16, v6")
        A(f"v_and_b32 v9, {s(S_MASKHI)}, v6")
        A("v_lshlrev_b32 v7, 3, v0")
        A(f"ds_write_b64 v7, v[8:9] offset:{L_SC}")
        A.barrier()
        A("v_lshlrev_b32 v7, 2, v2")
        SC = 128
        for i in range(28):
            A(f"ds_read_b32 {v(SC + 2 * i)}, v7 offset:{L_SC + 64 * i}")
        AC = 192
        U = 200
        for i in range(28):
            for k in range(4):
                src = W + 4 * i + k
                u = U + 2 * k
                A(f"v_lshlrev_b32 {v(u)}, 16, {v(src)}")
                A(f"v_and_b32 {v(u + 1)}, {s(S_MASKHI)}, {v(src)}")
            for k in range(4):
                u = U + 2 * k
                if i == 0:
                    A(f"v_pk_mul_f32 {v(AC + 2 * k, 2)}, {v(u, 2)}, {v(SC + 2 * i, 2)} op_sel_hi:[1,0]")
                else:
                    A(f"v_pk_fma_f32 {v(AC + 2 * k, 2)}, {v(u, 2)}, {v(SC + 2 * i, 2)}, {v(AC + 2 * k, 2)} op_sel_hi:[1,0,1]")
        A("v_mul_u32_u24 v7, 528, v2")
        A("v_lshl_add_u32 v7, v3, 5, v7")
        A(f"ds_write_b128 v7, {v(AC, 4)} offset:{L_MR}")
        A(f"ds_write_b128 v7, {v(AC + 4, 4)} offset:{L_MR + 16}")
        A.barrier()
        A("v_and_b32 v8, 127, v0")
        A("v_lshlrev_b32 v7, 2, v8")
        for g in range(16):
            A(f"ds_read_b32 {v(16 + g)}, v7 offset:{L_MR + 528 * g}")
        for stp in (8, 4, 2, 1):
            for g in range(stp):
                A(f"v_add_f32 {v(16 + g)}, {v(16 + g)}, {v(16 + g + stp)}")
        A("v_cvt_pk_bf16_f32 v16, v16, v16")
        A(f"v_and_b32 v16, {s(S_MASKHI)}, v16")
        A("v_add_f32 v17, 1.0, v16")
        A("v_cvt_pk_bf16_f32 v17, v17, v17")
        A(f"v_and_b32 v17, {s(S_MASKHI)}, v17")
        A(f"s_lshl_b32 {s(t0)}, {s(sH)}, 7")
        A(f"v_add_u32 v8, {s(t0)}, v8")
        A("v_subrev_u32 v9, 448, v8")
        A("v_subrev_u32 v10, 1792, v8")
        A("v_min_u32 v9, v9, v10")
        A("v_mov_b32 v11, 448")
        A("v_cmp_lt_u32 vcc, v9, v11")
        A("s_nop 1")
        A("v_cndmask_b32 v16, v16, v17, vcc")
        A("v_lshlrev_b32 v8, 2, v8")
        A(f"s_mov_b32 {s(t0)}, {MODF}")
        skip = self.lab("ms")
        A(f"s_cmp_ge_u32 {s(S_WV)}, 2")
        A(f"s_cbranch_scc1 {skip}")
        A.cond_begin()
        A(f"buffer_store_dword v16, v8, {s(R_WS, 4)}, {s(t0)} offen sc1")
        A.cond_end()
        A.label(skip)
        A.wait_vm(0)
        A.barrier()
        A.label("L_helper_flag")
        A.wait_lgkm0()
        A(f"s_add_u32 {s(S_NONCE)}, {s(S_NONCE)}, 1")
        A(f"s_lshl_b32 {s(t0)}, {s(sH)}, 7")
        A(f"s_add_u32 {s(t0)}, {s(t0)}, {FL + FM * 128}")
        self.flag_store(t0)
        self.stamp(3)
        if self.o.get("helper_warm", 0):
            A("v_min_u32 v2, 55, v1")
            A(f"s_mul_i32 {s(t0)}, {s(S_WV)}, 56")
            A(f"v_add_u32 v2, {s(t0)}, v2")
            A("v_lshlrev_b32 v2, 7, v2")
            A(f"v_add_u32 v2, {FL + self.o.get('warm_flag', F2) * 128}, v2")
            A(f"s_lshr_b32 {s(t0)}, s2, 3")
            A(f"s_sub_u32 {s(t0)}, {s(t0)}, 28")
            A(f"s_lshl_b32 {s(t0)}, {s(t0)}, 2")
            A(f"s_add_u32 {s(t0)}, {s(t0)}, {s(S_WV)}")
            A("v_lshlrev_b32 v4, 7, v1")
            A(f"s_and_b32 {s(t1)}, s2, 7")
            A(f"s_mul_i32 {s(t1)}, {s(t1)}, {4 * 229376}")
            A(f"s_mul_i32 {s(t2)}, {s(t0)}, {448 * 128}")
            A(f"s_add_u32 {s(t1)}, {s(t1)}, {s(t2)}")
            A(f"s_add_u32 {s(t1)}, {s(t1)}, {HF}")
            self.poll(2, 3)
            for k in range(7):
                A(f"buffer_load_dword {v(32 + k)}, v4, {s(R_WS, 4)}, {s(t1)} offen")
                A(f"s_add_u32 {s(t1)}, {s(t1)}, {64 * 128}")
            A.wait_vm(0)
        self.stamp(4)
        self.stamp_flush()
        A("s_endpgm")

    def build(self):
        A = self.A
        self.prologue()
        if self.stamps:
            A("v_mov_b32 v255, 0")
            A("v_writelane_b32 v255, s92, 31")
        st = A.snapshot()
        self.stamp(0)
        self.phase_p()
        stages = [("p", None), ("a", self.phase_a), ("b", self.phase_b), ("c", self.phase_c), ("d", self.phase_d)]
        done = self.stop == "p"
        for name, fn in stages[1:]:
            if done:
                break
            fn()
            done = self.stop == name
        self.stamp_flush()
        A("s_endpgm")
        A.restore(st)
        self.helper()
        A.label("L_exit")
        A("s_endpgm")
        A.label("L_code_end")
        return A.text()


def f32bits(x):
    import struct
    return struct.unpack("<I", struct.pack("<f", x))[0]


HEADER = """; Fused adaLN + H3 long convolution + SiLU MLP, one persistent launch (generated by gen/gen.py).
; Kernarg: q k v shift_k ssm_k ssm_D B_x w1 w2 c w_mod out debug ws (8-byte pointers).
; @launch grid=(256,1,1) block=(256,1,1) lds={lds}
.amdgcn_target "amdgcn-amd-amdhsa--gfx950"
.text
.globl {name}
.p2align 8
.type {name},@function
{name}:
"""

FOOTER = """.section .rodata,"a"
.p2align 6
.amdhsa_kernel {name}
  .amdhsa_next_free_vgpr 512
  .amdhsa_next_free_sgpr 102
  .amdhsa_accum_offset 256
  .amdhsa_group_segment_fixed_size 0
  .amdhsa_kernarg_size 112
  .amdhsa_user_sgpr_count 2
  .amdhsa_user_sgpr_kernarg_segment_ptr 1
  .amdhsa_system_sgpr_workgroup_id_x 1
  .amdhsa_float_denorm_mode_32 3
.end_amdhsa_kernel
"""


def main():
    ap = argparse.ArgumentParser()
    ap.add_argument("--stop", default=None)
    ap.add_argument("--stamps", action="store_true")
    ap.add_argument("-o", default="/dev/stdout")
    ap.add_argument("--opt", action="append", default=[])
    args = ap.parse_args()
    opts = {}
    for kv in args.opt:
        k, val = kv.split("=")
        opts[k] = int(val)
    g = Gen(stop=args.stop, stamps=args.stamps, opts=opts)
    body = g.build()
    txt = HEADER.format(name=NAME, lds=LDS_END) + body + FOOTER.format(name=NAME)
    with open(args.o, "w") as f:
        f.write(txt)
    print(f"instructions: {g.A.n_ins}, auto nops: {g.A.n_nops}, lds {LDS_END}", file=sys.stderr)


if __name__ == "__main__":
    main()
```

```python
import sys
import argparse
from asmdsl import Asm, v, a, s

NAME = "adaLN_cond__ssm_conv_h3__dense_activation_silu__prompt_kernel"

FL = 4096
F1, FQ, FM, F2, F3 = 0, 256, 512, 544, 800
STAMP = 0x30000
T2D = 224 * 8192
KVP = 0x40000
QP = KVP + T2D
STR = QP + T2D
STM = STR + 8192
X1P = STR + 16384
W1F = X1P + T2D
W2F = W1F + 1605632
MODF = W2F + 1605632
HF = MODF + 16384
WS_END = HF + 32 * 112 * 2048
assert WS_END < (1 << 28)

L_H2 = 0
L_TPK = 0
L_TPQ = 8704
L_TPN = 17408
L_WB = 26112
L_UR = 43520
assert L_UR + 9216 <= 57344
L_KC = 57344
CS = 4160
L_RED = L_KC + 8 * CS
L_RED2 = 0
L_XD = 69632
L_PAR = L_RED + 40960
L_STAT = L_PAR + 4096
L_GB = L_STAT + 2048
LDS_END = L_GB + 256
assert L_XD + 57344 <= L_PAR
assert LDS_END <= 163840
L_SC = 0
L_MR = 2048

S_RB, S_J, S_WV, S_CP = 4, 5, 6, 7
P_Q, P_K, P_V, P_SH, P_SK, P_D, P_BX, P_W1, P_W2, P_C, P_WM, P_OUT, P_DBG, P_WS = range(8, 36, 2)
R_WS, R_A, R_B, R_C, R_D = 36, 40, 44, 48, 52
S_NONCE = 56
S_T = 57
S_M = 80
S_MASKHI = 80
S_PERM_LO = 81
S_PERM_HI = 82
S_OFF = 84
S_SPIN = 96
S_PC = 100
S_W1B, S_W2B = 78, 79
S_XCC, S_LOCAL = 83, 95
S_WI = 94
S_MW = 93
V_W2O = (2, 253)
V_L16 = 3
S_ST0 = 98

SRD3 = 0x00020000
LOG2E = 1.4426950408889634
SPIN_MAX = 1 << 17


class Gen:
    def __init__(self, stop=None, stamps=False, opts=None):
        self.o = dict(cring=3, repf=0, burst_before_flag=0, n_burst_t2=28, n_bg_c=36, bg_b=1, nobg=0)
        self.o.update(opts or {})
        self.A = Asm()
        self.stop = stop
        self.stamps = stamps
        self.nlab = 0
        self.nstamp = 0
        self.n_burst_t2 = self.o["n_burst_t2"]
        self.n_bg_c = self.o["n_bg_c"]
        self.w2_order = list(range(41, 49)) + list(range(28, 41)) + list(range(28)) + list(range(49, 56))

    def lab(self, base):
        self.nlab += 1
        return f"L_{base}_{self.nlab}"

    def srd(self, r, ptr, nbytes, add=None):
        A = self.A
        if add is None:
            A(f"s_mov_b32 {s(r)}, {s(ptr)}")
            A(f"s_mov_b32 {s(r + 1)}, {s(ptr + 1)}")
        else:
            A(f"s_add_u32 {s(r)}, {s(ptr)}, {add}")
            A(f"s_addc_u32 {s(r + 1)}, {s(ptr + 1)}, 0")
        A(f"s_mov_b32 {s(r + 2)}, {nbytes}")
        A(f"s_mov_b32 {s(r + 3)}, 0x{SRD3:08x}")

    def stamp(self, idx):
        if not self.stamps:
            return
        A = self.A
        A(f"s_memrealtime {s(S_ST0, 2)}")
        A.wait_lgkm0()
        A(f"v_writelane_b32 v255, {s(S_ST0)}, {idx}")
        if self.o.get("cyc"):
            A(f"s_memtime {s(S_ST0, 2)}")
            A.wait_lgkm0()
            A(f"v_writelane_b32 v255, {s(S_ST0)}, {32 + idx}")

    def stamp_flush(self):
        if not self.stamps:
            return
        A = self.A
        skip = self.lab("sf")
        A(f"s_cmp_lg_u32 {s(S_WV)}, 0")
        A(f"s_cbranch_scc1 {skip}")
        A.cond_begin()
        A("v_lshlrev_b32 v254, 2, v1")
        A(f"s_lshl_b32 {s(S_SPIN + 1)}, s2, 8")
        A(f"s_add_u32 {s(S_SPIN + 1)}, {s(S_SPIN + 1)}, {STAMP}")
        A(f"buffer_store_dword v255, v254, {s(R_WS, 4)}, {s(S_SPIN + 1)} offen")
        A.cond_end()
        A.label(skip)

    def flag_store(self, soff_sgpr, vtmp=252, with_xcc=False, sc=" sc1"):
        A = self.A
        skip = self.lab("fl")
        A(f"s_cmp_lg_u32 {s(S_WV)}, 0")
        A(f"s_cbranch_scc1 {skip}")
        A.cond_begin()
        A(f"v_mov_b32 {v(vtmp)}, {s(S_NONCE)}")
        if with_xcc:
            A(f"v_mov_b32 {v(vtmp + 1)}, {s(S_XCC)}")
        A(f"v_mov_b32 {v(vtmp + 2)}, {s(soff_sgpr)}")
        A("s_mov_b64 exec, 1")
        if with_xcc:
            A(f"buffer_store_dwordx2 {v(vtmp, 2)}, {v(vtmp + 2)}, {s(R_WS, 4)}, 0 offen{sc}")
        else:
            A(f"buffer_store_dword {v(vtmp)}, {v(vtmp + 2)}, {s(R_WS, 4)}, 0 offen{sc}")
        A("s_mov_b64 exec, -1")
        A.cond_end()
        A.label(skip)

    def poll(self, vaddr, vtmp):
        A = self.A
        loop, done = self.lab("poll"), self.lab("polld")
        A(f"s_mov_b32 {s(S_SPIN)}, 0")
        A.label(loop)
        A(f"buffer_load_dword {v(vtmp)}, {v(vaddr)}, {s(R_WS, 4)}, 0 offen sc1")
        A.wait_vm(0)
        A(f"v_cmp_ne_u32 vcc, {s(S_NONCE)}, {v(vtmp)}")
        A(f"s_add_u32 {s(S_SPIN)}, {s(S_SPIN)}, 1")
        A("s_nop 3")
        A("s_cmp_eq_u64 vcc, 0")
        A(f"s_cbranch_scc1 {done}")
        A(f"s_cmp_lt_u32 {s(S_SPIN)}, {SPIN_MAX}")
        A(f"s_cbranch_scc1 {loop}")
        A.label(done)

    def code_prefetch(self):
        A = self.A
        A("v_lshlrev_b32 v253, 7, v0")
        A("v_min_u32 v253, L_code_end-L_pc-4, v253")
        A(f"global_load_dword v254, v253, {s(S_PC, 2)}")

    def finish(self):
        self.A("s_endpgm")

    def prologue(self):
        A = self.A
        A("s_cmp_ge_u32 s2, 224")
        A("s_cbranch_scc1 L_exit")
        if self.stamps:
            A(f"s_memrealtime {s(76, 2)}")
        A(f"s_load_dwordx16 {s(8, 16)}, s[0:1], 0")
        A(f"s_load_dwordx8 {s(24, 8)}, s[0:1], 64")
        A(f"s_load_dwordx4 {s(32, 4)}, s[0:1], 96")
        A(f"s_getpc_b64 {s(S_PC, 2)}")
        A.label("L_pc")
        A("v_lshlrev_b32 v253, 7, v0")
        A("v_min_u32 v253, L_code_end-L_pc-4, v253")
        A(f"global_load_dword v254, v253, {s(S_PC, 2)}")
        A("v_lshrrev_b32 v2, 6, v0")
        A("v_and_b32 v1, 63, v0")
        A(f"s_and_b32 {s(S_T)}, s2, 7")
        A(f"s_lshr_b32 {s(S_T + 1)}, s2, 3")
        A(f"v_readfirstlane_b32 {s(S_WV)}, v2")
        A(f"s_getreg_b32 {s(S_XCC)}, hwreg(HW_REG_XCC_ID, 0, 4)")
        A(f"s_mov_b32 {s(S_MASKHI)}, 0xffff0000")
        A(f"s_mov_b32 {s(S_PERM_LO)}, 0x05040100")
        A(f"s_mov_b32 {s(S_PERM_HI)}, 0x07060302")
        A(f"s_mov_b32 {s(S_WI)}, {s(S_T + 1)}")
        A(f"s_mul_i32 {s(S_T + 2)}, {s(S_WI)}, 37")
        A(f"s_lshr_b32 {s(S_T + 2)}, {s(S_T + 2)}, 8")
        A(f"s_mul_i32 {s(S_T + 3)}, {s(S_T + 2)}, 7")
        A(f"s_sub_u32 {s(S_J)}, {s(S_WI)}, {s(S_T + 3)}")
        A(f"s_lshl_b32 {s(S_RB)}, {s(S_T)}, 2")
        A(f"s_add_u32 {s(S_RB)}, {s(S_RB)}, {s(S_T + 2)}")
        A(f"s_lshl_b32 {s(S_CP)}, {s(S_J)}, 5")
        A(f"s_add_u32 {s(S_CP)}, {s(S_CP)}, {s(S_RB)}")
        A.wait_lgkm0()
        self.srd(R_WS, P_WS, WS_END)
        A(f"s_load_dword {s(S_NONCE)}, {s(P_WS, 2)}, 0")
        A(f"s_mul_i32 {s(S_MW)}, {s(S_T)}, 28")
        A(f"s_add_u32 {s(S_MW)}, {s(S_MW)}, {s(S_WI)}")

    def phase_p(self):
        A = self.A
        T = S_T
        NB = 2048 * 896
        t0, t1, t2 = T + 12, T + 13, T + 14
        vC, vRG, vL16, vOffO, vKa, vSh, vSa, vSb, vRow, vWa, vx = 2, 3, 4, 5, 6, 10, 11, 12, 13, 14, 15
        vK, vV, vSH, vQO, vQ, vW, vKD = 16, 36, 44, 60, 68, 84, 100
        vM, vSC, vMA, vMT, vMa, vCa = 84, 98, 106, 110, 118, 119
        self.srd(R_A, P_WM, 448 * 5376)
        self.srd(R_B, P_C, 896)
        A(f"s_mul_i32 {s(T)}, {s(S_WV)}, 112")
        A(f"v_lshrrev_b32 {v(vMa)}, 2, v1")
        A(f"v_add_u32 {v(vMa)}, {s(T)}, {v(vMa)}")
        A(f"v_mul_u32_u24 {v(vMa)}, 5376, {v(vMa)}")
        A(f"v_and_b32 {v(vMT)}, 3, v1")
        A(f"v_lshl_add_u32 {v(vMa)}, {v(vMT)}, 3, {v(vMa)}")
        A(f"s_mul_i32 {s(T + 1)}, {s(S_MW)}, 24")
        A(f"v_add_u32 {v(vMa)}, {s(T + 1)}, {v(vMa)}")
        A(f"s_mul_i32 {s(T + 1)}, {s(S_WV)}, 224")
        A(f"v_lshl_add_u32 {v(vCa)}, v1, 2, {s(T + 1)}")
        A(f"buffer_load_dword {v(vMT + 2)}, {v(vCa)}, {s(R_B, 4)}, 0 offen")
        A(f"s_mov_b32 {s(T + 1)}, 0")
        for i in range(7):
            A(f"buffer_load_dwordx2 {v(vM + 2 * i, 2)}, {v(vMa)}, {s(R_A, 4)}, {s(T + 1)} offen")
            if i < 6:
                A(f"s_add_u32 {s(T + 1)}, {s(T + 1)}, {16 * 5376}")
        A(f"v_and_b32 {v(vC)}, 7, v1")
        A(f"v_lshrrev_b32 {v(vRG)}, 3, v1")
        A(f"s_lshl_b32 {s(T)}, {s(S_RB)}, 6")
        A(f"s_lshl_b32 {s(T + 1)}, {s(S_WV)}, 4")
        A(f"s_add_u32 {s(T + 1)}, {s(T)}, {s(T + 1)}")
        A(f"v_lshl_add_u32 {v(vOffO)}, {v(vRG)}, 1, {s(T + 1)}")
        A(f"v_mul_u32_u24 {v(vOffO)}, 896, {v(vOffO)}")
        A(f"v_lshl_add_u32 {v(vOffO)}, {v(vC)}, 4, {v(vOffO)}")
        A(f"s_lshl_b32 {s(T + 2)}, {s(S_J)}, 7")
        A(f"v_add_u32 {v(vOffO)}, {s(T + 2)}, {v(vOffO)}")
        kad = {}
        for n_, i in enumerate((0, 1, 2, 4)):
            d = (i - 3) * 896
            kad[i] = vKa + n_
            if d < 0:
                A(f"v_subrev_u32 {v(kad[i])}, {-d}, {v(vOffO)}")
            else:
                A(f"v_add_u32 {v(kad[i])}, {d}, {v(vOffO)}")
        kad[3] = vOffO
        self.srd(R_A, P_K, NB)
        self.srd(R_B, P_V, NB)
        for i in range(5):
            A(f"buffer_load_dwordx4 {v(vK + 4 * i, 4)}, {v(kad[i])}, {s(R_A, 4)}, 0 offen")
        for i in range(2):
            A(f"buffer_load_dwordx4 {v(vV + 4 * i, 4)}, {v(vOffO)}, {s(R_B, 4)}, 0 offen offset:{896 * i}")
        self.srd(R_C, P_SH, 448 * 8)
        A(f"s_lshl_b32 {s(T + 3)}, {s(S_J)}, 9")
        A(f"v_lshl_add_u32 {v(vSh)}, {v(vC)}, 6, {s(T + 3)}")
        for i in range(4):
            A(f"buffer_load_dwordx4 {v(vSH + 4 * i, 4)}, {v(vSh)}, {s(R_C, 4)}, 0 offen offset:{16 * i}")
        self.srd(R_A, P_Q, NB)
        for r in range(2):
            A(f"buffer_load_dwordx4 {v(vQO + 4 * r, 4)}, {v(vOffO)}, {s(R_A, 4)}, 0 offen offset:{896 * r}")
        A(f"s_lshl_b32 {s(t1)}, {s(S_J)}, 3")
        A(f"s_add_u32 {s(t0)}, {s(T)}, {s(t1)}")
        A(f"s_lshl_b32 {s(t1)}, {s(S_WV)}, 2")
        A(f"s_add_u32 {s(t0)}, {s(t0)}, {s(t1)}")
        A(f"v_lshrrev_b32 {v(vRow)}, 4, v1")
        A(f"v_add_u32 {v(vRow)}, {s(t0)}, {v(vRow)}")
        A(f"v_mul_u32_u24 {v(vSa)}, 896, {v(vRow)}")
        A(f"v_and_b32 {v(vSb)}, 15, v1")
        A(f"v_lshl_add_u32 {v(vSa)}, {v(vSb)}, 4, {v(vSa)}")
        A(f"v_cmp_gt_u32 vcc, 8, {v(vSb)}")
        A(f"v_add_u32 {v(vSb)}, 768, {v(vSa)}")
        A(f"v_mov_b32 {v(vx)}, -1")
        A(f"v_cndmask_b32 {v(vSb)}, {v(vx)}, {v(vSb)}, vcc")
        for i in range(3):
            A(f"buffer_load_dwordx4 {v(vQ + 4 * i, 4)}, {v(vSa)}, {s(R_A, 4)}, 0 offen offset:{256 * i}")
        A(f"buffer_load_dwordx4 {v(vQ + 12, 4)}, {v(vSb)}, {s(R_A, 4)}, 0 offen")
        self.stamp(1)

        sWB, sSrc, sStride, sA, sR1, sD0, sDS = T + 4, T + 6, T + 7, T + 8, T + 9, T + 10, T + 11
        A(f"s_mul_i32 {s(sWB)}, {s(S_RB)}, 7")
        A(f"s_add_u32 {s(sWB)}, {s(sWB)}, {s(S_J)}")
        A(f"s_lshr_b32 {s(t0)}, {s(sWB)}, 2")
        A(f"s_and_b32 {s(t1)}, {s(sWB)}, 3")
        A(f"s_mul_i32 {s(sSrc)}, {s(t0)}, {16 * 3584}")
        A(f"s_mul_i32 {s(t2)}, {s(t1)}, 896")
        A(f"s_add_u32 {s(sSrc)}, {s(sSrc)}, {s(t2)}")
        A(f"s_mul_i32 {s(t2)}, {s(t1)}, 14")
        A(f"s_add_u32 {s(t2)}, {s(t2)}, {s(S_WV)}")
        A(f"s_mul_i32 {s(t2)}, {s(t2)}, 28")
        A(f"s_add_u32 {s(sD0)}, {s(t2)}, {s(t0)}")
        A(f"s_lshl_b32 {s(sD0)}, {s(sD0)}, 10")
        A(f"s_add_u32 {s(sD0)}, {s(sD0)}, {W1F}")
        u0, u1, u2, uSrc, uD0 = T + 16, T + 17, T + 18, T + 19, T + 20
        A(f"s_sub_u32 {s(u0)}, {s(sWB)}, 112")
        A(f"s_mul_i32 {s(uSrc)}, {s(u0)}, {16 * 896}")
        A(f"s_mul_i32 {s(u1)}, {s(u0)}, 147")
        A(f"s_lshr_b32 {s(u1)}, {s(u1)}, 12")
        A(f"s_mul_i32 {s(u2)}, {s(u1)}, 28")
        A(f"s_sub_u32 {s(u2)}, {s(u0)}, {s(u2)}")
        A(f"s_mul_i32 {s(uD0)}, {s(u1)}, 56")
        A(f"s_lshl_b32 {s(u2)}, {s(u2)}, 1")
        A(f"s_add_u32 {s(uD0)}, {s(uD0)}, {s(u2)}")
        A(f"s_lshr_b32 {s(u1)}, {s(S_WV)}, 1")
        A(f"s_mul_i32 {s(u1)}, {s(u1)}, 224")
        A(f"s_add_u32 {s(uD0)}, {s(uD0)}, {s(u1)}")
        A(f"s_and_b32 {s(u1)}, {s(S_WV)}, 1")
        A(f"s_add_u32 {s(uD0)}, {s(uD0)}, {s(u1)}")
        A(f"s_lshl_b32 {s(uD0)}, {s(uD0)}, 10")
        A(f"s_add_u32 {s(uD0)}, {s(uD0)}, {W2F}")
        A(f"s_cmp_ge_u32 {s(sWB)}, 112")
        A(f"s_cselect_b32 {s(sSrc)}, {s(uSrc)}, {s(sSrc)}")
        A(f"s_cselect_b32 {s(sD0)}, {s(uD0)}, {s(sD0)}")
        A(f"s_mov_b32 {s(sStride)}, 3584")
        A(f"s_cselect_b32 {s(sStride)}, 896, {s(sStride)}")
        A(f"s_cselect_b32 {s(sA)}, 4, 8")
        A(f"s_mov_b32 {s(sR1)}, {4 * 1088}")
        A(f"s_cselect_b32 {s(sR1)}, {8 * 1088}, {s(sR1)}")
        A(f"s_mov_b32 {s(sDS)}, {112 * 1024}")
        A(f"s_cselect_b32 {s(sDS)}, {448 * 1024}, {s(sDS)}")
        A(f"s_cselect_b32 {s(R_D)}, {s(P_W2)}, {s(P_W1)}")
        A(f"s_cselect_b32 {s(R_D + 1)}, {s(P_W2 + 1)}, {s(P_W1 + 1)}")
        A(f"s_mov_b32 {s(R_D + 2)}, 1605632")
        A(f"s_mov_b32 {s(R_D + 3)}, 0x{SRD3:08x}")
        A(f"s_lshl_b32 {s(t0)}, {s(S_WV)}, 2")
        A(f"s_mul_i32 {s(t0)}, {s(t0)}, {s(sStride)}")
        A(f"s_add_u32 {s(sSrc)}, {s(sSrc)}, {s(t0)}")
        A(f"v_lshlrev_b32 {v(vL16)}, 4, v1")
        A(f"v_add_u32 {v(vWa)}, {s(sSrc)}, {v(vL16)}")
        A(f"s_lshl_b32 {s(t0)}, {s(S_CP)}, 13")
        self.srd(R_B, P_SK, 4096, add=s(t0))
        A(f"s_add_u32 {s(t0)}, {s(t0)}, 4096")
        self.srd(R_C, P_SK, 4096, add=s(t0))
        vKA, vKB, vKA2, vKB2 = 132, 133, 134, 135
        A(f"v_lshlrev_b32 {v(vKA)}, 4, v0")
        A(f"v_subrev_u32 {v(vKB)}, 16, {v(vKA)}")
        A(f"v_subrev_u32 {v(vKA)}, 32, {v(vKA)}")
        A(f"v_and_b32 {v(vKA2)}, 1, v1")
        A(f"v_lshlrev_b32 {v(vKA2)}, 4, {v(vKA2)}")
        A(f"v_add_u32 {v(vKB2)}, 4080, {v(vKA2)}")
        vTPW, vWw, vTPR, vStO, vTR0, vTR1, vKW = 136, 137, 138, 139, 140, 141, 142
        A(f"v_add_u32 {v(vKW + 1)}, {4096 + L_KC}, {v(vKA2)}")
        A(f"v_add_u32 {v(vKA2)}, 4064, {v(vKA2)}")
        A(f"v_lshlrev_b32 {v(vKW)}, 4, v0")
        A(f"v_add_u32 {v(vKW)}, {L_KC}, {v(vKW)}")
        A(f"v_mul_u32_u24 {v(vTPW)}, 1088, {v(vC)}")
        A(f"v_lshl_add_u32 {v(vTPW)}, {v(vRG)}, 3, {v(vTPW)}")
        A(f"s_lshl_b32 {s(t0)}, {s(S_WV)}, 6")
        A(f"v_add_u32 {v(vTPW)}, {s(t0)}, {v(vTPW)}")
        A(f"s_mul_i32 {s(t1)}, {s(S_WV)}, {4 * 1088}")
        A(f"v_add_u32 {v(vWw)}, {s(t1)}, {v(vL16)}")
        A(f"v_lshrrev_b32 {v(vStO)}, 4, v0")
        A(f"v_mul_u32_u24 {v(vTPR)}, 272, {v(vStO)}")
        A(f"v_and_b32 {v(vx)}, 15, v0")
        A(f"v_lshl_add_u32 {v(vTPR)}, {v(vx)}, 4, {v(vTPR)}")
        A(f"v_lshlrev_b32 {v(vStO)}, 13, {v(vStO)}")
        A(f"v_lshl_add_u32 {v(vStO)}, {v(vx)}, 4, {v(vStO)}")
        A(f"v_lshrrev_b32 {v(vTR0)}, 5, v1")
        A(f"v_mul_lo_u32 {v(vTR0)}, {v(vTR0)}, {s(sA)}")
        A(f"v_bfe_u32 {v(vx)}, v1, 2, 2")
        A(f"v_add_u32 {v(vTR0)}, {v(vTR0)}, {v(vx)}")
        A(f"v_mul_u32_u24 {v(vTR0)}, 1088, {v(vTR0)}")
        A(f"v_bfe_u32 {v(vx)}, v1, 4, 1")
        A(f"v_lshl_add_u32 {v(vTR0)}, {v(vx)}, 5, {v(vTR0)}")
        A(f"v_and_b32 {v(vx)}, 3, v1")
        A(f"v_lshl_add_u32 {v(vTR0)}, {v(vx)}, 3, {v(vTR0)}")
        A(f"v_add_u32 {v(vTR0)}, {s(t0)}, {v(vTR0)}")
        A(f"v_add_u32 {v(vTR1)}, {s(sR1)}, {v(vTR0)}")
        sTile = S_OFF
        A(f"s_lshl_b32 {s(sTile)}, {s(S_J)}, 18")
        A(f"s_lshl_b32 {s(t0)}, {s(S_RB)}, 8")
        A(f"s_add_u32 {s(sTile)}, {s(sTile)}, {s(t0)}")
        A(f"v_lshlrev_b32 {v(vRow)}, 2, {v(vRow)}")
        A("v_mov_b32 v240, 0")
        A("v_mov_b32 v241, 0")
        A("v_lshlrev_b32 v242, 3, v1")
        for e in range(2):
            A(f"ds_write_b64 v242, v[240:241] offset:{L_UR + 4608 * e + 4096}")

        L_MS, L_MP = L_TPN, L_TPN + 4096
        c0 = vMT + 2
        A(f"s_mov_b32 {s(t1)}, 0x{f32bits(-LOG2E):08x}")
        A(f"v_lshlrev_b32 {v(vMT + 4)}, 16, {v(c0)}")
        A(f"v_and_b32 {v(vMT + 5)}, {s(S_MASKHI)}, {v(c0)}")
        for k in range(2):
            A(f"v_mul_f32 {v(vMT + 6 + k)}, {s(t1)}, {v(vMT + 4 + k)}")
        for k in range(2):
            A(f"v_exp_f32 {v(vMT + 6 + k)}, {v(vMT + 6 + k)}")
        for k in range(2):
            A(f"v_add_f32 {v(vMT + 6 + k)}, 1.0, {v(vMT + 6 + k)}")
        for k in range(2):
            A(f"v_rcp_f32 {v(vMT + 6 + k)}, {v(vMT + 6 + k)}")
        A(f"s_lshl_b32 {s(t2)}, {s(S_WV)}, 9")
        A(f"s_add_u32 {s(t2)}, {s(t2)}, {L_MS}")
        A(f"v_lshl_add_u32 {v(vCa)}, v1, 3, {s(t2)}")
        A(f"v_pk_mul_f32 {v(vMT + 4, 2)}, {v(vMT + 4, 2)}, {v(vMT + 6, 2)}")
        A(f"v_cvt_pk_bf16_f32 {v(c0)}, {v(vMT + 4)}, {v(vMT + 5)}")
        A(f"v_lshlrev_b32 {v(vMT + 4)}, 16, {v(c0)}")
        A(f"v_and_b32 {v(vMT + 5)}, {s(S_MASKHI)}, {v(c0)}")
        A(f"ds_write_b64 {v(vCa)}, {v(vMT + 4, 2)}")
        A(f"v_and_b32 {v(vCa)}, 60, v1")
        A(f"v_add_u32 {v(vCa)}, {s(t2)}, {v(vCa)}")
        A.wait_lgkm0()
        for i in range(7):
            A(f"ds_read_b32 {v(vSC + i)}, {v(vCa)} offset:{64 * i}")
        A.await_regs(v(vM, 14))
        A.await_regs(v(vSC, 7))
        for i in range(7):
            u = vMT + 4 * (i & 1)
            for k in range(2):
                A(f"v_lshlrev_b32 {v(u + 2 * k)}, 16, {v(vM + 2 * i + k)}")
                A(f"v_and_b32 {v(u + 2 * k + 1)}, {s(S_MASKHI)}, {v(vM + 2 * i + k)}")
            sc = vSC + i
            base, e = (sc, 0) if sc % 2 == 0 else (sc - 1, 1)
            for k in range(2):
                if i == 0:
                    A(f"v_pk_mul_f32 {v(vMA + 2 * k, 2)}, {v(u + 2 * k, 2)}, {v(base, 2)} op_sel:[0,{e}] op_sel_hi:[1,{e}]")
                else:
                    A(f"v_pk_fma_f32 {v(vMA + 2 * k, 2)}, {v(u + 2 * k, 2)}, {v(base, 2)}, {v(vMA + 2 * k, 2)} op_sel:[0,{e},0] op_sel_hi:[1,{e},1]")
        for mod in ("row_ror:4", "row_ror:8"):
            for k in range(4):
                A(f"v_add_f32_dpp {v(vMA + k)}, {v(vMA + k)}, {v(vMA + k)} {mod} row_mask:0xf bank_mask:0xf")
        for swap in ("v_permlane16_swap_b32", "v_permlane32_swap_b32"):
            for k in range(4):
                A(f"v_mov_b32 {v(vMT + k)}, {v(vMA + k)}")
            for k in range(4):
                A(f"{swap} {v(vMA + k)}, {v(vMT + k)}")
            for k in range(4):
                A(f"v_add_f32 {v(vMA + k)}, {v(vMA + k)}, {v(vMT + k)}")
        A(f"s_lshl_b32 {s(t2)}, {s(S_WV)}, 6")
        A(f"s_add_u32 {s(t2)}, {s(t2)}, {L_MP}")
        A(f"v_and_b32 {v(vCa)}, 3, v1")
        A(f"v_lshl_add_u32 {v(vCa)}, {v(vCa)}, 4, {s(t2)}")
        A(f"ds_write_b128 {v(vCa)}, {v(vMA, 4)}")

        TT, WP, AC, vO = 144, 184, 216, 232
        A.await_regs(v(vSH, 16))
        for p in range(4):
            for e in range(2):
                d0 = vSH + 2 * (2 * p + e)
                w = WP + 8 * p
                A(f"v_lshlrev_b32 {v(w + 0 + e)}, 16, {v(d0)}")
                A(f"v_and_b32 {v(w + 2 + e)}, {s(S_MASKHI)}, {v(d0)}")
                A(f"v_lshlrev_b32 {v(w + 4 + e)}, 16, {v(d0 + 1)}")
                A(f"v_and_b32 {v(w + 6 + e)}, {s(S_MASKHI)}, {v(d0 + 1)}")
        self.stamp(21)
        for i in range(5):
            for p in range(4):
                src = vK + 4 * i + p
                A(f"v_lshlrev_b32 {v(TT + 10 * p + 2 * i)}, 16, {v(src)}")
                A(f"v_and_b32 {v(TT + 10 * p + 2 * i + 1)}, {s(S_MASKHI)}, {v(src)}")
        for tap in range(4):
            for p in range(4):
                for row in range(2):
                    acc = AC + 4 * p + 2 * row
                    x = v(TT + 10 * p + 2 * (3 + row - tap), 2)
                    w = v(WP + 8 * p + 2 * tap, 2)
                    if tap == 0:
                        A(f"v_pk_mul_f32 {v(acc, 2)}, {x}, {w}")
                    else:
                        A(f"v_pk_fma_f32 {v(acc, 2)}, {x}, {w}, {v(acc, 2)}")
        for row in range(2):
            for p in range(4):
                src = vV + 4 * row + p
                A(f"v_lshlrev_b32 {v(TT + 10 * p + 2 * row)}, 16, {v(src)}")
                A(f"v_and_b32 {v(TT + 10 * p + 2 * row + 1)}, {s(S_MASKHI)}, {v(src)}")
        for p in range(4):
            for row in range(2):
                acc = AC + 4 * p + 2 * row
                A(f"v_pk_mul_f32 {v(acc, 2)}, {v(acc, 2)}, {v(TT + 10 * p + 2 * row, 2)}")
        for p in range(4):
            for row in range(2):
                acc = AC + 4 * p + 2 * row
                A(f"v_cvt_pk_bf16_f32 {v(vO + 2 * p + row)}, {v(acc)}, {v(acc + 1)}")
        for p in range(4):
            A(f"ds_write_b64 {v(vTPW)}, {v(vO + 2 * p, 2)} offset:{L_TPK + 272 * p}")
        self.stamp(22)
        A(f"v_add_u32 {v(vx)}, {L_TPQ}, {v(vTPW)}")
        A.await_regs(v(vQO, 8))
        for p in range(4):
            A(f"ds_write2_b32 {v(vx)}, {v(vQO + p)}, {v(vQO + 4 + p)} offset0:{68 * p} offset1:{68 * p + 1}")
        vS, vU = 240, 144
        A.await_regs(v(vQ, 16))
        for i in range(16):
            A(f"v_lshlrev_b32 {v(vU + 2 * i)}, 16, {v(vQ + i)}")
            A(f"v_and_b32 {v(vU + 2 * i + 1)}, {s(S_MASKHI)}, {v(vQ + i)}")
        S1, S2 = (240, 242), (244, 246)
        for i in range(16):
            u = v(vU + 2 * i, 2)
            if i < 2:
                A(f"v_pk_mul_f32 {v(S2[i], 2)}, {u}, {u}")
            else:
                A(f"v_pk_fma_f32 {v(S2[i & 1], 2)}, {u}, {u}, {v(S2[i & 1], 2)}")
            if i in (2, 3):
                A(f"v_pk_add_f32 {v(S1[i & 1], 2)}, {v(vU + 2 * (i - 2), 2)}, {u}")
            elif i > 3:
                A(f"v_pk_add_f32 {v(S1[i & 1], 2)}, {v(S1[i & 1], 2)}, {u}")
        A(f"v_pk_add_f32 {v(240, 2)}, {v(240, 2)}, {v(242, 2)}")
        A(f"v_pk_add_f32 {v(244, 2)}, {v(244, 2)}, {v(246, 2)}")
        m, q2 = 240, 244
        A(f"v_add_f32 {v(m)}, {v(m)}, {v(m + 1)}")
        A(f"v_add_f32 {v(q2)}, {v(q2)}, {v(q2 + 1)}")
        for mod in ("quad_perm:[1,0,3,2]", "quad_perm:[2,3,0,1]", "row_half_mirror", "row_mirror"):
            for c_ in (m, q2):
                A(f"v_add_f32_dpp {v(c_)}, {v(c_)}, {v(c_)} {mod} row_mask:0xf bank_mask:0xf")
        A(f"s_mov_b32 {s(t0)}, 0x{f32bits(1.0 / 448):08x}")
        A(f"s_mov_b32 {s(t1)}, 0x{f32bits(1e-5):08x}")
        A(f"v_mul_f32 {v(m)}, {s(t0)}, {v(m)}")
        A(f"v_mul_f32 {v(q2)}, {s(t0)}, {v(q2)}")
        A(f"v_fma_f32 {v(q2)}, -{v(m)}, {v(m)}, {v(q2)}")
        A(f"v_max_f32 {v(q2)}, 0, {v(q2)}")
        A(f"v_add_f32 {v(q2)}, {s(t1)}, {v(q2)}")
        A(f"v_rsq_f32 {v(q2)}, {v(q2)}")
        A.barrier()
        self.stamp(23)
        vRB = 16
        for i in range(2):
            A(f"ds_read_b128 {v(vRB + 4 * i, 4)}, {v(vTPR)} offset:{L_TPK + 4352 * i}")
        for i in range(2):
            A(f"ds_read_b128 {v(vRB + 8 + 4 * i, 4)}, {v(vTPR)} offset:{L_TPQ + 4352 * i}")
        A(f"v_mul_f32 {v(m)}, {v(m)}, {v(q2)}")
        vF0, vJ = 100, 104
        A(f"v_min_u32 {v(vJ)}, 11, v1")
        A(f"v_lshlrev_b32 {v(vJ + 1)}, 2, {v(vJ)}")
        A(f"v_add_u32 {v(vJ + 1)}, {L_TPN + 4096}, {v(vJ + 1)}")
        for w_ in range(4):
            A(f"ds_read_b32 {v(vF0 + w_)}, {v(vJ + 1)} offset:{64 * w_}")
        A(f"s_mul_i32 {s(t0)}, {s(S_MW)}, 12")
        A(f"v_add_u32 {v(vJ)}, {s(t0)}, {v(vJ)}")
        A(f"v_subrev_u32 {v(vJ + 1)}, 448, {v(vJ)}")
        A(f"v_subrev_u32 {v(vJ + 2)}, 1792, {v(vJ)}")
        A(f"v_min_u32 {v(vJ + 1)}, {v(vJ + 1)}, {v(vJ + 2)}")
        A(f"v_mov_b32 {v(vJ + 2)}, 448")
        A(f"v_cmp_lt_u32 vcc, {v(vJ + 1)}, {v(vJ + 2)}")
        A.await_regs(v(vF0, 4))
        A(f"v_add_f32 {v(vF0)}, {v(vF0)}, {v(vF0 + 1)}")
        A(f"v_add_f32 {v(vF0 + 2)}, {v(vF0 + 2)}, {v(vF0 + 3)}")
        A(f"v_lshlrev_b32 {v(vJ)}, 2, {v(vJ)}")
        A(f"v_add_f32 {v(vF0)}, {v(vF0)}, {v(vF0 + 2)}")
        A(f"v_cvt_pk_bf16_f32 {v(vF0)}, {v(vF0)}, {v(vF0)}")
        A(f"v_and_b32 {v(vF0)}, {s(S_MASKHI)}, {v(vF0)}")
        A(f"v_add_f32 {v(vF0 + 1)}, 1.0, {v(vF0)}")
        A(f"v_cvt_pk_bf16_f32 {v(vF0 + 1)}, {v(vF0 + 1)}, {v(vF0 + 1)}")
        A(f"v_and_b32 {v(vF0 + 1)}, {s(S_MASKHI)}, {v(vF0 + 1)}")
        A(f"v_cndmask_b32 {v(vF0)}, {v(vF0)}, {v(vF0 + 1)}, vcc")
        A(f"s_add_u32 {s(t0)}, {s(sTile)}, {KVP}")
        A(f"s_add_u32 {s(t1)}, {s(sTile)}, {KVP + 131072}")
        A(f"s_add_u32 {s(t2)}, {s(sTile)}, {QP}")
        A(f"s_add_u32 {s(u0)}, {s(sTile)}, {QP + 131072}")
        A.await_regs(v(vRB, 8))
        A(f"buffer_store_dwordx4 {v(vRB, 4)}, {v(vStO)}, {s(R_WS, 4)}, {s(t0)} offen sc1")
        A(f"buffer_store_dwordx4 {v(vRB + 4, 4)}, {v(vStO)}, {s(R_WS, 4)}, {s(t1)} offen sc1")
        A.await_regs(v(vRB + 8, 8))
        A(f"buffer_store_dwordx4 {v(vRB + 8, 4)}, {v(vStO)}, {s(R_WS, 4)}, {s(t2)} offen sc1")
        A(f"buffer_store_dwordx4 {v(vRB + 12, 4)}, {v(vStO)}, {s(R_WS, 4)}, {s(u0)} offen sc1")
        A(f"s_mov_b32 {s(t0)}, {STR}")
        A(f"s_mov_b32 {s(t1)}, {STM}")
        A(f"s_mov_b32 exec_lo, 0x00010001")
        A(f"s_mov_b32 exec_hi, 0x00010001")
        A(f"buffer_store_dword {v(q2)}, {v(vRow)}, {s(R_WS, 4)}, {s(t0)} offen sc1")
        A(f"buffer_store_dword {v(m)}, {v(vRow)}, {s(R_WS, 4)}, {s(t1)} offen sc1")
        A(f"s_mov_b32 {s(t0)}, {MODF}")
        A(f"s_mov_b64 exec, 0xfff")
        A(f"buffer_store_dword {v(100)}, {v(104)}, {s(R_WS, 4)}, {s(t0)} offen sc1")
        A("s_mov_b64 exec, -1")
        self.stamp(24)
        def batch2():
            for e in range(2):
                R = R_B if e == 0 else R_C
                for ps in range(2):
                    b = vKD + 8 * (2 * e + ps)
                    A(f"buffer_load_dwordx4 {v(b, 4)}, {v(vKA if ps == 0 else vKA2)}, {s(R, 4)}, 0 offen")
                    A(f"buffer_load_dwordx2 {v(b + 4, 2)}, {v(vKB if ps == 0 else vKB2)}, {s(R, 4)}, 0 offen")
            for i in range(4):
                A(f"buffer_load_dwordx4 {v(vW + 4 * i, 4)}, {v(vWa)}, {s(R_D, 4)}, 0 offen")
                if i < 3:
                    A(f"v_add_u32 {v(vWa)}, {s(sStride)}, {v(vWa)}")

        mark = A.vm_count
        if not self.o.get("b2_late", 0):
            batch2()
        A(f"s_add_u32 {s(S_NONCE)}, {s(S_NONCE)}, 1")
        A(f"s_lshl_b32 {s(t0)}, {s(S_CP)}, 7")
        A(f"s_add_u32 {s(t0)}, {s(t0)}, {FL + F1 * 128}")
        A.wait_vm(A.vm_count - mark)
        A.barrier()
        self.flag_store(t0)
        if self.o.get("b2_late", 0):
            batch2()
        self.stamp(3)
        vx4 = 48
        for e in range(2):
            for ps in range(2):
                b = vKD + 8 * (2 * e + ps)
                base = e * 4 * CS
                ad = vKW + ps
                A.await_regs(v(b, 6))
                for i in range(4):
                    A(f"v_alignbit_b32 {v(vx4 + i)}, {v(b + i + 1)}, {v(b + i)}, 16")
                for i in range(4):
                    A(f"v_mov_b32 {v(vx4 + 4 + i)}, {v(b + i + 1)}")
                for i in range(4):
                    A(f"v_alignbit_b32 {v(vx4 + 8 + i)}, {v(b + i + 2)}, {v(b + i + 1)}, 16")
                A(f"ds_write_b128 {v(ad)}, {v(b, 4)} offset:{base}")
                A(f"ds_write_b128 {v(ad)}, {v(vx4, 4)} offset:{base + CS}")
                A(f"ds_write_b128 {v(ad)}, {v(vx4 + 4, 4)} offset:{base + 2 * CS}")
                A(f"ds_write_b128 {v(ad)}, {v(vx4 + 8, 4)} offset:{base + 3 * CS}")
        A.await_regs(v(vW, 16))
        for i in range(4):
            A(f"ds_write_b128 {v(vWw)}, {v(vW + 4 * i, 4)} offset:{L_WB + 1088 * i}")
        A.barrier()
        self.stamp(25)
        for i in range(4):
            A(f"ds_read_b64_tr_b16 {v(220 + 4 * i, 2)}, {v(vTR0)} offset:{L_WB + 256 * i}")
            A(f"ds_read_b64_tr_b16 {v(220 + 4 * i + 2, 2)}, {v(vTR1)} offset:{L_WB + 256 * i}")
        self.wr = dict(sWB=sWB, sD0=sD0, sDS=sDS)
        self.stamp(26)

    def w_stores(self):
        A = self.A
        vF, sD0, sDS = 220, self.wr["sD0"], self.wr["sDS"]
        A.await_regs(v(vF, 16))
        for i in range(3):
            A(f"buffer_store_dwordx4 {v(vF + 4 * i, 4)}, v4, {s(R_WS, 4)}, {s(sD0)} offen sc1")
            A(f"s_add_u32 {s(sD0)}, {s(sD0)}, {s(sDS)}")
        skip = self.lab("w4")
        A(f"s_cmp_ge_u32 {s(S_WV)}, 2")
        A(f"s_cbranch_scc1 {skip}")
        A.cond_begin()
        A(f"buffer_store_dwordx4 {v(vF + 12, 4)}, v4, {s(R_WS, 4)}, {s(sD0)} offen sc1")
        A.cond_end()
        A.label(skip)

    def poll2_issue(self, va, vb, vt):
        A = self.A
        A(f"buffer_load_dword {v(vt)}, {v(va)}, {s(R_WS, 4)}, 0 offen sc1")
        A(f"buffer_load_dword {v(vt + 1)}, {v(vb)}, {s(R_WS, 4)}, 0 offen sc1")

    def poll1_check(self, va, vt):
        A = self.A
        done = self.lab("p1d")
        A(f"v_cmp_ne_u32 vcc, {s(S_NONCE)}, {v(vt)}")
        A("s_nop 1")
        A("s_cmp_eq_u64 vcc, 0")
        A(f"s_cbranch_scc1 {done}")
        st = A.snapshot()
        self.poll(va, vt)
        A.restore(st)
        A.label(done)

    def poll2_check(self, va, vb, vt):
        A = self.A
        loop, done = self.lab("p2"), self.lab("p2d")
        A(f"v_cmp_ne_u32 vcc, {s(S_NONCE)}, {v(vt)}")
        A(f"v_cmp_ne_u32 {s(S_SPIN + 2, 2)}, {s(S_NONCE)}, {v(vt + 1)}")
        A(f"s_mov_b32 {s(S_SPIN)}, 0")
        A("s_nop 1")
        A(f"s_or_b64 vcc, vcc, {s(S_SPIN + 2, 2)}")
        A("s_cmp_eq_u64 vcc, 0")
        A(f"s_cbranch_scc1 {done}")
        st = A.snapshot()
        A.label(loop)
        A(f"buffer_load_dword {v(vt)}, {v(va)}, {s(R_WS, 4)}, 0 offen sc1")
        A(f"buffer_load_dword {v(vt + 1)}, {v(vb)}, {s(R_WS, 4)}, 0 offen sc1")
        A.wait_vm(0)
        A(f"v_cmp_ne_u32 vcc, {s(S_NONCE)}, {v(vt)}")
        A(f"v_cmp_ne_u32 {s(S_SPIN + 2, 2)}, {s(S_NONCE)}, {v(vt + 1)}")
        A(f"s_add_u32 {s(S_SPIN)}, {s(S_SPIN)}, 1")
        A("s_nop 1")
        A(f"s_or_b64 vcc, vcc, {s(S_SPIN + 2, 2)}")
        A("s_cmp_eq_u64 vcc, 0")
        A(f"s_cbranch_scc1 {done}")
        A(f"s_cmp_lt_u32 {s(S_SPIN)}, {SPIN_MAX}")
        A(f"s_cbranch_scc1 {loop}")
        A.restore(st)
        A.label(done)

    def phase_a(self):
        A = self.A
        T = S_T
        t0, t1, t2 = T, T + 1, T + 2
        vPa, vPt, vx, vy = 2, 3, 16, 17
        A(f"v_min_u32 {v(vPa)}, 55, v1")
        A(f"s_mul_i32 {s(t0)}, {s(S_WV)}, 56")
        A(f"v_add_u32 {v(vPa)}, {s(t0)}, {v(vPa)}")
        A(f"v_lshlrev_b32 {v(vPa)}, 7, {v(vPa)}")
        A(f"v_add_u32 {v(vPa)}, {FL + F1 * 128}, {v(vPa)}")
        vL16 = 4
        sKV = S_OFF + 2
        A(f"s_lshl_b32 {s(sKV)}, {s(S_CP)}, 13")
        A(f"s_lshl_b32 {s(t2)}, {s(S_WV)}, 11")
        A(f"s_add_u32 {s(sKV)}, {s(sKV)}, {s(t2)}")
        vUW, vaA, vaB = 5, 6, 7
        A(f"s_lshl_b32 {s(t0)}, {s(S_WV)}, 10")
        A(f"s_sub_u32 {s(t0)}, {4088 - 512}, {s(t0)}")
        A(f"v_lshlrev_b32 {v(vx)}, 3, v1")
        A(f"v_sub_u32 {v(vUW)}, {s(t0)}, {v(vx)}")
        A(f"v_and_b32 {v(vx)}, 15, v1")
        A(f"v_add_u32 {v(vx)}, 1, {v(vx)}")
        A(f"v_and_b32 {v(vy)}, 3, {v(vx)}")
        A(f"v_sub_u32 {v(vx)}, {v(vx)}, {v(vy)}")
        A(f"v_lshlrev_b32 {v(vx)}, 1, {v(vx)}")
        A(f"v_mul_u32_u24 {v(vy)}, {CS}, {v(vy)}")
        A(f"v_add_u32 {v(vaA)}, {v(vx)}, {v(vy)}")
        A(f"v_lshrrev_b32 {v(vy)}, 4, v1")
        A(f"v_lshl_add_u32 {v(vaA)}, {v(vy)}, 4, {v(vaA)}")
        A(f"s_lshr_b32 {s(t0)}, {s(S_WV)}, 1")
        A(f"s_and_b32 {s(t1)}, {s(S_WV)}, 1")
        A(f"s_mul_i32 {s(t2)}, {s(t0)}, {4 * CS}")
        A(f"s_lshl_b32 {s(t1)}, {s(t1)}, 8")
        A(f"s_add_u32 {s(t2)}, {s(t2)}, {s(t1)}")
        A(f"s_add_u32 {s(t2)}, {s(t2)}, {L_KC}")
        A(f"v_add_u32 {v(vaA)}, {s(t2)}, {v(vaA)}")
        A(f"v_and_b32 {v(vx)}, 15, v1")
        A(f"v_lshlrev_b32 {v(vx)}, 5, {v(vx)}")
        A(f"v_lshlrev_b32 {v(vy)}, 4, {v(vy)}")
        A(f"v_sub_u32 {v(vaB)}, {v(vy)}, {v(vx)}")
        A(f"s_mul_i32 {s(t2)}, {s(t0)}, 4608")
        A(f"s_add_u32 {s(t2)}, {s(t2)}, {s(t1)}")
        A(f"s_add_u32 {s(t2)}, {s(t2)}, {L_UR + 480}")
        A(f"v_add_u32 {v(vaB)}, {s(t2)}, {v(vaB)}")
        vPW, vPM, vPR = 18, 19, 20
        A(f"s_lshl_b32 {s(t0)}, {s(S_J)}, 3")
        A(f"s_lshl_b32 {s(t1)}, {s(S_WV)}, 1")
        A(f"s_add_u32 {s(t0)}, {s(t0)}, {s(t1)}")
        A(f"s_mul_i32 {s(t0)}, {s(t0)}, 147")
        A(f"s_lshr_b32 {s(t0)}, {s(t0)}, 11")
        A(f"v_min_u32 {v(vx)}, 27, v1")
        A(f"v_lshl_add_u32 {v(vPW)}, {v(vx)}, 2, {s(t0)}")
        A(f"s_mul_i32 {s(t1)}, {s(S_WV)}, 28")
        A(f"s_add_u32 {s(t1)}, {s(t1)}, {112 - 32}")
        A(f"v_min_u32 {v(vy)}, 59, v1")
        A(f"v_add_u32 {v(vy)}, {s(t1)}, {v(vy)}")
        A(f"v_cmp_gt_u32 vcc, 32, v1")
        A(f"v_cndmask_b32 {v(vPW)}, {v(vy)}, {v(vPW)}, vcc")
        A(f"v_lshlrev_b32 {v(vPW)}, 7, {v(vPW)}")
        A(f"v_add_u32 {v(vPW)}, {FL + FQ * 128}, {v(vPW)}")
        A(f"s_add_u32 {s(t1)}, {s(sKV)}, {KVP}")
        self.poll(vPa, vPt)
        A.barrier()
        self.stamp(5)
        vKV = 8
        for h in range(2):
            A(f"buffer_load_dwordx4 {v(vKV + 4 * h, 4)}, {v(vL16)}, {s(R_WS, 4)}, {s(t1)} offen offset:{1024 * h} sc1")
        vQn, vRs, vMs = 144, 152, 160
        A(f"s_add_u32 {s(t1)}, {s(sKV)}, {QP}")
        for h in range(2):
            A(f"buffer_load_dwordx4 {v(vQn + 4 * h, 4)}, {v(vL16)}, {s(R_WS, 4)}, {s(t1)} offen offset:{1024 * h} sc1")
        A(f"s_lshl_b32 {s(t0)}, {s(S_WV)}, 11")
        A(f"s_add_u32 {s(t1)}, {s(t0)}, {STR}")
        A(f"s_add_u32 {s(t2)}, {s(t0)}, {STM}")
        for h in range(2):
            A(f"buffer_load_dwordx4 {v(vRs + 4 * h, 4)}, {v(vL16)}, {s(R_WS, 4)}, {s(t1)} offen offset:{1024 * h} sc1")
            A(f"buffer_load_dwordx4 {v(vMs + 4 * h, 4)}, {v(vL16)}, {s(R_WS, 4)}, {s(t2)} offen offset:{1024 * h} sc1")
        vPS, vPA, vPG, vPD, vPar = 168, 170, 172, 174, 176
        A(f"s_lshl_b32 {s(t0)}, {s(S_CP)}, 3")
        A(f"v_mov_b32 {v(vx)}, {s(t0)}")
        for reg, sec in ((vPS, 0), (vPA, 1), (vPG, 2)):
            A(f"s_mov_b32 {s(t1)}, {MODF + sec * 1792}")
            A(f"buffer_load_dwordx2 {v(reg, 2)}, {v(vx)}, {s(R_WS, 4)}, {s(t1)} offen sc1")
        self.srd(R_A, P_D, 896)
        A(f"s_lshl_b32 {s(t0)}, {s(S_CP)}, 2")
        A(f"v_mov_b32 {v(vy)}, {s(t0)}")
        A(f"buffer_load_dword {v(vPD + 1)}, {v(vy)}, {s(R_A, 4)}, 0 offen")
        A(f"v_lshlrev_b32 {v(vx)}, 3, v0")
        A(f"s_mov_b32 {s(t0)}, {MODF + 4 * 1792}")
        A(f"s_mov_b32 {s(t1)}, {MODF + 3 * 1792}")
        A(f"buffer_load_dwordx2 {v(vPar, 2)}, {v(vx)}, {s(R_WS, 4)}, {s(t0)} offen sc1")
        A(f"buffer_load_dwordx2 {v(vPar + 2, 2)}, {v(vx)}, {s(R_WS, 4)}, {s(t1)} offen sc1")
        A(f"v_lshlrev_b32 {v(vy)}, 2, v1")
        A(f"s_lshl_b32 {s(t0)}, {s(S_J)}, 8")
        A(f"s_add_u32 {s(t0)}, {s(t0)}, {MODF + 5 * 1792}")
        A(f"buffer_load_dword {v(vPar + 4)}, {v(vy)}, {s(R_WS, 4)}, {s(t0)} offen sc1")
        self.w_stores()
        vP = 22
        A.await_regs(v(vKV, 8))
        for h in range(2):
            d = vKV + 4 * h
            for e, sel in ((0, S_PERM_LO), (1, S_PERM_HI)):
                o = vP + 4 * h + 2 * e
                A(f"v_perm_b32 {v(o)}, {v(d + 2)}, {v(d + 3)}, {s(sel)}")
                A(f"v_perm_b32 {v(o + 1)}, {v(d)}, {v(d + 1)}, {s(sel)}")
        for h in range(2):
            for e in range(2):
                o = vP + 4 * h + 2 * e
                A(f"ds_write_b64 {v(vUW)}, {v(o, 2)} offset:{L_UR + 4608 * e + (512 if h == 0 else 0)}")
        A.barrier()
        self.stamp(6)
        ACC = 32
        BS = [64, 96]
        AR = 128

        def ldB(rp, m):
            A(f"ds_read_b128 {v(BS[rp & 1] + 4 * m, 4)}, {v(vaB)} offset:{64 * rp + 512 * (7 - m)}")

        def ldA(idx):
            rp, q = divmod(idx, 8)
            r = AR + 4 * (idx % 4)
            A(f"ds_read_b64 {v(r, 2)}, {v(vaA)} offset:{64 * rp + 512 * q}")
            A(f"ds_read_b64 {v(r + 2, 2)}, {v(vaA)} offset:{64 * rp + 512 * q + 8}")

        ldA(0)
        for m in range(8):
            ldB(0, m)
        ldA(1)
        ldA(2)
        nm = 0
        self.bg_setup()
        for rp in range(4):
            for q in range(8):
                idx = rp * 8 + q
                ar = AR + 4 * (idx % 4)
                first = True
                for n in range(q, 8):
                    c = "0" if (rp == 0 and q == 0) else v(ACC + 4 * n, 4)
                    if first:
                        regs = [v(ar, 4)]
                        if q == 0:
                            regs.append(v(BS[rp & 1], 32))
                        A.await_regs(*regs)
                    A(f"v_mfma_f32_16x16x32_bf16 {v(ACC + 4 * n, 4)}, {v(ar, 4)}, {v(BS[rp & 1] + 4 * (n - q), 4)}, {c}")
                    nm += 1
                    if first:
                        first = False
                        if idx + 3 < 32:
                            ldA(idx + 3)
                        if rp < 3 and 0 <= q <= 3:
                            ldB(rp + 1, 2 * q)
                            ldB(rp + 1, 2 * q + 1)
                    if rp >= 2 and self.o.get("conv_pace", 0) and nm % self.o["conv_pace"] == 0:
                        self.bg_emit(1)
        self.stamp(7)
        vRW, vRR, vSt = 183, 19, 182
        A(f"v_and_b32 {v(vx)}, 15, v1")
        A(f"v_mul_u32_u24 {v(vRW)}, 80, {v(vx)}")
        A(f"v_lshrrev_b32 {v(vy)}, 4, v1")
        A(f"v_lshl_add_u32 {v(vRW)}, {v(vy)}, 4, {v(vRW)}")
        A(f"s_mul_i32 {s(t0)}, {s(S_WV)}, 10240")
        A(f"s_add_u32 {s(t0)}, {s(t0)}, {L_RED}")
        A(f"v_add_u32 {v(vRW)}, {s(t0)}, {v(vRW)}")
        A(f"v_mul_u32_u24 {v(vSt)}, 57344, {v(vy)}")
        A(f"v_lshl_add_u32 {v(vSt)}, {v(vx)}, 4, {v(vSt)}")
        for n in range(8):
            A(f"ds_write_b128 {v(vRW)}, {v(ACC + 4 * n, 4)} offset:{1280 * n}")
        A(f"v_lshrrev_b32 {v(vx)}, 2, v1")
        A(f"v_mul_u32_u24 {v(vRR)}, 80, {v(vx)}")
        A(f"v_and_b32 {v(vy)}, 3, v1")
        A(f"v_lshl_add_u32 {v(vRR)}, {v(vy)}, 4, {v(vRR)}")
        A(f"s_mul_i32 {s(t0)}, {s(S_WV)}, 2560")
        A(f"s_add_u32 {s(t0)}, {s(t0)}, {L_RED}")
        A(f"v_add_u32 {v(vRR)}, {s(t0)}, {v(vRR)}")
        sX = S_OFF + 3
        A(f"s_mul_i32 {s(sX)}, {s(S_WV)}, {2 * 229376}")
        A(f"s_lshl_b32 {s(t0)}, {s(S_CP)}, 8")
        A(f"s_add_u32 {s(sX)}, {s(sX)}, {s(t0)}")
        A(f"s_add_u32 {s(sX)}, {s(sX)}, {X1P}")
        A(f"s_add_u32 {s(t1)}, {s(sX)}, 229376")
        U, Q, N = 64, 80, 200
        A.await_regs(v(vQn, 8), v(vRs, 8), v(vMs, 8), v(vPS, 2), v(vPA, 2), v(vPG, 2), v(vPD + 1))
        A(f"v_lshlrev_b32 {v(vPD)}, 16, {v(vPD + 1)}")
        A(f"v_and_b32 {v(vPD + 1)}, {s(S_MASKHI)}, {v(vPD + 1)}")
        for h in range(2):
            for e in range(2):
                for r in range(4):
                    for dst, src in ((U, vKV), (Q, vQn)):
                        d = dst + 8 * h + 4 * e + r
                        if e == 0:
                            A(f"v_lshlrev_b32 {v(d)}, 16, {v(src + 4 * h + r)}")
                        else:
                            A(f"v_and_b32 {v(d)}, {s(S_MASKHI)}, {v(src + 4 * h + r)}")
        for h in range(2):
            for e in range(2):
                for k in (0, 2):
                    o = 8 * h + 4 * e + k
                    A(f"v_pk_fma_f32 {v(N + o, 2)}, {v(Q + o, 2)}, {v(vRs + 4 * h + k, 2)}, {v(vMs + 4 * h + k, 2)} neg_lo:[0,0,1] neg_hi:[0,0,1]")
        for h in range(2):
            for e in range(2):
                for k in (0, 2):
                    o = 8 * h + 4 * e + k
                    A(f"v_pk_fma_f32 {v(N + o, 2)}, {v(N + o, 2)}, {v(vPA, 2)}, {v(vPS, 2)} op_sel:[0,{e},{e}] op_sel_hi:[1,{e},{e}]")
        for h in range(2):
            for e in range(2):
                for k in (0, 2):
                    o = 8 * h + 4 * e + k
                    A(f"v_pk_mul_f32 {v(N + o, 2)}, {v(N + o, 2)}, {v(vPG, 2)} op_sel:[0,{e}] op_sel_hi:[1,{e}]")
        A.wait_vm(0)
        A.barrier()
        A(f"s_lshl_b32 {s(t0)}, {s(self.wr['sWB'])}, 7")
        A(f"s_add_u32 {s(t0)}, {s(t0)}, {FL + FQ * 128}")
        self.flag_store(t0)
        self.stamp(30)
        vY = 96
        for h in range(2):
            for w in range(4):
                A(f"ds_read_b128 {v(vY + 16 * h + 4 * w, 4)}, {v(vRR)} offset:{10240 * w + 1280 * h}")
        A(f"s_mov_b32 {s(t2)}, 0x{f32bits(LOG2E):08x}")
        A(f"v_lshlrev_b32 {v(vx)}, 4, v0")
        A(f"v_add_u32 {v(vx)}, {L_PAR}, {v(vx)}")
        A(f"v_lshlrev_b32 {v(vy)}, 2, v1")
        A(f"v_add_u32 {v(vy)}, {L_GB}, {v(vy)}")
        A.await_regs(v(vPar, 4), v(vPar + 4))
        for r_ in range(vPar, vPar + 4):
            A(f"v_mul_f32 {v(r_)}, {s(t2)}, {v(r_)}")
        A(f"ds_write_b128 {v(vx)}, {v(vPar, 4)}")
        A(f"ds_write_b32 {v(vy)}, {v(vPar + 4)}")
        vOut = 128
        for h in range(2):
            A.await_regs(v(vY + 16 * h, 16))
            ys = [(e, k, vY + 16 * h + 8 * e + k, 8 * h + 4 * e + k) for e in range(2) for k in (0, 2)]
            for e, k, y, o in ys:
                A(f"v_pk_add_f32 {v(y, 2)}, {v(y, 2)}, {v(y + 4, 2)}")
            for e, k, y, o in ys:
                A(f"v_pk_fma_f32 {v(y, 2)}, {v(U + o, 2)}, {v(vPD, 2)}, {v(y, 2)} op_sel:[0,{e},0] op_sel_hi:[1,{e},1]")
            for e, k, y, o in ys:
                A(f"v_pk_fma_f32 {v(y, 2)}, {v(N + o, 2)}, {v(y, 2)}, {v(Q + o, 2)}")
            for r in range(4):
                A(f"v_cvt_pk_bf16_f32 {v(vOut + 4 * h + r)}, {v(vY + 16 * h + r)}, {v(vY + 16 * h + 8 + r)}")
            A(f"buffer_store_dwordx4 {v(vOut + 4 * h, 4)}, {v(vSt)}, {s(R_WS, 4)}, {s(sX if h == 0 else t1)} offen sc1")
        self.stamp(8)
        A(f"s_lshl_b32 {s(t0)}, {s(S_CP)}, 7")
        A(f"s_add_u32 {s(t0)}, {s(t0)}, {FL + F2 * 128}")
        mark = A.vm_count
        A(f"buffer_load_dword {v(vPR)}, {v(vPW)}, {s(R_WS, 4)}, 0 offen sc1")
        A.wait_vm(A.vm_count - mark)
        A.barrier()
        self.flag_store(t0)
        self.poll1_check(vPW, vPR)
        self.bg_emit(self.n_burst_t2)
        self.stamp(9)

    def phase_b(self):
        A = self.A
        T = S_T
        t0, t1, t2 = T, T + 1, T + 2
        vPa, vPt = 2, 4
        A(f"v_min_u32 {v(vPa)}, 55, v1")
        A(f"s_mul_i32 {s(t0)}, {s(S_WV)}, 56")
        A(f"v_add_u32 {v(vPa)}, {s(t0)}, {v(vPa)}")
        A(f"v_lshlrev_b32 {v(vPa)}, 7, {v(vPa)}")
        A(f"v_add_u32 {v(vPa)}, {FL + F2 * 128}, {v(vPa)}")
        self.poll(vPa, vPt)
        A.barrier()
        self.stamp(10)
        A(f"s_lshr_b32 {s(t0)}, {s(S_WV)}, 1")
        A(f"s_lshl_b32 {s(t0)}, {s(t0)}, 10")
        A(f"v_add_u32 v{V_W2O[0]}, {s(t0)}, v{V_L16}")
        A(f"s_sub_u32 {s(t0)}, 1024, {s(t0)}")
        A(f"v_add_u32 v{V_W2O[1]}, {s(t0)}, v{V_L16}")
        vL16 = 4
        A(f"v_lshlrev_b32 {v(vL16)}, 4, v1")
        A(f"s_mul_i32 {s(t1)}, {s(S_WV)}, 14336")
        A(f"s_mul_i32 {s(t0)}, {s(S_RB)}, 57344")
        A(f"s_add_u32 {s(t0)}, {s(t0)}, {s(t1)}")
        A(f"s_add_u32 {s(t0)}, {s(t0)}, {X1P}")
        A(f"s_add_u32 {s(t1)}, {s(t1)}, {L_XD}")
        A(f"s_mov_b32 m0, {s(t1)}")
        for i in range(14):
            if i and i % 4 == 0:
                A(f"s_add_u32 {s(t0)}, {s(t0)}, 4096")
                A(f"s_add_u32 m0, m0, 4096")
            A.dma(f"buffer_load_dwordx4 {v(vL16)}, {s(R_WS, 4)}, {s(t0)} offen offset:{1024 * (i % 4)} sc1 lds", f"x{i}")
        skip = self.lab("ep")
        A(f"s_cmp_lg_u32 {s(S_CP)}, 0")
        A(f"s_cbranch_scc1 {skip}")
        A.cond_begin()
        A(f"s_mov_b32 {s(t0)}, 0")
        self.flag_store(t0)
        A.cond_end()
        A.label(skip)
        if self.o.get("pretouch", 0):
            A(f"s_mul_i32 {s(t0)}, {s(S_RB)}, 112")
            A(f"s_lshl_b32 {s(t2)}, {s(S_J)}, 4")
            A(f"s_add_u32 {s(t0)}, {s(t0)}, {s(t2)}")
            A(f"s_lshl_b32 {s(t2)}, {s(S_WV)}, 2")
            A(f"s_add_u32 {s(t0)}, {s(t0)}, {s(t2)}")
            A(f"s_lshl_b32 {s(t0)}, {s(t0)}, 11")
            A(f"s_add_u32 {s(t0)}, {s(t0)}, {HF}")
            A(f"v_lshlrev_b32 v6, 7, v1")
            A(f"buffer_load_dword v252, v6, {s(R_WS, 4)}, {s(t0)} offen")
        X = 88
        vXR = 5
        A(f"v_lshlrev_b32 {v(vXR)}, 2, v1")
        A(f"v_add_u32 {v(vXR)}, {s(t1)}, {v(vXR)}")

        XR = 72

        def ldX(g):
            A.need(f"x{g}")
            r = XR + 4 * (g % 4)
            A(f"ds_read2st64_b32 {v(r, 2)}, {v(vXR)} offset0:{4 * g} offset1:{4 * g + 1}")
            A(f"ds_read2st64_b32 {v(r + 2, 2)}, {v(vXR)} offset0:{4 * g + 2} offset1:{4 * g + 3}")

        vS = 8
        for g in range(3):
            ldX(g)
        self.stamp(27)
        for g in range(14):
            src = XR + 4 * (g % 4)
            A.await_regs(v(src, 4))
            if g + 3 < 14:
                ldX(g + 3)
            for k in range(4):
                e = 4 * g + k
                r = X + 2 * e
                A(f"v_lshlrev_b32 {v(r)}, 16, {v(src + k)}")
                A(f"v_and_b32 {v(r + 1)}, {s(S_MASKHI)}, {v(src + k)}")
            for k in range(4):
                e = 4 * g + k
                r = X + 2 * e
                s1, s2 = vS + 2 * (e & 1), vS + 4 + 2 * (e & 1)
                if e < 2:
                    A(f"v_mov_b32 {v(s1)}, {v(r)}")
                    A(f"v_mov_b32 {v(s1 + 1)}, {v(r + 1)}")
                    A(f"v_pk_mul_f32 {v(s2, 2)}, {v(r, 2)}, {v(r, 2)}")
                else:
                    A(f"v_pk_add_f32 {v(s1, 2)}, {v(s1, 2)}, {v(r, 2)}")
                    A(f"v_pk_fma_f32 {v(s2, 2)}, {v(r, 2)}, {v(r, 2)}, {v(s2, 2)}")
            if g >= 14 - self.o.get("n_bstat", 11):
                self.bg_emit(1)
        A(f"v_pk_add_f32 {v(vS, 2)}, {v(vS, 2)}, {v(vS + 2, 2)}")
        A(f"v_pk_add_f32 {v(vS + 4, 2)}, {v(vS + 4, 2)}, {v(vS + 6, 2)}")
        A(f"v_add_f32 {v(vS)}, {v(vS)}, {v(vS + 1)}")
        A(f"v_add_f32 {v(vS + 1)}, {v(vS + 4)}, {v(vS + 5)}")
        vSW = 5
        A(f"v_lshlrev_b32 {v(vSW)}, 3, v1")
        A(f"v_add_u32 {v(vSW)}, {L_STAT}, {v(vSW)}")
        A(f"s_lshl_b32 {s(t0)}, {s(S_WV)}, 9")
        A(f"v_add_u32 v6, {s(t0)}, {v(vSW)}")
        A(f"ds_write_b64 v6, {v(vS, 2)}")
        self.stamp(28)
        vPb = 6
        vHW = 7
        A(f"v_lshrrev_b32 v22, 5, v1")
        A(f"v_lshlrev_b32 {v(vHW)}, 10, v22")
        A(f"v_and_b32 v22, 31, v1")
        A(f"v_lshl_add_u32 {v(vHW)}, v22, 4, {v(vHW)}")
        A(f"s_mul_i32 {s(t0)}, {s(S_WV)}, {7 * 2048}")
        A(f"v_add_u32 {v(vHW)}, {s(t0)}, {v(vHW)}")
        A(f"s_mul_i32 {s(t0)}, {s(S_WV)}, 896")
        A(f"s_add_u32 {s(t0)}, {s(t0)}, {L_PAR}")
        A.barrier()
        for w in range(4):
            A(f"ds_read_b64 {v(16 + 2 * w, 2)}, {v(vSW)} offset:{512 * w}")
        A(f"v_mov_b32 {v(vPb)}, {s(t0)}")
        def PRq(e):
            k = e % 12
            return 24 + 4 * k if k < 8 else 72 + 4 * (k - 8)
        OUT = 56

        def ldP(e):
            if self.o.get("b_nopar"):
                return
            A(f"ds_read_b128 {v(PRq(e), 4)}, {v(vPb)} offset:{16 * e}")

        for e in range(8):
            ldP(e)
        A("v_pk_add_f32 v[16:17], v[16:17], v[18:19]")
        A("v_pk_add_f32 v[20:21], v[20:21], v[22:23]")
        A("v_pk_add_f32 v[16:17], v[16:17], v[20:21]")
        A(f"s_mov_b32 {s(t0)}, 0x{f32bits(1.0 / 448):08x}")
        A(f"s_mov_b32 {s(t1)}, 0x{f32bits(1e-5):08x}")
        A(f"v_mul_f32 v16, {s(t0)}, v16")
        A(f"v_mul_f32 v17, {s(t0)}, v17")
        A("v_fma_f32 v17, -v16, v16, v17")
        A("v_max_f32 v17, 0, v17")
        A(f"v_add_f32 v17, {s(t1)}, v17")
        vR, vM = 18, 20
        A(f"v_rsq_f32 {v(vR)}, v17")
        A(f"v_mul_f32 {v(vM)}, v16, {v(vR)}")
        self.stamp(29)
        for e0 in range(0, 56, 4):
            A.await_regs(*[v(PRq(e0 + k), 4) for k in range(4)])
            for k in range(8, 12):
                if e0 + k < 56:
                    ldP(e0 + k)
            for e in range(e0, e0 + 4):
                r = X + 2 * e
                A(f"v_pk_fma_f32 {v(r, 2)}, {v(r, 2)}, {v(vR, 2)}, {v(vM, 2)} op_sel_hi:[1,0,0] neg_lo:[0,0,1] neg_hi:[0,0,1]")
            for e in range(e0, e0 + 4):
                r = X + 2 * e
                p = PRq(e)
                A(f"v_pk_fma_f32 {v(r, 2)}, {v(r, 2)}, {v(p, 2)}, {v(p + 2, 2)}")
            sp, k0 = divmod(e0, 8)
            o = OUT + 8 * (sp & 1)
            for e in range(e0, e0 + 4):
                r = X + 2 * e
                A(f"v_cvt_pk_bf16_f32 {v(o + e % 8)}, {v(r)}, {v(r + 1)}")
            if not self.o.get("b_nowr"):
                A(f"ds_write_b128 {v(vHW)}, {v(o + k0, 4)} offset:{L_H2 + 2048 * sp + (512 if k0 else 0)}")
            nbn = self.o.get("n_bnorm", 27)
            g_ = e0 // 4
            self.bg_emit(nbn * (g_ + 1) // 14 - nbn * g_ // 14)
        while self.bg_left("w1") > 0:
            self.bg_emit(1)
        A.barrier()
        self.stamp(11)

    def w2reg(self, f):
        if f < 41:
            return v(88 + 4 * f, 4)
        if f < 49:
            return a(224 + 4 * (f - 41), 4)
        return a(4 * (f - 49), 4)

    def bg_setup(self):
        A = self.A
        t0, t1 = S_T, S_T + 1
        A(f"s_lshl_b32 {s(t0)}, {s(S_J)}, 3")
        A(f"s_lshl_b32 {s(t1)}, {s(S_WV)}, 1")
        A(f"s_add_u32 {s(t0)}, {s(t0)}, {s(t1)}")
        A(f"s_mul_i32 {s(S_W1B)}, {s(t0)}, {28 * 1024}")
        A(f"s_add_u32 {s(S_W1B)}, {s(S_W1B)}, {W1F}")
        A(f"s_lshl_b32 {s(t0)}, {s(S_J)}, 2")
        A(f"s_add_u32 {s(t0)}, {s(t0)}, {s(S_WV)}")
        A(f"s_mul_i32 {s(S_W2B)}, {s(t0)}, {56 * 1024}")
        A(f"s_add_u32 {s(S_W2B)}, {s(S_W2B)}, {W2F}")
        A(f"v_lshlrev_b32 v{V_L16}, 4, v1")
        self.bgq = [("w1", f) for f in range(56)] + [("w2", f) for f in self.w2_order]
        self.bg_cur = {"w1": 0, "w2": 0}

    def bg_emit(self, n=1):
        A = self.A
        if self.o["nobg"]:
            del self.bgq[:n]
            return
        for _ in range(n):
            if not self.bgq:
                return
            kind, f = self.bgq.pop(0)
            base = S_W1B if kind == "w1" else S_W2B
            blk = f // 4
            if blk != self.bg_cur[kind]:
                d = (blk - self.bg_cur[kind]) * 4096
                A(f"s_add_u32 {s(base)}, {s(base)}, {d}" if d > 0 else f"s_sub_u32 {s(base)}, {s(base)}, {-d}")
                self.bg_cur[kind] = blk
            if kind == "w1":
                A(f"buffer_load_dwordx4 {a(4 * f, 4)}, v{V_L16}, {s(R_WS, 4)}, {s(base)} offen offset:{1024 * (f % 4)} sc1")
            else:
                A(f"buffer_load_dwordx4 {self.w2reg(f)}, v{V_W2O[f & 1]}, {s(R_WS, 4)}, {s(base)} offen offset:{2048 * ((f % 4) >> 1)} sc1")

    def bg_left(self, kind):
        return sum(1 for k, _ in self.bgq if k == kind)

    def phase_c(self):
        A = self.A
        t0 = S_T
        if self.o.get("force_global", 1):
            self.phase_c_body(" sc1")
            return
        glob, join = self.lab("cglob"), self.lab("cjoin")
        A(f"s_cmp_eq_u32 {s(S_LOCAL)}, 0")
        A(f"s_cbranch_scc1 {glob}")
        st, q, cur = A.snapshot(), list(self.bgq), dict(self.bg_cur)
        self.phase_c_body("")
        A(f"s_branch {join}")
        A.restore(st)
        self.bgq, self.bg_cur = q, cur
        A.label(glob)
        self.phase_c_body(" sc1")
        A.label(join)

    def phase_c_body(self, sc):
        A = self.A
        T = S_T
        t0, t1 = T, T + 1
        sH, sH2 = S_OFF + 5, S_OFF + 7
        A(f"s_mul_i32 {s(t0)}, {s(S_RB)}, 112")
        A(f"s_lshl_b32 {s(t1)}, {s(S_J)}, 4")
        A(f"s_add_u32 {s(t0)}, {s(t0)}, {s(t1)}")
        A(f"s_lshl_b32 {s(t1)}, {s(S_WV)}, 2")
        A(f"s_add_u32 {s(t0)}, {s(t0)}, {s(t1)}")
        A(f"s_lshl_b32 {s(sH)}, {s(t0)}, 11")
        A(f"s_add_u32 {s(sH)}, {s(sH)}, {HF}")
        A(f"s_add_u32 {s(sH2)}, {s(sH)}, 4096")
        sC = S_OFF + 6
        A(f"s_mov_b32 {s(sC)}, 0x{f32bits(LOG2E):08x}")
        ACC = [24, 40]
        NR = 6
        RING = 4
        TMP = 68
        OUT = 76

        def ring(i):
            k = i % NR
            return RING + 4 * k if k < 5 else 56

        def store(g, off):
            base, o = (sH2, off - 4096) if off >= 4096 else (sH, off)
            return f"buffer_store_dwordx4 {v(OUT + 4 * g, 4)}, v{V_L16}, {s(R_WS, 4)}, {s(base)} offen offset:{o}{sc}"

        def silu_ops(tile):
            ft, th = divmod(tile, 2)
            acc = ACC[tile & 1]
            seq = []
            lag = (0, 2, 3, 5)
            for step in range(16 + lag[-1] + 2):
                for k in range(4):
                    i = step - lag[k]
                    if 0 <= i < 16:
                        x, tmp = acc + i, TMP + (i % 8)
                        if k == 0:
                            seq.append((8, f"v_exp_f32 {v(tmp)}, -{v(x)}"))
                        elif k == 1:
                            seq.append((4, f"v_fma_f32 {v(tmp)}, {v(tmp)}, {s(sC)}, {s(sC)}"))
                        elif k == 2:
                            seq.append((8, f"v_rcp_f32 {v(tmp)}, {v(tmp)}"))
                        else:
                            seq.append((4, f"v_mul_f32 {v(x)}, {v(x)}, {v(tmp)}"))
                i = step - lag[-1] - 1
                if 0 <= i < 16 and i % 2 == 1:
                    g, kk = divmod(i // 2, 4)
                    seq.append((4, f"v_cvt_pk_bf16_f32 {v(OUT + 4 * g + kk)}, {v(acc + i - 1)}, {v(acc + i)}"))
                    if kk == 3:
                        off = (2 * (2 * ft + g) + th) * 1024
                        seq.append((4, store(g, off)))
            return seq

        def ldH(idx):
            tile, st = divmod(idx, 28)
            th = tile & 1
            A(f"ds_read_b128 {v(ring(idx), 4)}, v{V_L16} offset:{L_H2 + 2048 * st + 1024 * th}")

        for i_ in range(NR - 2):
            ldH(i_)
        pend = []
        nbg = self.n_bg_c
        done_bg = 0
        for tile in range(4):
            ft = tile >> 1
            acc = ACC[tile & 1]
            total = sum(c for c, _ in pend)
            for st in range(28):
                idx = tile * 28 + st
                if idx % 2 == 0:
                    A.await_regs(*[v(ring(i_), 4) for i_ in (idx, idx + 1) if i_ < 112])
                    for i_ in (idx + NR - 2, idx + NR - 1):
                        if i_ < 112:
                            ldH(i_)
                c = "0" if st == 0 else v(acc, 16)
                A(f"v_mfma_f32_32x32x16_bf16 {v(acc, 16)}, {a(4 * (28 * ft + st), 4)}, {v(ring(idx), 4)}, {c}")
                if pend and st >= 2:
                    left_slots = 28 - st
                    budget = -(-sum(c for c, _ in pend) // left_slots)
                    spent = 0
                    while pend and spent < budget:
                        cst, ins = pend.pop(0)
                        A(ins)
                        spent += cst
                while done_bg < nbg * (idx + 1) // 112 and self.bgq:
                    assert self.bgq[0][0] == "w1" or self.bgq[0][1] < 49 or idx >= 36
                    self.bg_emit(1)
                    done_bg += 1
            assert not pend, len(pend)
            pend = silu_ops(tile)
        for _, ins in pend:
            A(ins)
        self.stamp(12)
        A.wait_vm(0)
        A.barrier()
        A(f"s_lshl_b32 {s(t0)}, {s(S_RB)}, 3")
        A(f"s_add_u32 {s(t0)}, {s(t0)}, {s(S_J)}")
        A(f"s_lshl_b32 {s(t0)}, {s(t0)}, 7")
        A(f"s_add_u32 {s(t0)}, {s(t0)}, {FL + F3 * 128}")
        self.flag_store(t0, sc=sc)
        self.bg_emit(len(self.bgq))
        self.stamp(13)

    def phase_d(self):
        A = self.A
        T = S_T
        t0, t1 = T, T + 1
        vPa, vPt = 2, 4
        A(f"v_min_u32 {v(vPa)}, 6, v1")
        A(f"s_lshl_b32 {s(t0)}, {s(S_RB)}, 3")
        A(f"v_add_u32 {v(vPa)}, {s(t0)}, {v(vPa)}")
        A(f"v_lshlrev_b32 {v(vPa)}, 7, {v(vPa)}")
        A(f"v_add_u32 {v(vPa)}, {FL + F3 * 128}, {v(vPa)}")
        self.poll(vPa, vPt)
        self.stamp(14)
        sH = S_OFF
        A(f"s_mul_i32 {s(t0)}, {s(S_RB)}, 112")
        A(f"s_mul_i32 {s(t1)}, {s(S_WV)}, 28")
        A(f"s_add_u32 {s(t0)}, {s(t0)}, {s(t1)}")
        A(f"s_lshl_b32 {s(sH)}, {s(t0)}, 11")
        A(f"s_add_u32 {s(sH)}, {s(sH)}, {HF}")
        NSLOT = 49
        HB = 28
        hl = {0: " sc1", 1: "", 2: " nt", 3: " sc0"}[self.o.get("hload", 0)]
        vH = 4
        A(f"s_and_b32 {s(t0)}, {s(S_WV)}, 1")
        A(f"s_lshl_b32 {s(t0)}, {s(t0)}, 10")
        A(f"v_add_u32 {v(vH)}, {s(t0)}, v{V_L16}")
        A(f"s_sub_u32 {s(t0)}, 1024, {s(t0)}")
        A(f"v_add_u32 {v(vH + 1)}, {s(t0)}, v{V_L16}")

        def hreg(i):
            return a(HB + 4 * (i % NSLOT), 4)

        def ldH(i):
            if i % 4 == 0 and i:
                A(f"s_add_u32 {s(sH)}, {s(sH)}, 4096")
            A(f"buffer_load_dwordx4 {hreg(i)}, {v(vH + (i & 1))}, {s(R_WS, 4)}, {s(sH)} offen offset:{2048 * ((i % 4) >> 1)}{hl}")

        PRE = self.o.get("d_pre", 12)
        for i in range(PRE):
            ldH(i)
        vWr, vRd, vG, vX, vO, vt = 8, 11, 12, 13, 14, 15
        for x in range(1, 4):
            A(f"s_xor_b32 {s(t0)}, {s(S_WV)}, {x}")
            A(f"s_mul_i32 {s(t0)}, {s(t0)}, 12288")
            A(f"s_add_u32 {s(t0)}, {s(t0)}, {L_RED2 + (x - 1) * 4096}")
            A(f"v_add_u32 {v(vWr + x - 1)}, {s(t0)}, v{V_L16}")
        A(f"s_mul_i32 {s(t0)}, {s(S_WV)}, 12288")
        A(f"s_add_u32 {s(t0)}, {s(t0)}, {L_RED2}")
        A(f"v_add_u32 {v(vRd)}, {s(t0)}, v{V_L16}")
        A(f"s_lshr_b32 {s(t0)}, {s(S_WV)}, 1")
        A(f"s_and_b32 {s(t1)}, {s(S_WV)}, 1")
        A(f"v_lshrrev_b32 {v(vt)}, 5, v1")
        t2, t3 = T + 2, T + 3
        A(f"s_lshl_b32 {s(t2)}, {s(t0)}, 7")
        A(f"s_add_u32 {s(t2)}, {s(t2)}, {L_GB}")
        A(f"v_lshl_add_u32 {v(vG)}, {v(vt)}, 4, {s(t2)}")
        A(f"s_lshl_b32 {s(t2)}, {s(S_J)}, 13")
        A(f"s_lshl_b32 {s(t3)}, {s(t0)}, 12")
        A(f"s_add_u32 {s(t2)}, {s(t2)}, {s(t3)}")
        A(f"s_lshl_b32 {s(t3)}, {s(t1)}, 7")
        A(f"s_add_u32 {s(t2)}, {s(t2)}, {s(t3)}")
        A(f"s_add_u32 {s(t2)}, {s(t2)}, {L_XD}")
        A(f"v_lshl_add_u32 {v(vX)}, {v(vt)}, 9, {s(t2)}")
        A(f"v_and_b32 {v(vO)}, 31, v1")
        A(f"v_lshl_add_u32 {v(vX)}, {v(vO)}, 2, {v(vX)}")
        A(f"s_lshl_b32 {s(t2)}, {s(S_RB)}, 6")
        A(f"s_lshl_b32 {s(t3)}, {s(t1)}, 5")
        A(f"s_add_u32 {s(t2)}, {s(t2)}, {s(t3)}")
        A(f"v_add_u32 {v(vO)}, {s(t2)}, {v(vO)}")
        A(f"v_mul_u32_u24 {v(vO)}, 896, {v(vO)}")
        A(f"s_lshl_b32 {s(t2)}, {s(S_J)}, 7")
        A(f"s_lshl_b32 {s(t3)}, {s(t0)}, 6")
        A(f"s_add_u32 {s(t2)}, {s(t2)}, {s(t3)}")
        A(f"v_lshl_add_u32 {v(vt)}, {v(vt)}, 4, {s(t2)}")
        A(f"v_add_u32 {v(vO)}, {v(vO)}, {v(vt)}")
        self.srd(R_A, P_OUT, 2048 * 896)
        ACC = 24
        nxt = PRE
        for st in range(28):
            for _ in range(2):
                if nxt < 56:
                    ldH(nxt)
                    nxt += 1
            for e1 in range(2):
                i = 2 * st + e1
                for e in range(2):
                    acc = ACC + 16 * (2 * e + e1)
                    c = "0" if st == 0 else v(acc, 16)
                    if self.o.get("d_nomfma"):
                        A.await_regs(hreg(i))
                        continue
                    A(f"v_mfma_f32_32x32x16_bf16 {v(acc, 16)}, {self.w2reg(2 * st + e)}, {hreg(i)}, {c}")
        self.stamp(15)
        GB, XP = 16, 88
        GB = 104
        X1 = 120
        PT = 144
        for g in range(4):
            A(f"ds_read_b128 {v(GB + 4 * g, 4)}, {v(vG)} offset:{32 * g}")
            A(f"ds_read2st64_b32 {v(X1 + 2 * g, 2)}, {v(vX)} offset0:{4 * g} offset1:{4 * g + 1}")
        for x in range(1, 4):
            for g in range(4):
                A(f"ds_write_b128 {v(vWr + x - 1)}, {v(ACC + 16 * x + 4 * g, 4)} offset:{1024 * g}")
        for k in range(8):
            A(f"v_lshlrev_b32 {v(128 + 2 * k)}, 16, {v(X1 + k)}")
            A(f"v_and_b32 {v(129 + 2 * k)}, {s(S_MASKHI)}, {v(X1 + k)}")
        self.stamp(17)
        A.barrier()
        self.stamp(18)
        for k in range(3):
            for g in range(4):
                A(f"ds_read_b128 {v(PT + 16 * k + 4 * g, 4)}, {v(vRd)} offset:{4096 * k + 1024 * g}")
        for k in range(3):
            A.await_regs(v(PT + 16 * k, 16))
            for i in range(8):
                A(f"v_pk_add_f32 {v(ACC + 2 * i, 2)}, {v(ACC + 2 * i, 2)}, {v(PT + 16 * k + 2 * i, 2)}")
        for i in range(8):
            A(f"v_pk_fma_f32 {v(ACC + 2 * i, 2)}, {v(ACC + 2 * i, 2)}, {v(GB + 2 * i, 2)}, {v(128 + 2 * i, 2)}")
        OUT = 192
        for i in range(8):
            A(f"v_cvt_pk_bf16_f32 {v(OUT + i)}, {v(ACC + 2 * i)}, {v(ACC + 2 * i + 1)}")
        for k in (0, 2):
            for i in range(2):
                A(f"v_permlane32_swap_b32 {v(OUT + 2 * k + i)}, {v(OUT + 2 * k + 2 + i)}")
        for k in (0, 2):
            A(f"buffer_store_dwordx4 {v(OUT + 2 * k, 4)}, {v(vO)}, {s(R_A, 4)}, 0 offen offset:{16 * k}")
        self.stamp(16)

    def helper(self):
        A = self.A
        T = S_T
        t0, t1, t2 = T + 4, T + 5, T + 6
        sH = S_RB
        A.label("L_helper")
        A(f"s_lshl_b32 {s(t0)}, {s(T + 1)}, 3")
        A(f"s_add_u32 {s(sH)}, {s(t0)}, {s(T)}")
        A(f"s_cmp_ge_u32 {s(sH)}, 21")
        A("s_cbranch_scc1 L_helper_flag")
        st_h = A.snapshot()
        self.srd(R_A, P_WM, 448 * 5376)
        self.srd(R_B, P_C, 896)
        A("v_lshrrev_b32 v2, 4, v0")
        A("v_and_b32 v3, 15, v0")
        A("v_mul_u32_u24 v4, 5376, v2")
        A("v_lshl_add_u32 v4, v3, 4, v4")
        A(f"s_lshl_b32 {s(t0)}, {s(sH)}, 8")
        A(f"v_add_u32 v4, {s(t0)}, v4")
        A("v_lshlrev_b32 v5, 2, v0")
        A(f"buffer_load_dword v6, v5, {s(R_B, 4)}, 0 offen")
        W = 16
        A(f"s_mov_b32 {s(t0)}, 0")
        for i in range(28):
            A(f"buffer_load_dwordx4 {v(W + 4 * i, 4)}, v4, {s(R_A, 4)}, {s(t0)} offen")
            if i < 27:
                A(f"s_add_u32 {s(t0)}, {s(t0)}, {16 * 5376}")
        A(f"s_mov_b32 {s(t1)}, 0x{f32bits(-1.4426950408889634):08x}")
        A("v_lshlrev_b32 v8, 16, v6")
        A(f"v_and_b32 v9, {s(S_MASKHI)}, v6")
        for r in (8, 9):
            A(f"v_mul_f32 {v(r + 2)}, {s(t1)}, {v(r)}")
        for r in (8, 9):
            A(f"v_exp_f32 {v(r + 2)}, {v(r + 2)}")
        for r in (8, 9):
            A(f"v_add_f32 {v(r + 2)}, 1.0, {v(r + 2)}")
        for r in (8, 9):
            A(f"v_rcp_f32 {v(r + 2)}, {v(r + 2)}")
        for r in (8, 9):
            A(f"v_mul_f32 {v(r)}, {v(r)}, {v(r + 2)}")
        A("v_cvt_pk_bf16_f32 v6, v8, v9")
        A("v_lshlrev_b32 v8, 16, v6")
        A(f"v_and_b32 v9, {s(S_MASKHI)}, v6")
        A("v_lshlrev_b32 v7, 3, v0")
        A(f"ds_write_b64 v7, v[8:9] offset:{L_SC}")
        A.barrier()
        A("v_lshlrev_b32 v7, 2, v2")
        SC = 128
        for i in range(28):
            A(f"ds_read_b32 {v(SC + 2 * i)}, v7 offset:{L_SC + 64 * i}")
        AC = 192
        U = 200
        for i in range(28):
            for k in range(4):
                src = W + 4 * i + k
                u = U + 2 * k
                A(f"v_lshlrev_b32 {v(u)}, 16, {v(src)}")
                A(f"v_and_b32 {v(u + 1)}, {s(S_MASKHI)}, {v(src)}")
            for k in range(4):
                u = U + 2 * k
                if i == 0:
                    A(f"v_pk_mul_f32 {v(AC + 2 * k, 2)}, {v(u, 2)}, {v(SC + 2 * i, 2)} op_sel_hi:[1,0]")
                else:
                    A(f"v_pk_fma_f32 {v(AC + 2 * k, 2)}, {v(u, 2)}, {v(SC + 2 * i, 2)}, {v(AC + 2 * k, 2)} op_sel_hi:[1,0,1]")
        A("v_mul_u32_u24 v7, 528, v2")
        A("v_lshl_add_u32 v7, v3, 5, v7")
        A(f"ds_write_b128 v7, {v(AC, 4)} offset:{L_MR}")
        A(f"ds_write_b128 v7, {v(AC + 4, 4)} offset:{L_MR + 16}")
        A.barrier()
        A("v_and_b32 v8, 127, v0")
        A("v_lshlrev_b32 v7, 2, v8")
        for g in range(16):
            A(f"ds_read_b32 {v(16 + g)}, v7 offset:{L_MR + 528 * g}")
        for stp in (8, 4, 2, 1):
            for g in range(stp):
                A(f"v_add_f32 {v(16 + g)}, {v(16 + g)}, {v(16 + g + stp)}")
        A("v_cvt_pk_bf16_f32 v16, v16, v16")
        A(f"v_and_b32 v16, {s(S_MASKHI)}, v16")
        A("v_add_f32 v17, 1.0, v16")
        A("v_cvt_pk_bf16_f32 v17, v17, v17")
        A(f"v_and_b32 v17, {s(S_MASKHI)}, v17")
        A(f"s_lshl_b32 {s(t0)}, {s(sH)}, 7")
        A(f"v_add_u32 v8, {s(t0)}, v8")
        A("v_subrev_u32 v9, 448, v8")
        A("v_subrev_u32 v10, 1792, v8")
        A("v_min_u32 v9, v9, v10")
        A("v_mov_b32 v11, 448")
        A("v_cmp_lt_u32 vcc, v9, v11")
        A("s_nop 1")
        A("v_cndmask_b32 v16, v16, v17, vcc")
        A("v_lshlrev_b32 v8, 2, v8")
        A(f"s_mov_b32 {s(t0)}, {MODF}")
        skip = self.lab("ms")
        A(f"s_cmp_ge_u32 {s(S_WV)}, 2")
        A(f"s_cbranch_scc1 {skip}")
        A.cond_begin()
        A(f"buffer_store_dword v16, v8, {s(R_WS, 4)}, {s(t0)} offen sc1")
        A.cond_end()
        A.label(skip)
        A.wait_vm(0)
        A.barrier()
        A.label("L_helper_flag")
        A.wait_lgkm0()
        A(f"s_add_u32 {s(S_NONCE)}, {s(S_NONCE)}, 1")
        A(f"s_lshl_b32 {s(t0)}, {s(sH)}, 7")
        A(f"s_add_u32 {s(t0)}, {s(t0)}, {FL + FM * 128}")
        self.flag_store(t0)
        self.stamp(3)
        if self.o.get("helper_warm", 0):
            A("v_min_u32 v2, 55, v1")
            A(f"s_mul_i32 {s(t0)}, {s(S_WV)}, 56")
            A(f"v_add_u32 v2, {s(t0)}, v2")
            A("v_lshlrev_b32 v2, 7, v2")
            A(f"v_add_u32 v2, {FL + self.o.get('warm_flag', F2) * 128}, v2")
            A(f"s_lshr_b32 {s(t0)}, s2, 3")
            A(f"s_sub_u32 {s(t0)}, {s(t0)}, 28")
            A(f"s_lshl_b32 {s(t0)}, {s(t0)}, 2")
            A(f"s_add_u32 {s(t0)}, {s(t0)}, {s(S_WV)}")
            A("v_lshlrev_b32 v4, 7, v1")
            A(f"s_and_b32 {s(t1)}, s2, 7")
            A(f"s_mul_i32 {s(t1)}, {s(t1)}, {4 * 229376}")
            A(f"s_mul_i32 {s(t2)}, {s(t0)}, {448 * 128}")
            A(f"s_add_u32 {s(t1)}, {s(t1)}, {s(t2)}")
            A(f"s_add_u32 {s(t1)}, {s(t1)}, {HF}")
            self.poll(2, 3)
            for k in range(7):
                A(f"buffer_load_dword {v(32 + k)}, v4, {s(R_WS, 4)}, {s(t1)} offen")
                A(f"s_add_u32 {s(t1)}, {s(t1)}, {64 * 128}")
            A.wait_vm(0)
        self.stamp(4)
        self.stamp_flush()
        A("s_endpgm")

    def build(self):
        A = self.A
        self.prologue()
        if self.stamps:
            A("v_mov_b32 v255, 0")
            A("v_writelane_b32 v255, s76, 31")
        st = A.snapshot()
        self.stamp(0)
        self.phase_p()
        stages = [("p", None), ("a", self.phase_a), ("b", self.phase_b), ("c", self.phase_c), ("d", self.phase_d)]
        done = self.stop == "p"
        for name, fn in stages[1:]:
            if done:
                break
            fn()
            done = self.stop == name
        self.stamp_flush()
        A("s_endpgm")
        A.label("L_exit")
        A("s_endpgm")
        A.label("L_code_end")
        return A.text()


def f32bits(x):
    import struct
    return struct.unpack("<I", struct.pack("<f", x))[0]


HEADER = """; Fused adaLN + H3 long convolution + SiLU MLP, one persistent launch (generated by gen/gen.py).
; Kernarg: q k v shift_k ssm_k ssm_D B_x w1 w2 c w_mod out debug ws (8-byte pointers).
; @launch grid=(224,1,1) block=(256,1,1) lds={lds}
.amdgcn_target "amdgcn-amd-amdhsa--gfx950"
.text
.globl {name}
.p2align 8
.type {name},@function
{name}:
"""

FOOTER = """.section .rodata,"a"
.p2align 6
.amdhsa_kernel {name}
  .amdhsa_next_free_vgpr 512
  .amdhsa_next_free_sgpr 102
  .amdhsa_accum_offset 256
  .amdhsa_group_segment_fixed_size 0
  .amdhsa_kernarg_size 112
  .amdhsa_user_sgpr_count 2
  .amdhsa_user_sgpr_kernarg_segment_ptr 1
  .amdhsa_system_sgpr_workgroup_id_x 1
  .amdhsa_float_denorm_mode_32 3
.end_amdhsa_kernel
"""


def main():
    ap = argparse.ArgumentParser()
    ap.add_argument("--stop", default=None)
    ap.add_argument("--stamps", action="store_true")
    ap.add_argument("-o", default="/dev/stdout")
    ap.add_argument("--opt", action="append", default=[])
    args = ap.parse_args()
    opts = {}
    for kv in args.opt:
        k, val = kv.split("=")
        opts[k] = int(val)
    g = Gen(stop=args.stop, stamps=args.stamps, opts=opts)
    body = g.build()
    txt = HEADER.format(name=NAME, lds=LDS_END) + body + FOOTER.format(name=NAME)
    with open(args.o, "w") as f:
        f.write(txt)
    print(f"instructions: {g.A.n_ins}, auto nops: {g.A.n_nops}, lds {LDS_END}", file=sys.stderr)


if __name__ == "__main__":
    main()
```

```python
import sys
import argparse
from asmdsl import Asm, v, a, s

NAME = "adaLN_cond__ssm_conv_h3__dense_activation_silu__prompt_kernel"

FL = 4096
F1, FQ, FM, F2, F3 = 0, 256, 512, 544, 800
STAMP = 0x30000
T2D = 224 * 8192
KVP = 0x40000
QP = KVP + T2D
STR = QP + T2D
STM = STR + 8192
X1P = STR + 16384
W1F = X1P + T2D
W2F = W1F + 1605632
MODF = W2F + 1605632
HF = MODF + 16384
WS_END = HF + 32 * 112 * 2048
assert WS_END < (1 << 28)

L_H2 = 0
L_TPK = 0
L_TPQ = 8704
L_TPN = 17408
L_WB = 26112
L_UR = 43520
assert L_UR + 9216 <= 57344
L_KC = 57344
CS = 4160
L_RED = L_KC + 8 * CS
L_RED2 = 0
L_XD = 69632
L_PAR = L_RED + 40960
L_STAT = L_PAR + 4096
L_GB = L_STAT + 2048
LDS_END = L_GB + 256
assert L_XD + 57344 <= L_PAR
assert LDS_END <= 163840
L_SC = 0
L_MR = 2048

S_RB, S_J, S_WV, S_CP = 4, 5, 6, 7
P_Q, P_K, P_V, P_SH, P_SK, P_D, P_BX, P_W1, P_W2, P_C, P_WM, P_OUT, P_DBG, P_WS = range(8, 36, 2)
R_WS, R_A, R_B, R_C, R_D = 36, 40, 44, 48, 52
S_NONCE = 56
S_T = 57
S_M = 80
S_MASKHI = 80
S_PERM_LO = 81
S_PERM_HI = 82
S_OFF = 84
S_SPIN = 96
S_PC = 100
S_W1B, S_W2B = 78, 79
S_XCC, S_LOCAL = 83, 95
S_WI = 94
S_MW = 93
V_W2O = (2, 253)
V_L16 = 3
S_ST0 = 98

SRD3 = 0x00020000
LOG2E = 1.4426950408889634
SPIN_MAX = 1 << 17


class Gen:
    def __init__(self, stop=None, stamps=False, opts=None):
        self.o = dict(cring=3, repf=0, burst_before_flag=0, n_burst_t2=28, n_bg_c=36, bg_b=1, nobg=0)
        self.o.update(opts or {})
        self.A = Asm()
        self.stop = stop
        self.stamps = stamps
        self.nlab = 0
        self.nstamp = 0
        self.n_burst_t2 = self.o["n_burst_t2"]
        self.n_bg_c = self.o["n_bg_c"]
        self.w2_order = list(range(41, 49)) + list(range(28, 41)) + list(range(28)) + list(range(49, 56))

    def lab(self, base):
        self.nlab += 1
        return f"L_{base}_{self.nlab}"

    def srd(self, r, ptr, nbytes, add=None):
        A = self.A
        if add is None:
            A(f"s_mov_b32 {s(r)}, {s(ptr)}")
            A(f"s_mov_b32 {s(r + 1)}, {s(ptr + 1)}")
        else:
            A(f"s_add_u32 {s(r)}, {s(ptr)}, {add}")
            A(f"s_addc_u32 {s(r + 1)}, {s(ptr + 1)}, 0")
        A(f"s_mov_b32 {s(r + 2)}, {nbytes}")
        A(f"s_mov_b32 {s(r + 3)}, 0x{SRD3:08x}")

    def stamp(self, idx):
        if not self.stamps:
            return
        A = self.A
        A(f"s_memrealtime {s(S_ST0, 2)}")
        A.wait_lgkm0()
        A(f"v_writelane_b32 v255, {s(S_ST0)}, {idx}")
        if self.o.get("cyc"):
            A(f"s_memtime {s(S_ST0, 2)}")
            A.wait_lgkm0()
            A(f"v_writelane_b32 v255, {s(S_ST0)}, {32 + idx}")

    def stamp_flush(self):
        if not self.stamps:
            return
        A = self.A
        if self.o.get("dbg"):
            skip = self.lab("dbg")
            A(f"s_cmp_lg_u32 {s(S_WV)}, 0")
            A(f"s_cbranch_scc1 {skip}")
            A("s_cmp_eq_u32 s2, 0")
            A(f"s_cselect_b32 {s(S_T)}, 0, 32")
            A(f"s_cselect_b32 {s(S_T + 1)}, 1, 0")
            A("s_cmp_eq_u32 s2, 223")
            A(f"s_cselect_b32 {s(S_T + 1)}, 1, {s(S_T + 1)}")
            A(f"s_cmp_eq_u32 {s(S_T + 1)}, 0")
            A(f"s_cbranch_scc1 {skip}")
            A.cond_begin()
            A(f"v_readlane_b32 {s(S_T + 2)}, v255, 31")
            self.srd(R_A, P_DBG, 256)
            for n_, idx in enumerate((3, 5, 8, 10, 11, 12, 15, 16)):
                A(f"v_readlane_b32 {s(S_T + 3)}, v255, {idx}")
                A(f"s_sub_u32 {s(S_T + 3)}, {s(S_T + 3)}, {s(S_T + 2)}")
                A(f"v_mov_b32 v250, {s(S_T + 3)}")
                A(f"s_add_u32 {s(S_T + 4)}, {s(S_T)}, {4 * n_}")
                A(f"v_mov_b32 v251, {s(S_T + 4)}")
                A("s_mov_b64 exec, 1")
                A(f"buffer_store_dword v250, v251, {s(R_A, 4)}, 0 offen")
                A("s_mov_b64 exec, -1")
            A.cond_end()
            A.label(skip)
            return
        skip = self.lab("sf")
        A(f"s_cmp_lg_u32 {s(S_WV)}, 0")
        A(f"s_cbranch_scc1 {skip}")
        A.cond_begin()
        A("v_lshlrev_b32 v254, 2, v1")
        A(f"s_lshl_b32 {s(S_SPIN + 1)}, s2, 8")
        A(f"s_add_u32 {s(S_SPIN + 1)}, {s(S_SPIN + 1)}, {STAMP}")
        A(f"buffer_store_dword v255, v254, {s(R_WS, 4)}, {s(S_SPIN + 1)} offen")
        A.cond_end()
        A.label(skip)

    def flag_store(self, soff_sgpr, vtmp=252, with_xcc=False, sc=" sc1"):
        A = self.A
        skip = self.lab("fl")
        A(f"s_cmp_lg_u32 {s(S_WV)}, 0")
        A(f"s_cbranch_scc1 {skip}")
        A.cond_begin()
        A(f"v_mov_b32 {v(vtmp)}, {s(S_NONCE)}")
        if with_xcc:
            A(f"v_mov_b32 {v(vtmp + 1)}, {s(S_XCC)}")
        A(f"v_mov_b32 {v(vtmp + 2)}, {s(soff_sgpr)}")
        A("s_mov_b64 exec, 1")
        if with_xcc:
            A(f"buffer_store_dwordx2 {v(vtmp, 2)}, {v(vtmp + 2)}, {s(R_WS, 4)}, 0 offen{sc}")
        else:
            A(f"buffer_store_dword {v(vtmp)}, {v(vtmp + 2)}, {s(R_WS, 4)}, 0 offen{sc}")
        A("s_mov_b64 exec, -1")
        A.cond_end()
        A.label(skip)

    def poll(self, vaddr, vtmp):
        A = self.A
        loop, done = self.lab("poll"), self.lab("polld")
        A(f"s_mov_b32 {s(S_SPIN)}, 0")
        A.label(loop)
        A(f"buffer_load_dword {v(vtmp)}, {v(vaddr)}, {s(R_WS, 4)}, 0 offen sc1")
        A.wait_vm(0)
        A(f"v_cmp_ne_u32 vcc, {s(S_NONCE)}, {v(vtmp)}")
        A(f"s_add_u32 {s(S_SPIN)}, {s(S_SPIN)}, 1")
        A("s_nop 3")
        A("s_cmp_eq_u64 vcc, 0")
        A(f"s_cbranch_scc1 {done}")
        A(f"s_cmp_lt_u32 {s(S_SPIN)}, {SPIN_MAX}")
        A(f"s_cbranch_scc1 {loop}")
        A.label(done)

    def code_prefetch(self):
        A = self.A
        A("v_lshlrev_b32 v253, 7, v0")
        A("v_min_u32 v253, L_code_end-L_pc-4, v253")
        A(f"global_load_dword v254, v253, {s(S_PC, 2)}")

    def finish(self):
        self.A("s_endpgm")

    def prologue(self):
        A = self.A
        A("s_cmp_ge_u32 s2, 224")
        A("s_cbranch_scc1 L_exit")
        if self.stamps:
            A(f"s_memrealtime {s(76, 2)}")
        A(f"s_load_dwordx16 {s(8, 16)}, s[0:1], 0")
        A(f"s_load_dwordx8 {s(24, 8)}, s[0:1], 64")
        A(f"s_load_dwordx4 {s(32, 4)}, s[0:1], 96")
        A(f"s_getpc_b64 {s(S_PC, 2)}")
        A.label("L_pc")
        A("v_lshlrev_b32 v253, 7, v0")
        A("v_min_u32 v253, L_code_end-L_pc-4, v253")
        A(f"global_load_dword v254, v253, {s(S_PC, 2)}")
        A("v_lshrrev_b32 v2, 6, v0")
        A("v_and_b32 v1, 63, v0")
        A(f"s_and_b32 {s(S_T)}, s2, 7")
        A(f"s_lshr_b32 {s(S_T + 1)}, s2, 3")
        A(f"v_readfirstlane_b32 {s(S_WV)}, v2")
        A(f"s_getreg_b32 {s(S_XCC)}, hwreg(HW_REG_XCC_ID, 0, 4)")
        A(f"s_mov_b32 {s(S_MASKHI)}, 0xffff0000")
        A(f"s_mov_b32 {s(S_PERM_LO)}, 0x05040100")
        A(f"s_mov_b32 {s(S_PERM_HI)}, 0x07060302")
        A(f"s_mov_b32 {s(S_WI)}, {s(S_T + 1)}")
        A(f"s_mul_i32 {s(S_T + 2)}, {s(S_WI)}, 37")
        A(f"s_lshr_b32 {s(S_T + 2)}, {s(S_T + 2)}, 8")
        A(f"s_mul_i32 {s(S_T + 3)}, {s(S_T + 2)}, 7")
        A(f"s_sub_u32 {s(S_J)}, {s(S_WI)}, {s(S_T + 3)}")
        A(f"s_lshl_b32 {s(S_RB)}, {s(S_T)}, 2")
        A(f"s_add_u32 {s(S_RB)}, {s(S_RB)}, {s(S_T + 2)}")
        A(f"s_lshl_b32 {s(S_CP)}, {s(S_J)}, 5")
        A(f"s_add_u32 {s(S_CP)}, {s(S_CP)}, {s(S_RB)}")
        A.wait_lgkm0()
        self.srd(R_WS, P_WS, WS_END)
        A(f"s_load_dword {s(S_NONCE)}, {s(P_WS, 2)}, 0")
        A(f"s_mul_i32 {s(S_MW)}, {s(S_T)}, 28")
        A(f"s_add_u32 {s(S_MW)}, {s(S_MW)}, {s(S_WI)}")

    def phase_p(self):
        A = self.A
        T = S_T
        NB = 2048 * 896
        t0, t1, t2 = T + 12, T + 13, T + 14
        vC, vRG, vL16, vOffO, vKa, vSh, vSa, vSb, vRow, vWa, vx = 2, 3, 4, 5, 6, 10, 11, 12, 13, 14, 15
        vK, vV, vSH, vQO, vQ, vW, vKD = 16, 36, 44, 60, 68, 84, 100
        vM, vSC, vMA, vMT, vMa, vCa = 84, 98, 106, 110, 118, 119
        self.srd(R_A, P_WM, 448 * 5376)
        self.srd(R_B, P_C, 896)
        A(f"s_mul_i32 {s(T)}, {s(S_WV)}, 112")
        A(f"v_lshrrev_b32 {v(vMa)}, 2, v1")
        A(f"v_add_u32 {v(vMa)}, {s(T)}, {v(vMa)}")
        A(f"v_mul_u32_u24 {v(vMa)}, 5376, {v(vMa)}")
        A(f"v_and_b32 {v(vMT)}, 3, v1")
        A(f"v_lshl_add_u32 {v(vMa)}, {v(vMT)}, 3, {v(vMa)}")
        A(f"s_mul_i32 {s(T + 1)}, {s(S_MW)}, 24")
        A(f"v_add_u32 {v(vMa)}, {s(T + 1)}, {v(vMa)}")
        A(f"s_mul_i32 {s(T + 1)}, {s(S_WV)}, 224")
        A(f"v_lshl_add_u32 {v(vCa)}, v1, 2, {s(T + 1)}")
        A(f"buffer_load_dword {v(vMT + 2)}, {v(vCa)}, {s(R_B, 4)}, 0 offen")
        A(f"s_mov_b32 {s(T + 1)}, 0")
        for i in range(7):
            A(f"buffer_load_dwordx2 {v(vM + 2 * i, 2)}, {v(vMa)}, {s(R_A, 4)}, {s(T + 1)} offen")
            if i < 6:
                A(f"s_add_u32 {s(T + 1)}, {s(T + 1)}, {16 * 5376}")
        A(f"v_and_b32 {v(vC)}, 7, v1")
        A(f"v_lshrrev_b32 {v(vRG)}, 3, v1")
        A(f"s_lshl_b32 {s(T)}, {s(S_RB)}, 6")
        A(f"s_lshl_b32 {s(T + 1)}, {s(S_WV)}, 4")
        A(f"s_add_u32 {s(T + 1)}, {s(T)}, {s(T + 1)}")
        A(f"v_lshl_add_u32 {v(vOffO)}, {v(vRG)}, 1, {s(T + 1)}")
        A(f"v_mul_u32_u24 {v(vOffO)}, 896, {v(vOffO)}")
        A(f"v_lshl_add_u32 {v(vOffO)}, {v(vC)}, 4, {v(vOffO)}")
        A(f"s_lshl_b32 {s(T + 2)}, {s(S_J)}, 7")
        A(f"v_add_u32 {v(vOffO)}, {s(T + 2)}, {v(vOffO)}")
        kad = {}
        for n_, i in enumerate((0, 1, 2, 4)):
            d = (i - 3) * 896
            kad[i] = vKa + n_
            if d < 0:
                A(f"v_subrev_u32 {v(kad[i])}, {-d}, {v(vOffO)}")
            else:
                A(f"v_add_u32 {v(kad[i])}, {d}, {v(vOffO)}")
        kad[3] = vOffO
        self.srd(R_A, P_K, NB)
        self.srd(R_B, P_V, NB)
        for i in range(5):
            A(f"buffer_load_dwordx4 {v(vK + 4 * i, 4)}, {v(kad[i])}, {s(R_A, 4)}, 0 offen")
        for i in range(2):
            A(f"buffer_load_dwordx4 {v(vV + 4 * i, 4)}, {v(vOffO)}, {s(R_B, 4)}, 0 offen offset:{896 * i}")
        self.srd(R_C, P_SH, 448 * 8)
        A(f"s_lshl_b32 {s(T + 3)}, {s(S_J)}, 9")
        A(f"v_lshl_add_u32 {v(vSh)}, {v(vC)}, 6, {s(T + 3)}")
        for i in range(4):
            A(f"buffer_load_dwordx4 {v(vSH + 4 * i, 4)}, {v(vSh)}, {s(R_C, 4)}, 0 offen offset:{16 * i}")
        self.srd(R_A, P_Q, NB)
        for r in range(2):
            A(f"buffer_load_dwordx4 {v(vQO + 4 * r, 4)}, {v(vOffO)}, {s(R_A, 4)}, 0 offen offset:{896 * r}")
        A(f"s_lshl_b32 {s(t1)}, {s(S_J)}, 3")
        A(f"s_add_u32 {s(t0)}, {s(T)}, {s(t1)}")
        A(f"s_lshl_b32 {s(t1)}, {s(S_WV)}, 2")
        A(f"s_add_u32 {s(t0)}, {s(t0)}, {s(t1)}")
        A(f"v_lshrrev_b32 {v(vRow)}, 4, v1")
        A(f"v_add_u32 {v(vRow)}, {s(t0)}, {v(vRow)}")
        A(f"v_mul_u32_u24 {v(vSa)}, 896, {v(vRow)}")
        A(f"v_and_b32 {v(vSb)}, 15, v1")
        A(f"v_lshl_add_u32 {v(vSa)}, {v(vSb)}, 4, {v(vSa)}")
        A(f"v_cmp_gt_u32 vcc, 8, {v(vSb)}")
        A(f"v_add_u32 {v(vSb)}, 768, {v(vSa)}")
        A(f"v_mov_b32 {v(vx)}, -1")
        A(f"v_cndmask_b32 {v(vSb)}, {v(vx)}, {v(vSb)}, vcc")
        for i in range(3):
            A(f"buffer_load_dwordx4 {v(vQ + 4 * i, 4)}, {v(vSa)}, {s(R_A, 4)}, 0 offen offset:{256 * i}")
        A(f"buffer_load_dwordx4 {v(vQ + 12, 4)}, {v(vSb)}, {s(R_A, 4)}, 0 offen")
        self.stamp(1)

        sWB, sSrc, sStride, sA, sR1, sD0, sDS = T + 4, T + 6, T + 7, T + 8, T + 9, T + 10, T + 11
        A(f"s_mul_i32 {s(sWB)}, {s(S_RB)}, 7")
        A(f"s_add_u32 {s(sWB)}, {s(sWB)}, {s(S_J)}")
        A(f"s_lshr_b32 {s(t0)}, {s(sWB)}, 2")
        A(f"s_and_b32 {s(t1)}, {s(sWB)}, 3")
        A(f"s_mul_i32 {s(sSrc)}, {s(t0)}, {16 * 3584}")
        A(f"s_mul_i32 {s(t2)}, {s(t1)}, 896")
        A(f"s_add_u32 {s(sSrc)}, {s(sSrc)}, {s(t2)}")
        A(f"s_mul_i32 {s(t2)}, {s(t1)}, 14")
        A(f"s_add_u32 {s(t2)}, {s(t2)}, {s(S_WV)}")
        A(f"s_mul_i32 {s(t2)}, {s(t2)}, 28")
        A(f"s_add_u32 {s(sD0)}, {s(t2)}, {s(t0)}")
        A(f"s_lshl_b32 {s(sD0)}, {s(sD0)}, 10")
        A(f"s_add_u32 {s(sD0)}, {s(sD0)}, {W1F}")
        u0, u1, u2, uSrc, uD0 = T + 16, T + 17, T + 18, T + 19, T + 20
        A(f"s_sub_u32 {s(u0)}, {s(sWB)}, 112")
        A(f"s_mul_i32 {s(uSrc)}, {s(u0)}, {16 * 896}")
        A(f"s_mul_i32 {s(u1)}, {s(u0)}, 147")
        A(f"s_lshr_b32 {s(u1)}, {s(u1)}, 12")
        A(f"s_mul_i32 {s(u2)}, {s(u1)}, 28")
        A(f"s_sub_u32 {s(u2)}, {s(u0)}, {s(u2)}")
        A(f"s_mul_i32 {s(uD0)}, {s(u1)}, 56")
        A(f"s_lshl_b32 {s(u2)}, {s(u2)}, 1")
        A(f"s_add_u32 {s(uD0)}, {s(uD0)}, {s(u2)}")
        A(f"s_lshr_b32 {s(u1)}, {s(S_WV)}, 1")
        A(f"s_mul_i32 {s(u1)}, {s(u1)}, 224")
        A(f"s_add_u32 {s(uD0)}, {s(uD0)}, {s(u1)}")
        A(f"s_and_b32 {s(u1)}, {s(S_WV)}, 1")
        A(f"s_add_u32 {s(uD0)}, {s(uD0)}, {s(u1)}")
        A(f"s_lshl_b32 {s(uD0)}, {s(uD0)}, 10")
        A(f"s_add_u32 {s(uD0)}, {s(uD0)}, {W2F}")
        A(f"s_cmp_ge_u32 {s(sWB)}, 112")
        A(f"s_cselect_b32 {s(sSrc)}, {s(uSrc)}, {s(sSrc)}")
        A(f"s_cselect_b32 {s(sD0)}, {s(uD0)}, {s(sD0)}")
        A(f"s_mov_b32 {s(sStride)}, 3584")
        A(f"s_cselect_b32 {s(sStride)}, 896, {s(sStride)}")
        A(f"s_cselect_b32 {s(sA)}, 4, 8")
        A(f"s_mov_b32 {s(sR1)}, {4 * 1088}")
        A(f"s_cselect_b32 {s(sR1)}, {8 * 1088}, {s(sR1)}")
        A(f"s_mov_b32 {s(sDS)}, {112 * 1024}")
        A(f"s_cselect_b32 {s(sDS)}, {448 * 1024}, {s(sDS)}")
        A(f"s_cselect_b32 {s(R_D)}, {s(P_W2)}, {s(P_W1)}")
        A(f"s_cselect_b32 {s(R_D + 1)}, {s(P_W2 + 1)}, {s(P_W1 + 1)}")
        A(f"s_mov_b32 {s(R_D + 2)}, 1605632")
        A(f"s_mov_b32 {s(R_D + 3)}, 0x{SRD3:08x}")
        A(f"s_lshl_b32 {s(t0)}, {s(S_WV)}, 2")
        A(f"s_mul_i32 {s(t0)}, {s(t0)}, {s(sStride)}")
        A(f"s_add_u32 {s(sSrc)}, {s(sSrc)}, {s(t0)}")
        A(f"v_lshlrev_b32 {v(vL16)}, 4, v1")
        A(f"v_add_u32 {v(vWa)}, {s(sSrc)}, {v(vL16)}")
        A(f"s_lshl_b32 {s(t0)}, {s(S_CP)}, 13")
        self.srd(R_B, P_SK, 4096, add=s(t0))
        A(f"s_add_u32 {s(t0)}, {s(t0)}, 4096")
        self.srd(R_C, P_SK, 4096, add=s(t0))
        vKA, vKB, vKA2, vKB2 = 132, 133, 134, 135
        A(f"v_lshlrev_b32 {v(vKA)}, 4, v0")
        A(f"v_subrev_u32 {v(vKB)}, 16, {v(vKA)}")
        A(f"v_subrev_u32 {v(vKA)}, 32, {v(vKA)}")
        A(f"v_and_b32 {v(vKA2)}, 1, v1")
        A(f"v_lshlrev_b32 {v(vKA2)}, 4, {v(vKA2)}")
        A(f"v_add_u32 {v(vKB2)}, 4080, {v(vKA2)}")
        vTPW, vWw, vTPR, vStO, vTR0, vTR1, vKW = 136, 137, 138, 139, 140, 141, 142
        A(f"v_add_u32 {v(vKW + 1)}, {4096 + L_KC}, {v(vKA2)}")
        A(f"v_add_u32 {v(vKA2)}, 4064, {v(vKA2)}")
        A(f"v_lshlrev_b32 {v(vKW)}, 4, v0")
        A(f"v_add_u32 {v(vKW)}, {L_KC}, {v(vKW)}")
        A(f"v_mul_u32_u24 {v(vTPW)}, 1088, {v(vC)}")
        A(f"v_lshl_add_u32 {v(vTPW)}, {v(vRG)}, 3, {v(vTPW)}")
        A(f"s_lshl_b32 {s(t0)}, {s(S_WV)}, 6")
        A(f"v_add_u32 {v(vTPW)}, {s(t0)}, {v(vTPW)}")
        A(f"s_mul_i32 {s(t1)}, {s(S_WV)}, {4 * 1088}")
        A(f"v_add_u32 {v(vWw)}, {s(t1)}, {v(vL16)}")
        A(f"v_lshrrev_b32 {v(vStO)}, 4, v0")
        A(f"v_mul_u32_u24 {v(vTPR)}, 272, {v(vStO)}")
        A(f"v_and_b32 {v(vx)}, 15, v0")
        A(f"v_lshl_add_u32 {v(vTPR)}, {v(vx)}, 4, {v(vTPR)}")
        A(f"v_lshlrev_b32 {v(vStO)}, 13, {v(vStO)}")
        A(f"v_lshl_add_u32 {v(vStO)}, {v(vx)}, 4, {v(vStO)}")
        A(f"v_lshrrev_b32 {v(vTR0)}, 5, v1")
        A(f"v_mul_lo_u32 {v(vTR0)}, {v(vTR0)}, {s(sA)}")
        A(f"v_bfe_u32 {v(vx)}, v1, 2, 2")
        A(f"v_add_u32 {v(vTR0)}, {v(vTR0)}, {v(vx)}")
        A(f"v_mul_u32_u24 {v(vTR0)}, 1088, {v(vTR0)}")
        A(f"v_bfe_u32 {v(vx)}, v1, 4, 1")
        A(f"v_lshl_add_u32 {v(vTR0)}, {v(vx)}, 5, {v(vTR0)}")
        A(f"v_and_b32 {v(vx)}, 3, v1")
        A(f"v_lshl_add_u32 {v(vTR0)}, {v(vx)}, 3, {v(vTR0)}")
        A(f"v_add_u32 {v(vTR0)}, {s(t0)}, {v(vTR0)}")
        A(f"v_add_u32 {v(vTR1)}, {s(sR1)}, {v(vTR0)}")
        sTile = S_OFF
        A(f"s_lshl_b32 {s(sTile)}, {s(S_J)}, 18")
        A(f"s_lshl_b32 {s(t0)}, {s(S_RB)}, 8")
        A(f"s_add_u32 {s(sTile)}, {s(sTile)}, {s(t0)}")
        A(f"v_lshlrev_b32 {v(vRow)}, 2, {v(vRow)}")
        A("v_mov_b32 v240, 0")
        A("v_mov_b32 v241, 0")
        A("v_lshlrev_b32 v242, 3, v1")
        for e in range(2):
            A(f"ds_write_b64 v242, v[240:241] offset:{L_UR + 4608 * e + 4096}")

        L_MS, L_MP = L_TPN, L_TPN + 4096
        c0 = vMT + 2
        A(f"s_mov_b32 {s(t1)}, 0x{f32bits(-LOG2E):08x}")
        A(f"v_lshlrev_b32 {v(vMT + 4)}, 16, {v(c0)}")
        A(f"v_and_b32 {v(vMT + 5)}, {s(S_MASKHI)}, {v(c0)}")
        for k in range(2):
            A(f"v_mul_f32 {v(vMT + 6 + k)}, {s(t1)}, {v(vMT + 4 + k)}")
        for k in range(2):
            A(f"v_exp_f32 {v(vMT + 6 + k)}, {v(vMT + 6 + k)}")
        for k in range(2):
            A(f"v_add_f32 {v(vMT + 6 + k)}, 1.0, {v(vMT + 6 + k)}")
        for k in range(2):
            A(f"v_rcp_f32 {v(vMT + 6 + k)}, {v(vMT + 6 + k)}")
        A(f"s_lshl_b32 {s(t2)}, {s(S_WV)}, 9")
        A(f"s_add_u32 {s(t2)}, {s(t2)}, {L_MS}")
        A(f"v_lshl_add_u32 {v(vCa)}, v1, 3, {s(t2)}")
        A(f"v_pk_mul_f32 {v(vMT + 4, 2)}, {v(vMT + 4, 2)}, {v(vMT + 6, 2)}")
        A(f"v_cvt_pk_bf16_f32 {v(c0)}, {v(vMT + 4)}, {v(vMT + 5)}")
        A(f"v_lshlrev_b32 {v(vMT + 4)}, 16, {v(c0)}")
        A(f"v_and_b32 {v(vMT + 5)}, {s(S_MASKHI)}, {v(c0)}")
        A(f"ds_write_b64 {v(vCa)}, {v(vMT + 4, 2)}")
        A(f"v_and_b32 {v(vCa)}, 60, v1")
        A(f"v_add_u32 {v(vCa)}, {s(t2)}, {v(vCa)}")
        A.wait_lgkm0()
        for i in range(7):
            A(f"ds_read_b32 {v(vSC + i)}, {v(vCa)} offset:{64 * i}")
        A.await_regs(v(vM, 14))
        A.await_regs(v(vSC, 7))
        for i in range(7):
            u = vMT + 4 * (i & 1)
            for k in range(2):
                A(f"v_lshlrev_b32 {v(u + 2 * k)}, 16, {v(vM + 2 * i + k)}")
                A(f"v_and_b32 {v(u + 2 * k + 1)}, {s(S_MASKHI)}, {v(vM + 2 * i + k)}")
            sc = vSC + i
            base, e = (sc, 0) if sc % 2 == 0 else (sc - 1, 1)
            for k in range(2):
                if i == 0:
                    A(f"v_pk_mul_f32 {v(vMA + 2 * k, 2)}, {v(u + 2 * k, 2)}, {v(base, 2)} op_sel:[0,{e}] op_sel_hi:[1,{e}]")
                else:
                    A(f"v_pk_fma_f32 {v(vMA + 2 * k, 2)}, {v(u + 2 * k, 2)}, {v(base, 2)}, {v(vMA + 2 * k, 2)} op_sel:[0,{e},0] op_sel_hi:[1,{e},1]")
        for mod in ("row_ror:4", "row_ror:8"):
            for k in range(4):
                A(f"v_add_f32_dpp {v(vMA + k)}, {v(vMA + k)}, {v(vMA + k)} {mod} row_mask:0xf bank_mask:0xf")
        for swap in ("v_permlane16_swap_b32", "v_permlane32_swap_b32"):
            for k in range(4):
                A(f"v_mov_b32 {v(vMT + k)}, {v(vMA + k)}")
            for k in range(4):
                A(f"{swap} {v(vMA + k)}, {v(vMT + k)}")
            for k in range(4):
                A(f"v_add_f32 {v(vMA + k)}, {v(vMA + k)}, {v(vMT + k)}")
        A(f"s_lshl_b32 {s(t2)}, {s(S_WV)}, 6")
        A(f"s_add_u32 {s(t2)}, {s(t2)}, {L_MP}")
        A(f"v_and_b32 {v(vCa)}, 3, v1")
        A(f"v_lshl_add_u32 {v(vCa)}, {v(vCa)}, 4, {s(t2)}")
        A(f"ds_write_b128 {v(vCa)}, {v(vMA, 4)}")

        TT, WP, AC, vO = 144, 184, 216, 232
        A.await_regs(v(vSH, 16))
        for p in range(4):
            for e in range(2):
                d0 = vSH + 2 * (2 * p + e)
                w = WP + 8 * p
                A(f"v_lshlrev_b32 {v(w + 0 + e)}, 16, {v(d0)}")
                A(f"v_and_b32 {v(w + 2 + e)}, {s(S_MASKHI)}, {v(d0)}")
                A(f"v_lshlrev_b32 {v(w + 4 + e)}, 16, {v(d0 + 1)}")
                A(f"v_and_b32 {v(w + 6 + e)}, {s(S_MASKHI)}, {v(d0 + 1)}")
        self.stamp(21)
        for i in range(5):
            for p in range(4):
                src = vK + 4 * i + p
                A(f"v_lshlrev_b32 {v(TT + 10 * p + 2 * i)}, 16, {v(src)}")
                A(f"v_and_b32 {v(TT + 10 * p + 2 * i + 1)}, {s(S_MASKHI)}, {v(src)}")
        for tap in range(4):
            for p in range(4):
                for row in range(2):
                    acc = AC + 4 * p + 2 * row
                    x = v(TT + 10 * p + 2 * (3 + row - tap), 2)
                    w = v(WP + 8 * p + 2 * tap, 2)
                    if tap == 0:
                        A(f"v_pk_mul_f32 {v(acc, 2)}, {x}, {w}")
                    else:
                        A(f"v_pk_fma_f32 {v(acc, 2)}, {x}, {w}, {v(acc, 2)}")
        for row in range(2):
            for p in range(4):
                src = vV + 4 * row + p
                A(f"v_lshlrev_b32 {v(TT + 10 * p + 2 * row)}, 16, {v(src)}")
                A(f"v_and_b32 {v(TT + 10 * p + 2 * row + 1)}, {s(S_MASKHI)}, {v(src)}")
        for p in range(4):
            for row in range(2):
                acc = AC + 4 * p + 2 * row
                A(f"v_pk_mul_f32 {v(acc, 2)}, {v(acc, 2)}, {v(TT + 10 * p + 2 * row, 2)}")
        for p in range(4):
            for row in range(2):
                acc = AC + 4 * p + 2 * row
                A(f"v_cvt_pk_bf16_f32 {v(vO + 2 * p + row)}, {v(acc)}, {v(acc + 1)}")
        for p in range(4):
            A(f"ds_write_b64 {v(vTPW)}, {v(vO + 2 * p, 2)} offset:{L_TPK + 272 * p}")
        self.stamp(22)
        A(f"v_add_u32 {v(vx)}, {L_TPQ}, {v(vTPW)}")
        A.await_regs(v(vQO, 8))
        for p in range(4):
            A(f"ds_write2_b32 {v(vx)}, {v(vQO + p)}, {v(vQO + 4 + p)} offset0:{68 * p} offset1:{68 * p + 1}")
        vS, vU = 240, 144
        A.await_regs(v(vQ, 16))
        for i in range(16):
            A(f"v_lshlrev_b32 {v(vU + 2 * i)}, 16, {v(vQ + i)}")
            A(f"v_and_b32 {v(vU + 2 * i + 1)}, {s(S_MASKHI)}, {v(vQ + i)}")
        S1, S2 = (240, 242), (244, 246)
        for i in range(16):
            u = v(vU + 2 * i, 2)
            if i < 2:
                A(f"v_pk_mul_f32 {v(S2[i], 2)}, {u}, {u}")
            else:
                A(f"v_pk_fma_f32 {v(S2[i & 1], 2)}, {u}, {u}, {v(S2[i & 1], 2)}")
            if i in (2, 3):
                A(f"v_pk_add_f32 {v(S1[i & 1], 2)}, {v(vU + 2 * (i - 2), 2)}, {u}")
            elif i > 3:
                A(f"v_pk_add_f32 {v(S1[i & 1], 2)}, {v(S1[i & 1], 2)}, {u}")
        A(f"v_pk_add_f32 {v(240, 2)}, {v(240, 2)}, {v(242, 2)}")
        A(f"v_pk_add_f32 {v(244, 2)}, {v(244, 2)}, {v(246, 2)}")
        m, q2 = 240, 244
        A(f"v_add_f32 {v(m)}, {v(m)}, {v(m + 1)}")
        A(f"v_add_f32 {v(q2)}, {v(q2)}, {v(q2 + 1)}")
        for mod in ("quad_perm:[1,0,3,2]", "quad_perm:[2,3,0,1]", "row_half_mirror", "row_mirror"):
            for c_ in (m, q2):
                A(f"v_add_f32_dpp {v(c_)}, {v(c_)}, {v(c_)} {mod} row_mask:0xf bank_mask:0xf")
        A(f"s_mov_b32 {s(t0)}, 0x{f32bits(1.0 / 448):08x}")
        A(f"s_mov_b32 {s(t1)}, 0x{f32bits(1e-5):08x}")
        A(f"v_mul_f32 {v(m)}, {s(t0)}, {v(m)}")
        A(f"v_mul_f32 {v(q2)}, {s(t0)}, {v(q2)}")
        A(f"v_fma_f32 {v(q2)}, -{v(m)}, {v(m)}, {v(q2)}")
        A(f"v_max_f32 {v(q2)}, 0, {v(q2)}")
        A(f"v_add_f32 {v(q2)}, {s(t1)}, {v(q2)}")
        A(f"v_rsq_f32 {v(q2)}, {v(q2)}")
        A.barrier()
        self.stamp(23)
        vRB = 16
        for i in range(2):
            A(f"ds_read_b128 {v(vRB + 4 * i, 4)}, {v(vTPR)} offset:{L_TPK + 4352 * i}")
        for i in range(2):
            A(f"ds_read_b128 {v(vRB + 8 + 4 * i, 4)}, {v(vTPR)} offset:{L_TPQ + 4352 * i}")
        A(f"v_mul_f32 {v(m)}, {v(m)}, {v(q2)}")
        vF0, vJ = 100, 104
        A(f"v_min_u32 {v(vJ)}, 11, v1")
        A(f"v_lshlrev_b32 {v(vJ + 1)}, 2, {v(vJ)}")
        A(f"v_add_u32 {v(vJ + 1)}, {L_TPN + 4096}, {v(vJ + 1)}")
        for w_ in range(4):
            A(f"ds_read_b32 {v(vF0 + w_)}, {v(vJ + 1)} offset:{64 * w_}")
        A(f"s_mul_i32 {s(t0)}, {s(S_MW)}, 12")
        A(f"v_add_u32 {v(vJ)}, {s(t0)}, {v(vJ)}")
        A(f"v_subrev_u32 {v(vJ + 1)}, 448, {v(vJ)}")
        A(f"v_subrev_u32 {v(vJ + 2)}, 1792, {v(vJ)}")
        A(f"v_min_u32 {v(vJ + 1)}, {v(vJ + 1)}, {v(vJ + 2)}")
        A(f"v_mov_b32 {v(vJ + 2)}, 448")
        A(f"v_cmp_lt_u32 vcc, {v(vJ + 1)}, {v(vJ + 2)}")
        A.await_regs(v(vF0, 4))
        A(f"v_add_f32 {v(vF0)}, {v(vF0)}, {v(vF0 + 1)}")
        A(f"v_add_f32 {v(vF0 + 2)}, {v(vF0 + 2)}, {v(vF0 + 3)}")
        A(f"v_lshlrev_b32 {v(vJ)}, 2, {v(vJ)}")
        A(f"v_add_f32 {v(vF0)}, {v(vF0)}, {v(vF0 + 2)}")
        A(f"v_cvt_pk_bf16_f32 {v(vF0)}, {v(vF0)}, {v(vF0)}")
        A(f"v_and_b32 {v(vF0)}, {s(S_MASKHI)}, {v(vF0)}")
        A(f"v_add_f32 {v(vF0 + 1)}, 1.0, {v(vF0)}")
        A(f"v_cvt_pk_bf16_f32 {v(vF0 + 1)}, {v(vF0 + 1)}, {v(vF0 + 1)}")
        A(f"v_and_b32 {v(vF0 + 1)}, {s(S_MASKHI)}, {v(vF0 + 1)}")
        A(f"v_cndmask_b32 {v(vF0)}, {v(vF0)}, {v(vF0 + 1)}, vcc")
        A(f"s_add_u32 {s(t0)}, {s(sTile)}, {KVP}")
        A(f"s_add_u32 {s(t1)}, {s(sTile)}, {KVP + 131072}")
        A(f"s_add_u32 {s(t2)}, {s(sTile)}, {QP}")
        A(f"s_add_u32 {s(u0)}, {s(sTile)}, {QP + 131072}")
        A.await_regs(v(vRB, 8))
        A(f"buffer_store_dwordx4 {v(vRB, 4)}, {v(vStO)}, {s(R_WS, 4)}, {s(t0)} offen sc1")
        A(f"buffer_store_dwordx4 {v(vRB + 4, 4)}, {v(vStO)}, {s(R_WS, 4)}, {s(t1)} offen sc1")
        A.await_regs(v(vRB + 8, 8))
        A(f"buffer_store_dwordx4 {v(vRB + 8, 4)}, {v(vStO)}, {s(R_WS, 4)}, {s(t2)} offen sc1")
        A(f"buffer_store_dwordx4 {v(vRB + 12, 4)}, {v(vStO)}, {s(R_WS, 4)}, {s(u0)} offen sc1")
        A(f"s_mov_b32 {s(t0)}, {STR}")
        A(f"s_mov_b32 {s(t1)}, {STM}")
        A(f"s_mov_b32 exec_lo, 0x00010001")
        A(f"s_mov_b32 exec_hi, 0x00010001")
        A(f"buffer_store_dword {v(q2)}, {v(vRow)}, {s(R_WS, 4)}, {s(t0)} offen sc1")
        A(f"buffer_store_dword {v(m)}, {v(vRow)}, {s(R_WS, 4)}, {s(t1)} offen sc1")
        A(f"s_mov_b32 {s(t0)}, {MODF}")
        A(f"s_mov_b64 exec, 0xfff")
        A(f"buffer_store_dword {v(100)}, {v(104)}, {s(R_WS, 4)}, {s(t0)} offen sc1")
        A("s_mov_b64 exec, -1")
        self.stamp(24)
        def batch2():
            for e in range(2):
                R = R_B if e == 0 else R_C
                for ps in range(2):
                    b = vKD + 8 * (2 * e + ps)
                    A(f"buffer_load_dwordx4 {v(b, 4)}, {v(vKA if ps == 0 else vKA2)}, {s(R, 4)}, 0 offen")
                    A(f"buffer_load_dwordx2 {v(b + 4, 2)}, {v(vKB if ps == 0 else vKB2)}, {s(R, 4)}, 0 offen")
            for i in range(4):
                A(f"buffer_load_dwordx4 {v(vW + 4 * i, 4)}, {v(vWa)}, {s(R_D, 4)}, 0 offen")
                if i < 3:
                    A(f"v_add_u32 {v(vWa)}, {s(sStride)}, {v(vWa)}")

        mark = A.vm_count
        if not self.o.get("b2_late", 0):
            batch2()
        A(f"s_add_u32 {s(S_NONCE)}, {s(S_NONCE)}, 1")
        A(f"s_lshl_b32 {s(t0)}, {s(S_CP)}, 7")
        A(f"s_add_u32 {s(t0)}, {s(t0)}, {FL + F1 * 128}")
        A.wait_vm(A.vm_count - mark)
        A.barrier()
        self.flag_store(t0)
        if self.o.get("b2_late", 0):
            batch2()
        self.stamp(3)
        vx4 = 48
        for e in range(2):
            for ps in range(2):
                b = vKD + 8 * (2 * e + ps)
                base = e * 4 * CS
                ad = vKW + ps
                A.await_regs(v(b, 6))
                for i in range(4):
                    A(f"v_alignbit_b32 {v(vx4 + i)}, {v(b + i + 1)}, {v(b + i)}, 16")
                for i in range(4):
                    A(f"v_mov_b32 {v(vx4 + 4 + i)}, {v(b + i + 1)}")
                for i in range(4):
                    A(f"v_alignbit_b32 {v(vx4 + 8 + i)}, {v(b + i + 2)}, {v(b + i + 1)}, 16")
                A(f"ds_write_b128 {v(ad)}, {v(b, 4)} offset:{base}")
                A(f"ds_write_b128 {v(ad)}, {v(vx4, 4)} offset:{base + CS}")
                A(f"ds_write_b128 {v(ad)}, {v(vx4 + 4, 4)} offset:{base + 2 * CS}")
                A(f"ds_write_b128 {v(ad)}, {v(vx4 + 8, 4)} offset:{base + 3 * CS}")
        A.await_regs(v(vW, 16))
        for i in range(4):
            A(f"ds_write_b128 {v(vWw)}, {v(vW + 4 * i, 4)} offset:{L_WB + 1088 * i}")
        A.barrier()
        self.stamp(25)
        for i in range(4):
            A(f"ds_read_b64_tr_b16 {v(220 + 4 * i, 2)}, {v(vTR0)} offset:{L_WB + 256 * i}")
            A(f"ds_read_b64_tr_b16 {v(220 + 4 * i + 2, 2)}, {v(vTR1)} offset:{L_WB + 256 * i}")
        self.wr = dict(sWB=sWB, sD0=sD0, sDS=sDS)
        self.stamp(26)

    def w_stores(self):
        A = self.A
        vF, sD0, sDS = 220, self.wr["sD0"], self.wr["sDS"]
        A.await_regs(v(vF, 16))
        for i in range(3):
            A(f"buffer_store_dwordx4 {v(vF + 4 * i, 4)}, v4, {s(R_WS, 4)}, {s(sD0)} offen sc1")
            A(f"s_add_u32 {s(sD0)}, {s(sD0)}, {s(sDS)}")
        skip = self.lab("w4")
        A(f"s_cmp_ge_u32 {s(S_WV)}, 2")
        A(f"s_cbranch_scc1 {skip}")
        A.cond_begin()
        A(f"buffer_store_dwordx4 {v(vF + 12, 4)}, v4, {s(R_WS, 4)}, {s(sD0)} offen sc1")
        A.cond_end()
        A.label(skip)

    def poll2_issue(self, va, vb, vt):
        A = self.A
        A(f"buffer_load_dword {v(vt)}, {v(va)}, {s(R_WS, 4)}, 0 offen sc1")
        A(f"buffer_load_dword {v(vt + 1)}, {v(vb)}, {s(R_WS, 4)}, 0 offen sc1")

    def poll1_check(self, va, vt):
        A = self.A
        done = self.lab("p1d")
        A(f"v_cmp_ne_u32 vcc, {s(S_NONCE)}, {v(vt)}")
        A("s_nop 1")
        A("s_cmp_eq_u64 vcc, 0")
        A(f"s_cbranch_scc1 {done}")
        st = A.snapshot()
        self.poll(va, vt)
        A.restore(st)
        A.label(done)

    def poll2_check(self, va, vb, vt):
        A = self.A
        loop, done = self.lab("p2"), self.lab("p2d")
        A(f"v_cmp_ne_u32 vcc, {s(S_NONCE)}, {v(vt)}")
        A(f"v_cmp_ne_u32 {s(S_SPIN + 2, 2)}, {s(S_NONCE)}, {v(vt + 1)}")
        A(f"s_mov_b32 {s(S_SPIN)}, 0")
        A("s_nop 1")
        A(f"s_or_b64 vcc, vcc, {s(S_SPIN + 2, 2)}")
        A("s_cmp_eq_u64 vcc, 0")
        A(f"s_cbranch_scc1 {done}")
        st = A.snapshot()
        A.label(loop)
        A(f"buffer_load_dword {v(vt)}, {v(va)}, {s(R_WS, 4)}, 0 offen sc1")
        A(f"buffer_load_dword {v(vt + 1)}, {v(vb)}, {s(R_WS, 4)}, 0 offen sc1")
        A.wait_vm(0)
        A(f"v_cmp_ne_u32 vcc, {s(S_NONCE)}, {v(vt)}")
        A(f"v_cmp_ne_u32 {s(S_SPIN + 2, 2)}, {s(S_NONCE)}, {v(vt + 1)}")
        A(f"s_add_u32 {s(S_SPIN)}, {s(S_SPIN)}, 1")
        A("s_nop 1")
        A(f"s_or_b64 vcc, vcc, {s(S_SPIN + 2, 2)}")
        A("s_cmp_eq_u64 vcc, 0")
        A(f"s_cbranch_scc1 {done}")
        A(f"s_cmp_lt_u32 {s(S_SPIN)}, {SPIN_MAX}")
        A(f"s_cbranch_scc1 {loop}")
        A.restore(st)
        A.label(done)

    def phase_a(self):
        A = self.A
        T = S_T
        t0, t1, t2 = T, T + 1, T + 2
        vPa, vPt, vx, vy = 2, 3, 16, 17
        A(f"v_min_u32 {v(vPa)}, 55, v1")
        A(f"s_mul_i32 {s(t0)}, {s(S_WV)}, 56")
        A(f"v_add_u32 {v(vPa)}, {s(t0)}, {v(vPa)}")
        A(f"v_lshlrev_b32 {v(vPa)}, 7, {v(vPa)}")
        A(f"v_add_u32 {v(vPa)}, {FL + F1 * 128}, {v(vPa)}")
        vL16 = 4
        sKV = S_OFF + 2
        A(f"s_lshl_b32 {s(sKV)}, {s(S_CP)}, 13")
        A(f"s_lshl_b32 {s(t2)}, {s(S_WV)}, 11")
        A(f"s_add_u32 {s(sKV)}, {s(sKV)}, {s(t2)}")
        vUW, vaA, vaB = 5, 6, 7
        A(f"s_lshl_b32 {s(t0)}, {s(S_WV)}, 10")
        A(f"s_sub_u32 {s(t0)}, {4088 - 512}, {s(t0)}")
        A(f"v_lshlrev_b32 {v(vx)}, 3, v1")
        A(f"v_sub_u32 {v(vUW)}, {s(t0)}, {v(vx)}")
        A(f"v_and_b32 {v(vx)}, 15, v1")
        A(f"v_add_u32 {v(vx)}, 1, {v(vx)}")
        A(f"v_and_b32 {v(vy)}, 3, {v(vx)}")
        A(f"v_sub_u32 {v(vx)}, {v(vx)}, {v(vy)}")
        A(f"v_lshlrev_b32 {v(vx)}, 1, {v(vx)}")
        A(f"v_mul_u32_u24 {v(vy)}, {CS}, {v(vy)}")
        A(f"v_add_u32 {v(vaA)}, {v(vx)}, {v(vy)}")
        A(f"v_lshrrev_b32 {v(vy)}, 4, v1")
        A(f"v_lshl_add_u32 {v(vaA)}, {v(vy)}, 4, {v(vaA)}")
        A(f"s_lshr_b32 {s(t0)}, {s(S_WV)}, 1")
        A(f"s_and_b32 {s(t1)}, {s(S_WV)}, 1")
        A(f"s_mul_i32 {s(t2)}, {s(t0)}, {4 * CS}")
        A(f"s_lshl_b32 {s(t1)}, {s(t1)}, 8")
        A(f"s_add_u32 {s(t2)}, {s(t2)}, {s(t1)}")
        A(f"s_add_u32 {s(t2)}, {s(t2)}, {L_KC}")
        A(f"v_add_u32 {v(vaA)}, {s(t2)}, {v(vaA)}")
        A(f"v_and_b32 {v(vx)}, 15, v1")
        A(f"v_lshlrev_b32 {v(vx)}, 5, {v(vx)}")
        A(f"v_lshlrev_b32 {v(vy)}, 4, {v(vy)}")
        A(f"v_sub_u32 {v(vaB)}, {v(vy)}, {v(vx)}")
        A(f"s_mul_i32 {s(t2)}, {s(t0)}, 4608")
        A(f"s_add_u32 {s(t2)}, {s(t2)}, {s(t1)}")
        A(f"s_add_u32 {s(t2)}, {s(t2)}, {L_UR + 480}")
        A(f"v_add_u32 {v(vaB)}, {s(t2)}, {v(vaB)}")
        vPW, vPM, vPR = 18, 19, 20
        A(f"s_lshl_b32 {s(t0)}, {s(S_J)}, 3")
        A(f"s_lshl_b32 {s(t1)}, {s(S_WV)}, 1")
        A(f"s_add_u32 {s(t0)}, {s(t0)}, {s(t1)}")
        A(f"s_mul_i32 {s(t0)}, {s(t0)}, 147")
        A(f"s_lshr_b32 {s(t0)}, {s(t0)}, 11")
        A(f"v_min_u32 {v(vx)}, 27, v1")
        A(f"v_lshl_add_u32 {v(vPW)}, {v(vx)}, 2, {s(t0)}")
        A(f"s_mul_i32 {s(t1)}, {s(S_WV)}, 28")
        A(f"s_add_u32 {s(t1)}, {s(t1)}, {112 - 32}")
        A(f"v_min_u32 {v(vy)}, 59, v1")
        A(f"v_add_u32 {v(vy)}, {s(t1)}, {v(vy)}")
        A(f"v_cmp_gt_u32 vcc, 32, v1")
        A(f"v_cndmask_b32 {v(vPW)}, {v(vy)}, {v(vPW)}, vcc")
        A(f"v_lshlrev_b32 {v(vPW)}, 7, {v(vPW)}")
        A(f"v_add_u32 {v(vPW)}, {FL + FQ * 128}, {v(vPW)}")
        A(f"s_add_u32 {s(t1)}, {s(sKV)}, {KVP}")
        self.poll(vPa, vPt)
        A.barrier()
        self.stamp(5)
        vKV = 8
        for h in range(2):
            A(f"buffer_load_dwordx4 {v(vKV + 4 * h, 4)}, {v(vL16)}, {s(R_WS, 4)}, {s(t1)} offen offset:{1024 * h} sc1")
        vQn, vRs, vMs = 144, 152, 160
        A(f"s_add_u32 {s(t1)}, {s(sKV)}, {QP}")
        for h in range(2):
            A(f"buffer_load_dwordx4 {v(vQn + 4 * h, 4)}, {v(vL16)}, {s(R_WS, 4)}, {s(t1)} offen offset:{1024 * h} sc1")
        A(f"s_lshl_b32 {s(t0)}, {s(S_WV)}, 11")
        A(f"s_add_u32 {s(t1)}, {s(t0)}, {STR}")
        A(f"s_add_u32 {s(t2)}, {s(t0)}, {STM}")
        for h in range(2):
            A(f"buffer_load_dwordx4 {v(vRs + 4 * h, 4)}, {v(vL16)}, {s(R_WS, 4)}, {s(t1)} offen offset:{1024 * h} sc1")
            A(f"buffer_load_dwordx4 {v(vMs + 4 * h, 4)}, {v(vL16)}, {s(R_WS, 4)}, {s(t2)} offen offset:{1024 * h} sc1")
        vPS, vPA, vPG, vPD, vPar = 168, 170, 172, 174, 176
        A(f"s_lshl_b32 {s(t0)}, {s(S_CP)}, 3")
        A(f"v_mov_b32 {v(vx)}, {s(t0)}")
        for reg, sec in ((vPS, 0), (vPA, 1), (vPG, 2)):
            A(f"s_mov_b32 {s(t1)}, {MODF + sec * 1792}")
            A(f"buffer_load_dwordx2 {v(reg, 2)}, {v(vx)}, {s(R_WS, 4)}, {s(t1)} offen sc1")
        self.srd(R_A, P_D, 896)
        A(f"s_lshl_b32 {s(t0)}, {s(S_CP)}, 2")
        A(f"v_mov_b32 {v(vy)}, {s(t0)}")
        A(f"buffer_load_dword {v(vPD + 1)}, {v(vy)}, {s(R_A, 4)}, 0 offen")
        A(f"v_lshlrev_b32 {v(vx)}, 3, v0")
        A(f"s_mov_b32 {s(t0)}, {MODF + 4 * 1792}")
        A(f"s_mov_b32 {s(t1)}, {MODF + 3 * 1792}")
        A(f"buffer_load_dwordx2 {v(vPar, 2)}, {v(vx)}, {s(R_WS, 4)}, {s(t0)} offen sc1")
        A(f"buffer_load_dwordx2 {v(vPar + 2, 2)}, {v(vx)}, {s(R_WS, 4)}, {s(t1)} offen sc1")
        A(f"v_lshlrev_b32 {v(vy)}, 2, v1")
        A(f"s_lshl_b32 {s(t0)}, {s(S_J)}, 8")
        A(f"s_add_u32 {s(t0)}, {s(t0)}, {MODF + 5 * 1792}")
        A(f"buffer_load_dword {v(vPar + 4)}, {v(vy)}, {s(R_WS, 4)}, {s(t0)} offen sc1")
        self.w_stores()
        vP = 22
        A.await_regs(v(vKV, 8))
        for h in range(2):
            d = vKV + 4 * h
            for e, sel in ((0, S_PERM_LO), (1, S_PERM_HI)):
                o = vP + 4 * h + 2 * e
                A(f"v_perm_b32 {v(o)}, {v(d + 2)}, {v(d + 3)}, {s(sel)}")
                A(f"v_perm_b32 {v(o + 1)}, {v(d)}, {v(d + 1)}, {s(sel)}")
        for h in range(2):
            for e in range(2):
                o = vP + 4 * h + 2 * e
                A(f"ds_write_b64 {v(vUW)}, {v(o, 2)} offset:{L_UR + 4608 * e + (512 if h == 0 else 0)}")
        A.barrier()
        self.stamp(6)
        ACC = 32
        BS = [64, 96]
        AR = 128

        def ldB(rp, m):
            A(f"ds_read_b128 {v(BS[rp & 1] + 4 * m, 4)}, {v(vaB)} offset:{64 * rp + 512 * (7 - m)}")

        def ldA(idx):
            rp, q = divmod(idx, 8)
            r = AR + 4 * (idx % 4)
            A(f"ds_read_b64 {v(r, 2)}, {v(vaA)} offset:{64 * rp + 512 * q}")
            A(f"ds_read_b64 {v(r + 2, 2)}, {v(vaA)} offset:{64 * rp + 512 * q + 8}")

        ldA(0)
        for m in range(8):
            ldB(0, m)
        ldA(1)
        ldA(2)
        nm = 0
        self.bg_setup()
        for rp in range(4):
            for q in range(8):
                idx = rp * 8 + q
                ar = AR + 4 * (idx % 4)
                first = True
                for n in range(q, 8):
                    c = "0" if (rp == 0 and q == 0) else v(ACC + 4 * n, 4)
                    if first:
                        regs = [v(ar, 4)]
                        if q == 0:
                            regs.append(v(BS[rp & 1], 32))
                        A.await_regs(*regs)
                    A(f"v_mfma_f32_16x16x32_bf16 {v(ACC + 4 * n, 4)}, {v(ar, 4)}, {v(BS[rp & 1] + 4 * (n - q), 4)}, {c}")
                    nm += 1
                    if first:
                        first = False
                        if idx + 3 < 32:
                            ldA(idx + 3)
                        if rp < 3 and 0 <= q <= 3:
                            ldB(rp + 1, 2 * q)
                            ldB(rp + 1, 2 * q + 1)
                    if rp >= 2 and self.o.get("conv_pace", 0) and nm % self.o["conv_pace"] == 0:
                        self.bg_emit(1)
        self.stamp(7)
        vRW, vRR, vSt = 183, 19, 182
        A(f"v_and_b32 {v(vx)}, 15, v1")
        A(f"v_mul_u32_u24 {v(vRW)}, 80, {v(vx)}")
        A(f"v_lshrrev_b32 {v(vy)}, 4, v1")
        A(f"v_lshl_add_u32 {v(vRW)}, {v(vy)}, 4, {v(vRW)}")
        A(f"s_mul_i32 {s(t0)}, {s(S_WV)}, 10240")
        A(f"s_add_u32 {s(t0)}, {s(t0)}, {L_RED}")
        A(f"v_add_u32 {v(vRW)}, {s(t0)}, {v(vRW)}")
        A(f"v_mul_u32_u24 {v(vSt)}, 57344, {v(vy)}")
        A(f"v_lshl_add_u32 {v(vSt)}, {v(vx)}, 4, {v(vSt)}")
        for n in range(8):
            A(f"ds_write_b128 {v(vRW)}, {v(ACC + 4 * n, 4)} offset:{1280 * n}")
        A(f"v_lshrrev_b32 {v(vx)}, 2, v1")
        A(f"v_mul_u32_u24 {v(vRR)}, 80, {v(vx)}")
        A(f"v_and_b32 {v(vy)}, 3, v1")
        A(f"v_lshl_add_u32 {v(vRR)}, {v(vy)}, 4, {v(vRR)}")
        A(f"s_mul_i32 {s(t0)}, {s(S_WV)}, 2560")
        A(f"s_add_u32 {s(t0)}, {s(t0)}, {L_RED}")
        A(f"v_add_u32 {v(vRR)}, {s(t0)}, {v(vRR)}")
        sX = S_OFF + 3
        A(f"s_mul_i32 {s(sX)}, {s(S_WV)}, {2 * 229376}")
        A(f"s_lshl_b32 {s(t0)}, {s(S_CP)}, 8")
        A(f"s_add_u32 {s(sX)}, {s(sX)}, {s(t0)}")
        A(f"s_add_u32 {s(sX)}, {s(sX)}, {X1P}")
        A(f"s_add_u32 {s(t1)}, {s(sX)}, 229376")
        U, Q, N = 64, 80, 200
        A.await_regs(v(vQn, 8), v(vRs, 8), v(vMs, 8), v(vPS, 2), v(vPA, 2), v(vPG, 2), v(vPD + 1))
        A(f"v_lshlrev_b32 {v(vPD)}, 16, {v(vPD + 1)}")
        A(f"v_and_b32 {v(vPD + 1)}, {s(S_MASKHI)}, {v(vPD + 1)}")
        for h in range(2):
            for e in range(2):
                for r in range(4):
                    for dst, src in ((U, vKV), (Q, vQn)):
                        d = dst + 8 * h + 4 * e + r
                        if e == 0:
                            A(f"v_lshlrev_b32 {v(d)}, 16, {v(src + 4 * h + r)}")
                        else:
                            A(f"v_and_b32 {v(d)}, {s(S_MASKHI)}, {v(src + 4 * h + r)}")
        for h in range(2):
            for e in range(2):
                for k in (0, 2):
                    o = 8 * h + 4 * e + k
                    A(f"v_pk_fma_f32 {v(N + o, 2)}, {v(Q + o, 2)}, {v(vRs + 4 * h + k, 2)}, {v(vMs + 4 * h + k, 2)} neg_lo:[0,0,1] neg_hi:[0,0,1]")
        for h in range(2):
            for e in range(2):
                for k in (0, 2):
                    o = 8 * h + 4 * e + k
                    A(f"v_pk_fma_f32 {v(N + o, 2)}, {v(N + o, 2)}, {v(vPA, 2)}, {v(vPS, 2)} op_sel:[0,{e},{e}] op_sel_hi:[1,{e},{e}]")
        for h in range(2):
            for e in range(2):
                for k in (0, 2):
                    o = 8 * h + 4 * e + k
                    A(f"v_pk_mul_f32 {v(N + o, 2)}, {v(N + o, 2)}, {v(vPG, 2)} op_sel:[0,{e}] op_sel_hi:[1,{e}]")
        A.wait_vm(0)
        A.barrier()
        A(f"s_lshl_b32 {s(t0)}, {s(self.wr['sWB'])}, 7")
        A(f"s_add_u32 {s(t0)}, {s(t0)}, {FL + FQ * 128}")
        self.flag_store(t0)
        self.stamp(30)
        vY = 96
        for h in range(2):
            for w in range(4):
                A(f"ds_read_b128 {v(vY + 16 * h + 4 * w, 4)}, {v(vRR)} offset:{10240 * w + 1280 * h}")
        A(f"s_mov_b32 {s(t2)}, 0x{f32bits(LOG2E):08x}")
        A(f"v_lshlrev_b32 {v(vx)}, 4, v0")
        A(f"v_add_u32 {v(vx)}, {L_PAR}, {v(vx)}")
        A(f"v_lshlrev_b32 {v(vy)}, 2, v1")
        A(f"v_add_u32 {v(vy)}, {L_GB}, {v(vy)}")
        A.await_regs(v(vPar, 4), v(vPar + 4))
        for r_ in range(vPar, vPar + 4):
            A(f"v_mul_f32 {v(r_)}, {s(t2)}, {v(r_)}")
        A(f"ds_write_b128 {v(vx)}, {v(vPar, 4)}")
        A(f"ds_write_b32 {v(vy)}, {v(vPar + 4)}")
        vOut = 128
        for h in range(2):
            A.await_regs(v(vY + 16 * h, 16))
            ys = [(e, k, vY + 16 * h + 8 * e + k, 8 * h + 4 * e + k) for e in range(2) for k in (0, 2)]
            for e, k, y, o in ys:
                A(f"v_pk_add_f32 {v(y, 2)}, {v(y, 2)}, {v(y + 4, 2)}")
            for e, k, y, o in ys:
                A(f"v_pk_fma_f32 {v(y, 2)}, {v(U + o, 2)}, {v(vPD, 2)}, {v(y, 2)} op_sel:[0,{e},0] op_sel_hi:[1,{e},1]")
            for e, k, y, o in ys:
                A(f"v_pk_fma_f32 {v(y, 2)}, {v(N + o, 2)}, {v(y, 2)}, {v(Q + o, 2)}")
            for r in range(4):
                A(f"v_cvt_pk_bf16_f32 {v(vOut + 4 * h + r)}, {v(vY + 16 * h + r)}, {v(vY + 16 * h + 8 + r)}")
            A(f"buffer_store_dwordx4 {v(vOut + 4 * h, 4)}, {v(vSt)}, {s(R_WS, 4)}, {s(sX if h == 0 else t1)} offen sc1")
        self.stamp(8)
        A(f"s_lshl_b32 {s(t0)}, {s(S_CP)}, 7")
        A(f"s_add_u32 {s(t0)}, {s(t0)}, {FL + F2 * 128}")
        mark = A.vm_count
        A(f"buffer_load_dword {v(vPR)}, {v(vPW)}, {s(R_WS, 4)}, 0 offen sc1")
        A.wait_vm(A.vm_count - mark)
        A.barrier()
        self.flag_store(t0)
        self.poll1_check(vPW, vPR)
        self.bg_emit(self.n_burst_t2)
        self.stamp(9)

    def phase_b(self):
        A = self.A
        T = S_T
        t0, t1, t2 = T, T + 1, T + 2
        vPa, vPt = 2, 4
        A(f"v_min_u32 {v(vPa)}, 55, v1")
        A(f"s_mul_i32 {s(t0)}, {s(S_WV)}, 56")
        A(f"v_add_u32 {v(vPa)}, {s(t0)}, {v(vPa)}")
        A(f"v_lshlrev_b32 {v(vPa)}, 7, {v(vPa)}")
        A(f"v_add_u32 {v(vPa)}, {FL + F2 * 128}, {v(vPa)}")
        self.poll(vPa, vPt)
        A.barrier()
        self.stamp(10)
        A(f"s_lshr_b32 {s(t0)}, {s(S_WV)}, 1")
        A(f"s_lshl_b32 {s(t0)}, {s(t0)}, 10")
        A(f"v_add_u32 v{V_W2O[0]}, {s(t0)}, v{V_L16}")
        A(f"s_sub_u32 {s(t0)}, 1024, {s(t0)}")
        A(f"v_add_u32 v{V_W2O[1]}, {s(t0)}, v{V_L16}")
        vL16 = 4
        A(f"v_lshlrev_b32 {v(vL16)}, 4, v1")
        A(f"s_mul_i32 {s(t1)}, {s(S_WV)}, 14336")
        A(f"s_mul_i32 {s(t0)}, {s(S_RB)}, 57344")
        A(f"s_add_u32 {s(t0)}, {s(t0)}, {s(t1)}")
        A(f"s_add_u32 {s(t0)}, {s(t0)}, {X1P}")
        A(f"s_add_u32 {s(t1)}, {s(t1)}, {L_XD}")
        A(f"s_mov_b32 m0, {s(t1)}")
        for i in range(14):
            if i and i % 4 == 0:
                A(f"s_add_u32 {s(t0)}, {s(t0)}, 4096")
                A(f"s_add_u32 m0, m0, 4096")
            A.dma(f"buffer_load_dwordx4 {v(vL16)}, {s(R_WS, 4)}, {s(t0)} offen offset:{1024 * (i % 4)} sc1 lds", f"x{i}")
        skip = self.lab("ep")
        A(f"s_cmp_lg_u32 {s(S_CP)}, 0")
        A(f"s_cbranch_scc1 {skip}")
        A.cond_begin()
        A(f"s_mov_b32 {s(t0)}, 0")
        self.flag_store(t0)
        A.cond_end()
        A.label(skip)
        if self.o.get("pretouch", 0):
            A(f"s_mul_i32 {s(t0)}, {s(S_RB)}, 112")
            A(f"s_lshl_b32 {s(t2)}, {s(S_J)}, 4")
            A(f"s_add_u32 {s(t0)}, {s(t0)}, {s(t2)}")
            A(f"s_lshl_b32 {s(t2)}, {s(S_WV)}, 2")
            A(f"s_add_u32 {s(t0)}, {s(t0)}, {s(t2)}")
            A(f"s_lshl_b32 {s(t0)}, {s(t0)}, 11")
            A(f"s_add_u32 {s(t0)}, {s(t0)}, {HF}")
            A(f"v_lshlrev_b32 v6, 7, v1")
            A(f"buffer_load_dword v252, v6, {s(R_WS, 4)}, {s(t0)} offen")
        X = 88
        vXR = 5
        A(f"v_lshlrev_b32 {v(vXR)}, 2, v1")
        A(f"v_add_u32 {v(vXR)}, {s(t1)}, {v(vXR)}")

        XR = 72

        def ldX(g):
            A.need(f"x{g}")
            r = XR + 4 * (g % 4)
            A(f"ds_read2st64_b32 {v(r, 2)}, {v(vXR)} offset0:{4 * g} offset1:{4 * g + 1}")
            A(f"ds_read2st64_b32 {v(r + 2, 2)}, {v(vXR)} offset0:{4 * g + 2} offset1:{4 * g + 3}")

        vS = 8
        for g in range(3):
            ldX(g)
        self.stamp(27)
        for g in range(14):
            src = XR + 4 * (g % 4)
            A.await_regs(v(src, 4))
            if g + 3 < 14:
                ldX(g + 3)
            for k in range(4):
                e = 4 * g + k
                r = X + 2 * e
                A(f"v_lshlrev_b32 {v(r)}, 16, {v(src + k)}")
                A(f"v_and_b32 {v(r + 1)}, {s(S_MASKHI)}, {v(src + k)}")
            for k in range(4):
                e = 4 * g + k
                r = X + 2 * e
                s1, s2 = vS + 2 * (e & 1), vS + 4 + 2 * (e & 1)
                if e < 2:
                    A(f"v_mov_b32 {v(s1)}, {v(r)}")
                    A(f"v_mov_b32 {v(s1 + 1)}, {v(r + 1)}")
                    A(f"v_pk_mul_f32 {v(s2, 2)}, {v(r, 2)}, {v(r, 2)}")
                else:
                    A(f"v_pk_add_f32 {v(s1, 2)}, {v(s1, 2)}, {v(r, 2)}")
                    A(f"v_pk_fma_f32 {v(s2, 2)}, {v(r, 2)}, {v(r, 2)}, {v(s2, 2)}")
            if g >= 14 - self.o.get("n_bstat", 11):
                self.bg_emit(1)
        A(f"v_pk_add_f32 {v(vS, 2)}, {v(vS, 2)}, {v(vS + 2, 2)}")
        A(f"v_pk_add_f32 {v(vS + 4, 2)}, {v(vS + 4, 2)}, {v(vS + 6, 2)}")
        A(f"v_add_f32 {v(vS)}, {v(vS)}, {v(vS + 1)}")
        A(f"v_add_f32 {v(vS + 1)}, {v(vS + 4)}, {v(vS + 5)}")
        vSW = 5
        A(f"v_lshlrev_b32 {v(vSW)}, 3, v1")
        A(f"v_add_u32 {v(vSW)}, {L_STAT}, {v(vSW)}")
        A(f"s_lshl_b32 {s(t0)}, {s(S_WV)}, 9")
        A(f"v_add_u32 v6, {s(t0)}, {v(vSW)}")
        A(f"ds_write_b64 v6, {v(vS, 2)}")
        self.stamp(28)
        vPb = 6
        vHW = 7
        A(f"v_lshrrev_b32 v22, 5, v1")
        A(f"v_lshlrev_b32 {v(vHW)}, 10, v22")
        A(f"v_and_b32 v22, 31, v1")
        A(f"v_lshl_add_u32 {v(vHW)}, v22, 4, {v(vHW)}")
        A(f"s_mul_i32 {s(t0)}, {s(S_WV)}, {7 * 2048}")
        A(f"v_add_u32 {v(vHW)}, {s(t0)}, {v(vHW)}")
        A(f"s_mul_i32 {s(t0)}, {s(S_WV)}, 896")
        A(f"s_add_u32 {s(t0)}, {s(t0)}, {L_PAR}")
        A.barrier()
        for w in range(4):
            A(f"ds_read_b64 {v(16 + 2 * w, 2)}, {v(vSW)} offset:{512 * w}")
        A(f"v_mov_b32 {v(vPb)}, {s(t0)}")
        def PRq(e):
            k = e % 12
            return 24 + 4 * k if k < 8 else 72 + 4 * (k - 8)
        OUT = 56

        def ldP(e):
            if self.o.get("b_nopar"):
                return
            A(f"ds_read_b128 {v(PRq(e), 4)}, {v(vPb)} offset:{16 * e}")

        for e in range(8):
            ldP(e)
        A("v_pk_add_f32 v[16:17], v[16:17], v[18:19]")
        A("v_pk_add_f32 v[20:21], v[20:21], v[22:23]")
        A("v_pk_add_f32 v[16:17], v[16:17], v[20:21]")
        A(f"s_mov_b32 {s(t0)}, 0x{f32bits(1.0 / 448):08x}")
        A(f"s_mov_b32 {s(t1)}, 0x{f32bits(1e-5):08x}")
        A(f"v_mul_f32 v16, {s(t0)}, v16")
        A(f"v_mul_f32 v17, {s(t0)}, v17")
        A("v_fma_f32 v17, -v16, v16, v17")
        A("v_max_f32 v17, 0, v17")
        A(f"v_add_f32 v17, {s(t1)}, v17")
        vR, vM = 18, 20
        A(f"v_rsq_f32 {v(vR)}, v17")
        A(f"v_mul_f32 {v(vM)}, v16, {v(vR)}")
        self.stamp(29)
        for e0 in range(0, 56, 4):
            A.await_regs(*[v(PRq(e0 + k), 4) for k in range(4)])
            for k in range(8, 12):
                if e0 + k < 56:
                    ldP(e0 + k)
            for e in range(e0, e0 + 4):
                r = X + 2 * e
                A(f"v_pk_fma_f32 {v(r, 2)}, {v(r, 2)}, {v(vR, 2)}, {v(vM, 2)} op_sel_hi:[1,0,0] neg_lo:[0,0,1] neg_hi:[0,0,1]")
            for e in range(e0, e0 + 4):
                r = X + 2 * e
                p = PRq(e)
                A(f"v_pk_fma_f32 {v(r, 2)}, {v(r, 2)}, {v(p, 2)}, {v(p + 2, 2)}")
            sp, k0 = divmod(e0, 8)
            o = OUT + 8 * (sp & 1)
            for e in range(e0, e0 + 4):
                r = X + 2 * e
                A(f"v_cvt_pk_bf16_f32 {v(o + e % 8)}, {v(r)}, {v(r + 1)}")
            if not self.o.get("b_nowr"):
                A(f"ds_write_b128 {v(vHW)}, {v(o + k0, 4)} offset:{L_H2 + 2048 * sp + (512 if k0 else 0)}")
            nbn = self.o.get("n_bnorm", 27)
            g_ = e0 // 4
            self.bg_emit(nbn * (g_ + 1) // 14 - nbn * g_ // 14)
        while self.bg_left("w1") > 0:
            self.bg_emit(1)
        A.barrier()
        self.stamp(11)

    def w2reg(self, f):
        if f < 41:
            return v(88 + 4 * f, 4)
        if f < 49:
            return a(224 + 4 * (f - 41), 4)
        return a(4 * (f - 49), 4)

    def bg_setup(self):
        A = self.A
        t0, t1 = S_T, S_T + 1
        A(f"s_lshl_b32 {s(t0)}, {s(S_J)}, 3")
        A(f"s_lshl_b32 {s(t1)}, {s(S_WV)}, 1")
        A(f"s_add_u32 {s(t0)}, {s(t0)}, {s(t1)}")
        A(f"s_mul_i32 {s(S_W1B)}, {s(t0)}, {28 * 1024}")
        A(f"s_add_u32 {s(S_W1B)}, {s(S_W1B)}, {W1F}")
        A(f"s_lshl_b32 {s(t0)}, {s(S_J)}, 2")
        A(f"s_add_u32 {s(t0)}, {s(t0)}, {s(S_WV)}")
        A(f"s_mul_i32 {s(S_W2B)}, {s(t0)}, {56 * 1024}")
        A(f"s_add_u32 {s(S_W2B)}, {s(S_W2B)}, {W2F}")
        A(f"v_lshlrev_b32 v{V_L16}, 4, v1")
        self.bgq = [("w1", f) for f in range(56)] + [("w2", f) for f in self.w2_order]
        self.bg_cur = {"w1": 0, "w2": 0}

    def bg_emit(self, n=1):
        A = self.A
        if self.o["nobg"]:
            del self.bgq[:n]
            return
        for _ in range(n):
            if not self.bgq:
                return
            kind, f = self.bgq.pop(0)
            base = S_W1B if kind == "w1" else S_W2B
            blk = f // 4
            if blk != self.bg_cur[kind]:
                d = (blk - self.bg_cur[kind]) * 4096
                A(f"s_add_u32 {s(base)}, {s(base)}, {d}" if d > 0 else f"s_sub_u32 {s(base)}, {s(base)}, {-d}")
                self.bg_cur[kind] = blk
            if kind == "w1":
                A(f"buffer_load_dwordx4 {a(4 * f, 4)}, v{V_L16}, {s(R_WS, 4)}, {s(base)} offen offset:{1024 * (f % 4)} sc1")
            else:
                A(f"buffer_load_dwordx4 {self.w2reg(f)}, v{V_W2O[f & 1]}, {s(R_WS, 4)}, {s(base)} offen offset:{2048 * ((f % 4) >> 1)} sc1")

    def bg_left(self, kind):
        return sum(1 for k, _ in self.bgq if k == kind)

    def phase_c(self):
        A = self.A
        t0 = S_T
        if self.o.get("force_global", 1):
            self.phase_c_body(" sc1")
            return
        glob, join = self.lab("cglob"), self.lab("cjoin")
        A(f"s_cmp_eq_u32 {s(S_LOCAL)}, 0")
        A(f"s_cbranch_scc1 {glob}")
        st, q, cur = A.snapshot(), list(self.bgq), dict(self.bg_cur)
        self.phase_c_body("")
        A(f"s_branch {join}")
        A.restore(st)
        self.bgq, self.bg_cur = q, cur
        A.label(glob)
        self.phase_c_body(" sc1")
        A.label(join)

    def phase_c_body(self, sc):
        A = self.A
        T = S_T
        t0, t1 = T, T + 1
        sH, sH2 = S_OFF + 5, S_OFF + 7
        A(f"s_mul_i32 {s(t0)}, {s(S_RB)}, 112")
        A(f"s_lshl_b32 {s(t1)}, {s(S_J)}, 4")
        A(f"s_add_u32 {s(t0)}, {s(t0)}, {s(t1)}")
        A(f"s_lshl_b32 {s(t1)}, {s(S_WV)}, 2")
        A(f"s_add_u32 {s(t0)}, {s(t0)}, {s(t1)}")
        A(f"s_lshl_b32 {s(sH)}, {s(t0)}, 11")
        A(f"s_add_u32 {s(sH)}, {s(sH)}, {HF}")
        A(f"s_add_u32 {s(sH2)}, {s(sH)}, 4096")
        sC = S_OFF + 6
        A(f"s_mov_b32 {s(sC)}, 0x{f32bits(LOG2E):08x}")
        ACC = [24, 40]
        NR = 6
        RING = 4
        TMP = 68
        OUT = 76

        def ring(i):
            k = i % NR
            return RING + 4 * k if k < 5 else 56

        def store(g, off):
            base, o = (sH2, off - 4096) if off >= 4096 else (sH, off)
            return f"buffer_store_dwordx4 {v(OUT + 4 * g, 4)}, v{V_L16}, {s(R_WS, 4)}, {s(base)} offen offset:{o}{sc}"

        def silu_ops(tile):
            ft, th = divmod(tile, 2)
            acc = ACC[tile & 1]
            seq = []
            lag = (0, 2, 3, 5)
            for step in range(16 + lag[-1] + 2):
                for k in range(4):
                    i = step - lag[k]
                    if 0 <= i < 16:
                        x, tmp = acc + i, TMP + (i % 8)
                        if k == 0:
                            seq.append((8, f"v_exp_f32 {v(tmp)}, -{v(x)}"))
                        elif k == 1:
                            seq.append((4, f"v_fma_f32 {v(tmp)}, {v(tmp)}, {s(sC)}, {s(sC)}"))
                        elif k == 2:
                            seq.append((8, f"v_rcp_f32 {v(tmp)}, {v(tmp)}"))
                        else:
                            seq.append((4, f"v_mul_f32 {v(x)}, {v(x)}, {v(tmp)}"))
                i = step - lag[-1] - 1
                if 0 <= i < 16 and i % 2 == 1:
                    g, kk = divmod(i // 2, 4)
                    seq.append((4, f"v_cvt_pk_bf16_f32 {v(OUT + 4 * g + kk)}, {v(acc + i - 1)}, {v(acc + i)}"))
                    if kk == 3:
                        off = (2 * (2 * ft + g) + th) * 1024
                        seq.append((4, store(g, off)))
            return seq

        def ldH(idx):
            tile, st = divmod(idx, 28)
            th = tile & 1
            A(f"ds_read_b128 {v(ring(idx), 4)}, v{V_L16} offset:{L_H2 + 2048 * st + 1024 * th}")

        for i_ in range(NR - 2):
            ldH(i_)
        pend = []
        nbg = self.n_bg_c
        done_bg = 0
        for tile in range(4):
            ft = tile >> 1
            acc = ACC[tile & 1]
            total = sum(c for c, _ in pend)
            for st in range(28):
                idx = tile * 28 + st
                if idx % 2 == 0:
                    A.await_regs(*[v(ring(i_), 4) for i_ in (idx, idx + 1) if i_ < 112])
                    for i_ in (idx + NR - 2, idx + NR - 1):
                        if i_ < 112:
                            ldH(i_)
                c = "0" if st == 0 else v(acc, 16)
                A(f"v_mfma_f32_32x32x16_bf16 {v(acc, 16)}, {a(4 * (28 * ft + st), 4)}, {v(ring(idx), 4)}, {c}")
                if pend and st >= 2:
                    left_slots = 28 - st
                    budget = -(-sum(c for c, _ in pend) // left_slots)
                    spent = 0
                    while pend and spent < budget:
                        cst, ins = pend.pop(0)
                        A(ins)
                        spent += cst
                while done_bg < nbg * (idx + 1) // 112 and self.bgq:
                    assert self.bgq[0][0] == "w1" or self.bgq[0][1] < 49 or idx >= 36
                    self.bg_emit(1)
                    done_bg += 1
            assert not pend, len(pend)
            pend = silu_ops(tile)
        for _, ins in pend:
            A(ins)
        self.stamp(12)
        A.wait_vm(0)
        A.barrier()
        A(f"s_lshl_b32 {s(t0)}, {s(S_RB)}, 3")
        A(f"s_add_u32 {s(t0)}, {s(t0)}, {s(S_J)}")
        A(f"s_lshl_b32 {s(t0)}, {s(t0)}, 7")
        A(f"s_add_u32 {s(t0)}, {s(t0)}, {FL + F3 * 128}")
        self.flag_store(t0, sc=sc)
        self.bg_emit(len(self.bgq))
        self.stamp(13)

    def phase_d(self):
        A = self.A
        T = S_T
        t0, t1 = T, T + 1
        vPa, vPt = 2, 4
        A(f"v_min_u32 {v(vPa)}, 6, v1")
        A(f"s_lshl_b32 {s(t0)}, {s(S_RB)}, 3")
        A(f"v_add_u32 {v(vPa)}, {s(t0)}, {v(vPa)}")
        A(f"v_lshlrev_b32 {v(vPa)}, 7, {v(vPa)}")
        A(f"v_add_u32 {v(vPa)}, {FL + F3 * 128}, {v(vPa)}")
        self.poll(vPa, vPt)
        self.stamp(14)
        sH = S_OFF
        A(f"s_mul_i32 {s(t0)}, {s(S_RB)}, 112")
        A(f"s_mul_i32 {s(t1)}, {s(S_WV)}, 28")
        A(f"s_add_u32 {s(t0)}, {s(t0)}, {s(t1)}")
        A(f"s_lshl_b32 {s(sH)}, {s(t0)}, 11")
        A(f"s_add_u32 {s(sH)}, {s(sH)}, {HF}")
        NSLOT = 49
        HB = 28
        hl = {0: " sc1", 1: "", 2: " nt", 3: " sc0"}[self.o.get("hload", 0)]
        vH = 4
        A(f"s_and_b32 {s(t0)}, {s(S_WV)}, 1")
        A(f"s_lshl_b32 {s(t0)}, {s(t0)}, 10")
        A(f"v_add_u32 {v(vH)}, {s(t0)}, v{V_L16}")
        A(f"s_sub_u32 {s(t0)}, 1024, {s(t0)}")
        A(f"v_add_u32 {v(vH + 1)}, {s(t0)}, v{V_L16}")

        def hreg(i):
            return a(HB + 4 * (i % NSLOT), 4)

        def ldH(i):
            if i % 4 == 0 and i:
                A(f"s_add_u32 {s(sH)}, {s(sH)}, 4096")
            A(f"buffer_load_dwordx4 {hreg(i)}, {v(vH + (i & 1))}, {s(R_WS, 4)}, {s(sH)} offen offset:{2048 * ((i % 4) >> 1)}{hl}")

        PRE = self.o.get("d_pre", 12)
        for i in range(PRE):
            ldH(i)
        vWr, vRd, vG, vX, vO, vt = 8, 11, 12, 13, 14, 15
        for x in range(1, 4):
            A(f"s_xor_b32 {s(t0)}, {s(S_WV)}, {x}")
            A(f"s_mul_i32 {s(t0)}, {s(t0)}, 12288")
            A(f"s_add_u32 {s(t0)}, {s(t0)}, {L_RED2 + (x - 1) * 4096}")
            A(f"v_add_u32 {v(vWr + x - 1)}, {s(t0)}, v{V_L16}")
        A(f"s_mul_i32 {s(t0)}, {s(S_WV)}, 12288")
        A(f"s_add_u32 {s(t0)}, {s(t0)}, {L_RED2}")
        A(f"v_add_u32 {v(vRd)}, {s(t0)}, v{V_L16}")
        A(f"s_lshr_b32 {s(t0)}, {s(S_WV)}, 1")
        A(f"s_and_b32 {s(t1)}, {s(S_WV)}, 1")
        A(f"v_lshrrev_b32 {v(vt)}, 5, v1")
        t2, t3 = T + 2, T + 3
        A(f"s_lshl_b32 {s(t2)}, {s(t0)}, 7")
        A(f"s_add_u32 {s(t2)}, {s(t2)}, {L_GB}")
        A(f"v_lshl_add_u32 {v(vG)}, {v(vt)}, 4, {s(t2)}")
        A(f"s_lshl_b32 {s(t2)}, {s(S_J)}, 13")
        A(f"s_lshl_b32 {s(t3)}, {s(t0)}, 12")
        A(f"s_add_u32 {s(t2)}, {s(t2)}, {s(t3)}")
        A(f"s_lshl_b32 {s(t3)}, {s(t1)}, 7")
        A(f"s_add_u32 {s(t2)}, {s(t2)}, {s(t3)}")
        A(f"s_add_u32 {s(t2)}, {s(t2)}, {L_XD}")
        A(f"v_lshl_add_u32 {v(vX)}, {v(vt)}, 9, {s(t2)}")
        A(f"v_and_b32 {v(vO)}, 31, v1")
        A(f"v_lshl_add_u32 {v(vX)}, {v(vO)}, 2, {v(vX)}")
        A(f"s_lshl_b32 {s(t2)}, {s(S_RB)}, 6")
        A(f"s_lshl_b32 {s(t3)}, {s(t1)}, 5")
        A(f"s_add_u32 {s(t2)}, {s(t2)}, {s(t3)}")
        A(f"v_add_u32 {v(vO)}, {s(t2)}, {v(vO)}")
        A(f"v_mul_u32_u24 {v(vO)}, 896, {v(vO)}")
        A(f"s_lshl_b32 {s(t2)}, {s(S_J)}, 7")
        A(f"s_lshl_b32 {s(t3)}, {s(t0)}, 6")
        A(f"s_add_u32 {s(t2)}, {s(t2)}, {s(t3)}")
        A(f"v_lshl_add_u32 {v(vt)}, {v(vt)}, 4, {s(t2)}")
        A(f"v_add_u32 {v(vO)}, {v(vO)}, {v(vt)}")
        self.srd(R_A, P_OUT, 2048 * 896)
        ACC = 24
        nxt = PRE
        for st in range(28):
            for _ in range(2):
                if nxt < 56:
                    ldH(nxt)
                    nxt += 1
            for e1 in range(2):
                i = 2 * st + e1
                for e in range(2):
                    acc = ACC + 16 * (2 * e + e1)
                    c = "0" if st == 0 else v(acc, 16)
                    if self.o.get("d_nomfma"):
                        A.await_regs(hreg(i))
                        continue
                    A(f"v_mfma_f32_32x32x16_bf16 {v(acc, 16)}, {self.w2reg(2 * st + e)}, {hreg(i)}, {c}")
        self.stamp(15)
        GB, XP = 16, 88
        GB = 104
        X1 = 120
        PT = 144
        for g in range(4):
            A(f"ds_read_b128 {v(GB + 4 * g, 4)}, {v(vG)} offset:{32 * g}")
            A(f"ds_read2st64_b32 {v(X1 + 2 * g, 2)}, {v(vX)} offset0:{4 * g} offset1:{4 * g + 1}")
        for x in range(1, 4):
            for g in range(4):
                A(f"ds_write_b128 {v(vWr + x - 1)}, {v(ACC + 16 * x + 4 * g, 4)} offset:{1024 * g}")
        for k in range(8):
            A(f"v_lshlrev_b32 {v(128 + 2 * k)}, 16, {v(X1 + k)}")
            A(f"v_and_b32 {v(129 + 2 * k)}, {s(S_MASKHI)}, {v(X1 + k)}")
        self.stamp(17)
        A.barrier()
        self.stamp(18)
        for k in range(3):
            for g in range(4):
                A(f"ds_read_b128 {v(PT + 16 * k + 4 * g, 4)}, {v(vRd)} offset:{4096 * k + 1024 * g}")
        for k in range(3):
            A.await_regs(v(PT + 16 * k, 16))
            for i in range(8):
                A(f"v_pk_add_f32 {v(ACC + 2 * i, 2)}, {v(ACC + 2 * i, 2)}, {v(PT + 16 * k + 2 * i, 2)}")
        for i in range(8):
            A(f"v_pk_fma_f32 {v(ACC + 2 * i, 2)}, {v(ACC + 2 * i, 2)}, {v(GB + 2 * i, 2)}, {v(128 + 2 * i, 2)}")
        OUT = 192
        for i in range(8):
            A(f"v_cvt_pk_bf16_f32 {v(OUT + i)}, {v(ACC + 2 * i)}, {v(ACC + 2 * i + 1)}")
        for k in (0, 2):
            for i in range(2):
                A(f"v_permlane32_swap_b32 {v(OUT + 2 * k + i)}, {v(OUT + 2 * k + 2 + i)}")
        for k in (0, 2):
            A(f"buffer_store_dwordx4 {v(OUT + 2 * k, 4)}, {v(vO)}, {s(R_A, 4)}, 0 offen offset:{16 * k}")
        self.stamp(16)

    def helper(self):
        A = self.A
        T = S_T
        t0, t1, t2 = T + 4, T + 5, T + 6
        sH = S_RB
        A.label("L_helper")
        A(f"s_lshl_b32 {s(t0)}, {s(T + 1)}, 3")
        A(f"s_add_u32 {s(sH)}, {s(t0)}, {s(T)}")
        A(f"s_cmp_ge_u32 {s(sH)}, 21")
        A("s_cbranch_scc1 L_helper_flag")
        st_h = A.snapshot()
        self.srd(R_A, P_WM, 448 * 5376)
        self.srd(R_B, P_C, 896)
        A("v_lshrrev_b32 v2, 4, v0")
        A("v_and_b32 v3, 15, v0")
        A("v_mul_u32_u24 v4, 5376, v2")
        A("v_lshl_add_u32 v4, v3, 4, v4")
        A(f"s_lshl_b32 {s(t0)}, {s(sH)}, 8")
        A(f"v_add_u32 v4, {s(t0)}, v4")
        A("v_lshlrev_b32 v5, 2, v0")
        A(f"buffer_load_dword v6, v5, {s(R_B, 4)}, 0 offen")
        W = 16
        A(f"s_mov_b32 {s(t0)}, 0")
        for i in range(28):
            A(f"buffer_load_dwordx4 {v(W + 4 * i, 4)}, v4, {s(R_A, 4)}, {s(t0)} offen")
            if i < 27:
                A(f"s_add_u32 {s(t0)}, {s(t0)}, {16 * 5376}")
        A(f"s_mov_b32 {s(t1)}, 0x{f32bits(-1.4426950408889634):08x}")
        A("v_lshlrev_b32 v8, 16, v6")
        A(f"v_and_b32 v9, {s(S_MASKHI)}, v6")
        for r in (8, 9):
            A(f"v_mul_f32 {v(r + 2)}, {s(t1)}, {v(r)}")
        for r in (8, 9):
            A(f"v_exp_f32 {v(r + 2)}, {v(r + 2)}")
        for r in (8, 9):
            A(f"v_add_f32 {v(r + 2)}, 1.0, {v(r + 2)}")
        for r in (8, 9):
            A(f"v_rcp_f32 {v(r + 2)}, {v(r + 2)}")
        for r in (8, 9):
            A(f"v_mul_f32 {v(r)}, {v(r)}, {v(r + 2)}")
        A("v_cvt_pk_bf16_f32 v6, v8, v9")
        A("v_lshlrev_b32 v8, 16, v6")
        A(f"v_and_b32 v9, {s(S_MASKHI)}, v6")
        A("v_lshlrev_b32 v7, 3, v0")
        A(f"ds_write_b64 v7, v[8:9] offset:{L_SC}")
        A.barrier()
        A("v_lshlrev_b32 v7, 2, v2")
        SC = 128
        for i in range(28):
            A(f"ds_read_b32 {v(SC + 2 * i)}, v7 offset:{L_SC + 64 * i}")
        AC = 192
        U = 200
        for i in range(28):
            for k in range(4):
                src = W + 4 * i + k
                u = U + 2 * k
                A(f"v_lshlrev_b32 {v(u)}, 16, {v(src)}")
                A(f"v_and_b32 {v(u + 1)}, {s(S_MASKHI)}, {v(src)}")
            for k in range(4):
                u = U + 2 * k
                if i == 0:
                    A(f"v_pk_mul_f32 {v(AC + 2 * k, 2)}, {v(u, 2)}, {v(SC + 2 * i, 2)} op_sel_hi:[1,0]")
                else:
                    A(f"v_pk_fma_f32 {v(AC + 2 * k, 2)}, {v(u, 2)}, {v(SC + 2 * i, 2)}, {v(AC + 2 * k, 2)} op_sel_hi:[1,0,1]")
        A("v_mul_u32_u24 v7, 528, v2")
        A("v_lshl_add_u32 v7, v3, 5, v7")
        A(f"ds_write_b128 v7, {v(AC, 4)} offset:{L_MR}")
        A(f"ds_write_b128 v7, {v(AC + 4, 4)} offset:{L_MR + 16}")
        A.barrier()
        A("v_and_b32 v8, 127, v0")
        A("v_lshlrev_b32 v7, 2, v8")
        for g in range(16):
            A(f"ds_read_b32 {v(16 + g)}, v7 offset:{L_MR + 528 * g}")
        for stp in (8, 4, 2, 1):
            for g in range(stp):
                A(f"v_add_f32 {v(16 + g)}, {v(16 + g)}, {v(16 + g + stp)}")
        A("v_cvt_pk_bf16_f32 v16, v16, v16")
        A(f"v_and_b32 v16, {s(S_MASKHI)}, v16")
        A("v_add_f32 v17, 1.0, v16")
        A("v_cvt_pk_bf16_f32 v17, v17, v17")
        A(f"v_and_b32 v17, {s(S_MASKHI)}, v17")
        A(f"s_lshl_b32 {s(t0)}, {s(sH)}, 7")
        A(f"v_add_u32 v8, {s(t0)}, v8")
        A("v_subrev_u32 v9, 448, v8")
        A("v_subrev_u32 v10, 1792, v8")
        A("v_min_u32 v9, v9, v10")
        A("v_mov_b32 v11, 448")
        A("v_cmp_lt_u32 vcc, v9, v11")
        A("s_nop 1")
        A("v_cndmask_b32 v16, v16, v17, vcc")
        A("v_lshlrev_b32 v8, 2, v8")
        A(f"s_mov_b32 {s(t0)}, {MODF}")
        skip = self.lab("ms")
        A(f"s_cmp_ge_u32 {s(S_WV)}, 2")
        A(f"s_cbranch_scc1 {skip}")
        A.cond_begin()
        A(f"buffer_store_dword v16, v8, {s(R_WS, 4)}, {s(t0)} offen sc1")
        A.cond_end()
        A.label(skip)
        A.wait_vm(0)
        A.barrier()
        A.label("L_helper_flag")
        A.wait_lgkm0()
        A(f"s_add_u32 {s(S_NONCE)}, {s(S_NONCE)}, 1")
        A(f"s_lshl_b32 {s(t0)}, {s(sH)}, 7")
        A(f"s_add_u32 {s(t0)}, {s(t0)}, {FL + FM * 128}")
        self.flag_store(t0)
        self.stamp(3)
        if self.o.get("helper_warm", 0):
            A("v_min_u32 v2, 55, v1")
            A(f"s_mul_i32 {s(t0)}, {s(S_WV)}, 56")
            A(f"v_add_u32 v2, {s(t0)}, v2")
            A("v_lshlrev_b32 v2, 7, v2")
            A(f"v_add_u32 v2, {FL + self.o.get('warm_flag', F2) * 128}, v2")
            A(f"s_lshr_b32 {s(t0)}, s2, 3")
            A(f"s_sub_u32 {s(t0)}, {s(t0)}, 28")
            A(f"s_lshl_b32 {s(t0)}, {s(t0)}, 2")
            A(f"s_add_u32 {s(t0)}, {s(t0)}, {s(S_WV)}")
            A("v_lshlrev_b32 v4, 7, v1")
            A(f"s_and_b32 {s(t1)}, s2, 7")
            A(f"s_mul_i32 {s(t1)}, {s(t1)}, {4 * 229376}")
            A(f"s_mul_i32 {s(t2)}, {s(t0)}, {448 * 128}")
            A(f"s_add_u32 {s(t1)}, {s(t1)}, {s(t2)}")
            A(f"s_add_u32 {s(t1)}, {s(t1)}, {HF}")
            self.poll(2, 3)
            for k in range(7):
                A(f"buffer_load_dword {v(32 + k)}, v4, {s(R_WS, 4)}, {s(t1)} offen")
                A(f"s_add_u32 {s(t1)}, {s(t1)}, {64 * 128}")
            A.wait_vm(0)
        self.stamp(4)
        self.stamp_flush()
        A("s_endpgm")

    def build(self):
        A = self.A
        self.prologue()
        if self.stamps:
            A("v_mov_b32 v255, 0")
            A("v_writelane_b32 v255, s76, 31")
        st = A.snapshot()
        self.stamp(0)
        self.phase_p()
        stages = [("p", None), ("a", self.phase_a), ("b", self.phase_b), ("c", self.phase_c), ("d", self.phase_d)]
        done = self.stop == "p"
        for name, fn in stages[1:]:
            if done:
                break
            fn()
            done = self.stop == name
        self.stamp_flush()
        A("s_endpgm")
        A.label("L_exit")
        A("s_endpgm")
        A.label("L_code_end")
        return A.text()


def f32bits(x):
    import struct
    return struct.unpack("<I", struct.pack("<f", x))[0]


HEADER = """; Fused adaLN + H3 long convolution + SiLU MLP, one persistent launch (generated by gen/gen.py).
; Kernarg: q k v shift_k ssm_k ssm_D B_x w1 w2 c w_mod out debug ws (8-byte pointers).
; @launch grid=(224,1,1) block=(256,1,1) lds={lds}
.amdgcn_target "amdgcn-amd-amdhsa--gfx950"
.text
.globl {name}
.p2align 8
.type {name},@function
{name}:
"""

FOOTER = """.section .rodata,"a"
.p2align 6
.amdhsa_kernel {name}
  .amdhsa_next_free_vgpr 512
  .amdhsa_next_free_sgpr 102
  .amdhsa_accum_offset 256
  .amdhsa_group_segment_fixed_size 0
  .amdhsa_kernarg_size 112
  .amdhsa_user_sgpr_count 2
  .amdhsa_user_sgpr_kernarg_segment_ptr 1
  .amdhsa_system_sgpr_workgroup_id_x 1
  .amdhsa_float_denorm_mode_32 3
.end_amdhsa_kernel
"""


def main():
    ap = argparse.ArgumentParser()
    ap.add_argument("--stop", default=None)
    ap.add_argument("--stamps", action="store_true")
    ap.add_argument("-o", default="/dev/stdout")
    ap.add_argument("--opt", action="append", default=[])
    args = ap.parse_args()
    opts = {}
    for kv in args.opt:
        k, val = kv.split("=")
        opts[k] = int(val)
    g = Gen(stop=args.stop, stamps=args.stamps, opts=opts)
    body = g.build()
    txt = HEADER.format(name=NAME, lds=LDS_END) + body + FOOTER.format(name=NAME)
    with open(args.o, "w") as f:
        f.write(txt)
    print(f"instructions: {g.A.n_ins}, auto nops: {g.A.n_nops}, lds {LDS_END}", file=sys.stderr)


if __name__ == "__main__":
    main()
```

```python
import sys
import argparse
from asmdsl import Asm, v, a, s

NAME = "adaLN_cond__ssm_conv_h3__dense_activation_silu__prompt_kernel"

FL = 4096
F1, FQ, FM, F2, F3 = 0, 256, 512, 544, 800
STAMP = 0x30000
T2D = 224 * 8192
KVP = 0x40000
QP = KVP + T2D
STR = QP + T2D
STM = STR + 8192
X1P = STR + 16384
W1F = X1P + T2D
W2F = W1F + 1605632
MODF = W2F + 1605632
MPL = 2688 * 4
HF = MODF + 65536
WS_END = HF + 32 * 112 * 2048
assert WS_END < (1 << 28)

L_H2 = 0
L_TPK = 0
L_TPQ = 8704
L_TPN = 17408
L_WB = 26112
L_UR = 43520
assert L_UR + 9216 <= 57344
L_KC = 57344
CS = 4160
L_RED = L_KC + 8 * CS
L_RED2 = 0
L_XD = 69632
L_PAR = L_RED + 40960
L_STAT = L_PAR + 4096
L_GB = L_STAT + 2048
LDS_END = L_GB + 256
assert L_XD + 57344 <= L_PAR
assert LDS_END <= 163840
L_SC = 0
L_MR = 2048

S_RB, S_J, S_WV, S_CP = 4, 5, 6, 7
P_Q, P_K, P_V, P_SH, P_SK, P_D, P_BX, P_W1, P_W2, P_C, P_WM, P_OUT, P_DBG, P_WS = range(8, 36, 2)
R_WS, R_A, R_B, R_C, R_D = 36, 40, 44, 48, 52
S_NONCE = 56
S_T = 57
S_M = 80
S_MASKHI = 80
S_PERM_LO = 81
S_PERM_HI = 82
S_OFF = 84
S_SPIN = 96
S_PC = 100
S_W1B, S_W2B = 78, 79
S_XCC, S_LOCAL = 83, 95
S_WI = 94
S_MW = 93
V_W2O = (2, 253)
V_L16 = 3
S_ST0 = 98

SRD3 = 0x00020000
LOG2E = 1.4426950408889634
SPIN_MAX = 1 << 17


class Gen:
    def __init__(self, stop=None, stamps=False, opts=None):
        self.o = dict(cring=3, repf=0, burst_before_flag=0, n_burst_t2=28, n_bg_c=36, bg_b=1, nobg=0)
        self.o.update(opts or {})
        self.A = Asm()
        self.stop = stop
        self.stamps = stamps
        self.nlab = 0
        self.nstamp = 0
        self.n_burst_t2 = self.o["n_burst_t2"]
        self.n_bg_c = self.o["n_bg_c"]
        self.w2_order = list(range(41, 49)) + list(range(28, 41)) + list(range(28)) + list(range(49, 56))

    def lab(self, base):
        self.nlab += 1
        return f"L_{base}_{self.nlab}"

    def srd(self, r, ptr, nbytes, add=None):
        A = self.A
        if add is None:
            A(f"s_mov_b32 {s(r)}, {s(ptr)}")
            A(f"s_mov_b32 {s(r + 1)}, {s(ptr + 1)}")
        else:
            A(f"s_add_u32 {s(r)}, {s(ptr)}, {add}")
            A(f"s_addc_u32 {s(r + 1)}, {s(ptr + 1)}, 0")
        A(f"s_mov_b32 {s(r + 2)}, {nbytes}")
        A(f"s_mov_b32 {s(r + 3)}, 0x{SRD3:08x}")

    def stamp(self, idx):
        if not self.stamps:
            return
        A = self.A
        A(f"s_memrealtime {s(S_ST0, 2)}")
        A.wait_lgkm0()
        A(f"v_writelane_b32 v255, {s(S_ST0)}, {idx}")
        if self.o.get("cyc"):
            A(f"s_memtime {s(S_ST0, 2)}")
            A.wait_lgkm0()
            A(f"v_writelane_b32 v255, {s(S_ST0)}, {32 + idx}")

    def stamp_flush(self):
        if not self.stamps:
            return
        A = self.A
        if self.o.get("dbg"):
            skip = self.lab("dbg")
            A(f"s_cmp_lg_u32 {s(S_WV)}, 0")
            A(f"s_cbranch_scc1 {skip}")
            A("s_cmp_eq_u32 s2, 0")
            A(f"s_cselect_b32 {s(S_T)}, 0, 32")
            A(f"s_cselect_b32 {s(S_T + 1)}, 1, 0")
            A("s_cmp_eq_u32 s2, 223")
            A(f"s_cselect_b32 {s(S_T + 1)}, 1, {s(S_T + 1)}")
            A(f"s_cmp_eq_u32 {s(S_T + 1)}, 0")
            A(f"s_cbranch_scc1 {skip}")
            A.cond_begin()
            A(f"v_readlane_b32 {s(S_T + 2)}, v255, 31")
            self.srd(R_A, P_DBG, 256)
            for n_, idx in enumerate((3, 5, 8, 10, 11, 12, 15, 16)):
                A(f"v_readlane_b32 {s(S_T + 3)}, v255, {idx}")
                A(f"s_sub_u32 {s(S_T + 3)}, {s(S_T + 3)}, {s(S_T + 2)}")
                A(f"v_mov_b32 v250, {s(S_T + 3)}")
                A(f"s_add_u32 {s(S_T + 4)}, {s(S_T)}, {4 * n_}")
                A(f"v_mov_b32 v251, {s(S_T + 4)}")
                A("s_mov_b64 exec, 1")
                A(f"buffer_store_dword v250, v251, {s(R_A, 4)}, 0 offen")
                A("s_mov_b64 exec, -1")
            A.cond_end()
            A.label(skip)
            return
        skip = self.lab("sf")
        A(f"s_cmp_lg_u32 {s(S_WV)}, 0")
        A(f"s_cbranch_scc1 {skip}")
        A.cond_begin()
        A("v_lshlrev_b32 v254, 2, v1")
        A(f"s_lshl_b32 {s(S_SPIN + 1)}, s2, 8")
        A(f"s_add_u32 {s(S_SPIN + 1)}, {s(S_SPIN + 1)}, {STAMP}")
        A(f"buffer_store_dword v255, v254, {s(R_WS, 4)}, {s(S_SPIN + 1)} offen")
        A.cond_end()
        A.label(skip)

    def flag_store(self, soff_sgpr, vtmp=252, with_xcc=False, sc=" sc1"):
        A = self.A
        skip = self.lab("fl")
        A(f"s_cmp_lg_u32 {s(S_WV)}, 0")
        A(f"s_cbranch_scc1 {skip}")
        A.cond_begin()
        A(f"v_mov_b32 {v(vtmp)}, {s(S_NONCE)}")
        if with_xcc:
            A(f"v_mov_b32 {v(vtmp + 1)}, {s(S_XCC)}")
        A(f"v_mov_b32 {v(vtmp + 2)}, {s(soff_sgpr)}")
        A("s_mov_b64 exec, 1")
        if with_xcc:
            A(f"buffer_store_dwordx2 {v(vtmp, 2)}, {v(vtmp + 2)}, {s(R_WS, 4)}, 0 offen{sc}")
        else:
            A(f"buffer_store_dword {v(vtmp)}, {v(vtmp + 2)}, {s(R_WS, 4)}, 0 offen{sc}")
        A("s_mov_b64 exec, -1")
        A.cond_end()
        A.label(skip)

    def poll(self, vaddr, vtmp):
        A = self.A
        loop, done = self.lab("poll"), self.lab("polld")
        A(f"s_mov_b32 {s(S_SPIN)}, 0")
        A.label(loop)
        A(f"buffer_load_dword {v(vtmp)}, {v(vaddr)}, {s(R_WS, 4)}, 0 offen sc1")
        A.wait_vm(0)
        A(f"v_cmp_ne_u32 vcc, {s(S_NONCE)}, {v(vtmp)}")
        A(f"s_add_u32 {s(S_SPIN)}, {s(S_SPIN)}, 1")
        A("s_nop 3")
        A("s_cmp_eq_u64 vcc, 0")
        A(f"s_cbranch_scc1 {done}")
        A(f"s_cmp_lt_u32 {s(S_SPIN)}, {SPIN_MAX}")
        A(f"s_cbranch_scc1 {loop}")
        A.label(done)

    def code_prefetch(self):
        A = self.A
        A("v_lshlrev_b32 v253, 7, v0")
        A("v_min_u32 v253, L_code_end-L_pc-4, v253")
        A(f"global_load_dword v254, v253, {s(S_PC, 2)}")

    def finish(self):
        self.A("s_endpgm")

    def prologue(self):
        A = self.A
        A("s_cmp_ge_u32 s2, 224")
        A("s_cbranch_scc1 L_exit")
        if self.stamps:
            A(f"s_memrealtime {s(76, 2)}")
        A(f"s_load_dwordx16 {s(8, 16)}, s[0:1], 0")
        A(f"s_load_dwordx8 {s(24, 8)}, s[0:1], 64")
        A(f"s_load_dwordx4 {s(32, 4)}, s[0:1], 96")
        A(f"s_getpc_b64 {s(S_PC, 2)}")
        A.label("L_pc")
        A("v_lshlrev_b32 v253, 7, v0")
        A("v_min_u32 v253, L_code_end-L_pc-4, v253")
        A(f"global_load_dword v254, v253, {s(S_PC, 2)}")
        A("v_lshrrev_b32 v2, 6, v0")
        A("v_and_b32 v1, 63, v0")
        A(f"s_and_b32 {s(S_T)}, s2, 7")
        A(f"s_lshr_b32 {s(S_T + 1)}, s2, 3")
        A(f"v_readfirstlane_b32 {s(S_WV)}, v2")
        A(f"s_getreg_b32 {s(S_XCC)}, hwreg(HW_REG_XCC_ID, 0, 4)")
        A(f"s_mov_b32 {s(S_MASKHI)}, 0xffff0000")
        A(f"s_mov_b32 {s(S_PERM_LO)}, 0x05040100")
        A(f"s_mov_b32 {s(S_PERM_HI)}, 0x07060302")
        A(f"s_mov_b32 {s(S_WI)}, {s(S_T + 1)}")
        A(f"s_mul_i32 {s(S_T + 2)}, {s(S_WI)}, 37")
        A(f"s_lshr_b32 {s(S_T + 2)}, {s(S_T + 2)}, 8")
        A(f"s_mul_i32 {s(S_T + 3)}, {s(S_T + 2)}, 7")
        A(f"s_sub_u32 {s(S_J)}, {s(S_WI)}, {s(S_T + 3)}")
        A(f"s_lshl_b32 {s(S_RB)}, {s(S_T)}, 2")
        A(f"s_add_u32 {s(S_RB)}, {s(S_RB)}, {s(S_T + 2)}")
        A(f"s_lshl_b32 {s(S_CP)}, {s(S_J)}, 5")
        A(f"s_add_u32 {s(S_CP)}, {s(S_CP)}, {s(S_RB)}")
        A.wait_lgkm0()
        self.srd(R_WS, P_WS, WS_END)
        A(f"s_load_dword {s(S_NONCE)}, {s(P_WS, 2)}, 0")
        A(f"s_mul_i32 {s(S_MW)}, {s(S_T)}, 28")
        A(f"s_add_u32 {s(S_MW)}, {s(S_MW)}, {s(S_WI)}")

    def phase_p(self):
        A = self.A
        T = S_T
        NB = 2048 * 896
        t0, t1, t2 = T + 12, T + 13, T + 14
        vC, vRG, vL16, vOffO, vKa, vSh, vSa, vSb, vRow, vWa, vx = 2, 3, 4, 5, 6, 10, 11, 12, 13, 14, 15
        vK, vV, vSH, vQO, vQ, vW, vKD = 16, 36, 44, 60, 68, 84, 100
        A(f"v_and_b32 {v(vC)}, 7, v1")
        A(f"v_lshrrev_b32 {v(vRG)}, 3, v1")
        A(f"s_lshl_b32 {s(T)}, {s(S_RB)}, 6")
        A(f"s_lshl_b32 {s(T + 1)}, {s(S_WV)}, 4")
        A(f"s_add_u32 {s(T + 1)}, {s(T)}, {s(T + 1)}")
        A(f"v_lshl_add_u32 {v(vOffO)}, {v(vRG)}, 1, {s(T + 1)}")
        A(f"v_mul_u32_u24 {v(vOffO)}, 896, {v(vOffO)}")
        A(f"v_lshl_add_u32 {v(vOffO)}, {v(vC)}, 4, {v(vOffO)}")
        A(f"s_lshl_b32 {s(T + 2)}, {s(S_J)}, 7")
        A(f"v_add_u32 {v(vOffO)}, {s(T + 2)}, {v(vOffO)}")
        kad = {}
        for n_, i in enumerate((0, 1, 2, 4)):
            d = (i - 3) * 896
            kad[i] = vKa + n_
            if d < 0:
                A(f"v_subrev_u32 {v(kad[i])}, {-d}, {v(vOffO)}")
            else:
                A(f"v_add_u32 {v(kad[i])}, {d}, {v(vOffO)}")
        kad[3] = vOffO
        self.srd(R_A, P_K, NB)
        self.srd(R_B, P_V, NB)
        for i in range(5):
            A(f"buffer_load_dwordx4 {v(vK + 4 * i, 4)}, {v(kad[i])}, {s(R_A, 4)}, 0 offen")
        for i in range(2):
            A(f"buffer_load_dwordx4 {v(vV + 4 * i, 4)}, {v(vOffO)}, {s(R_B, 4)}, 0 offen offset:{896 * i}")
        self.srd(R_C, P_SH, 448 * 8)
        A(f"s_lshl_b32 {s(T + 3)}, {s(S_J)}, 9")
        A(f"v_lshl_add_u32 {v(vSh)}, {v(vC)}, 6, {s(T + 3)}")
        for i in range(4):
            A(f"buffer_load_dwordx4 {v(vSH + 4 * i, 4)}, {v(vSh)}, {s(R_C, 4)}, 0 offen offset:{16 * i}")
        self.srd(R_A, P_Q, NB)
        for r in range(2):
            A(f"buffer_load_dwordx4 {v(vQO + 4 * r, 4)}, {v(vOffO)}, {s(R_A, 4)}, 0 offen offset:{896 * r}")
        A(f"s_lshl_b32 {s(t1)}, {s(S_J)}, 3")
        A(f"s_add_u32 {s(t0)}, {s(T)}, {s(t1)}")
        A(f"s_lshl_b32 {s(t1)}, {s(S_WV)}, 2")
        A(f"s_add_u32 {s(t0)}, {s(t0)}, {s(t1)}")
        A(f"v_lshrrev_b32 {v(vRow)}, 4, v1")
        A(f"v_add_u32 {v(vRow)}, {s(t0)}, {v(vRow)}")
        A(f"v_mul_u32_u24 {v(vSa)}, 896, {v(vRow)}")
        A(f"v_and_b32 {v(vSb)}, 15, v1")
        A(f"v_lshl_add_u32 {v(vSa)}, {v(vSb)}, 4, {v(vSa)}")
        A(f"v_cmp_gt_u32 vcc, 8, {v(vSb)}")
        A(f"v_add_u32 {v(vSb)}, 768, {v(vSa)}")
        A(f"v_mov_b32 {v(vx)}, -1")
        A(f"v_cndmask_b32 {v(vSb)}, {v(vx)}, {v(vSb)}, vcc")
        for i in range(3):
            A(f"buffer_load_dwordx4 {v(vQ + 4 * i, 4)}, {v(vSa)}, {s(R_A, 4)}, 0 offen offset:{256 * i}")
        A(f"buffer_load_dwordx4 {v(vQ + 12, 4)}, {v(vSb)}, {s(R_A, 4)}, 0 offen")
        vM, vSC, vMA, vMT, vMa, vCa = 84, 96, 100, 108, 116, 117
        sCG, sRS = T + 21, T + 5
        self.srd(R_B, P_WM, 448 * 5376)
        self.srd(R_C, P_C, 896)
        A(f"s_mul_i32 {s(sRS)}, {s(S_MW)}, 1561")
        A(f"s_lshr_b32 {s(sRS)}, {s(sRS)}, 16")
        A(f"s_mul_i32 {s(sCG)}, {s(sRS)}, 42")
        A(f"s_sub_u32 {s(sCG)}, {s(S_MW)}, {s(sCG)}")
        A(f"s_mul_i32 {s(t0)}, {s(S_WV)}, 24")
        A(f"v_lshrrev_b32 {v(vMT)}, 3, v1")
        A(f"v_add_u32 {v(vMT)}, {s(t0)}, {v(vMT)}")
        A(f"s_mul_i32 {s(t1)}, {s(sRS)}, 90")
        A(f"v_add_u32 {v(vMT + 1)}, {s(t1)}, {v(vMT)}")
        A(f"v_lshlrev_b32 {v(vCa)}, 1, {v(vMT + 1)}")
        A(f"v_mul_u32_u24 {v(vMa)}, 5376, {v(vMT + 1)}")
        A(f"v_and_b32 {v(vMT + 2)}, 7, v1")
        A(f"v_lshl_add_u32 {v(vMa)}, {v(vMT + 2)}, 4, {v(vMa)}")
        A(f"s_lshl_b32 {s(t1)}, {s(sCG)}, 7")
        A(f"v_add_u32 {v(vMa)}, {s(t1)}, {v(vMa)}")
        A(f"v_cmp_gt_u32 vcc, {90 - 16}, {v(vMT)}")
        A(f"v_add_u32 {v(vMT + 3)}, {16 * 5376}, {v(vMa)}")
        A(f"v_mov_b32 {v(vMT + 4)}, 0x80000000")
        A(f"v_add_u32 {v(vMT + 5)}, {8 * 5376}, {v(vMa)}")
        A(f"v_cndmask_b32 {v(vMT + 3)}, {v(vMT + 4)}, {v(vMT + 3)}, vcc")
        for i in range(3):
            A(f"buffer_load_ushort {v(vSC + i)}, {v(vCa)}, {s(R_C, 4)}, 0 offen offset:{16 * i}")
        for i, ad in enumerate((vMa, vMT + 5, vMT + 3)):
            A(f"buffer_load_dwordx4 {v(vM + 4 * i, 4)}, {v(ad)}, {s(R_B, 4)}, 0 offen")
        self.stamp(1)

        sWB, sSrc, sStride, sA, sR1, sD0, sDS = T + 4, T + 6, T + 7, T + 8, T + 9, T + 10, T + 11
        A(f"s_mul_i32 {s(sWB)}, {s(S_RB)}, 7")
        A(f"s_add_u32 {s(sWB)}, {s(sWB)}, {s(S_J)}")
        A(f"s_lshr_b32 {s(t0)}, {s(sWB)}, 2")
        A(f"s_and_b32 {s(t1)}, {s(sWB)}, 3")
        A(f"s_mul_i32 {s(sSrc)}, {s(t0)}, {16 * 3584}")
        A(f"s_mul_i32 {s(t2)}, {s(t1)}, 896")
        A(f"s_add_u32 {s(sSrc)}, {s(sSrc)}, {s(t2)}")
        A(f"s_mul_i32 {s(t2)}, {s(t1)}, 14")
        A(f"s_add_u32 {s(t2)}, {s(t2)}, {s(S_WV)}")
        A(f"s_mul_i32 {s(t2)}, {s(t2)}, 28")
        A(f"s_add_u32 {s(sD0)}, {s(t2)}, {s(t0)}")
        A(f"s_lshl_b32 {s(sD0)}, {s(sD0)}, 10")
        A(f"s_add_u32 {s(sD0)}, {s(sD0)}, {W1F}")
        u0, u1, u2, uSrc, uD0 = T + 16, T + 17, T + 18, T + 19, T + 20
        A(f"s_sub_u32 {s(u0)}, {s(sWB)}, 112")
        A(f"s_mul_i32 {s(uSrc)}, {s(u0)}, {16 * 896}")
        A(f"s_mul_i32 {s(u1)}, {s(u0)}, 147")
        A(f"s_lshr_b32 {s(u1)}, {s(u1)}, 12")
        A(f"s_mul_i32 {s(u2)}, {s(u1)}, 28")
        A(f"s_sub_u32 {s(u2)}, {s(u0)}, {s(u2)}")
        A(f"s_mul_i32 {s(uD0)}, {s(u1)}, 56")
        A(f"s_lshl_b32 {s(u2)}, {s(u2)}, 1")
        A(f"s_add_u32 {s(uD0)}, {s(uD0)}, {s(u2)}")
        A(f"s_lshr_b32 {s(u1)}, {s(S_WV)}, 1")
        A(f"s_mul_i32 {s(u1)}, {s(u1)}, 224")
        A(f"s_add_u32 {s(uD0)}, {s(uD0)}, {s(u1)}")
        A(f"s_and_b32 {s(u1)}, {s(S_WV)}, 1")
        A(f"s_add_u32 {s(uD0)}, {s(uD0)}, {s(u1)}")
        A(f"s_lshl_b32 {s(uD0)}, {s(uD0)}, 10")
        A(f"s_add_u32 {s(uD0)}, {s(uD0)}, {W2F}")
        A(f"s_cmp_ge_u32 {s(sWB)}, 112")
        A(f"s_cselect_b32 {s(sSrc)}, {s(uSrc)}, {s(sSrc)}")
        A(f"s_cselect_b32 {s(sD0)}, {s(uD0)}, {s(sD0)}")
        A(f"s_mov_b32 {s(sStride)}, 3584")
        A(f"s_cselect_b32 {s(sStride)}, 896, {s(sStride)}")
        A(f"s_cselect_b32 {s(sA)}, 4, 8")
        A(f"s_mov_b32 {s(sR1)}, {4 * 1088}")
        A(f"s_cselect_b32 {s(sR1)}, {8 * 1088}, {s(sR1)}")
        A(f"s_mov_b32 {s(sDS)}, {112 * 1024}")
        A(f"s_cselect_b32 {s(sDS)}, {448 * 1024}, {s(sDS)}")
        A(f"s_cselect_b32 {s(R_D)}, {s(P_W2)}, {s(P_W1)}")
        A(f"s_cselect_b32 {s(R_D + 1)}, {s(P_W2 + 1)}, {s(P_W1 + 1)}")
        A(f"s_mov_b32 {s(R_D + 2)}, 1605632")
        A(f"s_mov_b32 {s(R_D + 3)}, 0x{SRD3:08x}")
        A(f"s_lshl_b32 {s(t0)}, {s(S_WV)}, 2")
        A(f"s_mul_i32 {s(t0)}, {s(t0)}, {s(sStride)}")
        A(f"s_add_u32 {s(sSrc)}, {s(sSrc)}, {s(t0)}")
        A(f"v_lshlrev_b32 {v(vL16)}, 4, v1")
        A(f"v_add_u32 {v(vWa)}, {s(sSrc)}, {v(vL16)}")
        A(f"s_lshl_b32 {s(t0)}, {s(S_CP)}, 13")
        self.srd(R_B, P_SK, 4096, add=s(t0))
        A(f"s_add_u32 {s(t0)}, {s(t0)}, 4096")
        self.srd(R_C, P_SK, 4096, add=s(t0))
        vKA, vKB, vKA2, vKB2 = 132, 133, 134, 135
        A(f"v_lshlrev_b32 {v(vKA)}, 4, v0")
        A(f"v_subrev_u32 {v(vKB)}, 16, {v(vKA)}")
        A(f"v_subrev_u32 {v(vKA)}, 32, {v(vKA)}")
        A(f"v_and_b32 {v(vKA2)}, 1, v1")
        A(f"v_lshlrev_b32 {v(vKA2)}, 4, {v(vKA2)}")
        A(f"v_add_u32 {v(vKB2)}, 4080, {v(vKA2)}")
        vTPW, vWw, vTPR, vStO, vTR0, vTR1, vKW = 136, 137, 138, 139, 140, 141, 142
        A(f"v_add_u32 {v(vKW + 1)}, {4096 + L_KC}, {v(vKA2)}")
        A(f"v_add_u32 {v(vKA2)}, 4064, {v(vKA2)}")
        A(f"v_lshlrev_b32 {v(vKW)}, 4, v0")
        A(f"v_add_u32 {v(vKW)}, {L_KC}, {v(vKW)}")
        A(f"v_mul_u32_u24 {v(vTPW)}, 1088, {v(vC)}")
        A(f"v_lshl_add_u32 {v(vTPW)}, {v(vRG)}, 3, {v(vTPW)}")
        A(f"s_lshl_b32 {s(t0)}, {s(S_WV)}, 6")
        A(f"v_add_u32 {v(vTPW)}, {s(t0)}, {v(vTPW)}")
        A(f"s_mul_i32 {s(t1)}, {s(S_WV)}, {4 * 1088}")
        A(f"v_add_u32 {v(vWw)}, {s(t1)}, {v(vL16)}")
        A(f"v_lshrrev_b32 {v(vStO)}, 4, v0")
        A(f"v_mul_u32_u24 {v(vTPR)}, 272, {v(vStO)}")
        A(f"v_and_b32 {v(vx)}, 15, v0")
        A(f"v_lshl_add_u32 {v(vTPR)}, {v(vx)}, 4, {v(vTPR)}")
        A(f"v_lshlrev_b32 {v(vStO)}, 13, {v(vStO)}")
        A(f"v_lshl_add_u32 {v(vStO)}, {v(vx)}, 4, {v(vStO)}")
        A(f"v_lshrrev_b32 {v(vTR0)}, 5, v1")
        A(f"v_mul_lo_u32 {v(vTR0)}, {v(vTR0)}, {s(sA)}")
        A(f"v_bfe_u32 {v(vx)}, v1, 2, 2")
        A(f"v_add_u32 {v(vTR0)}, {v(vTR0)}, {v(vx)}")
        A(f"v_mul_u32_u24 {v(vTR0)}, 1088, {v(vTR0)}")
        A(f"v_bfe_u32 {v(vx)}, v1, 4, 1")
        A(f"v_lshl_add_u32 {v(vTR0)}, {v(vx)}, 5, {v(vTR0)}")
        A(f"v_and_b32 {v(vx)}, 3, v1")
        A(f"v_lshl_add_u32 {v(vTR0)}, {v(vx)}, 3, {v(vTR0)}")
        A(f"v_add_u32 {v(vTR0)}, {s(t0)}, {v(vTR0)}")
        A(f"v_add_u32 {v(vTR1)}, {s(sR1)}, {v(vTR0)}")
        sTile = S_OFF
        A(f"s_lshl_b32 {s(sTile)}, {s(S_J)}, 18")
        A(f"s_lshl_b32 {s(t0)}, {s(S_RB)}, 8")
        A(f"s_add_u32 {s(sTile)}, {s(sTile)}, {s(t0)}")
        A(f"v_lshlrev_b32 {v(vRow)}, 2, {v(vRow)}")
        A("v_mov_b32 v240, 0")
        A("v_mov_b32 v241, 0")
        A("v_lshlrev_b32 v242, 3, v1")
        for e in range(2):
            A(f"ds_write_b64 v242, v[240:241] offset:{L_UR + 4608 * e + 4096}")

        TT, WP, AC, vO = 144, 184, 216, 232
        A.await_regs(v(vSH, 16))
        for p in range(4):
            for e in range(2):
                d0 = vSH + 2 * (2 * p + e)
                w = WP + 8 * p
                A(f"v_lshlrev_b32 {v(w + 0 + e)}, 16, {v(d0)}")
                A(f"v_and_b32 {v(w + 2 + e)}, {s(S_MASKHI)}, {v(d0)}")
                A(f"v_lshlrev_b32 {v(w + 4 + e)}, 16, {v(d0 + 1)}")
                A(f"v_and_b32 {v(w + 6 + e)}, {s(S_MASKHI)}, {v(d0 + 1)}")
        self.stamp(21)
        for i in range(5):
            for p in range(4):
                src = vK + 4 * i + p
                A(f"v_lshlrev_b32 {v(TT + 10 * p + 2 * i)}, 16, {v(src)}")
                A(f"v_and_b32 {v(TT + 10 * p + 2 * i + 1)}, {s(S_MASKHI)}, {v(src)}")
        for tap in range(4):
            for p in range(4):
                for row in range(2):
                    acc = AC + 4 * p + 2 * row
                    x = v(TT + 10 * p + 2 * (3 + row - tap), 2)
                    w = v(WP + 8 * p + 2 * tap, 2)
                    if tap == 0:
                        A(f"v_pk_mul_f32 {v(acc, 2)}, {x}, {w}")
                    else:
                        A(f"v_pk_fma_f32 {v(acc, 2)}, {x}, {w}, {v(acc, 2)}")
        for row in range(2):
            for p in range(4):
                src = vV + 4 * row + p
                A(f"v_lshlrev_b32 {v(TT + 10 * p + 2 * row)}, 16, {v(src)}")
                A(f"v_and_b32 {v(TT + 10 * p + 2 * row + 1)}, {s(S_MASKHI)}, {v(src)}")
        for p in range(4):
            for row in range(2):
                acc = AC + 4 * p + 2 * row
                A(f"v_pk_mul_f32 {v(acc, 2)}, {v(acc, 2)}, {v(TT + 10 * p + 2 * row, 2)}")
        for p in range(4):
            for row in range(2):
                acc = AC + 4 * p + 2 * row
                A(f"v_cvt_pk_bf16_f32 {v(vO + 2 * p + row)}, {v(acc)}, {v(acc + 1)}")
        for p in range(4):
            A(f"ds_write_b64 {v(vTPW)}, {v(vO + 2 * p, 2)} offset:{L_TPK + 272 * p}")
        self.stamp(22)
        A(f"v_add_u32 {v(vx)}, {L_TPQ}, {v(vTPW)}")
        A.await_regs(v(vQO, 8))
        for p in range(4):
            A(f"ds_write2_b32 {v(vx)}, {v(vQO + p)}, {v(vQO + 4 + p)} offset0:{68 * p} offset1:{68 * p + 1}")
        vS, vU = 240, 144
        A.await_regs(v(vQ, 16))
        for i in range(16):
            A(f"v_lshlrev_b32 {v(vU + 2 * i)}, 16, {v(vQ + i)}")
            A(f"v_and_b32 {v(vU + 2 * i + 1)}, {s(S_MASKHI)}, {v(vQ + i)}")
        S1, S2 = (240, 242), (244, 246)
        for i in range(16):
            u = v(vU + 2 * i, 2)
            if i < 2:
                A(f"v_pk_mul_f32 {v(S2[i], 2)}, {u}, {u}")
            else:
                A(f"v_pk_fma_f32 {v(S2[i & 1], 2)}, {u}, {u}, {v(S2[i & 1], 2)}")
            if i in (2, 3):
                A(f"v_pk_add_f32 {v(S1[i & 1], 2)}, {v(vU + 2 * (i - 2), 2)}, {u}")
            elif i > 3:
                A(f"v_pk_add_f32 {v(S1[i & 1], 2)}, {v(S1[i & 1], 2)}, {u}")
        A(f"v_pk_add_f32 {v(240, 2)}, {v(240, 2)}, {v(242, 2)}")
        A(f"v_pk_add_f32 {v(244, 2)}, {v(244, 2)}, {v(246, 2)}")
        m, q2 = 240, 244
        A(f"v_add_f32 {v(m)}, {v(m)}, {v(m + 1)}")
        A(f"v_add_f32 {v(q2)}, {v(q2)}, {v(q2 + 1)}")
        for mod in ("quad_perm:[1,0,3,2]", "quad_perm:[2,3,0,1]", "row_half_mirror", "row_mirror"):
            for c_ in (m, q2):
                A(f"v_add_f32_dpp {v(c_)}, {v(c_)}, {v(c_)} {mod} row_mask:0xf bank_mask:0xf")
        A(f"s_mov_b32 {s(t0)}, 0x{f32bits(1.0 / 448):08x}")
        A(f"s_mov_b32 {s(t1)}, 0x{f32bits(1e-5):08x}")
        A(f"v_mul_f32 {v(m)}, {s(t0)}, {v(m)}")
        A(f"v_mul_f32 {v(q2)}, {s(t0)}, {v(q2)}")
        A(f"v_fma_f32 {v(q2)}, -{v(m)}, {v(m)}, {v(q2)}")
        A(f"v_max_f32 {v(q2)}, 0, {v(q2)}")
        A(f"v_add_f32 {v(q2)}, {s(t1)}, {v(q2)}")
        A(f"v_rsq_f32 {v(q2)}, {v(q2)}")
        L_MP = L_TPN
        A(f"s_mov_b32 {s(t1)}, 0x{f32bits(-LOG2E):08x}")
        A.await_regs(v(vSC, 3))
        for i in range(3):
            A(f"v_lshlrev_b32 {v(vSC + i)}, 16, {v(vSC + i)}")
        for i in range(3):
            A(f"v_mul_f32 {v(vMT + i)}, {s(t1)}, {v(vSC + i)}")
        for i in range(3):
            A(f"v_exp_f32 {v(vMT + i)}, {v(vMT + i)}")
        for i in range(3):
            A(f"v_add_f32 {v(vMT + i)}, 1.0, {v(vMT + i)}")
        for i in range(3):
            A(f"v_rcp_f32 {v(vMT + i)}, {v(vMT + i)}")
        A(f"s_lshl_b32 {s(t2)}, {s(S_WV)}, 2")
        A(f"v_lshrrev_b32 {v(vCa)}, 4, v1")
        A(f"v_add_u32 {v(vCa)}, {s(t2)}, {v(vCa)}")
        for i in range(3):
            A(f"v_mul_f32 {v(vSC + i)}, {v(vSC + i)}, {v(vMT + i)}")
        A(f"v_mul_u32_u24 {v(vCa)}, 272, {v(vCa)}")
        A(f"v_and_b32 {v(vMa)}, 7, v1")
        for i in range(3):
            A(f"v_cvt_pk_bf16_f32 {v(vSC + i)}, {v(vSC + i)}, {v(vSC + i)}")
        A(f"v_lshl_add_u32 {v(vCa)}, {v(vMa)}, 5, {v(vCa)}")
        for i in range(3):
            A(f"v_and_b32 {v(vSC + i)}, {s(S_MASKHI)}, {v(vSC + i)}")
        A(f"v_add_u32 {v(vCa)}, {L_MP}, {v(vCa)}")
        A.await_regs(v(vM, 12))
        for i in range(3):
            for k in range(4):
                A(f"v_lshlrev_b32 {v(vMT + 2 * k)}, 16, {v(vM + 4 * i + k)}")
                A(f"v_and_b32 {v(vMT + 2 * k + 1)}, {s(S_MASKHI)}, {v(vM + 4 * i + k)}")
            sc = vSC + i
            base, e = (sc, 0) if sc % 2 == 0 else (sc - 1, 1)
            for k in range(4):
                if i == 0:
                    A(f"v_pk_mul_f32 {v(vMA + 2 * k, 2)}, {v(vMT + 2 * k, 2)}, {v(base, 2)} op_sel:[0,{e}] op_sel_hi:[1,{e}]")
                else:
                    A(f"v_pk_fma_f32 {v(vMA + 2 * k, 2)}, {v(vMT + 2 * k, 2)}, {v(base, 2)}, {v(vMA + 2 * k, 2)} op_sel:[0,{e},0] op_sel_hi:[1,{e},1]")
        for k in range(8):
            A(f"v_add_f32_dpp {v(vMA + k)}, {v(vMA + k)}, {v(vMA + k)} row_ror:8 row_mask:0xf bank_mask:0xf")
        A(f"ds_write_b128 {v(vCa)}, {v(vMA, 4)}")
        A(f"ds_write_b128 {v(vCa)}, {v(vMA + 4, 4)} offset:16")
        A.barrier()
        self.stamp(23)
        vRB = 16
        for i in range(2):
            A(f"ds_read_b128 {v(vRB + 4 * i, 4)}, {v(vTPR)} offset:{L_TPK + 4352 * i}")
        for i in range(2):
            A(f"ds_read_b128 {v(vRB + 8 + 4 * i, 4)}, {v(vTPR)} offset:{L_TPQ + 4352 * i}")
        A(f"v_mul_f32 {v(m)}, {v(m)}, {v(q2)}")
        vF0, vJ = 100, 118
        A(f"v_lshlrev_b32 {v(vJ)}, 2, v1")
        A(f"v_add_u32 {v(vJ + 1)}, {L_TPN}, {v(vJ)}")
        for g_ in range(16):
            A(f"ds_read_b32 {v(vF0 + g_)}, {v(vJ + 1)} offset:{272 * g_}")
        A(f"s_mul_i32 {s(sRS)}, {s(sRS)}, {MPL}")
        A(f"s_lshl_b32 {s(sCG)}, {s(sCG)}, 8")
        A(f"s_add_u32 {s(sRS)}, {s(sRS)}, {s(sCG)}")
        A(f"s_add_u32 {s(sRS)}, {s(sRS)}, {MODF}")
        A.await_regs(v(vF0, 16))
        for stp in (8, 4, 2, 1):
            for g_ in range(stp):
                A(f"v_add_f32 {v(vF0 + g_)}, {v(vF0 + g_)}, {v(vF0 + g_ + stp)}")
        A(f"s_add_u32 {s(t0)}, {s(sTile)}, {KVP}")
        A(f"s_add_u32 {s(t1)}, {s(sTile)}, {KVP + 131072}")
        A(f"s_add_u32 {s(t2)}, {s(sTile)}, {QP}")
        A(f"s_add_u32 {s(u0)}, {s(sTile)}, {QP + 131072}")
        A.await_regs(v(vRB, 8))
        A(f"buffer_store_dwordx4 {v(vRB, 4)}, {v(vStO)}, {s(R_WS, 4)}, {s(t0)} offen sc1")
        A(f"buffer_store_dwordx4 {v(vRB + 4, 4)}, {v(vStO)}, {s(R_WS, 4)}, {s(t1)} offen sc1")
        A.await_regs(v(vRB + 8, 8))
        A(f"buffer_store_dwordx4 {v(vRB + 8, 4)}, {v(vStO)}, {s(R_WS, 4)}, {s(t2)} offen sc1")
        A(f"buffer_store_dwordx4 {v(vRB + 12, 4)}, {v(vStO)}, {s(R_WS, 4)}, {s(u0)} offen sc1")
        A(f"s_mov_b32 {s(t0)}, {STR}")
        A(f"s_mov_b32 {s(t1)}, {STM}")
        A(f"s_mov_b32 exec_lo, 0x00010001")
        A(f"s_mov_b32 exec_hi, 0x00010001")
        A(f"buffer_store_dword {v(q2)}, {v(vRow)}, {s(R_WS, 4)}, {s(t0)} offen sc1")
        A(f"buffer_store_dword {v(m)}, {v(vRow)}, {s(R_WS, 4)}, {s(t1)} offen sc1")
        A("s_mov_b64 exec, -1")
        skipm = self.lab("ms")
        A(f"s_cmp_lg_u32 {s(S_WV)}, 0")
        A(f"s_cbranch_scc1 {skipm}")
        A.cond_begin()
        A(f"buffer_store_dword {v(100)}, {v(118)}, {s(R_WS, 4)}, {s(sRS)} offen sc1")
        A.cond_end()
        A.label(skipm)
        self.stamp(24)
        def batch2():
            for e in range(2):
                R = R_B if e == 0 else R_C
                for ps in range(2):
                    b = vKD + 8 * (2 * e + ps)
                    A(f"buffer_load_dwordx4 {v(b, 4)}, {v(vKA if ps == 0 else vKA2)}, {s(R, 4)}, 0 offen")
                    A(f"buffer_load_dwordx2 {v(b + 4, 2)}, {v(vKB if ps == 0 else vKB2)}, {s(R, 4)}, 0 offen")
            for i in range(4):
                A(f"buffer_load_dwordx4 {v(vW + 4 * i, 4)}, {v(vWa)}, {s(R_D, 4)}, 0 offen")
                if i < 3:
                    A(f"v_add_u32 {v(vWa)}, {s(sStride)}, {v(vWa)}")

        mark = A.vm_count
        if not self.o.get("b2_late", 0):
            batch2()
        A(f"s_add_u32 {s(S_NONCE)}, {s(S_NONCE)}, 1")
        A(f"s_lshl_b32 {s(t0)}, {s(S_CP)}, 7")
        A(f"s_add_u32 {s(t0)}, {s(t0)}, {FL + F1 * 128}")
        A.wait_vm(A.vm_count - mark)
        A.barrier()
        self.flag_store(t0)
        if self.o.get("b2_late", 0):
            batch2()
        self.stamp(3)
        vx4 = 48
        for e in range(2):
            for ps in range(2):
                b = vKD + 8 * (2 * e + ps)
                base = e * 4 * CS
                ad = vKW + ps
                A.await_regs(v(b, 6))
                for i in range(4):
                    A(f"v_alignbit_b32 {v(vx4 + i)}, {v(b + i + 1)}, {v(b + i)}, 16")
                for i in range(4):
                    A(f"v_mov_b32 {v(vx4 + 4 + i)}, {v(b + i + 1)}")
                for i in range(4):
                    A(f"v_alignbit_b32 {v(vx4 + 8 + i)}, {v(b + i + 2)}, {v(b + i + 1)}, 16")
                A(f"ds_write_b128 {v(ad)}, {v(b, 4)} offset:{base}")
                A(f"ds_write_b128 {v(ad)}, {v(vx4, 4)} offset:{base + CS}")
                A(f"ds_write_b128 {v(ad)}, {v(vx4 + 4, 4)} offset:{base + 2 * CS}")
                A(f"ds_write_b128 {v(ad)}, {v(vx4 + 8, 4)} offset:{base + 3 * CS}")
        A.await_regs(v(vW, 16))
        for i in range(4):
            A(f"ds_write_b128 {v(vWw)}, {v(vW + 4 * i, 4)} offset:{L_WB + 1088 * i}")
        A.barrier()
        self.stamp(25)
        for i in range(4):
            A(f"ds_read_b64_tr_b16 {v(220 + 4 * i, 2)}, {v(vTR0)} offset:{L_WB + 256 * i}")
            A(f"ds_read_b64_tr_b16 {v(220 + 4 * i + 2, 2)}, {v(vTR1)} offset:{L_WB + 256 * i}")
        self.wr = dict(sWB=sWB, sD0=sD0, sDS=sDS)
        if self.o.get("w_early", 1):
            self.w_stores()
        self.stamp(26)

    def w_stores(self):
        A = self.A
        vF, sD0, sDS = 220, self.wr["sD0"], self.wr["sDS"]
        A.await_regs(v(vF, 16))
        for i in range(3):
            A(f"buffer_store_dwordx4 {v(vF + 4 * i, 4)}, v4, {s(R_WS, 4)}, {s(sD0)} offen sc1")
            A(f"s_add_u32 {s(sD0)}, {s(sD0)}, {s(sDS)}")
        skip = self.lab("w4")
        A(f"s_cmp_ge_u32 {s(S_WV)}, 2")
        A(f"s_cbranch_scc1 {skip}")
        A.cond_begin()
        A(f"buffer_store_dwordx4 {v(vF + 12, 4)}, v4, {s(R_WS, 4)}, {s(sD0)} offen sc1")
        A.cond_end()
        A.label(skip)

    def poll2_issue(self, va, vb, vt):
        A = self.A
        A(f"buffer_load_dword {v(vt)}, {v(va)}, {s(R_WS, 4)}, 0 offen sc1")
        A(f"buffer_load_dword {v(vt + 1)}, {v(vb)}, {s(R_WS, 4)}, 0 offen sc1")

    def poll1_check(self, va, vt):
        A = self.A
        done = self.lab("p1d")
        A(f"v_cmp_ne_u32 vcc, {s(S_NONCE)}, {v(vt)}")
        A("s_nop 1")
        A("s_cmp_eq_u64 vcc, 0")
        A(f"s_cbranch_scc1 {done}")
        st = A.snapshot()
        self.poll(va, vt)
        A.restore(st)
        A.label(done)

    def poll2_check(self, va, vb, vt):
        A = self.A
        loop, done = self.lab("p2"), self.lab("p2d")
        A(f"v_cmp_ne_u32 vcc, {s(S_NONCE)}, {v(vt)}")
        A(f"v_cmp_ne_u32 {s(S_SPIN + 2, 2)}, {s(S_NONCE)}, {v(vt + 1)}")
        A(f"s_mov_b32 {s(S_SPIN)}, 0")
        A("s_nop 1")
        A(f"s_or_b64 vcc, vcc, {s(S_SPIN + 2, 2)}")
        A("s_cmp_eq_u64 vcc, 0")
        A(f"s_cbranch_scc1 {done}")
        st = A.snapshot()
        A.label(loop)
        A(f"buffer_load_dword {v(vt)}, {v(va)}, {s(R_WS, 4)}, 0 offen sc1")
        A(f"buffer_load_dword {v(vt + 1)}, {v(vb)}, {s(R_WS, 4)}, 0 offen sc1")
        A.wait_vm(0)
        A(f"v_cmp_ne_u32 vcc, {s(S_NONCE)}, {v(vt)}")
        A(f"v_cmp_ne_u32 {s(S_SPIN + 2, 2)}, {s(S_NONCE)}, {v(vt + 1)}")
        A(f"s_add_u32 {s(S_SPIN)}, {s(S_SPIN)}, 1")
        A("s_nop 1")
        A(f"s_or_b64 vcc, vcc, {s(S_SPIN + 2, 2)}")
        A("s_cmp_eq_u64 vcc, 0")
        A(f"s_cbranch_scc1 {done}")
        A(f"s_cmp_lt_u32 {s(S_SPIN)}, {SPIN_MAX}")
        A(f"s_cbranch_scc1 {loop}")
        A.restore(st)
        A.label(done)

    def phase_a(self):
        A = self.A
        T = S_T
        t0, t1, t2 = T, T + 1, T + 2
        vPa, vPt, vx, vy = 2, 3, 16, 17
        A(f"v_min_u32 {v(vPa)}, 55, v1")
        A(f"s_mul_i32 {s(t0)}, {s(S_WV)}, 56")
        A(f"v_add_u32 {v(vPa)}, {s(t0)}, {v(vPa)}")
        A(f"v_lshlrev_b32 {v(vPa)}, 7, {v(vPa)}")
        A(f"v_add_u32 {v(vPa)}, {FL + F1 * 128}, {v(vPa)}")
        vL16 = 4
        sKV = S_OFF + 2
        A(f"s_lshl_b32 {s(sKV)}, {s(S_CP)}, 13")
        A(f"s_lshl_b32 {s(t2)}, {s(S_WV)}, 11")
        A(f"s_add_u32 {s(sKV)}, {s(sKV)}, {s(t2)}")
        vUW, vaA, vaB = 5, 6, 7
        A(f"s_lshl_b32 {s(t0)}, {s(S_WV)}, 10")
        A(f"s_sub_u32 {s(t0)}, {4088 - 512}, {s(t0)}")
        A(f"v_lshlrev_b32 {v(vx)}, 3, v1")
        A(f"v_sub_u32 {v(vUW)}, {s(t0)}, {v(vx)}")
        A(f"v_and_b32 {v(vx)}, 15, v1")
        A(f"v_add_u32 {v(vx)}, 1, {v(vx)}")
        A(f"v_and_b32 {v(vy)}, 3, {v(vx)}")
        A(f"v_sub_u32 {v(vx)}, {v(vx)}, {v(vy)}")
        A(f"v_lshlrev_b32 {v(vx)}, 1, {v(vx)}")
        A(f"v_mul_u32_u24 {v(vy)}, {CS}, {v(vy)}")
        A(f"v_add_u32 {v(vaA)}, {v(vx)}, {v(vy)}")
        A(f"v_lshrrev_b32 {v(vy)}, 4, v1")
        A(f"v_lshl_add_u32 {v(vaA)}, {v(vy)}, 4, {v(vaA)}")
        A(f"s_lshr_b32 {s(t0)}, {s(S_WV)}, 1")
        A(f"s_and_b32 {s(t1)}, {s(S_WV)}, 1")
        A(f"s_mul_i32 {s(t2)}, {s(t0)}, {4 * CS}")
        A(f"s_lshl_b32 {s(t1)}, {s(t1)}, 8")
        A(f"s_add_u32 {s(t2)}, {s(t2)}, {s(t1)}")
        A(f"s_add_u32 {s(t2)}, {s(t2)}, {L_KC}")
        A(f"v_add_u32 {v(vaA)}, {s(t2)}, {v(vaA)}")
        A(f"v_and_b32 {v(vx)}, 15, v1")
        A(f"v_lshlrev_b32 {v(vx)}, 5, {v(vx)}")
        A(f"v_lshlrev_b32 {v(vy)}, 4, {v(vy)}")
        A(f"v_sub_u32 {v(vaB)}, {v(vy)}, {v(vx)}")
        A(f"s_mul_i32 {s(t2)}, {s(t0)}, 4608")
        A(f"s_add_u32 {s(t2)}, {s(t2)}, {s(t1)}")
        A(f"s_add_u32 {s(t2)}, {s(t2)}, {L_UR + 480}")
        A(f"v_add_u32 {v(vaB)}, {s(t2)}, {v(vaB)}")
        vPW, vPM, vPR = 18, 19, 20
        A(f"s_lshl_b32 {s(t0)}, {s(S_J)}, 3")
        A(f"s_lshl_b32 {s(t1)}, {s(S_WV)}, 1")
        A(f"s_add_u32 {s(t0)}, {s(t0)}, {s(t1)}")
        A(f"s_mul_i32 {s(t0)}, {s(t0)}, 147")
        A(f"s_lshr_b32 {s(t0)}, {s(t0)}, 11")
        A(f"v_min_u32 {v(vx)}, 27, v1")
        A(f"v_lshl_add_u32 {v(vPW)}, {v(vx)}, 2, {s(t0)}")
        A(f"s_mul_i32 {s(t1)}, {s(S_WV)}, 28")
        A(f"s_add_u32 {s(t1)}, {s(t1)}, {112 - 32}")
        A(f"v_min_u32 {v(vy)}, 59, v1")
        A(f"v_add_u32 {v(vy)}, {s(t1)}, {v(vy)}")
        A(f"v_cmp_gt_u32 vcc, 32, v1")
        A(f"v_cndmask_b32 {v(vPW)}, {v(vy)}, {v(vPW)}, vcc")
        A(f"v_lshlrev_b32 {v(vPW)}, 7, {v(vPW)}")
        A(f"v_add_u32 {v(vPW)}, {FL + FQ * 128}, {v(vPW)}")
        A(f"s_add_u32 {s(t1)}, {s(sKV)}, {KVP}")
        self.poll(vPa, vPt)
        A.barrier()
        if self.o.get("w_early", 1):
            A(f"s_lshl_b32 {s(t0)}, {s(self.wr['sWB'])}, 7")
            A(f"s_add_u32 {s(t0)}, {s(t0)}, {FL + FQ * 128}")
            self.flag_store(t0)
        self.stamp(5)
        vKV = 8
        for h in range(2):
            A(f"buffer_load_dwordx4 {v(vKV + 4 * h, 4)}, {v(vL16)}, {s(R_WS, 4)}, {s(t1)} offen offset:{1024 * h} sc1")
        vQn, vRs, vMs = 144, 152, 160
        A(f"s_add_u32 {s(t1)}, {s(sKV)}, {QP}")
        for h in range(2):
            A(f"buffer_load_dwordx4 {v(vQn + 4 * h, 4)}, {v(vL16)}, {s(R_WS, 4)}, {s(t1)} offen offset:{1024 * h} sc1")
        A(f"s_lshl_b32 {s(t0)}, {s(S_WV)}, 11")
        A(f"s_add_u32 {s(t1)}, {s(t0)}, {STR}")
        A(f"s_add_u32 {s(t2)}, {s(t0)}, {STM}")
        for h in range(2):
            A(f"buffer_load_dwordx4 {v(vRs + 4 * h, 4)}, {v(vL16)}, {s(R_WS, 4)}, {s(t1)} offen offset:{1024 * h} sc1")
            A(f"buffer_load_dwordx4 {v(vMs + 4 * h, 4)}, {v(vL16)}, {s(R_WS, 4)}, {s(t2)} offen offset:{1024 * h} sc1")
        vPS, vPA, vPG, vPD, vPar = 168, 170, 172, 174, 176
        vMP, vPP, vGP = 186, 188, 208
        A(f"v_lshrrev_b32 {v(vx)}, 3, v1")
        A(f"v_mul_u32_u24 {v(vx)}, 1792, {v(vx)}")
        A(f"v_and_b32 {v(vy)}, 7, v1")
        A(f"v_cmp_gt_u32 vcc, 5, {v(vy)}")
        A(f"v_mul_u32_u24 {v(vy)}, {MPL}, {v(vy)}")
        A(f"v_add_u32 {v(vx)}, {v(vx)}, {v(vy)}")
        A(f"s_lshl_b32 {s(t0)}, {s(S_CP)}, 3")
        A(f"s_add_u32 {s(t0)}, {s(t0)}, {MODF}")
        A(f"v_add_u32 {v(vx)}, {s(t0)}, {v(vx)}")
        A(f"v_mov_b32 {v(vy)}, 0x80000000")
        A(f"v_cndmask_b32 {v(vx)}, {v(vy)}, {v(vx)}, vcc")
        A(f"buffer_load_dwordx2 {v(vMP, 2)}, {v(vx)}, {s(R_WS, 4)}, 0 offen sc1")
        self.srd(R_A, P_D, 896)
        A(f"s_lshl_b32 {s(t0)}, {s(S_CP)}, 2")
        A(f"v_mov_b32 {v(vy)}, {s(t0)}")
        A(f"buffer_load_dword {v(vPD + 1)}, {v(vy)}, {s(R_A, 4)}, 0 offen")
        A(f"v_lshlrev_b32 {v(vx)}, 3, v0")
        for pl in range(5):
            A(f"s_mov_b32 {s(t0)}, {MODF + pl * MPL + 4 * 1792}")
            A(f"s_mov_b32 {s(t1)}, {MODF + pl * MPL + 3 * 1792}")
            A(f"buffer_load_dwordx2 {v(vPP + 4 * pl, 2)}, {v(vx)}, {s(R_WS, 4)}, {s(t0)} offen sc1")
            A(f"buffer_load_dwordx2 {v(vPP + 4 * pl + 2, 2)}, {v(vx)}, {s(R_WS, 4)}, {s(t1)} offen sc1")
        A(f"v_lshlrev_b32 {v(vy)}, 2, v1")
        A(f"s_lshl_b32 {s(t2)}, {s(S_J)}, 8")
        for pl in range(5):
            A(f"s_add_u32 {s(t0)}, {s(t2)}, {MODF + pl * MPL + 5 * 1792}")
            A(f"buffer_load_dword {v(vGP + pl)}, {v(vy)}, {s(R_WS, 4)}, {s(t0)} offen sc1")
        if not self.o.get("w_early", 1):
            self.w_stores()
        vP = 22
        A.await_regs(v(vKV, 8))
        for h in range(2):
            d = vKV + 4 * h
            for e, sel in ((0, S_PERM_LO), (1, S_PERM_HI)):
                o = vP + 4 * h + 2 * e
                A(f"v_perm_b32 {v(o)}, {v(d + 2)}, {v(d + 3)}, {s(sel)}")
                A(f"v_perm_b32 {v(o + 1)}, {v(d)}, {v(d + 1)}, {s(sel)}")
        for h in range(2):
            for e in range(2):
                o = vP + 4 * h + 2 * e
                A(f"ds_write_b64 {v(vUW)}, {v(o, 2)} offset:{L_UR + 4608 * e + (512 if h == 0 else 0)}")
        A.barrier()
        self.stamp(6)
        ACC = 32
        BS = [64, 96]
        AR = 128

        def ldB(rp, m):
            A(f"ds_read_b128 {v(BS[rp & 1] + 4 * m, 4)}, {v(vaB)} offset:{64 * rp + 512 * (7 - m)}")

        def ldA(idx):
            rp, q = divmod(idx, 8)
            r = AR + 4 * (idx % 4)
            A(f"ds_read_b64 {v(r, 2)}, {v(vaA)} offset:{64 * rp + 512 * q}")
            A(f"ds_read_b64 {v(r + 2, 2)}, {v(vaA)} offset:{64 * rp + 512 * q + 8}")

        ldA(0)
        for m in range(8):
            ldB(0, m)
        ldA(1)
        ldA(2)
        nm = 0
        self.bg_setup()
        for rp in range(4):
            for q in range(8):
                idx = rp * 8 + q
                ar = AR + 4 * (idx % 4)
                first = True
                for n in range(q, 8):
                    c = "0" if (rp == 0 and q == 0) else v(ACC + 4 * n, 4)
                    if first:
                        regs = [v(ar, 4)]
                        if q == 0:
                            regs.append(v(BS[rp & 1], 32))
                        A.await_regs(*regs)
                    A(f"v_mfma_f32_16x16x32_bf16 {v(ACC + 4 * n, 4)}, {v(ar, 4)}, {v(BS[rp & 1] + 4 * (n - q), 4)}, {c}")
                    nm += 1
                    if first:
                        first = False
                        if idx + 3 < 32:
                            ldA(idx + 3)
                        if rp < 3 and 0 <= q <= 3:
                            ldB(rp + 1, 2 * q)
                            ldB(rp + 1, 2 * q + 1)
                    if rp >= 2 and self.o.get("conv_pace", 0) and nm % self.o["conv_pace"] == 0:
                        self.bg_emit(1)
        self.stamp(7)
        vRW, vRR, vSt = 183, 19, 182
        A(f"v_and_b32 {v(vx)}, 15, v1")
        A(f"v_mul_u32_u24 {v(vRW)}, 80, {v(vx)}")
        A(f"v_lshrrev_b32 {v(vy)}, 4, v1")
        A(f"v_lshl_add_u32 {v(vRW)}, {v(vy)}, 4, {v(vRW)}")
        A(f"s_mul_i32 {s(t0)}, {s(S_WV)}, 10240")
        A(f"s_add_u32 {s(t0)}, {s(t0)}, {L_RED}")
        A(f"v_add_u32 {v(vRW)}, {s(t0)}, {v(vRW)}")
        A(f"v_mul_u32_u24 {v(vSt)}, 57344, {v(vy)}")
        A(f"v_lshl_add_u32 {v(vSt)}, {v(vx)}, 4, {v(vSt)}")
        for n in range(8):
            A(f"ds_write_b128 {v(vRW)}, {v(ACC + 4 * n, 4)} offset:{1280 * n}")
        A(f"v_lshrrev_b32 {v(vx)}, 2, v1")
        A(f"v_mul_u32_u24 {v(vRR)}, 80, {v(vx)}")
        A(f"v_and_b32 {v(vy)}, 3, v1")
        A(f"v_lshl_add_u32 {v(vRR)}, {v(vy)}, 4, {v(vRR)}")
        A(f"s_mul_i32 {s(t0)}, {s(S_WV)}, 2560")
        A(f"s_add_u32 {s(t0)}, {s(t0)}, {L_RED}")
        A(f"v_add_u32 {v(vRR)}, {s(t0)}, {v(vRR)}")
        sX = S_OFF + 3
        A(f"s_mul_i32 {s(sX)}, {s(S_WV)}, {2 * 229376}")
        A(f"s_lshl_b32 {s(t0)}, {s(S_CP)}, 8")
        A(f"s_add_u32 {s(sX)}, {s(sX)}, {s(t0)}")
        A(f"s_add_u32 {s(sX)}, {s(sX)}, {X1P}")
        A(f"s_add_u32 {s(t1)}, {s(sX)}, 229376")
        U, Q, N = 64, 80, 200
        A.await_regs(v(vMP, 2), v(vPP, 20), v(vGP, 5))
        for mod in ("quad_perm:[1,0,3,2]", "quad_perm:[2,3,0,1]", "row_half_mirror"):
            for k in range(2):
                A(f"v_add_f32_dpp {v(vMP + k)}, {v(vMP + k)}, {v(vMP + k)} {mod} row_mask:0xf bank_mask:0xf")
        for pl in (1, 3):
            A(f"v_pk_add_f32 {v(vPP + 4 * pl - 4, 2)}, {v(vPP + 4 * pl - 4, 2)}, {v(vPP + 4 * pl, 2)}")
            A(f"v_pk_add_f32 {v(vPP + 4 * pl - 2, 2)}, {v(vPP + 4 * pl - 2, 2)}, {v(vPP + 4 * pl + 2, 2)}")
            A(f"v_add_f32 {v(vGP + pl - 1)}, {v(vGP + pl - 1)}, {v(vGP + pl)}")
        A(f"v_cvt_pk_bf16_f32 {v(vMP)}, {v(vMP)}, {v(vMP + 1)}")
        A(f"v_pk_add_f32 {v(vPP, 2)}, {v(vPP, 2)}, {v(vPP + 8, 2)}")
        A(f"v_pk_add_f32 {v(vPP + 2, 2)}, {v(vPP + 2, 2)}, {v(vPP + 10, 2)}")
        A(f"v_add_f32 {v(vGP)}, {v(vGP)}, {v(vGP + 2)}")
        r0, r1, r2 = T + 12, T + 13, T + 14
        A(f"v_readlane_b32 {s(r0)}, {v(vMP)}, 0")
        A(f"v_readlane_b32 {s(r1)}, {v(vMP)}, 8")
        A(f"v_readlane_b32 {s(r2)}, {v(vMP)}, 16")
        A(f"v_pk_add_f32 {v(vPP, 2)}, {v(vPP, 2)}, {v(vPP + 16, 2)}")
        A(f"v_pk_add_f32 {v(vPP + 2, 2)}, {v(vPP + 2, 2)}, {v(vPP + 18, 2)}")
        A(f"v_add_f32 {v(vGP)}, {v(vGP)}, {v(vGP + 4)}")
        for reg, sr in ((vPS, r0), (vPA, r1), (vPG, r2)):
            A(f"v_lshlrev_b32 {v(reg)}, 16, {s(sr)}")
            A(f"v_mov_b32 {v(reg + 1)}, {s(sr)}")
        for reg in (vPS, vPA, vPG):
            A(f"v_and_b32 {v(reg + 1)}, {s(S_MASKHI)}, {v(reg + 1)}")
        A(f"v_cvt_pk_bf16_f32 {v(vPar)}, {v(vPP)}, {v(vPP + 1)}")
        A(f"v_cvt_pk_bf16_f32 {v(vPar + 2)}, {v(vPP + 2)}, {v(vPP + 3)}")
        A(f"v_cvt_pk_bf16_f32 {v(vPar + 4)}, {v(vGP)}, {v(vGP)}")
        A(f"v_add_f32 {v(vPA)}, 1.0, {v(vPA)}")
        A(f"v_add_f32 {v(vPA + 1)}, 1.0, {v(vPA + 1)}")
        A(f"v_and_b32 {v(vPar + 1)}, {s(S_MASKHI)}, {v(vPar)}")
        A(f"v_lshlrev_b32 {v(vPar)}, 16, {v(vPar)}")
        A(f"v_and_b32 {v(vPar + 3)}, {s(S_MASKHI)}, {v(vPar + 2)}")
        A(f"v_lshlrev_b32 {v(vPar + 2)}, 16, {v(vPar + 2)}")
        A(f"v_and_b32 {v(vPar + 4)}, {s(S_MASKHI)}, {v(vPar + 4)}")
        A(f"v_cvt_pk_bf16_f32 {v(vPA)}, {v(vPA)}, {v(vPA + 1)}")
        A(f"v_add_f32 {v(vPar)}, 1.0, {v(vPar)}")
        A(f"v_add_f32 {v(vPar + 1)}, 1.0, {v(vPar + 1)}")
        A(f"v_and_b32 {v(vPA + 1)}, {s(S_MASKHI)}, {v(vPA)}")
        A(f"v_lshlrev_b32 {v(vPA)}, 16, {v(vPA)}")
        A(f"v_cvt_pk_bf16_f32 {v(vPar)}, {v(vPar)}, {v(vPar + 1)}")
        A(f"v_and_b32 {v(vPar + 1)}, {s(S_MASKHI)}, {v(vPar)}")
        A(f"v_lshlrev_b32 {v(vPar)}, 16, {v(vPar)}")
        A.await_regs(v(vQn, 8), v(vRs, 8), v(vMs, 8), v(vPD + 1))
        A(f"v_lshlrev_b32 {v(vPD)}, 16, {v(vPD + 1)}")
        A(f"v_and_b32 {v(vPD + 1)}, {s(S_MASKHI)}, {v(vPD + 1)}")
        for h in range(2):
            for e in range(2):
                for r in range(4):
                    for dst, src in ((U, vKV), (Q, vQn)):
                        d = dst + 8 * h + 4 * e + r
                        if e == 0:
                            A(f"v_lshlrev_b32 {v(d)}, 16, {v(src + 4 * h + r)}")
                        else:
                            A(f"v_and_b32 {v(d)}, {s(S_MASKHI)}, {v(src + 4 * h + r)}")
        for h in range(2):
            for e in range(2):
                for k in (0, 2):
                    o = 8 * h + 4 * e + k
                    A(f"v_pk_fma_f32 {v(N + o, 2)}, {v(Q + o, 2)}, {v(vRs + 4 * h + k, 2)}, {v(vMs + 4 * h + k, 2)} neg_lo:[0,0,1] neg_hi:[0,0,1]")
        for h in range(2):
            for e in range(2):
                for k in (0, 2):
                    o = 8 * h + 4 * e + k
                    A(f"v_pk_fma_f32 {v(N + o, 2)}, {v(N + o, 2)}, {v(vPA, 2)}, {v(vPS, 2)} op_sel:[0,{e},{e}] op_sel_hi:[1,{e},{e}]")
        for h in range(2):
            for e in range(2):
                for k in (0, 2):
                    o = 8 * h + 4 * e + k
                    A(f"v_pk_mul_f32 {v(N + o, 2)}, {v(N + o, 2)}, {v(vPG, 2)} op_sel:[0,{e}] op_sel_hi:[1,{e}]")
        if self.o.get("w_early", 1):
            A.barrier()
        else:
            A.wait_vm(0)
            A.barrier()
            A(f"s_lshl_b32 {s(t0)}, {s(self.wr['sWB'])}, 7")
            A(f"s_add_u32 {s(t0)}, {s(t0)}, {FL + FQ * 128}")
            self.flag_store(t0)
        self.stamp(30)
        vY = 96
        for h in range(2):
            for w in range(4):
                A(f"ds_read_b128 {v(vY + 16 * h + 4 * w, 4)}, {v(vRR)} offset:{10240 * w + 1280 * h}")
        A(f"s_mov_b32 {s(t2)}, 0x{f32bits(LOG2E):08x}")
        A(f"v_lshlrev_b32 {v(vx)}, 4, v0")
        A(f"v_add_u32 {v(vx)}, {L_PAR}, {v(vx)}")
        A(f"v_lshlrev_b32 {v(vy)}, 2, v1")
        A(f"v_add_u32 {v(vy)}, {L_GB}, {v(vy)}")
        A.await_regs(v(vPar, 4), v(vPar + 4))
        for r_ in range(vPar, vPar + 4):
            A(f"v_mul_f32 {v(r_)}, {s(t2)}, {v(r_)}")
        A(f"ds_write_b128 {v(vx)}, {v(vPar, 4)}")
        A(f"ds_write_b32 {v(vy)}, {v(vPar + 4)}")
        vOut = 128
        for h in range(2):
            A.await_regs(v(vY + 16 * h, 16))
            ys = [(e, k, vY + 16 * h + 8 * e + k, 8 * h + 4 * e + k) for e in range(2) for k in (0, 2)]
            for e, k, y, o in ys:
                A(f"v_pk_add_f32 {v(y, 2)}, {v(y, 2)}, {v(y + 4, 2)}")
            for e, k, y, o in ys:
                A(f"v_pk_fma_f32 {v(y, 2)}, {v(U + o, 2)}, {v(vPD, 2)}, {v(y, 2)} op_sel:[0,{e},0] op_sel_hi:[1,{e},1]")
            for e, k, y, o in ys:
                A(f"v_pk_fma_f32 {v(y, 2)}, {v(N + o, 2)}, {v(y, 2)}, {v(Q + o, 2)}")
            for r in range(4):
                A(f"v_cvt_pk_bf16_f32 {v(vOut + 4 * h + r)}, {v(vY + 16 * h + r)}, {v(vY + 16 * h + 8 + r)}")
            A(f"buffer_store_dwordx4 {v(vOut + 4 * h, 4)}, {v(vSt)}, {s(R_WS, 4)}, {s(sX if h == 0 else t1)} offen sc1")
        self.stamp(8)
        A(f"s_lshl_b32 {s(t0)}, {s(S_CP)}, 7")
        A(f"s_add_u32 {s(t0)}, {s(t0)}, {FL + F2 * 128}")
        mark = A.vm_count
        A(f"buffer_load_dword {v(vPR)}, {v(vPW)}, {s(R_WS, 4)}, 0 offen sc1")
        A.wait_vm(A.vm_count - mark)
        A.barrier()
        self.flag_store(t0)
        self.poll1_check(vPW, vPR)
        self.bg_emit(self.n_burst_t2)
        self.stamp(9)

    def phase_b(self):
        A = self.A
        T = S_T
        t0, t1, t2 = T, T + 1, T + 2
        vPa, vPt = 2, 4
        A(f"v_min_u32 {v(vPa)}, 55, v1")
        A(f"s_mul_i32 {s(t0)}, {s(S_WV)}, 56")
        A(f"v_add_u32 {v(vPa)}, {s(t0)}, {v(vPa)}")
        A(f"v_lshlrev_b32 {v(vPa)}, 7, {v(vPa)}")
        A(f"v_add_u32 {v(vPa)}, {FL + F2 * 128}, {v(vPa)}")
        self.poll(vPa, vPt)
        A.barrier()
        self.stamp(10)
        A(f"s_lshr_b32 {s(t0)}, {s(S_WV)}, 1")
        A(f"s_lshl_b32 {s(t0)}, {s(t0)}, 10")
        A(f"v_add_u32 v{V_W2O[0]}, {s(t0)}, v{V_L16}")
        A(f"s_sub_u32 {s(t0)}, 1024, {s(t0)}")
        A(f"v_add_u32 v{V_W2O[1]}, {s(t0)}, v{V_L16}")
        vL16 = 4
        A(f"v_lshlrev_b32 {v(vL16)}, 4, v1")
        A(f"s_mul_i32 {s(t1)}, {s(S_WV)}, 14336")
        A(f"s_mul_i32 {s(t0)}, {s(S_RB)}, 57344")
        A(f"s_add_u32 {s(t0)}, {s(t0)}, {s(t1)}")
        A(f"s_add_u32 {s(t0)}, {s(t0)}, {X1P}")
        A(f"s_add_u32 {s(t1)}, {s(t1)}, {L_XD}")
        A(f"s_mov_b32 m0, {s(t1)}")
        for i in range(14):
            if i and i % 4 == 0:
                A(f"s_add_u32 {s(t0)}, {s(t0)}, 4096")
                A(f"s_add_u32 m0, m0, 4096")
            A.dma(f"buffer_load_dwordx4 {v(vL16)}, {s(R_WS, 4)}, {s(t0)} offen offset:{1024 * (i % 4)} sc1 lds", f"x{i}")
        skip = self.lab("ep")
        A(f"s_cmp_lg_u32 {s(S_CP)}, 0")
        A(f"s_cbranch_scc1 {skip}")
        A.cond_begin()
        A(f"s_mov_b32 {s(t0)}, 0")
        self.flag_store(t0)
        A.cond_end()
        A.label(skip)
        if self.o.get("pretouch", 0):
            A(f"s_mul_i32 {s(t0)}, {s(S_RB)}, 112")
            A(f"s_lshl_b32 {s(t2)}, {s(S_J)}, 4")
            A(f"s_add_u32 {s(t0)}, {s(t0)}, {s(t2)}")
            A(f"s_lshl_b32 {s(t2)}, {s(S_WV)}, 2")
            A(f"s_add_u32 {s(t0)}, {s(t0)}, {s(t2)}")
            A(f"s_lshl_b32 {s(t0)}, {s(t0)}, 11")
            A(f"s_add_u32 {s(t0)}, {s(t0)}, {HF}")
            A(f"v_lshlrev_b32 v6, 7, v1")
            A(f"buffer_load_dword v252, v6, {s(R_WS, 4)}, {s(t0)} offen")
        X = 88
        vXR = 5
        A(f"v_lshlrev_b32 {v(vXR)}, 2, v1")
        A(f"v_add_u32 {v(vXR)}, {s(t1)}, {v(vXR)}")

        XR = 72

        def ldX(g):
            A.need(f"x{g}")
            r = XR + 4 * (g % 4)
            A(f"ds_read2st64_b32 {v(r, 2)}, {v(vXR)} offset0:{4 * g} offset1:{4 * g + 1}")
            A(f"ds_read2st64_b32 {v(r + 2, 2)}, {v(vXR)} offset0:{4 * g + 2} offset1:{4 * g + 3}")

        vS = 8
        for g in range(3):
            ldX(g)
        self.stamp(27)
        for g in range(14):
            src = XR + 4 * (g % 4)
            A.await_regs(v(src, 4))
            if g + 3 < 14:
                ldX(g + 3)
            for k in range(4):
                e = 4 * g + k
                r = X + 2 * e
                A(f"v_lshlrev_b32 {v(r)}, 16, {v(src + k)}")
                A(f"v_and_b32 {v(r + 1)}, {s(S_MASKHI)}, {v(src + k)}")
            for k in range(4):
                e = 4 * g + k
                r = X + 2 * e
                s1, s2 = vS + 2 * (e & 1), vS + 4 + 2 * (e & 1)
                if e < 2:
                    A(f"v_mov_b32 {v(s1)}, {v(r)}")
                    A(f"v_mov_b32 {v(s1 + 1)}, {v(r + 1)}")
                    A(f"v_pk_mul_f32 {v(s2, 2)}, {v(r, 2)}, {v(r, 2)}")
                else:
                    A(f"v_pk_add_f32 {v(s1, 2)}, {v(s1, 2)}, {v(r, 2)}")
                    A(f"v_pk_fma_f32 {v(s2, 2)}, {v(r, 2)}, {v(r, 2)}, {v(s2, 2)}")
            if g >= 14 - self.o.get("n_bstat", 11):
                self.bg_emit(1)
        A(f"v_pk_add_f32 {v(vS, 2)}, {v(vS, 2)}, {v(vS + 2, 2)}")
        A(f"v_pk_add_f32 {v(vS + 4, 2)}, {v(vS + 4, 2)}, {v(vS + 6, 2)}")
        A(f"v_add_f32 {v(vS)}, {v(vS)}, {v(vS + 1)}")
        A(f"v_add_f32 {v(vS + 1)}, {v(vS + 4)}, {v(vS + 5)}")
        vSW = 5
        A(f"v_lshlrev_b32 {v(vSW)}, 3, v1")
        A(f"v_add_u32 {v(vSW)}, {L_STAT}, {v(vSW)}")
        A(f"s_lshl_b32 {s(t0)}, {s(S_WV)}, 9")
        A(f"v_add_u32 v6, {s(t0)}, {v(vSW)}")
        A(f"ds_write_b64 v6, {v(vS, 2)}")
        self.stamp(28)
        vPb = 6
        vHW = 7
        A(f"v_lshrrev_b32 v22, 5, v1")
        A(f"v_lshlrev_b32 {v(vHW)}, 10, v22")
        A(f"v_and_b32 v22, 31, v1")
        A(f"v_lshl_add_u32 {v(vHW)}, v22, 4, {v(vHW)}")
        A(f"s_mul_i32 {s(t0)}, {s(S_WV)}, {7 * 2048}")
        A(f"v_add_u32 {v(vHW)}, {s(t0)}, {v(vHW)}")
        A(f"s_mul_i32 {s(t0)}, {s(S_WV)}, 896")
        A(f"s_add_u32 {s(t0)}, {s(t0)}, {L_PAR}")
        A.barrier()
        for w in range(4):
            A(f"ds_read_b64 {v(16 + 2 * w, 2)}, {v(vSW)} offset:{512 * w}")
        A(f"v_mov_b32 {v(vPb)}, {s(t0)}")
        def PRq(e):
            k = e % 12
            return 24 + 4 * k if k < 8 else 72 + 4 * (k - 8)
        OUT = 56

        def ldP(e):
            if self.o.get("b_nopar"):
                return
            A(f"ds_read_b128 {v(PRq(e), 4)}, {v(vPb)} offset:{16 * e}")

        for e in range(8):
            ldP(e)
        A("v_pk_add_f32 v[16:17], v[16:17], v[18:19]")
        A("v_pk_add_f32 v[20:21], v[20:21], v[22:23]")
        A("v_pk_add_f32 v[16:17], v[16:17], v[20:21]")
        A(f"s_mov_b32 {s(t0)}, 0x{f32bits(1.0 / 448):08x}")
        A(f"s_mov_b32 {s(t1)}, 0x{f32bits(1e-5):08x}")
        A(f"v_mul_f32 v16, {s(t0)}, v16")
        A(f"v_mul_f32 v17, {s(t0)}, v17")
        A("v_fma_f32 v17, -v16, v16, v17")
        A("v_max_f32 v17, 0, v17")
        A(f"v_add_f32 v17, {s(t1)}, v17")
        vR, vM = 18, 20
        A(f"v_rsq_f32 {v(vR)}, v17")
        A(f"v_mul_f32 {v(vM)}, v16, {v(vR)}")
        self.stamp(29)
        for e0 in range(0, 56, 4):
            A.await_regs(*[v(PRq(e0 + k), 4) for k in range(4)])
            for k in range(8, 12):
                if e0 + k < 56:
                    ldP(e0 + k)
            for e in range(e0, e0 + 4):
                r = X + 2 * e
                A(f"v_pk_fma_f32 {v(r, 2)}, {v(r, 2)}, {v(vR, 2)}, {v(vM, 2)} op_sel_hi:[1,0,0] neg_lo:[0,0,1] neg_hi:[0,0,1]")
            for e in range(e0, e0 + 4):
                r = X + 2 * e
                p = PRq(e)
                A(f"v_pk_fma_f32 {v(r, 2)}, {v(r, 2)}, {v(p, 2)}, {v(p + 2, 2)}")
            sp, k0 = divmod(e0, 8)
            o = OUT + 8 * (sp & 1)
            for e in range(e0, e0 + 4):
                r = X + 2 * e
                A(f"v_cvt_pk_bf16_f32 {v(o + e % 8)}, {v(r)}, {v(r + 1)}")
            if not self.o.get("b_nowr"):
                A(f"ds_write_b128 {v(vHW)}, {v(o + k0, 4)} offset:{L_H2 + 2048 * sp + (512 if k0 else 0)}")
            nbn = self.o.get("n_bnorm", 27)
            g_ = e0 // 4
            self.bg_emit(nbn * (g_ + 1) // 14 - nbn * g_ // 14)
        while self.bg_left("w1") > 0:
            self.bg_emit(1)
        A.barrier()
        self.stamp(11)

    def w2reg(self, f):
        if f < 41:
            return v(88 + 4 * f, 4)
        if f < 49:
            return a(224 + 4 * (f - 41), 4)
        return a(4 * (f - 49), 4)

    def bg_setup(self):
        A = self.A
        t0, t1 = S_T, S_T + 1
        A(f"s_lshl_b32 {s(t0)}, {s(S_J)}, 3")
        A(f"s_lshl_b32 {s(t1)}, {s(S_WV)}, 1")
        A(f"s_add_u32 {s(t0)}, {s(t0)}, {s(t1)}")
        A(f"s_mul_i32 {s(S_W1B)}, {s(t0)}, {28 * 1024}")
        A(f"s_add_u32 {s(S_W1B)}, {s(S_W1B)}, {W1F}")
        A(f"s_lshl_b32 {s(t0)}, {s(S_J)}, 2")
        A(f"s_add_u32 {s(t0)}, {s(t0)}, {s(S_WV)}")
        A(f"s_mul_i32 {s(S_W2B)}, {s(t0)}, {56 * 1024}")
        A(f"s_add_u32 {s(S_W2B)}, {s(S_W2B)}, {W2F}")
        A(f"v_lshlrev_b32 v{V_L16}, 4, v1")
        self.bgq = [("w1", f) for f in range(56)] + [("w2", f) for f in self.w2_order]
        self.bg_cur = {"w1": 0, "w2": 0}

    def bg_emit(self, n=1):
        A = self.A
        if self.o["nobg"]:
            del self.bgq[:n]
            return
        for _ in range(n):
            if not self.bgq:
                return
            kind, f = self.bgq.pop(0)
            base = S_W1B if kind == "w1" else S_W2B
            blk = f // 4
            if blk != self.bg_cur[kind]:
                d = (blk - self.bg_cur[kind]) * 4096
                A(f"s_add_u32 {s(base)}, {s(base)}, {d}" if d > 0 else f"s_sub_u32 {s(base)}, {s(base)}, {-d}")
                self.bg_cur[kind] = blk
            if kind == "w1":
                A(f"buffer_load_dwordx4 {a(4 * f, 4)}, v{V_L16}, {s(R_WS, 4)}, {s(base)} offen offset:{1024 * (f % 4)} sc1")
            else:
                A(f"buffer_load_dwordx4 {self.w2reg(f)}, v{V_W2O[f & 1]}, {s(R_WS, 4)}, {s(base)} offen offset:{2048 * ((f % 4) >> 1)} sc1")

    def bg_left(self, kind):
        return sum(1 for k, _ in self.bgq if k == kind)

    def phase_c(self):
        A = self.A
        t0 = S_T
        if self.o.get("force_global", 1):
            self.phase_c_body(" sc1")
            return
        glob, join = self.lab("cglob"), self.lab("cjoin")
        A(f"s_cmp_eq_u32 {s(S_LOCAL)}, 0")
        A(f"s_cbranch_scc1 {glob}")
        st, q, cur = A.snapshot(), list(self.bgq), dict(self.bg_cur)
        self.phase_c_body("")
        A(f"s_branch {join}")
        A.restore(st)
        self.bgq, self.bg_cur = q, cur
        A.label(glob)
        self.phase_c_body(" sc1")
        A.label(join)

    def phase_c_body(self, sc):
        A = self.A
        T = S_T
        t0, t1 = T, T + 1
        sH, sH2 = S_OFF + 5, S_OFF + 7
        A(f"s_mul_i32 {s(t0)}, {s(S_RB)}, 112")
        A(f"s_lshl_b32 {s(t1)}, {s(S_J)}, 4")
        A(f"s_add_u32 {s(t0)}, {s(t0)}, {s(t1)}")
        A(f"s_lshl_b32 {s(t1)}, {s(S_WV)}, 2")
        A(f"s_add_u32 {s(t0)}, {s(t0)}, {s(t1)}")
        A(f"s_lshl_b32 {s(sH)}, {s(t0)}, 11")
        A(f"s_add_u32 {s(sH)}, {s(sH)}, {HF}")
        A(f"s_add_u32 {s(sH2)}, {s(sH)}, 4096")
        sC = S_OFF + 6
        A(f"s_mov_b32 {s(sC)}, 0x{f32bits(LOG2E):08x}")
        ACC = [24, 40]
        NR = 6
        RING = 4
        TMP = 68
        OUT = 76

        def ring(i):
            k = i % NR
            return RING + 4 * k if k < 5 else 56

        def store(g, off):
            base, o = (sH2, off - 4096) if off >= 4096 else (sH, off)
            return f"buffer_store_dwordx4 {v(OUT + 4 * g, 4)}, v{V_L16}, {s(R_WS, 4)}, {s(base)} offen offset:{o}{sc}"

        def silu_ops(tile):
            ft, th = divmod(tile, 2)
            acc = ACC[tile & 1]
            seq = []
            lag = (0, 2, 3, 5)
            for step in range(16 + lag[-1] + 2):
                for k in range(4):
                    i = step - lag[k]
                    if 0 <= i < 16:
                        x, tmp = acc + i, TMP + (i % 8)
                        if k == 0:
                            seq.append((8, f"v_exp_f32 {v(tmp)}, -{v(x)}"))
                        elif k == 1:
                            seq.append((4, f"v_fma_f32 {v(tmp)}, {v(tmp)}, {s(sC)}, {s(sC)}"))
                        elif k == 2:
                            seq.append((8, f"v_rcp_f32 {v(tmp)}, {v(tmp)}"))
                        else:
                            seq.append((4, f"v_mul_f32 {v(x)}, {v(x)}, {v(tmp)}"))
                i = step - lag[-1] - 1
                if 0 <= i < 16 and i % 2 == 1:
                    g, kk = divmod(i // 2, 4)
                    seq.append((4, f"v_cvt_pk_bf16_f32 {v(OUT + 4 * g + kk)}, {v(acc + i - 1)}, {v(acc + i)}"))
                    if kk == 3:
                        off = (2 * (2 * ft + g) + th) * 1024
                        seq.append((4, store(g, off)))
            return seq

        def ldH(idx):
            tile, st = divmod(idx, 28)
            th = tile & 1
            A(f"ds_read_b128 {v(ring(idx), 4)}, v{V_L16} offset:{L_H2 + 2048 * st + 1024 * th}")

        for i_ in range(NR - 2):
            ldH(i_)
        pend = []
        nbg = self.n_bg_c
        done_bg = 0
        CAP = self.o.get("c_cap", 26)
        for tile in range(4):
            ft = tile >> 1
            acc = ACC[tile & 1]
            for st in range(28):
                idx = tile * 28 + st
                fixed = 0
                if idx % 2 == 0:
                    A.await_regs(*[v(ring(i_), 4) for i_ in (idx, idx + 1) if i_ < 112])
                c = "0" if st == 0 else v(acc, 16)
                A(f"v_mfma_f32_32x32x16_bf16 {v(acc, 16)}, {a(4 * (28 * ft + st), 4)}, {v(ring(idx), 4)}, {c}")
                if idx % 2 == 0:
                    for i_ in (idx + NR - 2, idx + NR - 1):
                        if i_ < 112:
                            ldH(i_)
                            fixed += 4
                else:
                    fixed += 4
                    while done_bg < nbg * (idx + 1) // 112 and self.bgq:
                        assert self.bgq[0][0] == "w1" or self.bgq[0][1] < 49 or idx >= 36
                        self.bg_emit(1)
                        done_bg += 1
                        fixed += 5
                if pend and st >= 2:
                    left_slots = 28 - st
                    need = sum(c_ for c_, _ in pend) - (left_slots - 1) * (CAP - 6)
                    spent = 0
                    while pend and (spent + fixed + pend[0][0] <= CAP or spent < need):
                        cst, ins = pend.pop(0)
                        A(ins)
                        spent += cst
            for cst, ins in pend:
                A(ins)
            pend = silu_ops(tile)
        for _, ins in pend:
            A(ins)
        self.stamp(12)
        A.wait_vm(0)
        A.barrier()
        A(f"s_lshl_b32 {s(t0)}, {s(S_RB)}, 3")
        A(f"s_add_u32 {s(t0)}, {s(t0)}, {s(S_J)}")
        A(f"s_lshl_b32 {s(t0)}, {s(t0)}, 7")
        A(f"s_add_u32 {s(t0)}, {s(t0)}, {FL + F3 * 128}")
        self.flag_store(t0, sc=sc)
        self.bg_emit(len(self.bgq))
        self.stamp(13)

    def phase_d(self):
        A = self.A
        T = S_T
        t0, t1 = T, T + 1
        vPa, vPt = 2, 4
        A(f"v_min_u32 {v(vPa)}, 6, v1")
        A(f"s_lshl_b32 {s(t0)}, {s(S_RB)}, 3")
        A(f"v_add_u32 {v(vPa)}, {s(t0)}, {v(vPa)}")
        A(f"v_lshlrev_b32 {v(vPa)}, 7, {v(vPa)}")
        A(f"v_add_u32 {v(vPa)}, {FL + F3 * 128}, {v(vPa)}")
        self.poll(vPa, vPt)
        self.stamp(14)
        sH = S_OFF
        A(f"s_mul_i32 {s(t0)}, {s(S_RB)}, 112")
        A(f"s_mul_i32 {s(t1)}, {s(S_WV)}, 28")
        A(f"s_add_u32 {s(t0)}, {s(t0)}, {s(t1)}")
        A(f"s_lshl_b32 {s(sH)}, {s(t0)}, 11")
        A(f"s_add_u32 {s(sH)}, {s(sH)}, {HF}")
        NSLOT = 49
        HB = 28
        hl = {0: " sc1", 1: "", 2: " nt", 3: " sc0"}[self.o.get("hload", 0)]
        vH = 4
        A(f"s_and_b32 {s(t0)}, {s(S_WV)}, 1")
        A(f"s_lshl_b32 {s(t0)}, {s(t0)}, 10")
        A(f"v_add_u32 {v(vH)}, {s(t0)}, v{V_L16}")
        A(f"s_sub_u32 {s(t0)}, 1024, {s(t0)}")
        A(f"v_add_u32 {v(vH + 1)}, {s(t0)}, v{V_L16}")

        def hreg(i):
            return a(HB + 4 * (i % NSLOT), 4)

        def ldH(i):
            if i % 4 == 0 and i:
                A(f"s_add_u32 {s(sH)}, {s(sH)}, 4096")
            A(f"buffer_load_dwordx4 {hreg(i)}, {v(vH + (i & 1))}, {s(R_WS, 4)}, {s(sH)} offen offset:{2048 * ((i % 4) >> 1)}{hl}")

        PRE = self.o.get("d_pre", 12)
        for i in range(PRE):
            ldH(i)
        vWr, vRd, vG, vX, vO, vt = 8, 11, 12, 13, 14, 15
        for x in range(1, 4):
            A(f"s_xor_b32 {s(t0)}, {s(S_WV)}, {x}")
            A(f"s_mul_i32 {s(t0)}, {s(t0)}, 12288")
            A(f"s_add_u32 {s(t0)}, {s(t0)}, {L_RED2 + (x - 1) * 4096}")
            A(f"v_add_u32 {v(vWr + x - 1)}, {s(t0)}, v{V_L16}")
        A(f"s_mul_i32 {s(t0)}, {s(S_WV)}, 12288")
        A(f"s_add_u32 {s(t0)}, {s(t0)}, {L_RED2}")
        A(f"v_add_u32 {v(vRd)}, {s(t0)}, v{V_L16}")
        A(f"s_lshr_b32 {s(t0)}, {s(S_WV)}, 1")
        A(f"s_and_b32 {s(t1)}, {s(S_WV)}, 1")
        A(f"v_lshrrev_b32 {v(vt)}, 5, v1")
        t2, t3 = T + 2, T + 3
        A(f"s_lshl_b32 {s(t2)}, {s(t0)}, 7")
        A(f"s_add_u32 {s(t2)}, {s(t2)}, {L_GB}")
        A(f"v_lshl_add_u32 {v(vG)}, {v(vt)}, 4, {s(t2)}")
        A(f"s_lshl_b32 {s(t2)}, {s(S_J)}, 13")
        A(f"s_lshl_b32 {s(t3)}, {s(t0)}, 12")
        A(f"s_add_u32 {s(t2)}, {s(t2)}, {s(t3)}")
        A(f"s_lshl_b32 {s(t3)}, {s(t1)}, 7")
        A(f"s_add_u32 {s(t2)}, {s(t2)}, {s(t3)}")
        A(f"s_add_u32 {s(t2)}, {s(t2)}, {L_XD}")
        A(f"v_lshl_add_u32 {v(vX)}, {v(vt)}, 9, {s(t2)}")
        A(f"v_and_b32 {v(vO)}, 31, v1")
        A(f"v_lshl_add_u32 {v(vX)}, {v(vO)}, 2, {v(vX)}")
        A(f"s_lshl_b32 {s(t2)}, {s(S_RB)}, 6")
        A(f"s_lshl_b32 {s(t3)}, {s(t1)}, 5")
        A(f"s_add_u32 {s(t2)}, {s(t2)}, {s(t3)}")
        A(f"v_add_u32 {v(vO)}, {s(t2)}, {v(vO)}")
        A(f"v_mul_u32_u24 {v(vO)}, 896, {v(vO)}")
        A(f"s_lshl_b32 {s(t2)}, {s(S_J)}, 7")
        A(f"s_lshl_b32 {s(t3)}, {s(t0)}, 6")
        A(f"s_add_u32 {s(t2)}, {s(t2)}, {s(t3)}")
        A(f"v_lshl_add_u32 {v(vt)}, {v(vt)}, 4, {s(t2)}")
        A(f"v_add_u32 {v(vO)}, {v(vO)}, {v(vt)}")
        self.srd(R_A, P_OUT, 2048 * 896)
        ACC = 24
        nxt = PRE
        for st in range(28):
            for _ in range(2):
                if nxt < 56:
                    ldH(nxt)
                    nxt += 1
            for e1 in range(2):
                i = 2 * st + e1
                for e in range(2):
                    acc = ACC + 16 * (2 * e + e1)
                    c = "0" if st == 0 else v(acc, 16)
                    if self.o.get("d_nomfma"):
                        A.await_regs(hreg(i))
                        continue
                    A(f"v_mfma_f32_32x32x16_bf16 {v(acc, 16)}, {self.w2reg(2 * st + e)}, {hreg(i)}, {c}")
        self.stamp(15)
        GB, XP = 16, 88
        GB = 104
        X1 = 120
        PT = 144
        for g in range(4):
            A(f"ds_read_b128 {v(GB + 4 * g, 4)}, {v(vG)} offset:{32 * g}")
            A(f"ds_read2st64_b32 {v(X1 + 2 * g, 2)}, {v(vX)} offset0:{4 * g} offset1:{4 * g + 1}")
        for x in range(1, 4):
            for g in range(4):
                A(f"ds_write_b128 {v(vWr + x - 1)}, {v(ACC + 16 * x + 4 * g, 4)} offset:{1024 * g}")
        for k in range(8):
            A(f"v_lshlrev_b32 {v(128 + 2 * k)}, 16, {v(X1 + k)}")
            A(f"v_and_b32 {v(129 + 2 * k)}, {s(S_MASKHI)}, {v(X1 + k)}")
        self.stamp(17)
        A.barrier()
        self.stamp(18)
        for k in range(3):
            for g in range(4):
                A(f"ds_read_b128 {v(PT + 16 * k + 4 * g, 4)}, {v(vRd)} offset:{4096 * k + 1024 * g}")
        for k in range(3):
            A.await_regs(v(PT + 16 * k, 16))
            for i in range(8):
                A(f"v_pk_add_f32 {v(ACC + 2 * i, 2)}, {v(ACC + 2 * i, 2)}, {v(PT + 16 * k + 2 * i, 2)}")
        for i in range(8):
            A(f"v_pk_fma_f32 {v(ACC + 2 * i, 2)}, {v(ACC + 2 * i, 2)}, {v(GB + 2 * i, 2)}, {v(128 + 2 * i, 2)}")
        OUT = 192
        for i in range(8):
            A(f"v_cvt_pk_bf16_f32 {v(OUT + i)}, {v(ACC + 2 * i)}, {v(ACC + 2 * i + 1)}")
        for k in (0, 2):
            for i in range(2):
                A(f"v_permlane32_swap_b32 {v(OUT + 2 * k + i)}, {v(OUT + 2 * k + 2 + i)}")
        for k in (0, 2):
            osc = {0: "", 1: " sc1", 2: " nt", 3: " sc0 sc1"}[self.o.get("out_sc", 0)]
            A(f"buffer_store_dwordx4 {v(OUT + 2 * k, 4)}, {v(vO)}, {s(R_A, 4)}, 0 offen offset:{16 * k}{osc}")
        self.stamp(16)

    def helper(self):
        A = self.A
        T = S_T
        t0, t1, t2 = T + 4, T + 5, T + 6
        sH = S_RB
        A.label("L_helper")
        A(f"s_lshl_b32 {s(t0)}, {s(T + 1)}, 3")
        A(f"s_add_u32 {s(sH)}, {s(t0)}, {s(T)}")
        A(f"s_cmp_ge_u32 {s(sH)}, 21")
        A("s_cbranch_scc1 L_helper_flag")
        st_h = A.snapshot()
        self.srd(R_A, P_WM, 448 * 5376)
        self.srd(R_B, P_C, 896)
        A("v_lshrrev_b32 v2, 4, v0")
        A("v_and_b32 v3, 15, v0")
        A("v_mul_u32_u24 v4, 5376, v2")
        A("v_lshl_add_u32 v4, v3, 4, v4")
        A(f"s_lshl_b32 {s(t0)}, {s(sH)}, 8")
        A(f"v_add_u32 v4, {s(t0)}, v4")
        A("v_lshlrev_b32 v5, 2, v0")
        A(f"buffer_load_dword v6, v5, {s(R_B, 4)}, 0 offen")
        W = 16
        A(f"s_mov_b32 {s(t0)}, 0")
        for i in range(28):
            A(f"buffer_load_dwordx4 {v(W + 4 * i, 4)}, v4, {s(R_A, 4)}, {s(t0)} offen")
            if i < 27:
                A(f"s_add_u32 {s(t0)}, {s(t0)}, {16 * 5376}")
        A(f"s_mov_b32 {s(t1)}, 0x{f32bits(-1.4426950408889634):08x}")
        A("v_lshlrev_b32 v8, 16, v6")
        A(f"v_and_b32 v9, {s(S_MASKHI)}, v6")
        for r in (8, 9):
            A(f"v_mul_f32 {v(r + 2)}, {s(t1)}, {v(r)}")
        for r in (8, 9):
            A(f"v_exp_f32 {v(r + 2)}, {v(r + 2)}")
        for r in (8, 9):
            A(f"v_add_f32 {v(r + 2)}, 1.0, {v(r + 2)}")
        for r in (8, 9):
            A(f"v_rcp_f32 {v(r + 2)}, {v(r + 2)}")
        for r in (8, 9):
            A(f"v_mul_f32 {v(r)}, {v(r)}, {v(r + 2)}")
        A("v_cvt_pk_bf16_f32 v6, v8, v9")
        A("v_lshlrev_b32 v8, 16, v6")
        A(f"v_and_b32 v9, {s(S_MASKHI)}, v6")
        A("v_lshlrev_b32 v7, 3, v0")
        A(f"ds_write_b64 v7, v[8:9] offset:{L_SC}")
        A.barrier()
        A("v_lshlrev_b32 v7, 2, v2")
        SC = 128
        for i in range(28):
            A(f"ds_read_b32 {v(SC + 2 * i)}, v7 offset:{L_SC + 64 * i}")
        AC = 192
        U = 200
        for i in range(28):
            for k in range(4):
                src = W + 4 * i + k
                u = U + 2 * k
                A(f"v_lshlrev_b32 {v(u)}, 16, {v(src)}")
                A(f"v_and_b32 {v(u + 1)}, {s(S_MASKHI)}, {v(src)}")
            for k in range(4):
                u = U + 2 * k
                if i == 0:
                    A(f"v_pk_mul_f32 {v(AC + 2 * k, 2)}, {v(u, 2)}, {v(SC + 2 * i, 2)} op_sel_hi:[1,0]")
                else:
                    A(f"v_pk_fma_f32 {v(AC + 2 * k, 2)}, {v(u, 2)}, {v(SC + 2 * i, 2)}, {v(AC + 2 * k, 2)} op_sel_hi:[1,0,1]")
        A("v_mul_u32_u24 v7, 528, v2")
        A("v_lshl_add_u32 v7, v3, 5, v7")
        A(f"ds_write_b128 v7, {v(AC, 4)} offset:{L_MR}")
        A(f"ds_write_b128 v7, {v(AC + 4, 4)} offset:{L_MR + 16}")
        A.barrier()
        A("v_and_b32 v8, 127, v0")
        A("v_lshlrev_b32 v7, 2, v8")
        for g in range(16):
            A(f"ds_read_b32 {v(16 + g)}, v7 offset:{L_MR + 528 * g}")
        for stp in (8, 4, 2, 1):
            for g in range(stp):
                A(f"v_add_f32 {v(16 + g)}, {v(16 + g)}, {v(16 + g + stp)}")
        A("v_cvt_pk_bf16_f32 v16, v16, v16")
        A(f"v_and_b32 v16, {s(S_MASKHI)}, v16")
        A("v_add_f32 v17, 1.0, v16")
        A("v_cvt_pk_bf16_f32 v17, v17, v17")
        A(f"v_and_b32 v17, {s(S_MASKHI)}, v17")
        A(f"s_lshl_b32 {s(t0)}, {s(sH)}, 7")
        A(f"v_add_u32 v8, {s(t0)}, v8")
        A("v_subrev_u32 v9, 448, v8")
        A("v_subrev_u32 v10, 1792, v8")
        A("v_min_u32 v9, v9, v10")
        A("v_mov_b32 v11, 448")
        A("v_cmp_lt_u32 vcc, v9, v11")
        A("s_nop 1")
        A("v_cndmask_b32 v16, v16, v17, vcc")
        A("v_lshlrev_b32 v8, 2, v8")
        A(f"s_mov_b32 {s(t0)}, {MODF}")
        skip = self.lab("ms")
        A(f"s_cmp_ge_u32 {s(S_WV)}, 2")
        A(f"s_cbranch_scc1 {skip}")
        A.cond_begin()
        A(f"buffer_store_dword v16, v8, {s(R_WS, 4)}, {s(t0)} offen sc1")
        A.cond_end()
        A.label(skip)
        A.wait_vm(0)
        A.barrier()
        A.label("L_helper_flag")
        A.wait_lgkm0()
        A(f"s_add_u32 {s(S_NONCE)}, {s(S_NONCE)}, 1")
        A(f"s_lshl_b32 {s(t0)}, {s(sH)}, 7")
        A(f"s_add_u32 {s(t0)}, {s(t0)}, {FL + FM * 128}")
        self.flag_store(t0)
        self.stamp(3)
        if self.o.get("helper_warm", 0):
            A("v_min_u32 v2, 55, v1")
            A(f"s_mul_i32 {s(t0)}, {s(S_WV)}, 56")
            A(f"v_add_u32 v2, {s(t0)}, v2")
            A("v_lshlrev_b32 v2, 7, v2")
            A(f"v_add_u32 v2, {FL + self.o.get('warm_flag', F2) * 128}, v2")
            A(f"s_lshr_b32 {s(t0)}, s2, 3")
            A(f"s_sub_u32 {s(t0)}, {s(t0)}, 28")
            A(f"s_lshl_b32 {s(t0)}, {s(t0)}, 2")
            A(f"s_add_u32 {s(t0)}, {s(t0)}, {s(S_WV)}")
            A("v_lshlrev_b32 v4, 7, v1")
            A(f"s_and_b32 {s(t1)}, s2, 7")
            A(f"s_mul_i32 {s(t1)}, {s(t1)}, {4 * 229376}")
            A(f"s_mul_i32 {s(t2)}, {s(t0)}, {448 * 128}")
            A(f"s_add_u32 {s(t1)}, {s(t1)}, {s(t2)}")
            A(f"s_add_u32 {s(t1)}, {s(t1)}, {HF}")
            self.poll(2, 3)
            for k in range(7):
                A(f"buffer_load_dword {v(32 + k)}, v4, {s(R_WS, 4)}, {s(t1)} offen")
                A(f"s_add_u32 {s(t1)}, {s(t1)}, {64 * 128}")
            A.wait_vm(0)
        self.stamp(4)
        self.stamp_flush()
        A("s_endpgm")

    def build(self):
        A = self.A
        self.prologue()
        if self.stamps:
            A("v_mov_b32 v255, 0")
            A("v_writelane_b32 v255, s76, 31")
        st = A.snapshot()
        self.stamp(0)
        self.phase_p()
        stages = [("p", None), ("a", self.phase_a), ("b", self.phase_b), ("c", self.phase_c), ("d", self.phase_d)]
        done = self.stop == "p"
        for name, fn in stages[1:]:
            if done:
                break
            fn()
            done = self.stop == name
        self.stamp_flush()
        A("s_endpgm")
        A.label("L_exit")
        A("s_endpgm")
        A.label("L_code_end")
        return A.text()


def f32bits(x):
    import struct
    return struct.unpack("<I", struct.pack("<f", x))[0]


HEADER = """; Fused adaLN + H3 long convolution + SiLU MLP, one persistent launch (generated by gen/gen.py).
; Kernarg: q k v shift_k ssm_k ssm_D B_x w1 w2 c w_mod out debug ws (8-byte pointers).
; @launch grid=(224,1,1) block=(256,1,1) lds={lds}
.amdgcn_target "amdgcn-amd-amdhsa--gfx950"
.text
.globl {name}
.p2align 8
.type {name},@function
{name}:
"""

FOOTER = """.section .rodata,"a"
.p2align 6
.amdhsa_kernel {name}
  .amdhsa_next_free_vgpr 512
  .amdhsa_next_free_sgpr 102
  .amdhsa_accum_offset 256
  .amdhsa_group_segment_fixed_size 0
  .amdhsa_kernarg_size 112
  .amdhsa_user_sgpr_count 2
  .amdhsa_user_sgpr_kernarg_segment_ptr 1
  .amdhsa_system_sgpr_workgroup_id_x 1
  .amdhsa_float_denorm_mode_32 3
.end_amdhsa_kernel
"""


def main():
    ap = argparse.ArgumentParser()
    ap.add_argument("--stop", default=None)
    ap.add_argument("--stamps", action="store_true")
    ap.add_argument("-o", default="/dev/stdout")
    ap.add_argument("--opt", action="append", default=[])
    args = ap.parse_args()
    opts = {}
    for kv in args.opt:
        k, val = kv.split("=")
        opts[k] = int(val)
    g = Gen(stop=args.stop, stamps=args.stamps, opts=opts)
    body = g.build()
    txt = HEADER.format(name=NAME, lds=LDS_END) + body + FOOTER.format(name=NAME)
    with open(args.o, "w") as f:
        f.write(txt)
    print(f"instructions: {g.A.n_ins}, auto nops: {g.A.n_nops}, lds {LDS_END}", file=sys.stderr)


if __name__ == "__main__":
    main()
```

```python
import sys
import argparse
from asmdsl import Asm, v, a, s

NAME = "adaLN_cond__ssm_conv_h3__dense_activation_silu__prompt_kernel"

FL = 4096
F1, FQ, FM, F2, F3 = 0, 256, 512, 544, 800
STAMP = 0x30000
T2D = 224 * 8192
KVP = 0x40000
QP = KVP + T2D
STR = QP + T2D
STM = STR + 8192
X1P = STR + 16384
W1F = X1P + T2D
W2F = W1F + 1605632
MODF = W2F + 1605632
MPL = 2688 * 4
HF = MODF + 65536
WS_END = HF + 32 * 112 * 2048
assert WS_END < (1 << 28)

L_H2 = 0
L_TPK = 0
L_TPQ = 8704
L_TPN = 17408
L_WB = 26112
L_UR = 43520
assert L_UR + 9216 <= 57344
L_KC = 57344
CS = 4160
L_RED = L_KC + 8 * CS
L_RED2 = 0
L_XD = 69632
L_PAR = L_RED + 40960
L_STAT = L_PAR + 4096
L_GB = L_STAT + 2048
LDS_END = L_GB + 256
assert L_XD + 57344 <= L_PAR
assert LDS_END <= 163840
L_SC = 0
L_MR = 2048

S_RB, S_J, S_WV, S_CP = 4, 5, 6, 7
P_Q, P_K, P_V, P_SH, P_SK, P_D, P_BX, P_W1, P_W2, P_C, P_WM, P_OUT, P_DBG, P_WS = range(8, 36, 2)
R_WS, R_A, R_B, R_C, R_D = 36, 40, 44, 48, 52
S_NONCE = 56
S_T = 57
S_M = 80
S_MASKHI = 80
S_PERM_LO = 81
S_PERM_HI = 82
S_OFF = 84
S_SPIN = 96
S_PC = 100
S_W1B, S_W2B = 78, 79
S_XCC, S_LOCAL = 83, 95
S_WI = 94
S_MW = 93
V_W2O = (2, 253)
V_L16 = 3
S_ST0 = 98

SRD3 = 0x00020000
LOG2E = 1.4426950408889634
SPIN_MAX = 1 << 17


class Gen:
    def __init__(self, stop=None, stamps=False, opts=None):
        self.o = dict(cring=3, repf=0, burst_before_flag=0, n_burst_t2=28, n_bg_c=36, bg_b=1, nobg=0)
        self.o.update(opts or {})
        self.A = Asm()
        self.stop = stop
        self.stamps = stamps
        self.nlab = 0
        self.nstamp = 0
        self.n_burst_t2 = self.o["n_burst_t2"]
        self.n_bg_c = self.o["n_bg_c"]
        self.w2_order = list(range(41, 49)) + list(range(28, 41)) + list(range(28)) + list(range(49, 56))

    def lab(self, base):
        self.nlab += 1
        return f"L_{base}_{self.nlab}"

    def srd(self, r, ptr, nbytes, add=None):
        A = self.A
        if add is None:
            A(f"s_mov_b32 {s(r)}, {s(ptr)}")
            A(f"s_mov_b32 {s(r + 1)}, {s(ptr + 1)}")
        else:
            A(f"s_add_u32 {s(r)}, {s(ptr)}, {add}")
            A(f"s_addc_u32 {s(r + 1)}, {s(ptr + 1)}, 0")
        A(f"s_mov_b32 {s(r + 2)}, {nbytes}")
        A(f"s_mov_b32 {s(r + 3)}, 0x{SRD3:08x}")

    def stamp(self, idx):
        if not self.stamps:
            return
        A = self.A
        A(f"s_memrealtime {s(S_ST0, 2)}")
        A.wait_lgkm0()
        A(f"v_writelane_b32 v255, {s(S_ST0)}, {idx}")
        if self.o.get("cyc"):
            A(f"s_memtime {s(S_ST0, 2)}")
            A.wait_lgkm0()
            A(f"v_writelane_b32 v255, {s(S_ST0)}, {32 + idx}")

    def echo(self):
        A = self.A
        ia, ib = self.o["echo_a"], self.o["echo_b"]
        skip, loop = self.lab("echo"), self.lab("echol")
        A("s_cmp_lg_u32 s2, 0")
        A(f"s_cbranch_scc1 {skip}")
        A(f"v_readlane_b32 {s(S_T)}, v255, {ia}")
        A(f"v_readlane_b32 {s(S_T + 1)}, v255, {ib}")
        A(f"s_memrealtime {s(S_ST0, 2)}")
        A.wait_lgkm0()
        A(f"s_sub_u32 {s(S_T)}, {s(S_T + 1)}, {s(S_T)}")
        A(f"s_mul_i32 {s(S_T)}, {s(S_T)}, {self.o.get('echo_mul', 1)}")
        A(f"s_add_u32 {s(S_T)}, {s(S_T)}, {s(S_ST0)}")
        A.label(loop)
        A(f"s_memrealtime {s(S_ST0, 2)}")
        A.wait_lgkm0()
        A(f"s_sub_u32 {s(S_T + 1)}, {s(S_ST0)}, {s(S_T)}")
        A(f"s_cmp_lt_i32 {s(S_T + 1)}, 0")
        A(f"s_cbranch_scc1 {loop}")
        A.label(skip)

    def stamp_flush(self):
        if not self.stamps:
            return
        A = self.A
        if self.o.get("echo_b"):
            self.echo()
            return
        if self.o.get("dbg"):
            skip = self.lab("dbg")
            A(f"s_cmp_lg_u32 {s(S_WV)}, 0")
            A(f"s_cbranch_scc1 {skip}")
            A("s_cmp_eq_u32 s2, 0")
            A(f"s_cselect_b32 {s(S_T)}, 0, 32")
            A(f"s_cselect_b32 {s(S_T + 1)}, 1, 0")
            A("s_cmp_eq_u32 s2, 223")
            A(f"s_cselect_b32 {s(S_T + 1)}, 1, {s(S_T + 1)}")
            A(f"s_cmp_eq_u32 {s(S_T + 1)}, 0")
            A(f"s_cbranch_scc1 {skip}")
            A.cond_begin()
            A(f"v_readlane_b32 {s(S_T + 2)}, v255, 31")
            self.srd(R_A, P_DBG, 256)
            for n_, idx in enumerate((3, 5, 8, 10, 11, 12, 15, 16)):
                A(f"v_readlane_b32 {s(S_T + 3)}, v255, {idx}")
                A(f"s_sub_u32 {s(S_T + 3)}, {s(S_T + 3)}, {s(S_T + 2)}")
                A(f"v_mov_b32 v250, {s(S_T + 3)}")
                A(f"s_add_u32 {s(S_T + 4)}, {s(S_T)}, {4 * n_}")
                A(f"v_mov_b32 v251, {s(S_T + 4)}")
                A("s_mov_b64 exec, 1")
                A(f"buffer_store_dword v250, v251, {s(R_A, 4)}, 0 offen")
                A("s_mov_b64 exec, -1")
            A.cond_end()
            A.label(skip)
            return
        skip = self.lab("sf")
        A(f"s_cmp_lg_u32 {s(S_WV)}, 0")
        A(f"s_cbranch_scc1 {skip}")
        A.cond_begin()
        A("v_lshlrev_b32 v254, 2, v1")
        A(f"s_lshl_b32 {s(S_SPIN + 1)}, s2, 8")
        A(f"s_add_u32 {s(S_SPIN + 1)}, {s(S_SPIN + 1)}, {STAMP}")
        A(f"buffer_store_dword v255, v254, {s(R_WS, 4)}, {s(S_SPIN + 1)} offen")
        A.cond_end()
        A.label(skip)

    def flag_store(self, soff_sgpr, vtmp=252, with_xcc=False, sc=" sc1"):
        A = self.A
        skip = self.lab("fl")
        A(f"s_cmp_lg_u32 {s(S_WV)}, 0")
        A(f"s_cbranch_scc1 {skip}")
        A.cond_begin()
        A(f"v_mov_b32 {v(vtmp)}, {s(S_NONCE)}")
        if with_xcc:
            A(f"v_mov_b32 {v(vtmp + 1)}, {s(S_XCC)}")
        A(f"v_mov_b32 {v(vtmp + 2)}, {s(soff_sgpr)}")
        A("s_mov_b64 exec, 1")
        if with_xcc:
            A(f"buffer_store_dwordx2 {v(vtmp, 2)}, {v(vtmp + 2)}, {s(R_WS, 4)}, 0 offen{sc}")
        else:
            A(f"buffer_store_dword {v(vtmp)}, {v(vtmp + 2)}, {s(R_WS, 4)}, 0 offen{sc}")
        A("s_mov_b64 exec, -1")
        A.cond_end()
        A.label(skip)

    def poll(self, vaddr, vtmp):
        A = self.A
        loop, done = self.lab("poll"), self.lab("polld")
        A(f"s_mov_b32 {s(S_SPIN)}, 0")
        A.label(loop)
        A(f"buffer_load_dword {v(vtmp)}, {v(vaddr)}, {s(R_WS, 4)}, 0 offen sc1")
        A.wait_vm(0)
        A(f"v_cmp_ne_u32 vcc, {s(S_NONCE)}, {v(vtmp)}")
        A(f"s_add_u32 {s(S_SPIN)}, {s(S_SPIN)}, 1")
        A("s_nop 3")
        A("s_cmp_eq_u64 vcc, 0")
        A(f"s_cbranch_scc1 {done}")
        A(f"s_cmp_lt_u32 {s(S_SPIN)}, {SPIN_MAX}")
        A(f"s_cbranch_scc1 {loop}")
        A.label(done)

    def code_prefetch(self):
        A = self.A
        A("v_lshlrev_b32 v253, 7, v0")
        A("v_min_u32 v253, L_code_end-L_pc-4, v253")
        A(f"global_load_dword v254, v253, {s(S_PC, 2)}")

    def finish(self):
        self.A("s_endpgm")

    def prologue(self):
        A = self.A
        A("s_cmp_ge_u32 s2, 224")
        A("s_cbranch_scc1 L_exit")
        if self.stamps:
            A(f"s_memrealtime {s(76, 2)}")
        A(f"s_load_dwordx16 {s(8, 16)}, s[0:1], 0")
        A(f"s_load_dwordx8 {s(24, 8)}, s[0:1], 64")
        A(f"s_load_dwordx4 {s(32, 4)}, s[0:1], 96")
        A(f"s_getpc_b64 {s(S_PC, 2)}")
        A.label("L_pc")
        A("v_lshlrev_b32 v253, 7, v0")
        A("v_min_u32 v253, L_code_end-L_pc-4, v253")
        A(f"global_load_dword v254, v253, {s(S_PC, 2)}")
        A("v_lshrrev_b32 v2, 6, v0")
        A("v_and_b32 v1, 63, v0")
        A(f"s_and_b32 {s(S_T)}, s2, 7")
        A(f"s_lshr_b32 {s(S_T + 1)}, s2, 3")
        A(f"v_readfirstlane_b32 {s(S_WV)}, v2")
        A(f"s_getreg_b32 {s(S_XCC)}, hwreg(HW_REG_XCC_ID, 0, 4)")
        A(f"s_mov_b32 {s(S_MASKHI)}, 0xffff0000")
        A(f"s_mov_b32 {s(S_PERM_LO)}, 0x05040100")
        A(f"s_mov_b32 {s(S_PERM_HI)}, 0x07060302")
        A(f"s_mov_b32 {s(S_WI)}, {s(S_T + 1)}")
        A(f"s_mul_i32 {s(S_T + 2)}, {s(S_WI)}, 37")
        A(f"s_lshr_b32 {s(S_T + 2)}, {s(S_T + 2)}, 8")
        A(f"s_mul_i32 {s(S_T + 3)}, {s(S_T + 2)}, 7")
        A(f"s_sub_u32 {s(S_J)}, {s(S_WI)}, {s(S_T + 3)}")
        A(f"s_lshl_b32 {s(S_RB)}, {s(S_T)}, 2")
        A(f"s_add_u32 {s(S_RB)}, {s(S_RB)}, {s(S_T + 2)}")
        A(f"s_lshl_b32 {s(S_CP)}, {s(S_J)}, 5")
        A(f"s_add_u32 {s(S_CP)}, {s(S_CP)}, {s(S_RB)}")
        A.wait_lgkm0()
        self.srd(R_WS, P_WS, WS_END)
        A(f"s_load_dword {s(S_NONCE)}, {s(P_WS, 2)}, 0")
        A(f"s_mul_i32 {s(S_MW)}, {s(S_T)}, 28")
        A(f"s_add_u32 {s(S_MW)}, {s(S_MW)}, {s(S_WI)}")

    def phase_p(self):
        A = self.A
        T = S_T
        NB = 2048 * 896
        t0, t1, t2 = T + 12, T + 13, T + 14
        vC, vRG, vL16, vOffO, vKa, vSh, vSa, vSb, vRow, vWa, vx = 2, 3, 4, 5, 6, 10, 11, 12, 13, 14, 15
        vK, vV, vSH, vQO, vQ, vW, vKD = 16, 36, 44, 60, 68, 84, 100
        A(f"v_and_b32 {v(vC)}, 7, v1")
        A(f"v_lshrrev_b32 {v(vRG)}, 3, v1")
        A(f"s_lshl_b32 {s(T)}, {s(S_RB)}, 6")
        A(f"s_lshl_b32 {s(T + 1)}, {s(S_WV)}, 4")
        A(f"s_add_u32 {s(T + 1)}, {s(T)}, {s(T + 1)}")
        A(f"v_lshl_add_u32 {v(vOffO)}, {v(vRG)}, 1, {s(T + 1)}")
        A(f"v_mul_u32_u24 {v(vOffO)}, 896, {v(vOffO)}")
        A(f"v_lshl_add_u32 {v(vOffO)}, {v(vC)}, 4, {v(vOffO)}")
        A(f"s_lshl_b32 {s(T + 2)}, {s(S_J)}, 7")
        A(f"v_add_u32 {v(vOffO)}, {s(T + 2)}, {v(vOffO)}")
        kad = {}
        for n_, i in enumerate((0, 1, 2, 4)):
            d = (i - 3) * 896
            kad[i] = vKa + n_
            if d < 0:
                A(f"v_subrev_u32 {v(kad[i])}, {-d}, {v(vOffO)}")
            else:
                A(f"v_add_u32 {v(kad[i])}, {d}, {v(vOffO)}")
        kad[3] = vOffO
        self.srd(R_A, P_K, NB)
        self.srd(R_B, P_V, NB)
        for i in range(5):
            A(f"buffer_load_dwordx4 {v(vK + 4 * i, 4)}, {v(kad[i])}, {s(R_A, 4)}, 0 offen")
        for i in range(2):
            A(f"buffer_load_dwordx4 {v(vV + 4 * i, 4)}, {v(vOffO)}, {s(R_B, 4)}, 0 offen offset:{896 * i}")
        self.srd(R_C, P_SH, 448 * 8)
        A(f"s_lshl_b32 {s(T + 3)}, {s(S_J)}, 9")
        A(f"v_lshl_add_u32 {v(vSh)}, {v(vC)}, 6, {s(T + 3)}")
        for i in range(4):
            A(f"buffer_load_dwordx4 {v(vSH + 4 * i, 4)}, {v(vSh)}, {s(R_C, 4)}, 0 offen offset:{16 * i}")
        self.srd(R_A, P_Q, NB)
        for r in range(2):
            A(f"buffer_load_dwordx4 {v(vQO + 4 * r, 4)}, {v(vOffO)}, {s(R_A, 4)}, 0 offen offset:{896 * r}")
        A(f"s_lshl_b32 {s(t1)}, {s(S_J)}, 3")
        A(f"s_add_u32 {s(t0)}, {s(T)}, {s(t1)}")
        A(f"s_lshl_b32 {s(t1)}, {s(S_WV)}, 2")
        A(f"s_add_u32 {s(t0)}, {s(t0)}, {s(t1)}")
        A(f"v_lshrrev_b32 {v(vRow)}, 4, v1")
        A(f"v_add_u32 {v(vRow)}, {s(t0)}, {v(vRow)}")
        A(f"v_mul_u32_u24 {v(vSa)}, 896, {v(vRow)}")
        A(f"v_and_b32 {v(vSb)}, 15, v1")
        A(f"v_lshl_add_u32 {v(vSa)}, {v(vSb)}, 4, {v(vSa)}")
        A(f"v_cmp_gt_u32 vcc, 8, {v(vSb)}")
        A(f"v_add_u32 {v(vSb)}, 768, {v(vSa)}")
        A(f"v_mov_b32 {v(vx)}, -1")
        A(f"v_cndmask_b32 {v(vSb)}, {v(vx)}, {v(vSb)}, vcc")
        for i in range(3):
            A(f"buffer_load_dwordx4 {v(vQ + 4 * i, 4)}, {v(vSa)}, {s(R_A, 4)}, 0 offen offset:{256 * i}")
        A(f"buffer_load_dwordx4 {v(vQ + 12, 4)}, {v(vSb)}, {s(R_A, 4)}, 0 offen")
        vM, vSC, vMA, vMT, vMa, vCa = 84, 96, 100, 108, 116, 117
        sCG, sRS = T + 21, T + 5
        self.srd(R_B, P_WM, 448 * 5376)
        self.srd(R_C, P_C, 896)
        A(f"s_mul_i32 {s(sRS)}, {s(S_MW)}, 1561")
        A(f"s_lshr_b32 {s(sRS)}, {s(sRS)}, 16")
        A(f"s_mul_i32 {s(sCG)}, {s(sRS)}, 42")
        A(f"s_sub_u32 {s(sCG)}, {s(S_MW)}, {s(sCG)}")
        A(f"s_mul_i32 {s(t0)}, {s(S_WV)}, 24")
        A(f"v_lshrrev_b32 {v(vMT)}, 3, v1")
        A(f"v_add_u32 {v(vMT)}, {s(t0)}, {v(vMT)}")
        A(f"s_mul_i32 {s(t1)}, {s(sRS)}, 90")
        A(f"v_add_u32 {v(vMT + 1)}, {s(t1)}, {v(vMT)}")
        A(f"v_lshlrev_b32 {v(vCa)}, 1, {v(vMT + 1)}")
        A(f"v_mul_u32_u24 {v(vMa)}, 5376, {v(vMT + 1)}")
        A(f"v_and_b32 {v(vMT + 2)}, 7, v1")
        A(f"v_lshl_add_u32 {v(vMa)}, {v(vMT + 2)}, 4, {v(vMa)}")
        A(f"s_lshl_b32 {s(t1)}, {s(sCG)}, 7")
        A(f"v_add_u32 {v(vMa)}, {s(t1)}, {v(vMa)}")
        A(f"v_cmp_gt_u32 vcc, {90 - 16}, {v(vMT)}")
        A(f"v_add_u32 {v(vMT + 3)}, {16 * 5376}, {v(vMa)}")
        A(f"v_mov_b32 {v(vMT + 4)}, 0x80000000")
        A(f"v_add_u32 {v(vMT + 5)}, {8 * 5376}, {v(vMa)}")
        A(f"v_cndmask_b32 {v(vMT + 3)}, {v(vMT + 4)}, {v(vMT + 3)}, vcc")
        for i in range(3):
            A(f"buffer_load_ushort {v(vSC + i)}, {v(vCa)}, {s(R_C, 4)}, 0 offen offset:{16 * i}")
        for i, ad in enumerate((vMa, vMT + 5, vMT + 3)):
            A(f"buffer_load_dwordx4 {v(vM + 4 * i, 4)}, {v(ad)}, {s(R_B, 4)}, 0 offen")
        self.stamp(1)

        sWB, sSrc, sStride, sA, sR1, sD0, sDS = T + 4, T + 6, T + 7, T + 8, T + 9, T + 10, T + 11
        A(f"s_mul_i32 {s(sWB)}, {s(S_RB)}, 7")
        A(f"s_add_u32 {s(sWB)}, {s(sWB)}, {s(S_J)}")
        A(f"s_lshr_b32 {s(t0)}, {s(sWB)}, 2")
        A(f"s_and_b32 {s(t1)}, {s(sWB)}, 3")
        A(f"s_mul_i32 {s(sSrc)}, {s(t0)}, {16 * 3584}")
        A(f"s_mul_i32 {s(t2)}, {s(t1)}, 896")
        A(f"s_add_u32 {s(sSrc)}, {s(sSrc)}, {s(t2)}")
        A(f"s_mul_i32 {s(t2)}, {s(t1)}, 14")
        A(f"s_add_u32 {s(t2)}, {s(t2)}, {s(S_WV)}")
        A(f"s_mul_i32 {s(t2)}, {s(t2)}, 28")
        A(f"s_add_u32 {s(sD0)}, {s(t2)}, {s(t0)}")
        A(f"s_lshl_b32 {s(sD0)}, {s(sD0)}, 10")
        A(f"s_add_u32 {s(sD0)}, {s(sD0)}, {W1F}")
        u0, u1, u2, uSrc, uD0 = T + 16, T + 17, T + 18, T + 19, T + 20
        A(f"s_sub_u32 {s(u0)}, {s(sWB)}, 112")
        A(f"s_mul_i32 {s(uSrc)}, {s(u0)}, {16 * 896}")
        A(f"s_mul_i32 {s(u1)}, {s(u0)}, 147")
        A(f"s_lshr_b32 {s(u1)}, {s(u1)}, 12")
        A(f"s_mul_i32 {s(u2)}, {s(u1)}, 28")
        A(f"s_sub_u32 {s(u2)}, {s(u0)}, {s(u2)}")
        A(f"s_mul_i32 {s(uD0)}, {s(u1)}, 56")
        A(f"s_lshl_b32 {s(u2)}, {s(u2)}, 1")
        A(f"s_add_u32 {s(uD0)}, {s(uD0)}, {s(u2)}")
        A(f"s_lshr_b32 {s(u1)}, {s(S_WV)}, 1")
        A(f"s_mul_i32 {s(u1)}, {s(u1)}, 224")
        A(f"s_add_u32 {s(uD0)}, {s(uD0)}, {s(u1)}")
        A(f"s_and_b32 {s(u1)}, {s(S_WV)}, 1")
        A(f"s_add_u32 {s(uD0)}, {s(uD0)}, {s(u1)}")
        A(f"s_lshl_b32 {s(uD0)}, {s(uD0)}, 10")
        A(f"s_add_u32 {s(uD0)}, {s(uD0)}, {W2F}")
        A(f"s_cmp_ge_u32 {s(sWB)}, 112")
        A(f"s_cselect_b32 {s(sSrc)}, {s(uSrc)}, {s(sSrc)}")
        A(f"s_cselect_b32 {s(sD0)}, {s(uD0)}, {s(sD0)}")
        A(f"s_mov_b32 {s(sStride)}, 3584")
        A(f"s_cselect_b32 {s(sStride)}, 896, {s(sStride)}")
        A(f"s_cselect_b32 {s(sA)}, 4, 8")
        A(f"s_mov_b32 {s(sR1)}, {4 * 1088}")
        A(f"s_cselect_b32 {s(sR1)}, {8 * 1088}, {s(sR1)}")
        A(f"s_mov_b32 {s(sDS)}, {112 * 1024}")
        A(f"s_cselect_b32 {s(sDS)}, {448 * 1024}, {s(sDS)}")
        A(f"s_cselect_b32 {s(R_D)}, {s(P_W2)}, {s(P_W1)}")
        A(f"s_cselect_b32 {s(R_D + 1)}, {s(P_W2 + 1)}, {s(P_W1 + 1)}")
        A(f"s_mov_b32 {s(R_D + 2)}, 1605632")
        A(f"s_mov_b32 {s(R_D + 3)}, 0x{SRD3:08x}")
        A(f"s_lshl_b32 {s(t0)}, {s(S_WV)}, 2")
        A(f"s_mul_i32 {s(t0)}, {s(t0)}, {s(sStride)}")
        A(f"s_add_u32 {s(sSrc)}, {s(sSrc)}, {s(t0)}")
        A(f"v_lshlrev_b32 {v(vL16)}, 4, v1")
        A(f"v_add_u32 {v(vWa)}, {s(sSrc)}, {v(vL16)}")
        A(f"s_lshl_b32 {s(t0)}, {s(S_CP)}, 13")
        self.srd(R_B, P_SK, 4096, add=s(t0))
        A(f"s_add_u32 {s(t0)}, {s(t0)}, 4096")
        self.srd(R_C, P_SK, 4096, add=s(t0))
        vKA, vKB, vKA2, vKB2 = 132, 133, 134, 135
        A(f"v_lshlrev_b32 {v(vKA)}, 4, v0")
        A(f"v_subrev_u32 {v(vKB)}, 16, {v(vKA)}")
        A(f"v_subrev_u32 {v(vKA)}, 32, {v(vKA)}")
        A(f"v_and_b32 {v(vKA2)}, 1, v1")
        A(f"v_lshlrev_b32 {v(vKA2)}, 4, {v(vKA2)}")
        A(f"v_add_u32 {v(vKB2)}, 4080, {v(vKA2)}")
        vTPW, vWw, vTPR, vStO, vTR0, vTR1, vKW = 136, 137, 138, 139, 140, 141, 142
        A(f"v_add_u32 {v(vKW + 1)}, {4096 + L_KC}, {v(vKA2)}")
        A(f"v_add_u32 {v(vKA2)}, 4064, {v(vKA2)}")
        A(f"v_lshlrev_b32 {v(vKW)}, 4, v0")
        A(f"v_add_u32 {v(vKW)}, {L_KC}, {v(vKW)}")
        A(f"v_mul_u32_u24 {v(vTPW)}, 1088, {v(vC)}")
        A(f"v_lshl_add_u32 {v(vTPW)}, {v(vRG)}, 3, {v(vTPW)}")
        A(f"s_lshl_b32 {s(t0)}, {s(S_WV)}, 6")
        A(f"v_add_u32 {v(vTPW)}, {s(t0)}, {v(vTPW)}")
        A(f"s_mul_i32 {s(t1)}, {s(S_WV)}, {4 * 1088}")
        A(f"v_add_u32 {v(vWw)}, {s(t1)}, {v(vL16)}")
        A(f"v_lshrrev_b32 {v(vStO)}, 4, v0")
        A(f"v_mul_u32_u24 {v(vTPR)}, 272, {v(vStO)}")
        A(f"v_and_b32 {v(vx)}, 15, v0")
        A(f"v_lshl_add_u32 {v(vTPR)}, {v(vx)}, 4, {v(vTPR)}")
        A(f"v_lshlrev_b32 {v(vStO)}, 13, {v(vStO)}")
        A(f"v_lshl_add_u32 {v(vStO)}, {v(vx)}, 4, {v(vStO)}")
        A(f"v_lshrrev_b32 {v(vTR0)}, 5, v1")
        A(f"v_mul_lo_u32 {v(vTR0)}, {v(vTR0)}, {s(sA)}")
        A(f"v_bfe_u32 {v(vx)}, v1, 2, 2")
        A(f"v_add_u32 {v(vTR0)}, {v(vTR0)}, {v(vx)}")
        A(f"v_mul_u32_u24 {v(vTR0)}, 1088, {v(vTR0)}")
        A(f"v_bfe_u32 {v(vx)}, v1, 4, 1")
        A(f"v_lshl_add_u32 {v(vTR0)}, {v(vx)}, 5, {v(vTR0)}")
        A(f"v_and_b32 {v(vx)}, 3, v1")
        A(f"v_lshl_add_u32 {v(vTR0)}, {v(vx)}, 3, {v(vTR0)}")
        A(f"v_add_u32 {v(vTR0)}, {s(t0)}, {v(vTR0)}")
        A(f"v_add_u32 {v(vTR1)}, {s(sR1)}, {v(vTR0)}")
        sTile = S_OFF
        A(f"s_lshl_b32 {s(sTile)}, {s(S_J)}, 18")
        A(f"s_lshl_b32 {s(t0)}, {s(S_RB)}, 8")
        A(f"s_add_u32 {s(sTile)}, {s(sTile)}, {s(t0)}")
        A(f"v_lshlrev_b32 {v(vRow)}, 2, {v(vRow)}")
        A("v_mov_b32 v240, 0")
        A("v_mov_b32 v241, 0")
        A("v_lshlrev_b32 v242, 3, v1")
        for e in range(2):
            A(f"ds_write_b64 v242, v[240:241] offset:{L_UR + 4608 * e + 4096}")

        TT, WP, AC, vO = 144, 184, 216, 232
        A.await_regs(v(vSH, 16))
        for p in range(4):
            for e in range(2):
                d0 = vSH + 2 * (2 * p + e)
                w = WP + 8 * p
                A(f"v_lshlrev_b32 {v(w + 0 + e)}, 16, {v(d0)}")
                A(f"v_and_b32 {v(w + 2 + e)}, {s(S_MASKHI)}, {v(d0)}")
                A(f"v_lshlrev_b32 {v(w + 4 + e)}, 16, {v(d0 + 1)}")
                A(f"v_and_b32 {v(w + 6 + e)}, {s(S_MASKHI)}, {v(d0 + 1)}")
        self.stamp(21)
        for i in range(5):
            for p in range(4):
                src = vK + 4 * i + p
                A(f"v_lshlrev_b32 {v(TT + 10 * p + 2 * i)}, 16, {v(src)}")
                A(f"v_and_b32 {v(TT + 10 * p + 2 * i + 1)}, {s(S_MASKHI)}, {v(src)}")
        for tap in range(4):
            for p in range(4):
                for row in range(2):
                    acc = AC + 4 * p + 2 * row
                    x = v(TT + 10 * p + 2 * (3 + row - tap), 2)
                    w = v(WP + 8 * p + 2 * tap, 2)
                    if tap == 0:
                        A(f"v_pk_mul_f32 {v(acc, 2)}, {x}, {w}")
                    else:
                        A(f"v_pk_fma_f32 {v(acc, 2)}, {x}, {w}, {v(acc, 2)}")
        for row in range(2):
            for p in range(4):
                src = vV + 4 * row + p
                A(f"v_lshlrev_b32 {v(TT + 10 * p + 2 * row)}, 16, {v(src)}")
                A(f"v_and_b32 {v(TT + 10 * p + 2 * row + 1)}, {s(S_MASKHI)}, {v(src)}")
        for p in range(4):
            for row in range(2):
                acc = AC + 4 * p + 2 * row
                A(f"v_pk_mul_f32 {v(acc, 2)}, {v(acc, 2)}, {v(TT + 10 * p + 2 * row, 2)}")
        for p in range(4):
            for row in range(2):
                acc = AC + 4 * p + 2 * row
                A(f"v_cvt_pk_bf16_f32 {v(vO + 2 * p + row)}, {v(acc)}, {v(acc + 1)}")
        for p in range(4):
            A(f"ds_write_b64 {v(vTPW)}, {v(vO + 2 * p, 2)} offset:{L_TPK + 272 * p}")
        self.stamp(22)
        A(f"v_add_u32 {v(vx)}, {L_TPQ}, {v(vTPW)}")
        A.await_regs(v(vQO, 8))
        for p in range(4):
            A(f"ds_write2_b32 {v(vx)}, {v(vQO + p)}, {v(vQO + 4 + p)} offset0:{68 * p} offset1:{68 * p + 1}")
        vS, vU = 240, 144
        A.await_regs(v(vQ, 16))
        for i in range(16):
            A(f"v_lshlrev_b32 {v(vU + 2 * i)}, 16, {v(vQ + i)}")
            A(f"v_and_b32 {v(vU + 2 * i + 1)}, {s(S_MASKHI)}, {v(vQ + i)}")
        S1, S2 = (240, 242), (244, 246)
        for i in range(16):
            u = v(vU + 2 * i, 2)
            if i < 2:
                A(f"v_pk_mul_f32 {v(S2[i], 2)}, {u}, {u}")
            else:
                A(f"v_pk_fma_f32 {v(S2[i & 1], 2)}, {u}, {u}, {v(S2[i & 1], 2)}")
            if i in (2, 3):
                A(f"v_pk_add_f32 {v(S1[i & 1], 2)}, {v(vU + 2 * (i - 2), 2)}, {u}")
            elif i > 3:
                A(f"v_pk_add_f32 {v(S1[i & 1], 2)}, {v(S1[i & 1], 2)}, {u}")
        A(f"v_pk_add_f32 {v(240, 2)}, {v(240, 2)}, {v(242, 2)}")
        A(f"v_pk_add_f32 {v(244, 2)}, {v(244, 2)}, {v(246, 2)}")
        m, q2 = 240, 244
        A(f"v_add_f32 {v(m)}, {v(m)}, {v(m + 1)}")
        A(f"v_add_f32 {v(q2)}, {v(q2)}, {v(q2 + 1)}")
        for mod in ("quad_perm:[1,0,3,2]", "quad_perm:[2,3,0,1]", "row_half_mirror", "row_mirror"):
            for c_ in (m, q2):
                A(f"v_add_f32_dpp {v(c_)}, {v(c_)}, {v(c_)} {mod} row_mask:0xf bank_mask:0xf")
        A(f"s_mov_b32 {s(t0)}, 0x{f32bits(1.0 / 448):08x}")
        A(f"s_mov_b32 {s(t1)}, 0x{f32bits(1e-5):08x}")
        A(f"v_mul_f32 {v(m)}, {s(t0)}, {v(m)}")
        A(f"v_mul_f32 {v(q2)}, {s(t0)}, {v(q2)}")
        A(f"v_fma_f32 {v(q2)}, -{v(m)}, {v(m)}, {v(q2)}")
        A(f"v_max_f32 {v(q2)}, 0, {v(q2)}")
        A(f"v_add_f32 {v(q2)}, {s(t1)}, {v(q2)}")
        A(f"v_rsq_f32 {v(q2)}, {v(q2)}")
        L_MP = L_TPN
        A(f"s_mov_b32 {s(t1)}, 0x{f32bits(-LOG2E):08x}")
        A.await_regs(v(vSC, 3))
        for i in range(3):
            A(f"v_lshlrev_b32 {v(vSC + i)}, 16, {v(vSC + i)}")
        for i in range(3):
            A(f"v_mul_f32 {v(vMT + i)}, {s(t1)}, {v(vSC + i)}")
        for i in range(3):
            A(f"v_exp_f32 {v(vMT + i)}, {v(vMT + i)}")
        for i in range(3):
            A(f"v_add_f32 {v(vMT + i)}, 1.0, {v(vMT + i)}")
        for i in range(3):
            A(f"v_rcp_f32 {v(vMT + i)}, {v(vMT + i)}")
        A(f"s_lshl_b32 {s(t2)}, {s(S_WV)}, 2")
        A(f"v_lshrrev_b32 {v(vCa)}, 4, v1")
        A(f"v_add_u32 {v(vCa)}, {s(t2)}, {v(vCa)}")
        for i in range(3):
            A(f"v_mul_f32 {v(vSC + i)}, {v(vSC + i)}, {v(vMT + i)}")
        A(f"v_mul_u32_u24 {v(vCa)}, 272, {v(vCa)}")
        A(f"v_and_b32 {v(vMa)}, 7, v1")
        for i in range(3):
            A(f"v_cvt_pk_bf16_f32 {v(vSC + i)}, {v(vSC + i)}, {v(vSC + i)}")
        A(f"v_lshl_add_u32 {v(vCa)}, {v(vMa)}, 5, {v(vCa)}")
        for i in range(3):
            A(f"v_and_b32 {v(vSC + i)}, {s(S_MASKHI)}, {v(vSC + i)}")
        A(f"v_add_u32 {v(vCa)}, {L_MP}, {v(vCa)}")
        A.await_regs(v(vM, 12))
        for i in range(3):
            for k in range(4):
                A(f"v_lshlrev_b32 {v(vMT + 2 * k)}, 16, {v(vM + 4 * i + k)}")
                A(f"v_and_b32 {v(vMT + 2 * k + 1)}, {s(S_MASKHI)}, {v(vM + 4 * i + k)}")
            sc = vSC + i
            base, e = (sc, 0) if sc % 2 == 0 else (sc - 1, 1)
            for k in range(4):
                if i == 0:
                    A(f"v_pk_mul_f32 {v(vMA + 2 * k, 2)}, {v(vMT + 2 * k, 2)}, {v(base, 2)} op_sel:[0,{e}] op_sel_hi:[1,{e}]")
                else:
                    A(f"v_pk_fma_f32 {v(vMA + 2 * k, 2)}, {v(vMT + 2 * k, 2)}, {v(base, 2)}, {v(vMA + 2 * k, 2)} op_sel:[0,{e},0] op_sel_hi:[1,{e},1]")
        for k in range(8):
            A(f"v_add_f32_dpp {v(vMA + k)}, {v(vMA + k)}, {v(vMA + k)} row_ror:8 row_mask:0xf bank_mask:0xf")
        A(f"ds_write_b128 {v(vCa)}, {v(vMA, 4)}")
        A(f"ds_write_b128 {v(vCa)}, {v(vMA + 4, 4)} offset:16")
        A.barrier()
        self.stamp(23)
        vRB = 16
        for i in range(2):
            A(f"ds_read_b128 {v(vRB + 4 * i, 4)}, {v(vTPR)} offset:{L_TPK + 4352 * i}")
        for i in range(2):
            A(f"ds_read_b128 {v(vRB + 8 + 4 * i, 4)}, {v(vTPR)} offset:{L_TPQ + 4352 * i}")
        A(f"v_mul_f32 {v(m)}, {v(m)}, {v(q2)}")
        vF0, vJ = 100, 118
        A(f"v_lshlrev_b32 {v(vJ)}, 2, v1")
        A(f"v_add_u32 {v(vJ + 1)}, {L_TPN}, {v(vJ)}")
        for g_ in range(16):
            A(f"ds_read_b32 {v(vF0 + g_)}, {v(vJ + 1)} offset:{272 * g_}")
        A(f"s_mul_i32 {s(sRS)}, {s(sRS)}, {MPL}")
        A(f"s_lshl_b32 {s(sCG)}, {s(sCG)}, 8")
        A(f"s_add_u32 {s(sRS)}, {s(sRS)}, {s(sCG)}")
        A(f"s_add_u32 {s(sRS)}, {s(sRS)}, {MODF}")
        A.await_regs(v(vF0, 16))
        for stp in (8, 4, 2, 1):
            for g_ in range(stp):
                A(f"v_add_f32 {v(vF0 + g_)}, {v(vF0 + g_)}, {v(vF0 + g_ + stp)}")
        A(f"s_add_u32 {s(t0)}, {s(sTile)}, {KVP}")
        A(f"s_add_u32 {s(t1)}, {s(sTile)}, {KVP + 131072}")
        A(f"s_add_u32 {s(t2)}, {s(sTile)}, {QP}")
        A(f"s_add_u32 {s(u0)}, {s(sTile)}, {QP + 131072}")
        A.await_regs(v(vRB, 8))
        A(f"buffer_store_dwordx4 {v(vRB, 4)}, {v(vStO)}, {s(R_WS, 4)}, {s(t0)} offen sc1")
        A(f"buffer_store_dwordx4 {v(vRB + 4, 4)}, {v(vStO)}, {s(R_WS, 4)}, {s(t1)} offen sc1")
        A.await_regs(v(vRB + 8, 8))
        A(f"buffer_store_dwordx4 {v(vRB + 8, 4)}, {v(vStO)}, {s(R_WS, 4)}, {s(t2)} offen sc1")
        A(f"buffer_store_dwordx4 {v(vRB + 12, 4)}, {v(vStO)}, {s(R_WS, 4)}, {s(u0)} offen sc1")
        A(f"s_mov_b32 {s(t0)}, {STR}")
        A(f"s_mov_b32 {s(t1)}, {STM}")
        A(f"s_mov_b32 exec_lo, 0x00010001")
        A(f"s_mov_b32 exec_hi, 0x00010001")
        A(f"buffer_store_dword {v(q2)}, {v(vRow)}, {s(R_WS, 4)}, {s(t0)} offen sc1")
        A(f"buffer_store_dword {v(m)}, {v(vRow)}, {s(R_WS, 4)}, {s(t1)} offen sc1")
        A("s_mov_b64 exec, -1")
        skipm = self.lab("ms")
        A(f"s_cmp_lg_u32 {s(S_WV)}, 0")
        A(f"s_cbranch_scc1 {skipm}")
        A.cond_begin()
        A(f"buffer_store_dword {v(100)}, {v(118)}, {s(R_WS, 4)}, {s(sRS)} offen sc1")
        A.cond_end()
        A.label(skipm)
        self.stamp(24)
        def batch2():
            for e in range(2):
                R = R_B if e == 0 else R_C
                for ps in range(2):
                    b = vKD + 8 * (2 * e + ps)
                    A(f"buffer_load_dwordx4 {v(b, 4)}, {v(vKA if ps == 0 else vKA2)}, {s(R, 4)}, 0 offen")
                    A(f"buffer_load_dwordx2 {v(b + 4, 2)}, {v(vKB if ps == 0 else vKB2)}, {s(R, 4)}, 0 offen")
            for i in range(4):
                A(f"buffer_load_dwordx4 {v(vW + 4 * i, 4)}, {v(vWa)}, {s(R_D, 4)}, 0 offen")
                if i < 3:
                    A(f"v_add_u32 {v(vWa)}, {s(sStride)}, {v(vWa)}")

        mark = A.vm_count
        if not self.o.get("b2_late", 0):
            batch2()
        A(f"s_add_u32 {s(S_NONCE)}, {s(S_NONCE)}, 1")
        A(f"s_lshl_b32 {s(t0)}, {s(S_CP)}, 7")
        A(f"s_add_u32 {s(t0)}, {s(t0)}, {FL + F1 * 128}")
        A.wait_vm(A.vm_count - mark)
        A.barrier()
        self.flag_store(t0)
        if self.o.get("b2_late", 0):
            batch2()
        self.stamp(3)
        vx4 = 48
        for e in range(2):
            for ps in range(2):
                b = vKD + 8 * (2 * e + ps)
                base = e * 4 * CS
                ad = vKW + ps
                A.await_regs(v(b, 6))
                for i in range(4):
                    A(f"v_alignbit_b32 {v(vx4 + i)}, {v(b + i + 1)}, {v(b + i)}, 16")
                for i in range(4):
                    A(f"v_mov_b32 {v(vx4 + 4 + i)}, {v(b + i + 1)}")
                for i in range(4):
                    A(f"v_alignbit_b32 {v(vx4 + 8 + i)}, {v(b + i + 2)}, {v(b + i + 1)}, 16")
                A(f"ds_write_b128 {v(ad)}, {v(b, 4)} offset:{base}")
                A(f"ds_write_b128 {v(ad)}, {v(vx4, 4)} offset:{base + CS}")
                A(f"ds_write_b128 {v(ad)}, {v(vx4 + 4, 4)} offset:{base + 2 * CS}")
                A(f"ds_write_b128 {v(ad)}, {v(vx4 + 8, 4)} offset:{base + 3 * CS}")
        A.await_regs(v(vW, 16))
        for i in range(4):
            A(f"ds_write_b128 {v(vWw)}, {v(vW + 4 * i, 4)} offset:{L_WB + 1088 * i}")
        A.barrier()
        self.stamp(25)
        for i in range(4):
            A(f"ds_read_b64_tr_b16 {v(220 + 4 * i, 2)}, {v(vTR0)} offset:{L_WB + 256 * i}")
            A(f"ds_read_b64_tr_b16 {v(220 + 4 * i + 2, 2)}, {v(vTR1)} offset:{L_WB + 256 * i}")
        self.wr = dict(sWB=sWB, sD0=sD0, sDS=sDS)
        if self.o.get("w_early", 1):
            self.w_stores()
        self.stamp(26)

    def w_stores(self):
        A = self.A
        vF, sD0, sDS = 220, self.wr["sD0"], self.wr["sDS"]
        A.await_regs(v(vF, 16))
        for i in range(3):
            A(f"buffer_store_dwordx4 {v(vF + 4 * i, 4)}, v4, {s(R_WS, 4)}, {s(sD0)} offen sc1")
            A(f"s_add_u32 {s(sD0)}, {s(sD0)}, {s(sDS)}")
        skip = self.lab("w4")
        A(f"s_cmp_ge_u32 {s(S_WV)}, 2")
        A(f"s_cbranch_scc1 {skip}")
        A.cond_begin()
        A(f"buffer_store_dwordx4 {v(vF + 12, 4)}, v4, {s(R_WS, 4)}, {s(sD0)} offen sc1")
        A.cond_end()
        A.label(skip)

    def poll2_issue(self, va, vb, vt):
        A = self.A
        A(f"buffer_load_dword {v(vt)}, {v(va)}, {s(R_WS, 4)}, 0 offen sc1")
        A(f"buffer_load_dword {v(vt + 1)}, {v(vb)}, {s(R_WS, 4)}, 0 offen sc1")

    def poll1_check(self, va, vt):
        A = self.A
        done = self.lab("p1d")
        A(f"v_cmp_ne_u32 vcc, {s(S_NONCE)}, {v(vt)}")
        A("s_nop 1")
        A("s_cmp_eq_u64 vcc, 0")
        A(f"s_cbranch_scc1 {done}")
        st = A.snapshot()
        self.poll(va, vt)
        A.restore(st)
        A.label(done)

    def poll2_check(self, va, vb, vt):
        A = self.A
        loop, done = self.lab("p2"), self.lab("p2d")
        A(f"v_cmp_ne_u32 vcc, {s(S_NONCE)}, {v(vt)}")
        A(f"v_cmp_ne_u32 {s(S_SPIN + 2, 2)}, {s(S_NONCE)}, {v(vt + 1)}")
        A(f"s_mov_b32 {s(S_SPIN)}, 0")
        A("s_nop 1")
        A(f"s_or_b64 vcc, vcc, {s(S_SPIN + 2, 2)}")
        A("s_cmp_eq_u64 vcc, 0")
        A(f"s_cbranch_scc1 {done}")
        st = A.snapshot()
        A.label(loop)
        A(f"buffer_load_dword {v(vt)}, {v(va)}, {s(R_WS, 4)}, 0 offen sc1")
        A(f"buffer_load_dword {v(vt + 1)}, {v(vb)}, {s(R_WS, 4)}, 0 offen sc1")
        A.wait_vm(0)
        A(f"v_cmp_ne_u32 vcc, {s(S_NONCE)}, {v(vt)}")
        A(f"v_cmp_ne_u32 {s(S_SPIN + 2, 2)}, {s(S_NONCE)}, {v(vt + 1)}")
        A(f"s_add_u32 {s(S_SPIN)}, {s(S_SPIN)}, 1")
        A("s_nop 1")
        A(f"s_or_b64 vcc, vcc, {s(S_SPIN + 2, 2)}")
        A("s_cmp_eq_u64 vcc, 0")
        A(f"s_cbranch_scc1 {done}")
        A(f"s_cmp_lt_u32 {s(S_SPIN)}, {SPIN_MAX}")
        A(f"s_cbranch_scc1 {loop}")
        A.restore(st)
        A.label(done)

    def phase_a(self):
        A = self.A
        T = S_T
        t0, t1, t2 = T, T + 1, T + 2
        vPa, vPt, vx, vy = 2, 3, 16, 17
        A(f"v_min_u32 {v(vPa)}, 55, v1")
        A(f"s_mul_i32 {s(t0)}, {s(S_WV)}, 56")
        A(f"v_add_u32 {v(vPa)}, {s(t0)}, {v(vPa)}")
        A(f"v_lshlrev_b32 {v(vPa)}, 7, {v(vPa)}")
        A(f"v_add_u32 {v(vPa)}, {FL + F1 * 128}, {v(vPa)}")
        vL16 = 4
        sKV = S_OFF + 2
        A(f"s_lshl_b32 {s(sKV)}, {s(S_CP)}, 13")
        A(f"s_lshl_b32 {s(t2)}, {s(S_WV)}, 11")
        A(f"s_add_u32 {s(sKV)}, {s(sKV)}, {s(t2)}")
        vUW, vaA, vaB = 5, 6, 7
        A(f"s_lshl_b32 {s(t0)}, {s(S_WV)}, 10")
        A(f"s_sub_u32 {s(t0)}, {4088 - 512}, {s(t0)}")
        A(f"v_lshlrev_b32 {v(vx)}, 3, v1")
        A(f"v_sub_u32 {v(vUW)}, {s(t0)}, {v(vx)}")
        A(f"v_and_b32 {v(vx)}, 15, v1")
        A(f"v_add_u32 {v(vx)}, 1, {v(vx)}")
        A(f"v_and_b32 {v(vy)}, 3, {v(vx)}")
        A(f"v_sub_u32 {v(vx)}, {v(vx)}, {v(vy)}")
        A(f"v_lshlrev_b32 {v(vx)}, 1, {v(vx)}")
        A(f"v_mul_u32_u24 {v(vy)}, {CS}, {v(vy)}")
        A(f"v_add_u32 {v(vaA)}, {v(vx)}, {v(vy)}")
        A(f"v_lshrrev_b32 {v(vy)}, 4, v1")
        A(f"v_lshl_add_u32 {v(vaA)}, {v(vy)}, 4, {v(vaA)}")
        A(f"s_lshr_b32 {s(t0)}, {s(S_WV)}, 1")
        A(f"s_and_b32 {s(t1)}, {s(S_WV)}, 1")
        A(f"s_mul_i32 {s(t2)}, {s(t0)}, {4 * CS}")
        A(f"s_lshl_b32 {s(t1)}, {s(t1)}, 8")
        A(f"s_add_u32 {s(t2)}, {s(t2)}, {s(t1)}")
        A(f"s_add_u32 {s(t2)}, {s(t2)}, {L_KC}")
        A(f"v_add_u32 {v(vaA)}, {s(t2)}, {v(vaA)}")
        A(f"v_and_b32 {v(vx)}, 15, v1")
        A(f"v_lshlrev_b32 {v(vx)}, 5, {v(vx)}")
        A(f"v_lshlrev_b32 {v(vy)}, 4, {v(vy)}")
        A(f"v_sub_u32 {v(vaB)}, {v(vy)}, {v(vx)}")
        A(f"s_mul_i32 {s(t2)}, {s(t0)}, 4608")
        A(f"s_add_u32 {s(t2)}, {s(t2)}, {s(t1)}")
        A(f"s_add_u32 {s(t2)}, {s(t2)}, {L_UR + 480}")
        A(f"v_add_u32 {v(vaB)}, {s(t2)}, {v(vaB)}")
        vPW, vPM, vPR = 18, 19, 20
        A(f"s_lshl_b32 {s(t0)}, {s(S_J)}, 3")
        A(f"s_lshl_b32 {s(t1)}, {s(S_WV)}, 1")
        A(f"s_add_u32 {s(t0)}, {s(t0)}, {s(t1)}")
        A(f"s_mul_i32 {s(t0)}, {s(t0)}, 147")
        A(f"s_lshr_b32 {s(t0)}, {s(t0)}, 11")
        A(f"v_min_u32 {v(vx)}, 27, v1")
        A(f"v_lshl_add_u32 {v(vPW)}, {v(vx)}, 2, {s(t0)}")
        A(f"s_mul_i32 {s(t1)}, {s(S_WV)}, 28")
        A(f"s_add_u32 {s(t1)}, {s(t1)}, {112 - 32}")
        A(f"v_min_u32 {v(vy)}, 59, v1")
        A(f"v_add_u32 {v(vy)}, {s(t1)}, {v(vy)}")
        A(f"v_cmp_gt_u32 vcc, 32, v1")
        A(f"v_cndmask_b32 {v(vPW)}, {v(vy)}, {v(vPW)}, vcc")
        A(f"v_lshlrev_b32 {v(vPW)}, 7, {v(vPW)}")
        A(f"v_add_u32 {v(vPW)}, {FL + FQ * 128}, {v(vPW)}")
        A(f"s_add_u32 {s(t1)}, {s(sKV)}, {KVP}")
        self.poll(vPa, vPt)
        A.barrier()
        if self.o.get("w_early", 1):
            A(f"s_lshl_b32 {s(t0)}, {s(self.wr['sWB'])}, 7")
            A(f"s_add_u32 {s(t0)}, {s(t0)}, {FL + FQ * 128}")
            self.flag_store(t0)
        self.stamp(5)
        vKV = 8
        for h in range(2):
            A(f"buffer_load_dwordx4 {v(vKV + 4 * h, 4)}, {v(vL16)}, {s(R_WS, 4)}, {s(t1)} offen offset:{1024 * h} sc1")
        vQn, vRs, vMs = 144, 152, 160
        A(f"s_add_u32 {s(t1)}, {s(sKV)}, {QP}")
        for h in range(2):
            A(f"buffer_load_dwordx4 {v(vQn + 4 * h, 4)}, {v(vL16)}, {s(R_WS, 4)}, {s(t1)} offen offset:{1024 * h} sc1")
        A(f"s_lshl_b32 {s(t0)}, {s(S_WV)}, 11")
        A(f"s_add_u32 {s(t1)}, {s(t0)}, {STR}")
        A(f"s_add_u32 {s(t2)}, {s(t0)}, {STM}")
        for h in range(2):
            A(f"buffer_load_dwordx4 {v(vRs + 4 * h, 4)}, {v(vL16)}, {s(R_WS, 4)}, {s(t1)} offen offset:{1024 * h} sc1")
            A(f"buffer_load_dwordx4 {v(vMs + 4 * h, 4)}, {v(vL16)}, {s(R_WS, 4)}, {s(t2)} offen offset:{1024 * h} sc1")
        vPS, vPA, vPG, vPD, vPar = 168, 170, 172, 174, 176
        vMP, vPP, vGP = 186, 188, 208
        A(f"v_lshrrev_b32 {v(vx)}, 3, v1")
        A(f"v_mul_u32_u24 {v(vx)}, 1792, {v(vx)}")
        A(f"v_and_b32 {v(vy)}, 7, v1")
        A(f"v_cmp_gt_u32 vcc, 5, {v(vy)}")
        A(f"v_mul_u32_u24 {v(vy)}, {MPL}, {v(vy)}")
        A(f"v_add_u32 {v(vx)}, {v(vx)}, {v(vy)}")
        A(f"s_lshl_b32 {s(t0)}, {s(S_CP)}, 3")
        A(f"s_add_u32 {s(t0)}, {s(t0)}, {MODF}")
        A(f"v_add_u32 {v(vx)}, {s(t0)}, {v(vx)}")
        A(f"v_mov_b32 {v(vy)}, 0x80000000")
        A(f"v_cndmask_b32 {v(vx)}, {v(vy)}, {v(vx)}, vcc")
        A(f"buffer_load_dwordx2 {v(vMP, 2)}, {v(vx)}, {s(R_WS, 4)}, 0 offen sc1")
        self.srd(R_A, P_D, 896)
        A(f"s_lshl_b32 {s(t0)}, {s(S_CP)}, 2")
        A(f"v_mov_b32 {v(vy)}, {s(t0)}")
        A(f"buffer_load_dword {v(vPD + 1)}, {v(vy)}, {s(R_A, 4)}, 0 offen")
        A(f"v_lshlrev_b32 {v(vx)}, 3, v0")
        for pl in range(5):
            A(f"s_mov_b32 {s(t0)}, {MODF + pl * MPL + 4 * 1792}")
            A(f"s_mov_b32 {s(t1)}, {MODF + pl * MPL + 3 * 1792}")
            A(f"buffer_load_dwordx2 {v(vPP + 4 * pl, 2)}, {v(vx)}, {s(R_WS, 4)}, {s(t0)} offen sc1")
            A(f"buffer_load_dwordx2 {v(vPP + 4 * pl + 2, 2)}, {v(vx)}, {s(R_WS, 4)}, {s(t1)} offen sc1")
        A(f"v_lshlrev_b32 {v(vy)}, 2, v1")
        A(f"s_lshl_b32 {s(t2)}, {s(S_J)}, 8")
        for pl in range(5):
            A(f"s_add_u32 {s(t0)}, {s(t2)}, {MODF + pl * MPL + 5 * 1792}")
            A(f"buffer_load_dword {v(vGP + pl)}, {v(vy)}, {s(R_WS, 4)}, {s(t0)} offen sc1")
        if not self.o.get("w_early", 1):
            self.w_stores()
        vP = 22
        A.await_regs(v(vKV, 8))
        for h in range(2):
            d = vKV + 4 * h
            for e, sel in ((0, S_PERM_LO), (1, S_PERM_HI)):
                o = vP + 4 * h + 2 * e
                A(f"v_perm_b32 {v(o)}, {v(d + 2)}, {v(d + 3)}, {s(sel)}")
                A(f"v_perm_b32 {v(o + 1)}, {v(d)}, {v(d + 1)}, {s(sel)}")
        for h in range(2):
            for e in range(2):
                o = vP + 4 * h + 2 * e
                A(f"ds_write_b64 {v(vUW)}, {v(o, 2)} offset:{L_UR + 4608 * e + (512 if h == 0 else 0)}")
        A.barrier()
        self.stamp(6)
        ACC = 32
        BS = [64, 96]
        AR = 128

        def ldB(rp, m):
            A(f"ds_read_b128 {v(BS[rp & 1] + 4 * m, 4)}, {v(vaB)} offset:{64 * rp + 512 * (7 - m)}")

        def ldA(idx):
            rp, q = divmod(idx, 8)
            r = AR + 4 * (idx % 4)
            A(f"ds_read_b64 {v(r, 2)}, {v(vaA)} offset:{64 * rp + 512 * q}")
            A(f"ds_read_b64 {v(r + 2, 2)}, {v(vaA)} offset:{64 * rp + 512 * q + 8}")

        ldA(0)
        for m in range(8):
            ldB(0, m)
        ldA(1)
        ldA(2)
        nm = 0
        self.bg_setup()
        for rp in range(4):
            for q in range(8):
                idx = rp * 8 + q
                ar = AR + 4 * (idx % 4)
                first = True
                for n in range(q, 8):
                    c = "0" if (rp == 0 and q == 0) else v(ACC + 4 * n, 4)
                    if first:
                        regs = [v(ar, 4)]
                        if q == 0:
                            regs.append(v(BS[rp & 1], 32))
                        A.await_regs(*regs)
                    A(f"v_mfma_f32_16x16x32_bf16 {v(ACC + 4 * n, 4)}, {v(ar, 4)}, {v(BS[rp & 1] + 4 * (n - q), 4)}, {c}")
                    nm += 1
                    if first:
                        first = False
                        if idx + 3 < 32:
                            ldA(idx + 3)
                        if rp < 3 and 0 <= q <= 3:
                            ldB(rp + 1, 2 * q)
                            ldB(rp + 1, 2 * q + 1)
                    if rp >= 2 and self.o.get("conv_pace", 0) and nm % self.o["conv_pace"] == 0:
                        self.bg_emit(1)
        self.stamp(7)
        vRW, vRR, vSt = 183, 19, 182
        A(f"v_and_b32 {v(vx)}, 15, v1")
        A(f"v_mul_u32_u24 {v(vRW)}, 80, {v(vx)}")
        A(f"v_lshrrev_b32 {v(vy)}, 4, v1")
        A(f"v_lshl_add_u32 {v(vRW)}, {v(vy)}, 4, {v(vRW)}")
        A(f"s_mul_i32 {s(t0)}, {s(S_WV)}, 10240")
        A(f"s_add_u32 {s(t0)}, {s(t0)}, {L_RED}")
        A(f"v_add_u32 {v(vRW)}, {s(t0)}, {v(vRW)}")
        A(f"v_mul_u32_u24 {v(vSt)}, 57344, {v(vy)}")
        A(f"v_lshl_add_u32 {v(vSt)}, {v(vx)}, 4, {v(vSt)}")
        for n in range(8):
            A(f"ds_write_b128 {v(vRW)}, {v(ACC + 4 * n, 4)} offset:{1280 * n}")
        A(f"v_lshrrev_b32 {v(vx)}, 2, v1")
        A(f"v_mul_u32_u24 {v(vRR)}, 80, {v(vx)}")
        A(f"v_and_b32 {v(vy)}, 3, v1")
        A(f"v_lshl_add_u32 {v(vRR)}, {v(vy)}, 4, {v(vRR)}")
        A(f"s_mul_i32 {s(t0)}, {s(S_WV)}, 2560")
        A(f"s_add_u32 {s(t0)}, {s(t0)}, {L_RED}")
        A(f"v_add_u32 {v(vRR)}, {s(t0)}, {v(vRR)}")
        sX = S_OFF + 3
        A(f"s_mul_i32 {s(sX)}, {s(S_WV)}, {2 * 229376}")
        A(f"s_lshl_b32 {s(t0)}, {s(S_CP)}, 8")
        A(f"s_add_u32 {s(sX)}, {s(sX)}, {s(t0)}")
        A(f"s_add_u32 {s(sX)}, {s(sX)}, {X1P}")
        A(f"s_add_u32 {s(t1)}, {s(sX)}, 229376")
        U, Q, N = 64, 80, 200
        A.await_regs(v(vMP, 2), v(vPP, 20), v(vGP, 5))
        for mod in ("quad_perm:[1,0,3,2]", "quad_perm:[2,3,0,1]", "row_half_mirror"):
            for k in range(2):
                A(f"v_add_f32_dpp {v(vMP + k)}, {v(vMP + k)}, {v(vMP + k)} {mod} row_mask:0xf bank_mask:0xf")
        for pl in (1, 3):
            A(f"v_pk_add_f32 {v(vPP + 4 * pl - 4, 2)}, {v(vPP + 4 * pl - 4, 2)}, {v(vPP + 4 * pl, 2)}")
            A(f"v_pk_add_f32 {v(vPP + 4 * pl - 2, 2)}, {v(vPP + 4 * pl - 2, 2)}, {v(vPP + 4 * pl + 2, 2)}")
            A(f"v_add_f32 {v(vGP + pl - 1)}, {v(vGP + pl - 1)}, {v(vGP + pl)}")
        A(f"v_cvt_pk_bf16_f32 {v(vMP)}, {v(vMP)}, {v(vMP + 1)}")
        A(f"v_pk_add_f32 {v(vPP, 2)}, {v(vPP, 2)}, {v(vPP + 8, 2)}")
        A(f"v_pk_add_f32 {v(vPP + 2, 2)}, {v(vPP + 2, 2)}, {v(vPP + 10, 2)}")
        A(f"v_add_f32 {v(vGP)}, {v(vGP)}, {v(vGP + 2)}")
        r0, r1, r2 = T + 12, T + 13, T + 14
        A(f"v_readlane_b32 {s(r0)}, {v(vMP)}, 0")
        A(f"v_readlane_b32 {s(r1)}, {v(vMP)}, 8")
        A(f"v_readlane_b32 {s(r2)}, {v(vMP)}, 16")
        A(f"v_pk_add_f32 {v(vPP, 2)}, {v(vPP, 2)}, {v(vPP + 16, 2)}")
        A(f"v_pk_add_f32 {v(vPP + 2, 2)}, {v(vPP + 2, 2)}, {v(vPP + 18, 2)}")
        A(f"v_add_f32 {v(vGP)}, {v(vGP)}, {v(vGP + 4)}")
        for reg, sr in ((vPS, r0), (vPA, r1), (vPG, r2)):
            A(f"v_lshlrev_b32 {v(reg)}, 16, {s(sr)}")
            A(f"v_mov_b32 {v(reg + 1)}, {s(sr)}")
        for reg in (vPS, vPA, vPG):
            A(f"v_and_b32 {v(reg + 1)}, {s(S_MASKHI)}, {v(reg + 1)}")
        A(f"v_cvt_pk_bf16_f32 {v(vPar)}, {v(vPP)}, {v(vPP + 1)}")
        A(f"v_cvt_pk_bf16_f32 {v(vPar + 2)}, {v(vPP + 2)}, {v(vPP + 3)}")
        A(f"v_cvt_pk_bf16_f32 {v(vPar + 4)}, {v(vGP)}, {v(vGP)}")
        A(f"v_add_f32 {v(vPA)}, 1.0, {v(vPA)}")
        A(f"v_add_f32 {v(vPA + 1)}, 1.0, {v(vPA + 1)}")
        A(f"v_and_b32 {v(vPar + 1)}, {s(S_MASKHI)}, {v(vPar)}")
        A(f"v_lshlrev_b32 {v(vPar)}, 16, {v(vPar)}")
        A(f"v_and_b32 {v(vPar + 3)}, {s(S_MASKHI)}, {v(vPar + 2)}")
        A(f"v_lshlrev_b32 {v(vPar + 2)}, 16, {v(vPar + 2)}")
        A(f"v_and_b32 {v(vPar + 4)}, {s(S_MASKHI)}, {v(vPar + 4)}")
        A(f"v_cvt_pk_bf16_f32 {v(vPA)}, {v(vPA)}, {v(vPA + 1)}")
        A(f"v_add_f32 {v(vPar)}, 1.0, {v(vPar)}")
        A(f"v_add_f32 {v(vPar + 1)}, 1.0, {v(vPar + 1)}")
        A(f"v_and_b32 {v(vPA + 1)}, {s(S_MASKHI)}, {v(vPA)}")
        A(f"v_lshlrev_b32 {v(vPA)}, 16, {v(vPA)}")
        A(f"v_cvt_pk_bf16_f32 {v(vPar)}, {v(vPar)}, {v(vPar + 1)}")
        A(f"v_and_b32 {v(vPar + 1)}, {s(S_MASKHI)}, {v(vPar)}")
        A(f"v_lshlrev_b32 {v(vPar)}, 16, {v(vPar)}")
        A.await_regs(v(vQn, 8), v(vRs, 8), v(vMs, 8), v(vPD + 1))
        A(f"v_lshlrev_b32 {v(vPD)}, 16, {v(vPD + 1)}")
        A(f"v_and_b32 {v(vPD + 1)}, {s(S_MASKHI)}, {v(vPD + 1)}")
        for h in range(2):
            for e in range(2):
                for r in range(4):
                    for dst, src in ((U, vKV), (Q, vQn)):
                        d = dst + 8 * h + 4 * e + r
                        if e == 0:
                            A(f"v_lshlrev_b32 {v(d)}, 16, {v(src + 4 * h + r)}")
                        else:
                            A(f"v_and_b32 {v(d)}, {s(S_MASKHI)}, {v(src + 4 * h + r)}")
        for h in range(2):
            for e in range(2):
                for k in (0, 2):
                    o = 8 * h + 4 * e + k
                    A(f"v_pk_fma_f32 {v(N + o, 2)}, {v(Q + o, 2)}, {v(vRs + 4 * h + k, 2)}, {v(vMs + 4 * h + k, 2)} neg_lo:[0,0,1] neg_hi:[0,0,1]")
        for h in range(2):
            for e in range(2):
                for k in (0, 2):
                    o = 8 * h + 4 * e + k
                    A(f"v_pk_fma_f32 {v(N + o, 2)}, {v(N + o, 2)}, {v(vPA, 2)}, {v(vPS, 2)} op_sel:[0,{e},{e}] op_sel_hi:[1,{e},{e}]")
        for h in range(2):
            for e in range(2):
                for k in (0, 2):
                    o = 8 * h + 4 * e + k
                    A(f"v_pk_mul_f32 {v(N + o, 2)}, {v(N + o, 2)}, {v(vPG, 2)} op_sel:[0,{e}] op_sel_hi:[1,{e}]")
        if self.o.get("w_early", 1):
            A.barrier()
        else:
            A.wait_vm(0)
            A.barrier()
            A(f"s_lshl_b32 {s(t0)}, {s(self.wr['sWB'])}, 7")
            A(f"s_add_u32 {s(t0)}, {s(t0)}, {FL + FQ * 128}")
            self.flag_store(t0)
        self.stamp(30)
        vY = 96
        for h in range(2):
            for w in range(4):
                A(f"ds_read_b128 {v(vY + 16 * h + 4 * w, 4)}, {v(vRR)} offset:{10240 * w + 1280 * h}")
        A(f"s_mov_b32 {s(t2)}, 0x{f32bits(LOG2E):08x}")
        A(f"v_lshlrev_b32 {v(vx)}, 4, v0")
        A(f"v_add_u32 {v(vx)}, {L_PAR}, {v(vx)}")
        A(f"v_lshlrev_b32 {v(vy)}, 2, v1")
        A(f"v_add_u32 {v(vy)}, {L_GB}, {v(vy)}")
        A.await_regs(v(vPar, 4), v(vPar + 4))
        for r_ in range(vPar, vPar + 4):
            A(f"v_mul_f32 {v(r_)}, {s(t2)}, {v(r_)}")
        A(f"ds_write_b128 {v(vx)}, {v(vPar, 4)}")
        A(f"ds_write_b32 {v(vy)}, {v(vPar + 4)}")
        vOut = 128
        for h in range(2):
            A.await_regs(v(vY + 16 * h, 16))
            ys = [(e, k, vY + 16 * h + 8 * e + k, 8 * h + 4 * e + k) for e in range(2) for k in (0, 2)]
            for e, k, y, o in ys:
                A(f"v_pk_add_f32 {v(y, 2)}, {v(y, 2)}, {v(y + 4, 2)}")
            for e, k, y, o in ys:
                A(f"v_pk_fma_f32 {v(y, 2)}, {v(U + o, 2)}, {v(vPD, 2)}, {v(y, 2)} op_sel:[0,{e},0] op_sel_hi:[1,{e},1]")
            for e, k, y, o in ys:
                A(f"v_pk_fma_f32 {v(y, 2)}, {v(N + o, 2)}, {v(y, 2)}, {v(Q + o, 2)}")
            for r in range(4):
                A(f"v_cvt_pk_bf16_f32 {v(vOut + 4 * h + r)}, {v(vY + 16 * h + r)}, {v(vY + 16 * h + 8 + r)}")
            A(f"buffer_store_dwordx4 {v(vOut + 4 * h, 4)}, {v(vSt)}, {s(R_WS, 4)}, {s(sX if h == 0 else t1)} offen sc1")
        self.stamp(8)
        A(f"s_lshl_b32 {s(t0)}, {s(S_CP)}, 7")
        A(f"s_add_u32 {s(t0)}, {s(t0)}, {FL + F2 * 128}")
        mark = A.vm_count
        A(f"buffer_load_dword {v(vPR)}, {v(vPW)}, {s(R_WS, 4)}, 0 offen sc1")
        A.wait_vm(A.vm_count - mark)
        A.barrier()
        self.flag_store(t0)
        self.poll1_check(vPW, vPR)
        self.bg_emit(self.n_burst_t2)
        self.stamp(9)

    def phase_b(self):
        A = self.A
        T = S_T
        t0, t1, t2 = T, T + 1, T + 2
        vPa, vPt = 2, 4
        A(f"v_min_u32 {v(vPa)}, 55, v1")
        A(f"s_mul_i32 {s(t0)}, {s(S_WV)}, 56")
        A(f"v_add_u32 {v(vPa)}, {s(t0)}, {v(vPa)}")
        A(f"v_lshlrev_b32 {v(vPa)}, 7, {v(vPa)}")
        A(f"v_add_u32 {v(vPa)}, {FL + F2 * 128}, {v(vPa)}")
        self.poll(vPa, vPt)
        A.barrier()
        self.stamp(10)
        A(f"s_lshr_b32 {s(t0)}, {s(S_WV)}, 1")
        A(f"s_lshl_b32 {s(t0)}, {s(t0)}, 10")
        A(f"v_add_u32 v{V_W2O[0]}, {s(t0)}, v{V_L16}")
        A(f"s_sub_u32 {s(t0)}, 1024, {s(t0)}")
        A(f"v_add_u32 v{V_W2O[1]}, {s(t0)}, v{V_L16}")
        vL16 = 4
        A(f"v_lshlrev_b32 {v(vL16)}, 4, v1")
        A(f"s_mul_i32 {s(t1)}, {s(S_WV)}, 14336")
        A(f"s_mul_i32 {s(t0)}, {s(S_RB)}, 57344")
        A(f"s_add_u32 {s(t0)}, {s(t0)}, {s(t1)}")
        A(f"s_add_u32 {s(t0)}, {s(t0)}, {X1P}")
        A(f"s_add_u32 {s(t1)}, {s(t1)}, {L_XD}")
        A(f"s_mov_b32 m0, {s(t1)}")
        for i in range(14):
            if i and i % 4 == 0:
                A(f"s_add_u32 {s(t0)}, {s(t0)}, 4096")
                A(f"s_add_u32 m0, m0, 4096")
            A.dma(f"buffer_load_dwordx4 {v(vL16)}, {s(R_WS, 4)}, {s(t0)} offen offset:{1024 * (i % 4)} sc1 lds", f"x{i}")
        skip = self.lab("ep")
        A(f"s_cmp_lg_u32 {s(S_CP)}, 0")
        A(f"s_cbranch_scc1 {skip}")
        A.cond_begin()
        A(f"s_mov_b32 {s(t0)}, 0")
        self.flag_store(t0)
        A.cond_end()
        A.label(skip)
        if self.o.get("pretouch", 0):
            A(f"s_mul_i32 {s(t0)}, {s(S_RB)}, 112")
            A(f"s_lshl_b32 {s(t2)}, {s(S_J)}, 4")
            A(f"s_add_u32 {s(t0)}, {s(t0)}, {s(t2)}")
            A(f"s_lshl_b32 {s(t2)}, {s(S_WV)}, 2")
            A(f"s_add_u32 {s(t0)}, {s(t0)}, {s(t2)}")
            A(f"s_lshl_b32 {s(t0)}, {s(t0)}, 11")
            A(f"s_add_u32 {s(t0)}, {s(t0)}, {HF}")
            A(f"v_lshlrev_b32 v6, 7, v1")
            A(f"buffer_load_dword v252, v6, {s(R_WS, 4)}, {s(t0)} offen")
        X = 88
        vXR = 5
        A(f"v_lshlrev_b32 {v(vXR)}, 2, v1")
        A(f"v_add_u32 {v(vXR)}, {s(t1)}, {v(vXR)}")

        XR = 72

        def ldX(g):
            A.need(f"x{g}")
            r = XR + 4 * (g % 4)
            A(f"ds_read2st64_b32 {v(r, 2)}, {v(vXR)} offset0:{4 * g} offset1:{4 * g + 1}")
            A(f"ds_read2st64_b32 {v(r + 2, 2)}, {v(vXR)} offset0:{4 * g + 2} offset1:{4 * g + 3}")

        vS = 8
        for g in range(3):
            ldX(g)
        self.stamp(27)
        for g in range(14):
            src = XR + 4 * (g % 4)
            A.await_regs(v(src, 4))
            if g + 3 < 14:
                ldX(g + 3)
            for k in range(4):
                e = 4 * g + k
                r = X + 2 * e
                A(f"v_lshlrev_b32 {v(r)}, 16, {v(src + k)}")
                A(f"v_and_b32 {v(r + 1)}, {s(S_MASKHI)}, {v(src + k)}")
            for k in range(4):
                e = 4 * g + k
                r = X + 2 * e
                s1, s2 = vS + 2 * (e & 1), vS + 4 + 2 * (e & 1)
                if e < 2:
                    A(f"v_mov_b32 {v(s1)}, {v(r)}")
                    A(f"v_mov_b32 {v(s1 + 1)}, {v(r + 1)}")
                    A(f"v_pk_mul_f32 {v(s2, 2)}, {v(r, 2)}, {v(r, 2)}")
                else:
                    A(f"v_pk_add_f32 {v(s1, 2)}, {v(s1, 2)}, {v(r, 2)}")
                    A(f"v_pk_fma_f32 {v(s2, 2)}, {v(r, 2)}, {v(r, 2)}, {v(s2, 2)}")
            if g >= 14 - self.o.get("n_bstat", 11):
                self.bg_emit(1)
        A(f"v_pk_add_f32 {v(vS, 2)}, {v(vS, 2)}, {v(vS + 2, 2)}")
        A(f"v_pk_add_f32 {v(vS + 4, 2)}, {v(vS + 4, 2)}, {v(vS + 6, 2)}")
        A(f"v_add_f32 {v(vS)}, {v(vS)}, {v(vS + 1)}")
        A(f"v_add_f32 {v(vS + 1)}, {v(vS + 4)}, {v(vS + 5)}")
        vSW = 5
        A(f"v_lshlrev_b32 {v(vSW)}, 3, v1")
        A(f"v_add_u32 {v(vSW)}, {L_STAT}, {v(vSW)}")
        A(f"s_lshl_b32 {s(t0)}, {s(S_WV)}, 9")
        A(f"v_add_u32 v6, {s(t0)}, {v(vSW)}")
        A(f"ds_write_b64 v6, {v(vS, 2)}")
        self.stamp(28)
        vPb = 6
        vHW = 7
        A(f"v_lshrrev_b32 v22, 5, v1")
        A(f"v_lshlrev_b32 {v(vHW)}, 10, v22")
        A(f"v_and_b32 v22, 31, v1")
        A(f"v_lshl_add_u32 {v(vHW)}, v22, 4, {v(vHW)}")
        A(f"s_mul_i32 {s(t0)}, {s(S_WV)}, {7 * 2048}")
        A(f"v_add_u32 {v(vHW)}, {s(t0)}, {v(vHW)}")
        A(f"s_mul_i32 {s(t0)}, {s(S_WV)}, 896")
        A(f"s_add_u32 {s(t0)}, {s(t0)}, {L_PAR}")
        A.barrier()
        for w in range(4):
            A(f"ds_read_b64 {v(16 + 2 * w, 2)}, {v(vSW)} offset:{512 * w}")
        A(f"v_mov_b32 {v(vPb)}, {s(t0)}")
        def PRq(e):
            k = e % 12
            return 24 + 4 * k if k < 8 else 72 + 4 * (k - 8)
        OUT = 56

        def ldP(e):
            if self.o.get("b_nopar"):
                return
            A(f"ds_read_b128 {v(PRq(e), 4)}, {v(vPb)} offset:{16 * e}")

        for e in range(8):
            ldP(e)
        A("v_pk_add_f32 v[16:17], v[16:17], v[18:19]")
        A("v_pk_add_f32 v[20:21], v[20:21], v[22:23]")
        A("v_pk_add_f32 v[16:17], v[16:17], v[20:21]")
        A(f"s_mov_b32 {s(t0)}, 0x{f32bits(1.0 / 448):08x}")
        A(f"s_mov_b32 {s(t1)}, 0x{f32bits(1e-5):08x}")
        A(f"v_mul_f32 v16, {s(t0)}, v16")
        A(f"v_mul_f32 v17, {s(t0)}, v17")
        A("v_fma_f32 v17, -v16, v16, v17")
        A("v_max_f32 v17, 0, v17")
        A(f"v_add_f32 v17, {s(t1)}, v17")
        vR, vM = 18, 20
        A(f"v_rsq_f32 {v(vR)}, v17")
        A(f"v_mul_f32 {v(vM)}, v16, {v(vR)}")
        self.stamp(29)
        for e0 in range(0, 56, 4):
            A.await_regs(*[v(PRq(e0 + k), 4) for k in range(4)])
            for k in range(8, 12):
                if e0 + k < 56:
                    ldP(e0 + k)
            for e in range(e0, e0 + 4):
                r = X + 2 * e
                A(f"v_pk_fma_f32 {v(r, 2)}, {v(r, 2)}, {v(vR, 2)}, {v(vM, 2)} op_sel_hi:[1,0,0] neg_lo:[0,0,1] neg_hi:[0,0,1]")
            for e in range(e0, e0 + 4):
                r = X + 2 * e
                p = PRq(e)
                A(f"v_pk_fma_f32 {v(r, 2)}, {v(r, 2)}, {v(p, 2)}, {v(p + 2, 2)}")
            sp, k0 = divmod(e0, 8)
            o = OUT + 8 * (sp & 1)
            for e in range(e0, e0 + 4):
                r = X + 2 * e
                A(f"v_cvt_pk_bf16_f32 {v(o + e % 8)}, {v(r)}, {v(r + 1)}")
            if not self.o.get("b_nowr"):
                A(f"ds_write_b128 {v(vHW)}, {v(o + k0, 4)} offset:{L_H2 + 2048 * sp + (512 if k0 else 0)}")
            nbn = self.o.get("n_bnorm", 27)
            g_ = e0 // 4
            self.bg_emit(nbn * (g_ + 1) // 14 - nbn * g_ // 14)
        while self.bg_left("w1") > 0:
            self.bg_emit(1)
        A.barrier()
        self.stamp(11)

    def w2reg(self, f):
        if f < 41:
            return v(88 + 4 * f, 4)
        if f < 49:
            return a(224 + 4 * (f - 41), 4)
        return a(4 * (f - 49), 4)

    def bg_setup(self):
        A = self.A
        t0, t1 = S_T, S_T + 1
        A(f"s_lshl_b32 {s(t0)}, {s(S_J)}, 3")
        A(f"s_lshl_b32 {s(t1)}, {s(S_WV)}, 1")
        A(f"s_add_u32 {s(t0)}, {s(t0)}, {s(t1)}")
        A(f"s_mul_i32 {s(S_W1B)}, {s(t0)}, {28 * 1024}")
        A(f"s_add_u32 {s(S_W1B)}, {s(S_W1B)}, {W1F}")
        A(f"s_lshl_b32 {s(t0)}, {s(S_J)}, 2")
        A(f"s_add_u32 {s(t0)}, {s(t0)}, {s(S_WV)}")
        A(f"s_mul_i32 {s(S_W2B)}, {s(t0)}, {56 * 1024}")
        A(f"s_add_u32 {s(S_W2B)}, {s(S_W2B)}, {W2F}")
        A(f"v_lshlrev_b32 v{V_L16}, 4, v1")
        self.bgq = [("w1", f) for f in range(56)] + [("w2", f) for f in self.w2_order]
        self.bg_cur = {"w1": 0, "w2": 0}

    def bg_emit(self, n=1):
        A = self.A
        if self.o["nobg"]:
            del self.bgq[:n]
            return
        for _ in range(n):
            if not self.bgq:
                return
            kind, f = self.bgq.pop(0)
            base = S_W1B if kind == "w1" else S_W2B
            blk = f // 4
            if blk != self.bg_cur[kind]:
                d = (blk - self.bg_cur[kind]) * 4096
                A(f"s_add_u32 {s(base)}, {s(base)}, {d}" if d > 0 else f"s_sub_u32 {s(base)}, {s(base)}, {-d}")
                self.bg_cur[kind] = blk
            if kind == "w1":
                A(f"buffer_load_dwordx4 {a(4 * f, 4)}, v{V_L16}, {s(R_WS, 4)}, {s(base)} offen offset:{1024 * (f % 4)} sc1")
            else:
                A(f"buffer_load_dwordx4 {self.w2reg(f)}, v{V_W2O[f & 1]}, {s(R_WS, 4)}, {s(base)} offen offset:{2048 * ((f % 4) >> 1)} sc1")

    def bg_left(self, kind):
        return sum(1 for k, _ in self.bgq if k == kind)

    def phase_c(self):
        A = self.A
        t0 = S_T
        if self.o.get("force_global", 1):
            self.phase_c_body(" sc1")
            return
        glob, join = self.lab("cglob"), self.lab("cjoin")
        A(f"s_cmp_eq_u32 {s(S_LOCAL)}, 0")
        A(f"s_cbranch_scc1 {glob}")
        st, q, cur = A.snapshot(), list(self.bgq), dict(self.bg_cur)
        self.phase_c_body("")
        A(f"s_branch {join}")
        A.restore(st)
        self.bgq, self.bg_cur = q, cur
        A.label(glob)
        self.phase_c_body(" sc1")
        A.label(join)

    def phase_c_body(self, sc):
        A = self.A
        T = S_T
        t0, t1 = T, T + 1
        sH, sH2 = S_OFF + 5, S_OFF + 7
        A(f"s_mul_i32 {s(t0)}, {s(S_RB)}, 112")
        A(f"s_lshl_b32 {s(t1)}, {s(S_J)}, 4")
        A(f"s_add_u32 {s(t0)}, {s(t0)}, {s(t1)}")
        A(f"s_lshl_b32 {s(t1)}, {s(S_WV)}, 2")
        A(f"s_add_u32 {s(t0)}, {s(t0)}, {s(t1)}")
        A(f"s_lshl_b32 {s(sH)}, {s(t0)}, 11")
        A(f"s_add_u32 {s(sH)}, {s(sH)}, {HF}")
        A(f"s_add_u32 {s(sH2)}, {s(sH)}, 4096")
        sC = S_OFF + 6
        A(f"s_mov_b32 {s(sC)}, 0x{f32bits(LOG2E):08x}")
        ACC = [24, 40]
        NR = 6
        RING = 4
        TMP = 68
        OUT = 76

        def ring(i):
            k = i % NR
            return RING + 4 * k if k < 5 else 56

        def store(g, off):
            base, o = (sH2, off - 4096) if off >= 4096 else (sH, off)
            return f"buffer_store_dwordx4 {v(OUT + 4 * g, 4)}, v{V_L16}, {s(R_WS, 4)}, {s(base)} offen offset:{o}{sc}"

        def silu_ops(tile):
            ft, th = divmod(tile, 2)
            acc = ACC[tile & 1]
            seq = []
            lag = (0, 2, 3, 5)
            for step in range(16 + lag[-1] + 2):
                for k in range(4):
                    i = step - lag[k]
                    if 0 <= i < 16:
                        x, tmp = acc + i, TMP + (i % 8)
                        if k == 0:
                            seq.append((8, f"v_exp_f32 {v(tmp)}, -{v(x)}"))
                        elif k == 1:
                            seq.append((4, f"v_fma_f32 {v(tmp)}, {v(tmp)}, {s(sC)}, {s(sC)}"))
                        elif k == 2:
                            seq.append((8, f"v_rcp_f32 {v(tmp)}, {v(tmp)}"))
                        else:
                            seq.append((4, f"v_mul_f32 {v(x)}, {v(x)}, {v(tmp)}"))
                i = step - lag[-1] - 1
                if 0 <= i < 16 and i % 2 == 1:
                    g, kk = divmod(i // 2, 4)
                    seq.append((4, f"v_cvt_pk_bf16_f32 {v(OUT + 4 * g + kk)}, {v(acc + i - 1)}, {v(acc + i)}"))
                    if kk == 3:
                        off = (2 * (2 * ft + g) + th) * 1024
                        seq.append((4, store(g, off)))
            return seq

        def ldH(idx):
            tile, st = divmod(idx, 28)
            th = tile & 1
            A(f"ds_read_b128 {v(ring(idx), 4)}, v{V_L16} offset:{L_H2 + 2048 * st + 1024 * th}")

        for i_ in range(NR - 2):
            ldH(i_)
        pend = []
        nbg = self.n_bg_c
        done_bg = 0
        CAP = self.o.get("c_cap", 26)
        for tile in range(4):
            ft = tile >> 1
            acc = ACC[tile & 1]
            for st in range(28):
                idx = tile * 28 + st
                fixed = 0
                if idx % 2 == 0:
                    A.await_regs(*[v(ring(i_), 4) for i_ in (idx, idx + 1) if i_ < 112])
                c = "0" if st == 0 else v(acc, 16)
                A(f"v_mfma_f32_32x32x16_bf16 {v(acc, 16)}, {a(4 * (28 * ft + st), 4)}, {v(ring(idx), 4)}, {c}")
                if idx % 2 == 0:
                    for i_ in (idx + NR - 2, idx + NR - 1):
                        if i_ < 112:
                            ldH(i_)
                            fixed += 4
                else:
                    fixed += 4
                    while done_bg < nbg * (idx + 1) // 112 and self.bgq:
                        assert self.bgq[0][0] == "w1" or self.bgq[0][1] < 49 or idx >= 36
                        self.bg_emit(1)
                        done_bg += 1
                        fixed += 5
                if pend and st >= 2:
                    left_slots = 28 - st
                    need = sum(c_ for c_, _ in pend) - (left_slots - 1) * (CAP - 6)
                    spent = 0
                    while pend and (spent + fixed + pend[0][0] <= CAP or spent < need):
                        cst, ins = pend.pop(0)
                        A(ins)
                        spent += cst
            for cst, ins in pend:
                A(ins)
            pend = silu_ops(tile)
        for _, ins in pend:
            A(ins)
        self.stamp(12)
        A.wait_vm(0)
        A.barrier()
        A(f"s_lshl_b32 {s(t0)}, {s(S_RB)}, 3")
        A(f"s_add_u32 {s(t0)}, {s(t0)}, {s(S_J)}")
        A(f"s_lshl_b32 {s(t0)}, {s(t0)}, 7")
        A(f"s_add_u32 {s(t0)}, {s(t0)}, {FL + F3 * 128}")
        self.flag_store(t0, sc=sc)
        self.bg_emit(len(self.bgq))
        self.stamp(13)

    def phase_d(self):
        A = self.A
        T = S_T
        t0, t1 = T, T + 1
        vPa, vPt = 2, 4
        A(f"v_min_u32 {v(vPa)}, 6, v1")
        A(f"s_lshl_b32 {s(t0)}, {s(S_RB)}, 3")
        A(f"v_add_u32 {v(vPa)}, {s(t0)}, {v(vPa)}")
        A(f"v_lshlrev_b32 {v(vPa)}, 7, {v(vPa)}")
        A(f"v_add_u32 {v(vPa)}, {FL + F3 * 128}, {v(vPa)}")
        self.poll(vPa, vPt)
        self.stamp(14)
        sH = S_OFF
        A(f"s_mul_i32 {s(t0)}, {s(S_RB)}, 112")
        A(f"s_mul_i32 {s(t1)}, {s(S_WV)}, 28")
        A(f"s_add_u32 {s(t0)}, {s(t0)}, {s(t1)}")
        A(f"s_lshl_b32 {s(sH)}, {s(t0)}, 11")
        A(f"s_add_u32 {s(sH)}, {s(sH)}, {HF}")
        NSLOT = 49
        HB = 28
        hl = {0: " sc1", 1: "", 2: " nt", 3: " sc0"}[self.o.get("hload", 0)]
        vH = 4
        A(f"s_and_b32 {s(t0)}, {s(S_WV)}, 1")
        A(f"s_lshl_b32 {s(t0)}, {s(t0)}, 10")
        A(f"v_add_u32 {v(vH)}, {s(t0)}, v{V_L16}")
        A(f"s_sub_u32 {s(t0)}, 1024, {s(t0)}")
        A(f"v_add_u32 {v(vH + 1)}, {s(t0)}, v{V_L16}")

        def hreg(i):
            return a(HB + 4 * (i % NSLOT), 4)

        def ldH(i):
            if i % 4 == 0 and i:
                A(f"s_add_u32 {s(sH)}, {s(sH)}, 4096")
            A(f"buffer_load_dwordx4 {hreg(i)}, {v(vH + (i & 1))}, {s(R_WS, 4)}, {s(sH)} offen offset:{2048 * ((i % 4) >> 1)}{hl}")

        PRE = self.o.get("d_pre", 12)
        for i in range(PRE):
            ldH(i)
        vWr, vRd, vG, vX, vO, vt = 8, 11, 12, 13, 14, 15
        for x in range(1, 4):
            A(f"s_xor_b32 {s(t0)}, {s(S_WV)}, {x}")
            A(f"s_mul_i32 {s(t0)}, {s(t0)}, 12288")
            A(f"s_add_u32 {s(t0)}, {s(t0)}, {L_RED2 + (x - 1) * 4096}")
            A(f"v_add_u32 {v(vWr + x - 1)}, {s(t0)}, v{V_L16}")
        A(f"s_mul_i32 {s(t0)}, {s(S_WV)}, 12288")
        A(f"s_add_u32 {s(t0)}, {s(t0)}, {L_RED2}")
        A(f"v_add_u32 {v(vRd)}, {s(t0)}, v{V_L16}")
        A(f"s_lshr_b32 {s(t0)}, {s(S_WV)}, 1")
        A(f"s_and_b32 {s(t1)}, {s(S_WV)}, 1")
        A(f"v_lshrrev_b32 {v(vt)}, 5, v1")
        t2, t3 = T + 2, T + 3
        A(f"s_lshl_b32 {s(t2)}, {s(t0)}, 7")
        A(f"s_add_u32 {s(t2)}, {s(t2)}, {L_GB}")
        A(f"v_lshl_add_u32 {v(vG)}, {v(vt)}, 4, {s(t2)}")
        A(f"s_lshl_b32 {s(t2)}, {s(S_J)}, 13")
        A(f"s_lshl_b32 {s(t3)}, {s(t0)}, 12")
        A(f"s_add_u32 {s(t2)}, {s(t2)}, {s(t3)}")
        A(f"s_lshl_b32 {s(t3)}, {s(t1)}, 7")
        A(f"s_add_u32 {s(t2)}, {s(t2)}, {s(t3)}")
        A(f"s_add_u32 {s(t2)}, {s(t2)}, {L_XD}")
        A(f"v_lshl_add_u32 {v(vX)}, {v(vt)}, 9, {s(t2)}")
        A(f"v_and_b32 {v(vO)}, 31, v1")
        A(f"v_lshl_add_u32 {v(vX)}, {v(vO)}, 2, {v(vX)}")
        A(f"s_lshl_b32 {s(t2)}, {s(S_RB)}, 6")
        A(f"s_lshl_b32 {s(t3)}, {s(t1)}, 5")
        A(f"s_add_u32 {s(t2)}, {s(t2)}, {s(t3)}")
        A(f"v_add_u32 {v(vO)}, {s(t2)}, {v(vO)}")
        A(f"v_mul_u32_u24 {v(vO)}, 896, {v(vO)}")
        A(f"s_lshl_b32 {s(t2)}, {s(S_J)}, 7")
        A(f"s_lshl_b32 {s(t3)}, {s(t0)}, 6")
        A(f"s_add_u32 {s(t2)}, {s(t2)}, {s(t3)}")
        A(f"v_lshl_add_u32 {v(vt)}, {v(vt)}, 4, {s(t2)}")
        A(f"v_add_u32 {v(vO)}, {v(vO)}, {v(vt)}")
        self.srd(R_A, P_OUT, 2048 * 896)
        ACC = 24
        nxt = PRE
        for st in range(28):
            for _ in range(2):
                if nxt < 56:
                    ldH(nxt)
                    nxt += 1
            for e1 in range(2):
                i = 2 * st + e1
                for e in range(2):
                    acc = ACC + 16 * (2 * e + e1)
                    c = "0" if st == 0 else v(acc, 16)
                    if self.o.get("d_nomfma"):
                        A.await_regs(hreg(i))
                        continue
                    A(f"v_mfma_f32_32x32x16_bf16 {v(acc, 16)}, {self.w2reg(2 * st + e)}, {hreg(i)}, {c}")
        self.stamp(15)
        GB, XP = 16, 88
        GB = 104
        X1 = 120
        PT = 144
        for g in range(4):
            A(f"ds_read_b128 {v(GB + 4 * g, 4)}, {v(vG)} offset:{32 * g}")
            A(f"ds_read2st64_b32 {v(X1 + 2 * g, 2)}, {v(vX)} offset0:{4 * g} offset1:{4 * g + 1}")
        for x in range(1, 4):
            for g in range(4):
                A(f"ds_write_b128 {v(vWr + x - 1)}, {v(ACC + 16 * x + 4 * g, 4)} offset:{1024 * g}")
        for k in range(8):
            A(f"v_lshlrev_b32 {v(128 + 2 * k)}, 16, {v(X1 + k)}")
            A(f"v_and_b32 {v(129 + 2 * k)}, {s(S_MASKHI)}, {v(X1 + k)}")
        self.stamp(17)
        A.barrier()
        self.stamp(18)
        for k in range(3):
            for g in range(4):
                A(f"ds_read_b128 {v(PT + 16 * k + 4 * g, 4)}, {v(vRd)} offset:{4096 * k + 1024 * g}")
        for k in range(3):
            A.await_regs(v(PT + 16 * k, 16))
            for i in range(8):
                A(f"v_pk_add_f32 {v(ACC + 2 * i, 2)}, {v(ACC + 2 * i, 2)}, {v(PT + 16 * k + 2 * i, 2)}")
        for i in range(8):
            A(f"v_pk_fma_f32 {v(ACC + 2 * i, 2)}, {v(ACC + 2 * i, 2)}, {v(GB + 2 * i, 2)}, {v(128 + 2 * i, 2)}")
        OUT = 192
        for i in range(8):
            A(f"v_cvt_pk_bf16_f32 {v(OUT + i)}, {v(ACC + 2 * i)}, {v(ACC + 2 * i + 1)}")
        for k in (0, 2):
            for i in range(2):
                A(f"v_permlane32_swap_b32 {v(OUT + 2 * k + i)}, {v(OUT + 2 * k + 2 + i)}")
        for k in (0, 2):
            osc = {0: "", 1: " sc1", 2: " nt", 3: " sc0 sc1"}[self.o.get("out_sc", 0)]
            A(f"buffer_store_dwordx4 {v(OUT + 2 * k, 4)}, {v(vO)}, {s(R_A, 4)}, 0 offen offset:{16 * k}{osc}")
        self.stamp(16)

    def helper(self):
        A = self.A
        T = S_T
        t0, t1, t2 = T + 4, T + 5, T + 6
        sH = S_RB
        A.label("L_helper")
        A(f"s_lshl_b32 {s(t0)}, {s(T + 1)}, 3")
        A(f"s_add_u32 {s(sH)}, {s(t0)}, {s(T)}")
        A(f"s_cmp_ge_u32 {s(sH)}, 21")
        A("s_cbranch_scc1 L_helper_flag")
        st_h = A.snapshot()
        self.srd(R_A, P_WM, 448 * 5376)
        self.srd(R_B, P_C, 896)
        A("v_lshrrev_b32 v2, 4, v0")
        A("v_and_b32 v3, 15, v0")
        A("v_mul_u32_u24 v4, 5376, v2")
        A("v_lshl_add_u32 v4, v3, 4, v4")
        A(f"s_lshl_b32 {s(t0)}, {s(sH)}, 8")
        A(f"v_add_u32 v4, {s(t0)}, v4")
        A("v_lshlrev_b32 v5, 2, v0")
        A(f"buffer_load_dword v6, v5, {s(R_B, 4)}, 0 offen")
        W = 16
        A(f"s_mov_b32 {s(t0)}, 0")
        for i in range(28):
            A(f"buffer_load_dwordx4 {v(W + 4 * i, 4)}, v4, {s(R_A, 4)}, {s(t0)} offen")
            if i < 27:
                A(f"s_add_u32 {s(t0)}, {s(t0)}, {16 * 5376}")
        A(f"s_mov_b32 {s(t1)}, 0x{f32bits(-1.4426950408889634):08x}")
        A("v_lshlrev_b32 v8, 16, v6")
        A(f"v_and_b32 v9, {s(S_MASKHI)}, v6")
        for r in (8, 9):
            A(f"v_mul_f32 {v(r + 2)}, {s(t1)}, {v(r)}")
        for r in (8, 9):
            A(f"v_exp_f32 {v(r + 2)}, {v(r + 2)}")
        for r in (8, 9):
            A(f"v_add_f32 {v(r + 2)}, 1.0, {v(r + 2)}")
        for r in (8, 9):
            A(f"v_rcp_f32 {v(r + 2)}, {v(r + 2)}")
        for r in (8, 9):
            A(f"v_mul_f32 {v(r)}, {v(r)}, {v(r + 2)}")
        A("v_cvt_pk_bf16_f32 v6, v8, v9")
        A("v_lshlrev_b32 v8, 16, v6")
        A(f"v_and_b32 v9, {s(S_MASKHI)}, v6")
        A("v_lshlrev_b32 v7, 3, v0")
        A(f"ds_write_b64 v7, v[8:9] offset:{L_SC}")
        A.barrier()
        A("v_lshlrev_b32 v7, 2, v2")
        SC = 128
        for i in range(28):
            A(f"ds_read_b32 {v(SC + 2 * i)}, v7 offset:{L_SC + 64 * i}")
        AC = 192
        U = 200
        for i in range(28):
            for k in range(4):
                src = W + 4 * i + k
                u = U + 2 * k
                A(f"v_lshlrev_b32 {v(u)}, 16, {v(src)}")
                A(f"v_and_b32 {v(u + 1)}, {s(S_MASKHI)}, {v(src)}")
            for k in range(4):
                u = U + 2 * k
                if i == 0:
                    A(f"v_pk_mul_f32 {v(AC + 2 * k, 2)}, {v(u, 2)}, {v(SC + 2 * i, 2)} op_sel_hi:[1,0]")
                else:
                    A(f"v_pk_fma_f32 {v(AC + 2 * k, 2)}, {v(u, 2)}, {v(SC + 2 * i, 2)}, {v(AC + 2 * k, 2)} op_sel_hi:[1,0,1]")
        A("v_mul_u32_u24 v7, 528, v2")
        A("v_lshl_add_u32 v7, v3, 5, v7")
        A(f"ds_write_b128 v7, {v(AC, 4)} offset:{L_MR}")
        A(f"ds_write_b128 v7, {v(AC + 4, 4)} offset:{L_MR + 16}")
        A.barrier()
        A("v_and_b32 v8, 127, v0")
        A("v_lshlrev_b32 v7, 2, v8")
        for g in range(16):
            A(f"ds_read_b32 {v(16 + g)}, v7 offset:{L_MR + 528 * g}")
        for stp in (8, 4, 2, 1):
            for g in range(stp):
                A(f"v_add_f32 {v(16 + g)}, {v(16 + g)}, {v(16 + g + stp)}")
        A("v_cvt_pk_bf16_f32 v16, v16, v16")
        A(f"v_and_b32 v16, {s(S_MASKHI)}, v16")
        A("v_add_f32 v17, 1.0, v16")
        A("v_cvt_pk_bf16_f32 v17, v17, v17")
        A(f"v_and_b32 v17, {s(S_MASKHI)}, v17")
        A(f"s_lshl_b32 {s(t0)}, {s(sH)}, 7")
        A(f"v_add_u32 v8, {s(t0)}, v8")
        A("v_subrev_u32 v9, 448, v8")
        A("v_subrev_u32 v10, 1792, v8")
        A("v_min_u32 v9, v9, v10")
        A("v_mov_b32 v11, 448")
        A("v_cmp_lt_u32 vcc, v9, v11")
        A("s_nop 1")
        A("v_cndmask_b32 v16, v16, v17, vcc")
        A("v_lshlrev_b32 v8, 2, v8")
        A(f"s_mov_b32 {s(t0)}, {MODF}")
        skip = self.lab("ms")
        A(f"s_cmp_ge_u32 {s(S_WV)}, 2")
        A(f"s_cbranch_scc1 {skip}")
        A.cond_begin()
        A(f"buffer_store_dword v16, v8, {s(R_WS, 4)}, {s(t0)} offen sc1")
        A.cond_end()
        A.label(skip)
        A.wait_vm(0)
        A.barrier()
        A.label("L_helper_flag")
        A.wait_lgkm0()
        A(f"s_add_u32 {s(S_NONCE)}, {s(S_NONCE)}, 1")
        A(f"s_lshl_b32 {s(t0)}, {s(sH)}, 7")
        A(f"s_add_u32 {s(t0)}, {s(t0)}, {FL + FM * 128}")
        self.flag_store(t0)
        self.stamp(3)
        if self.o.get("helper_warm", 0):
            A("v_min_u32 v2, 55, v1")
            A(f"s_mul_i32 {s(t0)}, {s(S_WV)}, 56")
            A(f"v_add_u32 v2, {s(t0)}, v2")
            A("v_lshlrev_b32 v2, 7, v2")
            A(f"v_add_u32 v2, {FL + self.o.get('warm_flag', F2) * 128}, v2")
            A(f"s_lshr_b32 {s(t0)}, s2, 3")
            A(f"s_sub_u32 {s(t0)}, {s(t0)}, 28")
            A(f"s_lshl_b32 {s(t0)}, {s(t0)}, 2")
            A(f"s_add_u32 {s(t0)}, {s(t0)}, {s(S_WV)}")
            A("v_lshlrev_b32 v4, 7, v1")
            A(f"s_and_b32 {s(t1)}, s2, 7")
            A(f"s_mul_i32 {s(t1)}, {s(t1)}, {4 * 229376}")
            A(f"s_mul_i32 {s(t2)}, {s(t0)}, {448 * 128}")
            A(f"s_add_u32 {s(t1)}, {s(t1)}, {s(t2)}")
            A(f"s_add_u32 {s(t1)}, {s(t1)}, {HF}")
            self.poll(2, 3)
            for k in range(7):
                A(f"buffer_load_dword {v(32 + k)}, v4, {s(R_WS, 4)}, {s(t1)} offen")
                A(f"s_add_u32 {s(t1)}, {s(t1)}, {64 * 128}")
            A.wait_vm(0)
        self.stamp(4)
        self.stamp_flush()
        A("s_endpgm")

    def build(self):
        A = self.A
        self.prologue()
        if self.stamps:
            A("v_mov_b32 v255, 0")
            A("v_writelane_b32 v255, s76, 31")
        st = A.snapshot()
        self.stamp(0)
        self.phase_p()
        stages = [("p", None), ("a", self.phase_a), ("b", self.phase_b), ("c", self.phase_c), ("d", self.phase_d)]
        done = self.stop == "p"
        for name, fn in stages[1:]:
            if done:
                break
            fn()
            done = self.stop == name
        self.stamp_flush()
        A("s_endpgm")
        A.label("L_exit")
        A("s_endpgm")
        A.label("L_code_end")
        return A.text()


def f32bits(x):
    import struct
    return struct.unpack("<I", struct.pack("<f", x))[0]


HEADER = """; Fused adaLN + H3 long convolution + SiLU MLP, one persistent launch (generated by gen/gen.py).
; Kernarg: q k v shift_k ssm_k ssm_D B_x w1 w2 c w_mod out debug ws (8-byte pointers).
; @launch grid=(224,1,1) block=(256,1,1) lds={lds}
.amdgcn_target "amdgcn-amd-amdhsa--gfx950"
.text
.globl {name}
.p2align 8
.type {name},@function
{name}:
"""

FOOTER = """.section .rodata,"a"
.p2align 6
.amdhsa_kernel {name}
  .amdhsa_next_free_vgpr 512
  .amdhsa_next_free_sgpr 102
  .amdhsa_accum_offset 256
  .amdhsa_group_segment_fixed_size 0
  .amdhsa_kernarg_size 112
  .amdhsa_user_sgpr_count 2
  .amdhsa_user_sgpr_kernarg_segment_ptr 1
  .amdhsa_system_sgpr_workgroup_id_x 1
  .amdhsa_float_denorm_mode_32 3
.end_amdhsa_kernel
"""


def main():
    ap = argparse.ArgumentParser()
    ap.add_argument("--stop", default=None)
    ap.add_argument("--stamps", action="store_true")
    ap.add_argument("-o", default="/dev/stdout")
    ap.add_argument("--opt", action="append", default=[])
    args = ap.parse_args()
    opts = {}
    for kv in args.opt:
        k, val = kv.split("=")
        opts[k] = int(val)
    g = Gen(stop=args.stop, stamps=args.stamps, opts=opts)
    body = g.build()
    txt = HEADER.format(name=NAME, lds=LDS_END) + body + FOOTER.format(name=NAME)
    with open(args.o, "w") as f:
        f.write(txt)
    print(f"instructions: {g.A.n_ins}, auto nops: {g.A.n_nops}, lds {LDS_END}", file=sys.stderr)


if __name__ == "__main__":
    main()
```

```python
import re

TRANS = ("v_exp_f32", "v_log_f32", "v_rcp_f32", "v_rsq_f32", "v_sqrt_f32", "v_sin_f32", "v_cos_f32",
         "v_rcp_iflag_f32")


def v(i, n=1):
    return f"v{i}" if n == 1 else f"v[{i}:{i + n - 1}]"


def a(i, n=1):
    return f"a{i}" if n == 1 else f"a[{i}:{i + n - 1}]"


def s(i, n=1):
    return f"s{i}" if n == 1 else f"s[{i}:{i + n - 1}]"


_reg_re = re.compile(r"^(-?)(abs\()?([vas])(\d+|\[(\d+):(\d+)\])\)?$")


def regs_of(tok):
    tok = tok.strip()
    if tok == "vcc":
        return {("s", 106), ("s", 107)}
    if tok == "exec":
        return {("s", 126), ("s", 127)}
    if tok == "m0":
        return {("s", 124)}
    m = _reg_re.match(tok)
    if not m:
        return set()
    k = m.group(3)
    if m.group(5) is not None:
        return {(k, i) for i in range(int(m.group(5)), int(m.group(6)) + 1)}
    return {(k, int(m.group(4)))}


class Ins:
    __slots__ = ("text", "mn", "dst", "src", "kind", "passes", "srcC", "srcAB", "data", "ws", "dpp", "last_src", "ab_src")

    def __init__(self, text):
        self.text = text
        t = text.split(";")[0].strip()
        parts = t.split(None, 1)
        self.mn = parts[0]
        rest = parts[1] if len(parts) > 1 else ""
        ops, depth, cur = [], 0, ""
        for ch in rest:
            if ch in "[(":
                depth += 1
            if ch in "])":
                depth -= 1
            if ch == "," and depth == 0:
                ops.append(cur.strip())
                cur = ""
            else:
                cur += ch
        if cur.strip():
            ops.append(cur.strip())
        mods = ""
        if ops:
            last = ops[-1].split(None, 1)
            ops[-1] = last[0]
            if len(last) > 1:
                mods = last[1]
        mn = self.mn
        R = [regs_of(o) for o in ops]
        allr = lambda lst: set().union(*lst) if lst else set()
        self.dst, self.src = set(), set()
        self.passes = 0
        self.srcC, self.srcAB, self.data = set(), set(), set()
        self.ws = 1
        self.last_src = R[3] if mn.startswith("v_dot") and len(R) > 3 else None
        self.ab_src = (R[1] | R[2]) if mn.startswith("v_dot") and len(R) > 3 else set()
        self.dpp = ("quad_perm" in mods or "row_" in mods or "wave_" in mods)
        if mn.startswith("v_mfma"):
            self.kind = "mfma"
            self.dst = R[0]
            self.srcAB = R[1] | R[2]
            self.srcC = R[3] if len(R) > 3 else set()
            self.src = self.srcAB | self.srcC
            self.passes = 8 if "32x32" in mn else 4
        elif mn.startswith("buffer_load") or mn.startswith("global_load"):
            self.kind = "vload"
            if " lds" in " " + mods or mn.startswith("global_load_lds"):
                self.src = allr(R) | {("s", 124)}
            else:
                self.dst = R[0]
                self.src = allr(R[1:])
        elif mn.startswith("buffer_store") or mn.startswith("global_store"):
            self.kind = "vstore"
            self.src = allr(R)
            self.data = R[0] if mn.startswith("buffer_store") else R[1]
            if not ("x3" in mn or "x4" in mn):
                self.data = set()
        elif mn.startswith("buffer_atomic") or mn.startswith("global_atomic"):
            self.kind = "vstore"
            self.src = allr(R)
        elif mn.startswith("ds_read") or mn.startswith("ds_bpermute") or mn.startswith("ds_swizzle"):
            self.kind = "dsread"
            self.dst = R[0]
            self.src = allr(R[1:])
        elif mn.startswith("ds_write"):
            self.kind = "dswrite"
            self.src = allr(R)
        elif mn.startswith("s_load") or mn.startswith("s_memrealtime") or mn.startswith("s_memtime"):
            self.kind = "smem"
            self.dst = R[0]
            self.src = allr(R[1:])
        elif mn.startswith("v_"):
            self.kind = "valu"
            if mn.startswith("v_cmp"):
                self.dst = R[0]
                self.src = allr(R[1:])
            elif mn.startswith("v_permlane") and "swap" in mn:
                self.dst = R[0] | R[1]
                self.src = R[0] | R[1]
            elif mn.startswith("v_add_co") or mn.startswith("v_addc_co") or mn.startswith("v_sub_co"):
                self.dst = R[0] | R[1]
                self.src = allr(R[2:])
            else:
                self.dst = R[0]
                self.src = allr(R[1:])
                if mn.startswith(("v_fmac", "v_dot2c", "v_pk_fmac", "v_writelane")):
                    self.src |= R[0]
                if mn.startswith("v_cndmask") and len(ops) == 3:
                    self.src |= regs_of("vcc")
                if self.dpp:
                    self.src |= R[0]
        elif mn == "s_nop":
            self.kind = "nop"
            self.ws = int(ops[0], 0) + 1
        elif mn.startswith("s_"):
            self.kind = "salu"
            nodst = ("s_cmp", "s_waitcnt", "s_barrier", "s_branch", "s_cbranch", "s_endpgm", "s_setprio",
                     "s_sleep", "s_bitcmp", "s_setpc")
            if mn.startswith(nodst):
                self.src = allr(R)
            else:
                self.dst = R[0] if R else set()
                self.src = allr(R[1:])
                if mn.startswith(("s_addk", "s_mulk")):
                    self.src |= R[0]
                if "saveexec" in mn:
                    self.dst |= regs_of("exec")
                    self.src |= regs_of("exec")
        else:
            raise ValueError("unknown instruction: " + text)


class Asm:
    def __init__(self):
        self.out = []
        self.hist = []
        self.vq = []
        self.lq = []
        self.cond_depth = 0
        self.n_nops = 0
        self.n_ins = 0
        self.vm_count = 0
        self.nbytes_est = 0

    def raw(self, text):
        self.out.append(text)

    def comment(self, text):
        self.out.append("    ; " + text)

    def label(self, name):
        self.out.append(name + ":")

    def _emit(self, ins):
        self.out.append("    " + ins.text)
        self.hist.append(ins)
        if len(self.hist) > 40:
            self.hist = self.hist[-40:]
        self.n_ins += 1

    def _wait_needed(self, q, regs):
        for i in range(len(q) - 1, -1, -1):
            if q[i]["dst"] & regs:
                return i
        return -1

    def _do_wait(self, vi, li):
        parts = []
        if vi >= 0:
            n = sum(1 for o in self.vq[vi + 1:] if not o["maybe"])
            self.vq = self.vq[vi + 1:]
            if n <= 62:
                parts.append(f"vmcnt({n})")
        if li >= 0:
            if any(o["smem"] for o in self.lq):
                self.lq = []
                parts.append("lgkmcnt(0)")
            else:
                n = sum(1 for o in self.lq[li + 1:] if not o["maybe"])
                self.lq = self.lq[li + 1:]
                if n <= 14:
                    parts.append(f"lgkmcnt({n})")
        if parts:
            self._emit(Ins("s_waitcnt " + " ".join(parts)))

    def wait_vm(self, n=0):
        self._emit(Ins(f"s_waitcnt vmcnt({n})"))
        if n == 0:
            self.vq = []
        else:
            cnt, cut = 0, 0
            for i in range(len(self.vq) - 1, -1, -1):
                if not self.vq[i]["maybe"]:
                    cnt += 1
                    if cnt == n:
                        cut = i
                        break
            else:
                cut = 0
            self.vq = self.vq[cut:]

    def wait_lgkm0(self):
        self._emit(Ins("s_waitcnt lgkmcnt(0)"))
        self.lq = []

    def wait_all(self):
        self._emit(Ins("s_waitcnt vmcnt(0) lgkmcnt(0)"))
        self.vq, self.lq = [], []

    def barrier(self):
        if self.lq:
            self.wait_lgkm0()
        self._emit(Ins("s_barrier"))

    def _hazard(self, ins):
        need = 0
        dist = 0
        for p in reversed(self.hist):
            req = 0
            if p.kind == "valu":
                vd = {r for r in p.dst if r[0] in "va"}
                sd = {r for r in p.dst if r[0] == "s"}
                if ins.kind == "mfma" and vd & ins.src:
                    req = max(req, 2)
                if ins.kind == "mfma" and p.mn.startswith("v_pk_"):
                    req = max(req, 2)
                if ins.kind in ("vload", "vstore") and sd & ins.src:
                    req = max(req, 5)
                if ins.kind == "valu" and sd & ins.src:
                    req = max(req, 2)
                    if ins.mn.startswith(("v_readlane", "v_writelane")):
                        req = max(req, 4)
                if ins.kind == "salu" and sd & ins.src:
                    req = max(req, 1)
                if ins.mn.startswith(("v_readfirstlane", "v_readlane")) and vd & ins.src:
                    req = max(req, 1)
                if p.mn.startswith("v_dot") and vd & (ins.src | ins.dst):
                    chain = ins.mn == p.mn and ins.last_src is not None and vd <= ins.last_src and not (vd & ins.ab_src)
                    if not chain:
                        req = max(req, 3)
                if p.mn.rsplit("_e", 1)[0] in TRANS or p.mn in TRANS:
                    if ins.kind == "valu" and vd & ins.src:
                        req = max(req, 1)
                if ins.kind == "valu" and (ins.dpp or ins.mn.startswith("v_permlane")) and vd & ins.src:
                    req = max(req, 2)
            elif p.kind == "mfma":
                long = 12 if p.passes == 8 else 8
                if ins.kind == "mfma":
                    if p.dst & ins.srcAB:
                        req = max(req, long)
                    if p.dst & ins.srcC and p.dst != ins.srcC:
                        req = max(req, long - 2)
                    if (p.dst & ins.dst) and p.dst != ins.dst:
                        req = max(req, long)
                else:
                    if p.dst & (ins.src | ins.dst):
                        req = max(req, long)
                    if ins.kind == "valu" and p.srcC & ins.dst:
                        req = max(req, 7 if p.passes == 8 else 3)
            elif p.kind == "vstore":
                if p.data & ins.dst:
                    req = max(req, 2)
            elif p.kind == "salu":
                if ("s", 124) in p.dst and ins.kind == "vload" and ("s", 124) in ins.src:
                    req = max(req, 1)
            if req > dist:
                need = max(need, req - dist)
            dist += p.ws
            if dist >= 20:
                break
        return need

    def __call__(self, text):
        ins = Ins(text)
        regs = ins.src | ins.dst
        vi = self._wait_needed(self.vq, regs)
        li = self._wait_needed(self.lq, regs)
        if vi >= 0 or li >= 0:
            self._do_wait(vi, li)
        need = self._hazard(ins)
        while need > 0:
            k = min(need, 16)
            self._emit(Ins(f"s_nop {k - 1}"))
            self.n_nops += 1
            need -= k
        self._emit(ins)
        maybe = self.cond_depth > 0
        if ins.kind in ("vload", "vstore") and not maybe:
            self.vm_count += 1
        if ins.kind == "vload":
            self.vq.append(dict(dst=set(ins.dst), maybe=maybe))
        elif ins.kind == "vstore":
            self.vq.append(dict(dst=set(), maybe=maybe))
        elif ins.kind == "dsread":
            self.lq.append(dict(dst=set(ins.dst), maybe=maybe, smem=False))
        elif ins.kind == "dswrite":
            self.lq.append(dict(dst=set(), maybe=maybe, smem=False))
        elif ins.kind == "smem":
            self.lq.append(dict(dst=set(ins.dst), maybe=maybe, smem=True))

    def dma(self, text, tag):
        self(text)
        self.vq[-1]["dst"] = {("t", tag)}

    def need(self, tag):
        vi = self._wait_needed(self.vq, {("t", tag)})
        if vi >= 0:
            self._do_wait(vi, -1)

    def await_regs(self, *toks):
        regs = set()
        for tk in toks:
            regs |= regs_of(tk)
        vi = self._wait_needed(self.vq, regs)
        li = self._wait_needed(self.lq, regs)
        if vi >= 0 or li >= 0:
            self._do_wait(vi, li)

    def nop(self, n):
        while n > 0:
            k = min(n, 16)
            self._emit(Ins(f"s_nop {k - 1}"))
            n -= k

    def cond_begin(self):
        self.cond_depth += 1

    def cond_end(self):
        self.cond_depth -= 1

    def snapshot(self):
        import copy
        return (list(self.hist), copy.deepcopy(self.vq), copy.deepcopy(self.lq))

    def restore(self, st):
        import copy
        self.hist = list(st[0])
        self.vq = copy.deepcopy(st[1])
        self.lq = copy.deepcopy(st[2])

    def text(self):
        return "\n".join(self.out) + "\n"
```

```python
import sys
import argparse
from asmdsl import Asm, v, a, s

NAME = "adaLN_cond__ssm_conv_h3__dense_activation_silu__prompt_kernel"

FL = 4096
F1, FQ, FM, F2, F3 = 0, 256, 512, 544, 800
STAMP = 0x30000
T2D = 224 * 8192
KVP = 0x40000
QP = KVP + T2D
STR = QP + T2D
STM = STR + 8192
X1P = STR + 16384
W1F = X1P + T2D
W2F = W1F + 1605632
MODF = W2F + 1605632
MPL = 2688 * 4
HF = MODF + 65536
WS_END = HF + 32 * 112 * 2048
assert WS_END < (1 << 28)

L_H2 = 0
L_TPK = 0
L_TPQ = 8704
L_TPN = 17408
L_WB = 26112
L_UR = 43520
assert L_UR + 9216 <= 57344
L_KC = 57344
CS = 4160
L_RED = L_KC + 8 * CS
L_RED2 = 0
L_XD = 69632
L_PAR = L_RED + 40960
L_STAT = L_PAR + 4096
L_GB = L_STAT + 2048
LDS_END = L_GB + 256
assert L_XD + 57344 <= L_PAR
assert LDS_END <= 163840
L_SC = 0
L_MR = 2048

S_RB, S_J, S_WV, S_CP = 4, 5, 6, 7
P_Q, P_K, P_V, P_SH, P_SK, P_D, P_BX, P_W1, P_W2, P_C, P_WM, P_OUT, P_DBG, P_WS = range(8, 36, 2)
R_WS, R_A, R_B, R_C, R_D = 36, 40, 44, 48, 52
S_NONCE = 56
S_T = 57
S_M = 80
S_MASKHI = 80
S_PERM_LO = 81
S_PERM_HI = 82
S_OFF = 84
S_SPIN = 96
S_PC = 100
S_W1B, S_W2B = 78, 79
S_XCC, S_LOCAL = 83, 95
S_WI = 94
S_MW = 93
V_W2O = (2, 253)
V_L16 = 3
S_ST0 = 98

SRD3 = 0x00020000
LOG2E = 1.4426950408889634
SPIN_MAX = 1 << 17


class Rec:
    def __init__(self):
        self.items = []

    def __call__(self, text):
        self.items.append(text)

    def await_regs(self, *toks):
        self.items.append(("await", toks))

    def play(self, A, n):
        for _ in range(n):
            if not self.items:
                return
            it = self.items.pop(0)
            if isinstance(it, tuple):
                A.await_regs(*it[1])
            else:
                A(it)


class Gen:
    def __init__(self, stop=None, stamps=False, opts=None):
        self.o = dict(cring=3, repf=0, burst_before_flag=0, n_burst_t2=28, n_bg_c=36, bg_b=1, nobg=0)
        self.o.update(opts or {})
        self.A = Asm()
        self.stop = stop
        self.stamps = stamps
        self.nlab = 0
        self.nstamp = 0
        self.n_burst_t2 = self.o["n_burst_t2"]
        self.n_bg_c = self.o["n_bg_c"]
        self.w2_order = list(range(41, 49)) + list(range(28, 41)) + list(range(28)) + list(range(49, 56))

    def lab(self, base):
        self.nlab += 1
        return f"L_{base}_{self.nlab}"

    def srd(self, r, ptr, nbytes, add=None):
        A = self.A
        if add is None:
            A(f"s_mov_b32 {s(r)}, {s(ptr)}")
            A(f"s_mov_b32 {s(r + 1)}, {s(ptr + 1)}")
        else:
            A(f"s_add_u32 {s(r)}, {s(ptr)}, {add}")
            A(f"s_addc_u32 {s(r + 1)}, {s(ptr + 1)}, 0")
        A(f"s_mov_b32 {s(r + 2)}, {nbytes}")
        A(f"s_mov_b32 {s(r + 3)}, 0x{SRD3:08x}")

    def stamp(self, idx):
        if not self.stamps:
            return
        A = self.A
        A(f"s_memrealtime {s(S_ST0, 2)}")
        A.wait_lgkm0()
        A(f"v_writelane_b32 v255, {s(S_ST0)}, {idx}")
        if self.o.get("cyc"):
            A(f"s_memtime {s(S_ST0, 2)}")
            A.wait_lgkm0()
            A(f"v_writelane_b32 v255, {s(S_ST0)}, {32 + idx}")

    def echo(self):
        A = self.A
        ia, ib = self.o["echo_a"], self.o["echo_b"]
        skip, loop = self.lab("echo"), self.lab("echol")
        A("s_cmp_lg_u32 s2, 0")
        A(f"s_cbranch_scc1 {skip}")
        A(f"v_readlane_b32 {s(S_T)}, v255, {ia}")
        A(f"v_readlane_b32 {s(S_T + 1)}, v255, {ib}")
        A(f"s_memrealtime {s(S_ST0, 2)}")
        A.wait_lgkm0()
        A(f"s_sub_u32 {s(S_T)}, {s(S_T + 1)}, {s(S_T)}")
        A(f"s_mul_i32 {s(S_T)}, {s(S_T)}, {self.o.get('echo_mul', 1)}")
        A(f"s_add_u32 {s(S_T)}, {s(S_T)}, {s(S_ST0)}")
        A.label(loop)
        A(f"s_memrealtime {s(S_ST0, 2)}")
        A.wait_lgkm0()
        A(f"s_sub_u32 {s(S_T + 1)}, {s(S_ST0)}, {s(S_T)}")
        A(f"s_cmp_lt_i32 {s(S_T + 1)}, 0")
        A(f"s_cbranch_scc1 {loop}")
        A.label(skip)

    def stamp_flush(self):
        if not self.stamps:
            return
        A = self.A
        if self.o.get("echo_b"):
            self.echo()
            return
        if self.o.get("dbg"):
            skip = self.lab("dbg")
            A(f"s_cmp_lg_u32 {s(S_WV)}, 0")
            A(f"s_cbranch_scc1 {skip}")
            A("s_cmp_eq_u32 s2, 0")
            A(f"s_cselect_b32 {s(S_T)}, 0, 32")
            A(f"s_cselect_b32 {s(S_T + 1)}, 1, 0")
            A("s_cmp_eq_u32 s2, 223")
            A(f"s_cselect_b32 {s(S_T + 1)}, 1, {s(S_T + 1)}")
            A(f"s_cmp_eq_u32 {s(S_T + 1)}, 0")
            A(f"s_cbranch_scc1 {skip}")
            A.cond_begin()
            A(f"v_readlane_b32 {s(S_T + 2)}, v255, 31")
            self.srd(R_A, P_DBG, 256)
            for n_, idx in enumerate((3, 5, 8, 10, 11, 12, 15, 16)):
                A(f"v_readlane_b32 {s(S_T + 3)}, v255, {idx}")
                A(f"s_sub_u32 {s(S_T + 3)}, {s(S_T + 3)}, {s(S_T + 2)}")
                A(f"v_mov_b32 v250, {s(S_T + 3)}")
                A(f"s_add_u32 {s(S_T + 4)}, {s(S_T)}, {4 * n_}")
                A(f"v_mov_b32 v251, {s(S_T + 4)}")
                A("s_mov_b64 exec, 1")
                A(f"buffer_store_dword v250, v251, {s(R_A, 4)}, 0 offen")
                A("s_mov_b64 exec, -1")
            A.cond_end()
            A.label(skip)
            return
        skip = self.lab("sf")
        A(f"s_cmp_lg_u32 {s(S_WV)}, 0")
        A(f"s_cbranch_scc1 {skip}")
        A.cond_begin()
        A("v_lshlrev_b32 v254, 2, v1")
        A(f"s_lshl_b32 {s(S_SPIN + 1)}, s2, 8")
        A(f"s_add_u32 {s(S_SPIN + 1)}, {s(S_SPIN + 1)}, {STAMP}")
        A(f"buffer_store_dword v255, v254, {s(R_WS, 4)}, {s(S_SPIN + 1)} offen")
        A.cond_end()
        A.label(skip)

    def flag_store(self, soff_sgpr, vtmp=252, with_xcc=False, sc=" sc1"):
        A = self.A
        skip = self.lab("fl")
        A(f"s_cmp_lg_u32 {s(S_WV)}, 0")
        A(f"s_cbranch_scc1 {skip}")
        A.cond_begin()
        A(f"v_mov_b32 {v(vtmp)}, {s(S_NONCE)}")
        if with_xcc:
            A(f"v_mov_b32 {v(vtmp + 1)}, {s(S_XCC)}")
        A(f"v_mov_b32 {v(vtmp + 2)}, {s(soff_sgpr)}")
        A("s_mov_b64 exec, 1")
        if with_xcc:
            A(f"buffer_store_dwordx2 {v(vtmp, 2)}, {v(vtmp + 2)}, {s(R_WS, 4)}, 0 offen{sc}")
        else:
            A(f"buffer_store_dword {v(vtmp)}, {v(vtmp + 2)}, {s(R_WS, 4)}, 0 offen{sc}")
        A("s_mov_b64 exec, -1")
        A.cond_end()
        A.label(skip)

    def poll(self, vaddr, vtmp):
        A = self.A
        loop, done = self.lab("poll"), self.lab("polld")
        A(f"s_mov_b32 {s(S_SPIN)}, 0")
        A.label(loop)
        A(f"buffer_load_dword {v(vtmp)}, {v(vaddr)}, {s(R_WS, 4)}, 0 offen sc1")
        A.wait_vm(0)
        A(f"v_cmp_ne_u32 vcc, {s(S_NONCE)}, {v(vtmp)}")
        A(f"s_add_u32 {s(S_SPIN)}, {s(S_SPIN)}, 1")
        A("s_nop 3")
        A("s_cmp_eq_u64 vcc, 0")
        A(f"s_cbranch_scc1 {done}")
        A(f"s_cmp_lt_u32 {s(S_SPIN)}, {SPIN_MAX}")
        A(f"s_cbranch_scc1 {loop}")
        A.label(done)

    def code_prefetch(self):
        A = self.A
        A("v_lshlrev_b32 v253, 7, v0")
        A("v_min_u32 v253, L_code_end-L_pc-4, v253")
        A(f"global_load_dword v254, v253, {s(S_PC, 2)}")

    def finish(self):
        self.A("s_endpgm")

    def prologue(self):
        A = self.A
        A("s_cmp_ge_u32 s2, 224")
        A("s_cbranch_scc1 L_exit")
        if self.stamps:
            A(f"s_memrealtime {s(76, 2)}")
        A(f"s_load_dwordx16 {s(8, 16)}, s[0:1], 0")
        A(f"s_load_dwordx8 {s(24, 8)}, s[0:1], 64")
        A(f"s_load_dwordx4 {s(32, 4)}, s[0:1], 96")
        A(f"s_getpc_b64 {s(S_PC, 2)}")
        A.label("L_pc")
        A("v_lshlrev_b32 v253, 7, v0")
        A("v_min_u32 v253, L_code_end-L_pc-4, v253")
        A(f"global_load_dword v254, v253, {s(S_PC, 2)}")
        A("v_lshrrev_b32 v2, 6, v0")
        A("v_and_b32 v1, 63, v0")
        A(f"s_and_b32 {s(S_T)}, s2, 7")
        A(f"s_lshr_b32 {s(S_T + 1)}, s2, 3")
        A(f"v_readfirstlane_b32 {s(S_WV)}, v2")
        A(f"s_getreg_b32 {s(S_XCC)}, hwreg(HW_REG_XCC_ID, 0, 4)")
        A(f"s_mov_b32 {s(S_MASKHI)}, 0xffff0000")
        A(f"s_mov_b32 {s(S_PERM_LO)}, 0x05040100")
        A(f"s_mov_b32 {s(S_PERM_HI)}, 0x07060302")
        A(f"s_mov_b32 {s(S_WI)}, {s(S_T + 1)}")
        A(f"s_mul_i32 {s(S_T + 2)}, {s(S_WI)}, 37")
        A(f"s_lshr_b32 {s(S_T + 2)}, {s(S_T + 2)}, 8")
        A(f"s_mul_i32 {s(S_T + 3)}, {s(S_T + 2)}, 7")
        A(f"s_sub_u32 {s(S_J)}, {s(S_WI)}, {s(S_T + 3)}")
        A(f"s_lshl_b32 {s(S_RB)}, {s(S_T)}, 2")
        A(f"s_add_u32 {s(S_RB)}, {s(S_RB)}, {s(S_T + 2)}")
        A(f"s_lshl_b32 {s(S_CP)}, {s(S_J)}, 5")
        A(f"s_add_u32 {s(S_CP)}, {s(S_CP)}, {s(S_RB)}")
        A.wait_lgkm0()
        self.srd(R_WS, P_WS, WS_END)
        A(f"s_load_dword {s(S_NONCE)}, {s(P_WS, 2)}, 0")
        A(f"s_mul_i32 {s(S_MW)}, {s(S_T)}, 28")
        A(f"s_add_u32 {s(S_MW)}, {s(S_MW)}, {s(S_WI)}")

    def phase_p(self):
        A = self.A
        T = S_T
        NB = 2048 * 896
        t0, t1, t2 = T + 12, T + 13, T + 14
        vC, vRG, vL16, vOffO, vKa, vSh, vSa, vSb, vRow, vWa, vx = 2, 3, 4, 5, 6, 10, 11, 12, 13, 14, 15
        vK, vV, vSH, vQO, vQ, vW, vKD = 16, 36, 44, 60, 68, 84, 100
        A(f"v_and_b32 {v(vC)}, 7, v1")
        A(f"v_lshrrev_b32 {v(vRG)}, 3, v1")
        A(f"s_lshl_b32 {s(T)}, {s(S_RB)}, 6")
        A(f"s_lshl_b32 {s(T + 1)}, {s(S_WV)}, 4")
        A(f"s_add_u32 {s(T + 1)}, {s(T)}, {s(T + 1)}")
        A(f"v_lshl_add_u32 {v(vOffO)}, {v(vRG)}, 1, {s(T + 1)}")
        A(f"v_mul_u32_u24 {v(vOffO)}, 896, {v(vOffO)}")
        A(f"v_lshl_add_u32 {v(vOffO)}, {v(vC)}, 4, {v(vOffO)}")
        A(f"s_lshl_b32 {s(T + 2)}, {s(S_J)}, 7")
        A(f"v_add_u32 {v(vOffO)}, {s(T + 2)}, {v(vOffO)}")
        kad = {}
        for n_, i in enumerate((0, 1, 2, 4)):
            d = (i - 3) * 896
            kad[i] = vKa + n_
            if d < 0:
                A(f"v_subrev_u32 {v(kad[i])}, {-d}, {v(vOffO)}")
            else:
                A(f"v_add_u32 {v(kad[i])}, {d}, {v(vOffO)}")
        kad[3] = vOffO
        self.srd(R_A, P_K, NB)
        self.srd(R_B, P_V, NB)
        for i in range(5):
            A(f"buffer_load_dwordx4 {v(vK + 4 * i, 4)}, {v(kad[i])}, {s(R_A, 4)}, 0 offen")
        if self.o.get("fine"):
            self.stamp(2)
        for i in range(2):
            A(f"buffer_load_dwordx4 {v(vV + 4 * i, 4)}, {v(vOffO)}, {s(R_B, 4)}, 0 offen offset:{896 * i}")
        if self.o.get("fine"):
            self.stamp(4)
        self.srd(R_C, P_SH, 448 * 8)
        A(f"s_lshl_b32 {s(T + 3)}, {s(S_J)}, 9")
        A(f"v_lshl_add_u32 {v(vSh)}, {v(vC)}, 6, {s(T + 3)}")
        for i in range(4):
            A(f"buffer_load_dwordx4 {v(vSH + 4 * i, 4)}, {v(vSh)}, {s(R_C, 4)}, 0 offen offset:{16 * i}")
        if self.o.get("fine"):
            self.stamp(19)
        self.srd(R_A, P_Q, NB)
        for r in range(2):
            A(f"buffer_load_dwordx4 {v(vQO + 4 * r, 4)}, {v(vOffO)}, {s(R_A, 4)}, 0 offen offset:{896 * r}")
        if self.o.get("fine"):
            self.stamp(20)
        A(f"s_lshl_b32 {s(t1)}, {s(S_J)}, 3")
        A(f"s_add_u32 {s(t0)}, {s(T)}, {s(t1)}")
        A(f"s_lshl_b32 {s(t1)}, {s(S_WV)}, 2")
        A(f"s_add_u32 {s(t0)}, {s(t0)}, {s(t1)}")
        A(f"v_lshrrev_b32 {v(vRow)}, 4, v1")
        A(f"v_add_u32 {v(vRow)}, {s(t0)}, {v(vRow)}")
        A(f"v_mul_u32_u24 {v(vSa)}, 896, {v(vRow)}")
        A(f"v_and_b32 {v(vSb)}, 15, v1")
        A(f"v_lshl_add_u32 {v(vSa)}, {v(vSb)}, 4, {v(vSa)}")
        A(f"v_cmp_gt_u32 vcc, 8, {v(vSb)}")
        A(f"v_add_u32 {v(vSb)}, 768, {v(vSa)}")
        A(f"v_mov_b32 {v(vx)}, -1")
        A(f"v_cndmask_b32 {v(vSb)}, {v(vx)}, {v(vSb)}, vcc")
        for i in range(3):
            A(f"buffer_load_dwordx4 {v(vQ + 4 * i, 4)}, {v(vSa)}, {s(R_A, 4)}, 0 offen offset:{256 * i}")
        A(f"buffer_load_dwordx4 {v(vQ + 12, 4)}, {v(vSb)}, {s(R_A, 4)}, 0 offen")
        if self.o.get("fine"):
            self.stamp(29)
        vM, vSC, vMA, vMT, vMa, vCa = 84, 96, 100, 108, 116, 117
        sCG, sRS = T + 21, T + 5
        self.srd(R_B, P_WM, 448 * 5376)
        self.srd(R_C, P_C, 896)
        A(f"s_mul_i32 {s(sRS)}, {s(S_MW)}, 1561")
        A(f"s_lshr_b32 {s(sRS)}, {s(sRS)}, 16")
        A(f"s_mul_i32 {s(sCG)}, {s(sRS)}, 42")
        A(f"s_sub_u32 {s(sCG)}, {s(S_MW)}, {s(sCG)}")
        A(f"s_mul_i32 {s(t0)}, {s(S_WV)}, 24")
        A(f"v_lshrrev_b32 {v(vMT)}, 3, v1")
        A(f"v_add_u32 {v(vMT)}, {s(t0)}, {v(vMT)}")
        A(f"s_mul_i32 {s(t1)}, {s(sRS)}, 90")
        A(f"v_add_u32 {v(vMT + 1)}, {s(t1)}, {v(vMT)}")
        A(f"v_lshlrev_b32 {v(vCa)}, 1, {v(vMT + 1)}")
        A(f"v_mul_u32_u24 {v(vMa)}, 5376, {v(vMT + 1)}")
        A(f"v_and_b32 {v(vMT + 2)}, 7, v1")
        A(f"v_lshl_add_u32 {v(vMa)}, {v(vMT + 2)}, 4, {v(vMa)}")
        A(f"s_lshl_b32 {s(t1)}, {s(sCG)}, 7")
        A(f"v_add_u32 {v(vMa)}, {s(t1)}, {v(vMa)}")
        A(f"v_cmp_gt_u32 vcc, {90 - 16}, {v(vMT)}")
        A(f"v_add_u32 {v(vMT + 3)}, {16 * 5376}, {v(vMa)}")
        A(f"v_mov_b32 {v(vMT + 4)}, 0x80000000")
        A(f"v_add_u32 {v(vMT + 5)}, {8 * 5376}, {v(vMa)}")
        A(f"v_cndmask_b32 {v(vMT + 3)}, {v(vMT + 4)}, {v(vMT + 3)}, vcc")
        for i in range(3):
            A(f"buffer_load_ushort {v(vSC + i)}, {v(vCa)}, {s(R_C, 4)}, 0 offen offset:{16 * i}")
        for i, ad in enumerate((vMa, vMT + 5, vMT + 3)):
            A(f"buffer_load_dwordx4 {v(vM + 4 * i, 4)}, {v(ad)}, {s(R_B, 4)}, 0 offen")
        self.stamp(1)

        sWB, sSrc, sStride, sA, sR1, sD0, sDS = T + 4, T + 6, T + 7, T + 8, T + 9, T + 10, T + 11
        A(f"s_mul_i32 {s(sWB)}, {s(S_RB)}, 7")
        A(f"s_add_u32 {s(sWB)}, {s(sWB)}, {s(S_J)}")
        A(f"s_lshr_b32 {s(t0)}, {s(sWB)}, 2")
        A(f"s_and_b32 {s(t1)}, {s(sWB)}, 3")
        A(f"s_mul_i32 {s(sSrc)}, {s(t0)}, {16 * 3584}")
        A(f"s_mul_i32 {s(t2)}, {s(t1)}, 896")
        A(f"s_add_u32 {s(sSrc)}, {s(sSrc)}, {s(t2)}")
        A(f"s_mul_i32 {s(t2)}, {s(t1)}, 14")
        A(f"s_add_u32 {s(t2)}, {s(t2)}, {s(S_WV)}")
        A(f"s_mul_i32 {s(t2)}, {s(t2)}, 28")
        A(f"s_add_u32 {s(sD0)}, {s(t2)}, {s(t0)}")
        A(f"s_lshl_b32 {s(sD0)}, {s(sD0)}, 10")
        A(f"s_add_u32 {s(sD0)}, {s(sD0)}, {W1F}")
        u0, u1, u2, uSrc, uD0 = T + 16, T + 17, T + 18, T + 19, T + 20
        A(f"s_sub_u32 {s(u0)}, {s(sWB)}, 112")
        A(f"s_mul_i32 {s(uSrc)}, {s(u0)}, {16 * 896}")
        A(f"s_mul_i32 {s(u1)}, {s(u0)}, 147")
        A(f"s_lshr_b32 {s(u1)}, {s(u1)}, 12")
        A(f"s_mul_i32 {s(u2)}, {s(u1)}, 28")
        A(f"s_sub_u32 {s(u2)}, {s(u0)}, {s(u2)}")
        A(f"s_mul_i32 {s(uD0)}, {s(u1)}, 56")
        A(f"s_lshl_b32 {s(u2)}, {s(u2)}, 1")
        A(f"s_add_u32 {s(uD0)}, {s(uD0)}, {s(u2)}")
        A(f"s_lshr_b32 {s(u1)}, {s(S_WV)}, 1")
        A(f"s_mul_i32 {s(u1)}, {s(u1)}, 224")
        A(f"s_add_u32 {s(uD0)}, {s(uD0)}, {s(u1)}")
        A(f"s_and_b32 {s(u1)}, {s(S_WV)}, 1")
        A(f"s_add_u32 {s(uD0)}, {s(uD0)}, {s(u1)}")
        A(f"s_lshl_b32 {s(uD0)}, {s(uD0)}, 10")
        A(f"s_add_u32 {s(uD0)}, {s(uD0)}, {W2F}")
        A(f"s_cmp_ge_u32 {s(sWB)}, 112")
        A(f"s_cselect_b32 {s(sSrc)}, {s(uSrc)}, {s(sSrc)}")
        A(f"s_cselect_b32 {s(sD0)}, {s(uD0)}, {s(sD0)}")
        A(f"s_mov_b32 {s(sStride)}, 3584")
        A(f"s_cselect_b32 {s(sStride)}, 896, {s(sStride)}")
        A(f"s_cselect_b32 {s(sA)}, 4, 8")
        A(f"s_mov_b32 {s(sR1)}, {4 * 1088}")
        A(f"s_cselect_b32 {s(sR1)}, {8 * 1088}, {s(sR1)}")
        A(f"s_mov_b32 {s(sDS)}, {112 * 1024}")
        A(f"s_cselect_b32 {s(sDS)}, {448 * 1024}, {s(sDS)}")
        A(f"s_cselect_b32 {s(R_D)}, {s(P_W2)}, {s(P_W1)}")
        A(f"s_cselect_b32 {s(R_D + 1)}, {s(P_W2 + 1)}, {s(P_W1 + 1)}")
        A(f"s_mov_b32 {s(R_D + 2)}, 1605632")
        A(f"s_mov_b32 {s(R_D + 3)}, 0x{SRD3:08x}")
        A(f"s_lshl_b32 {s(t0)}, {s(S_WV)}, 2")
        A(f"s_mul_i32 {s(t0)}, {s(t0)}, {s(sStride)}")
        A(f"s_add_u32 {s(sSrc)}, {s(sSrc)}, {s(t0)}")
        A(f"v_lshlrev_b32 {v(vL16)}, 4, v1")
        A(f"v_add_u32 {v(vWa)}, {s(sSrc)}, {v(vL16)}")
        A(f"s_lshl_b32 {s(t0)}, {s(S_CP)}, 13")
        self.srd(R_B, P_SK, 4096, add=s(t0))
        A(f"s_add_u32 {s(t0)}, {s(t0)}, 4096")
        self.srd(R_C, P_SK, 4096, add=s(t0))
        vKA, vKB, vKA2, vKB2 = 132, 133, 134, 135
        A(f"v_lshlrev_b32 {v(vKA)}, 4, v0")
        A(f"v_subrev_u32 {v(vKB)}, 16, {v(vKA)}")
        A(f"v_subrev_u32 {v(vKA)}, 32, {v(vKA)}")
        A(f"v_and_b32 {v(vKA2)}, 1, v1")
        A(f"v_lshlrev_b32 {v(vKA2)}, 4, {v(vKA2)}")
        A(f"v_add_u32 {v(vKB2)}, 4080, {v(vKA2)}")
        vTPW, vWw, vTPR, vStO, vTR0, vTR1, vKW = 136, 137, 138, 139, 140, 141, 142
        A(f"v_add_u32 {v(vKW + 1)}, {4096 + L_KC}, {v(vKA2)}")
        A(f"v_add_u32 {v(vKA2)}, 4064, {v(vKA2)}")
        A(f"v_lshlrev_b32 {v(vKW)}, 4, v0")
        A(f"v_add_u32 {v(vKW)}, {L_KC}, {v(vKW)}")
        A(f"v_mul_u32_u24 {v(vTPW)}, 1088, {v(vC)}")
        A(f"v_lshl_add_u32 {v(vTPW)}, {v(vRG)}, 3, {v(vTPW)}")
        A(f"s_lshl_b32 {s(t0)}, {s(S_WV)}, 6")
        A(f"v_add_u32 {v(vTPW)}, {s(t0)}, {v(vTPW)}")
        A(f"s_mul_i32 {s(t1)}, {s(S_WV)}, {4 * 1088}")
        A(f"v_add_u32 {v(vWw)}, {s(t1)}, {v(vL16)}")
        A(f"v_lshrrev_b32 {v(vStO)}, 4, v0")
        A(f"v_mul_u32_u24 {v(vTPR)}, 272, {v(vStO)}")
        A(f"v_and_b32 {v(vx)}, 15, v0")
        A(f"v_lshl_add_u32 {v(vTPR)}, {v(vx)}, 4, {v(vTPR)}")
        A(f"v_lshlrev_b32 {v(vStO)}, 13, {v(vStO)}")
        A(f"v_lshl_add_u32 {v(vStO)}, {v(vx)}, 4, {v(vStO)}")
        A(f"v_lshrrev_b32 {v(vTR0)}, 5, v1")
        A(f"v_mul_lo_u32 {v(vTR0)}, {v(vTR0)}, {s(sA)}")
        A(f"v_bfe_u32 {v(vx)}, v1, 2, 2")
        A(f"v_add_u32 {v(vTR0)}, {v(vTR0)}, {v(vx)}")
        A(f"v_mul_u32_u24 {v(vTR0)}, 1088, {v(vTR0)}")
        A(f"v_bfe_u32 {v(vx)}, v1, 4, 1")
        A(f"v_lshl_add_u32 {v(vTR0)}, {v(vx)}, 5, {v(vTR0)}")
        A(f"v_and_b32 {v(vx)}, 3, v1")
        A(f"v_lshl_add_u32 {v(vTR0)}, {v(vx)}, 3, {v(vTR0)}")
        A(f"v_add_u32 {v(vTR0)}, {s(t0)}, {v(vTR0)}")
        A(f"v_add_u32 {v(vTR1)}, {s(sR1)}, {v(vTR0)}")
        sTile = S_OFF
        A(f"s_lshl_b32 {s(sTile)}, {s(S_J)}, 18")
        A(f"s_lshl_b32 {s(t0)}, {s(S_RB)}, 8")
        A(f"s_add_u32 {s(sTile)}, {s(sTile)}, {s(t0)}")
        A(f"v_lshlrev_b32 {v(vRow)}, 2, {v(vRow)}")
        A("v_mov_b32 v240, 0")
        A("v_mov_b32 v241, 0")
        A("v_lshlrev_b32 v242, 3, v1")
        for e in range(2):
            A(f"ds_write_b64 v242, v[240:241] offset:{L_UR + 4608 * e + 4096}")

        TT, AC, VU, vO = 144, 184, 200, 232
        if self.o.get("p_dot2", 1):
            A.await_regs(v(vK, 20), v(vSH, 16))
            self.stamp(21)
            for p in range(4):
                for e, sel in ((0, S_PERM_LO), (1, S_PERM_HI)):
                    for i in range(4):
                        A(f"v_perm_b32 {v(TT + 8 * p + 4 * e + i)}, {v(vK + 4 * i + p)}, {v(vK + 4 * (i + 1) + p)}, {s(sel)}")
            for row in range(2):
                for p in range(4):
                    for e in range(2):
                        w = vSH + 2 * (2 * p + e)
                        A(f"v_dot2_f32_bf16 {v(AC + 4 * p + 2 * row + e)}, {v(TT + 8 * p + 4 * e + row)}, {v(w + 1)}, 0")
            for row in range(2):
                for p in range(4):
                    for e in range(2):
                        w = vSH + 2 * (2 * p + e)
                        d = AC + 4 * p + 2 * row + e
                        A(f"v_dot2_f32_bf16 {v(d)}, {v(TT + 8 * p + 4 * e + 2 + row)}, {v(w)}, {v(d)}")
            for row in range(2):
                for p in range(4):
                    src = vV + 4 * row + p
                    A(f"v_lshlrev_b32 {v(VU + 4 * p + 2 * row)}, 16, {v(src)}")
                    A(f"v_and_b32 {v(VU + 4 * p + 2 * row + 1)}, {s(S_MASKHI)}, {v(src)}")
            for p in range(4):
                for row in range(2):
                    acc = AC + 4 * p + 2 * row
                    A(f"v_pk_mul_f32 {v(acc, 2)}, {v(acc, 2)}, {v(VU + 4 * p + 2 * row, 2)}")
            for p in range(4):
                for row in range(2):
                    acc = AC + 4 * p + 2 * row
                    A(f"v_cvt_pk_bf16_f32 {v(vO + 2 * p + row)}, {v(acc)}, {v(acc + 1)}")
        for p in range(4):
            A(f"ds_write_b64 {v(vTPW)}, {v(vO + 2 * p, 2)} offset:{L_TPK + 272 * p}")
        self.stamp(22)
        A(f"v_add_u32 {v(vx)}, {L_TPQ}, {v(vTPW)}")
        A.await_regs(v(vQO, 8))
        for p in range(4):
            A(f"ds_write2_b32 {v(vx)}, {v(vQO + p)}, {v(vQO + 4 + p)} offset0:{68 * p} offset1:{68 * p + 1}")
        A.await_regs(v(vQ, 16))
        m, q2 = 240, 244
        A(f"s_mov_b32 {s(t2)}, 0x3f803f80")
        for i in range(16):
            d1, d2 = m + (i & 1), q2 + (i & 1)
            A(f"v_dot2_f32_bf16 {v(d1)}, {v(vQ + i)}, {s(t2)}, {'0' if i < 2 else v(d1)}")
            A(f"v_dot2_f32_bf16 {v(d2)}, {v(vQ + i)}, {v(vQ + i)}, {'0' if i < 2 else v(d2)}")
        A(f"v_add_f32 {v(m)}, {v(m)}, {v(m + 1)}")
        A(f"v_add_f32 {v(q2)}, {v(q2)}, {v(q2 + 1)}")
        for mod in ("quad_perm:[1,0,3,2]", "quad_perm:[2,3,0,1]", "row_half_mirror", "row_mirror"):
            for c_ in (m, q2):
                A(f"v_add_f32_dpp {v(c_)}, {v(c_)}, {v(c_)} {mod} row_mask:0xf bank_mask:0xf")
        A(f"s_mov_b32 {s(t0)}, 0x{f32bits(1.0 / 448):08x}")
        A(f"s_mov_b32 {s(t1)}, 0x{f32bits(1e-5):08x}")
        A(f"v_mul_f32 {v(m)}, {s(t0)}, {v(m)}")
        A(f"v_mul_f32 {v(q2)}, {s(t0)}, {v(q2)}")
        A(f"v_fma_f32 {v(q2)}, -{v(m)}, {v(m)}, {v(q2)}")
        A(f"v_max_f32 {v(q2)}, 0, {v(q2)}")
        A(f"v_add_f32 {v(q2)}, {s(t1)}, {v(q2)}")
        A(f"v_rsq_f32 {v(q2)}, {v(q2)}")
        L_MP = L_TPN
        A(f"s_mov_b32 {s(t1)}, 0x{f32bits(-LOG2E):08x}")
        A.await_regs(v(vSC, 3))
        for i in range(3):
            A(f"v_lshlrev_b32 {v(vSC + i)}, 16, {v(vSC + i)}")
        for i in range(3):
            A(f"v_mul_f32 {v(vMT + i)}, {s(t1)}, {v(vSC + i)}")
        for i in range(3):
            A(f"v_exp_f32 {v(vMT + i)}, {v(vMT + i)}")
        for i in range(3):
            A(f"v_add_f32 {v(vMT + i)}, 1.0, {v(vMT + i)}")
        for i in range(3):
            A(f"v_rcp_f32 {v(vMT + i)}, {v(vMT + i)}")
        A(f"s_lshl_b32 {s(t2)}, {s(S_WV)}, 2")
        A(f"v_lshrrev_b32 {v(vCa)}, 4, v1")
        A(f"v_add_u32 {v(vCa)}, {s(t2)}, {v(vCa)}")
        for i in range(3):
            A(f"v_mul_f32 {v(vSC + i)}, {v(vSC + i)}, {v(vMT + i)}")
        A(f"v_mul_u32_u24 {v(vCa)}, 272, {v(vCa)}")
        A(f"v_and_b32 {v(vMa)}, 7, v1")
        for i in range(3):
            A(f"v_cvt_pk_bf16_f32 {v(vSC + i)}, {v(vSC + i)}, {v(vSC + i)}")
        A(f"v_lshl_add_u32 {v(vCa)}, {v(vMa)}, 5, {v(vCa)}")
        for i in range(3):
            A(f"v_and_b32 {v(vSC + i)}, {s(S_MASKHI)}, {v(vSC + i)}")
        A(f"v_add_u32 {v(vCa)}, {L_MP}, {v(vCa)}")
        A.await_regs(v(vM, 12))
        for i in range(3):
            for k in range(4):
                A(f"v_lshlrev_b32 {v(vMT + 2 * k)}, 16, {v(vM + 4 * i + k)}")
                A(f"v_and_b32 {v(vMT + 2 * k + 1)}, {s(S_MASKHI)}, {v(vM + 4 * i + k)}")
            sc = vSC + i
            base, e = (sc, 0) if sc % 2 == 0 else (sc - 1, 1)
            for k in range(4):
                if i == 0:
                    A(f"v_pk_mul_f32 {v(vMA + 2 * k, 2)}, {v(vMT + 2 * k, 2)}, {v(base, 2)} op_sel:[0,{e}] op_sel_hi:[1,{e}]")
                else:
                    A(f"v_pk_fma_f32 {v(vMA + 2 * k, 2)}, {v(vMT + 2 * k, 2)}, {v(base, 2)}, {v(vMA + 2 * k, 2)} op_sel:[0,{e},0] op_sel_hi:[1,{e},1]")
        for k in range(8):
            A(f"v_add_f32_dpp {v(vMA + k)}, {v(vMA + k)}, {v(vMA + k)} row_ror:8 row_mask:0xf bank_mask:0xf")
        A(f"ds_write_b128 {v(vCa)}, {v(vMA, 4)}")
        A(f"ds_write_b128 {v(vCa)}, {v(vMA + 4, 4)} offset:16")
        A.barrier()
        self.stamp(23)
        vRB = 16
        for i in range(2):
            A(f"ds_read_b128 {v(vRB + 4 * i, 4)}, {v(vTPR)} offset:{L_TPK + 4352 * i}")
        for i in range(2):
            A(f"ds_read_b128 {v(vRB + 8 + 4 * i, 4)}, {v(vTPR)} offset:{L_TPQ + 4352 * i}")
        A(f"v_mul_f32 {v(m)}, {v(m)}, {v(q2)}")
        vF0, vJ = 100, 118
        A(f"v_lshlrev_b32 {v(vJ)}, 2, v1")
        A(f"v_add_u32 {v(vJ + 1)}, {L_TPN}, {v(vJ)}")
        for g_ in range(16):
            A(f"ds_read_b32 {v(vF0 + g_)}, {v(vJ + 1)} offset:{272 * g_}")
        A(f"s_mul_i32 {s(sRS)}, {s(sRS)}, {MPL}")
        A(f"s_lshl_b32 {s(sCG)}, {s(sCG)}, 8")
        A(f"s_add_u32 {s(sRS)}, {s(sRS)}, {s(sCG)}")
        A(f"s_add_u32 {s(sRS)}, {s(sRS)}, {MODF}")
        A.await_regs(v(vF0, 16))
        for stp in (8, 4, 2, 1):
            for g_ in range(stp):
                A(f"v_add_f32 {v(vF0 + g_)}, {v(vF0 + g_)}, {v(vF0 + g_ + stp)}")
        A(f"s_add_u32 {s(t0)}, {s(sTile)}, {KVP}")
        A(f"s_add_u32 {s(t1)}, {s(sTile)}, {KVP + 131072}")
        A(f"s_add_u32 {s(t2)}, {s(sTile)}, {QP}")
        A(f"s_add_u32 {s(u0)}, {s(sTile)}, {QP + 131072}")
        A.await_regs(v(vRB, 8))
        A(f"buffer_store_dwordx4 {v(vRB, 4)}, {v(vStO)}, {s(R_WS, 4)}, {s(t0)} offen sc1")
        A(f"buffer_store_dwordx4 {v(vRB + 4, 4)}, {v(vStO)}, {s(R_WS, 4)}, {s(t1)} offen sc1")
        A.await_regs(v(vRB + 8, 8))
        A(f"buffer_store_dwordx4 {v(vRB + 8, 4)}, {v(vStO)}, {s(R_WS, 4)}, {s(t2)} offen sc1")
        A(f"buffer_store_dwordx4 {v(vRB + 12, 4)}, {v(vStO)}, {s(R_WS, 4)}, {s(u0)} offen sc1")
        A(f"s_mov_b32 {s(t0)}, {STR}")
        A(f"s_mov_b32 {s(t1)}, {STM}")
        A(f"s_mov_b32 exec_lo, 0x00010001")
        A(f"s_mov_b32 exec_hi, 0x00010001")
        A(f"buffer_store_dword {v(q2)}, {v(vRow)}, {s(R_WS, 4)}, {s(t0)} offen sc1")
        A(f"buffer_store_dword {v(m)}, {v(vRow)}, {s(R_WS, 4)}, {s(t1)} offen sc1")
        A("s_mov_b64 exec, -1")
        skipm = self.lab("ms")
        A(f"s_cmp_lg_u32 {s(S_WV)}, 0")
        A(f"s_cbranch_scc1 {skipm}")
        A.cond_begin()
        A(f"buffer_store_dword {v(100)}, {v(118)}, {s(R_WS, 4)}, {s(sRS)} offen sc1")
        A.cond_end()
        A.label(skipm)
        self.stamp(24)
        def batch2():
            for e in range(2):
                R = R_B if e == 0 else R_C
                for ps in range(2):
                    b = vKD + 8 * (2 * e + ps)
                    A(f"buffer_load_dwordx4 {v(b, 4)}, {v(vKA if ps == 0 else vKA2)}, {s(R, 4)}, 0 offen")
                    A(f"buffer_load_dwordx2 {v(b + 4, 2)}, {v(vKB if ps == 0 else vKB2)}, {s(R, 4)}, 0 offen")
            for i in range(4):
                A(f"buffer_load_dwordx4 {v(vW + 4 * i, 4)}, {v(vWa)}, {s(R_D, 4)}, 0 offen")
                if i < 3:
                    A(f"v_add_u32 {v(vWa)}, {s(sStride)}, {v(vWa)}")

        mark = A.vm_count
        if not self.o.get("b2_late", 0):
            batch2()
        A(f"s_add_u32 {s(S_NONCE)}, {s(S_NONCE)}, 1")
        A(f"s_lshl_b32 {s(t0)}, {s(S_CP)}, 7")
        A(f"s_add_u32 {s(t0)}, {s(t0)}, {FL + F1 * 128}")
        A.wait_vm(A.vm_count - mark)
        A.barrier()
        self.flag_store(t0)
        if self.o.get("b2_late", 0):
            batch2()
        self.stamp(3)
        vx4 = 48
        for e in range(2):
            for ps in range(2):
                b = vKD + 8 * (2 * e + ps)
                base = e * 4 * CS
                ad = vKW + ps
                A.await_regs(v(b, 6))
                for i in range(4):
                    A(f"v_alignbit_b32 {v(vx4 + i)}, {v(b + i + 1)}, {v(b + i)}, 16")
                for i in range(4):
                    A(f"v_mov_b32 {v(vx4 + 4 + i)}, {v(b + i + 1)}")
                for i in range(4):
                    A(f"v_alignbit_b32 {v(vx4 + 8 + i)}, {v(b + i + 2)}, {v(b + i + 1)}, 16")
                A(f"ds_write_b128 {v(ad)}, {v(b, 4)} offset:{base}")
                A(f"ds_write_b128 {v(ad)}, {v(vx4, 4)} offset:{base + CS}")
                A(f"ds_write_b128 {v(ad)}, {v(vx4 + 4, 4)} offset:{base + 2 * CS}")
                A(f"ds_write_b128 {v(ad)}, {v(vx4 + 8, 4)} offset:{base + 3 * CS}")
        A.await_regs(v(vW, 16))
        for i in range(4):
            A(f"ds_write_b128 {v(vWw)}, {v(vW + 4 * i, 4)} offset:{L_WB + 1088 * i}")
        A.barrier()
        self.stamp(25)
        for i in range(4):
            A(f"ds_read_b64_tr_b16 {v(220 + 4 * i, 2)}, {v(vTR0)} offset:{L_WB + 256 * i}")
            A(f"ds_read_b64_tr_b16 {v(220 + 4 * i + 2, 2)}, {v(vTR1)} offset:{L_WB + 256 * i}")
        self.wr = dict(sWB=sWB, sD0=sD0, sDS=sDS)
        if self.o.get("w_early", 1):
            self.w_stores()
        self.stamp(26)

    def w_stores(self):
        A = self.A
        vF, sD0, sDS = 220, self.wr["sD0"], self.wr["sDS"]
        A.await_regs(v(vF, 16))
        for i in range(3):
            A(f"buffer_store_dwordx4 {v(vF + 4 * i, 4)}, v4, {s(R_WS, 4)}, {s(sD0)} offen sc1")
            A(f"s_add_u32 {s(sD0)}, {s(sD0)}, {s(sDS)}")
        skip = self.lab("w4")
        A(f"s_cmp_ge_u32 {s(S_WV)}, 2")
        A(f"s_cbranch_scc1 {skip}")
        A.cond_begin()
        A(f"buffer_store_dwordx4 {v(vF + 12, 4)}, v4, {s(R_WS, 4)}, {s(sD0)} offen sc1")
        A.cond_end()
        A.label(skip)

    def poll2_issue(self, va, vb, vt):
        A = self.A
        A(f"buffer_load_dword {v(vt)}, {v(va)}, {s(R_WS, 4)}, 0 offen sc1")
        A(f"buffer_load_dword {v(vt + 1)}, {v(vb)}, {s(R_WS, 4)}, 0 offen sc1")

    def poll1_check(self, va, vt):
        A = self.A
        done = self.lab("p1d")
        A(f"v_cmp_ne_u32 vcc, {s(S_NONCE)}, {v(vt)}")
        A("s_nop 1")
        A("s_cmp_eq_u64 vcc, 0")
        A(f"s_cbranch_scc1 {done}")
        st = A.snapshot()
        self.poll(va, vt)
        A.restore(st)
        A.label(done)

    def poll2_check(self, va, vb, vt):
        A = self.A
        loop, done = self.lab("p2"), self.lab("p2d")
        A(f"v_cmp_ne_u32 vcc, {s(S_NONCE)}, {v(vt)}")
        A(f"v_cmp_ne_u32 {s(S_SPIN + 2, 2)}, {s(S_NONCE)}, {v(vt + 1)}")
        A(f"s_mov_b32 {s(S_SPIN)}, 0")
        A("s_nop 1")
        A(f"s_or_b64 vcc, vcc, {s(S_SPIN + 2, 2)}")
        A("s_cmp_eq_u64 vcc, 0")
        A(f"s_cbranch_scc1 {done}")
        st = A.snapshot()
        A.label(loop)
        A(f"buffer_load_dword {v(vt)}, {v(va)}, {s(R_WS, 4)}, 0 offen sc1")
        A(f"buffer_load_dword {v(vt + 1)}, {v(vb)}, {s(R_WS, 4)}, 0 offen sc1")
        A.wait_vm(0)
        A(f"v_cmp_ne_u32 vcc, {s(S_NONCE)}, {v(vt)}")
        A(f"v_cmp_ne_u32 {s(S_SPIN + 2, 2)}, {s(S_NONCE)}, {v(vt + 1)}")
        A(f"s_add_u32 {s(S_SPIN)}, {s(S_SPIN)}, 1")
        A("s_nop 1")
        A(f"s_or_b64 vcc, vcc, {s(S_SPIN + 2, 2)}")
        A("s_cmp_eq_u64 vcc, 0")
        A(f"s_cbranch_scc1 {done}")
        A(f"s_cmp_lt_u32 {s(S_SPIN)}, {SPIN_MAX}")
        A(f"s_cbranch_scc1 {loop}")
        A.restore(st)
        A.label(done)

    def phase_a(self):
        A = self.A
        T = S_T
        t0, t1, t2 = T, T + 1, T + 2
        vPa, vPt, vx, vy = 2, 3, 16, 17
        A(f"v_min_u32 {v(vPa)}, 55, v1")
        A(f"s_mul_i32 {s(t0)}, {s(S_WV)}, 56")
        A(f"v_add_u32 {v(vPa)}, {s(t0)}, {v(vPa)}")
        A(f"v_lshlrev_b32 {v(vPa)}, 7, {v(vPa)}")
        A(f"v_add_u32 {v(vPa)}, {FL + F1 * 128}, {v(vPa)}")
        vL16 = 4
        sKV = S_OFF + 2
        A(f"s_lshl_b32 {s(sKV)}, {s(S_CP)}, 13")
        A(f"s_lshl_b32 {s(t2)}, {s(S_WV)}, 11")
        A(f"s_add_u32 {s(sKV)}, {s(sKV)}, {s(t2)}")
        vUW, vaA, vaB = 5, 6, 7
        A(f"s_lshl_b32 {s(t0)}, {s(S_WV)}, 10")
        A(f"s_sub_u32 {s(t0)}, {4088 - 512}, {s(t0)}")
        A(f"v_lshlrev_b32 {v(vx)}, 3, v1")
        A(f"v_sub_u32 {v(vUW)}, {s(t0)}, {v(vx)}")
        A(f"v_and_b32 {v(vx)}, 15, v1")
        A(f"v_add_u32 {v(vx)}, 1, {v(vx)}")
        A(f"v_and_b32 {v(vy)}, 3, {v(vx)}")
        A(f"v_sub_u32 {v(vx)}, {v(vx)}, {v(vy)}")
        A(f"v_lshlrev_b32 {v(vx)}, 1, {v(vx)}")
        A(f"v_mul_u32_u24 {v(vy)}, {CS}, {v(vy)}")
        A(f"v_add_u32 {v(vaA)}, {v(vx)}, {v(vy)}")
        A(f"v_lshrrev_b32 {v(vy)}, 4, v1")
        A(f"v_lshl_add_u32 {v(vaA)}, {v(vy)}, 4, {v(vaA)}")
        A(f"s_lshr_b32 {s(t0)}, {s(S_WV)}, 1")
        A(f"s_and_b32 {s(t1)}, {s(S_WV)}, 1")
        A(f"s_mul_i32 {s(t2)}, {s(t0)}, {4 * CS}")
        A(f"s_lshl_b32 {s(t1)}, {s(t1)}, 8")
        A(f"s_add_u32 {s(t2)}, {s(t2)}, {s(t1)}")
        A(f"s_add_u32 {s(t2)}, {s(t2)}, {L_KC}")
        A(f"v_add_u32 {v(vaA)}, {s(t2)}, {v(vaA)}")
        A(f"v_and_b32 {v(vx)}, 15, v1")
        A(f"v_lshlrev_b32 {v(vx)}, 5, {v(vx)}")
        A(f"v_lshlrev_b32 {v(vy)}, 4, {v(vy)}")
        A(f"v_sub_u32 {v(vaB)}, {v(vy)}, {v(vx)}")
        A(f"s_mul_i32 {s(t2)}, {s(t0)}, 4608")
        A(f"s_add_u32 {s(t2)}, {s(t2)}, {s(t1)}")
        A(f"s_add_u32 {s(t2)}, {s(t2)}, {L_UR + 480}")
        A(f"v_add_u32 {v(vaB)}, {s(t2)}, {v(vaB)}")
        vPW, vPM, vPR = 18, 19, 20
        A(f"s_lshl_b32 {s(t0)}, {s(S_J)}, 3")
        A(f"s_lshl_b32 {s(t1)}, {s(S_WV)}, 1")
        A(f"s_add_u32 {s(t0)}, {s(t0)}, {s(t1)}")
        A(f"s_mul_i32 {s(t0)}, {s(t0)}, 147")
        A(f"s_lshr_b32 {s(t0)}, {s(t0)}, 11")
        A(f"v_min_u32 {v(vx)}, 27, v1")
        A(f"v_lshl_add_u32 {v(vPW)}, {v(vx)}, 2, {s(t0)}")
        A(f"s_mul_i32 {s(t1)}, {s(S_WV)}, 28")
        A(f"s_add_u32 {s(t1)}, {s(t1)}, {112 - 32}")
        A(f"v_min_u32 {v(vy)}, 59, v1")
        A(f"v_add_u32 {v(vy)}, {s(t1)}, {v(vy)}")
        A(f"v_cmp_gt_u32 vcc, 32, v1")
        A(f"v_cndmask_b32 {v(vPW)}, {v(vy)}, {v(vPW)}, vcc")
        A(f"v_lshlrev_b32 {v(vPW)}, 7, {v(vPW)}")
        A(f"v_add_u32 {v(vPW)}, {FL + FQ * 128}, {v(vPW)}")
        A(f"s_add_u32 {s(t1)}, {s(sKV)}, {KVP}")
        self.poll(vPa, vPt)
        A.barrier()
        if self.o.get("w_early", 1):
            A(f"s_lshl_b32 {s(t0)}, {s(self.wr['sWB'])}, 7")
            A(f"s_add_u32 {s(t0)}, {s(t0)}, {FL + FQ * 128}")
            self.flag_store(t0)
        self.stamp(5)
        vKV = 8
        for h in range(2):
            A(f"buffer_load_dwordx4 {v(vKV + 4 * h, 4)}, {v(vL16)}, {s(R_WS, 4)}, {s(t1)} offen offset:{1024 * h} sc1")
        RA = Rec()
        f0, f1, f2, fx, fy = T + 15, T + 16, T + 17, 184, 185
        vQn, vRs, vMs = 144, 152, 160
        RA(f"s_add_u32 {s(f1)}, {s(sKV)}, {QP}")
        for h in range(2):
            RA(f"buffer_load_dwordx4 {v(vQn + 4 * h, 4)}, {v(vL16)}, {s(R_WS, 4)}, {s(f1)} offen offset:{1024 * h} sc1")
        RA(f"s_lshl_b32 {s(f0)}, {s(S_WV)}, 11")
        RA(f"s_add_u32 {s(f1)}, {s(f0)}, {STR}")
        RA(f"s_add_u32 {s(f2)}, {s(f0)}, {STM}")
        for h in range(2):
            RA(f"buffer_load_dwordx4 {v(vRs + 4 * h, 4)}, {v(vL16)}, {s(R_WS, 4)}, {s(f1)} offen offset:{1024 * h} sc1")
            RA(f"buffer_load_dwordx4 {v(vMs + 4 * h, 4)}, {v(vL16)}, {s(R_WS, 4)}, {s(f2)} offen offset:{1024 * h} sc1")
        vPS, vPA, vPG, vPD, vPar = 168, 170, 172, 174, 176
        vMP, vPP, vGP = 186, 188, 208
        RA(f"v_lshrrev_b32 {v(fx)}, 3, v1")
        RA(f"v_mul_u32_u24 {v(fx)}, 1792, {v(fx)}")
        RA(f"v_and_b32 {v(fy)}, 7, v1")
        RA(f"v_cmp_gt_u32 vcc, 5, {v(fy)}")
        RA(f"v_mul_u32_u24 {v(fy)}, {MPL}, {v(fy)}")
        RA(f"v_add_u32 {v(fx)}, {v(fx)}, {v(fy)}")
        RA(f"s_lshl_b32 {s(f0)}, {s(S_CP)}, 3")
        RA(f"s_add_u32 {s(f0)}, {s(f0)}, {MODF}")
        RA(f"v_add_u32 {v(fx)}, {s(f0)}, {v(fx)}")
        RA(f"v_mov_b32 {v(fy)}, 0x80000000")
        RA(f"v_cndmask_b32 {v(fx)}, {v(fy)}, {v(fx)}, vcc")
        RA(f"buffer_load_dwordx2 {v(vMP, 2)}, {v(fx)}, {s(R_WS, 4)}, 0 offen sc1")
        self.A = RA
        self.srd(R_A, P_D, 896)
        self.A = A
        RA(f"s_lshl_b32 {s(f0)}, {s(S_CP)}, 2")
        RA(f"v_mov_b32 {v(fy)}, {s(f0)}")
        RA(f"buffer_load_dword {v(vPD + 1)}, {v(fy)}, {s(R_A, 4)}, 0 offen")
        if not self.o.get("w_early", 1):
            self.w_stores()
        vP = 22
        A.await_regs(v(vKV, 8))
        for h in range(2):
            d = vKV + 4 * h
            for e, sel in ((0, S_PERM_LO), (1, S_PERM_HI)):
                o = vP + 4 * h + 2 * e
                A(f"v_perm_b32 {v(o)}, {v(d + 2)}, {v(d + 3)}, {s(sel)}")
                A(f"v_perm_b32 {v(o + 1)}, {v(d)}, {v(d + 1)}, {s(sel)}")
        for h in range(2):
            for e in range(2):
                o = vP + 4 * h + 2 * e
                A(f"ds_write_b64 {v(vUW)}, {v(o, 2)} offset:{L_UR + 4608 * e + (512 if h == 0 else 0)}")
        A.barrier()
        self.stamp(6)
        ACC = 32
        BS = [64, 96]
        AR = 128

        def ldB(rp, m):
            A(f"ds_read_b128 {v(BS[rp & 1] + 4 * m, 4)}, {v(vaB)} offset:{64 * rp + 512 * (7 - m)}")

        def ldA(idx):
            rp, q = divmod(idx, 8)
            r = AR + 4 * (idx % 4)
            A(f"ds_read_b64 {v(r, 2)}, {v(vaA)} offset:{64 * rp + 512 * q}")
            A(f"ds_read_b64 {v(r + 2, 2)}, {v(vaA)} offset:{64 * rp + 512 * q + 8}")

        ldA(0)
        for m in range(8):
            ldB(0, m)
        ldA(1)
        ldA(2)
        RB = Rec()
        vRW, vRR, vSt = 183, 19, 182
        RB(f"v_and_b32 {v(fx)}, 15, v1")
        RB(f"v_mul_u32_u24 {v(vRW)}, 80, {v(fx)}")
        RB(f"v_lshrrev_b32 {v(fy)}, 4, v1")
        RB(f"v_lshl_add_u32 {v(vRW)}, {v(fy)}, 4, {v(vRW)}")
        RB(f"s_mul_i32 {s(f0)}, {s(S_WV)}, 10240")
        RB(f"s_add_u32 {s(f0)}, {s(f0)}, {L_RED}")
        RB(f"v_add_u32 {v(vRW)}, {s(f0)}, {v(vRW)}")
        RB(f"v_mul_u32_u24 {v(vSt)}, 57344, {v(fy)}")
        RB(f"v_lshl_add_u32 {v(vSt)}, {v(fx)}, 4, {v(vSt)}")
        RB(f"v_lshrrev_b32 {v(fx)}, 2, v1")
        RB(f"v_mul_u32_u24 {v(vRR)}, 80, {v(fx)}")
        RB(f"v_and_b32 {v(fy)}, 3, v1")
        RB(f"v_lshl_add_u32 {v(vRR)}, {v(fy)}, 4, {v(vRR)}")
        RB(f"s_mul_i32 {s(f0)}, {s(S_WV)}, 2560")
        RB(f"s_add_u32 {s(f0)}, {s(f0)}, {L_RED}")
        RB(f"v_add_u32 {v(vRR)}, {s(f0)}, {v(vRR)}")
        sX = S_OFF + 3
        RB(f"s_mul_i32 {s(sX)}, {s(S_WV)}, {2 * 229376}")
        RB(f"s_lshl_b32 {s(f0)}, {s(S_CP)}, 8")
        RB(f"s_add_u32 {s(sX)}, {s(sX)}, {s(f0)}")
        RB(f"s_add_u32 {s(sX)}, {s(sX)}, {X1P}")
        RB(f"s_add_u32 {s(S_OFF + 4)}, {s(sX)}, 229376")
        U, Q, N = 216, 232, 200
        RB.await_regs(v(vMP, 2))
        for mod in ("quad_perm:[1,0,3,2]", "quad_perm:[2,3,0,1]", "row_half_mirror"):
            for k in range(2):
                RB(f"v_add_f32_dpp {v(vMP + k)}, {v(vMP + k)}, {v(vMP + k)} {mod} row_mask:0xf bank_mask:0xf")
        RB(f"v_cvt_pk_bf16_f32 {v(vMP)}, {v(vMP)}, {v(vMP + 1)}")
        r0, r1, r2 = T + 12, T + 13, T + 14
        RB(f"v_readlane_b32 {s(r0)}, {v(vMP)}, 0")
        RB(f"v_readlane_b32 {s(r1)}, {v(vMP)}, 8")
        RB(f"v_readlane_b32 {s(r2)}, {v(vMP)}, 16")
        for reg, sr in ((vPS, r0), (vPA, r1), (vPG, r2)):
            RB(f"v_lshlrev_b32 {v(reg)}, 16, {s(sr)}")
            RB(f"v_mov_b32 {v(reg + 1)}, {s(sr)}")
        for reg in (vPS, vPA, vPG):
            RB(f"v_and_b32 {v(reg + 1)}, {s(S_MASKHI)}, {v(reg + 1)}")
        RB(f"v_add_f32 {v(vPA)}, 1.0, {v(vPA)}")
        RB(f"v_add_f32 {v(vPA + 1)}, 1.0, {v(vPA + 1)}")
        RB(f"v_cvt_pk_bf16_f32 {v(vPA)}, {v(vPA)}, {v(vPA + 1)}")
        RB(f"v_and_b32 {v(vPA + 1)}, {s(S_MASKHI)}, {v(vPA)}")
        RB(f"v_lshlrev_b32 {v(vPA)}, 16, {v(vPA)}")
        RB.await_regs(v(vQn, 8), v(vRs, 8), v(vMs, 8), v(vPD + 1))
        RB(f"v_lshlrev_b32 {v(vPD)}, 16, {v(vPD + 1)}")
        RB(f"v_and_b32 {v(vPD + 1)}, {s(S_MASKHI)}, {v(vPD + 1)}")
        for h in range(2):
            for e in range(2):
                for r in range(4):
                    for dst, src in ((U, vKV), (Q, vQn)):
                        d = dst + 8 * h + 4 * e + r
                        if e == 0:
                            RB(f"v_lshlrev_b32 {v(d)}, 16, {v(src + 4 * h + r)}")
                        else:
                            RB(f"v_and_b32 {v(d)}, {s(S_MASKHI)}, {v(src + 4 * h + r)}")
        for h in range(2):
            for e in range(2):
                for k in (0, 2):
                    o = 8 * h + 4 * e + k
                    RB(f"v_pk_fma_f32 {v(N + o, 2)}, {v(Q + o, 2)}, {v(vRs + 4 * h + k, 2)}, {v(vMs + 4 * h + k, 2)} neg_lo:[0,0,1] neg_hi:[0,0,1]")
        for h in range(2):
            for e in range(2):
                for k in (0, 2):
                    o = 8 * h + 4 * e + k
                    RB(f"v_pk_fma_f32 {v(N + o, 2)}, {v(N + o, 2)}, {v(vPA, 2)}, {v(vPS, 2)} op_sel:[0,{e},{e}] op_sel_hi:[1,{e},{e}]")
        for h in range(2):
            for e in range(2):
                for k in (0, 2):
                    o = 8 * h + 4 * e + k
                    RB(f"v_pk_mul_f32 {v(N + o, 2)}, {v(N + o, 2)}, {v(vPG, 2)} op_sel:[0,{e}] op_sel_hi:[1,{e}]")
        nm = 0
        self.bg_setup()
        for rp in range(4):
            for q in range(8):
                idx = rp * 8 + q
                ar = AR + 4 * (idx % 4)
                first = True
                for n in range(q, 8):
                    c = "0" if (rp == 0 and q == 0) else v(ACC + 4 * n, 4)
                    if first:
                        regs = [v(ar, 4)]
                        if q == 0:
                            regs.append(v(BS[rp & 1], 32))
                        A.await_regs(*regs)
                    A(f"v_mfma_f32_16x16x32_bf16 {v(ACC + 4 * n, 4)}, {v(ar, 4)}, {v(BS[rp & 1] + 4 * (n - q), 4)}, {c}")
                    nm += 1
                    if first:
                        first = False
                        if idx + 3 < 32:
                            ldA(idx + 3)
                        if rp < 3 and 0 <= q <= 3:
                            ldB(rp + 1, 2 * q)
                            ldB(rp + 1, 2 * q + 1)
                    if rp == 0:
                        RA.play(A, 2)
                    if rp >= 2 and len(RB.items) > self.o.get("rb_keep", 16):
                        RB.play(A, min(self.o.get("fill_rate", 2), len(RB.items) - self.o.get("rb_keep", 16)))
        RA.play(A, 10 ** 6)
        RB.play(A, 10 ** 6)
        self.stamp(7)
        for n in range(8):
            A(f"ds_write_b128 {v(vRW)}, {v(ACC + 4 * n, 4)} offset:{1280 * n}")
        if self.o.get("w_early", 1):
            A.barrier()
        else:
            A.wait_vm(0)
            A.barrier()
            A(f"s_lshl_b32 {s(t0)}, {s(self.wr['sWB'])}, 7")
            A(f"s_add_u32 {s(t0)}, {s(t0)}, {FL + FQ * 128}")
            self.flag_store(t0)
        self.stamp(30)
        vY = 96
        for h in range(2):
            for w in range(4):
                A(f"ds_read_b128 {v(vY + 16 * h + 4 * w, 4)}, {v(vRR)} offset:{10240 * w + 1280 * h}")
        vOut = 128
        for h in range(2):
            A.await_regs(v(vY + 16 * h, 16))
            ys = [(e, k, vY + 16 * h + 8 * e + k, 8 * h + 4 * e + k) for e in range(2) for k in (0, 2)]
            for e, k, y, o in ys:
                A(f"v_pk_add_f32 {v(y, 2)}, {v(y, 2)}, {v(y + 4, 2)}")
            for e, k, y, o in ys:
                A(f"v_pk_fma_f32 {v(y, 2)}, {v(U + o, 2)}, {v(vPD, 2)}, {v(y, 2)} op_sel:[0,{e},0] op_sel_hi:[1,{e},1]")
            for e, k, y, o in ys:
                A(f"v_pk_fma_f32 {v(y, 2)}, {v(N + o, 2)}, {v(y, 2)}, {v(Q + o, 2)}")
            for r in range(4):
                A(f"v_cvt_pk_bf16_f32 {v(vOut + 4 * h + r)}, {v(vY + 16 * h + r)}, {v(vY + 16 * h + 8 + r)}")
            A(f"buffer_store_dwordx4 {v(vOut + 4 * h, 4)}, {v(vSt)}, {s(R_WS, 4)}, {s(sX if h == 0 else S_OFF + 4)} offen sc1")
        self.stamp(8)
        A(f"s_lshl_b32 {s(t0)}, {s(S_CP)}, 7")
        A(f"s_add_u32 {s(t0)}, {s(t0)}, {FL + F2 * 128}")
        mark = A.vm_count
        A(f"buffer_load_dword {v(vPR)}, {v(vPW)}, {s(R_WS, 4)}, 0 offen sc1")
        A(f"v_lshlrev_b32 {v(vx)}, 3, v0")
        for pl in range(5):
            A(f"s_mov_b32 {s(t1)}, {MODF + pl * MPL + 4 * 1792}")
            A(f"s_mov_b32 {s(t2)}, {MODF + pl * MPL + 3 * 1792}")
            A(f"buffer_load_dwordx2 {v(vPP + 4 * pl, 2)}, {v(vx)}, {s(R_WS, 4)}, {s(t1)} offen sc1")
            A(f"buffer_load_dwordx2 {v(vPP + 4 * pl + 2, 2)}, {v(vx)}, {s(R_WS, 4)}, {s(t2)} offen sc1")
        A(f"v_lshlrev_b32 {v(vy)}, 2, v1")
        A(f"s_lshl_b32 {s(T + 3)}, {s(S_J)}, 8")
        for pl in range(5):
            A(f"s_add_u32 {s(t1)}, {s(T + 3)}, {MODF + pl * MPL + 5 * 1792}")
            A(f"buffer_load_dword {v(vGP + pl)}, {v(vy)}, {s(R_WS, 4)}, {s(t1)} offen sc1")
        A.wait_vm(A.vm_count - mark)
        A.barrier()
        self.flag_store(t0)
        A.await_regs(v(vPP, 20), v(vGP, 5))
        for pl in (1, 3):
            A(f"v_pk_add_f32 {v(vPP + 4 * pl - 4, 2)}, {v(vPP + 4 * pl - 4, 2)}, {v(vPP + 4 * pl, 2)}")
            A(f"v_pk_add_f32 {v(vPP + 4 * pl - 2, 2)}, {v(vPP + 4 * pl - 2, 2)}, {v(vPP + 4 * pl + 2, 2)}")
            A(f"v_add_f32 {v(vGP + pl - 1)}, {v(vGP + pl - 1)}, {v(vGP + pl)}")
        A(f"v_pk_add_f32 {v(vPP, 2)}, {v(vPP, 2)}, {v(vPP + 8, 2)}")
        A(f"v_pk_add_f32 {v(vPP + 2, 2)}, {v(vPP + 2, 2)}, {v(vPP + 10, 2)}")
        A(f"v_add_f32 {v(vGP)}, {v(vGP)}, {v(vGP + 2)}")
        A(f"v_pk_add_f32 {v(vPP, 2)}, {v(vPP, 2)}, {v(vPP + 16, 2)}")
        A(f"v_pk_add_f32 {v(vPP + 2, 2)}, {v(vPP + 2, 2)}, {v(vPP + 18, 2)}")
        A(f"v_add_f32 {v(vGP)}, {v(vGP)}, {v(vGP + 4)}")
        A(f"v_cvt_pk_bf16_f32 {v(vPar)}, {v(vPP)}, {v(vPP + 1)}")
        A(f"v_cvt_pk_bf16_f32 {v(vPar + 2)}, {v(vPP + 2)}, {v(vPP + 3)}")
        A(f"v_cvt_pk_bf16_f32 {v(vPar + 4)}, {v(vGP)}, {v(vGP)}")
        A(f"v_and_b32 {v(vPar + 1)}, {s(S_MASKHI)}, {v(vPar)}")
        A(f"v_lshlrev_b32 {v(vPar)}, 16, {v(vPar)}")
        A(f"v_and_b32 {v(vPar + 3)}, {s(S_MASKHI)}, {v(vPar + 2)}")
        A(f"v_lshlrev_b32 {v(vPar + 2)}, 16, {v(vPar + 2)}")
        A(f"v_and_b32 {v(vPar + 4)}, {s(S_MASKHI)}, {v(vPar + 4)}")
        A(f"v_add_f32 {v(vPar)}, 1.0, {v(vPar)}")
        A(f"v_add_f32 {v(vPar + 1)}, 1.0, {v(vPar + 1)}")
        A(f"v_cvt_pk_bf16_f32 {v(vPar)}, {v(vPar)}, {v(vPar + 1)}")
        A(f"v_and_b32 {v(vPar + 1)}, {s(S_MASKHI)}, {v(vPar)}")
        A(f"v_lshlrev_b32 {v(vPar)}, 16, {v(vPar)}")
        A(f"s_mov_b32 {s(t2)}, 0x{f32bits(LOG2E):08x}")
        A(f"v_lshlrev_b32 {v(vx)}, 4, v0")
        A(f"v_add_u32 {v(vx)}, {L_PAR}, {v(vx)}")
        A(f"v_lshlrev_b32 {v(vy)}, 2, v1")
        A(f"v_add_u32 {v(vy)}, {L_GB}, {v(vy)}")
        for r_ in range(vPar, vPar + 4):
            A(f"v_mul_f32 {v(r_)}, {s(t2)}, {v(r_)}")
        A(f"ds_write_b128 {v(vx)}, {v(vPar, 4)}")
        A(f"ds_write_b32 {v(vy)}, {v(vPar + 4)}")
        self.poll1_check(vPW, vPR)
        self.bg_emit(self.n_burst_t2)
        self.stamp(9)

    def phase_b(self):
        A = self.A
        T = S_T
        t0, t1, t2 = T, T + 1, T + 2
        vPa, vPt = 2, 4
        A(f"v_min_u32 {v(vPa)}, 55, v1")
        A(f"s_mul_i32 {s(t0)}, {s(S_WV)}, 56")
        A(f"v_add_u32 {v(vPa)}, {s(t0)}, {v(vPa)}")
        A(f"v_lshlrev_b32 {v(vPa)}, 7, {v(vPa)}")
        A(f"v_add_u32 {v(vPa)}, {FL + F2 * 128}, {v(vPa)}")
        self.poll(vPa, vPt)
        A.barrier()
        self.stamp(10)
        A(f"s_lshr_b32 {s(t0)}, {s(S_WV)}, 1")
        A(f"s_lshl_b32 {s(t0)}, {s(t0)}, 10")
        A(f"v_add_u32 v{V_W2O[0]}, {s(t0)}, v{V_L16}")
        A(f"s_sub_u32 {s(t0)}, 1024, {s(t0)}")
        A(f"v_add_u32 v{V_W2O[1]}, {s(t0)}, v{V_L16}")
        vL16 = 4
        A(f"v_lshlrev_b32 {v(vL16)}, 4, v1")
        A(f"s_mul_i32 {s(t1)}, {s(S_WV)}, 14336")
        A(f"s_mul_i32 {s(t0)}, {s(S_RB)}, 57344")
        A(f"s_add_u32 {s(t0)}, {s(t0)}, {s(t1)}")
        A(f"s_add_u32 {s(t0)}, {s(t0)}, {X1P}")
        A(f"s_add_u32 {s(t1)}, {s(t1)}, {L_XD}")
        A(f"s_mov_b32 m0, {s(t1)}")
        for i in range(14):
            if i and i % 4 == 0:
                A(f"s_add_u32 {s(t0)}, {s(t0)}, 4096")
                A(f"s_add_u32 m0, m0, 4096")
            A.dma(f"buffer_load_dwordx4 {v(vL16)}, {s(R_WS, 4)}, {s(t0)} offen offset:{1024 * (i % 4)} sc1 lds", f"x{i}")
        skip = self.lab("ep")
        A(f"s_cmp_lg_u32 {s(S_CP)}, 0")
        A(f"s_cbranch_scc1 {skip}")
        A.cond_begin()
        A(f"s_mov_b32 {s(t0)}, 0")
        self.flag_store(t0)
        A.cond_end()
        A.label(skip)
        if self.o.get("pretouch", 0):
            A(f"s_mul_i32 {s(t0)}, {s(S_RB)}, 112")
            A(f"s_lshl_b32 {s(t2)}, {s(S_J)}, 4")
            A(f"s_add_u32 {s(t0)}, {s(t0)}, {s(t2)}")
            A(f"s_lshl_b32 {s(t2)}, {s(S_WV)}, 2")
            A(f"s_add_u32 {s(t0)}, {s(t0)}, {s(t2)}")
            A(f"s_lshl_b32 {s(t0)}, {s(t0)}, 11")
            A(f"s_add_u32 {s(t0)}, {s(t0)}, {HF}")
            A(f"v_lshlrev_b32 v6, 7, v1")
            A(f"buffer_load_dword v252, v6, {s(R_WS, 4)}, {s(t0)} offen")
        X = 88
        vXR = 5
        A(f"v_lshlrev_b32 {v(vXR)}, 2, v1")
        A(f"v_add_u32 {v(vXR)}, {s(t1)}, {v(vXR)}")

        XR = 72

        def ldX(g):
            A.need(f"x{g}")
            r = XR + 4 * (g % 4)
            A(f"ds_read2st64_b32 {v(r, 2)}, {v(vXR)} offset0:{4 * g} offset1:{4 * g + 1}")
            A(f"ds_read2st64_b32 {v(r + 2, 2)}, {v(vXR)} offset0:{4 * g + 2} offset1:{4 * g + 3}")

        vS = 8
        for g in range(3):
            ldX(g)
        self.stamp(27)
        for g in range(14):
            src = XR + 4 * (g % 4)
            A.await_regs(v(src, 4))
            if g + 3 < 14:
                ldX(g + 3)
            for k in range(4):
                e = 4 * g + k
                r = X + 2 * e
                A(f"v_lshlrev_b32 {v(r)}, 16, {v(src + k)}")
                A(f"v_and_b32 {v(r + 1)}, {s(S_MASKHI)}, {v(src + k)}")
            for k in range(4):
                e = 4 * g + k
                r = X + 2 * e
                s1, s2 = vS + 2 * (e & 1), vS + 4 + 2 * (e & 1)
                if e < 2:
                    A(f"v_mov_b32 {v(s1)}, {v(r)}")
                    A(f"v_mov_b32 {v(s1 + 1)}, {v(r + 1)}")
                    A(f"v_pk_mul_f32 {v(s2, 2)}, {v(r, 2)}, {v(r, 2)}")
                else:
                    A(f"v_pk_add_f32 {v(s1, 2)}, {v(s1, 2)}, {v(r, 2)}")
                    A(f"v_pk_fma_f32 {v(s2, 2)}, {v(r, 2)}, {v(r, 2)}, {v(s2, 2)}")
            if g >= 14 - self.o.get("n_bstat", 11):
                self.bg_emit(1)
        A(f"v_pk_add_f32 {v(vS, 2)}, {v(vS, 2)}, {v(vS + 2, 2)}")
        A(f"v_pk_add_f32 {v(vS + 4, 2)}, {v(vS + 4, 2)}, {v(vS + 6, 2)}")
        A(f"v_add_f32 {v(vS)}, {v(vS)}, {v(vS + 1)}")
        A(f"v_add_f32 {v(vS + 1)}, {v(vS + 4)}, {v(vS + 5)}")
        vSW = 5
        A(f"v_lshlrev_b32 {v(vSW)}, 3, v1")
        A(f"v_add_u32 {v(vSW)}, {L_STAT}, {v(vSW)}")
        A(f"s_lshl_b32 {s(t0)}, {s(S_WV)}, 9")
        A(f"v_add_u32 v6, {s(t0)}, {v(vSW)}")
        A(f"ds_write_b64 v6, {v(vS, 2)}")
        self.stamp(28)
        vPb = 6
        vHW = 7
        A(f"v_lshrrev_b32 v22, 5, v1")
        A(f"v_lshlrev_b32 {v(vHW)}, 10, v22")
        A(f"v_and_b32 v22, 31, v1")
        A(f"v_lshl_add_u32 {v(vHW)}, v22, 4, {v(vHW)}")
        A(f"s_mul_i32 {s(t0)}, {s(S_WV)}, {7 * 2048}")
        A(f"v_add_u32 {v(vHW)}, {s(t0)}, {v(vHW)}")
        A(f"s_mul_i32 {s(t0)}, {s(S_WV)}, 896")
        A(f"s_add_u32 {s(t0)}, {s(t0)}, {L_PAR}")
        A.barrier()
        for w in range(4):
            A(f"ds_read_b64 {v(16 + 2 * w, 2)}, {v(vSW)} offset:{512 * w}")
        A(f"v_mov_b32 {v(vPb)}, {s(t0)}")
        def PRq(e):
            k = e % 12
            return 24 + 4 * k if k < 8 else 72 + 4 * (k - 8)
        OUT = 56

        def ldP(e):
            if self.o.get("b_nopar"):
                return
            A(f"ds_read_b128 {v(PRq(e), 4)}, {v(vPb)} offset:{16 * e}")

        for e in range(8):
            ldP(e)
        A("v_pk_add_f32 v[16:17], v[16:17], v[18:19]")
        A("v_pk_add_f32 v[20:21], v[20:21], v[22:23]")
        A("v_pk_add_f32 v[16:17], v[16:17], v[20:21]")
        A(f"s_mov_b32 {s(t0)}, 0x{f32bits(1.0 / 448):08x}")
        A(f"s_mov_b32 {s(t1)}, 0x{f32bits(1e-5):08x}")
        A(f"v_mul_f32 v16, {s(t0)}, v16")
        A(f"v_mul_f32 v17, {s(t0)}, v17")
        A("v_fma_f32 v17, -v16, v16, v17")
        A("v_max_f32 v17, 0, v17")
        A(f"v_add_f32 v17, {s(t1)}, v17")
        vR, vM = 18, 20
        A(f"v_rsq_f32 {v(vR)}, v17")
        A(f"v_mul_f32 {v(vM)}, v16, {v(vR)}")
        pass
        for e0 in range(0, 56, 4):
            A.await_regs(*[v(PRq(e0 + k), 4) for k in range(4)])
            for k in range(8, 12):
                if e0 + k < 56:
                    ldP(e0 + k)
            for e in range(e0, e0 + 4):
                r = X + 2 * e
                A(f"v_pk_fma_f32 {v(r, 2)}, {v(r, 2)}, {v(vR, 2)}, {v(vM, 2)} op_sel_hi:[1,0,0] neg_lo:[0,0,1] neg_hi:[0,0,1]")
            for e in range(e0, e0 + 4):
                r = X + 2 * e
                p = PRq(e)
                A(f"v_pk_fma_f32 {v(r, 2)}, {v(r, 2)}, {v(p, 2)}, {v(p + 2, 2)}")
            sp, k0 = divmod(e0, 8)
            o = OUT + 8 * (sp & 1)
            for e in range(e0, e0 + 4):
                r = X + 2 * e
                A(f"v_cvt_pk_bf16_f32 {v(o + e % 8)}, {v(r)}, {v(r + 1)}")
            if not self.o.get("b_nowr"):
                A(f"ds_write_b128 {v(vHW)}, {v(o + k0, 4)} offset:{L_H2 + 2048 * sp + (512 if k0 else 0)}")
            nbn = self.o.get("n_bnorm", 27)
            g_ = e0 // 4
            self.bg_emit(nbn * (g_ + 1) // 14 - nbn * g_ // 14)
        while self.bg_left("w1") > 0:
            self.bg_emit(1)
        A.barrier()
        self.stamp(11)

    def w2reg(self, f):
        if f < 41:
            return v(88 + 4 * f, 4)
        if f < 49:
            return a(224 + 4 * (f - 41), 4)
        return a(4 * (f - 49), 4)

    def bg_setup(self):
        A = self.A
        t0, t1 = S_T, S_T + 1
        A(f"s_lshl_b32 {s(t0)}, {s(S_J)}, 3")
        A(f"s_lshl_b32 {s(t1)}, {s(S_WV)}, 1")
        A(f"s_add_u32 {s(t0)}, {s(t0)}, {s(t1)}")
        A(f"s_mul_i32 {s(S_W1B)}, {s(t0)}, {28 * 1024}")
        A(f"s_add_u32 {s(S_W1B)}, {s(S_W1B)}, {W1F}")
        A(f"s_lshl_b32 {s(t0)}, {s(S_J)}, 2")
        A(f"s_add_u32 {s(t0)}, {s(t0)}, {s(S_WV)}")
        A(f"s_mul_i32 {s(S_W2B)}, {s(t0)}, {56 * 1024}")
        A(f"s_add_u32 {s(S_W2B)}, {s(S_W2B)}, {W2F}")
        A(f"v_lshlrev_b32 v{V_L16}, 4, v1")
        self.bgq = [("w1", f) for f in range(56)] + [("w2", f) for f in self.w2_order]
        self.bg_cur = {"w1": 0, "w2": 0}

    def bg_emit(self, n=1):
        A = self.A
        if self.o["nobg"]:
            del self.bgq[:n]
            return
        for _ in range(n):
            if not self.bgq:
                return
            kind, f = self.bgq.pop(0)
            base = S_W1B if kind == "w1" else S_W2B
            blk = f // 4
            if blk != self.bg_cur[kind]:
                d = (blk - self.bg_cur[kind]) * 4096
                A(f"s_add_u32 {s(base)}, {s(base)}, {d}" if d > 0 else f"s_sub_u32 {s(base)}, {s(base)}, {-d}")
                self.bg_cur[kind] = blk
            if kind == "w1":
                A(f"buffer_load_dwordx4 {a(4 * f, 4)}, v{V_L16}, {s(R_WS, 4)}, {s(base)} offen offset:{1024 * (f % 4)} sc1")
            else:
                A(f"buffer_load_dwordx4 {self.w2reg(f)}, v{V_W2O[f & 1]}, {s(R_WS, 4)}, {s(base)} offen offset:{2048 * ((f % 4) >> 1)} sc1")

    def bg_left(self, kind):
        return sum(1 for k, _ in self.bgq if k == kind)

    def phase_c(self):
        A = self.A
        t0 = S_T
        if self.o.get("force_global", 1):
            self.phase_c_body(" sc1")
            return
        glob, join = self.lab("cglob"), self.lab("cjoin")
        A(f"s_cmp_eq_u32 {s(S_LOCAL)}, 0")
        A(f"s_cbranch_scc1 {glob}")
        st, q, cur = A.snapshot(), list(self.bgq), dict(self.bg_cur)
        self.phase_c_body("")
        A(f"s_branch {join}")
        A.restore(st)
        self.bgq, self.bg_cur = q, cur
        A.label(glob)
        self.phase_c_body(" sc1")
        A.label(join)

    def phase_c_body(self, sc):
        A = self.A
        T = S_T
        t0, t1 = T, T + 1
        sH, sH2 = S_OFF + 5, S_OFF + 7
        A(f"s_mul_i32 {s(t0)}, {s(S_RB)}, 112")
        A(f"s_lshl_b32 {s(t1)}, {s(S_J)}, 4")
        A(f"s_add_u32 {s(t0)}, {s(t0)}, {s(t1)}")
        A(f"s_lshl_b32 {s(t1)}, {s(S_WV)}, 2")
        A(f"s_add_u32 {s(t0)}, {s(t0)}, {s(t1)}")
        A(f"s_lshl_b32 {s(sH)}, {s(t0)}, 11")
        A(f"s_add_u32 {s(sH)}, {s(sH)}, {HF}")
        A(f"s_add_u32 {s(sH2)}, {s(sH)}, 4096")
        sC = S_OFF + 6
        A(f"s_mov_b32 {s(sC)}, 0x{f32bits(LOG2E):08x}")
        ACC = [24, 40]
        NR = 6
        RING = 4
        TMP = 68
        OUT = 76

        def ring(i):
            k = i % NR
            return RING + 4 * k if k < 5 else 56

        def store(g, off):
            base, o = (sH2, off - 4096) if off >= 4096 else (sH, off)
            return f"buffer_store_dwordx4 {v(OUT + 4 * g, 4)}, v{V_L16}, {s(R_WS, 4)}, {s(base)} offen offset:{o}{sc}"

        def silu_ops(tile):
            ft, th = divmod(tile, 2)
            acc = ACC[tile & 1]
            seq = []
            lag = (0, 2, 3, 5)
            for step in range(16 + lag[-1] + 2):
                for k in range(4):
                    i = step - lag[k]
                    if 0 <= i < 16:
                        x, tmp = acc + i, TMP + (i % 8)
                        if k == 0:
                            seq.append((8, f"v_exp_f32 {v(tmp)}, -{v(x)}"))
                        elif k == 1:
                            seq.append((4, f"v_fma_f32 {v(tmp)}, {v(tmp)}, {s(sC)}, {s(sC)}"))
                        elif k == 2:
                            seq.append((8, f"v_rcp_f32 {v(tmp)}, {v(tmp)}"))
                        else:
                            seq.append((4, f"v_mul_f32 {v(x)}, {v(x)}, {v(tmp)}"))
                i = step - lag[-1] - 1
                if 0 <= i < 16 and i % 2 == 1:
                    g, kk = divmod(i // 2, 4)
                    seq.append((4, f"v_cvt_pk_bf16_f32 {v(OUT + 4 * g + kk)}, {v(acc + i - 1)}, {v(acc + i)}"))
                    if kk == 3:
                        off = (2 * (2 * ft + g) + th) * 1024
                        seq.append((4, store(g, off)))
            return seq

        def ldH(idx):
            tile, st = divmod(idx, 28)
            th = tile & 1
            A(f"ds_read_b128 {v(ring(idx), 4)}, v{V_L16} offset:{L_H2 + 2048 * st + 1024 * th}")

        for i_ in range(NR - 2):
            ldH(i_)
        pend = []
        nbg = self.n_bg_c
        done_bg = 0
        CAP = self.o.get("c_cap", 26)
        for tile in range(4):
            ft = tile >> 1
            acc = ACC[tile & 1]
            for st in range(28):
                idx = tile * 28 + st
                fixed = 0
                if idx % 2 == 0:
                    A.await_regs(*[v(ring(i_), 4) for i_ in (idx, idx + 1) if i_ < 112])
                c = "0" if st == 0 else v(acc, 16)
                A(f"v_mfma_f32_32x32x16_bf16 {v(acc, 16)}, {a(4 * (28 * ft + st), 4)}, {v(ring(idx), 4)}, {c}")
                if idx % 2 == 0:
                    for i_ in (idx + NR - 2, idx + NR - 1):
                        if i_ < 112:
                            ldH(i_)
                            fixed += 4
                else:
                    fixed += 4
                    while done_bg < nbg * (idx + 1) // 112 and self.bgq:
                        assert self.bgq[0][0] == "w1" or self.bgq[0][1] < 49 or idx >= 36
                        self.bg_emit(1)
                        done_bg += 1
                        fixed += 5
                if pend and st >= 2:
                    left_slots = 28 - st
                    need = sum(c_ for c_, _ in pend) - (left_slots - 1) * (CAP - 6)
                    spent = 0
                    while pend and (spent + fixed + pend[0][0] <= CAP or spent < need):
                        cst, ins = pend.pop(0)
                        A(ins)
                        spent += cst
            for cst, ins in pend:
                A(ins)
            pend = silu_ops(tile)
        for _, ins in pend:
            A(ins)
        self.stamp(12)
        A.wait_vm(0)
        A.barrier()
        A(f"s_lshl_b32 {s(t0)}, {s(S_RB)}, 3")
        A(f"s_add_u32 {s(t0)}, {s(t0)}, {s(S_J)}")
        A(f"s_lshl_b32 {s(t0)}, {s(t0)}, 7")
        A(f"s_add_u32 {s(t0)}, {s(t0)}, {FL + F3 * 128}")
        self.flag_store(t0, sc=sc)
        self.bg_emit(len(self.bgq))
        self.stamp(13)

    def phase_d(self):
        A = self.A
        T = S_T
        t0, t1 = T, T + 1
        vPa, vPt = 2, 4
        A(f"v_min_u32 {v(vPa)}, 6, v1")
        A(f"s_lshl_b32 {s(t0)}, {s(S_RB)}, 3")
        A(f"v_add_u32 {v(vPa)}, {s(t0)}, {v(vPa)}")
        A(f"v_lshlrev_b32 {v(vPa)}, 7, {v(vPa)}")
        A(f"v_add_u32 {v(vPa)}, {FL + F3 * 128}, {v(vPa)}")
        self.poll(vPa, vPt)
        self.stamp(14)
        sH = S_OFF
        A(f"s_mul_i32 {s(t0)}, {s(S_RB)}, 112")
        A(f"s_mul_i32 {s(t1)}, {s(S_WV)}, 28")
        A(f"s_add_u32 {s(t0)}, {s(t0)}, {s(t1)}")
        A(f"s_lshl_b32 {s(sH)}, {s(t0)}, 11")
        A(f"s_add_u32 {s(sH)}, {s(sH)}, {HF}")
        NSLOT = 49
        HB = 28
        hl = {0: " sc1", 1: "", 2: " nt", 3: " sc0"}[self.o.get("hload", 0)]
        vH = 4
        A(f"s_and_b32 {s(t0)}, {s(S_WV)}, 1")
        A(f"s_lshl_b32 {s(t0)}, {s(t0)}, 10")
        A(f"v_add_u32 {v(vH)}, {s(t0)}, v{V_L16}")
        A(f"s_sub_u32 {s(t0)}, 1024, {s(t0)}")
        A(f"v_add_u32 {v(vH + 1)}, {s(t0)}, v{V_L16}")

        def hreg(i):
            return a(HB + 4 * (i % NSLOT), 4)

        def ldH(i):
            if i % 4 == 0 and i:
                A(f"s_add_u32 {s(sH)}, {s(sH)}, 4096")
            A(f"buffer_load_dwordx4 {hreg(i)}, {v(vH + (i & 1))}, {s(R_WS, 4)}, {s(sH)} offen offset:{2048 * ((i % 4) >> 1)}{hl}")

        PRE = self.o.get("d_pre", 12)
        for i in range(PRE):
            ldH(i)
        vWr, vRd, vG, vX, vO, vt = 8, 11, 12, 13, 14, 15
        for x in range(1, 4):
            A(f"s_xor_b32 {s(t0)}, {s(S_WV)}, {x}")
            A(f"s_mul_i32 {s(t0)}, {s(t0)}, 12288")
            A(f"s_add_u32 {s(t0)}, {s(t0)}, {L_RED2 + (x - 1) * 4096}")
            A(f"v_add_u32 {v(vWr + x - 1)}, {s(t0)}, v{V_L16}")
        A(f"s_mul_i32 {s(t0)}, {s(S_WV)}, 12288")
        A(f"s_add_u32 {s(t0)}, {s(t0)}, {L_RED2}")
        A(f"v_add_u32 {v(vRd)}, {s(t0)}, v{V_L16}")
        A(f"s_lshr_b32 {s(t0)}, {s(S_WV)}, 1")
        A(f"s_and_b32 {s(t1)}, {s(S_WV)}, 1")
        A(f"v_lshrrev_b32 {v(vt)}, 5, v1")
        t2, t3 = T + 2, T + 3
        A(f"s_lshl_b32 {s(t2)}, {s(t0)}, 7")
        A(f"s_add_u32 {s(t2)}, {s(t2)}, {L_GB}")
        A(f"v_lshl_add_u32 {v(vG)}, {v(vt)}, 4, {s(t2)}")
        A(f"s_lshl_b32 {s(t2)}, {s(S_J)}, 13")
        A(f"s_lshl_b32 {s(t3)}, {s(t0)}, 12")
        A(f"s_add_u32 {s(t2)}, {s(t2)}, {s(t3)}")
        A(f"s_lshl_b32 {s(t3)}, {s(t1)}, 7")
        A(f"s_add_u32 {s(t2)}, {s(t2)}, {s(t3)}")
        A(f"s_add_u32 {s(t2)}, {s(t2)}, {L_XD}")
        A(f"v_lshl_add_u32 {v(vX)}, {v(vt)}, 9, {s(t2)}")
        A(f"v_and_b32 {v(vO)}, 31, v1")
        A(f"v_lshl_add_u32 {v(vX)}, {v(vO)}, 2, {v(vX)}")
        A(f"s_lshl_b32 {s(t2)}, {s(S_RB)}, 6")
        A(f"s_lshl_b32 {s(t3)}, {s(t1)}, 5")
        A(f"s_add_u32 {s(t2)}, {s(t2)}, {s(t3)}")
        A(f"v_add_u32 {v(vO)}, {s(t2)}, {v(vO)}")
        A(f"v_mul_u32_u24 {v(vO)}, 896, {v(vO)}")
        A(f"s_lshl_b32 {s(t2)}, {s(S_J)}, 7")
        A(f"s_lshl_b32 {s(t3)}, {s(t0)}, 6")
        A(f"s_add_u32 {s(t2)}, {s(t2)}, {s(t3)}")
        A(f"v_lshl_add_u32 {v(vt)}, {v(vt)}, 4, {s(t2)}")
        A(f"v_add_u32 {v(vO)}, {v(vO)}, {v(vt)}")
        self.srd(R_A, P_OUT, 2048 * 896)
        ACC = 24
        nxt = PRE
        LAG = self.o.get("d_lag", 6)
        late = []
        for st in range(28):
            for _ in range(2):
                if nxt < 56:
                    ldH(nxt)
                    nxt += 1
            for e1 in range(2):
                i = 2 * st + e1
                for e in range(2):
                    acc = ACC + 16 * (2 * e + e1)
                    c = "0" if st == 0 else v(acc, 16)
                    if e == 0 and e1 == 0 and st >= 28 - LAG:
                        late.append(f"v_mfma_f32_32x32x16_bf16 {v(acc, 16)}, {self.w2reg(2 * st + e)}, {hreg(i)}, {c}")
                        continue
                    if self.o.get("d_nomfma"):
                        A.await_regs(hreg(i))
                        continue
                    A(f"v_mfma_f32_32x32x16_bf16 {v(acc, 16)}, {self.w2reg(2 * st + e)}, {hreg(i)}, {c}")
        self.stamp(15)
        GB, XP = 16, 88
        GB = 104
        X1 = 120
        PT = 144
        for g in range(4):
            A(f"ds_read_b128 {v(GB + 4 * g, 4)}, {v(vG)} offset:{32 * g}")
            A(f"ds_read2st64_b32 {v(X1 + 2 * g, 2)}, {v(vX)} offset0:{4 * g} offset1:{4 * g + 1}")
        for x in range(1, 4):
            for g in range(4):
                if late and g % 2 == 0:
                    A(late.pop(0))
                A(f"ds_write_b128 {v(vWr + x - 1)}, {v(ACC + 16 * x + 4 * g, 4)} offset:{1024 * g}")
        for ins in late:
            A(ins)
        for k in range(8):
            A(f"v_lshlrev_b32 {v(128 + 2 * k)}, 16, {v(X1 + k)}")
            A(f"v_and_b32 {v(129 + 2 * k)}, {s(S_MASKHI)}, {v(X1 + k)}")
        self.stamp(17)
        A.barrier()
        self.stamp(18)
        for k in range(3):
            for g in range(4):
                A(f"ds_read_b128 {v(PT + 16 * k + 4 * g, 4)}, {v(vRd)} offset:{4096 * k + 1024 * g}")
        for k in range(3):
            A.await_regs(v(PT + 16 * k, 16))
            for i in range(8):
                A(f"v_pk_add_f32 {v(ACC + 2 * i, 2)}, {v(ACC + 2 * i, 2)}, {v(PT + 16 * k + 2 * i, 2)}")
        for i in range(8):
            A(f"v_pk_fma_f32 {v(ACC + 2 * i, 2)}, {v(ACC + 2 * i, 2)}, {v(GB + 2 * i, 2)}, {v(128 + 2 * i, 2)}")
        OUT = 192
        for i in range(8):
            A(f"v_cvt_pk_bf16_f32 {v(OUT + i)}, {v(ACC + 2 * i)}, {v(ACC + 2 * i + 1)}")
        for k in (0, 2):
            for i in range(2):
                A(f"v_permlane32_swap_b32 {v(OUT + 2 * k + i)}, {v(OUT + 2 * k + 2 + i)}")
        for k in (0, 2):
            osc = {0: "", 1: " sc1", 2: " nt", 3: " sc0 sc1"}[self.o.get("out_sc", 0)]
            A(f"buffer_store_dwordx4 {v(OUT + 2 * k, 4)}, {v(vO)}, {s(R_A, 4)}, 0 offen offset:{16 * k}{osc}")
        self.stamp(16)

    def helper(self):
        A = self.A
        T = S_T
        t0, t1, t2 = T + 4, T + 5, T + 6
        sH = S_RB
        A.label("L_helper")
        A(f"s_lshl_b32 {s(t0)}, {s(T + 1)}, 3")
        A(f"s_add_u32 {s(sH)}, {s(t0)}, {s(T)}")
        A(f"s_cmp_ge_u32 {s(sH)}, 21")
        A("s_cbranch_scc1 L_helper_flag")
        st_h = A.snapshot()
        self.srd(R_A, P_WM, 448 * 5376)
        self.srd(R_B, P_C, 896)
        A("v_lshrrev_b32 v2, 4, v0")
        A("v_and_b32 v3, 15, v0")
        A("v_mul_u32_u24 v4, 5376, v2")
        A("v_lshl_add_u32 v4, v3, 4, v4")
        A(f"s_lshl_b32 {s(t0)}, {s(sH)}, 8")
        A(f"v_add_u32 v4, {s(t0)}, v4")
        A("v_lshlrev_b32 v5, 2, v0")
        A(f"buffer_load_dword v6, v5, {s(R_B, 4)}, 0 offen")
        W = 16
        A(f"s_mov_b32 {s(t0)}, 0")
        for i in range(28):
            A(f"buffer_load_dwordx4 {v(W + 4 * i, 4)}, v4, {s(R_A, 4)}, {s(t0)} offen")
            if i < 27:
                A(f"s_add_u32 {s(t0)}, {s(t0)}, {16 * 5376}")
        A(f"s_mov_b32 {s(t1)}, 0x{f32bits(-1.4426950408889634):08x}")
        A("v_lshlrev_b32 v8, 16, v6")
        A(f"v_and_b32 v9, {s(S_MASKHI)}, v6")
        for r in (8, 9):
            A(f"v_mul_f32 {v(r + 2)}, {s(t1)}, {v(r)}")
        for r in (8, 9):
            A(f"v_exp_f32 {v(r + 2)}, {v(r + 2)}")
        for r in (8, 9):
            A(f"v_add_f32 {v(r + 2)}, 1.0, {v(r + 2)}")
        for r in (8, 9):
            A(f"v_rcp_f32 {v(r + 2)}, {v(r + 2)}")
        for r in (8, 9):
            A(f"v_mul_f32 {v(r)}, {v(r)}, {v(r + 2)}")
        A("v_cvt_pk_bf16_f32 v6, v8, v9")
        A("v_lshlrev_b32 v8, 16, v6")
        A(f"v_and_b32 v9, {s(S_MASKHI)}, v6")
        A("v_lshlrev_b32 v7, 3, v0")
        A(f"ds_write_b64 v7, v[8:9] offset:{L_SC}")
        A.barrier()
        A("v_lshlrev_b32 v7, 2, v2")
        SC = 128
        for i in range(28):
            A(f"ds_read_b32 {v(SC + 2 * i)}, v7 offset:{L_SC + 64 * i}")
        AC = 192
        U = 200
        for i in range(28):
            for k in range(4):
                src = W + 4 * i + k
                u = U + 2 * k
                A(f"v_lshlrev_b32 {v(u)}, 16, {v(src)}")
                A(f"v_and_b32 {v(u + 1)}, {s(S_MASKHI)}, {v(src)}")
            for k in range(4):
                u = U + 2 * k
                if i == 0:
                    A(f"v_pk_mul_f32 {v(AC + 2 * k, 2)}, {v(u, 2)}, {v(SC + 2 * i, 2)} op_sel_hi:[1,0]")
                else:
                    A(f"v_pk_fma_f32 {v(AC + 2 * k, 2)}, {v(u, 2)}, {v(SC + 2 * i, 2)}, {v(AC + 2 * k, 2)} op_sel_hi:[1,0,1]")
        A("v_mul_u32_u24 v7, 528, v2")
        A("v_lshl_add_u32 v7, v3, 5, v7")
        A(f"ds_write_b128 v7, {v(AC, 4)} offset:{L_MR}")
        A(f"ds_write_b128 v7, {v(AC + 4, 4)} offset:{L_MR + 16}")
        A.barrier()
        A("v_and_b32 v8, 127, v0")
        A("v_lshlrev_b32 v7, 2, v8")
        for g in range(16):
            A(f"ds_read_b32 {v(16 + g)}, v7 offset:{L_MR + 528 * g}")
        for stp in (8, 4, 2, 1):
            for g in range(stp):
                A(f"v_add_f32 {v(16 + g)}, {v(16 + g)}, {v(16 + g + stp)}")
        A("v_cvt_pk_bf16_f32 v16, v16, v16")
        A(f"v_and_b32 v16, {s(S_MASKHI)}, v16")
        A("v_add_f32 v17, 1.0, v16")
        A("v_cvt_pk_bf16_f32 v17, v17, v17")
        A(f"v_and_b32 v17, {s(S_MASKHI)}, v17")
        A(f"s_lshl_b32 {s(t0)}, {s(sH)}, 7")
        A(f"v_add_u32 v8, {s(t0)}, v8")
        A("v_subrev_u32 v9, 448, v8")
        A("v_subrev_u32 v10, 1792, v8")
        A("v_min_u32 v9, v9, v10")
        A("v_mov_b32 v11, 448")
        A("v_cmp_lt_u32 vcc, v9, v11")
        A("s_nop 1")
        A("v_cndmask_b32 v16, v16, v17, vcc")
        A("v_lshlrev_b32 v8, 2, v8")
        A(f"s_mov_b32 {s(t0)}, {MODF}")
        skip = self.lab("ms")
        A(f"s_cmp_ge_u32 {s(S_WV)}, 2")
        A(f"s_cbranch_scc1 {skip}")
        A.cond_begin()
        A(f"buffer_store_dword v16, v8, {s(R_WS, 4)}, {s(t0)} offen sc1")
        A.cond_end()
        A.label(skip)
        A.wait_vm(0)
        A.barrier()
        A.label("L_helper_flag")
        A.wait_lgkm0()
        A(f"s_add_u32 {s(S_NONCE)}, {s(S_NONCE)}, 1")
        A(f"s_lshl_b32 {s(t0)}, {s(sH)}, 7")
        A(f"s_add_u32 {s(t0)}, {s(t0)}, {FL + FM * 128}")
        self.flag_store(t0)
        self.stamp(3)
        if self.o.get("helper_warm", 0):
            A("v_min_u32 v2, 55, v1")
            A(f"s_mul_i32 {s(t0)}, {s(S_WV)}, 56")
            A(f"v_add_u32 v2, {s(t0)}, v2")
            A("v_lshlrev_b32 v2, 7, v2")
            A(f"v_add_u32 v2, {FL + self.o.get('warm_flag', F2) * 128}, v2")
            A(f"s_lshr_b32 {s(t0)}, s2, 3")
            A(f"s_sub_u32 {s(t0)}, {s(t0)}, 28")
            A(f"s_lshl_b32 {s(t0)}, {s(t0)}, 2")
            A(f"s_add_u32 {s(t0)}, {s(t0)}, {s(S_WV)}")
            A("v_lshlrev_b32 v4, 7, v1")
            A(f"s_and_b32 {s(t1)}, s2, 7")
            A(f"s_mul_i32 {s(t1)}, {s(t1)}, {4 * 229376}")
            A(f"s_mul_i32 {s(t2)}, {s(t0)}, {448 * 128}")
            A(f"s_add_u32 {s(t1)}, {s(t1)}, {s(t2)}")
            A(f"s_add_u32 {s(t1)}, {s(t1)}, {HF}")
            self.poll(2, 3)
            for k in range(7):
                A(f"buffer_load_dword {v(32 + k)}, v4, {s(R_WS, 4)}, {s(t1)} offen")
                A(f"s_add_u32 {s(t1)}, {s(t1)}, {64 * 128}")
            A.wait_vm(0)
        self.stamp(4)
        self.stamp_flush()
        A("s_endpgm")

    def build(self):
        A = self.A
        self.prologue()
        if self.stamps:
            A("v_mov_b32 v255, 0")
            A("v_writelane_b32 v255, s76, 31")
        st = A.snapshot()
        self.stamp(0)
        self.phase_p()
        stages = [("p", None), ("a", self.phase_a), ("b", self.phase_b), ("c", self.phase_c), ("d", self.phase_d)]
        done = self.stop == "p"
        for name, fn in stages[1:]:
            if done:
                break
            fn()
            done = self.stop == name
        self.stamp_flush()
        A("s_endpgm")
        A.label("L_exit")
        A("s_endpgm")
        A.label("L_code_end")
        return A.text()


def f32bits(x):
    import struct
    return struct.unpack("<I", struct.pack("<f", x))[0]


HEADER = """; Fused adaLN + H3 long convolution + SiLU MLP, one persistent launch (generated by gen/gen.py).
; Kernarg: q k v shift_k ssm_k ssm_D B_x w1 w2 c w_mod out debug ws (8-byte pointers).
; @launch grid=(224,1,1) block=(256,1,1) lds={lds}
.amdgcn_target "amdgcn-amd-amdhsa--gfx950"
.text
.globl {name}
.p2align 8
.type {name},@function
{name}:
"""

FOOTER = """.section .rodata,"a"
.p2align 6
.amdhsa_kernel {name}
  .amdhsa_next_free_vgpr 512
  .amdhsa_next_free_sgpr 102
  .amdhsa_accum_offset 256
  .amdhsa_group_segment_fixed_size 0
  .amdhsa_kernarg_size 112
  .amdhsa_user_sgpr_count 2
  .amdhsa_user_sgpr_kernarg_segment_ptr 1
  .amdhsa_system_sgpr_workgroup_id_x 1
  .amdhsa_float_denorm_mode_32 3
.end_amdhsa_kernel
"""


def main():
    ap = argparse.ArgumentParser()
    ap.add_argument("--stop", default=None)
    ap.add_argument("--stamps", action="store_true")
    ap.add_argument("-o", default="/dev/stdout")
    ap.add_argument("--opt", action="append", default=[])
    args = ap.parse_args()
    opts = {}
    for kv in args.opt:
        k, val = kv.split("=")
        opts[k] = int(val)
    g = Gen(stop=args.stop, stamps=args.stamps, opts=opts)
    body = g.build()
    txt = HEADER.format(name=NAME, lds=LDS_END) + body + FOOTER.format(name=NAME)
    with open(args.o, "w") as f:
        f.write(txt)
    print(f"instructions: {g.A.n_ins}, auto nops: {g.A.n_nops}, lds {LDS_END}", file=sys.stderr)


if __name__ == "__main__":
    main()
```

```python
import sys
import argparse
from asmdsl import Asm, v, a, s

NAME = "adaLN_cond__ssm_conv_h3__dense_activation_silu__prompt_kernel"

FL = 4096
F1, FQ, FM, F2, F3 = 0, 256, 512, 544, 800
STAMP = 0x30000
T2D = 224 * 8192
KVP = 0x40000
QP = KVP + T2D
STR = QP + T2D
STM = STR + 8192
X1P = STR + 16384
W1F = X1P + T2D
W2F = W1F + 1605632
MODF = W2F + 1605632
MPL = 2688 * 4
HF = MODF + 65536
WS_END = HF + 32 * 112 * 2048
assert WS_END < (1 << 28)

L_H2 = 0
L_TPK = 0
L_TPQ = 8704
L_TPN = 17408
L_WB = 26112
L_UR = 43520
assert L_UR + 9216 <= 57344
L_KC = 57344
CS = 4160
L_RED = L_KC + 8 * CS
L_RED2 = 0
L_XD = 69632
L_PAR = L_RED + 40960
L_STAT = L_PAR + 4096
L_GB = L_STAT + 2048
LDS_END = L_GB + 256
assert L_XD + 57344 <= L_PAR
assert LDS_END <= 163840
L_SC = 0
L_MR = 2048

S_RB, S_J, S_WV, S_CP = 4, 5, 6, 7
P_Q, P_K, P_V, P_SH, P_SK, P_D, P_BX, P_W1, P_W2, P_C, P_WM, P_OUT, P_DBG, P_WS = range(8, 36, 2)
R_WS, R_A, R_B, R_C, R_D = 36, 40, 44, 48, 52
S_NONCE = 56
S_T = 57
S_M = 80
S_MASKHI = 80
S_PERM_LO = 81
S_PERM_HI = 82
S_OFF = 84
S_SPIN = 96
S_PC = 100
S_W1B, S_W2B = 78, 79
S_XCC, S_LOCAL = 83, 95
S_WI = 94
S_MW = 93
V_W2O = (2, 253)
V_L16 = 3
S_ST0 = 98

SRD3 = 0x00020000
LOG2E = 1.4426950408889634
SPIN_MAX = 1 << 17


class Rec:
    def __init__(self):
        self.items = []

    def __call__(self, text):
        self.items.append(text)

    def await_regs(self, *toks):
        self.items.append(("await", toks))

    def play(self, A, n):
        for _ in range(n):
            if not self.items:
                return
            it = self.items.pop(0)
            if isinstance(it, tuple):
                A.await_regs(*it[1])
            else:
                A(it)


class Gen:
    def __init__(self, stop=None, stamps=False, opts=None):
        self.o = dict(cring=3, repf=0, burst_before_flag=0, n_burst_t2=28, n_bg_c=36, bg_b=1, nobg=0)
        self.o.update(opts or {})
        self.A = Asm()
        self.stop = stop
        self.stamps = stamps
        self.nlab = 0
        self.nstamp = 0
        self.n_burst_t2 = self.o["n_burst_t2"]
        self.n_bg_c = self.o["n_bg_c"]
        self.w2_order = list(range(41, 49)) + list(range(28, 41)) + list(range(28)) + list(range(49, 56))

    def lab(self, base):
        self.nlab += 1
        return f"L_{base}_{self.nlab}"

    def srd(self, r, ptr, nbytes, add=None):
        A = self.A
        if add is None:
            A(f"s_mov_b32 {s(r)}, {s(ptr)}")
            A(f"s_mov_b32 {s(r + 1)}, {s(ptr + 1)}")
        else:
            A(f"s_add_u32 {s(r)}, {s(ptr)}, {add}")
            A(f"s_addc_u32 {s(r + 1)}, {s(ptr + 1)}, 0")
        A(f"s_mov_b32 {s(r + 2)}, {nbytes}")
        A(f"s_mov_b32 {s(r + 3)}, 0x{SRD3:08x}")

    def stamp(self, idx):
        if not self.stamps:
            return
        A = self.A
        A(f"s_memrealtime {s(S_ST0, 2)}")
        A.wait_lgkm0()
        A(f"v_writelane_b32 v255, {s(S_ST0)}, {idx}")
        if self.o.get("cyc"):
            A(f"s_memtime {s(S_ST0, 2)}")
            A.wait_lgkm0()
            A(f"v_writelane_b32 v255, {s(S_ST0)}, {32 + idx}")

    def echo(self):
        A = self.A
        ia, ib = self.o["echo_a"], self.o["echo_b"]
        skip, loop = self.lab("echo"), self.lab("echol")
        A("s_cmp_lg_u32 s2, 0")
        A(f"s_cbranch_scc1 {skip}")
        A(f"v_readlane_b32 {s(S_T)}, v255, {ia}")
        A(f"v_readlane_b32 {s(S_T + 1)}, v255, {ib}")
        A(f"s_memrealtime {s(S_ST0, 2)}")
        A.wait_lgkm0()
        A(f"s_sub_u32 {s(S_T)}, {s(S_T + 1)}, {s(S_T)}")
        A(f"s_mul_i32 {s(S_T)}, {s(S_T)}, {self.o.get('echo_mul', 1)}")
        A(f"s_add_u32 {s(S_T)}, {s(S_T)}, {s(S_ST0)}")
        A.label(loop)
        A(f"s_memrealtime {s(S_ST0, 2)}")
        A.wait_lgkm0()
        A(f"s_sub_u32 {s(S_T + 1)}, {s(S_ST0)}, {s(S_T)}")
        A(f"s_cmp_lt_i32 {s(S_T + 1)}, 0")
        A(f"s_cbranch_scc1 {loop}")
        A.label(skip)

    def stamp_flush(self):
        if not self.stamps:
            return
        A = self.A
        if self.o.get("echo_b"):
            self.echo()
            return
        if self.o.get("dbg"):
            skip = self.lab("dbg")
            A(f"s_cmp_lg_u32 {s(S_WV)}, 0")
            A(f"s_cbranch_scc1 {skip}")
            A("s_cmp_eq_u32 s2, 0")
            A(f"s_cselect_b32 {s(S_T)}, 0, 32")
            A(f"s_cselect_b32 {s(S_T + 1)}, 1, 0")
            A("s_cmp_eq_u32 s2, 223")
            A(f"s_cselect_b32 {s(S_T + 1)}, 1, {s(S_T + 1)}")
            A(f"s_cmp_eq_u32 {s(S_T + 1)}, 0")
            A(f"s_cbranch_scc1 {skip}")
            A.cond_begin()
            A(f"v_readlane_b32 {s(S_T + 2)}, v255, 31")
            self.srd(R_A, P_DBG, 256)
            for n_, idx in enumerate((3, 5, 8, 10, 11, 12, 15, 16)):
                A(f"v_readlane_b32 {s(S_T + 3)}, v255, {idx}")
                A(f"s_sub_u32 {s(S_T + 3)}, {s(S_T + 3)}, {s(S_T + 2)}")
                A(f"v_mov_b32 v250, {s(S_T + 3)}")
                A(f"s_add_u32 {s(S_T + 4)}, {s(S_T)}, {4 * n_}")
                A(f"v_mov_b32 v251, {s(S_T + 4)}")
                A("s_mov_b64 exec, 1")
                A(f"buffer_store_dword v250, v251, {s(R_A, 4)}, 0 offen")
                A("s_mov_b64 exec, -1")
            A.cond_end()
            A.label(skip)
            return
        skip = self.lab("sf")
        A(f"s_cmp_lg_u32 {s(S_WV)}, 0")
        A(f"s_cbranch_scc1 {skip}")
        A.cond_begin()
        A("v_lshlrev_b32 v254, 2, v1")
        A(f"s_lshl_b32 {s(S_SPIN + 1)}, s2, 8")
        A(f"s_add_u32 {s(S_SPIN + 1)}, {s(S_SPIN + 1)}, {STAMP}")
        A(f"buffer_store_dword v255, v254, {s(R_WS, 4)}, {s(S_SPIN + 1)} offen")
        A.cond_end()
        A.label(skip)

    def flag_store(self, soff_sgpr, vtmp=252, with_xcc=False, sc=" sc1"):
        A = self.A
        skip = self.lab("fl")
        A(f"s_cmp_lg_u32 {s(S_WV)}, 0")
        A(f"s_cbranch_scc1 {skip}")
        A.cond_begin()
        A(f"v_mov_b32 {v(vtmp)}, {s(S_NONCE)}")
        if with_xcc:
            A(f"v_mov_b32 {v(vtmp + 1)}, {s(S_XCC)}")
        A(f"v_mov_b32 {v(vtmp + 2)}, {s(soff_sgpr)}")
        A("s_mov_b64 exec, 1")
        if with_xcc:
            A(f"buffer_store_dwordx2 {v(vtmp, 2)}, {v(vtmp + 2)}, {s(R_WS, 4)}, 0 offen{sc}")
        else:
            A(f"buffer_store_dword {v(vtmp)}, {v(vtmp + 2)}, {s(R_WS, 4)}, 0 offen{sc}")
        A("s_mov_b64 exec, -1")
        A.cond_end()
        A.label(skip)

    def poll(self, vaddr, vtmp):
        A = self.A
        loop, done = self.lab("poll"), self.lab("polld")
        A(f"s_mov_b32 {s(S_SPIN)}, 0")
        A.label(loop)
        A(f"buffer_load_dword {v(vtmp)}, {v(vaddr)}, {s(R_WS, 4)}, 0 offen sc1")
        A.wait_vm(0)
        A(f"v_cmp_ne_u32 vcc, {s(S_NONCE)}, {v(vtmp)}")
        A(f"s_add_u32 {s(S_SPIN)}, {s(S_SPIN)}, 1")
        A("s_nop 3")
        A("s_cmp_eq_u64 vcc, 0")
        A(f"s_cbranch_scc1 {done}")
        A(f"s_cmp_lt_u32 {s(S_SPIN)}, {SPIN_MAX}")
        A(f"s_cbranch_scc1 {loop}")
        A.label(done)

    def code_prefetch(self):
        A = self.A
        A("v_lshlrev_b32 v253, 7, v0")
        A("v_min_u32 v253, L_code_end-L_pc-4, v253")
        A(f"global_load_dword v254, v253, {s(S_PC, 2)}")

    def finish(self):
        self.A("s_endpgm")

    def prologue(self):
        A = self.A
        A("s_cmp_ge_u32 s2, 224")
        A("s_cbranch_scc1 L_exit")
        if self.stamps:
            A(f"s_memrealtime {s(76, 2)}")
        A(f"s_load_dwordx16 {s(8, 16)}, s[0:1], 0")
        A(f"s_load_dwordx8 {s(24, 8)}, s[0:1], 64")
        A(f"s_load_dwordx4 {s(32, 4)}, s[0:1], 96")
        A(f"s_getpc_b64 {s(S_PC, 2)}")
        A.label("L_pc")
        A("v_lshlrev_b32 v253, 7, v0")
        A("v_min_u32 v253, L_code_end-L_pc-4, v253")
        A(f"global_load_dword v254, v253, {s(S_PC, 2)}")
        A("v_lshrrev_b32 v2, 6, v0")
        A("v_and_b32 v1, 63, v0")
        A(f"s_and_b32 {s(S_T)}, s2, 7")
        A(f"s_lshr_b32 {s(S_T + 1)}, s2, 3")
        A(f"v_readfirstlane_b32 {s(S_WV)}, v2")
        A(f"s_getreg_b32 {s(S_XCC)}, hwreg(HW_REG_XCC_ID, 0, 4)")
        A(f"s_mov_b32 {s(S_MASKHI)}, 0xffff0000")
        A(f"s_mov_b32 {s(S_PERM_LO)}, 0x05040100")
        A(f"s_mov_b32 {s(S_PERM_HI)}, 0x07060302")
        A(f"s_mov_b32 {s(S_WI)}, {s(S_T + 1)}")
        A(f"s_mul_i32 {s(S_T + 2)}, {s(S_WI)}, 37")
        A(f"s_lshr_b32 {s(S_T + 2)}, {s(S_T + 2)}, 8")
        A(f"s_mul_i32 {s(S_T + 3)}, {s(S_T + 2)}, 7")
        A(f"s_sub_u32 {s(S_J)}, {s(S_WI)}, {s(S_T + 3)}")
        A(f"s_lshl_b32 {s(S_RB)}, {s(S_T)}, 2")
        A(f"s_add_u32 {s(S_RB)}, {s(S_RB)}, {s(S_T + 2)}")
        A(f"s_lshl_b32 {s(S_CP)}, {s(S_J)}, 5")
        A(f"s_add_u32 {s(S_CP)}, {s(S_CP)}, {s(S_RB)}")
        A.wait_lgkm0()
        self.srd(R_WS, P_WS, WS_END)
        A(f"s_load_dword {s(S_NONCE)}, {s(P_WS, 2)}, 0")
        A(f"s_mul_i32 {s(S_MW)}, {s(S_T)}, 28")
        A(f"s_add_u32 {s(S_MW)}, {s(S_MW)}, {s(S_WI)}")

    def phase_p(self):
        A = self.A
        T = S_T
        NB = 2048 * 896
        t0, t1, t2 = T + 12, T + 13, T + 14
        vC, vRG, vL16, vOffO, vKa, vSh, vSa, vSb, vRow, vWa, vx = 2, 3, 4, 5, 6, 10, 11, 12, 13, 14, 15
        vK, vV, vSH, vQO, vQ, vW, vKD = 16, 36, 44, 60, 68, 84, 100
        A(f"v_and_b32 {v(vC)}, 7, v1")
        A(f"v_lshrrev_b32 {v(vRG)}, 3, v1")
        A(f"s_lshl_b32 {s(T)}, {s(S_RB)}, 6")
        A(f"s_lshl_b32 {s(T + 1)}, {s(S_WV)}, 4")
        A(f"s_add_u32 {s(T + 1)}, {s(T)}, {s(T + 1)}")
        A(f"v_lshl_add_u32 {v(vOffO)}, {v(vRG)}, 1, {s(T + 1)}")
        A(f"v_mul_u32_u24 {v(vOffO)}, 896, {v(vOffO)}")
        A(f"v_lshl_add_u32 {v(vOffO)}, {v(vC)}, 4, {v(vOffO)}")
        A(f"s_lshl_b32 {s(T + 2)}, {s(S_J)}, 7")
        A(f"v_add_u32 {v(vOffO)}, {s(T + 2)}, {v(vOffO)}")
        kad = {}
        for n_, i in enumerate((0, 1, 2, 4)):
            d = (i - 3) * 896
            kad[i] = vKa + n_
            if d < 0:
                A(f"v_subrev_u32 {v(kad[i])}, {-d}, {v(vOffO)}")
            else:
                A(f"v_add_u32 {v(kad[i])}, {d}, {v(vOffO)}")
        kad[3] = vOffO
        self.srd(R_A, P_K, NB)
        self.srd(R_B, P_V, NB)
        for i in range(5):
            A(f"buffer_load_dwordx4 {v(vK + 4 * i, 4)}, {v(kad[i])}, {s(R_A, 4)}, 0 offen")
        if self.o.get("fine"):
            self.stamp(2)
        for i in range(2):
            A(f"buffer_load_dwordx4 {v(vV + 4 * i, 4)}, {v(vOffO)}, {s(R_B, 4)}, 0 offen offset:{896 * i}")
        if self.o.get("fine"):
            self.stamp(4)
        self.srd(R_C, P_SH, 448 * 8)
        A(f"s_lshl_b32 {s(T + 3)}, {s(S_J)}, 9")
        A(f"v_lshl_add_u32 {v(vSh)}, {v(vC)}, 6, {s(T + 3)}")
        for i in range(4):
            A(f"buffer_load_dwordx4 {v(vSH + 4 * i, 4)}, {v(vSh)}, {s(R_C, 4)}, 0 offen offset:{16 * i}")
        if self.o.get("fine"):
            self.stamp(19)
        self.srd(R_A, P_Q, NB)
        for r in range(2):
            A(f"buffer_load_dwordx4 {v(vQO + 4 * r, 4)}, {v(vOffO)}, {s(R_A, 4)}, 0 offen offset:{896 * r}")
        if self.o.get("fine"):
            self.stamp(20)
        A(f"s_lshl_b32 {s(t1)}, {s(S_J)}, 3")
        A(f"s_add_u32 {s(t0)}, {s(T)}, {s(t1)}")
        A(f"s_lshl_b32 {s(t1)}, {s(S_WV)}, 2")
        A(f"s_add_u32 {s(t0)}, {s(t0)}, {s(t1)}")
        A(f"v_lshrrev_b32 {v(vRow)}, 4, v1")
        A(f"v_add_u32 {v(vRow)}, {s(t0)}, {v(vRow)}")
        A(f"v_mul_u32_u24 {v(vSa)}, 896, {v(vRow)}")
        A(f"v_and_b32 {v(vSb)}, 15, v1")
        A(f"v_lshl_add_u32 {v(vSa)}, {v(vSb)}, 4, {v(vSa)}")
        A(f"v_cmp_gt_u32 vcc, 8, {v(vSb)}")
        A(f"v_add_u32 {v(vSb)}, 768, {v(vSa)}")
        A(f"v_mov_b32 {v(vx)}, -1")
        A(f"v_cndmask_b32 {v(vSb)}, {v(vx)}, {v(vSb)}, vcc")
        for i in range(3):
            A(f"buffer_load_dwordx4 {v(vQ + 4 * i, 4)}, {v(vSa)}, {s(R_A, 4)}, 0 offen offset:{256 * i}")
        A(f"buffer_load_dwordx4 {v(vQ + 12, 4)}, {v(vSb)}, {s(R_A, 4)}, 0 offen")
        if self.o.get("fine"):
            self.stamp(29)
        vM, vSC, vMA, vMT, vMa, vCa = 84, 96, 100, 108, 116, 117
        sCG, sRS = T + 21, T + 5
        self.srd(R_B, P_WM, 448 * 5376)
        self.srd(R_C, P_C, 896)
        A(f"s_mul_i32 {s(sRS)}, {s(S_MW)}, 1561")
        A(f"s_lshr_b32 {s(sRS)}, {s(sRS)}, 16")
        A(f"s_mul_i32 {s(sCG)}, {s(sRS)}, 42")
        A(f"s_sub_u32 {s(sCG)}, {s(S_MW)}, {s(sCG)}")
        A(f"s_mul_i32 {s(t0)}, {s(S_WV)}, 24")
        A(f"v_lshrrev_b32 {v(vMT)}, 3, v1")
        A(f"v_add_u32 {v(vMT)}, {s(t0)}, {v(vMT)}")
        A(f"s_mul_i32 {s(t1)}, {s(sRS)}, 90")
        A(f"v_add_u32 {v(vMT + 1)}, {s(t1)}, {v(vMT)}")
        A(f"v_lshlrev_b32 {v(vCa)}, 1, {v(vMT + 1)}")
        A(f"v_mul_u32_u24 {v(vMa)}, 5376, {v(vMT + 1)}")
        A(f"v_and_b32 {v(vMT + 2)}, 7, v1")
        A(f"v_lshl_add_u32 {v(vMa)}, {v(vMT + 2)}, 4, {v(vMa)}")
        A(f"s_lshl_b32 {s(t1)}, {s(sCG)}, 7")
        A(f"v_add_u32 {v(vMa)}, {s(t1)}, {v(vMa)}")
        A(f"v_cmp_gt_u32 vcc, {90 - 16}, {v(vMT)}")
        A(f"v_add_u32 {v(vMT + 3)}, {16 * 5376}, {v(vMa)}")
        A(f"v_mov_b32 {v(vMT + 4)}, 0x80000000")
        A(f"v_add_u32 {v(vMT + 5)}, {8 * 5376}, {v(vMa)}")
        A(f"v_cndmask_b32 {v(vMT + 3)}, {v(vMT + 4)}, {v(vMT + 3)}, vcc")
        for i in range(3):
            A(f"buffer_load_ushort {v(vSC + i)}, {v(vCa)}, {s(R_C, 4)}, 0 offen offset:{16 * i}")
        for i, ad in enumerate((vMa, vMT + 5, vMT + 3)):
            A(f"buffer_load_dwordx4 {v(vM + 4 * i, 4)}, {v(ad)}, {s(R_B, 4)}, 0 offen")
        self.stamp(1)

        sWB, sSrc, sStride, sA, sR1, sD0, sDS = T + 4, T + 6, T + 7, T + 8, T + 9, T + 10, T + 11
        A(f"s_mul_i32 {s(sWB)}, {s(S_RB)}, 7")
        A(f"s_add_u32 {s(sWB)}, {s(sWB)}, {s(S_J)}")
        A(f"s_lshr_b32 {s(t0)}, {s(sWB)}, 2")
        A(f"s_and_b32 {s(t1)}, {s(sWB)}, 3")
        A(f"s_mul_i32 {s(sSrc)}, {s(t0)}, {16 * 3584}")
        A(f"s_mul_i32 {s(t2)}, {s(t1)}, 896")
        A(f"s_add_u32 {s(sSrc)}, {s(sSrc)}, {s(t2)}")
        A(f"s_mul_i32 {s(t2)}, {s(t1)}, 14")
        A(f"s_add_u32 {s(t2)}, {s(t2)}, {s(S_WV)}")
        A(f"s_mul_i32 {s(t2)}, {s(t2)}, 28")
        A(f"s_add_u32 {s(sD0)}, {s(t2)}, {s(t0)}")
        A(f"s_lshl_b32 {s(sD0)}, {s(sD0)}, 10")
        A(f"s_add_u32 {s(sD0)}, {s(sD0)}, {W1F}")
        u0, u1, u2, uSrc, uD0 = T + 16, T + 17, T + 18, T + 19, T + 20
        A(f"s_sub_u32 {s(u0)}, {s(sWB)}, 112")
        A(f"s_mul_i32 {s(uSrc)}, {s(u0)}, {16 * 896}")
        A(f"s_mul_i32 {s(u1)}, {s(u0)}, 147")
        A(f"s_lshr_b32 {s(u1)}, {s(u1)}, 12")
        A(f"s_mul_i32 {s(u2)}, {s(u1)}, 28")
        A(f"s_sub_u32 {s(u2)}, {s(u0)}, {s(u2)}")
        A(f"s_mul_i32 {s(uD0)}, {s(u1)}, 56")
        A(f"s_lshl_b32 {s(u2)}, {s(u2)}, 1")
        A(f"s_add_u32 {s(uD0)}, {s(uD0)}, {s(u2)}")
        A(f"s_lshr_b32 {s(u1)}, {s(S_WV)}, 1")
        A(f"s_mul_i32 {s(u1)}, {s(u1)}, 224")
        A(f"s_add_u32 {s(uD0)}, {s(uD0)}, {s(u1)}")
        A(f"s_and_b32 {s(u1)}, {s(S_WV)}, 1")
        A(f"s_add_u32 {s(uD0)}, {s(uD0)}, {s(u1)}")
        A(f"s_lshl_b32 {s(uD0)}, {s(uD0)}, 10")
        A(f"s_add_u32 {s(uD0)}, {s(uD0)}, {W2F}")
        A(f"s_cmp_ge_u32 {s(sWB)}, 112")
        A(f"s_cselect_b32 {s(sSrc)}, {s(uSrc)}, {s(sSrc)}")
        A(f"s_cselect_b32 {s(sD0)}, {s(uD0)}, {s(sD0)}")
        A(f"s_mov_b32 {s(sStride)}, 3584")
        A(f"s_cselect_b32 {s(sStride)}, 896, {s(sStride)}")
        A(f"s_cselect_b32 {s(sA)}, 4, 8")
        A(f"s_mov_b32 {s(sR1)}, {4 * 1088}")
        A(f"s_cselect_b32 {s(sR1)}, {8 * 1088}, {s(sR1)}")
        A(f"s_mov_b32 {s(sDS)}, {112 * 1024}")
        A(f"s_cselect_b32 {s(sDS)}, {448 * 1024}, {s(sDS)}")
        A(f"s_cselect_b32 {s(R_D)}, {s(P_W2)}, {s(P_W1)}")
        A(f"s_cselect_b32 {s(R_D + 1)}, {s(P_W2 + 1)}, {s(P_W1 + 1)}")
        A(f"s_mov_b32 {s(R_D + 2)}, 1605632")
        A(f"s_mov_b32 {s(R_D + 3)}, 0x{SRD3:08x}")
        A(f"s_lshl_b32 {s(t0)}, {s(S_WV)}, 2")
        A(f"s_mul_i32 {s(t0)}, {s(t0)}, {s(sStride)}")
        A(f"s_add_u32 {s(sSrc)}, {s(sSrc)}, {s(t0)}")
        A(f"v_lshlrev_b32 {v(vL16)}, 4, v1")
        A(f"v_add_u32 {v(vWa)}, {s(sSrc)}, {v(vL16)}")
        A(f"s_lshl_b32 {s(t0)}, {s(S_CP)}, 13")
        self.srd(R_B, P_SK, 4096, add=s(t0))
        A(f"s_add_u32 {s(t0)}, {s(t0)}, 4096")
        self.srd(R_C, P_SK, 4096, add=s(t0))
        vKA, vKB, vKA2, vKB2 = 132, 133, 134, 135
        A(f"v_lshlrev_b32 {v(vKA)}, 4, v0")
        A(f"v_subrev_u32 {v(vKB)}, 16, {v(vKA)}")
        A(f"v_subrev_u32 {v(vKA)}, 32, {v(vKA)}")
        A(f"v_and_b32 {v(vKA2)}, 1, v1")
        A(f"v_lshlrev_b32 {v(vKA2)}, 4, {v(vKA2)}")
        A(f"v_add_u32 {v(vKB2)}, 4080, {v(vKA2)}")
        vTPW, vWw, vTPR, vStO, vTR0, vTR1, vKW = 136, 137, 138, 139, 140, 141, 142
        A(f"v_add_u32 {v(vKW + 1)}, {4096 + L_KC}, {v(vKA2)}")
        A(f"v_add_u32 {v(vKA2)}, 4064, {v(vKA2)}")
        A(f"v_lshlrev_b32 {v(vKW)}, 4, v0")
        A(f"v_add_u32 {v(vKW)}, {L_KC}, {v(vKW)}")
        A(f"v_mul_u32_u24 {v(vTPW)}, 1088, {v(vC)}")
        A(f"v_lshl_add_u32 {v(vTPW)}, {v(vRG)}, 3, {v(vTPW)}")
        A(f"s_lshl_b32 {s(t0)}, {s(S_WV)}, 6")
        A(f"v_add_u32 {v(vTPW)}, {s(t0)}, {v(vTPW)}")
        A(f"s_mul_i32 {s(t1)}, {s(S_WV)}, {4 * 1088}")
        A(f"v_add_u32 {v(vWw)}, {s(t1)}, {v(vL16)}")
        A(f"v_lshrrev_b32 {v(vStO)}, 4, v0")
        A(f"v_mul_u32_u24 {v(vTPR)}, 272, {v(vStO)}")
        A(f"v_and_b32 {v(vx)}, 15, v0")
        A(f"v_lshl_add_u32 {v(vTPR)}, {v(vx)}, 4, {v(vTPR)}")
        A(f"v_lshlrev_b32 {v(vStO)}, 13, {v(vStO)}")
        A(f"v_lshl_add_u32 {v(vStO)}, {v(vx)}, 4, {v(vStO)}")
        A(f"v_lshrrev_b32 {v(vTR0)}, 5, v1")
        A(f"v_mul_lo_u32 {v(vTR0)}, {v(vTR0)}, {s(sA)}")
        A(f"v_bfe_u32 {v(vx)}, v1, 2, 2")
        A(f"v_add_u32 {v(vTR0)}, {v(vTR0)}, {v(vx)}")
        A(f"v_mul_u32_u24 {v(vTR0)}, 1088, {v(vTR0)}")
        A(f"v_bfe_u32 {v(vx)}, v1, 4, 1")
        A(f"v_lshl_add_u32 {v(vTR0)}, {v(vx)}, 5, {v(vTR0)}")
        A(f"v_and_b32 {v(vx)}, 3, v1")
        A(f"v_lshl_add_u32 {v(vTR0)}, {v(vx)}, 3, {v(vTR0)}")
        A(f"v_add_u32 {v(vTR0)}, {s(t0)}, {v(vTR0)}")
        A(f"v_add_u32 {v(vTR1)}, {s(sR1)}, {v(vTR0)}")
        sTile = S_OFF
        A(f"s_lshl_b32 {s(sTile)}, {s(S_J)}, 18")
        A(f"s_lshl_b32 {s(t0)}, {s(S_RB)}, 8")
        A(f"s_add_u32 {s(sTile)}, {s(sTile)}, {s(t0)}")
        A(f"v_lshlrev_b32 {v(vRow)}, 2, {v(vRow)}")
        A("v_mov_b32 v240, 0")
        A("v_mov_b32 v241, 0")
        A("v_lshlrev_b32 v242, 3, v1")
        for e in range(2):
            A(f"ds_write_b64 v242, v[240:241] offset:{L_UR + 4608 * e + 4096}")

        KG = [120, 126, 176, 216] if self.o.get("k_early", 1) else [vKD + 8 * g_ for g_ in range(4)]

        def k_loads():
            for e in range(2):
                R = R_B if e == 0 else R_C
                for ps in range(2):
                    b = KG[2 * e + ps]
                    A(f"buffer_load_dwordx4 {v(b, 4)}, {v(vKA if ps == 0 else vKA2)}, {s(R, 4)}, 0 offen")
                    A(f"buffer_load_dwordx2 {v(b + 4, 2)}, {v(vKB if ps == 0 else vKB2)}, {s(R, 4)}, 0 offen")

        if self.o.get("k_early", 1):
            k_loads()
        TT, AC, VU, vO = 144, 184, 200, 232
        if self.o.get("p_dot2", 1):
            A.await_regs(v(vK, 20), v(vSH, 16))
            self.stamp(21)
            for p in range(4):
                for e, sel in ((0, S_PERM_LO), (1, S_PERM_HI)):
                    for i in range(4):
                        A(f"v_perm_b32 {v(TT + 8 * p + 4 * e + i)}, {v(vK + 4 * i + p)}, {v(vK + 4 * (i + 1) + p)}, {s(sel)}")
            for row in range(2):
                for p in range(4):
                    for e in range(2):
                        w = vSH + 2 * (2 * p + e)
                        A(f"v_dot2_f32_bf16 {v(AC + 4 * p + 2 * row + e)}, {v(TT + 8 * p + 4 * e + row)}, {v(w + 1)}, 0")
            for row in range(2):
                for p in range(4):
                    for e in range(2):
                        w = vSH + 2 * (2 * p + e)
                        d = AC + 4 * p + 2 * row + e
                        A(f"v_dot2_f32_bf16 {v(d)}, {v(TT + 8 * p + 4 * e + 2 + row)}, {v(w)}, {v(d)}")
            for row in range(2):
                for p in range(4):
                    src = vV + 4 * row + p
                    A(f"v_lshlrev_b32 {v(VU + 4 * p + 2 * row)}, 16, {v(src)}")
                    A(f"v_and_b32 {v(VU + 4 * p + 2 * row + 1)}, {s(S_MASKHI)}, {v(src)}")
            for p in range(4):
                for row in range(2):
                    acc = AC + 4 * p + 2 * row
                    A(f"v_pk_mul_f32 {v(acc, 2)}, {v(acc, 2)}, {v(VU + 4 * p + 2 * row, 2)}")
            for p in range(4):
                for row in range(2):
                    acc = AC + 4 * p + 2 * row
                    A(f"v_cvt_pk_bf16_f32 {v(vO + 2 * p + row)}, {v(acc)}, {v(acc + 1)}")
        for p in range(4):
            A(f"ds_write_b64 {v(vTPW)}, {v(vO + 2 * p, 2)} offset:{L_TPK + 272 * p}")
        self.stamp(22)
        A(f"v_add_u32 {v(vx)}, {L_TPQ}, {v(vTPW)}")
        A.await_regs(v(vQO, 8))
        for p in range(4):
            A(f"ds_write2_b32 {v(vx)}, {v(vQO + p)}, {v(vQO + 4 + p)} offset0:{68 * p} offset1:{68 * p + 1}")
        A.await_regs(v(vQ, 16))
        m, q2 = 240, 244
        A(f"s_mov_b32 {s(t2)}, 0x3f803f80")
        for i in range(16):
            d1, d2 = m + (i & 1), q2 + (i & 1)
            A(f"v_dot2_f32_bf16 {v(d1)}, {v(vQ + i)}, {s(t2)}, {'0' if i < 2 else v(d1)}")
            A(f"v_dot2_f32_bf16 {v(d2)}, {v(vQ + i)}, {v(vQ + i)}, {'0' if i < 2 else v(d2)}")
        A(f"v_add_f32 {v(m)}, {v(m)}, {v(m + 1)}")
        A(f"v_add_f32 {v(q2)}, {v(q2)}, {v(q2 + 1)}")
        for mod in ("quad_perm:[1,0,3,2]", "quad_perm:[2,3,0,1]", "row_half_mirror", "row_mirror"):
            for c_ in (m, q2):
                A(f"v_add_f32_dpp {v(c_)}, {v(c_)}, {v(c_)} {mod} row_mask:0xf bank_mask:0xf")
        A(f"s_mov_b32 {s(t0)}, 0x{f32bits(1.0 / 448):08x}")
        A(f"s_mov_b32 {s(t1)}, 0x{f32bits(1e-5):08x}")
        A(f"v_mul_f32 {v(m)}, {s(t0)}, {v(m)}")
        A(f"v_mul_f32 {v(q2)}, {s(t0)}, {v(q2)}")
        A(f"v_fma_f32 {v(q2)}, -{v(m)}, {v(m)}, {v(q2)}")
        A(f"v_max_f32 {v(q2)}, 0, {v(q2)}")
        A(f"v_add_f32 {v(q2)}, {s(t1)}, {v(q2)}")
        A(f"v_rsq_f32 {v(q2)}, {v(q2)}")
        L_MP = L_TPN
        A(f"s_mov_b32 {s(t1)}, 0x{f32bits(-LOG2E):08x}")
        A.await_regs(v(vSC, 3))
        for i in range(3):
            A(f"v_lshlrev_b32 {v(vSC + i)}, 16, {v(vSC + i)}")
        for i in range(3):
            A(f"v_mul_f32 {v(vMT + i)}, {s(t1)}, {v(vSC + i)}")
        for i in range(3):
            A(f"v_exp_f32 {v(vMT + i)}, {v(vMT + i)}")
        for i in range(3):
            A(f"v_add_f32 {v(vMT + i)}, 1.0, {v(vMT + i)}")
        for i in range(3):
            A(f"v_rcp_f32 {v(vMT + i)}, {v(vMT + i)}")
        A(f"s_lshl_b32 {s(t2)}, {s(S_WV)}, 2")
        A(f"v_lshrrev_b32 {v(vCa)}, 4, v1")
        A(f"v_add_u32 {v(vCa)}, {s(t2)}, {v(vCa)}")
        for i in range(3):
            A(f"v_mul_f32 {v(vSC + i)}, {v(vSC + i)}, {v(vMT + i)}")
        A(f"v_mul_u32_u24 {v(vCa)}, 272, {v(vCa)}")
        A(f"v_and_b32 {v(vMa)}, 7, v1")
        for i in range(3):
            A(f"v_cvt_pk_bf16_f32 {v(vSC + i)}, {v(vSC + i)}, {v(vSC + i)}")
        A(f"v_lshl_add_u32 {v(vCa)}, {v(vMa)}, 5, {v(vCa)}")
        for i in range(3):
            A(f"v_and_b32 {v(vSC + i)}, {s(S_MASKHI)}, {v(vSC + i)}")
        A(f"v_add_u32 {v(vCa)}, {L_MP}, {v(vCa)}")
        A.await_regs(v(vM, 12))
        for i in range(3):
            for k in range(4):
                A(f"v_lshlrev_b32 {v(vMT + 2 * k)}, 16, {v(vM + 4 * i + k)}")
                A(f"v_and_b32 {v(vMT + 2 * k + 1)}, {s(S_MASKHI)}, {v(vM + 4 * i + k)}")
            sc = vSC + i
            base, e = (sc, 0) if sc % 2 == 0 else (sc - 1, 1)
            for k in range(4):
                if i == 0:
                    A(f"v_pk_mul_f32 {v(vMA + 2 * k, 2)}, {v(vMT + 2 * k, 2)}, {v(base, 2)} op_sel:[0,{e}] op_sel_hi:[1,{e}]")
                else:
                    A(f"v_pk_fma_f32 {v(vMA + 2 * k, 2)}, {v(vMT + 2 * k, 2)}, {v(base, 2)}, {v(vMA + 2 * k, 2)} op_sel:[0,{e},0] op_sel_hi:[1,{e},1]")
        for k in range(8):
            A(f"v_add_f32_dpp {v(vMA + k)}, {v(vMA + k)}, {v(vMA + k)} row_ror:8 row_mask:0xf bank_mask:0xf")
        A(f"ds_write_b128 {v(vCa)}, {v(vMA, 4)}")
        A(f"ds_write_b128 {v(vCa)}, {v(vMA + 4, 4)} offset:16")
        A.barrier()
        self.stamp(23)
        vRB = 16
        for i in range(2):
            A(f"ds_read_b128 {v(vRB + 4 * i, 4)}, {v(vTPR)} offset:{L_TPK + 4352 * i}")
        for i in range(2):
            A(f"ds_read_b128 {v(vRB + 8 + 4 * i, 4)}, {v(vTPR)} offset:{L_TPQ + 4352 * i}")
        A(f"v_mul_f32 {v(m)}, {v(m)}, {v(q2)}")
        vF0, vJ = 100, 118
        A(f"v_lshlrev_b32 {v(vJ)}, 2, v1")
        A(f"v_add_u32 {v(vJ + 1)}, {L_TPN}, {v(vJ)}")
        for g_ in range(16):
            A(f"ds_read_b32 {v(vF0 + g_)}, {v(vJ + 1)} offset:{272 * g_}")
        A(f"s_mul_i32 {s(sRS)}, {s(sRS)}, {MPL}")
        A(f"s_lshl_b32 {s(sCG)}, {s(sCG)}, 8")
        A(f"s_add_u32 {s(sRS)}, {s(sRS)}, {s(sCG)}")
        A(f"s_add_u32 {s(sRS)}, {s(sRS)}, {MODF}")
        A.await_regs(v(vF0, 16))
        for stp in (8, 4, 2, 1):
            for g_ in range(stp):
                A(f"v_add_f32 {v(vF0 + g_)}, {v(vF0 + g_)}, {v(vF0 + g_ + stp)}")
        A(f"s_add_u32 {s(t0)}, {s(sTile)}, {KVP}")
        A(f"s_add_u32 {s(t1)}, {s(sTile)}, {KVP + 131072}")
        A(f"s_add_u32 {s(t2)}, {s(sTile)}, {QP}")
        A(f"s_add_u32 {s(u0)}, {s(sTile)}, {QP + 131072}")
        A.await_regs(v(vRB, 8))
        A(f"buffer_store_dwordx4 {v(vRB, 4)}, {v(vStO)}, {s(R_WS, 4)}, {s(t0)} offen sc1")
        A(f"buffer_store_dwordx4 {v(vRB + 4, 4)}, {v(vStO)}, {s(R_WS, 4)}, {s(t1)} offen sc1")
        A.await_regs(v(vRB + 8, 8))
        A(f"buffer_store_dwordx4 {v(vRB + 8, 4)}, {v(vStO)}, {s(R_WS, 4)}, {s(t2)} offen sc1")
        A(f"buffer_store_dwordx4 {v(vRB + 12, 4)}, {v(vStO)}, {s(R_WS, 4)}, {s(u0)} offen sc1")
        A(f"s_mov_b32 {s(t0)}, {STR}")
        A(f"s_mov_b32 {s(t1)}, {STM}")
        A(f"s_mov_b32 exec_lo, 0x00010001")
        A(f"s_mov_b32 exec_hi, 0x00010001")
        A(f"buffer_store_dword {v(q2)}, {v(vRow)}, {s(R_WS, 4)}, {s(t0)} offen sc1")
        A(f"buffer_store_dword {v(m)}, {v(vRow)}, {s(R_WS, 4)}, {s(t1)} offen sc1")
        A("s_mov_b64 exec, -1")
        skipm = self.lab("ms")
        A(f"s_cmp_lg_u32 {s(S_WV)}, 0")
        A(f"s_cbranch_scc1 {skipm}")
        A.cond_begin()
        A(f"buffer_store_dword {v(100)}, {v(118)}, {s(R_WS, 4)}, {s(sRS)} offen sc1")
        A.cond_end()
        A.label(skipm)
        self.stamp(24)
        def batch2():
            if not self.o.get("k_early", 1):
                k_loads()
            for i in range(4):
                A(f"buffer_load_dwordx4 {v(vW + 4 * i, 4)}, {v(vWa)}, {s(R_D, 4)}, 0 offen")
                if i < 3:
                    A(f"v_add_u32 {v(vWa)}, {s(sStride)}, {v(vWa)}")

        mark = A.vm_count
        if not self.o.get("b2_late", 1):
            batch2()
        A(f"s_add_u32 {s(S_NONCE)}, {s(S_NONCE)}, 1")
        A(f"s_lshl_b32 {s(t0)}, {s(S_CP)}, 7")
        A(f"s_add_u32 {s(t0)}, {s(t0)}, {FL + F1 * 128}")
        A.wait_vm(A.vm_count - mark)
        A.barrier()
        self.flag_store(t0)
        if self.o.get("b2_late", 1):
            batch2()
        self.stamp(3)
        vx4 = 48
        for e in range(2):
            for ps in range(2):
                b = KG[2 * e + ps]
                base = e * 4 * CS
                ad = vKW + ps
                A.await_regs(v(b, 6))
                for i in range(4):
                    A(f"v_alignbit_b32 {v(vx4 + i)}, {v(b + i + 1)}, {v(b + i)}, 16")
                for i in range(4):
                    A(f"v_mov_b32 {v(vx4 + 4 + i)}, {v(b + i + 1)}")
                for i in range(4):
                    A(f"v_alignbit_b32 {v(vx4 + 8 + i)}, {v(b + i + 2)}, {v(b + i + 1)}, 16")
                A(f"ds_write_b128 {v(ad)}, {v(b, 4)} offset:{base}")
                A(f"ds_write_b128 {v(ad)}, {v(vx4, 4)} offset:{base + CS}")
                A(f"ds_write_b128 {v(ad)}, {v(vx4 + 4, 4)} offset:{base + 2 * CS}")
                A(f"ds_write_b128 {v(ad)}, {v(vx4 + 8, 4)} offset:{base + 3 * CS}")
        A.await_regs(v(vW, 16))
        for i in range(4):
            A(f"ds_write_b128 {v(vWw)}, {v(vW + 4 * i, 4)} offset:{L_WB + 1088 * i}")
        A.barrier()
        self.stamp(25)
        for i in range(4):
            A(f"ds_read_b64_tr_b16 {v(220 + 4 * i, 2)}, {v(vTR0)} offset:{L_WB + 256 * i}")
            A(f"ds_read_b64_tr_b16 {v(220 + 4 * i + 2, 2)}, {v(vTR1)} offset:{L_WB + 256 * i}")
        self.wr = dict(sWB=sWB, sD0=sD0, sDS=sDS)
        if self.o.get("w_early", 1):
            self.w_stores()
        self.stamp(26)

    def w_stores(self):
        A = self.A
        vF, sD0, sDS = 220, self.wr["sD0"], self.wr["sDS"]
        A.await_regs(v(vF, 16))
        for i in range(3):
            A(f"buffer_store_dwordx4 {v(vF + 4 * i, 4)}, v4, {s(R_WS, 4)}, {s(sD0)} offen sc1")
            A(f"s_add_u32 {s(sD0)}, {s(sD0)}, {s(sDS)}")
        skip = self.lab("w4")
        A(f"s_cmp_ge_u32 {s(S_WV)}, 2")
        A(f"s_cbranch_scc1 {skip}")
        A.cond_begin()
        A(f"buffer_store_dwordx4 {v(vF + 12, 4)}, v4, {s(R_WS, 4)}, {s(sD0)} offen sc1")
        A.cond_end()
        A.label(skip)

    def poll2_issue(self, va, vb, vt):
        A = self.A
        A(f"buffer_load_dword {v(vt)}, {v(va)}, {s(R_WS, 4)}, 0 offen sc1")
        A(f"buffer_load_dword {v(vt + 1)}, {v(vb)}, {s(R_WS, 4)}, 0 offen sc1")

    def poll1_check(self, va, vt):
        A = self.A
        done = self.lab("p1d")
        A(f"v_cmp_ne_u32 vcc, {s(S_NONCE)}, {v(vt)}")
        A("s_nop 1")
        A("s_cmp_eq_u64 vcc, 0")
        A(f"s_cbranch_scc1 {done}")
        st = A.snapshot()
        self.poll(va, vt)
        A.restore(st)
        A.label(done)

    def poll2_check(self, va, vb, vt):
        A = self.A
        loop, done = self.lab("p2"), self.lab("p2d")
        A(f"v_cmp_ne_u32 vcc, {s(S_NONCE)}, {v(vt)}")
        A(f"v_cmp_ne_u32 {s(S_SPIN + 2, 2)}, {s(S_NONCE)}, {v(vt + 1)}")
        A(f"s_mov_b32 {s(S_SPIN)}, 0")
        A("s_nop 1")
        A(f"s_or_b64 vcc, vcc, {s(S_SPIN + 2, 2)}")
        A("s_cmp_eq_u64 vcc, 0")
        A(f"s_cbranch_scc1 {done}")
        st = A.snapshot()
        A.label(loop)
        A(f"buffer_load_dword {v(vt)}, {v(va)}, {s(R_WS, 4)}, 0 offen sc1")
        A(f"buffer_load_dword {v(vt + 1)}, {v(vb)}, {s(R_WS, 4)}, 0 offen sc1")
        A.wait_vm(0)
        A(f"v_cmp_ne_u32 vcc, {s(S_NONCE)}, {v(vt)}")
        A(f"v_cmp_ne_u32 {s(S_SPIN + 2, 2)}, {s(S_NONCE)}, {v(vt + 1)}")
        A(f"s_add_u32 {s(S_SPIN)}, {s(S_SPIN)}, 1")
        A("s_nop 1")
        A(f"s_or_b64 vcc, vcc, {s(S_SPIN + 2, 2)}")
        A("s_cmp_eq_u64 vcc, 0")
        A(f"s_cbranch_scc1 {done}")
        A(f"s_cmp_lt_u32 {s(S_SPIN)}, {SPIN_MAX}")
        A(f"s_cbranch_scc1 {loop}")
        A.restore(st)
        A.label(done)

    def phase_a(self):
        A = self.A
        T = S_T
        t0, t1, t2 = T, T + 1, T + 2
        vPa, vPt, vx, vy = 2, 3, 16, 17
        A(f"v_min_u32 {v(vPa)}, 55, v1")
        A(f"s_mul_i32 {s(t0)}, {s(S_WV)}, 56")
        A(f"v_add_u32 {v(vPa)}, {s(t0)}, {v(vPa)}")
        A(f"v_lshlrev_b32 {v(vPa)}, 7, {v(vPa)}")
        A(f"v_add_u32 {v(vPa)}, {FL + F1 * 128}, {v(vPa)}")
        vL16 = 4
        sKV = S_OFF + 2
        A(f"s_lshl_b32 {s(sKV)}, {s(S_CP)}, 13")
        A(f"s_lshl_b32 {s(t2)}, {s(S_WV)}, 11")
        A(f"s_add_u32 {s(sKV)}, {s(sKV)}, {s(t2)}")
        vUW, vaA, vaB = 5, 6, 7
        A(f"s_lshl_b32 {s(t0)}, {s(S_WV)}, 10")
        A(f"s_sub_u32 {s(t0)}, {4088 - 512}, {s(t0)}")
        A(f"v_lshlrev_b32 {v(vx)}, 3, v1")
        A(f"v_sub_u32 {v(vUW)}, {s(t0)}, {v(vx)}")
        A(f"v_and_b32 {v(vx)}, 15, v1")
        A(f"v_add_u32 {v(vx)}, 1, {v(vx)}")
        A(f"v_and_b32 {v(vy)}, 3, {v(vx)}")
        A(f"v_sub_u32 {v(vx)}, {v(vx)}, {v(vy)}")
        A(f"v_lshlrev_b32 {v(vx)}, 1, {v(vx)}")
        A(f"v_mul_u32_u24 {v(vy)}, {CS}, {v(vy)}")
        A(f"v_add_u32 {v(vaA)}, {v(vx)}, {v(vy)}")
        A(f"v_lshrrev_b32 {v(vy)}, 4, v1")
        A(f"v_lshl_add_u32 {v(vaA)}, {v(vy)}, 4, {v(vaA)}")
        A(f"s_lshr_b32 {s(t0)}, {s(S_WV)}, 1")
        A(f"s_and_b32 {s(t1)}, {s(S_WV)}, 1")
        A(f"s_mul_i32 {s(t2)}, {s(t0)}, {4 * CS}")
        A(f"s_lshl_b32 {s(t1)}, {s(t1)}, 8")
        A(f"s_add_u32 {s(t2)}, {s(t2)}, {s(t1)}")
        A(f"s_add_u32 {s(t2)}, {s(t2)}, {L_KC}")
        A(f"v_add_u32 {v(vaA)}, {s(t2)}, {v(vaA)}")
        A(f"v_and_b32 {v(vx)}, 15, v1")
        A(f"v_lshlrev_b32 {v(vx)}, 5, {v(vx)}")
        A(f"v_lshlrev_b32 {v(vy)}, 4, {v(vy)}")
        A(f"v_sub_u32 {v(vaB)}, {v(vy)}, {v(vx)}")
        A(f"s_mul_i32 {s(t2)}, {s(t0)}, 4608")
        A(f"s_add_u32 {s(t2)}, {s(t2)}, {s(t1)}")
        A(f"s_add_u32 {s(t2)}, {s(t2)}, {L_UR + 480}")
        A(f"v_add_u32 {v(vaB)}, {s(t2)}, {v(vaB)}")
        vPW, vPM, vPR = 18, 19, 20
        A(f"s_lshl_b32 {s(t0)}, {s(S_J)}, 3")
        A(f"s_lshl_b32 {s(t1)}, {s(S_WV)}, 1")
        A(f"s_add_u32 {s(t0)}, {s(t0)}, {s(t1)}")
        A(f"s_mul_i32 {s(t0)}, {s(t0)}, 147")
        A(f"s_lshr_b32 {s(t0)}, {s(t0)}, 11")
        A(f"v_min_u32 {v(vx)}, 27, v1")
        A(f"v_lshl_add_u32 {v(vPW)}, {v(vx)}, 2, {s(t0)}")
        A(f"s_mul_i32 {s(t1)}, {s(S_WV)}, 28")
        A(f"s_add_u32 {s(t1)}, {s(t1)}, {112 - 32}")
        A(f"v_min_u32 {v(vy)}, 59, v1")
        A(f"v_add_u32 {v(vy)}, {s(t1)}, {v(vy)}")
        A(f"v_cmp_gt_u32 vcc, 32, v1")
        A(f"v_cndmask_b32 {v(vPW)}, {v(vy)}, {v(vPW)}, vcc")
        A(f"v_lshlrev_b32 {v(vPW)}, 7, {v(vPW)}")
        A(f"v_add_u32 {v(vPW)}, {FL + FQ * 128}, {v(vPW)}")
        A(f"s_add_u32 {s(t1)}, {s(sKV)}, {KVP}")
        self.poll(vPa, vPt)
        A.barrier()
        if self.o.get("w_early", 1):
            A(f"s_lshl_b32 {s(t0)}, {s(self.wr['sWB'])}, 7")
            A(f"s_add_u32 {s(t0)}, {s(t0)}, {FL + FQ * 128}")
            self.flag_store(t0)
        self.stamp(5)
        vKV = 8
        for h in range(2):
            A(f"buffer_load_dwordx4 {v(vKV + 4 * h, 4)}, {v(vL16)}, {s(R_WS, 4)}, {s(t1)} offen offset:{1024 * h} sc1")
        RA = Rec()
        f0, f1, f2, fx, fy = T + 15, T + 16, T + 17, 184, 185
        vQn, vRs, vMs = 144, 152, 160
        RA(f"s_add_u32 {s(f1)}, {s(sKV)}, {QP}")
        for h in range(2):
            RA(f"buffer_load_dwordx4 {v(vQn + 4 * h, 4)}, {v(vL16)}, {s(R_WS, 4)}, {s(f1)} offen offset:{1024 * h} sc1")
        RA(f"s_lshl_b32 {s(f0)}, {s(S_WV)}, 11")
        RA(f"s_add_u32 {s(f1)}, {s(f0)}, {STR}")
        RA(f"s_add_u32 {s(f2)}, {s(f0)}, {STM}")
        for h in range(2):
            RA(f"buffer_load_dwordx4 {v(vRs + 4 * h, 4)}, {v(vL16)}, {s(R_WS, 4)}, {s(f1)} offen offset:{1024 * h} sc1")
            RA(f"buffer_load_dwordx4 {v(vMs + 4 * h, 4)}, {v(vL16)}, {s(R_WS, 4)}, {s(f2)} offen offset:{1024 * h} sc1")
        vPS, vPA, vPG, vPD, vPar = 168, 170, 172, 174, 176
        vMP, vPP, vGP = 186, 188, 208
        RA(f"v_lshrrev_b32 {v(fx)}, 3, v1")
        RA(f"v_mul_u32_u24 {v(fx)}, 1792, {v(fx)}")
        RA(f"v_and_b32 {v(fy)}, 7, v1")
        RA(f"v_cmp_gt_u32 vcc, 5, {v(fy)}")
        RA(f"v_mul_u32_u24 {v(fy)}, {MPL}, {v(fy)}")
        RA(f"v_add_u32 {v(fx)}, {v(fx)}, {v(fy)}")
        RA(f"s_lshl_b32 {s(f0)}, {s(S_CP)}, 3")
        RA(f"s_add_u32 {s(f0)}, {s(f0)}, {MODF}")
        RA(f"v_add_u32 {v(fx)}, {s(f0)}, {v(fx)}")
        RA(f"v_mov_b32 {v(fy)}, 0x80000000")
        RA(f"v_cndmask_b32 {v(fx)}, {v(fy)}, {v(fx)}, vcc")
        RA(f"buffer_load_dwordx2 {v(vMP, 2)}, {v(fx)}, {s(R_WS, 4)}, 0 offen sc1")
        self.A = RA
        self.srd(R_A, P_D, 896)
        self.A = A
        RA(f"s_lshl_b32 {s(f0)}, {s(S_CP)}, 2")
        RA(f"v_mov_b32 {v(fy)}, {s(f0)}")
        RA(f"buffer_load_dword {v(vPD + 1)}, {v(fy)}, {s(R_A, 4)}, 0 offen")
        if not self.o.get("w_early", 1):
            self.w_stores()
        vP = 22
        A.await_regs(v(vKV, 8))
        for h in range(2):
            d = vKV + 4 * h
            for e, sel in ((0, S_PERM_LO), (1, S_PERM_HI)):
                o = vP + 4 * h + 2 * e
                A(f"v_perm_b32 {v(o)}, {v(d + 2)}, {v(d + 3)}, {s(sel)}")
                A(f"v_perm_b32 {v(o + 1)}, {v(d)}, {v(d + 1)}, {s(sel)}")
        for h in range(2):
            for e in range(2):
                o = vP + 4 * h + 2 * e
                A(f"ds_write_b64 {v(vUW)}, {v(o, 2)} offset:{L_UR + 4608 * e + (512 if h == 0 else 0)}")
        A.barrier()
        self.stamp(6)
        ACC = 32
        BS = [64, 96]
        AR = 128

        def ldB(rp, m):
            A(f"ds_read_b128 {v(BS[rp & 1] + 4 * m, 4)}, {v(vaB)} offset:{64 * rp + 512 * (7 - m)}")

        def ldA(idx):
            rp, q = divmod(idx, 8)
            r = AR + 4 * (idx % 4)
            A(f"ds_read_b64 {v(r, 2)}, {v(vaA)} offset:{64 * rp + 512 * q}")
            A(f"ds_read_b64 {v(r + 2, 2)}, {v(vaA)} offset:{64 * rp + 512 * q + 8}")

        ldA(0)
        for m in range(8):
            ldB(0, m)
        ldA(1)
        ldA(2)
        RB = Rec()
        vRW, vRR, vSt = 183, 19, 182
        RB(f"v_and_b32 {v(fx)}, 15, v1")
        RB(f"v_mul_u32_u24 {v(vRW)}, 80, {v(fx)}")
        RB(f"v_lshrrev_b32 {v(fy)}, 4, v1")
        RB(f"v_lshl_add_u32 {v(vRW)}, {v(fy)}, 4, {v(vRW)}")
        RB(f"s_mul_i32 {s(f0)}, {s(S_WV)}, 10240")
        RB(f"s_add_u32 {s(f0)}, {s(f0)}, {L_RED}")
        RB(f"v_add_u32 {v(vRW)}, {s(f0)}, {v(vRW)}")
        RB(f"v_mul_u32_u24 {v(vSt)}, 57344, {v(fy)}")
        RB(f"v_lshl_add_u32 {v(vSt)}, {v(fx)}, 4, {v(vSt)}")
        RB(f"v_lshrrev_b32 {v(fx)}, 2, v1")
        RB(f"v_mul_u32_u24 {v(vRR)}, 80, {v(fx)}")
        RB(f"v_and_b32 {v(fy)}, 3, v1")
        RB(f"v_lshl_add_u32 {v(vRR)}, {v(fy)}, 4, {v(vRR)}")
        RB(f"s_mul_i32 {s(f0)}, {s(S_WV)}, 2560")
        RB(f"s_add_u32 {s(f0)}, {s(f0)}, {L_RED}")
        RB(f"v_add_u32 {v(vRR)}, {s(f0)}, {v(vRR)}")
        sX = S_OFF + 3
        RB(f"s_mul_i32 {s(sX)}, {s(S_WV)}, {2 * 229376}")
        RB(f"s_lshl_b32 {s(f0)}, {s(S_CP)}, 8")
        RB(f"s_add_u32 {s(sX)}, {s(sX)}, {s(f0)}")
        RB(f"s_add_u32 {s(sX)}, {s(sX)}, {X1P}")
        RB(f"s_add_u32 {s(S_OFF + 4)}, {s(sX)}, 229376")
        U, Q, N = 216, 232, 200
        RB.await_regs(v(vMP, 2))
        for mod in ("quad_perm:[1,0,3,2]", "quad_perm:[2,3,0,1]", "row_half_mirror"):
            for k in range(2):
                RB(f"v_add_f32_dpp {v(vMP + k)}, {v(vMP + k)}, {v(vMP + k)} {mod} row_mask:0xf bank_mask:0xf")
        RB(f"v_cvt_pk_bf16_f32 {v(vMP)}, {v(vMP)}, {v(vMP + 1)}")
        r0, r1, r2 = T + 12, T + 13, T + 14
        RB(f"v_readlane_b32 {s(r0)}, {v(vMP)}, 0")
        RB(f"v_readlane_b32 {s(r1)}, {v(vMP)}, 8")
        RB(f"v_readlane_b32 {s(r2)}, {v(vMP)}, 16")
        for reg, sr in ((vPS, r0), (vPA, r1), (vPG, r2)):
            RB(f"v_lshlrev_b32 {v(reg)}, 16, {s(sr)}")
            RB(f"v_mov_b32 {v(reg + 1)}, {s(sr)}")
        for reg in (vPS, vPA, vPG):
            RB(f"v_and_b32 {v(reg + 1)}, {s(S_MASKHI)}, {v(reg + 1)}")
        RB(f"v_add_f32 {v(vPA)}, 1.0, {v(vPA)}")
        RB(f"v_add_f32 {v(vPA + 1)}, 1.0, {v(vPA + 1)}")
        RB(f"v_cvt_pk_bf16_f32 {v(vPA)}, {v(vPA)}, {v(vPA + 1)}")
        RB(f"v_and_b32 {v(vPA + 1)}, {s(S_MASKHI)}, {v(vPA)}")
        RB(f"v_lshlrev_b32 {v(vPA)}, 16, {v(vPA)}")
        RB.await_regs(v(vQn, 8), v(vRs, 8), v(vMs, 8), v(vPD + 1))
        RB(f"v_lshlrev_b32 {v(vPD)}, 16, {v(vPD + 1)}")
        RB(f"v_and_b32 {v(vPD + 1)}, {s(S_MASKHI)}, {v(vPD + 1)}")
        for h in range(2):
            for e in range(2):
                for r in range(4):
                    for dst, src in ((U, vKV), (Q, vQn)):
                        d = dst + 8 * h + 4 * e + r
                        if e == 0:
                            RB(f"v_lshlrev_b32 {v(d)}, 16, {v(src + 4 * h + r)}")
                        else:
                            RB(f"v_and_b32 {v(d)}, {s(S_MASKHI)}, {v(src + 4 * h + r)}")
        for h in range(2):
            for e in range(2):
                for k in (0, 2):
                    o = 8 * h + 4 * e + k
                    RB(f"v_pk_fma_f32 {v(N + o, 2)}, {v(Q + o, 2)}, {v(vRs + 4 * h + k, 2)}, {v(vMs + 4 * h + k, 2)} neg_lo:[0,0,1] neg_hi:[0,0,1]")
        for h in range(2):
            for e in range(2):
                for k in (0, 2):
                    o = 8 * h + 4 * e + k
                    RB(f"v_pk_fma_f32 {v(N + o, 2)}, {v(N + o, 2)}, {v(vPA, 2)}, {v(vPS, 2)} op_sel:[0,{e},{e}] op_sel_hi:[1,{e},{e}]")
        for h in range(2):
            for e in range(2):
                for k in (0, 2):
                    o = 8 * h + 4 * e + k
                    RB(f"v_pk_mul_f32 {v(N + o, 2)}, {v(N + o, 2)}, {v(vPG, 2)} op_sel:[0,{e}] op_sel_hi:[1,{e}]")
        nm = 0
        self.bg_setup()
        for rp in range(4):
            for q in range(8):
                idx = rp * 8 + q
                ar = AR + 4 * (idx % 4)
                first = True
                for n in range(q, 8):
                    c = "0" if (rp == 0 and q == 0) else v(ACC + 4 * n, 4)
                    if first:
                        regs = [v(ar, 4)]
                        if q == 0:
                            regs.append(v(BS[rp & 1], 32))
                        A.await_regs(*regs)
                    A(f"v_mfma_f32_16x16x32_bf16 {v(ACC + 4 * n, 4)}, {v(ar, 4)}, {v(BS[rp & 1] + 4 * (n - q), 4)}, {c}")
                    nm += 1
                    if first:
                        first = False
                        if idx + 3 < 32:
                            ldA(idx + 3)
                        if rp < 3 and 0 <= q <= 3:
                            ldB(rp + 1, 2 * q)
                            ldB(rp + 1, 2 * q + 1)
                    if rp == 0:
                        RA.play(A, 2)
                    if rp >= 2 and len(RB.items) > self.o.get("rb_keep", 16):
                        RB.play(A, min(self.o.get("fill_rate", 2), len(RB.items) - self.o.get("rb_keep", 16)))
        RA.play(A, 10 ** 6)
        RB.play(A, 10 ** 6)
        self.stamp(7)
        for n in range(8):
            A(f"ds_write_b128 {v(vRW)}, {v(ACC + 4 * n, 4)} offset:{1280 * n}")
        if self.o.get("w_early", 1):
            A.barrier()
        else:
            A.wait_vm(0)
            A.barrier()
            A(f"s_lshl_b32 {s(t0)}, {s(self.wr['sWB'])}, 7")
            A(f"s_add_u32 {s(t0)}, {s(t0)}, {FL + FQ * 128}")
            self.flag_store(t0)
        self.stamp(30)
        vY = 96
        for h in range(2):
            for w in range(4):
                A(f"ds_read_b128 {v(vY + 16 * h + 4 * w, 4)}, {v(vRR)} offset:{10240 * w + 1280 * h}")
        vOut = 128
        for h in range(2):
            A.await_regs(v(vY + 16 * h, 16))
            ys = [(e, k, vY + 16 * h + 8 * e + k, 8 * h + 4 * e + k) for e in range(2) for k in (0, 2)]
            for e, k, y, o in ys:
                A(f"v_pk_add_f32 {v(y, 2)}, {v(y, 2)}, {v(y + 4, 2)}")
            for e, k, y, o in ys:
                A(f"v_pk_fma_f32 {v(y, 2)}, {v(U + o, 2)}, {v(vPD, 2)}, {v(y, 2)} op_sel:[0,{e},0] op_sel_hi:[1,{e},1]")
            for e, k, y, o in ys:
                A(f"v_pk_fma_f32 {v(y, 2)}, {v(N + o, 2)}, {v(y, 2)}, {v(Q + o, 2)}")
            for r in range(4):
                A(f"v_cvt_pk_bf16_f32 {v(vOut + 4 * h + r)}, {v(vY + 16 * h + r)}, {v(vY + 16 * h + 8 + r)}")
            A(f"buffer_store_dwordx4 {v(vOut + 4 * h, 4)}, {v(vSt)}, {s(R_WS, 4)}, {s(sX if h == 0 else S_OFF + 4)} offen sc1")
        self.stamp(8)
        A(f"s_lshl_b32 {s(t0)}, {s(S_CP)}, 7")
        A(f"s_add_u32 {s(t0)}, {s(t0)}, {FL + F2 * 128}")
        mark = A.vm_count
        A(f"buffer_load_dword {v(vPR)}, {v(vPW)}, {s(R_WS, 4)}, 0 offen sc1")
        A(f"v_lshlrev_b32 {v(vx)}, 3, v0")
        for pl in range(5):
            A(f"s_mov_b32 {s(t1)}, {MODF + pl * MPL + 4 * 1792}")
            A(f"s_mov_b32 {s(t2)}, {MODF + pl * MPL + 3 * 1792}")
            A(f"buffer_load_dwordx2 {v(vPP + 4 * pl, 2)}, {v(vx)}, {s(R_WS, 4)}, {s(t1)} offen sc1")
            A(f"buffer_load_dwordx2 {v(vPP + 4 * pl + 2, 2)}, {v(vx)}, {s(R_WS, 4)}, {s(t2)} offen sc1")
        A(f"v_lshlrev_b32 {v(vy)}, 2, v1")
        A(f"s_lshl_b32 {s(T + 3)}, {s(S_J)}, 8")
        for pl in range(5):
            A(f"s_add_u32 {s(t1)}, {s(T + 3)}, {MODF + pl * MPL + 5 * 1792}")
            A(f"buffer_load_dword {v(vGP + pl)}, {v(vy)}, {s(R_WS, 4)}, {s(t1)} offen sc1")
        A.wait_vm(A.vm_count - mark)
        A.barrier()
        self.flag_store(t0)
        A.await_regs(v(vPP, 20), v(vGP, 5))
        for pl in (1, 3):
            A(f"v_pk_add_f32 {v(vPP + 4 * pl - 4, 2)}, {v(vPP + 4 * pl - 4, 2)}, {v(vPP + 4 * pl, 2)}")
            A(f"v_pk_add_f32 {v(vPP + 4 * pl - 2, 2)}, {v(vPP + 4 * pl - 2, 2)}, {v(vPP + 4 * pl + 2, 2)}")
            A(f"v_add_f32 {v(vGP + pl - 1)}, {v(vGP + pl - 1)}, {v(vGP + pl)}")
        A(f"v_pk_add_f32 {v(vPP, 2)}, {v(vPP, 2)}, {v(vPP + 8, 2)}")
        A(f"v_pk_add_f32 {v(vPP + 2, 2)}, {v(vPP + 2, 2)}, {v(vPP + 10, 2)}")
        A(f"v_add_f32 {v(vGP)}, {v(vGP)}, {v(vGP + 2)}")
        A(f"v_pk_add_f32 {v(vPP, 2)}, {v(vPP, 2)}, {v(vPP + 16, 2)}")
        A(f"v_pk_add_f32 {v(vPP + 2, 2)}, {v(vPP + 2, 2)}, {v(vPP + 18, 2)}")
        A(f"v_add_f32 {v(vGP)}, {v(vGP)}, {v(vGP + 4)}")
        A(f"v_cvt_pk_bf16_f32 {v(vPar)}, {v(vPP)}, {v(vPP + 1)}")
        A(f"v_cvt_pk_bf16_f32 {v(vPar + 2)}, {v(vPP + 2)}, {v(vPP + 3)}")
        A(f"v_cvt_pk_bf16_f32 {v(vPar + 4)}, {v(vGP)}, {v(vGP)}")
        A(f"v_and_b32 {v(vPar + 1)}, {s(S_MASKHI)}, {v(vPar)}")
        A(f"v_lshlrev_b32 {v(vPar)}, 16, {v(vPar)}")
        A(f"v_and_b32 {v(vPar + 3)}, {s(S_MASKHI)}, {v(vPar + 2)}")
        A(f"v_lshlrev_b32 {v(vPar + 2)}, 16, {v(vPar + 2)}")
        A(f"v_and_b32 {v(vPar + 4)}, {s(S_MASKHI)}, {v(vPar + 4)}")
        A(f"v_add_f32 {v(vPar)}, 1.0, {v(vPar)}")
        A(f"v_add_f32 {v(vPar + 1)}, 1.0, {v(vPar + 1)}")
        A(f"v_cvt_pk_bf16_f32 {v(vPar)}, {v(vPar)}, {v(vPar + 1)}")
        A(f"v_and_b32 {v(vPar + 1)}, {s(S_MASKHI)}, {v(vPar)}")
        A(f"v_lshlrev_b32 {v(vPar)}, 16, {v(vPar)}")
        A(f"s_mov_b32 {s(t2)}, 0x{f32bits(LOG2E):08x}")
        A(f"v_lshlrev_b32 {v(vx)}, 4, v0")
        A(f"v_add_u32 {v(vx)}, {L_PAR}, {v(vx)}")
        A(f"v_lshlrev_b32 {v(vy)}, 2, v1")
        A(f"v_add_u32 {v(vy)}, {L_GB}, {v(vy)}")
        for r_ in range(vPar, vPar + 4):
            A(f"v_mul_f32 {v(r_)}, {s(t2)}, {v(r_)}")
        A(f"ds_write_b128 {v(vx)}, {v(vPar, 4)}")
        A(f"ds_write_b32 {v(vy)}, {v(vPar + 4)}")
        self.poll1_check(vPW, vPR)
        self.bg_emit(self.n_burst_t2)
        self.stamp(9)

    def phase_b(self):
        A = self.A
        T = S_T
        t0, t1, t2 = T, T + 1, T + 2
        vPa, vPt = 2, 4
        A(f"v_min_u32 {v(vPa)}, 55, v1")
        A(f"s_mul_i32 {s(t0)}, {s(S_WV)}, 56")
        A(f"v_add_u32 {v(vPa)}, {s(t0)}, {v(vPa)}")
        A(f"v_lshlrev_b32 {v(vPa)}, 7, {v(vPa)}")
        A(f"v_add_u32 {v(vPa)}, {FL + F2 * 128}, {v(vPa)}")
        self.poll(vPa, vPt)
        A.barrier()
        self.stamp(10)
        A(f"s_lshr_b32 {s(t0)}, {s(S_WV)}, 1")
        A(f"s_lshl_b32 {s(t0)}, {s(t0)}, 10")
        A(f"v_add_u32 v{V_W2O[0]}, {s(t0)}, v{V_L16}")
        A(f"s_sub_u32 {s(t0)}, 1024, {s(t0)}")
        A(f"v_add_u32 v{V_W2O[1]}, {s(t0)}, v{V_L16}")
        vL16 = 4
        A(f"v_lshlrev_b32 {v(vL16)}, 4, v1")
        A(f"s_mul_i32 {s(t1)}, {s(S_WV)}, 14336")
        A(f"s_mul_i32 {s(t0)}, {s(S_RB)}, 57344")
        A(f"s_add_u32 {s(t0)}, {s(t0)}, {s(t1)}")
        A(f"s_add_u32 {s(t0)}, {s(t0)}, {X1P}")
        A(f"s_add_u32 {s(t1)}, {s(t1)}, {L_XD}")
        A(f"s_mov_b32 m0, {s(t1)}")
        for i in range(14):
            if i and i % 4 == 0:
                A(f"s_add_u32 {s(t0)}, {s(t0)}, 4096")
                A(f"s_add_u32 m0, m0, 4096")
            A.dma(f"buffer_load_dwordx4 {v(vL16)}, {s(R_WS, 4)}, {s(t0)} offen offset:{1024 * (i % 4)} sc1 lds", f"x{i}")
        skip = self.lab("ep")
        A(f"s_cmp_lg_u32 {s(S_CP)}, 0")
        A(f"s_cbranch_scc1 {skip}")
        A.cond_begin()
        A(f"s_mov_b32 {s(t0)}, 0")
        self.flag_store(t0)
        A.cond_end()
        A.label(skip)
        if self.o.get("pretouch", 0):
            A(f"s_mul_i32 {s(t0)}, {s(S_RB)}, 112")
            A(f"s_lshl_b32 {s(t2)}, {s(S_J)}, 4")
            A(f"s_add_u32 {s(t0)}, {s(t0)}, {s(t2)}")
            A(f"s_lshl_b32 {s(t2)}, {s(S_WV)}, 2")
            A(f"s_add_u32 {s(t0)}, {s(t0)}, {s(t2)}")
            A(f"s_lshl_b32 {s(t0)}, {s(t0)}, 11")
            A(f"s_add_u32 {s(t0)}, {s(t0)}, {HF}")
            A(f"v_lshlrev_b32 v6, 7, v1")
            A(f"buffer_load_dword v252, v6, {s(R_WS, 4)}, {s(t0)} offen")
        X = 88
        vXR = 5
        A(f"v_lshlrev_b32 {v(vXR)}, 2, v1")
        A(f"v_add_u32 {v(vXR)}, {s(t1)}, {v(vXR)}")

        XR = 72

        def ldX(g):
            A.need(f"x{g}")
            r = XR + 4 * (g % 4)
            A(f"ds_read2st64_b32 {v(r, 2)}, {v(vXR)} offset0:{4 * g} offset1:{4 * g + 1}")
            A(f"ds_read2st64_b32 {v(r + 2, 2)}, {v(vXR)} offset0:{4 * g + 2} offset1:{4 * g + 3}")

        vS = 8
        for g in range(3):
            ldX(g)
        self.stamp(27)
        for g in range(14):
            src = XR + 4 * (g % 4)
            A.await_regs(v(src, 4))
            if g + 3 < 14:
                ldX(g + 3)
            for k in range(4):
                e = 4 * g + k
                r = X + 2 * e
                A(f"v_lshlrev_b32 {v(r)}, 16, {v(src + k)}")
                A(f"v_and_b32 {v(r + 1)}, {s(S_MASKHI)}, {v(src + k)}")
            for k in range(4):
                e = 4 * g + k
                r = X + 2 * e
                s1, s2 = vS + 2 * (e & 1), vS + 4 + 2 * (e & 1)
                if e < 2:
                    A(f"v_mov_b32 {v(s1)}, {v(r)}")
                    A(f"v_mov_b32 {v(s1 + 1)}, {v(r + 1)}")
                    A(f"v_pk_mul_f32 {v(s2, 2)}, {v(r, 2)}, {v(r, 2)}")
                else:
                    A(f"v_pk_add_f32 {v(s1, 2)}, {v(s1, 2)}, {v(r, 2)}")
                    A(f"v_pk_fma_f32 {v(s2, 2)}, {v(r, 2)}, {v(r, 2)}, {v(s2, 2)}")
            if g >= 14 - self.o.get("n_bstat", 11):
                self.bg_emit(1)
        A(f"v_pk_add_f32 {v(vS, 2)}, {v(vS, 2)}, {v(vS + 2, 2)}")
        A(f"v_pk_add_f32 {v(vS + 4, 2)}, {v(vS + 4, 2)}, {v(vS + 6, 2)}")
        A(f"v_add_f32 {v(vS)}, {v(vS)}, {v(vS + 1)}")
        A(f"v_add_f32 {v(vS + 1)}, {v(vS + 4)}, {v(vS + 5)}")
        vSW = 5
        A(f"v_lshlrev_b32 {v(vSW)}, 3, v1")
        A(f"v_add_u32 {v(vSW)}, {L_STAT}, {v(vSW)}")
        A(f"s_lshl_b32 {s(t0)}, {s(S_WV)}, 9")
        A(f"v_add_u32 v6, {s(t0)}, {v(vSW)}")
        A(f"ds_write_b64 v6, {v(vS, 2)}")
        self.stamp(28)
        vPb = 6
        vHW = 7
        A(f"v_lshrrev_b32 v22, 5, v1")
        A(f"v_lshlrev_b32 {v(vHW)}, 10, v22")
        A(f"v_and_b32 v22, 31, v1")
        A(f"v_lshl_add_u32 {v(vHW)}, v22, 4, {v(vHW)}")
        A(f"s_mul_i32 {s(t0)}, {s(S_WV)}, {7 * 2048}")
        A(f"v_add_u32 {v(vHW)}, {s(t0)}, {v(vHW)}")
        A(f"s_mul_i32 {s(t0)}, {s(S_WV)}, 896")
        A(f"s_add_u32 {s(t0)}, {s(t0)}, {L_PAR}")
        A.barrier()
        for w in range(4):
            A(f"ds_read_b64 {v(16 + 2 * w, 2)}, {v(vSW)} offset:{512 * w}")
        A(f"v_mov_b32 {v(vPb)}, {s(t0)}")
        def PRq(e):
            k = e % 12
            return 24 + 4 * k if k < 8 else 72 + 4 * (k - 8)
        OUT = 56

        def ldP(e):
            if self.o.get("b_nopar"):
                return
            A(f"ds_read_b128 {v(PRq(e), 4)}, {v(vPb)} offset:{16 * e}")

        for e in range(8):
            ldP(e)
        A("v_pk_add_f32 v[16:17], v[16:17], v[18:19]")
        A("v_pk_add_f32 v[20:21], v[20:21], v[22:23]")
        A("v_pk_add_f32 v[16:17], v[16:17], v[20:21]")
        A(f"s_mov_b32 {s(t0)}, 0x{f32bits(1.0 / 448):08x}")
        A(f"s_mov_b32 {s(t1)}, 0x{f32bits(1e-5):08x}")
        A(f"v_mul_f32 v16, {s(t0)}, v16")
        A(f"v_mul_f32 v17, {s(t0)}, v17")
        A("v_fma_f32 v17, -v16, v16, v17")
        A("v_max_f32 v17, 0, v17")
        A(f"v_add_f32 v17, {s(t1)}, v17")
        vR, vM = 18, 20
        A(f"v_rsq_f32 {v(vR)}, v17")
        A(f"v_mul_f32 {v(vM)}, v16, {v(vR)}")
        pass
        for e0 in range(0, 56, 4):
            A.await_regs(*[v(PRq(e0 + k), 4) for k in range(4)])
            for k in range(8, 12):
                if e0 + k < 56:
                    ldP(e0 + k)
            for e in range(e0, e0 + 4):
                r = X + 2 * e
                A(f"v_pk_fma_f32 {v(r, 2)}, {v(r, 2)}, {v(vR, 2)}, {v(vM, 2)} op_sel_hi:[1,0,0] neg_lo:[0,0,1] neg_hi:[0,0,1]")
            for e in range(e0, e0 + 4):
                r = X + 2 * e
                p = PRq(e)
                A(f"v_pk_fma_f32 {v(r, 2)}, {v(r, 2)}, {v(p, 2)}, {v(p + 2, 2)}")
            sp, k0 = divmod(e0, 8)
            o = OUT + 8 * (sp & 1)
            for e in range(e0, e0 + 4):
                r = X + 2 * e
                A(f"v_cvt_pk_bf16_f32 {v(o + e % 8)}, {v(r)}, {v(r + 1)}")
            if not self.o.get("b_nowr"):
                A(f"ds_write_b128 {v(vHW)}, {v(o + k0, 4)} offset:{L_H2 + 2048 * sp + (512 if k0 else 0)}")
            nbn = self.o.get("n_bnorm", 27)
            g_ = e0 // 4
            self.bg_emit(nbn * (g_ + 1) // 14 - nbn * g_ // 14)
        while self.bg_left("w1") > 0:
            self.bg_emit(1)
        A.barrier()
        self.stamp(11)

    def w2reg(self, f):
        if f < 41:
            return v(88 + 4 * f, 4)
        if f < 49:
            return a(224 + 4 * (f - 41), 4)
        return a(4 * (f - 49), 4)

    def bg_setup(self):
        A = self.A
        t0, t1 = S_T, S_T + 1
        A(f"s_lshl_b32 {s(t0)}, {s(S_J)}, 3")
        A(f"s_lshl_b32 {s(t1)}, {s(S_WV)}, 1")
        A(f"s_add_u32 {s(t0)}, {s(t0)}, {s(t1)}")
        A(f"s_mul_i32 {s(S_W1B)}, {s(t0)}, {28 * 1024}")
        A(f"s_add_u32 {s(S_W1B)}, {s(S_W1B)}, {W1F}")
        A(f"s_lshl_b32 {s(t0)}, {s(S_J)}, 2")
        A(f"s_add_u32 {s(t0)}, {s(t0)}, {s(S_WV)}")
        A(f"s_mul_i32 {s(S_W2B)}, {s(t0)}, {56 * 1024}")
        A(f"s_add_u32 {s(S_W2B)}, {s(S_W2B)}, {W2F}")
        A(f"v_lshlrev_b32 v{V_L16}, 4, v1")
        self.bgq = [("w1", f) for f in range(56)] + [("w2", f) for f in self.w2_order]
        self.bg_cur = {"w1": 0, "w2": 0}

    def bg_emit(self, n=1):
        A = self.A
        if self.o["nobg"]:
            del self.bgq[:n]
            return
        for _ in range(n):
            if not self.bgq:
                return
            kind, f = self.bgq.pop(0)
            base = S_W1B if kind == "w1" else S_W2B
            blk = f // 4
            if blk != self.bg_cur[kind]:
                d = (blk - self.bg_cur[kind]) * 4096
                A(f"s_add_u32 {s(base)}, {s(base)}, {d}" if d > 0 else f"s_sub_u32 {s(base)}, {s(base)}, {-d}")
                self.bg_cur[kind] = blk
            if kind == "w1":
                A(f"buffer_load_dwordx4 {a(4 * f, 4)}, v{V_L16}, {s(R_WS, 4)}, {s(base)} offen offset:{1024 * (f % 4)} sc1")
            else:
                A(f"buffer_load_dwordx4 {self.w2reg(f)}, v{V_W2O[f & 1]}, {s(R_WS, 4)}, {s(base)} offen offset:{2048 * ((f % 4) >> 1)} sc1")

    def bg_left(self, kind):
        return sum(1 for k, _ in self.bgq if k == kind)

    def phase_c(self):
        A = self.A
        t0 = S_T
        if self.o.get("force_global", 1):
            self.phase_c_body(" sc1")
            return
        glob, join = self.lab("cglob"), self.lab("cjoin")
        A(f"s_cmp_eq_u32 {s(S_LOCAL)}, 0")
        A(f"s_cbranch_scc1 {glob}")
        st, q, cur = A.snapshot(), list(self.bgq), dict(self.bg_cur)
        self.phase_c_body("")
        A(f"s_branch {join}")
        A.restore(st)
        self.bgq, self.bg_cur = q, cur
        A.label(glob)
        self.phase_c_body(" sc1")
        A.label(join)

    def phase_c_body(self, sc):
        A = self.A
        T = S_T
        t0, t1 = T, T + 1
        sH, sH2 = S_OFF + 5, S_OFF + 7
        A(f"s_mul_i32 {s(t0)}, {s(S_RB)}, 112")
        A(f"s_lshl_b32 {s(t1)}, {s(S_J)}, 4")
        A(f"s_add_u32 {s(t0)}, {s(t0)}, {s(t1)}")
        A(f"s_lshl_b32 {s(t1)}, {s(S_WV)}, 2")
        A(f"s_add_u32 {s(t0)}, {s(t0)}, {s(t1)}")
        A(f"s_lshl_b32 {s(sH)}, {s(t0)}, 11")
        A(f"s_add_u32 {s(sH)}, {s(sH)}, {HF}")
        A(f"s_add_u32 {s(sH2)}, {s(sH)}, 4096")
        sC = S_OFF + 6
        A(f"s_mov_b32 {s(sC)}, 0x{f32bits(LOG2E):08x}")
        ACC = [24, 40]
        NR = 6
        RING = 4
        TMP = 68
        OUT = 76

        def ring(i):
            k = i % NR
            return RING + 4 * k if k < 5 else 56

        def store(g, off):
            base, o = (sH2, off - 4096) if off >= 4096 else (sH, off)
            return f"buffer_store_dwordx4 {v(OUT + 4 * g, 4)}, v{V_L16}, {s(R_WS, 4)}, {s(base)} offen offset:{o}{sc}"

        def silu_ops(tile):
            ft, th = divmod(tile, 2)
            acc = ACC[tile & 1]
            seq = []
            lag = (0, 2, 3, 5)
            for step in range(16 + lag[-1] + 2):
                for k in range(4):
                    i = step - lag[k]
                    if 0 <= i < 16:
                        x, tmp = acc + i, TMP + (i % 8)
                        if k == 0:
                            seq.append((8, f"v_exp_f32 {v(tmp)}, -{v(x)}"))
                        elif k == 1:
                            seq.append((4, f"v_fma_f32 {v(tmp)}, {v(tmp)}, {s(sC)}, {s(sC)}"))
                        elif k == 2:
                            seq.append((8, f"v_rcp_f32 {v(tmp)}, {v(tmp)}"))
                        else:
                            seq.append((4, f"v_mul_f32 {v(x)}, {v(x)}, {v(tmp)}"))
                i = step - lag[-1] - 1
                if 0 <= i < 16 and i % 2 == 1:
                    g, kk = divmod(i // 2, 4)
                    seq.append((4, f"v_cvt_pk_bf16_f32 {v(OUT + 4 * g + kk)}, {v(acc + i - 1)}, {v(acc + i)}"))
                    if kk == 3:
                        off = (2 * (2 * ft + g) + th) * 1024
                        seq.append((4, store(g, off)))
            return seq

        def ldH(idx):
            tile, st = divmod(idx, 28)
            th = tile & 1
            A(f"ds_read_b128 {v(ring(idx), 4)}, v{V_L16} offset:{L_H2 + 2048 * st + 1024 * th}")

        for i_ in range(NR - 2):
            ldH(i_)
        pend = []
        nbg = self.n_bg_c
        done_bg = 0
        CAP = self.o.get("c_cap", 26)
        for tile in range(4):
            ft = tile >> 1
            acc = ACC[tile & 1]
            for st in range(28):
                idx = tile * 28 + st
                fixed = 0
                if idx % 2 == 0:
                    A.await_regs(*[v(ring(i_), 4) for i_ in (idx, idx + 1) if i_ < 112])
                c = "0" if st == 0 else v(acc, 16)
                A(f"v_mfma_f32_32x32x16_bf16 {v(acc, 16)}, {a(4 * (28 * ft + st), 4)}, {v(ring(idx), 4)}, {c}")
                if idx % 2 == 0:
                    for i_ in (idx + NR - 2, idx + NR - 1):
                        if i_ < 112:
                            ldH(i_)
                            fixed += 4
                else:
                    fixed += 4
                    while done_bg < nbg * (idx + 1) // 112 and self.bgq:
                        assert self.bgq[0][0] == "w1" or self.bgq[0][1] < 49 or idx >= 36
                        self.bg_emit(1)
                        done_bg += 1
                        fixed += 5
                if pend and st >= 2:
                    left_slots = 28 - st
                    need = sum(c_ for c_, _ in pend) - (left_slots - 1) * (CAP - 6)
                    spent = 0
                    while pend and (spent + fixed + pend[0][0] <= CAP or spent < need):
                        cst, ins = pend.pop(0)
                        A(ins)
                        spent += cst
            for cst, ins in pend:
                A(ins)
            pend = silu_ops(tile)
        for _, ins in pend:
            A(ins)
        self.stamp(12)
        A.wait_vm(0)
        A.barrier()
        A(f"s_lshl_b32 {s(t0)}, {s(S_RB)}, 3")
        A(f"s_add_u32 {s(t0)}, {s(t0)}, {s(S_J)}")
        A(f"s_lshl_b32 {s(t0)}, {s(t0)}, 7")
        A(f"s_add_u32 {s(t0)}, {s(t0)}, {FL + F3 * 128}")
        self.flag_store(t0, sc=sc)
        self.bg_emit(len(self.bgq))
        self.stamp(13)

    def phase_d(self):
        A = self.A
        T = S_T
        t0, t1 = T, T + 1
        vPa, vPt = 2, 4
        A(f"v_min_u32 {v(vPa)}, 6, v1")
        A(f"s_lshl_b32 {s(t0)}, {s(S_RB)}, 3")
        A(f"v_add_u32 {v(vPa)}, {s(t0)}, {v(vPa)}")
        A(f"v_lshlrev_b32 {v(vPa)}, 7, {v(vPa)}")
        A(f"v_add_u32 {v(vPa)}, {FL + F3 * 128}, {v(vPa)}")
        self.poll(vPa, vPt)
        self.stamp(14)
        sH = S_OFF
        A(f"s_mul_i32 {s(t0)}, {s(S_RB)}, 112")
        A(f"s_mul_i32 {s(t1)}, {s(S_WV)}, 28")
        A(f"s_add_u32 {s(t0)}, {s(t0)}, {s(t1)}")
        A(f"s_lshl_b32 {s(sH)}, {s(t0)}, 11")
        A(f"s_add_u32 {s(sH)}, {s(sH)}, {HF}")
        NSLOT = 49
        HB = 28
        hl = {0: " sc1", 1: "", 2: " nt", 3: " sc0"}[self.o.get("hload", 0)]
        vH = 4
        A(f"s_and_b32 {s(t0)}, {s(S_WV)}, 1")
        A(f"s_lshl_b32 {s(t0)}, {s(t0)}, 10")
        A(f"v_add_u32 {v(vH)}, {s(t0)}, v{V_L16}")
        A(f"s_sub_u32 {s(t0)}, 1024, {s(t0)}")
        A(f"v_add_u32 {v(vH + 1)}, {s(t0)}, v{V_L16}")

        def hreg(i):
            return a(HB + 4 * (i % NSLOT), 4)

        def ldH(i):
            if i % 4 == 0 and i:
                A(f"s_add_u32 {s(sH)}, {s(sH)}, 4096")
            A(f"buffer_load_dwordx4 {hreg(i)}, {v(vH + (i & 1))}, {s(R_WS, 4)}, {s(sH)} offen offset:{2048 * ((i % 4) >> 1)}{hl}")

        PRE = self.o.get("d_pre", 12)
        for i in range(PRE):
            ldH(i)
        vWr, vRd, vG, vX, vO, vt = 8, 11, 12, 13, 14, 15
        for x in range(1, 4):
            A(f"s_xor_b32 {s(t0)}, {s(S_WV)}, {x}")
            A(f"s_mul_i32 {s(t0)}, {s(t0)}, 12288")
            A(f"s_add_u32 {s(t0)}, {s(t0)}, {L_RED2 + (x - 1) * 4096}")
            A(f"v_add_u32 {v(vWr + x - 1)}, {s(t0)}, v{V_L16}")
        A(f"s_mul_i32 {s(t0)}, {s(S_WV)}, 12288")
        A(f"s_add_u32 {s(t0)}, {s(t0)}, {L_RED2}")
        A(f"v_add_u32 {v(vRd)}, {s(t0)}, v{V_L16}")
        A(f"s_lshr_b32 {s(t0)}, {s(S_WV)}, 1")
        A(f"s_and_b32 {s(t1)}, {s(S_WV)}, 1")
        A(f"v_lshrrev_b32 {v(vt)}, 5, v1")
        t2, t3 = T + 2, T + 3
        A(f"s_lshl_b32 {s(t2)}, {s(t0)}, 7")
        A(f"s_add_u32 {s(t2)}, {s(t2)}, {L_GB}")
        A(f"v_lshl_add_u32 {v(vG)}, {v(vt)}, 4, {s(t2)}")
        A(f"s_lshl_b32 {s(t2)}, {s(S_J)}, 13")
        A(f"s_lshl_b32 {s(t3)}, {s(t0)}, 12")
        A(f"s_add_u32 {s(t2)}, {s(t2)}, {s(t3)}")
        A(f"s_lshl_b32 {s(t3)}, {s(t1)}, 7")
        A(f"s_add_u32 {s(t2)}, {s(t2)}, {s(t3)}")
        A(f"s_add_u32 {s(t2)}, {s(t2)}, {L_XD}")
        A(f"v_lshl_add_u32 {v(vX)}, {v(vt)}, 9, {s(t2)}")
        A(f"v_and_b32 {v(vO)}, 31, v1")
        A(f"v_lshl_add_u32 {v(vX)}, {v(vO)}, 2, {v(vX)}")
        A(f"s_lshl_b32 {s(t2)}, {s(S_RB)}, 6")
        A(f"s_lshl_b32 {s(t3)}, {s(t1)}, 5")
        A(f"s_add_u32 {s(t2)}, {s(t2)}, {s(t3)}")
        A(f"v_add_u32 {v(vO)}, {s(t2)}, {v(vO)}")
        A(f"v_mul_u32_u24 {v(vO)}, 896, {v(vO)}")
        A(f"s_lshl_b32 {s(t2)}, {s(S_J)}, 7")
        A(f"s_lshl_b32 {s(t3)}, {s(t0)}, 6")
        A(f"s_add_u32 {s(t2)}, {s(t2)}, {s(t3)}")
        A(f"v_lshl_add_u32 {v(vt)}, {v(vt)}, 4, {s(t2)}")
        A(f"v_add_u32 {v(vO)}, {v(vO)}, {v(vt)}")
        self.srd(R_A, P_OUT, 2048 * 896)
        ACC = 24
        nxt = PRE
        LAG = self.o.get("d_lag", 6)
        late = []
        for st in range(28):
            for _ in range(2):
                if nxt < 56:
                    ldH(nxt)
                    nxt += 1
            for e1 in range(2):
                i = 2 * st + e1
                for e in range(2):
                    acc = ACC + 16 * (2 * e + e1)
                    c = "0" if st == 0 else v(acc, 16)
                    if e == 0 and e1 == 0 and st >= 28 - LAG:
                        late.append(f"v_mfma_f32_32x32x16_bf16 {v(acc, 16)}, {self.w2reg(2 * st + e)}, {hreg(i)}, {c}")
                        continue
                    if self.o.get("d_nomfma"):
                        A.await_regs(hreg(i))
                        continue
                    A(f"v_mfma_f32_32x32x16_bf16 {v(acc, 16)}, {self.w2reg(2 * st + e)}, {hreg(i)}, {c}")
        self.stamp(15)
        GB, XP = 16, 88
        GB = 104
        X1 = 120
        PT = 144
        for g in range(4):
            A(f"ds_read_b128 {v(GB + 4 * g, 4)}, {v(vG)} offset:{32 * g}")
            A(f"ds_read2st64_b32 {v(X1 + 2 * g, 2)}, {v(vX)} offset0:{4 * g} offset1:{4 * g + 1}")
        for x in range(1, 4):
            for g in range(4):
                if late and g % 2 == 0:
                    A(late.pop(0))
                A(f"ds_write_b128 {v(vWr + x - 1)}, {v(ACC + 16 * x + 4 * g, 4)} offset:{1024 * g}")
        for ins in late:
            A(ins)
        for k in range(8):
            A(f"v_lshlrev_b32 {v(128 + 2 * k)}, 16, {v(X1 + k)}")
            A(f"v_and_b32 {v(129 + 2 * k)}, {s(S_MASKHI)}, {v(X1 + k)}")
        self.stamp(17)
        A.barrier()
        self.stamp(18)
        for k in range(3):
            for g in range(4):
                A(f"ds_read_b128 {v(PT + 16 * k + 4 * g, 4)}, {v(vRd)} offset:{4096 * k + 1024 * g}")
        for k in range(3):
            A.await_regs(v(PT + 16 * k, 16))
            for i in range(8):
                A(f"v_pk_add_f32 {v(ACC + 2 * i, 2)}, {v(ACC + 2 * i, 2)}, {v(PT + 16 * k + 2 * i, 2)}")
        for i in range(8):
            A(f"v_pk_fma_f32 {v(ACC + 2 * i, 2)}, {v(ACC + 2 * i, 2)}, {v(GB + 2 * i, 2)}, {v(128 + 2 * i, 2)}")
        OUT = 192
        for i in range(8):
            A(f"v_cvt_pk_bf16_f32 {v(OUT + i)}, {v(ACC + 2 * i)}, {v(ACC + 2 * i + 1)}")
        for k in (0, 2):
            for i in range(2):
                A(f"v_permlane32_swap_b32 {v(OUT + 2 * k + i)}, {v(OUT + 2 * k + 2 + i)}")
        for k in (0, 2):
            osc = {0: "", 1: " sc1", 2: " nt", 3: " sc0 sc1"}[self.o.get("out_sc", 0)]
            A(f"buffer_store_dwordx4 {v(OUT + 2 * k, 4)}, {v(vO)}, {s(R_A, 4)}, 0 offen offset:{16 * k}{osc}")
        self.stamp(16)

    def helper(self):
        A = self.A
        T = S_T
        t0, t1, t2 = T + 4, T + 5, T + 6
        sH = S_RB
        A.label("L_helper")
        A(f"s_lshl_b32 {s(t0)}, {s(T + 1)}, 3")
        A(f"s_add_u32 {s(sH)}, {s(t0)}, {s(T)}")
        A(f"s_cmp_ge_u32 {s(sH)}, 21")
        A("s_cbranch_scc1 L_helper_flag")
        st_h = A.snapshot()
        self.srd(R_A, P_WM, 448 * 5376)
        self.srd(R_B, P_C, 896)
        A("v_lshrrev_b32 v2, 4, v0")
        A("v_and_b32 v3, 15, v0")
        A("v_mul_u32_u24 v4, 5376, v2")
        A("v_lshl_add_u32 v4, v3, 4, v4")
        A(f"s_lshl_b32 {s(t0)}, {s(sH)}, 8")
        A(f"v_add_u32 v4, {s(t0)}, v4")
        A("v_lshlrev_b32 v5, 2, v0")
        A(f"buffer_load_dword v6, v5, {s(R_B, 4)}, 0 offen")
        W = 16
        A(f"s_mov_b32 {s(t0)}, 0")
        for i in range(28):
            A(f"buffer_load_dwordx4 {v(W + 4 * i, 4)}, v4, {s(R_A, 4)}, {s(t0)} offen")
            if i < 27:
                A(f"s_add_u32 {s(t0)}, {s(t0)}, {16 * 5376}")
        A(f"s_mov_b32 {s(t1)}, 0x{f32bits(-1.4426950408889634):08x}")
        A("v_lshlrev_b32 v8, 16, v6")
        A(f"v_and_b32 v9, {s(S_MASKHI)}, v6")
        for r in (8, 9):
            A(f"v_mul_f32 {v(r + 2)}, {s(t1)}, {v(r)}")
        for r in (8, 9):
            A(f"v_exp_f32 {v(r + 2)}, {v(r + 2)}")
        for r in (8, 9):
            A(f"v_add_f32 {v(r + 2)}, 1.0, {v(r + 2)}")
        for r in (8, 9):
            A(f"v_rcp_f32 {v(r + 2)}, {v(r + 2)}")
        for r in (8, 9):
            A(f"v_mul_f32 {v(r)}, {v(r)}, {v(r + 2)}")
        A("v_cvt_pk_bf16_f32 v6, v8, v9")
        A("v_lshlrev_b32 v8, 16, v6")
        A(f"v_and_b32 v9, {s(S_MASKHI)}, v6")
        A("v_lshlrev_b32 v7, 3, v0")
        A(f"ds_write_b64 v7, v[8:9] offset:{L_SC}")
        A.barrier()
        A("v_lshlrev_b32 v7, 2, v2")
        SC = 128
        for i in range(28):
            A(f"ds_read_b32 {v(SC + 2 * i)}, v7 offset:{L_SC + 64 * i}")
        AC = 192
        U = 200
        for i in range(28):
            for k in range(4):
                src = W + 4 * i + k
                u = U + 2 * k
                A(f"v_lshlrev_b32 {v(u)}, 16, {v(src)}")
                A(f"v_and_b32 {v(u + 1)}, {s(S_MASKHI)}, {v(src)}")
            for k in range(4):
                u = U + 2 * k
                if i == 0:
                    A(f"v_pk_mul_f32 {v(AC + 2 * k, 2)}, {v(u, 2)}, {v(SC + 2 * i, 2)} op_sel_hi:[1,0]")
                else:
                    A(f"v_pk_fma_f32 {v(AC + 2 * k, 2)}, {v(u, 2)}, {v(SC + 2 * i, 2)}, {v(AC + 2 * k, 2)} op_sel_hi:[1,0,1]")
        A("v_mul_u32_u24 v7, 528, v2")
        A("v_lshl_add_u32 v7, v3, 5, v7")
        A(f"ds_write_b128 v7, {v(AC, 4)} offset:{L_MR}")
        A(f"ds_write_b128 v7, {v(AC + 4, 4)} offset:{L_MR + 16}")
        A.barrier()
        A("v_and_b32 v8, 127, v0")
        A("v_lshlrev_b32 v7, 2, v8")
        for g in range(16):
            A(f"ds_read_b32 {v(16 + g)}, v7 offset:{L_MR + 528 * g}")
        for stp in (8, 4, 2, 1):
            for g in range(stp):
                A(f"v_add_f32 {v(16 + g)}, {v(16 + g)}, {v(16 + g + stp)}")
        A("v_cvt_pk_bf16_f32 v16, v16, v16")
        A(f"v_and_b32 v16, {s(S_MASKHI)}, v16")
        A("v_add_f32 v17, 1.0, v16")
        A("v_cvt_pk_bf16_f32 v17, v17, v17")
        A(f"v_and_b32 v17, {s(S_MASKHI)}, v17")
        A(f"s_lshl_b32 {s(t0)}, {s(sH)}, 7")
        A(f"v_add_u32 v8, {s(t0)}, v8")
        A("v_subrev_u32 v9, 448, v8")
        A("v_subrev_u32 v10, 1792, v8")
        A("v_min_u32 v9, v9, v10")
        A("v_mov_b32 v11, 448")
        A("v_cmp_lt_u32 vcc, v9, v11")
        A("s_nop 1")
        A("v_cndmask_b32 v16, v16, v17, vcc")
        A("v_lshlrev_b32 v8, 2, v8")
        A(f"s_mov_b32 {s(t0)}, {MODF}")
        skip = self.lab("ms")
        A(f"s_cmp_ge_u32 {s(S_WV)}, 2")
        A(f"s_cbranch_scc1 {skip}")
        A.cond_begin()
        A(f"buffer_store_dword v16, v8, {s(R_WS, 4)}, {s(t0)} offen sc1")
        A.cond_end()
        A.label(skip)
        A.wait_vm(0)
        A.barrier()
        A.label("L_helper_flag")
        A.wait_lgkm0()
        A(f"s_add_u32 {s(S_NONCE)}, {s(S_NONCE)}, 1")
        A(f"s_lshl_b32 {s(t0)}, {s(sH)}, 7")
        A(f"s_add_u32 {s(t0)}, {s(t0)}, {FL + FM * 128}")
        self.flag_store(t0)
        self.stamp(3)
        if self.o.get("helper_warm", 0):
            A("v_min_u32 v2, 55, v1")
            A(f"s_mul_i32 {s(t0)}, {s(S_WV)}, 56")
            A(f"v_add_u32 v2, {s(t0)}, v2")
            A("v_lshlrev_b32 v2, 7, v2")
            A(f"v_add_u32 v2, {FL + self.o.get('warm_flag', F2) * 128}, v2")
            A(f"s_lshr_b32 {s(t0)}, s2, 3")
            A(f"s_sub_u32 {s(t0)}, {s(t0)}, 28")
            A(f"s_lshl_b32 {s(t0)}, {s(t0)}, 2")
            A(f"s_add_u32 {s(t0)}, {s(t0)}, {s(S_WV)}")
            A("v_lshlrev_b32 v4, 7, v1")
            A(f"s_and_b32 {s(t1)}, s2, 7")
            A(f"s_mul_i32 {s(t1)}, {s(t1)}, {4 * 229376}")
            A(f"s_mul_i32 {s(t2)}, {s(t0)}, {448 * 128}")
            A(f"s_add_u32 {s(t1)}, {s(t1)}, {s(t2)}")
            A(f"s_add_u32 {s(t1)}, {s(t1)}, {HF}")
            self.poll(2, 3)
            for k in range(7):
                A(f"buffer_load_dword {v(32 + k)}, v4, {s(R_WS, 4)}, {s(t1)} offen")
                A(f"s_add_u32 {s(t1)}, {s(t1)}, {64 * 128}")
            A.wait_vm(0)
        self.stamp(4)
        self.stamp_flush()
        A("s_endpgm")

    def build(self):
        A = self.A
        self.prologue()
        if self.stamps:
            A("v_mov_b32 v255, 0")
            A("v_writelane_b32 v255, s76, 31")
        st = A.snapshot()
        self.stamp(0)
        self.phase_p()
        stages = [("p", None), ("a", self.phase_a), ("b", self.phase_b), ("c", self.phase_c), ("d", self.phase_d)]
        done = self.stop == "p"
        for name, fn in stages[1:]:
            if done:
                break
            fn()
            done = self.stop == name
        self.stamp_flush()
        A("s_endpgm")
        A.label("L_exit")
        A("s_endpgm")
        A.label("L_code_end")
        return A.text()


def f32bits(x):
    import struct
    return struct.unpack("<I", struct.pack("<f", x))[0]


HEADER = """; Fused adaLN + H3 long convolution + SiLU MLP, one persistent launch (generated by gen/gen.py).
; Kernarg: q k v shift_k ssm_k ssm_D B_x w1 w2 c w_mod out debug ws (8-byte pointers).
; @launch grid=(224,1,1) block=(256,1,1) lds={lds}
.amdgcn_target "amdgcn-amd-amdhsa--gfx950"
.text
.globl {name}
.p2align 8
.type {name},@function
{name}:
"""

FOOTER = """.section .rodata,"a"
.p2align 6
.amdhsa_kernel {name}
  .amdhsa_next_free_vgpr 512
  .amdhsa_next_free_sgpr 102
  .amdhsa_accum_offset 256
  .amdhsa_group_segment_fixed_size 0
  .amdhsa_kernarg_size 112
  .amdhsa_user_sgpr_count 2
  .amdhsa_user_sgpr_kernarg_segment_ptr 1
  .amdhsa_system_sgpr_workgroup_id_x 1
  .amdhsa_float_denorm_mode_32 3
.end_amdhsa_kernel
"""


def main():
    ap = argparse.ArgumentParser()
    ap.add_argument("--stop", default=None)
    ap.add_argument("--stamps", action="store_true")
    ap.add_argument("-o", default="/dev/stdout")
    ap.add_argument("--opt", action="append", default=[])
    args = ap.parse_args()
    opts = {}
    for kv in args.opt:
        k, val = kv.split("=")
        opts[k] = int(val)
    g = Gen(stop=args.stop, stamps=args.stamps, opts=opts)
    body = g.build()
    txt = HEADER.format(name=NAME, lds=LDS_END) + body + FOOTER.format(name=NAME)
    with open(args.o, "w") as f:
        f.write(txt)
    print(f"instructions: {g.A.n_ins}, auto nops: {g.A.n_nops}, lds {LDS_END}", file=sys.stderr)


if __name__ == "__main__":
    main()
```

```python
import sys
import argparse
from asmdsl import Asm, v, a, s

NAME = "adaLN_cond__ssm_conv_h3__dense_activation_silu__prompt_kernel"

FL = 4096
F1, FQ, FM, F2, F3 = 0, 256, 512, 544, 800
STAMP = 0x30000
T2D = 224 * 8192
KVP = 0x40000
QP = KVP + T2D
STR = QP + T2D
STM = STR + 8192
X1P = STR + 16384
W1F = X1P + T2D
W2F = W1F + 1605632
MODF = W2F + 1605632
MPL = 2688 * 4
HF = MODF + 65536
WS_END = HF + 32 * 112 * 2048
assert WS_END < (1 << 28)

L_H2 = 0
L_TPK = 0
L_TPQ = 8704
L_TPN = 17408
L_WB = 26112
L_UR = 43520
assert L_UR + 9216 <= 57344
L_KC = 57344
CS = 4160
L_RED = L_KC + 8 * CS
L_RED2 = 0
L_XD = 69632
L_PAR = L_RED + 40960
L_STAT = L_PAR + 4096
L_GB = L_STAT + 2048
LDS_END = L_GB + 256
assert L_XD + 57344 <= L_PAR
assert LDS_END <= 163840
L_SC = 0
L_MR = 2048

S_RB, S_J, S_WV, S_CP = 4, 5, 6, 7
P_Q, P_K, P_V, P_SH, P_SK, P_D, P_BX, P_W1, P_W2, P_C, P_WM, P_OUT, P_DBG, P_WS = range(8, 36, 2)
R_WS, R_A, R_B, R_C, R_D = 36, 40, 44, 48, 52
S_NONCE = 56
S_T = 57
S_M = 80
S_MASKHI = 80
S_PERM_LO = 81
S_PERM_HI = 82
S_OFF = 84
S_SPIN = 96
S_PC = 100
S_W1B, S_W2B = 78, 79
S_XCC, S_LOCAL = 83, 95
S_WI = 94
S_MW = 93
V_W2O = (2, 253)
V_L16 = 3
S_ST0 = 98

SRD3 = 0x00020000
LOG2E = 1.4426950408889634
SPIN_MAX = 1 << 17


class Rec:
    def __init__(self):
        self.items = []

    def __call__(self, text):
        self.items.append(text)

    def await_regs(self, *toks):
        self.items.append(("await", toks))

    def play(self, A, n):
        for _ in range(n):
            if not self.items:
                return
            it = self.items.pop(0)
            if isinstance(it, tuple):
                A.await_regs(*it[1])
            else:
                A(it)


class Gen:
    def __init__(self, stop=None, stamps=False, opts=None):
        self.o = dict(cring=3, repf=0, burst_before_flag=0, n_burst_t2=28, n_bg_c=36, bg_b=1, nobg=0)
        self.o.update(opts or {})
        self.A = Asm()
        self.stop = stop
        self.stamps = stamps
        self.nlab = 0
        self.nstamp = 0
        self.n_burst_t2 = self.o["n_burst_t2"]
        self.n_bg_c = self.o["n_bg_c"]
        self.w2_order = list(range(41, 49)) + list(range(28, 41)) + list(range(28)) + list(range(49, 56))

    def lab(self, base):
        self.nlab += 1
        return f"L_{base}_{self.nlab}"

    def srd(self, r, ptr, nbytes, add=None):
        A = self.A
        if add is None:
            A(f"s_mov_b32 {s(r)}, {s(ptr)}")
            A(f"s_mov_b32 {s(r + 1)}, {s(ptr + 1)}")
        else:
            A(f"s_add_u32 {s(r)}, {s(ptr)}, {add}")
            A(f"s_addc_u32 {s(r + 1)}, {s(ptr + 1)}, 0")
        A(f"s_mov_b32 {s(r + 2)}, {nbytes}")
        A(f"s_mov_b32 {s(r + 3)}, 0x{SRD3:08x}")

    def stamp(self, idx):
        if not self.stamps:
            return
        A = self.A
        A(f"s_memrealtime {s(S_ST0, 2)}")
        A.wait_lgkm0()
        A(f"v_writelane_b32 v255, {s(S_ST0)}, {idx}")
        if self.o.get("cyc"):
            A(f"s_memtime {s(S_ST0, 2)}")
            A.wait_lgkm0()
            A(f"v_writelane_b32 v255, {s(S_ST0)}, {32 + idx}")

    def echo(self):
        A = self.A
        ia, ib = self.o["echo_a"], self.o["echo_b"]
        skip, loop = self.lab("echo"), self.lab("echol")
        A("s_cmp_lg_u32 s2, 0")
        A(f"s_cbranch_scc1 {skip}")
        A(f"v_readlane_b32 {s(S_T)}, v255, {ia}")
        A(f"v_readlane_b32 {s(S_T + 1)}, v255, {ib}")
        A(f"s_memrealtime {s(S_ST0, 2)}")
        A.wait_lgkm0()
        A(f"s_sub_u32 {s(S_T)}, {s(S_T + 1)}, {s(S_T)}")
        A(f"s_mul_i32 {s(S_T)}, {s(S_T)}, {self.o.get('echo_mul', 1)}")
        A(f"s_add_u32 {s(S_T)}, {s(S_T)}, {s(S_ST0)}")
        A.label(loop)
        A(f"s_memrealtime {s(S_ST0, 2)}")
        A.wait_lgkm0()
        A(f"s_sub_u32 {s(S_T + 1)}, {s(S_ST0)}, {s(S_T)}")
        A(f"s_cmp_lt_i32 {s(S_T + 1)}, 0")
        A(f"s_cbranch_scc1 {loop}")
        A.label(skip)

    def stamp_flush(self):
        if not self.stamps:
            return
        A = self.A
        if self.o.get("echo_b"):
            self.echo()
            return
        if self.o.get("dbg"):
            skip = self.lab("dbg")
            A(f"s_cmp_lg_u32 {s(S_WV)}, 0")
            A(f"s_cbranch_scc1 {skip}")
            A("s_cmp_eq_u32 s2, 0")
            A(f"s_cselect_b32 {s(S_T)}, 0, 32")
            A(f"s_cselect_b32 {s(S_T + 1)}, 1, 0")
            A("s_cmp_eq_u32 s2, 223")
            A(f"s_cselect_b32 {s(S_T + 1)}, 1, {s(S_T + 1)}")
            A(f"s_cmp_eq_u32 {s(S_T + 1)}, 0")
            A(f"s_cbranch_scc1 {skip}")
            A.cond_begin()
            A(f"v_readlane_b32 {s(S_T + 2)}, v255, 31")
            self.srd(R_A, P_DBG, 256)
            for n_, idx in enumerate((3, 5, 8, 10, 11, 12, 15, 16)):
                A(f"v_readlane_b32 {s(S_T + 3)}, v255, {idx}")
                A(f"s_sub_u32 {s(S_T + 3)}, {s(S_T + 3)}, {s(S_T + 2)}")
                A(f"v_mov_b32 v250, {s(S_T + 3)}")
                A(f"s_add_u32 {s(S_T + 4)}, {s(S_T)}, {4 * n_}")
                A(f"v_mov_b32 v251, {s(S_T + 4)}")
                A("s_mov_b64 exec, 1")
                A(f"buffer_store_dword v250, v251, {s(R_A, 4)}, 0 offen")
                A("s_mov_b64 exec, -1")
            A.cond_end()
            A.label(skip)
            return
        skip = self.lab("sf")
        A(f"s_cmp_lg_u32 {s(S_WV)}, 0")
        A(f"s_cbranch_scc1 {skip}")
        A.cond_begin()
        A("v_lshlrev_b32 v254, 2, v1")
        A(f"s_lshl_b32 {s(S_SPIN + 1)}, s2, 8")
        A(f"s_add_u32 {s(S_SPIN + 1)}, {s(S_SPIN + 1)}, {STAMP}")
        A(f"buffer_store_dword v255, v254, {s(R_WS, 4)}, {s(S_SPIN + 1)} offen")
        A.cond_end()
        A.label(skip)

    def flag_store(self, soff_sgpr, vtmp=252, with_xcc=False, sc=" sc1"):
        A = self.A
        skip = self.lab("fl")
        A(f"s_cmp_lg_u32 {s(S_WV)}, 0")
        A(f"s_cbranch_scc1 {skip}")
        A.cond_begin()
        A(f"v_mov_b32 {v(vtmp)}, {s(S_NONCE)}")
        if with_xcc:
            A(f"v_mov_b32 {v(vtmp + 1)}, {s(S_XCC)}")
        A(f"v_mov_b32 {v(vtmp + 2)}, {s(soff_sgpr)}")
        A("s_mov_b64 exec, 1")
        if with_xcc:
            A(f"buffer_store_dwordx2 {v(vtmp, 2)}, {v(vtmp + 2)}, {s(R_WS, 4)}, 0 offen{sc}")
        else:
            A(f"buffer_store_dword {v(vtmp)}, {v(vtmp + 2)}, {s(R_WS, 4)}, 0 offen{sc}")
        A("s_mov_b64 exec, -1")
        A.cond_end()
        A.label(skip)

    def poll(self, vaddr, vtmp):
        A = self.A
        loop, done = self.lab("poll"), self.lab("polld")
        if not self.o.get("poll_mask", 1):
            A(f"s_mov_b32 {s(S_SPIN)}, 0")
            A.label(loop)
            A(f"buffer_load_dword {v(vtmp)}, {v(vaddr)}, {s(R_WS, 4)}, 0 offen sc1")
            A.wait_vm(0)
            A(f"v_cmp_ne_u32 vcc, {s(S_NONCE)}, {v(vtmp)}")
            A(f"s_add_u32 {s(S_SPIN)}, {s(S_SPIN)}, 1")
            A("s_nop 3")
            A("s_cmp_eq_u64 vcc, 0")
            A(f"s_cbranch_scc1 {done}")
            A(f"s_cmp_lt_u32 {s(S_SPIN)}, {SPIN_MAX}")
            A(f"s_cbranch_scc1 {loop}")
            A.label(done)
            return
        A(f"s_mov_b32 {s(S_SPIN)}, 0")
        A.label(loop)
        A(f"buffer_load_dword {v(vtmp)}, {v(vaddr)}, {s(R_WS, 4)}, 0 offen sc1")
        A.wait_vm(0)
        A(f"v_cmp_ne_u32 vcc, {s(S_NONCE)}, {v(vtmp)}")
        A(f"s_add_u32 {s(S_SPIN)}, {s(S_SPIN)}, 1")
        A("s_nop 3")
        A("s_cmp_eq_u64 vcc, 0")
        A(f"s_cbranch_scc1 {done}")
        A("s_mov_b64 exec, vcc")
        A(f"s_cmp_lt_u32 {s(S_SPIN)}, {SPIN_MAX}")
        A(f"s_cbranch_scc1 {loop}")
        A.label(done)
        A("s_mov_b64 exec, -1")

    def code_prefetch(self):
        A = self.A
        A("v_lshlrev_b32 v253, 7, v0")
        A("v_min_u32 v253, L_code_end-L_pc-4, v253")
        A(f"global_load_dword v254, v253, {s(S_PC, 2)}")

    def finish(self):
        self.A("s_endpgm")

    def prologue(self):
        A = self.A
        A("s_cmp_ge_u32 s2, 224")
        A("s_cbranch_scc1 L_exit")
        if self.stamps:
            A(f"s_memrealtime {s(76, 2)}")
        A(f"s_load_dwordx16 {s(8, 16)}, s[0:1], 0")
        A(f"s_load_dwordx8 {s(24, 8)}, s[0:1], 64")
        A(f"s_load_dwordx4 {s(32, 4)}, s[0:1], 96")
        A(f"s_getpc_b64 {s(S_PC, 2)}")
        A.label("L_pc")
        A("v_lshlrev_b32 v253, 7, v0")
        A("v_min_u32 v253, L_code_end-L_pc-4, v253")
        A(f"global_load_dword v254, v253, {s(S_PC, 2)}")
        A("v_lshrrev_b32 v2, 6, v0")
        A("v_and_b32 v1, 63, v0")
        A(f"s_and_b32 {s(S_T)}, s2, 7")
        A(f"s_lshr_b32 {s(S_T + 1)}, s2, 3")
        A(f"v_readfirstlane_b32 {s(S_WV)}, v2")
        A(f"s_getreg_b32 {s(S_XCC)}, hwreg(HW_REG_XCC_ID, 0, 4)")
        A(f"s_mov_b32 {s(S_MASKHI)}, 0xffff0000")
        A(f"s_mov_b32 {s(S_PERM_LO)}, 0x05040100")
        A(f"s_mov_b32 {s(S_PERM_HI)}, 0x07060302")
        A(f"s_mov_b32 {s(S_WI)}, {s(S_T + 1)}")
        A(f"s_mul_i32 {s(S_T + 2)}, {s(S_WI)}, 37")
        A(f"s_lshr_b32 {s(S_T + 2)}, {s(S_T + 2)}, 8")
        A(f"s_mul_i32 {s(S_T + 3)}, {s(S_T + 2)}, 7")
        A(f"s_sub_u32 {s(S_J)}, {s(S_WI)}, {s(S_T + 3)}")
        A(f"s_lshl_b32 {s(S_RB)}, {s(S_T)}, 2")
        A(f"s_add_u32 {s(S_RB)}, {s(S_RB)}, {s(S_T + 2)}")
        A(f"s_lshl_b32 {s(S_CP)}, {s(S_J)}, 5")
        A(f"s_add_u32 {s(S_CP)}, {s(S_CP)}, {s(S_RB)}")
        A.wait_lgkm0()
        self.srd(R_WS, P_WS, WS_END)
        A(f"s_load_dword {s(S_NONCE)}, {s(P_WS, 2)}, 0")
        A(f"s_mul_i32 {s(S_MW)}, {s(S_T)}, 28")
        A(f"s_add_u32 {s(S_MW)}, {s(S_MW)}, {s(S_WI)}")

    def phase_p(self):
        A = self.A
        T = S_T
        NB = 2048 * 896
        t0, t1, t2 = T + 12, T + 13, T + 14
        vC, vRG, vL16, vOffO, vKa, vSh, vSa, vSb, vRow, vWa, vx = 2, 3, 4, 5, 6, 10, 11, 12, 13, 14, 15
        vK, vV, vSH, vQO, vQ, vW, vKD = 16, 36, 44, 60, 68, 84, 100
        A(f"v_and_b32 {v(vC)}, 7, v1")
        A(f"v_lshrrev_b32 {v(vRG)}, 3, v1")
        A(f"s_lshl_b32 {s(T)}, {s(S_RB)}, 6")
        A(f"s_lshl_b32 {s(T + 1)}, {s(S_WV)}, 4")
        A(f"s_add_u32 {s(T + 1)}, {s(T)}, {s(T + 1)}")
        A(f"v_lshl_add_u32 {v(vOffO)}, {v(vRG)}, 1, {s(T + 1)}")
        A(f"v_mul_u32_u24 {v(vOffO)}, 896, {v(vOffO)}")
        A(f"v_lshl_add_u32 {v(vOffO)}, {v(vC)}, 4, {v(vOffO)}")
        A(f"s_lshl_b32 {s(T + 2)}, {s(S_J)}, 7")
        A(f"v_add_u32 {v(vOffO)}, {s(T + 2)}, {v(vOffO)}")
        kad = {}
        for n_, i in enumerate((0, 1, 2, 4)):
            d = (i - 3) * 896
            kad[i] = vKa + n_
            if d < 0:
                A(f"v_subrev_u32 {v(kad[i])}, {-d}, {v(vOffO)}")
            else:
                A(f"v_add_u32 {v(kad[i])}, {d}, {v(vOffO)}")
        kad[3] = vOffO
        self.srd(R_A, P_K, NB)
        self.srd(R_B, P_V, NB)
        for i in range(5):
            A(f"buffer_load_dwordx4 {v(vK + 4 * i, 4)}, {v(kad[i])}, {s(R_A, 4)}, 0 offen")
        if self.o.get("fine"):
            self.stamp(2)
        for i in range(2):
            A(f"buffer_load_dwordx4 {v(vV + 4 * i, 4)}, {v(vOffO)}, {s(R_B, 4)}, 0 offen offset:{896 * i}")
        if self.o.get("fine"):
            self.stamp(4)
        self.srd(R_C, P_SH, 448 * 8)
        A(f"s_lshl_b32 {s(T + 3)}, {s(S_J)}, 9")
        A(f"v_lshl_add_u32 {v(vSh)}, {v(vC)}, 6, {s(T + 3)}")
        for i in range(4):
            A(f"buffer_load_dwordx4 {v(vSH + 4 * i, 4)}, {v(vSh)}, {s(R_C, 4)}, 0 offen offset:{16 * i}")
        if self.o.get("fine"):
            self.stamp(19)
        self.srd(R_A, P_Q, NB)
        for r in range(2):
            A(f"buffer_load_dwordx4 {v(vQO + 4 * r, 4)}, {v(vOffO)}, {s(R_A, 4)}, 0 offen offset:{896 * r}")
        if self.o.get("fine"):
            self.stamp(20)
        A(f"s_lshl_b32 {s(t1)}, {s(S_J)}, 3")
        A(f"s_add_u32 {s(t0)}, {s(T)}, {s(t1)}")
        A(f"s_lshl_b32 {s(t1)}, {s(S_WV)}, 2")
        A(f"s_add_u32 {s(t0)}, {s(t0)}, {s(t1)}")
        A(f"v_lshrrev_b32 {v(vRow)}, 4, v1")
        A(f"v_add_u32 {v(vRow)}, {s(t0)}, {v(vRow)}")
        A(f"v_mul_u32_u24 {v(vSa)}, 896, {v(vRow)}")
        A(f"v_and_b32 {v(vSb)}, 15, v1")
        A(f"v_lshl_add_u32 {v(vSa)}, {v(vSb)}, 4, {v(vSa)}")
        A(f"v_cmp_gt_u32 vcc, 8, {v(vSb)}")
        A(f"v_add_u32 {v(vSb)}, 768, {v(vSa)}")
        A(f"v_mov_b32 {v(vx)}, -1")
        A(f"v_cndmask_b32 {v(vSb)}, {v(vx)}, {v(vSb)}, vcc")
        for i in range(3):
            A(f"buffer_load_dwordx4 {v(vQ + 4 * i, 4)}, {v(vSa)}, {s(R_A, 4)}, 0 offen offset:{256 * i}")
        A(f"buffer_load_dwordx4 {v(vQ + 12, 4)}, {v(vSb)}, {s(R_A, 4)}, 0 offen")
        if self.o.get("fine"):
            self.stamp(29)
        vM, vSC, vMA, vMT, vMa, vCa = 84, 96, 100, 108, 116, 117
        sCG, sRS = T + 21, T + 5
        self.srd(R_B, P_WM, 448 * 5376)
        self.srd(R_C, P_C, 896)
        A(f"s_mul_i32 {s(sRS)}, {s(S_MW)}, 1561")
        A(f"s_lshr_b32 {s(sRS)}, {s(sRS)}, 16")
        A(f"s_mul_i32 {s(sCG)}, {s(sRS)}, 42")
        A(f"s_sub_u32 {s(sCG)}, {s(S_MW)}, {s(sCG)}")
        A(f"s_mul_i32 {s(t0)}, {s(S_WV)}, 24")
        A(f"v_lshrrev_b32 {v(vMT)}, 3, v1")
        A(f"v_add_u32 {v(vMT)}, {s(t0)}, {v(vMT)}")
        A(f"s_mul_i32 {s(t1)}, {s(sRS)}, 90")
        A(f"v_add_u32 {v(vMT + 1)}, {s(t1)}, {v(vMT)}")
        A(f"v_lshlrev_b32 {v(vCa)}, 1, {v(vMT + 1)}")
        A(f"v_mul_u32_u24 {v(vMa)}, 5376, {v(vMT + 1)}")
        A(f"v_and_b32 {v(vMT + 2)}, 7, v1")
        A(f"v_lshl_add_u32 {v(vMa)}, {v(vMT + 2)}, 4, {v(vMa)}")
        A(f"s_lshl_b32 {s(t1)}, {s(sCG)}, 7")
        A(f"v_add_u32 {v(vMa)}, {s(t1)}, {v(vMa)}")
        A(f"v_cmp_gt_u32 vcc, {90 - 16}, {v(vMT)}")
        A(f"v_add_u32 {v(vMT + 3)}, {16 * 5376}, {v(vMa)}")
        A(f"v_mov_b32 {v(vMT + 4)}, 0x80000000")
        A(f"v_add_u32 {v(vMT + 5)}, {8 * 5376}, {v(vMa)}")
        A(f"v_cndmask_b32 {v(vMT + 3)}, {v(vMT + 4)}, {v(vMT + 3)}, vcc")
        for i in range(3):
            A(f"buffer_load_ushort {v(vSC + i)}, {v(vCa)}, {s(R_C, 4)}, 0 offen offset:{16 * i}")
        for i, ad in enumerate((vMa, vMT + 5, vMT + 3)):
            A(f"buffer_load_dwordx4 {v(vM + 4 * i, 4)}, {v(ad)}, {s(R_B, 4)}, 0 offen")
        self.stamp(1)

        sWB, sSrc, sStride, sA, sR1, sD0, sDS = T + 4, T + 6, T + 7, T + 8, T + 9, T + 10, T + 11
        A(f"s_mul_i32 {s(sWB)}, {s(S_RB)}, 7")
        A(f"s_add_u32 {s(sWB)}, {s(sWB)}, {s(S_J)}")
        A(f"s_lshr_b32 {s(t0)}, {s(sWB)}, 2")
        A(f"s_and_b32 {s(t1)}, {s(sWB)}, 3")
        A(f"s_mul_i32 {s(sSrc)}, {s(t0)}, {16 * 3584}")
        A(f"s_mul_i32 {s(t2)}, {s(t1)}, 896")
        A(f"s_add_u32 {s(sSrc)}, {s(sSrc)}, {s(t2)}")
        A(f"s_mul_i32 {s(t2)}, {s(t1)}, 14")
        A(f"s_add_u32 {s(t2)}, {s(t2)}, {s(S_WV)}")
        A(f"s_mul_i32 {s(t2)}, {s(t2)}, 28")
        A(f"s_add_u32 {s(sD0)}, {s(t2)}, {s(t0)}")
        A(f"s_lshl_b32 {s(sD0)}, {s(sD0)}, 10")
        A(f"s_add_u32 {s(sD0)}, {s(sD0)}, {W1F}")
        u0, u1, u2, uSrc, uD0 = T + 16, T + 17, T + 18, T + 19, T + 20
        A(f"s_sub_u32 {s(u0)}, {s(sWB)}, 112")
        A(f"s_mul_i32 {s(uSrc)}, {s(u0)}, {16 * 896}")
        A(f"s_mul_i32 {s(u1)}, {s(u0)}, 147")
        A(f"s_lshr_b32 {s(u1)}, {s(u1)}, 12")
        A(f"s_mul_i32 {s(u2)}, {s(u1)}, 28")
        A(f"s_sub_u32 {s(u2)}, {s(u0)}, {s(u2)}")
        A(f"s_mul_i32 {s(uD0)}, {s(u1)}, 56")
        A(f"s_lshl_b32 {s(u2)}, {s(u2)}, 1")
        A(f"s_add_u32 {s(uD0)}, {s(uD0)}, {s(u2)}")
        A(f"s_lshr_b32 {s(u1)}, {s(S_WV)}, 1")
        A(f"s_mul_i32 {s(u1)}, {s(u1)}, 224")
        A(f"s_add_u32 {s(uD0)}, {s(uD0)}, {s(u1)}")
        A(f"s_and_b32 {s(u1)}, {s(S_WV)}, 1")
        A(f"s_add_u32 {s(uD0)}, {s(uD0)}, {s(u1)}")
        A(f"s_lshl_b32 {s(uD0)}, {s(uD0)}, 10")
        A(f"s_add_u32 {s(uD0)}, {s(uD0)}, {W2F}")
        A(f"s_cmp_ge_u32 {s(sWB)}, 112")
        A(f"s_cselect_b32 {s(sSrc)}, {s(uSrc)}, {s(sSrc)}")
        A(f"s_cselect_b32 {s(sD0)}, {s(uD0)}, {s(sD0)}")
        A(f"s_mov_b32 {s(sStride)}, 3584")
        A(f"s_cselect_b32 {s(sStride)}, 896, {s(sStride)}")
        A(f"s_cselect_b32 {s(sA)}, 4, 8")
        A(f"s_mov_b32 {s(sR1)}, {4 * 1088}")
        A(f"s_cselect_b32 {s(sR1)}, {8 * 1088}, {s(sR1)}")
        A(f"s_mov_b32 {s(sDS)}, {112 * 1024}")
        A(f"s_cselect_b32 {s(sDS)}, {448 * 1024}, {s(sDS)}")
        A(f"s_cselect_b32 {s(R_D)}, {s(P_W2)}, {s(P_W1)}")
        A(f"s_cselect_b32 {s(R_D + 1)}, {s(P_W2 + 1)}, {s(P_W1 + 1)}")
        A(f"s_mov_b32 {s(R_D + 2)}, 1605632")
        A(f"s_mov_b32 {s(R_D + 3)}, 0x{SRD3:08x}")
        A(f"s_lshl_b32 {s(t0)}, {s(S_WV)}, 2")
        A(f"s_mul_i32 {s(t0)}, {s(t0)}, {s(sStride)}")
        A(f"s_add_u32 {s(sSrc)}, {s(sSrc)}, {s(t0)}")
        A(f"v_lshlrev_b32 {v(vL16)}, 4, v1")
        A(f"v_add_u32 {v(vWa)}, {s(sSrc)}, {v(vL16)}")
        A(f"s_lshl_b32 {s(t0)}, {s(S_CP)}, 13")
        self.srd(R_B, P_SK, 4096, add=s(t0))
        A(f"s_add_u32 {s(t0)}, {s(t0)}, 4096")
        self.srd(R_C, P_SK, 4096, add=s(t0))
        vKA, vKB, vKA2, vKB2 = 132, 133, 134, 135
        A(f"v_lshlrev_b32 {v(vKA)}, 4, v0")
        A(f"v_subrev_u32 {v(vKB)}, 16, {v(vKA)}")
        A(f"v_subrev_u32 {v(vKA)}, 32, {v(vKA)}")
        A(f"v_and_b32 {v(vKA2)}, 1, v1")
        A(f"v_lshlrev_b32 {v(vKA2)}, 4, {v(vKA2)}")
        A(f"v_add_u32 {v(vKB2)}, 4080, {v(vKA2)}")
        vTPW, vWw, vTPR, vStO, vTR0, vTR1, vKW = 136, 137, 138, 139, 140, 141, 142
        A(f"v_add_u32 {v(vKW + 1)}, {4096 + L_KC}, {v(vKA2)}")
        A(f"v_add_u32 {v(vKA2)}, 4064, {v(vKA2)}")
        A(f"v_lshlrev_b32 {v(vKW)}, 4, v0")
        A(f"v_add_u32 {v(vKW)}, {L_KC}, {v(vKW)}")
        A(f"v_mul_u32_u24 {v(vTPW)}, 1088, {v(vC)}")
        A(f"v_lshl_add_u32 {v(vTPW)}, {v(vRG)}, 3, {v(vTPW)}")
        A(f"s_lshl_b32 {s(t0)}, {s(S_WV)}, 6")
        A(f"v_add_u32 {v(vTPW)}, {s(t0)}, {v(vTPW)}")
        A(f"s_mul_i32 {s(t1)}, {s(S_WV)}, {4 * 1088}")
        A(f"v_add_u32 {v(vWw)}, {s(t1)}, {v(vL16)}")
        A(f"v_lshrrev_b32 {v(vStO)}, 4, v0")
        A(f"v_mul_u32_u24 {v(vTPR)}, 272, {v(vStO)}")
        A(f"v_and_b32 {v(vx)}, 15, v0")
        A(f"v_lshl_add_u32 {v(vTPR)}, {v(vx)}, 4, {v(vTPR)}")
        A(f"v_lshlrev_b32 {v(vStO)}, 13, {v(vStO)}")
        A(f"v_lshl_add_u32 {v(vStO)}, {v(vx)}, 4, {v(vStO)}")
        A(f"v_lshrrev_b32 {v(vTR0)}, 5, v1")
        A(f"v_mul_lo_u32 {v(vTR0)}, {v(vTR0)}, {s(sA)}")
        A(f"v_bfe_u32 {v(vx)}, v1, 2, 2")
        A(f"v_add_u32 {v(vTR0)}, {v(vTR0)}, {v(vx)}")
        A(f"v_mul_u32_u24 {v(vTR0)}, 1088, {v(vTR0)}")
        A(f"v_bfe_u32 {v(vx)}, v1, 4, 1")
        A(f"v_lshl_add_u32 {v(vTR0)}, {v(vx)}, 5, {v(vTR0)}")
        A(f"v_and_b32 {v(vx)}, 3, v1")
        A(f"v_lshl_add_u32 {v(vTR0)}, {v(vx)}, 3, {v(vTR0)}")
        A(f"v_add_u32 {v(vTR0)}, {s(t0)}, {v(vTR0)}")
        A(f"v_add_u32 {v(vTR1)}, {s(sR1)}, {v(vTR0)}")
        sTile = S_OFF
        A(f"s_lshl_b32 {s(sTile)}, {s(S_J)}, 18")
        A(f"s_lshl_b32 {s(t0)}, {s(S_RB)}, 8")
        A(f"s_add_u32 {s(sTile)}, {s(sTile)}, {s(t0)}")
        A(f"v_lshlrev_b32 {v(vRow)}, 2, {v(vRow)}")
        A("v_mov_b32 v240, 0")
        A("v_mov_b32 v241, 0")
        A("v_lshlrev_b32 v242, 3, v1")
        for e in range(2):
            A(f"ds_write_b64 v242, v[240:241] offset:{L_UR + 4608 * e + 4096}")

        KG = [120, 126, 176, 246] if self.o.get("k_early", 1) else [vKD + 8 * g_ for g_ in range(4)]

        def k_loads():
            for e in range(2):
                R = R_B if e == 0 else R_C
                for ps in range(2):
                    b = KG[2 * e + ps]
                    A(f"buffer_load_dwordx4 {v(b, 4)}, {v(vKA if ps == 0 else vKA2)}, {s(R, 4)}, 0 offen")
                    A(f"buffer_load_dwordx2 {v(b + 4, 2)}, {v(vKB if ps == 0 else vKB2)}, {s(R, 4)}, 0 offen")

        vW = 216

        def w_raw_loads():
            for i in range(4):
                A(f"buffer_load_dwordx4 {v(vW + 4 * i, 4)}, {v(vWa)}, {s(R_D, 4)}, 0 offen")
                if i < 3:
                    A(f"v_add_u32 {v(vWa)}, {s(sStride)}, {v(vWa)}")

        if self.o.get("k_early", 1):
            k_loads()
        if self.o.get("wraw_early", 0):
            w_raw_loads()
        TT, AC, VU, vO = 144, 184, 200, 232
        if self.o.get("p_dot2", 1):
            A.await_regs(v(vK, 20), v(vSH, 16))
            self.stamp(21)
            for p in range(4):
                for e, sel in ((0, S_PERM_LO), (1, S_PERM_HI)):
                    for i in range(4):
                        A(f"v_perm_b32 {v(TT + 8 * p + 4 * e + i)}, {v(vK + 4 * i + p)}, {v(vK + 4 * (i + 1) + p)}, {s(sel)}")
            for row in range(2):
                for p in range(4):
                    for e in range(2):
                        w = vSH + 2 * (2 * p + e)
                        A(f"v_dot2_f32_bf16 {v(AC + 4 * p + 2 * row + e)}, {v(TT + 8 * p + 4 * e + row)}, {v(w + 1)}, 0")
            for row in range(2):
                for p in range(4):
                    for e in range(2):
                        w = vSH + 2 * (2 * p + e)
                        d = AC + 4 * p + 2 * row + e
                        A(f"v_dot2_f32_bf16 {v(d)}, {v(TT + 8 * p + 4 * e + 2 + row)}, {v(w)}, {v(d)}")
            for row in range(2):
                for p in range(4):
                    src = vV + 4 * row + p
                    A(f"v_lshlrev_b32 {v(VU + 4 * p + 2 * row)}, 16, {v(src)}")
                    A(f"v_and_b32 {v(VU + 4 * p + 2 * row + 1)}, {s(S_MASKHI)}, {v(src)}")
            for p in range(4):
                for row in range(2):
                    acc = AC + 4 * p + 2 * row
                    A(f"v_pk_mul_f32 {v(acc, 2)}, {v(acc, 2)}, {v(VU + 4 * p + 2 * row, 2)}")
            for p in range(4):
                for row in range(2):
                    acc = AC + 4 * p + 2 * row
                    A(f"v_cvt_pk_bf16_f32 {v(vO + 2 * p + row)}, {v(acc)}, {v(acc + 1)}")
        for p in range(4):
            A(f"ds_write_b64 {v(vTPW)}, {v(vO + 2 * p, 2)} offset:{L_TPK + 272 * p}")
        self.stamp(22)
        A(f"v_add_u32 {v(vx)}, {L_TPQ}, {v(vTPW)}")
        A.await_regs(v(vQO, 8))
        for p in range(4):
            A(f"ds_write2_b32 {v(vx)}, {v(vQO + p)}, {v(vQO + 4 + p)} offset0:{68 * p} offset1:{68 * p + 1}")
        A.await_regs(v(vQ, 16))
        m, q2 = 240, 244
        A(f"s_mov_b32 {s(t2)}, 0x3f803f80")
        for i in range(16):
            d1, d2 = m + (i & 1), q2 + (i & 1)
            A(f"v_dot2_f32_bf16 {v(d1)}, {v(vQ + i)}, {s(t2)}, {'0' if i < 2 else v(d1)}")
            A(f"v_dot2_f32_bf16 {v(d2)}, {v(vQ + i)}, {v(vQ + i)}, {'0' if i < 2 else v(d2)}")
        A(f"v_add_f32 {v(m)}, {v(m)}, {v(m + 1)}")
        A(f"v_add_f32 {v(q2)}, {v(q2)}, {v(q2 + 1)}")
        for mod in ("quad_perm:[1,0,3,2]", "quad_perm:[2,3,0,1]", "row_half_mirror", "row_mirror"):
            for c_ in (m, q2):
                A(f"v_add_f32_dpp {v(c_)}, {v(c_)}, {v(c_)} {mod} row_mask:0xf bank_mask:0xf")
        A(f"s_mov_b32 {s(t0)}, 0x{f32bits(1.0 / 448):08x}")
        A(f"s_mov_b32 {s(t1)}, 0x{f32bits(1e-5):08x}")
        A(f"v_mul_f32 {v(m)}, {s(t0)}, {v(m)}")
        A(f"v_mul_f32 {v(q2)}, {s(t0)}, {v(q2)}")
        A(f"v_fma_f32 {v(q2)}, -{v(m)}, {v(m)}, {v(q2)}")
        A(f"v_max_f32 {v(q2)}, 0, {v(q2)}")
        A(f"v_add_f32 {v(q2)}, {s(t1)}, {v(q2)}")
        A(f"v_rsq_f32 {v(q2)}, {v(q2)}")
        A.barrier()
        self.stamp(23)
        vRB = 16
        for i in range(2):
            A(f"ds_read_b128 {v(vRB + 4 * i, 4)}, {v(vTPR)} offset:{L_TPK + 4352 * i}")
        for i in range(2):
            A(f"ds_read_b128 {v(vRB + 8 + 4 * i, 4)}, {v(vTPR)} offset:{L_TPQ + 4352 * i}")
        A(f"v_mul_f32 {v(m)}, {v(m)}, {v(q2)}")
        A(f"s_add_u32 {s(t0)}, {s(sTile)}, {KVP}")
        A(f"s_add_u32 {s(t1)}, {s(sTile)}, {KVP + 131072}")
        A(f"s_add_u32 {s(t2)}, {s(sTile)}, {QP}")
        A(f"s_add_u32 {s(u0)}, {s(sTile)}, {QP + 131072}")
        A.await_regs(v(vRB, 8))
        A(f"buffer_store_dwordx4 {v(vRB, 4)}, {v(vStO)}, {s(R_WS, 4)}, {s(t0)} offen sc1")
        A(f"buffer_store_dwordx4 {v(vRB + 4, 4)}, {v(vStO)}, {s(R_WS, 4)}, {s(t1)} offen sc1")
        A.await_regs(v(vRB + 8, 8))
        A(f"buffer_store_dwordx4 {v(vRB + 8, 4)}, {v(vStO)}, {s(R_WS, 4)}, {s(t2)} offen sc1")
        A(f"buffer_store_dwordx4 {v(vRB + 12, 4)}, {v(vStO)}, {s(R_WS, 4)}, {s(u0)} offen sc1")
        A(f"s_mov_b32 {s(t0)}, {STR}")
        A(f"s_mov_b32 {s(t1)}, {STM}")
        A(f"s_mov_b32 exec_lo, 0x00010001")
        A(f"s_mov_b32 exec_hi, 0x00010001")
        A(f"buffer_store_dword {v(q2)}, {v(vRow)}, {s(R_WS, 4)}, {s(t0)} offen sc1")
        A(f"buffer_store_dword {v(m)}, {v(vRow)}, {s(R_WS, 4)}, {s(t1)} offen sc1")
        A("s_mov_b64 exec, -1")
        self.stamp(24)
        def batch2():
            if not self.o.get("k_early", 1):
                k_loads()
            if not self.o.get("wraw_early", 0):
                w_raw_loads()

        mark = A.vm_count
        if not self.o.get("b2_late", 1):
            batch2()
        A(f"s_add_u32 {s(S_NONCE)}, {s(S_NONCE)}, 1")
        A(f"s_lshl_b32 {s(t0)}, {s(S_CP)}, 7")
        A(f"s_add_u32 {s(t0)}, {s(t0)}, {FL + F1 * 128}")
        A.wait_vm(A.vm_count - mark)
        A.barrier()
        self.flag_store(t0)
        if self.o.get("b2_late", 1):
            batch2()
        self.stamp(3)
        L_MP = L_TPN
        A(f"s_mov_b32 {s(t1)}, 0x{f32bits(-LOG2E):08x}")
        A.await_regs(v(vSC, 3))
        for i in range(3):
            A(f"v_lshlrev_b32 {v(vSC + i)}, 16, {v(vSC + i)}")
        for i in range(3):
            A(f"v_mul_f32 {v(vMT + i)}, {s(t1)}, {v(vSC + i)}")
        for i in range(3):
            A(f"v_exp_f32 {v(vMT + i)}, {v(vMT + i)}")
        for i in range(3):
            A(f"v_add_f32 {v(vMT + i)}, 1.0, {v(vMT + i)}")
        for i in range(3):
            A(f"v_rcp_f32 {v(vMT + i)}, {v(vMT + i)}")
        A(f"s_lshl_b32 {s(t2)}, {s(S_WV)}, 2")
        A(f"v_lshrrev_b32 {v(vCa)}, 4, v1")
        A(f"v_add_u32 {v(vCa)}, {s(t2)}, {v(vCa)}")
        for i in range(3):
            A(f"v_mul_f32 {v(vSC + i)}, {v(vSC + i)}, {v(vMT + i)}")
        A(f"v_mul_u32_u24 {v(vCa)}, 272, {v(vCa)}")
        A(f"v_and_b32 {v(vMa)}, 7, v1")
        for i in range(3):
            A(f"v_cvt_pk_bf16_f32 {v(vSC + i)}, {v(vSC + i)}, {v(vSC + i)}")
        A(f"v_lshl_add_u32 {v(vCa)}, {v(vMa)}, 5, {v(vCa)}")
        for i in range(3):
            A(f"v_and_b32 {v(vSC + i)}, {s(S_MASKHI)}, {v(vSC + i)}")
        A(f"v_add_u32 {v(vCa)}, {L_MP}, {v(vCa)}")
        A.await_regs(v(vM, 12))
        for i in range(3):
            for k in range(4):
                A(f"v_lshlrev_b32 {v(vMT + 2 * k)}, 16, {v(vM + 4 * i + k)}")
                A(f"v_and_b32 {v(vMT + 2 * k + 1)}, {s(S_MASKHI)}, {v(vM + 4 * i + k)}")
            sc = vSC + i
            base, e = (sc, 0) if sc % 2 == 0 else (sc - 1, 1)
            for k in range(4):
                if i == 0:
                    A(f"v_pk_mul_f32 {v(vMA + 2 * k, 2)}, {v(vMT + 2 * k, 2)}, {v(base, 2)} op_sel:[0,{e}] op_sel_hi:[1,{e}]")
                else:
                    A(f"v_pk_fma_f32 {v(vMA + 2 * k, 2)}, {v(vMT + 2 * k, 2)}, {v(base, 2)}, {v(vMA + 2 * k, 2)} op_sel:[0,{e},0] op_sel_hi:[1,{e},1]")
        for k in range(8):
            A(f"v_add_f32_dpp {v(vMA + k)}, {v(vMA + k)}, {v(vMA + k)} row_ror:8 row_mask:0xf bank_mask:0xf")
        A(f"ds_write_b128 {v(vCa)}, {v(vMA, 4)}")
        A(f"ds_write_b128 {v(vCa)}, {v(vMA + 4, 4)} offset:16")
        vx4 = 48
        for e in range(2):
            for ps in range(2):
                b = KG[2 * e + ps]
                base = e * 4 * CS
                ad = vKW + ps
                A.await_regs(v(b, 6))
                for i in range(4):
                    A(f"v_alignbit_b32 {v(vx4 + i)}, {v(b + i + 1)}, {v(b + i)}, 16")
                for i in range(4):
                    A(f"v_mov_b32 {v(vx4 + 4 + i)}, {v(b + i + 1)}")
                for i in range(4):
                    A(f"v_alignbit_b32 {v(vx4 + 8 + i)}, {v(b + i + 2)}, {v(b + i + 1)}, 16")
                A(f"ds_write_b128 {v(ad)}, {v(b, 4)} offset:{base}")
                A(f"ds_write_b128 {v(ad)}, {v(vx4, 4)} offset:{base + CS}")
                A(f"ds_write_b128 {v(ad)}, {v(vx4 + 4, 4)} offset:{base + 2 * CS}")
                A(f"ds_write_b128 {v(ad)}, {v(vx4 + 8, 4)} offset:{base + 3 * CS}")
        A.await_regs(v(vW, 16))
        for i in range(4):
            A(f"ds_write_b128 {v(vWw)}, {v(vW + 4 * i, 4)} offset:{L_WB + 1088 * i}")
        A.barrier()
        self.stamp(25)
        for i in range(4):
            A(f"ds_read_b64_tr_b16 {v(220 + 4 * i, 2)}, {v(vTR0)} offset:{L_WB + 256 * i}")
            A(f"ds_read_b64_tr_b16 {v(220 + 4 * i + 2, 2)}, {v(vTR1)} offset:{L_WB + 256 * i}")
        vF0, vJ = 100, 118
        A(f"v_lshlrev_b32 {v(vJ)}, 2, v1")
        A(f"v_add_u32 {v(vJ + 1)}, {L_TPN}, {v(vJ)}")
        for g_ in range(16):
            A(f"ds_read_b32 {v(vF0 + g_)}, {v(vJ + 1)} offset:{272 * g_}")
        A(f"s_mul_i32 {s(sRS)}, {s(sRS)}, {MPL}")
        A(f"s_lshl_b32 {s(sCG)}, {s(sCG)}, 8")
        A(f"s_add_u32 {s(sRS)}, {s(sRS)}, {s(sCG)}")
        A(f"s_add_u32 {s(sRS)}, {s(sRS)}, {MODF}")
        A.await_regs(v(vF0, 16))
        for stp in (8, 4, 2, 1):
            for g_ in range(stp):
                A(f"v_add_f32 {v(vF0 + g_)}, {v(vF0 + g_)}, {v(vF0 + g_ + stp)}")
        self.wr = dict(sWB=sWB, sD0=sD0, sDS=sDS)
        if self.o.get("w_early", 1):
            self.w_stores()
        skipm = self.lab("ms")
        A(f"s_cmp_lg_u32 {s(S_WV)}, 0")
        A(f"s_cbranch_scc1 {skipm}")
        A.cond_begin()
        A(f"buffer_store_dword {v(100)}, {v(118)}, {s(R_WS, 4)}, {s(sRS)} offen sc1")
        A.cond_end()
        A.label(skipm)

        self.stamp(26)

    def w_stores(self):
        A = self.A
        vF, sD0, sDS = 220, self.wr["sD0"], self.wr["sDS"]
        A.await_regs(v(vF, 16))
        for i in range(3):
            A(f"buffer_store_dwordx4 {v(vF + 4 * i, 4)}, v4, {s(R_WS, 4)}, {s(sD0)} offen sc1")
            A(f"s_add_u32 {s(sD0)}, {s(sD0)}, {s(sDS)}")
        skip = self.lab("w4")
        A(f"s_cmp_ge_u32 {s(S_WV)}, 2")
        A(f"s_cbranch_scc1 {skip}")
        A.cond_begin()
        A(f"buffer_store_dwordx4 {v(vF + 12, 4)}, v4, {s(R_WS, 4)}, {s(sD0)} offen sc1")
        A.cond_end()
        A.label(skip)

    def poll2_issue(self, va, vb, vt):
        A = self.A
        A(f"buffer_load_dword {v(vt)}, {v(va)}, {s(R_WS, 4)}, 0 offen sc1")
        A(f"buffer_load_dword {v(vt + 1)}, {v(vb)}, {s(R_WS, 4)}, 0 offen sc1")

    def poll1_check(self, va, vt):
        A = self.A
        done = self.lab("p1d")
        A(f"v_cmp_ne_u32 vcc, {s(S_NONCE)}, {v(vt)}")
        A("s_nop 1")
        A("s_cmp_eq_u64 vcc, 0")
        A(f"s_cbranch_scc1 {done}")
        st = A.snapshot()
        self.poll(va, vt)
        A.restore(st)
        A.label(done)

    def poll2_check(self, va, vb, vt):
        A = self.A
        loop, done = self.lab("p2"), self.lab("p2d")
        A(f"v_cmp_ne_u32 vcc, {s(S_NONCE)}, {v(vt)}")
        A(f"v_cmp_ne_u32 {s(S_SPIN + 2, 2)}, {s(S_NONCE)}, {v(vt + 1)}")
        A(f"s_mov_b32 {s(S_SPIN)}, 0")
        A("s_nop 1")
        A(f"s_or_b64 vcc, vcc, {s(S_SPIN + 2, 2)}")
        A("s_cmp_eq_u64 vcc, 0")
        A(f"s_cbranch_scc1 {done}")
        st = A.snapshot()
        A.label(loop)
        A(f"buffer_load_dword {v(vt)}, {v(va)}, {s(R_WS, 4)}, 0 offen sc1")
        A(f"buffer_load_dword {v(vt + 1)}, {v(vb)}, {s(R_WS, 4)}, 0 offen sc1")
        A.wait_vm(0)
        A(f"v_cmp_ne_u32 vcc, {s(S_NONCE)}, {v(vt)}")
        A(f"v_cmp_ne_u32 {s(S_SPIN + 2, 2)}, {s(S_NONCE)}, {v(vt + 1)}")
        A(f"s_add_u32 {s(S_SPIN)}, {s(S_SPIN)}, 1")
        A("s_nop 1")
        A(f"s_or_b64 vcc, vcc, {s(S_SPIN + 2, 2)}")
        A("s_cmp_eq_u64 vcc, 0")
        A(f"s_cbranch_scc1 {done}")
        A(f"s_cmp_lt_u32 {s(S_SPIN)}, {SPIN_MAX}")
        A(f"s_cbranch_scc1 {loop}")
        A.restore(st)
        A.label(done)

    def phase_a(self):
        A = self.A
        T = S_T
        t0, t1, t2 = T, T + 1, T + 2
        vPa, vPt, vx, vy = 2, 3, 16, 17
        A(f"v_min_u32 {v(vPa)}, 55, v1")
        A(f"s_mul_i32 {s(t0)}, {s(S_WV)}, 56")
        A(f"v_add_u32 {v(vPa)}, {s(t0)}, {v(vPa)}")
        A(f"v_lshlrev_b32 {v(vPa)}, 7, {v(vPa)}")
        A(f"v_add_u32 {v(vPa)}, {FL + F1 * 128}, {v(vPa)}")
        vL16 = 4
        sKV = S_OFF + 2
        A(f"s_lshl_b32 {s(sKV)}, {s(S_CP)}, 13")
        A(f"s_lshl_b32 {s(t2)}, {s(S_WV)}, 11")
        A(f"s_add_u32 {s(sKV)}, {s(sKV)}, {s(t2)}")
        vUW, vaA, vaB = 5, 6, 7
        A(f"s_lshl_b32 {s(t0)}, {s(S_WV)}, 10")
        A(f"s_sub_u32 {s(t0)}, {4088 - 512}, {s(t0)}")
        A(f"v_lshlrev_b32 {v(vx)}, 3, v1")
        A(f"v_sub_u32 {v(vUW)}, {s(t0)}, {v(vx)}")
        A(f"v_and_b32 {v(vx)}, 15, v1")
        A(f"v_add_u32 {v(vx)}, 1, {v(vx)}")
        A(f"v_and_b32 {v(vy)}, 3, {v(vx)}")
        A(f"v_sub_u32 {v(vx)}, {v(vx)}, {v(vy)}")
        A(f"v_lshlrev_b32 {v(vx)}, 1, {v(vx)}")
        A(f"v_mul_u32_u24 {v(vy)}, {CS}, {v(vy)}")
        A(f"v_add_u32 {v(vaA)}, {v(vx)}, {v(vy)}")
        A(f"v_lshrrev_b32 {v(vy)}, 4, v1")
        A(f"v_lshl_add_u32 {v(vaA)}, {v(vy)}, 4, {v(vaA)}")
        A(f"s_lshr_b32 {s(t0)}, {s(S_WV)}, 1")
        A(f"s_and_b32 {s(t1)}, {s(S_WV)}, 1")
        A(f"s_mul_i32 {s(t2)}, {s(t0)}, {4 * CS}")
        A(f"s_lshl_b32 {s(t1)}, {s(t1)}, 8")
        A(f"s_add_u32 {s(t2)}, {s(t2)}, {s(t1)}")
        A(f"s_add_u32 {s(t2)}, {s(t2)}, {L_KC}")
        A(f"v_add_u32 {v(vaA)}, {s(t2)}, {v(vaA)}")
        A(f"v_and_b32 {v(vx)}, 15, v1")
        A(f"v_lshlrev_b32 {v(vx)}, 5, {v(vx)}")
        A(f"v_lshlrev_b32 {v(vy)}, 4, {v(vy)}")
        A(f"v_sub_u32 {v(vaB)}, {v(vy)}, {v(vx)}")
        A(f"s_mul_i32 {s(t2)}, {s(t0)}, 4608")
        A(f"s_add_u32 {s(t2)}, {s(t2)}, {s(t1)}")
        A(f"s_add_u32 {s(t2)}, {s(t2)}, {L_UR + 480}")
        A(f"v_add_u32 {v(vaB)}, {s(t2)}, {v(vaB)}")
        vPW, vPM, vPR = 18, 19, 20
        A(f"v_add_u32 {v(vPW)}, {(FQ - F1) * 128}, {v(vPa)}")
        A(f"s_add_u32 {s(t1)}, {s(sKV)}, {KVP}")
        self.poll(vPa, vPt)
        A.barrier()
        if self.o.get("w_early", 1):
            A(f"s_lshl_b32 {s(t0)}, {s(self.wr['sWB'])}, 7")
            A(f"s_add_u32 {s(t0)}, {s(t0)}, {FL + FQ * 128}")
            self.flag_store(t0)
        self.stamp(5)
        vKV = 8
        for h in range(2):
            A(f"buffer_load_dwordx4 {v(vKV + 4 * h, 4)}, {v(vL16)}, {s(R_WS, 4)}, {s(t1)} offen offset:{1024 * h} sc1")
        RA = Rec()
        f0, f1, f2, fx, fy = T + 15, T + 16, T + 17, 184, 185
        vQn, vRs, vMs = 144, 152, 160
        RA(f"s_add_u32 {s(f1)}, {s(sKV)}, {QP}")
        for h in range(2):
            RA(f"buffer_load_dwordx4 {v(vQn + 4 * h, 4)}, {v(vL16)}, {s(R_WS, 4)}, {s(f1)} offen offset:{1024 * h} sc1")
        RA(f"s_lshl_b32 {s(f0)}, {s(S_WV)}, 11")
        RA(f"s_add_u32 {s(f1)}, {s(f0)}, {STR}")
        RA(f"s_add_u32 {s(f2)}, {s(f0)}, {STM}")
        for h in range(2):
            RA(f"buffer_load_dwordx4 {v(vRs + 4 * h, 4)}, {v(vL16)}, {s(R_WS, 4)}, {s(f1)} offen offset:{1024 * h} sc1")
            RA(f"buffer_load_dwordx4 {v(vMs + 4 * h, 4)}, {v(vL16)}, {s(R_WS, 4)}, {s(f2)} offen offset:{1024 * h} sc1")
        vPS, vPA, vPG, vPD, vPar = 168, 170, 172, 174, 176
        vMP, vPP, vGP = 186, 188, 208
        self.A = RA
        self.srd(R_A, P_D, 896)
        self.A = A
        RA(f"s_lshl_b32 {s(f0)}, {s(S_CP)}, 2")
        RA(f"v_mov_b32 {v(fy)}, {s(f0)}")
        RA(f"buffer_load_dword {v(vPD + 1)}, {v(fy)}, {s(R_A, 4)}, 0 offen")
        if not self.o.get("w_early", 1):
            self.w_stores()
        vP = 22
        A.await_regs(v(vKV, 8))
        for h in range(2):
            d = vKV + 4 * h
            for e, sel in ((0, S_PERM_LO), (1, S_PERM_HI)):
                o = vP + 4 * h + 2 * e
                A(f"v_perm_b32 {v(o)}, {v(d + 2)}, {v(d + 3)}, {s(sel)}")
                A(f"v_perm_b32 {v(o + 1)}, {v(d)}, {v(d + 1)}, {s(sel)}")
        for h in range(2):
            for e in range(2):
                o = vP + 4 * h + 2 * e
                A(f"ds_write_b64 {v(vUW)}, {v(o, 2)} offset:{L_UR + 4608 * e + (512 if h == 0 else 0)}")
        A.barrier()
        self.stamp(6)
        ACC = 32
        BS = [64, 96]
        AR = 128

        def ldB(rp, m):
            A(f"ds_read_b128 {v(BS[rp & 1] + 4 * m, 4)}, {v(vaB)} offset:{64 * rp + 512 * (7 - m)}")

        def ldA(idx):
            rp, q = divmod(idx, 8)
            r = AR + 4 * (idx % 4)
            A(f"ds_read_b64 {v(r, 2)}, {v(vaA)} offset:{64 * rp + 512 * q}")
            A(f"ds_read_b64 {v(r + 2, 2)}, {v(vaA)} offset:{64 * rp + 512 * q + 8}")

        ldA(0)
        for m in range(8):
            ldB(0, m)
        ldA(1)
        ldA(2)
        RB = Rec()
        vRW, vRR, vSt = 183, 19, 182
        RB(f"v_and_b32 {v(fx)}, 15, v1")
        RB(f"v_mul_u32_u24 {v(vRW)}, 80, {v(fx)}")
        RB(f"v_lshrrev_b32 {v(fy)}, 4, v1")
        RB(f"v_lshl_add_u32 {v(vRW)}, {v(fy)}, 4, {v(vRW)}")
        RB(f"s_mul_i32 {s(f0)}, {s(S_WV)}, 10240")
        RB(f"s_add_u32 {s(f0)}, {s(f0)}, {L_RED}")
        RB(f"v_add_u32 {v(vRW)}, {s(f0)}, {v(vRW)}")
        RB(f"v_mul_u32_u24 {v(vSt)}, 57344, {v(fy)}")
        RB(f"v_lshl_add_u32 {v(vSt)}, {v(fx)}, 4, {v(vSt)}")
        RB(f"v_lshrrev_b32 {v(fx)}, 2, v1")
        RB(f"v_mul_u32_u24 {v(vRR)}, 80, {v(fx)}")
        RB(f"v_and_b32 {v(fy)}, 3, v1")
        RB(f"v_lshl_add_u32 {v(vRR)}, {v(fy)}, 4, {v(vRR)}")
        RB(f"s_mul_i32 {s(f0)}, {s(S_WV)}, 2560")
        RB(f"s_add_u32 {s(f0)}, {s(f0)}, {L_RED}")
        RB(f"v_add_u32 {v(vRR)}, {s(f0)}, {v(vRR)}")
        sX = S_OFF + 3
        RB(f"s_mul_i32 {s(sX)}, {s(S_WV)}, {2 * 229376}")
        RB(f"s_lshl_b32 {s(f0)}, {s(S_CP)}, 8")
        RB(f"s_add_u32 {s(sX)}, {s(sX)}, {s(f0)}")
        RB(f"s_add_u32 {s(sX)}, {s(sX)}, {X1P}")
        RB(f"s_add_u32 {s(S_OFF + 4)}, {s(sX)}, 229376")
        U, Q, N = 216, 232, 200
        RB.await_regs(v(vQn, 8), v(vRs, 8), v(vMs, 8), v(vPD + 1))
        RB(f"v_lshlrev_b32 {v(vPD)}, 16, {v(vPD + 1)}")
        RB(f"v_and_b32 {v(vPD + 1)}, {s(S_MASKHI)}, {v(vPD + 1)}")
        for h in range(2):
            for e in range(2):
                for r in range(4):
                    for dst, src in ((U, vKV), (Q, vQn)):
                        d = dst + 8 * h + 4 * e + r
                        if e == 0:
                            RB(f"v_lshlrev_b32 {v(d)}, 16, {v(src + 4 * h + r)}")
                        else:
                            RB(f"v_and_b32 {v(d)}, {s(S_MASKHI)}, {v(src + 4 * h + r)}")
        for h in range(2):
            for e in range(2):
                for k in (0, 2):
                    o = 8 * h + 4 * e + k
                    RB(f"v_pk_fma_f32 {v(N + o, 2)}, {v(Q + o, 2)}, {v(vRs + 4 * h + k, 2)}, {v(vMs + 4 * h + k, 2)} neg_lo:[0,0,1] neg_hi:[0,0,1]")
        RB.await_regs(v(vMP, 2))
        for mod in ("quad_perm:[1,0,3,2]", "quad_perm:[2,3,0,1]", "row_half_mirror"):
            for k in range(2):
                RB(f"v_add_f32_dpp {v(vMP + k)}, {v(vMP + k)}, {v(vMP + k)} {mod} row_mask:0xf bank_mask:0xf")
        RB(f"v_cvt_pk_bf16_f32 {v(vMP)}, {v(vMP)}, {v(vMP + 1)}")
        r0, r1, r2 = T + 12, T + 13, T + 14
        RB(f"v_readlane_b32 {s(r0)}, {v(vMP)}, 0")
        RB(f"v_readlane_b32 {s(r1)}, {v(vMP)}, 8")
        RB(f"v_readlane_b32 {s(r2)}, {v(vMP)}, 16")
        for reg, sr in ((vPS, r0), (vPA, r1), (vPG, r2)):
            RB(f"v_lshlrev_b32 {v(reg)}, 16, {s(sr)}")
            RB(f"v_mov_b32 {v(reg + 1)}, {s(sr)}")
        for reg in (vPS, vPA, vPG):
            RB(f"v_and_b32 {v(reg + 1)}, {s(S_MASKHI)}, {v(reg + 1)}")
        RB(f"v_add_f32 {v(vPA)}, 1.0, {v(vPA)}")
        RB(f"v_add_f32 {v(vPA + 1)}, 1.0, {v(vPA + 1)}")
        RB(f"v_cvt_pk_bf16_f32 {v(vPA)}, {v(vPA)}, {v(vPA + 1)}")
        RB(f"v_and_b32 {v(vPA + 1)}, {s(S_MASKHI)}, {v(vPA)}")
        RB(f"v_lshlrev_b32 {v(vPA)}, 16, {v(vPA)}")
        for h in range(2):
            for e in range(2):
                for k in (0, 2):
                    o = 8 * h + 4 * e + k
                    RB(f"v_pk_fma_f32 {v(N + o, 2)}, {v(N + o, 2)}, {v(vPA, 2)}, {v(vPS, 2)} op_sel:[0,{e},{e}] op_sel_hi:[1,{e},{e}]")
        for h in range(2):
            for e in range(2):
                for k in (0, 2):
                    o = 8 * h + 4 * e + k
                    RB(f"v_pk_mul_f32 {v(N + o, 2)}, {v(N + o, 2)}, {v(vPG, 2)} op_sel:[0,{e}] op_sel_hi:[1,{e}]")
        nm = 0
        self.bg_setup()
        vFa, vFr = 213, 214
        for rp in range(4):
            if rp == 1:
                A(f"v_lshrrev_b32 {v(vx)}, 3, v1")
                A(f"v_min_u32 {v(vx)}, 2, {v(vx)}")
                A(f"v_mul_u32_u24 {v(vx)}, 448, {v(vx)}")
                A(f"s_lshl_b32 {s(t0)}, {s(S_CP)}, 1")
                A(f"v_add_u32 {v(vx)}, {s(t0)}, {v(vx)}")
                A(f"v_lshrrev_b32 {v(vx)}, 6, {v(vx)}")
                A(f"v_and_b32 {v(vy)}, 7, v1")
                A(f"v_min_u32 {v(vy)}, 4, {v(vy)}")
                A(f"v_mad_u32_u24 {v(vFa)}, {v(vy)}, 42, {v(vx)}")
                A(f"v_lshlrev_b32 {v(vFa)}, 7, {v(vFa)}")
                A(f"v_add_u32 {v(vFa)}, {FL + FQ * 128}, {v(vFa)}")
                A(f"buffer_load_dword {v(vFr)}, {v(vFa)}, {s(R_WS, 4)}, 0 offen sc1")
            if rp == 2:
                self.poll1_check(vFa, vFr)
                A(f"v_lshrrev_b32 {v(vx)}, 3, v1")
                A(f"v_mul_u32_u24 {v(vx)}, 1792, {v(vx)}")
                A(f"v_and_b32 {v(vy)}, 7, v1")
                A(f"v_cmp_gt_u32 vcc, 5, {v(vy)}")
                A(f"v_mul_u32_u24 {v(vy)}, {MPL}, {v(vy)}")
                A(f"v_add_u32 {v(vx)}, {v(vx)}, {v(vy)}")
                A(f"s_lshl_b32 {s(t0)}, {s(S_CP)}, 3")
                A(f"s_add_u32 {s(t0)}, {s(t0)}, {MODF}")
                A(f"v_add_u32 {v(vx)}, {s(t0)}, {v(vx)}")
                A(f"v_mov_b32 {v(vy)}, 0x80000000")
                A(f"v_cndmask_b32 {v(vx)}, {v(vy)}, {v(vx)}, vcc")
                A(f"buffer_load_dwordx2 {v(vMP, 2)}, {v(vx)}, {s(R_WS, 4)}, 0 offen sc1")
            for q in range(8):
                idx = rp * 8 + q
                ar = AR + 4 * (idx % 4)
                first = True
                for n in range(q, 8):
                    c = "0" if (rp == 0 and q == 0) else v(ACC + 4 * n, 4)
                    if first:
                        regs = [v(ar, 4)]
                        if q == 0:
                            regs.append(v(BS[rp & 1], 32))
                        A.await_regs(*regs)
                    A(f"v_mfma_f32_16x16x32_bf16 {v(ACC + 4 * n, 4)}, {v(ar, 4)}, {v(BS[rp & 1] + 4 * (n - q), 4)}, {c}")
                    nm += 1
                    if first:
                        first = False
                        if idx + 3 < 32:
                            ldA(idx + 3)
                        if rp < 3 and 0 <= q <= 3:
                            ldB(rp + 1, 2 * q)
                            ldB(rp + 1, 2 * q + 1)
                    if rp == 0:
                        RA.play(A, 2)
                    if rp >= 2 and len(RB.items) > self.o.get("rb_keep", 16):
                        RB.play(A, min(self.o.get("fill_rate", 2), len(RB.items) - self.o.get("rb_keep", 16)))
        RA.play(A, 10 ** 6)
        RB.play(A, 10 ** 6)
        self.stamp(7)
        for n in range(8):
            A(f"ds_write_b128 {v(vRW)}, {v(ACC + 4 * n, 4)} offset:{1280 * n}")
        if self.o.get("w_early", 1):
            A.barrier()
        else:
            A.wait_vm(0)
            A.barrier()
            A(f"s_lshl_b32 {s(t0)}, {s(self.wr['sWB'])}, 7")
            A(f"s_add_u32 {s(t0)}, {s(t0)}, {FL + FQ * 128}")
            self.flag_store(t0)
        self.stamp(30)
        vY = 96
        for h in range(2):
            for w in range(4):
                A(f"ds_read_b128 {v(vY + 16 * h + 4 * w, 4)}, {v(vRR)} offset:{10240 * w + 1280 * h}")
        vOut = 128
        for h in range(2):
            A.await_regs(v(vY + 16 * h, 16))
            ys = [(e, k, vY + 16 * h + 8 * e + k, 8 * h + 4 * e + k) for e in range(2) for k in (0, 2)]
            for e, k, y, o in ys:
                A(f"v_pk_add_f32 {v(y, 2)}, {v(y, 2)}, {v(y + 4, 2)}")
            for e, k, y, o in ys:
                A(f"v_pk_fma_f32 {v(y, 2)}, {v(U + o, 2)}, {v(vPD, 2)}, {v(y, 2)} op_sel:[0,{e},0] op_sel_hi:[1,{e},1]")
            for e, k, y, o in ys:
                A(f"v_pk_fma_f32 {v(y, 2)}, {v(N + o, 2)}, {v(y, 2)}, {v(Q + o, 2)}")
            for r in range(4):
                A(f"v_cvt_pk_bf16_f32 {v(vOut + 4 * h + r)}, {v(vY + 16 * h + r)}, {v(vY + 16 * h + 8 + r)}")
            A(f"buffer_store_dwordx4 {v(vOut + 4 * h, 4)}, {v(vSt)}, {s(R_WS, 4)}, {s(sX if h == 0 else S_OFF + 4)} offen sc1")
        self.stamp(8)
        A(f"s_lshl_b32 {s(t0)}, {s(S_CP)}, 7")
        A(f"s_add_u32 {s(t0)}, {s(t0)}, {FL + F2 * 128}")
        A(f"buffer_load_dword {v(vPR)}, {v(vPW)}, {s(R_WS, 4)}, 0 offen sc1")
        A.wait_vm(0)
        self.poll1_check(vPW, vPR)
        A.barrier()
        self.flag_store(t0)
        A(f"v_lshlrev_b32 {v(vx)}, 3, v0")
        for pl in range(5):
            A(f"s_mov_b32 {s(t1)}, {MODF + pl * MPL + 4 * 1792}")
            A(f"s_mov_b32 {s(t2)}, {MODF + pl * MPL + 3 * 1792}")
            A(f"buffer_load_dwordx2 {v(vPP + 4 * pl, 2)}, {v(vx)}, {s(R_WS, 4)}, {s(t1)} offen sc1")
            A(f"buffer_load_dwordx2 {v(vPP + 4 * pl + 2, 2)}, {v(vx)}, {s(R_WS, 4)}, {s(t2)} offen sc1")
        A(f"v_lshlrev_b32 {v(vy)}, 2, v1")
        A(f"s_lshl_b32 {s(T + 3)}, {s(S_J)}, 8")
        for pl in range(5):
            A(f"s_add_u32 {s(t1)}, {s(T + 3)}, {MODF + pl * MPL + 5 * 1792}")
            A(f"buffer_load_dword {v(vGP + pl)}, {v(vy)}, {s(R_WS, 4)}, {s(t1)} offen sc1")
        self.bg_emit(self.n_burst_t2)
        A.await_regs(v(vPP, 20), v(vGP, 5))
        for pl in (1, 3):
            A(f"v_pk_add_f32 {v(vPP + 4 * pl - 4, 2)}, {v(vPP + 4 * pl - 4, 2)}, {v(vPP + 4 * pl, 2)}")
            A(f"v_pk_add_f32 {v(vPP + 4 * pl - 2, 2)}, {v(vPP + 4 * pl - 2, 2)}, {v(vPP + 4 * pl + 2, 2)}")
            A(f"v_add_f32 {v(vGP + pl - 1)}, {v(vGP + pl - 1)}, {v(vGP + pl)}")
        A(f"v_pk_add_f32 {v(vPP, 2)}, {v(vPP, 2)}, {v(vPP + 8, 2)}")
        A(f"v_pk_add_f32 {v(vPP + 2, 2)}, {v(vPP + 2, 2)}, {v(vPP + 10, 2)}")
        A(f"v_add_f32 {v(vGP)}, {v(vGP)}, {v(vGP + 2)}")
        A(f"v_pk_add_f32 {v(vPP, 2)}, {v(vPP, 2)}, {v(vPP + 16, 2)}")
        A(f"v_pk_add_f32 {v(vPP + 2, 2)}, {v(vPP + 2, 2)}, {v(vPP + 18, 2)}")
        A(f"v_add_f32 {v(vGP)}, {v(vGP)}, {v(vGP + 4)}")
        A(f"v_cvt_pk_bf16_f32 {v(vPar)}, {v(vPP)}, {v(vPP + 1)}")
        A(f"v_cvt_pk_bf16_f32 {v(vPar + 2)}, {v(vPP + 2)}, {v(vPP + 3)}")
        A(f"v_cvt_pk_bf16_f32 {v(vPar + 4)}, {v(vGP)}, {v(vGP)}")
        A(f"v_and_b32 {v(vPar + 1)}, {s(S_MASKHI)}, {v(vPar)}")
        A(f"v_lshlrev_b32 {v(vPar)}, 16, {v(vPar)}")
        A(f"v_and_b32 {v(vPar + 3)}, {s(S_MASKHI)}, {v(vPar + 2)}")
        A(f"v_lshlrev_b32 {v(vPar + 2)}, 16, {v(vPar + 2)}")
        A(f"v_and_b32 {v(vPar + 4)}, {s(S_MASKHI)}, {v(vPar + 4)}")
        A(f"v_add_f32 {v(vPar)}, 1.0, {v(vPar)}")
        A(f"v_add_f32 {v(vPar + 1)}, 1.0, {v(vPar + 1)}")
        A(f"v_cvt_pk_bf16_f32 {v(vPar)}, {v(vPar)}, {v(vPar + 1)}")
        A(f"v_and_b32 {v(vPar + 1)}, {s(S_MASKHI)}, {v(vPar)}")
        A(f"v_lshlrev_b32 {v(vPar)}, 16, {v(vPar)}")
        A(f"s_mov_b32 {s(t2)}, 0x{f32bits(LOG2E):08x}")
        A(f"v_lshlrev_b32 {v(vx)}, 4, v0")
        A(f"v_add_u32 {v(vx)}, {L_PAR}, {v(vx)}")
        A(f"v_lshlrev_b32 {v(vy)}, 2, v1")
        A(f"v_add_u32 {v(vy)}, {L_GB}, {v(vy)}")
        for r_ in range(vPar, vPar + 4):
            A(f"v_mul_f32 {v(r_)}, {s(t2)}, {v(r_)}")
        A(f"ds_write_b128 {v(vx)}, {v(vPar, 4)}")
        A(f"ds_write_b32 {v(vy)}, {v(vPar + 4)}")
        self.stamp(9)

    def phase_b(self):
        A = self.A
        T = S_T
        t0, t1, t2 = T, T + 1, T + 2
        vPa, vPt = 2, 4
        A(f"v_min_u32 {v(vPa)}, 55, v1")
        A(f"s_mul_i32 {s(t0)}, {s(S_WV)}, 56")
        A(f"v_add_u32 {v(vPa)}, {s(t0)}, {v(vPa)}")
        A(f"v_lshlrev_b32 {v(vPa)}, 7, {v(vPa)}")
        A(f"v_add_u32 {v(vPa)}, {FL + F2 * 128}, {v(vPa)}")
        self.poll(vPa, vPt)
        A.barrier()
        self.stamp(10)
        A(f"s_lshr_b32 {s(t0)}, {s(S_WV)}, 1")
        A(f"s_lshl_b32 {s(t0)}, {s(t0)}, 10")
        A(f"v_add_u32 v{V_W2O[0]}, {s(t0)}, v{V_L16}")
        A(f"s_sub_u32 {s(t0)}, 1024, {s(t0)}")
        A(f"v_add_u32 v{V_W2O[1]}, {s(t0)}, v{V_L16}")
        vL16 = 4
        A(f"v_lshlrev_b32 {v(vL16)}, 4, v1")
        A(f"s_mul_i32 {s(t1)}, {s(S_WV)}, 14336")
        A(f"s_mul_i32 {s(t0)}, {s(S_RB)}, 57344")
        A(f"s_add_u32 {s(t0)}, {s(t0)}, {s(t1)}")
        A(f"s_add_u32 {s(t0)}, {s(t0)}, {X1P}")
        A(f"s_add_u32 {s(t1)}, {s(t1)}, {L_XD}")
        A(f"s_mov_b32 m0, {s(t1)}")
        for i in range(14):
            if i and i % 4 == 0:
                A(f"s_add_u32 {s(t0)}, {s(t0)}, 4096")
                A(f"s_add_u32 m0, m0, 4096")
            A.dma(f"buffer_load_dwordx4 {v(vL16)}, {s(R_WS, 4)}, {s(t0)} offen offset:{1024 * (i % 4)} sc1 lds", f"x{i}")
        skip = self.lab("ep")
        A(f"s_cmp_lg_u32 {s(S_CP)}, 0")
        A(f"s_cbranch_scc1 {skip}")
        A.cond_begin()
        A(f"s_mov_b32 {s(t0)}, 0")
        self.flag_store(t0)
        A.cond_end()
        A.label(skip)
        if self.o.get("pretouch", 0):
            A(f"s_mul_i32 {s(t0)}, {s(S_RB)}, 112")
            A(f"s_lshl_b32 {s(t2)}, {s(S_J)}, 4")
            A(f"s_add_u32 {s(t0)}, {s(t0)}, {s(t2)}")
            A(f"s_lshl_b32 {s(t2)}, {s(S_WV)}, 2")
            A(f"s_add_u32 {s(t0)}, {s(t0)}, {s(t2)}")
            A(f"s_lshl_b32 {s(t0)}, {s(t0)}, 11")
            A(f"s_add_u32 {s(t0)}, {s(t0)}, {HF}")
            A(f"v_lshlrev_b32 v6, 7, v1")
            A(f"buffer_load_dword v252, v6, {s(R_WS, 4)}, {s(t0)} offen")
        X = 88
        vXR = 5
        A(f"v_lshlrev_b32 {v(vXR)}, 2, v1")
        A(f"v_add_u32 {v(vXR)}, {s(t1)}, {v(vXR)}")

        XR = 72

        def ldX(g):
            A.need(f"x{g}")
            r = XR + 4 * (g % 4)
            A(f"ds_read2st64_b32 {v(r, 2)}, {v(vXR)} offset0:{4 * g} offset1:{4 * g + 1}")
            A(f"ds_read2st64_b32 {v(r + 2, 2)}, {v(vXR)} offset0:{4 * g + 2} offset1:{4 * g + 3}")

        vS = 8
        for g in range(3):
            ldX(g)
        self.stamp(27)
        for g in range(14):
            src = XR + 4 * (g % 4)
            A.await_regs(v(src, 4))
            if g + 3 < 14:
                ldX(g + 3)
            for k in range(4):
                e = 4 * g + k
                r = X + 2 * e
                A(f"v_lshlrev_b32 {v(r)}, 16, {v(src + k)}")
                A(f"v_and_b32 {v(r + 1)}, {s(S_MASKHI)}, {v(src + k)}")
            for k in range(4):
                e = 4 * g + k
                r = X + 2 * e
                s1, s2 = vS + 2 * (e & 1), vS + 4 + 2 * (e & 1)
                if e < 2:
                    A(f"v_mov_b32 {v(s1)}, {v(r)}")
                    A(f"v_mov_b32 {v(s1 + 1)}, {v(r + 1)}")
                    A(f"v_pk_mul_f32 {v(s2, 2)}, {v(r, 2)}, {v(r, 2)}")
                else:
                    A(f"v_pk_add_f32 {v(s1, 2)}, {v(s1, 2)}, {v(r, 2)}")
                    A(f"v_pk_fma_f32 {v(s2, 2)}, {v(r, 2)}, {v(r, 2)}, {v(s2, 2)}")
            if g >= 14 - self.o.get("n_bstat", 11):
                self.bg_emit(1)
        A(f"v_pk_add_f32 {v(vS, 2)}, {v(vS, 2)}, {v(vS + 2, 2)}")
        A(f"v_pk_add_f32 {v(vS + 4, 2)}, {v(vS + 4, 2)}, {v(vS + 6, 2)}")
        A(f"v_add_f32 {v(vS)}, {v(vS)}, {v(vS + 1)}")
        A(f"v_add_f32 {v(vS + 1)}, {v(vS + 4)}, {v(vS + 5)}")
        vSW = 5
        A(f"v_lshlrev_b32 {v(vSW)}, 3, v1")
        A(f"v_add_u32 {v(vSW)}, {L_STAT}, {v(vSW)}")
        A(f"s_lshl_b32 {s(t0)}, {s(S_WV)}, 9")
        A(f"v_add_u32 v6, {s(t0)}, {v(vSW)}")
        A(f"ds_write_b64 v6, {v(vS, 2)}")
        self.stamp(28)
        vPb = 6
        vHW = 7
        A(f"v_lshrrev_b32 v22, 5, v1")
        A(f"v_lshlrev_b32 {v(vHW)}, 10, v22")
        A(f"v_and_b32 v22, 31, v1")
        A(f"v_lshl_add_u32 {v(vHW)}, v22, 4, {v(vHW)}")
        A(f"s_mul_i32 {s(t0)}, {s(S_WV)}, {7 * 2048}")
        A(f"v_add_u32 {v(vHW)}, {s(t0)}, {v(vHW)}")
        A(f"s_mul_i32 {s(t0)}, {s(S_WV)}, 896")
        A(f"s_add_u32 {s(t0)}, {s(t0)}, {L_PAR}")
        A.barrier()
        for w in range(4):
            A(f"ds_read_b64 {v(16 + 2 * w, 2)}, {v(vSW)} offset:{512 * w}")
        A(f"v_mov_b32 {v(vPb)}, {s(t0)}")
        def PRq(e):
            k = e % 12
            return 24 + 4 * k if k < 8 else 72 + 4 * (k - 8)
        OUT = 56

        def ldP(e):
            if self.o.get("b_nopar"):
                return
            A(f"ds_read_b128 {v(PRq(e), 4)}, {v(vPb)} offset:{16 * e}")

        for e in range(8):
            ldP(e)
        A("v_pk_add_f32 v[16:17], v[16:17], v[18:19]")
        A("v_pk_add_f32 v[20:21], v[20:21], v[22:23]")
        A("v_pk_add_f32 v[16:17], v[16:17], v[20:21]")
        A(f"s_mov_b32 {s(t0)}, 0x{f32bits(1.0 / 448):08x}")
        A(f"s_mov_b32 {s(t1)}, 0x{f32bits(1e-5):08x}")
        A(f"v_mul_f32 v16, {s(t0)}, v16")
        A(f"v_mul_f32 v17, {s(t0)}, v17")
        A("v_fma_f32 v17, -v16, v16, v17")
        A("v_max_f32 v17, 0, v17")
        A(f"v_add_f32 v17, {s(t1)}, v17")
        vR, vM = 18, 20
        A(f"v_rsq_f32 {v(vR)}, v17")
        A(f"v_mul_f32 {v(vM)}, v16, {v(vR)}")
        pass
        for e0 in range(0, 56, 4):
            A.await_regs(*[v(PRq(e0 + k), 4) for k in range(4)])
            for k in range(8, 12):
                if e0 + k < 56:
                    ldP(e0 + k)
            for e in range(e0, e0 + 4):
                r = X + 2 * e
                A(f"v_pk_fma_f32 {v(r, 2)}, {v(r, 2)}, {v(vR, 2)}, {v(vM, 2)} op_sel_hi:[1,0,0] neg_lo:[0,0,1] neg_hi:[0,0,1]")
            for e in range(e0, e0 + 4):
                r = X + 2 * e
                p = PRq(e)
                A(f"v_pk_fma_f32 {v(r, 2)}, {v(r, 2)}, {v(p, 2)}, {v(p + 2, 2)}")
            sp, k0 = divmod(e0, 8)
            o = OUT + 8 * (sp & 1)
            for e in range(e0, e0 + 4):
                r = X + 2 * e
                A(f"v_cvt_pk_bf16_f32 {v(o + e % 8)}, {v(r)}, {v(r + 1)}")
            if not self.o.get("b_nowr"):
                A(f"ds_write_b128 {v(vHW)}, {v(o + k0, 4)} offset:{L_H2 + 2048 * sp + (512 if k0 else 0)}")
            nbn = self.o.get("n_bnorm", 27)
            g_ = e0 // 4
            self.bg_emit(nbn * (g_ + 1) // 14 - nbn * g_ // 14)
        while self.bg_left("w1") > 0:
            self.bg_emit(1)
        A.barrier()
        self.stamp(11)

    def w2reg(self, f):
        if f < 41:
            return v(88 + 4 * f, 4)
        if f < 49:
            return a(224 + 4 * (f - 41), 4)
        return a(4 * (f - 49), 4)

    def bg_setup(self):
        A = self.A
        t0, t1 = S_T, S_T + 1
        A(f"s_lshl_b32 {s(t0)}, {s(S_J)}, 3")
        A(f"s_lshl_b32 {s(t1)}, {s(S_WV)}, 1")
        A(f"s_add_u32 {s(t0)}, {s(t0)}, {s(t1)}")
        A(f"s_mul_i32 {s(S_W1B)}, {s(t0)}, {28 * 1024}")
        A(f"s_add_u32 {s(S_W1B)}, {s(S_W1B)}, {W1F}")
        A(f"s_lshl_b32 {s(t0)}, {s(S_J)}, 2")
        A(f"s_add_u32 {s(t0)}, {s(t0)}, {s(S_WV)}")
        A(f"s_mul_i32 {s(S_W2B)}, {s(t0)}, {56 * 1024}")
        A(f"s_add_u32 {s(S_W2B)}, {s(S_W2B)}, {W2F}")
        A(f"v_lshlrev_b32 v{V_L16}, 4, v1")
        self.bgq = [("w1", f) for f in range(56)] + [("w2", f) for f in self.w2_order]
        self.bg_cur = {"w1": 0, "w2": 0}

    def bg_emit(self, n=1):
        A = self.A
        if self.o["nobg"]:
            del self.bgq[:n]
            return
        for _ in range(n):
            if not self.bgq:
                return
            kind, f = self.bgq.pop(0)
            base = S_W1B if kind == "w1" else S_W2B
            blk = f // 4
            if blk != self.bg_cur[kind]:
                d = (blk - self.bg_cur[kind]) * 4096
                A(f"s_add_u32 {s(base)}, {s(base)}, {d}" if d > 0 else f"s_sub_u32 {s(base)}, {s(base)}, {-d}")
                self.bg_cur[kind] = blk
            if kind == "w1":
                A(f"buffer_load_dwordx4 {a(4 * f, 4)}, v{V_L16}, {s(R_WS, 4)}, {s(base)} offen offset:{1024 * (f % 4)} sc1")
            else:
                A(f"buffer_load_dwordx4 {self.w2reg(f)}, v{V_W2O[f & 1]}, {s(R_WS, 4)}, {s(base)} offen offset:{2048 * ((f % 4) >> 1)} sc1")

    def bg_left(self, kind):
        return sum(1 for k, _ in self.bgq if k == kind)

    def phase_c(self):
        A = self.A
        t0 = S_T
        if self.o.get("force_global", 1):
            self.phase_c_body(" sc1")
            return
        glob, join = self.lab("cglob"), self.lab("cjoin")
        A(f"s_cmp_eq_u32 {s(S_LOCAL)}, 0")
        A(f"s_cbranch_scc1 {glob}")
        st, q, cur = A.snapshot(), list(self.bgq), dict(self.bg_cur)
        self.phase_c_body("")
        A(f"s_branch {join}")
        A.restore(st)
        self.bgq, self.bg_cur = q, cur
        A.label(glob)
        self.phase_c_body(" sc1")
        A.label(join)

    def phase_c_body(self, sc):
        A = self.A
        T = S_T
        t0, t1 = T, T + 1
        sH, sH2 = S_OFF + 5, S_OFF + 7
        A(f"s_mul_i32 {s(t0)}, {s(S_RB)}, 112")
        A(f"s_lshl_b32 {s(t1)}, {s(S_J)}, 4")
        A(f"s_add_u32 {s(t0)}, {s(t0)}, {s(t1)}")
        A(f"s_lshl_b32 {s(t1)}, {s(S_WV)}, 2")
        A(f"s_add_u32 {s(t0)}, {s(t0)}, {s(t1)}")
        A(f"s_lshl_b32 {s(sH)}, {s(t0)}, 11")
        A(f"s_add_u32 {s(sH)}, {s(sH)}, {HF}")
        A(f"s_add_u32 {s(sH2)}, {s(sH)}, 4096")
        sC = S_OFF + 6
        A(f"s_mov_b32 {s(sC)}, 0x{f32bits(LOG2E):08x}")
        ACC = [24, 40]
        NR = 6
        RING = 4
        TMP = 68
        OUT = 76

        def ring(i):
            k = i % NR
            return RING + 4 * k if k < 5 else 56

        def store(g, off):
            base, o = (sH2, off - 4096) if off >= 4096 else (sH, off)
            return f"buffer_store_dwordx4 {v(OUT + 4 * g, 4)}, v{V_L16}, {s(R_WS, 4)}, {s(base)} offen offset:{o}{sc}"

        def silu_ops(tile):
            ft, th = divmod(tile, 2)
            acc = ACC[tile & 1]
            seq = []
            lag = (0, 2, 3, 5)
            for step in range(16 + lag[-1] + 2):
                for k in range(4):
                    i = step - lag[k]
                    if 0 <= i < 16:
                        x, tmp = acc + i, TMP + (i % 8)
                        if k == 0:
                            seq.append((8, f"v_exp_f32 {v(tmp)}, -{v(x)}"))
                        elif k == 1:
                            seq.append((4, f"v_fma_f32 {v(tmp)}, {v(tmp)}, {s(sC)}, {s(sC)}"))
                        elif k == 2:
                            seq.append((8, f"v_rcp_f32 {v(tmp)}, {v(tmp)}"))
                        else:
                            seq.append((4, f"v_mul_f32 {v(x)}, {v(x)}, {v(tmp)}"))
                i = step - lag[-1] - 1
                if 0 <= i < 16 and i % 2 == 1:
                    g, kk = divmod(i // 2, 4)
                    seq.append((4, f"v_cvt_pk_bf16_f32 {v(OUT + 4 * g + kk)}, {v(acc + i - 1)}, {v(acc + i)}"))
                    if kk == 3:
                        off = (2 * (2 * ft + g) + th) * 1024
                        seq.append((4, store(g, off)))
            return seq

        def ldH(idx):
            tile, st = divmod(idx, 28)
            th = tile & 1
            A(f"ds_read_b128 {v(ring(idx), 4)}, v{V_L16} offset:{L_H2 + 2048 * st + 1024 * th}")

        for i_ in range(NR - 2):
            ldH(i_)
        pend = []
        nbg = self.n_bg_c
        done_bg = 0
        CAP = self.o.get("c_cap", 26)
        for tile in range(4):
            ft = tile >> 1
            acc = ACC[tile & 1]
            for st in range(28):
                idx = tile * 28 + st
                fixed = 0
                if idx % 2 == 0:
                    A.await_regs(*[v(ring(i_), 4) for i_ in (idx, idx + 1) if i_ < 112])
                c = "0" if st == 0 else v(acc, 16)
                A(f"v_mfma_f32_32x32x16_bf16 {v(acc, 16)}, {a(4 * (28 * ft + st), 4)}, {v(ring(idx), 4)}, {c}")
                if idx % 2 == 0:
                    for i_ in (idx + NR - 2, idx + NR - 1):
                        if i_ < 112:
                            ldH(i_)
                            fixed += 4
                else:
                    fixed += 4
                    while done_bg < nbg * (idx + 1) // 112 and self.bgq:
                        assert self.bgq[0][0] == "w1" or self.bgq[0][1] < 49 or idx >= 36
                        self.bg_emit(1)
                        done_bg += 1
                        fixed += 5
                if pend and st >= 2:
                    left_slots = 28 - st
                    need = sum(c_ for c_, _ in pend) - (left_slots - 1) * (CAP - 6)
                    spent = 0
                    while pend and (spent + fixed + pend[0][0] <= CAP or spent < need):
                        cst, ins = pend.pop(0)
                        A(ins)
                        spent += cst
            for cst, ins in pend:
                A(ins)
            pend = silu_ops(tile)
        for _, ins in pend:
            A(ins)
        self.stamp(12)
        A.wait_vm(0)
        A.barrier()
        A(f"s_lshl_b32 {s(t0)}, {s(S_RB)}, 3")
        A(f"s_add_u32 {s(t0)}, {s(t0)}, {s(S_J)}")
        A(f"s_lshl_b32 {s(t0)}, {s(t0)}, 7")
        A(f"s_add_u32 {s(t0)}, {s(t0)}, {FL + F3 * 128}")
        self.flag_store(t0, sc=sc)
        self.bg_emit(len(self.bgq))
        self.stamp(13)

    def phase_d(self):
        A = self.A
        T = S_T
        t0, t1 = T, T + 1
        vPa, vPt = 2, 4
        A(f"v_min_u32 {v(vPa)}, 6, v1")
        A(f"s_lshl_b32 {s(t0)}, {s(S_RB)}, 3")
        A(f"v_add_u32 {v(vPa)}, {s(t0)}, {v(vPa)}")
        A(f"v_lshlrev_b32 {v(vPa)}, 7, {v(vPa)}")
        A(f"v_add_u32 {v(vPa)}, {FL + F3 * 128}, {v(vPa)}")
        self.poll(vPa, vPt)
        self.stamp(14)
        sH = S_OFF
        A(f"s_mul_i32 {s(t0)}, {s(S_RB)}, 112")
        A(f"s_mul_i32 {s(t1)}, {s(S_WV)}, 28")
        A(f"s_add_u32 {s(t0)}, {s(t0)}, {s(t1)}")
        A(f"s_lshl_b32 {s(sH)}, {s(t0)}, 11")
        A(f"s_add_u32 {s(sH)}, {s(sH)}, {HF}")
        NSLOT = 49
        HB = 28
        hl = {0: " sc1", 1: "", 2: " nt", 3: " sc0"}[self.o.get("hload", 0)]
        vH = 4
        A(f"s_and_b32 {s(t0)}, {s(S_WV)}, 1")
        A(f"s_lshl_b32 {s(t0)}, {s(t0)}, 10")
        A(f"v_add_u32 {v(vH)}, {s(t0)}, v{V_L16}")
        A(f"s_sub_u32 {s(t0)}, 1024, {s(t0)}")
        A(f"v_add_u32 {v(vH + 1)}, {s(t0)}, v{V_L16}")

        def hreg(i):
            return a(HB + 4 * (i % NSLOT), 4)

        def ldH(i):
            if i % 4 == 0 and i:
                A(f"s_add_u32 {s(sH)}, {s(sH)}, 4096")
            A(f"buffer_load_dwordx4 {hreg(i)}, {v(vH + (i & 1))}, {s(R_WS, 4)}, {s(sH)} offen offset:{2048 * ((i % 4) >> 1)}{hl}")

        PRE = self.o.get("d_pre", 12)
        for i in range(PRE):
            ldH(i)
        vWr, vRd, vG, vX, vO, vt = 8, 11, 12, 13, 14, 15
        for x in range(1, 4):
            A(f"s_xor_b32 {s(t0)}, {s(S_WV)}, {x}")
            A(f"s_mul_i32 {s(t0)}, {s(t0)}, 12288")
            A(f"s_add_u32 {s(t0)}, {s(t0)}, {L_RED2 + (x - 1) * 4096}")
            A(f"v_add_u32 {v(vWr + x - 1)}, {s(t0)}, v{V_L16}")
        A(f"s_mul_i32 {s(t0)}, {s(S_WV)}, 12288")
        A(f"s_add_u32 {s(t0)}, {s(t0)}, {L_RED2}")
        A(f"v_add_u32 {v(vRd)}, {s(t0)}, v{V_L16}")
        A(f"s_lshr_b32 {s(t0)}, {s(S_WV)}, 1")
        A(f"s_and_b32 {s(t1)}, {s(S_WV)}, 1")
        A(f"v_lshrrev_b32 {v(vt)}, 5, v1")
        t2, t3 = T + 2, T + 3
        A(f"s_lshl_b32 {s(t2)}, {s(t0)}, 7")
        A(f"s_add_u32 {s(t2)}, {s(t2)}, {L_GB}")
        A(f"v_lshl_add_u32 {v(vG)}, {v(vt)}, 4, {s(t2)}")
        A(f"s_lshl_b32 {s(t2)}, {s(S_J)}, 13")
        A(f"s_lshl_b32 {s(t3)}, {s(t0)}, 12")
        A(f"s_add_u32 {s(t2)}, {s(t2)}, {s(t3)}")
        A(f"s_lshl_b32 {s(t3)}, {s(t1)}, 7")
        A(f"s_add_u32 {s(t2)}, {s(t2)}, {s(t3)}")
        A(f"s_add_u32 {s(t2)}, {s(t2)}, {L_XD}")
        A(f"v_lshl_add_u32 {v(vX)}, {v(vt)}, 9, {s(t2)}")
        A(f"v_and_b32 {v(vO)}, 31, v1")
        A(f"v_lshl_add_u32 {v(vX)}, {v(vO)}, 2, {v(vX)}")
        A(f"s_lshl_b32 {s(t2)}, {s(S_RB)}, 6")
        A(f"s_lshl_b32 {s(t3)}, {s(t1)}, 5")
        A(f"s_add_u32 {s(t2)}, {s(t2)}, {s(t3)}")
        A(f"v_add_u32 {v(vO)}, {s(t2)}, {v(vO)}")
        A(f"v_mul_u32_u24 {v(vO)}, 896, {v(vO)}")
        A(f"s_lshl_b32 {s(t2)}, {s(S_J)}, 7")
        A(f"s_lshl_b32 {s(t3)}, {s(t0)}, 6")
        A(f"s_add_u32 {s(t2)}, {s(t2)}, {s(t3)}")
        A(f"v_lshl_add_u32 {v(vt)}, {v(vt)}, 4, {s(t2)}")
        A(f"v_add_u32 {v(vO)}, {v(vO)}, {v(vt)}")
        self.srd(R_A, P_OUT, 2048 * 896)
        ACC = 24
        nxt = PRE
        LAG = self.o.get("d_lag", 6)
        late = []
        for st in range(28):
            for _ in range(2):
                if nxt < 56:
                    ldH(nxt)
                    nxt += 1
            for e1 in range(2):
                i = 2 * st + e1
                for e in range(2):
                    acc = ACC + 16 * (2 * e + e1)
                    c = "0" if st == 0 else v(acc, 16)
                    if e == 0 and e1 == 0 and st >= 28 - LAG:
                        late.append(f"v_mfma_f32_32x32x16_bf16 {v(acc, 16)}, {self.w2reg(2 * st + e)}, {hreg(i)}, {c}")
                        continue
                    if self.o.get("d_nomfma"):
                        A.await_regs(hreg(i))
                        continue
                    A(f"v_mfma_f32_32x32x16_bf16 {v(acc, 16)}, {self.w2reg(2 * st + e)}, {hreg(i)}, {c}")
        self.stamp(15)
        GB, XP = 16, 88
        GB = 104
        X1 = 120
        PT = 144
        for g in range(4):
            A(f"ds_read_b128 {v(GB + 4 * g, 4)}, {v(vG)} offset:{32 * g}")
            A(f"ds_read2st64_b32 {v(X1 + 2 * g, 2)}, {v(vX)} offset0:{4 * g} offset1:{4 * g + 1}")
        for x in range(1, 4):
            for g in range(4):
                if late and g % 2 == 0:
                    A(late.pop(0))
                A(f"ds_write_b128 {v(vWr + x - 1)}, {v(ACC + 16 * x + 4 * g, 4)} offset:{1024 * g}")
        for ins in late:
            A(ins)
        for k in range(8):
            A(f"v_lshlrev_b32 {v(128 + 2 * k)}, 16, {v(X1 + k)}")
            A(f"v_and_b32 {v(129 + 2 * k)}, {s(S_MASKHI)}, {v(X1 + k)}")
        self.stamp(17)
        A.barrier()
        self.stamp(18)
        for k in range(3):
            for g in range(4):
                A(f"ds_read_b128 {v(PT + 16 * k + 4 * g, 4)}, {v(vRd)} offset:{4096 * k + 1024 * g}")
        for k in range(3):
            A.await_regs(v(PT + 16 * k, 16))
            for i in range(8):
                A(f"v_pk_add_f32 {v(ACC + 2 * i, 2)}, {v(ACC + 2 * i, 2)}, {v(PT + 16 * k + 2 * i, 2)}")
        for i in range(8):
            A(f"v_pk_fma_f32 {v(ACC + 2 * i, 2)}, {v(ACC + 2 * i, 2)}, {v(GB + 2 * i, 2)}, {v(128 + 2 * i, 2)}")
        OUT = 192
        for i in range(8):
            A(f"v_cvt_pk_bf16_f32 {v(OUT + i)}, {v(ACC + 2 * i)}, {v(ACC + 2 * i + 1)}")
        for k in (0, 2):
            for i in range(2):
                A(f"v_permlane32_swap_b32 {v(OUT + 2 * k + i)}, {v(OUT + 2 * k + 2 + i)}")
        for k in (0, 2):
            osc = {0: "", 1: " sc1", 2: " nt", 3: " sc0 sc1"}[self.o.get("out_sc", 2)]
            A(f"buffer_store_dwordx4 {v(OUT + 2 * k, 4)}, {v(vO)}, {s(R_A, 4)}, 0 offen offset:{16 * k}{osc}")
        self.stamp(16)

    def helper(self):
        A = self.A
        T = S_T
        t0, t1, t2 = T + 4, T + 5, T + 6
        sH = S_RB
        A.label("L_helper")
        A(f"s_lshl_b32 {s(t0)}, {s(T + 1)}, 3")
        A(f"s_add_u32 {s(sH)}, {s(t0)}, {s(T)}")
        A(f"s_cmp_ge_u32 {s(sH)}, 21")
        A("s_cbranch_scc1 L_helper_flag")
        st_h = A.snapshot()
        self.srd(R_A, P_WM, 448 * 5376)
        self.srd(R_B, P_C, 896)
        A("v_lshrrev_b32 v2, 4, v0")
        A("v_and_b32 v3, 15, v0")
        A("v_mul_u32_u24 v4, 5376, v2")
        A("v_lshl_add_u32 v4, v3, 4, v4")
        A(f"s_lshl_b32 {s(t0)}, {s(sH)}, 8")
        A(f"v_add_u32 v4, {s(t0)}, v4")
        A("v_lshlrev_b32 v5, 2, v0")
        A(f"buffer_load_dword v6, v5, {s(R_B, 4)}, 0 offen")
        W = 16
        A(f"s_mov_b32 {s(t0)}, 0")
        for i in range(28):
            A(f"buffer_load_dwordx4 {v(W + 4 * i, 4)}, v4, {s(R_A, 4)}, {s(t0)} offen")
            if i < 27:
                A(f"s_add_u32 {s(t0)}, {s(t0)}, {16 * 5376}")
        A(f"s_mov_b32 {s(t1)}, 0x{f32bits(-1.4426950408889634):08x}")
        A("v_lshlrev_b32 v8, 16, v6")
        A(f"v_and_b32 v9, {s(S_MASKHI)}, v6")
        for r in (8, 9):
            A(f"v_mul_f32 {v(r + 2)}, {s(t1)}, {v(r)}")
        for r in (8, 9):
            A(f"v_exp_f32 {v(r + 2)}, {v(r + 2)}")
        for r in (8, 9):
            A(f"v_add_f32 {v(r + 2)}, 1.0, {v(r + 2)}")
        for r in (8, 9):
            A(f"v_rcp_f32 {v(r + 2)}, {v(r + 2)}")
        for r in (8, 9):
            A(f"v_mul_f32 {v(r)}, {v(r)}, {v(r + 2)}")
        A("v_cvt_pk_bf16_f32 v6, v8, v9")
        A("v_lshlrev_b32 v8, 16, v6")
        A(f"v_and_b32 v9, {s(S_MASKHI)}, v6")
        A("v_lshlrev_b32 v7, 3, v0")
        A(f"ds_write_b64 v7, v[8:9] offset:{L_SC}")
        A.barrier()
        A("v_lshlrev_b32 v7, 2, v2")
        SC = 128
        for i in range(28):
            A(f"ds_read_b32 {v(SC + 2 * i)}, v7 offset:{L_SC + 64 * i}")
        AC = 192
        U = 200
        for i in range(28):
            for k in range(4):
                src = W + 4 * i + k
                u = U + 2 * k
                A(f"v_lshlrev_b32 {v(u)}, 16, {v(src)}")
                A(f"v_and_b32 {v(u + 1)}, {s(S_MASKHI)}, {v(src)}")
            for k in range(4):
                u = U + 2 * k
                if i == 0:
                    A(f"v_pk_mul_f32 {v(AC + 2 * k, 2)}, {v(u, 2)}, {v(SC + 2 * i, 2)} op_sel_hi:[1,0]")
                else:
                    A(f"v_pk_fma_f32 {v(AC + 2 * k, 2)}, {v(u, 2)}, {v(SC + 2 * i, 2)}, {v(AC + 2 * k, 2)} op_sel_hi:[1,0,1]")
        A("v_mul_u32_u24 v7, 528, v2")
        A("v_lshl_add_u32 v7, v3, 5, v7")
        A(f"ds_write_b128 v7, {v(AC, 4)} offset:{L_MR}")
        A(f"ds_write_b128 v7, {v(AC + 4, 4)} offset:{L_MR + 16}")
        A.barrier()
        A("v_and_b32 v8, 127, v0")
        A("v_lshlrev_b32 v7, 2, v8")
        for g in range(16):
            A(f"ds_read_b32 {v(16 + g)}, v7 offset:{L_MR + 528 * g}")
        for stp in (8, 4, 2, 1):
            for g in range(stp):
                A(f"v_add_f32 {v(16 + g)}, {v(16 + g)}, {v(16 + g + stp)}")
        A("v_cvt_pk_bf16_f32 v16, v16, v16")
        A(f"v_and_b32 v16, {s(S_MASKHI)}, v16")
        A("v_add_f32 v17, 1.0, v16")
        A("v_cvt_pk_bf16_f32 v17, v17, v17")
        A(f"v_and_b32 v17, {s(S_MASKHI)}, v17")
        A(f"s_lshl_b32 {s(t0)}, {s(sH)}, 7")
        A(f"v_add_u32 v8, {s(t0)}, v8")
        A("v_subrev_u32 v9, 448, v8")
        A("v_subrev_u32 v10, 1792, v8")
        A("v_min_u32 v9, v9, v10")
        A("v_mov_b32 v11, 448")
        A("v_cmp_lt_u32 vcc, v9, v11")
        A("s_nop 1")
        A("v_cndmask_b32 v16, v16, v17, vcc")
        A("v_lshlrev_b32 v8, 2, v8")
        A(f"s_mov_b32 {s(t0)}, {MODF}")
        skip = self.lab("ms")
        A(f"s_cmp_ge_u32 {s(S_WV)}, 2")
        A(f"s_cbranch_scc1 {skip}")
        A.cond_begin()
        A(f"buffer_store_dword v16, v8, {s(R_WS, 4)}, {s(t0)} offen sc1")
        A.cond_end()
        A.label(skip)
        A.wait_vm(0)
        A.barrier()
        A.label("L_helper_flag")
        A.wait_lgkm0()
        A(f"s_add_u32 {s(S_NONCE)}, {s(S_NONCE)}, 1")
        A(f"s_lshl_b32 {s(t0)}, {s(sH)}, 7")
        A(f"s_add_u32 {s(t0)}, {s(t0)}, {FL + FM * 128}")
        self.flag_store(t0)
        self.stamp(3)
        if self.o.get("helper_warm", 0):
            A("v_min_u32 v2, 55, v1")
            A(f"s_mul_i32 {s(t0)}, {s(S_WV)}, 56")
            A(f"v_add_u32 v2, {s(t0)}, v2")
            A("v_lshlrev_b32 v2, 7, v2")
            A(f"v_add_u32 v2, {FL + self.o.get('warm_flag', F2) * 128}, v2")
            A(f"s_lshr_b32 {s(t0)}, s2, 3")
            A(f"s_sub_u32 {s(t0)}, {s(t0)}, 28")
            A(f"s_lshl_b32 {s(t0)}, {s(t0)}, 2")
            A(f"s_add_u32 {s(t0)}, {s(t0)}, {s(S_WV)}")
            A("v_lshlrev_b32 v4, 7, v1")
            A(f"s_and_b32 {s(t1)}, s2, 7")
            A(f"s_mul_i32 {s(t1)}, {s(t1)}, {4 * 229376}")
            A(f"s_mul_i32 {s(t2)}, {s(t0)}, {448 * 128}")
            A(f"s_add_u32 {s(t1)}, {s(t1)}, {s(t2)}")
            A(f"s_add_u32 {s(t1)}, {s(t1)}, {HF}")
            self.poll(2, 3)
            for k in range(7):
                A(f"buffer_load_dword {v(32 + k)}, v4, {s(R_WS, 4)}, {s(t1)} offen")
                A(f"s_add_u32 {s(t1)}, {s(t1)}, {64 * 128}")
            A.wait_vm(0)
        self.stamp(4)
        self.stamp_flush()
        A("s_endpgm")

    def build(self):
        A = self.A
        self.prologue()
        if self.stamps:
            A("v_mov_b32 v255, 0")
            A("v_writelane_b32 v255, s76, 31")
        st = A.snapshot()
        self.stamp(0)
        self.phase_p()
        stages = [("p", None), ("a", self.phase_a), ("b", self.phase_b), ("c", self.phase_c), ("d", self.phase_d)]
        done = self.stop == "p"
        for name, fn in stages[1:]:
            if done:
                break
            fn()
            done = self.stop == name
        self.stamp_flush()
        A("s_endpgm")
        A.label("L_exit")
        A("s_endpgm")
        A.label("L_code_end")
        return A.text()


def f32bits(x):
    import struct
    return struct.unpack("<I", struct.pack("<f", x))[0]


HEADER = """; Fused adaLN + H3 long convolution + SiLU MLP, one persistent launch (generated by gen/gen.py).
; Kernarg: q k v shift_k ssm_k ssm_D B_x w1 w2 c w_mod out debug ws (8-byte pointers).
; @launch grid=(224,1,1) block=(256,1,1) lds={lds}
.amdgcn_target "amdgcn-amd-amdhsa--gfx950"
.text
.globl {name}
.p2align 8
.type {name},@function
{name}:
"""

FOOTER = """.section .rodata,"a"
.p2align 6
.amdhsa_kernel {name}
  .amdhsa_next_free_vgpr 512
  .amdhsa_next_free_sgpr 102
  .amdhsa_accum_offset 256
  .amdhsa_group_segment_fixed_size 0
  .amdhsa_kernarg_size 112
  .amdhsa_user_sgpr_count 2
  .amdhsa_user_sgpr_kernarg_segment_ptr 1
  .amdhsa_system_sgpr_workgroup_id_x 1
  .amdhsa_float_denorm_mode_32 3
.end_amdhsa_kernel
"""


def main():
    ap = argparse.ArgumentParser()
    ap.add_argument("--stop", default=None)
    ap.add_argument("--stamps", action="store_true")
    ap.add_argument("-o", default="/dev/stdout")
    ap.add_argument("--opt", action="append", default=[])
    args = ap.parse_args()
    opts = {}
    for kv in args.opt:
        k, val = kv.split("=")
        opts[k] = int(val)
    g = Gen(stop=args.stop, stamps=args.stamps, opts=opts)
    body = g.build()
    txt = HEADER.format(name=NAME, lds=LDS_END) + body + FOOTER.format(name=NAME)
    with open(args.o, "w") as f:
        f.write(txt)
    print(f"instructions: {g.A.n_ins}, auto nops: {g.A.n_nops}, lds {LDS_END}", file=sys.stderr)


if __name__ == "__main__":
    main()
```

```python
import sys
import argparse
from asmdsl import Asm, v, a, s

NAME = "adaLN_cond__ssm_conv_h3__dense_activation_silu__prompt_kernel"

FL = 4096
F1, FQ, FM, F2, F3 = 0, 256, 512, 544, 800
STAMP = 0x30000
T2D = 224 * 8192
KVP = 0x40000
QP = KVP + T2D
STR = QP + T2D
STM = STR + 8192
X1P = STR + 16384
W1F = X1P + T2D
W2F = W1F + 1605632
MODF = W2F + 1605632
MPL = 2688 * 4
HF = MODF + 65536
WS_END = HF + 32 * 112 * 2048
assert WS_END < (1 << 28)

L_H2 = 0
L_TPK = 0
L_TPQ = 8704
L_TPN = 17408
L_WB = 26112
L_UR = 43520
assert L_UR + 9216 <= 57344
L_KC = 57344
CS = 4160
L_RED = L_KC + 8 * CS
L_RED2 = 0
L_XD = 69632
L_PAR = L_RED + 40960
L_STAT = L_PAR + 4096
L_GB = L_STAT + 2048
LDS_END = L_GB + 256
assert L_XD + 57344 <= L_PAR
assert LDS_END <= 163840
L_SC = 0
L_MR = 2048

S_RB, S_J, S_WV, S_CP = 4, 5, 6, 7
P_Q, P_K, P_V, P_SH, P_SK, P_D, P_BX, P_W1, P_W2, P_C, P_WM, P_OUT, P_DBG, P_WS = range(8, 36, 2)
R_WS, R_A, R_B, R_C, R_D = 36, 40, 44, 48, 52
S_NONCE = 56
S_T = 57
S_M = 80
S_MASKHI = 80
S_PERM_LO = 81
S_PERM_HI = 82
S_OFF = 84
S_SPIN = 96
S_PC = 100
S_W1B, S_W2B = 78, 79
S_XCC, S_LOCAL = 83, 95
S_WI = 94
S_MW = 93
V_W2O = (2, 253)
V_L16 = 3
S_ST0 = 98

SRD3 = 0x00020000
LOG2E = 1.4426950408889634
SPIN_MAX = 1 << 17


class Rec:
    def __init__(self):
        self.items = []

    def __call__(self, text):
        self.items.append(text)

    def await_regs(self, *toks):
        self.items.append(("await", toks))

    def play(self, A, n):
        for _ in range(n):
            if not self.items:
                return
            it = self.items.pop(0)
            if isinstance(it, tuple):
                A.await_regs(*it[1])
            else:
                A(it)


class Gen:
    def __init__(self, stop=None, stamps=False, opts=None):
        self.o = dict(cring=3, repf=0, burst_before_flag=0, n_burst_t2=28, n_bg_c=36, bg_b=1, nobg=0)
        self.o.update(opts or {})
        self.A = Asm()
        self.stop = stop
        self.stamps = stamps
        self.nlab = 0
        self.nstamp = 0
        self.n_burst_t2 = self.o["n_burst_t2"]
        self.n_bg_c = self.o["n_bg_c"]
        self.w2_order = list(range(41, 49)) + list(range(28, 41)) + list(range(28)) + list(range(49, 56))

    def lab(self, base):
        self.nlab += 1
        return f"L_{base}_{self.nlab}"

    def srd(self, r, ptr, nbytes, add=None):
        A = self.A
        if add is None:
            A(f"s_mov_b32 {s(r)}, {s(ptr)}")
            A(f"s_mov_b32 {s(r + 1)}, {s(ptr + 1)}")
        else:
            A(f"s_add_u32 {s(r)}, {s(ptr)}, {add}")
            A(f"s_addc_u32 {s(r + 1)}, {s(ptr + 1)}, 0")
        A(f"s_mov_b32 {s(r + 2)}, {nbytes}")
        A(f"s_mov_b32 {s(r + 3)}, 0x{SRD3:08x}")

    def stamp(self, idx):
        if not self.stamps:
            return
        A = self.A
        A(f"s_memrealtime {s(S_ST0, 2)}")
        A.wait_lgkm0()
        A(f"v_writelane_b32 v255, {s(S_ST0)}, {idx}")
        if self.o.get("cyc"):
            A(f"s_memtime {s(S_ST0, 2)}")
            A.wait_lgkm0()
            A(f"v_writelane_b32 v255, {s(S_ST0)}, {32 + idx}")

    def echo(self):
        A = self.A
        ia, ib = self.o["echo_a"], self.o["echo_b"]
        skip, loop = self.lab("echo"), self.lab("echol")
        A("s_cmp_lg_u32 s2, 0")
        A(f"s_cbranch_scc1 {skip}")
        A(f"v_readlane_b32 {s(S_T)}, v255, {ia}")
        A(f"v_readlane_b32 {s(S_T + 1)}, v255, {ib}")
        A(f"s_memrealtime {s(S_ST0, 2)}")
        A.wait_lgkm0()
        A(f"s_sub_u32 {s(S_T)}, {s(S_T + 1)}, {s(S_T)}")
        A(f"s_mul_i32 {s(S_T)}, {s(S_T)}, {self.o.get('echo_mul', 1)}")
        A(f"s_add_u32 {s(S_T)}, {s(S_T)}, {s(S_ST0)}")
        A.label(loop)
        A(f"s_memrealtime {s(S_ST0, 2)}")
        A.wait_lgkm0()
        A(f"s_sub_u32 {s(S_T + 1)}, {s(S_ST0)}, {s(S_T)}")
        A(f"s_cmp_lt_i32 {s(S_T + 1)}, 0")
        A(f"s_cbranch_scc1 {loop}")
        A.label(skip)

    def stamp_flush(self):
        if not self.stamps:
            return
        A = self.A
        if self.o.get("echo_b"):
            self.echo()
            return
        if self.o.get("dbg"):
            skip = self.lab("dbg")
            A(f"s_cmp_lg_u32 {s(S_WV)}, 0")
            A(f"s_cbranch_scc1 {skip}")
            A("s_cmp_eq_u32 s2, 0")
            A(f"s_cselect_b32 {s(S_T)}, 0, 32")
            A(f"s_cselect_b32 {s(S_T + 1)}, 1, 0")
            A("s_cmp_eq_u32 s2, 223")
            A(f"s_cselect_b32 {s(S_T + 1)}, 1, {s(S_T + 1)}")
            A(f"s_cmp_eq_u32 {s(S_T + 1)}, 0")
            A(f"s_cbranch_scc1 {skip}")
            A.cond_begin()
            A(f"v_readlane_b32 {s(S_T + 2)}, v255, 31")
            self.srd(R_A, P_DBG, 256)
            for n_, idx in enumerate((3, 5, 8, 10, 11, 12, 15, 16)):
                A(f"v_readlane_b32 {s(S_T + 3)}, v255, {idx}")
                A(f"s_sub_u32 {s(S_T + 3)}, {s(S_T + 3)}, {s(S_T + 2)}")
                A(f"v_mov_b32 v250, {s(S_T + 3)}")
                A(f"s_add_u32 {s(S_T + 4)}, {s(S_T)}, {4 * n_}")
                A(f"v_mov_b32 v251, {s(S_T + 4)}")
                A("s_mov_b64 exec, 1")
                A(f"buffer_store_dword v250, v251, {s(R_A, 4)}, 0 offen")
                A("s_mov_b64 exec, -1")
            A.cond_end()
            A.label(skip)
            return
        skip = self.lab("sf")
        A(f"s_cmp_lg_u32 {s(S_WV)}, 0")
        A(f"s_cbranch_scc1 {skip}")
        A.cond_begin()
        A("v_lshlrev_b32 v254, 2, v1")
        A(f"s_lshl_b32 {s(S_SPIN + 1)}, s2, 8")
        A(f"s_add_u32 {s(S_SPIN + 1)}, {s(S_SPIN + 1)}, {STAMP}")
        A(f"buffer_store_dword v255, v254, {s(R_WS, 4)}, {s(S_SPIN + 1)} offen")
        A.cond_end()
        A.label(skip)

    def flag_store(self, soff_sgpr, vtmp=252, with_xcc=False, sc=" sc1"):
        A = self.A
        skip = self.lab("fl")
        A(f"s_cmp_lg_u32 {s(S_WV)}, 0")
        A(f"s_cbranch_scc1 {skip}")
        A.cond_begin()
        A(f"v_mov_b32 {v(vtmp)}, {s(S_NONCE)}")
        if with_xcc:
            A(f"v_mov_b32 {v(vtmp + 1)}, {s(S_XCC)}")
        A(f"v_mov_b32 {v(vtmp + 2)}, {s(soff_sgpr)}")
        A("s_mov_b64 exec, 1")
        if with_xcc:
            A(f"buffer_store_dwordx2 {v(vtmp, 2)}, {v(vtmp + 2)}, {s(R_WS, 4)}, 0 offen{sc}")
        else:
            A(f"buffer_store_dword {v(vtmp)}, {v(vtmp + 2)}, {s(R_WS, 4)}, 0 offen{sc}")
        A("s_mov_b64 exec, -1")
        A.cond_end()
        A.label(skip)

    def poll(self, vaddr, vtmp):
        A = self.A
        loop, done = self.lab("poll"), self.lab("polld")
        if not self.o.get("poll_mask", 1):
            A(f"s_mov_b32 {s(S_SPIN)}, 0")
            A.label(loop)
            A(f"buffer_load_dword {v(vtmp)}, {v(vaddr)}, {s(R_WS, 4)}, 0 offen sc1")
            A.wait_vm(0)
            A(f"v_cmp_ne_u32 vcc, {s(S_NONCE)}, {v(vtmp)}")
            A(f"s_add_u32 {s(S_SPIN)}, {s(S_SPIN)}, 1")
            A("s_nop 3")
            A("s_cmp_eq_u64 vcc, 0")
            A(f"s_cbranch_scc1 {done}")
            A(f"s_cmp_lt_u32 {s(S_SPIN)}, {SPIN_MAX}")
            A(f"s_cbranch_scc1 {loop}")
            A.label(done)
            return
        A(f"s_mov_b32 {s(S_SPIN)}, 0")
        A.label(loop)
        A(f"buffer_load_dword {v(vtmp)}, {v(vaddr)}, {s(R_WS, 4)}, 0 offen sc1")
        A.wait_vm(0)
        A(f"v_cmp_ne_u32 vcc, {s(S_NONCE)}, {v(vtmp)}")
        A(f"s_add_u32 {s(S_SPIN)}, {s(S_SPIN)}, 1")
        A("s_nop 3")
        A("s_cmp_eq_u64 vcc, 0")
        A(f"s_cbranch_scc1 {done}")
        A("s_mov_b64 exec, vcc")
        A(f"s_cmp_lt_u32 {s(S_SPIN)}, {SPIN_MAX}")
        A(f"s_cbranch_scc1 {loop}")
        A.label(done)
        A("s_mov_b64 exec, -1")

    def code_prefetch(self):
        A = self.A
        A("v_lshlrev_b32 v253, 7, v0")
        A("v_min_u32 v253, L_code_end-L_pc-4, v253")
        A(f"global_load_dword v254, v253, {s(S_PC, 2)}")

    def finish(self):
        self.A("s_endpgm")

    def prologue(self):
        A = self.A
        A("s_cmp_ge_u32 s2, 224")
        A("s_cbranch_scc1 L_exit")
        if self.stamps:
            A(f"s_memrealtime {s(76, 2)}")
        A(f"s_load_dwordx16 {s(8, 16)}, s[0:1], 0")
        A(f"s_load_dwordx8 {s(24, 8)}, s[0:1], 64")
        A(f"s_load_dwordx4 {s(32, 4)}, s[0:1], 96")
        A(f"s_getpc_b64 {s(S_PC, 2)}")
        A.label("L_pc")
        A("v_lshlrev_b32 v253, 7, v0")
        A("v_min_u32 v253, L_code_end-L_pc-4, v253")
        A(f"global_load_dword v254, v253, {s(S_PC, 2)}")
        A("v_lshrrev_b32 v2, 6, v0")
        A("v_and_b32 v1, 63, v0")
        A(f"s_and_b32 {s(S_T)}, s2, 7")
        A(f"s_lshr_b32 {s(S_T + 1)}, s2, 3")
        A(f"v_readfirstlane_b32 {s(S_WV)}, v2")
        A(f"s_getreg_b32 {s(S_XCC)}, hwreg(HW_REG_XCC_ID, 0, 4)")
        A(f"s_mov_b32 {s(S_MASKHI)}, 0xffff0000")
        A(f"s_mov_b32 {s(S_PERM_LO)}, 0x05040100")
        A(f"s_mov_b32 {s(S_PERM_HI)}, 0x07060302")
        A(f"s_mov_b32 {s(S_WI)}, {s(S_T + 1)}")
        A(f"s_mul_i32 {s(S_T + 2)}, {s(S_WI)}, 37")
        A(f"s_lshr_b32 {s(S_T + 2)}, {s(S_T + 2)}, 8")
        A(f"s_mul_i32 {s(S_T + 3)}, {s(S_T + 2)}, 7")
        A(f"s_sub_u32 {s(S_J)}, {s(S_WI)}, {s(S_T + 3)}")
        A(f"s_lshl_b32 {s(S_RB)}, {s(S_T)}, 2")
        A(f"s_add_u32 {s(S_RB)}, {s(S_RB)}, {s(S_T + 2)}")
        A(f"s_lshl_b32 {s(S_CP)}, {s(S_J)}, 5")
        A(f"s_add_u32 {s(S_CP)}, {s(S_CP)}, {s(S_RB)}")
        A.wait_lgkm0()
        self.srd(R_WS, P_WS, WS_END)
        A(f"s_load_dword {s(S_NONCE)}, {s(P_WS, 2)}, 0")
        A(f"s_mul_i32 {s(S_MW)}, {s(S_T)}, 28")
        A(f"s_add_u32 {s(S_MW)}, {s(S_MW)}, {s(S_WI)}")

    def phase_p(self):
        A = self.A
        T = S_T
        NB = 2048 * 896
        t0, t1, t2 = T + 12, T + 13, T + 14
        vC, vRG, vL16, vOffO, vKa, vSh, vSa, vSb, vRow, vWa, vx = 2, 3, 4, 5, 6, 10, 11, 12, 13, 14, 15
        vK, vV, vSH, vQO, vQ, vW, vKD = 16, 36, 44, 60, 68, 84, 100
        A(f"v_and_b32 {v(vC)}, 7, v1")
        A(f"v_lshrrev_b32 {v(vRG)}, 3, v1")
        A(f"s_lshl_b32 {s(T)}, {s(S_RB)}, 6")
        A(f"s_lshl_b32 {s(T + 1)}, {s(S_WV)}, 4")
        A(f"s_add_u32 {s(T + 1)}, {s(T)}, {s(T + 1)}")
        A(f"v_lshl_add_u32 {v(vOffO)}, {v(vRG)}, 1, {s(T + 1)}")
        A(f"v_mul_u32_u24 {v(vOffO)}, 896, {v(vOffO)}")
        A(f"v_lshl_add_u32 {v(vOffO)}, {v(vC)}, 4, {v(vOffO)}")
        A(f"s_lshl_b32 {s(T + 2)}, {s(S_J)}, 7")
        A(f"v_add_u32 {v(vOffO)}, {s(T + 2)}, {v(vOffO)}")
        kad = {}
        for n_, i in enumerate((0, 1, 2, 4)):
            d = (i - 3) * 896
            kad[i] = vKa + n_
            if d < 0:
                A(f"v_subrev_u32 {v(kad[i])}, {-d}, {v(vOffO)}")
            else:
                A(f"v_add_u32 {v(kad[i])}, {d}, {v(vOffO)}")
        kad[3] = vOffO
        self.srd(R_A, P_K, NB)
        self.srd(R_B, P_V, NB)
        for i in range(5):
            A(f"buffer_load_dwordx4 {v(vK + 4 * i, 4)}, {v(kad[i])}, {s(R_A, 4)}, 0 offen")
        if self.o.get("fine"):
            self.stamp(2)
        for i in range(2):
            A(f"buffer_load_dwordx4 {v(vV + 4 * i, 4)}, {v(vOffO)}, {s(R_B, 4)}, 0 offen offset:{896 * i}")
        if self.o.get("fine"):
            self.stamp(4)
        self.srd(R_C, P_SH, 448 * 8)
        A(f"s_lshl_b32 {s(T + 3)}, {s(S_J)}, 9")
        A(f"v_lshl_add_u32 {v(vSh)}, {v(vC)}, 6, {s(T + 3)}")
        for i in range(4):
            A(f"buffer_load_dwordx4 {v(vSH + 4 * i, 4)}, {v(vSh)}, {s(R_C, 4)}, 0 offen offset:{16 * i}")
        if self.o.get("fine"):
            self.stamp(19)
        self.srd(R_A, P_Q, NB)
        for r in range(2):
            A(f"buffer_load_dwordx4 {v(vQO + 4 * r, 4)}, {v(vOffO)}, {s(R_A, 4)}, 0 offen offset:{896 * r}")
        if self.o.get("fine"):
            self.stamp(20)
        A(f"s_lshl_b32 {s(t1)}, {s(S_J)}, 3")
        A(f"s_add_u32 {s(t0)}, {s(T)}, {s(t1)}")
        A(f"s_lshl_b32 {s(t1)}, {s(S_WV)}, 2")
        A(f"s_add_u32 {s(t0)}, {s(t0)}, {s(t1)}")
        A(f"v_lshrrev_b32 {v(vRow)}, 4, v1")
        A(f"v_add_u32 {v(vRow)}, {s(t0)}, {v(vRow)}")
        A(f"v_mul_u32_u24 {v(vSa)}, 896, {v(vRow)}")
        A(f"v_and_b32 {v(vSb)}, 15, v1")
        A(f"v_lshl_add_u32 {v(vSa)}, {v(vSb)}, 4, {v(vSa)}")
        A(f"v_cmp_gt_u32 vcc, 8, {v(vSb)}")
        A(f"v_add_u32 {v(vSb)}, 768, {v(vSa)}")
        A(f"v_mov_b32 {v(vx)}, -1")
        A(f"v_cndmask_b32 {v(vSb)}, {v(vx)}, {v(vSb)}, vcc")
        for i in range(3):
            A(f"buffer_load_dwordx4 {v(vQ + 4 * i, 4)}, {v(vSa)}, {s(R_A, 4)}, 0 offen offset:{256 * i}")
        A(f"buffer_load_dwordx4 {v(vQ + 12, 4)}, {v(vSb)}, {s(R_A, 4)}, 0 offen")
        if self.o.get("fine"):
            self.stamp(29)
        vM, vSC, vMA, vMT, vMa, vCa = 84, 96, 100, 108, 116, 117
        sCG, sRS = T + 21, T + 5
        self.srd(R_B, P_WM, 448 * 5376)
        self.srd(R_C, P_C, 896)
        A(f"s_mul_i32 {s(sRS)}, {s(S_MW)}, 1561")
        A(f"s_lshr_b32 {s(sRS)}, {s(sRS)}, 16")
        A(f"s_mul_i32 {s(sCG)}, {s(sRS)}, 42")
        A(f"s_sub_u32 {s(sCG)}, {s(S_MW)}, {s(sCG)}")
        A(f"s_mul_i32 {s(t0)}, {s(S_WV)}, 24")
        A(f"v_lshrrev_b32 {v(vMT)}, 3, v1")
        A(f"v_add_u32 {v(vMT)}, {s(t0)}, {v(vMT)}")
        A(f"s_mul_i32 {s(t1)}, {s(sRS)}, 90")
        A(f"v_add_u32 {v(vMT + 1)}, {s(t1)}, {v(vMT)}")
        A(f"v_lshlrev_b32 {v(vCa)}, 1, {v(vMT + 1)}")
        A(f"v_mul_u32_u24 {v(vMa)}, 5376, {v(vMT + 1)}")
        A(f"v_and_b32 {v(vMT + 2)}, 7, v1")
        A(f"v_lshl_add_u32 {v(vMa)}, {v(vMT + 2)}, 4, {v(vMa)}")
        A(f"s_lshl_b32 {s(t1)}, {s(sCG)}, 7")
        A(f"v_add_u32 {v(vMa)}, {s(t1)}, {v(vMa)}")
        A(f"v_cmp_gt_u32 vcc, {90 - 16}, {v(vMT)}")
        A(f"v_add_u32 {v(vMT + 3)}, {16 * 5376}, {v(vMa)}")
        A(f"v_mov_b32 {v(vMT + 4)}, 0x80000000")
        A(f"v_add_u32 {v(vMT + 5)}, {8 * 5376}, {v(vMa)}")
        A(f"v_cndmask_b32 {v(vMT + 3)}, {v(vMT + 4)}, {v(vMT + 3)}, vcc")
        for i in range(3):
            A(f"buffer_load_ushort {v(vSC + i)}, {v(vCa)}, {s(R_C, 4)}, 0 offen offset:{16 * i}")
        for i, ad in enumerate((vMa, vMT + 5, vMT + 3)):
            A(f"buffer_load_dwordx4 {v(vM + 4 * i, 4)}, {v(ad)}, {s(R_B, 4)}, 0 offen")
        self.stamp(1)

        sWB, sSrc, sStride, sA, sR1, sD0, sDS = T + 4, T + 6, T + 7, T + 8, T + 9, T + 10, T + 11
        A(f"s_mul_i32 {s(sWB)}, {s(S_RB)}, 7")
        A(f"s_add_u32 {s(sWB)}, {s(sWB)}, {s(S_J)}")
        A(f"s_lshr_b32 {s(t0)}, {s(sWB)}, 2")
        A(f"s_and_b32 {s(t1)}, {s(sWB)}, 3")
        A(f"s_mul_i32 {s(sSrc)}, {s(t0)}, {16 * 3584}")
        A(f"s_mul_i32 {s(t2)}, {s(t1)}, 896")
        A(f"s_add_u32 {s(sSrc)}, {s(sSrc)}, {s(t2)}")
        A(f"s_mul_i32 {s(t2)}, {s(t1)}, 14")
        A(f"s_add_u32 {s(t2)}, {s(t2)}, {s(S_WV)}")
        A(f"s_mul_i32 {s(t2)}, {s(t2)}, 28")
        A(f"s_add_u32 {s(sD0)}, {s(t2)}, {s(t0)}")
        A(f"s_lshl_b32 {s(sD0)}, {s(sD0)}, 10")
        A(f"s_add_u32 {s(sD0)}, {s(sD0)}, {W1F}")
        u0, u1, u2, uSrc, uD0 = T + 16, T + 17, T + 18, T + 19, T + 20
        A(f"s_sub_u32 {s(u0)}, {s(sWB)}, 112")
        A(f"s_mul_i32 {s(uSrc)}, {s(u0)}, {16 * 896}")
        A(f"s_mul_i32 {s(u1)}, {s(u0)}, 147")
        A(f"s_lshr_b32 {s(u1)}, {s(u1)}, 12")
        A(f"s_mul_i32 {s(u2)}, {s(u1)}, 28")
        A(f"s_sub_u32 {s(u2)}, {s(u0)}, {s(u2)}")
        A(f"s_mul_i32 {s(uD0)}, {s(u1)}, 56")
        A(f"s_lshl_b32 {s(u2)}, {s(u2)}, 1")
        A(f"s_add_u32 {s(uD0)}, {s(uD0)}, {s(u2)}")
        A(f"s_lshr_b32 {s(u1)}, {s(S_WV)}, 1")
        A(f"s_mul_i32 {s(u1)}, {s(u1)}, 224")
        A(f"s_add_u32 {s(uD0)}, {s(uD0)}, {s(u1)}")
        A(f"s_and_b32 {s(u1)}, {s(S_WV)}, 1")
        A(f"s_add_u32 {s(uD0)}, {s(uD0)}, {s(u1)}")
        A(f"s_lshl_b32 {s(uD0)}, {s(uD0)}, 10")
        A(f"s_add_u32 {s(uD0)}, {s(uD0)}, {W2F}")
        A(f"s_cmp_ge_u32 {s(sWB)}, 112")
        A(f"s_cselect_b32 {s(sSrc)}, {s(uSrc)}, {s(sSrc)}")
        A(f"s_cselect_b32 {s(sD0)}, {s(uD0)}, {s(sD0)}")
        A(f"s_mov_b32 {s(sStride)}, 3584")
        A(f"s_cselect_b32 {s(sStride)}, 896, {s(sStride)}")
        A(f"s_cselect_b32 {s(sA)}, 4, 8")
        A(f"s_mov_b32 {s(sR1)}, {4 * 1088}")
        A(f"s_cselect_b32 {s(sR1)}, {8 * 1088}, {s(sR1)}")
        A(f"s_mov_b32 {s(sDS)}, {112 * 1024}")
        A(f"s_cselect_b32 {s(sDS)}, {448 * 1024}, {s(sDS)}")
        A(f"s_cselect_b32 {s(R_D)}, {s(P_W2)}, {s(P_W1)}")
        A(f"s_cselect_b32 {s(R_D + 1)}, {s(P_W2 + 1)}, {s(P_W1 + 1)}")
        A(f"s_mov_b32 {s(R_D + 2)}, 1605632")
        A(f"s_mov_b32 {s(R_D + 3)}, 0x{SRD3:08x}")
        A(f"s_lshl_b32 {s(t0)}, {s(S_WV)}, 2")
        A(f"s_mul_i32 {s(t0)}, {s(t0)}, {s(sStride)}")
        A(f"s_add_u32 {s(sSrc)}, {s(sSrc)}, {s(t0)}")
        A(f"v_lshlrev_b32 {v(vL16)}, 4, v1")
        A(f"v_add_u32 {v(vWa)}, {s(sSrc)}, {v(vL16)}")
        A(f"s_lshl_b32 {s(t0)}, {s(S_CP)}, 13")
        self.srd(R_B, P_SK, 4096, add=s(t0))
        A(f"s_add_u32 {s(t0)}, {s(t0)}, 4096")
        self.srd(R_C, P_SK, 4096, add=s(t0))
        vKA, vKB, vKA2, vKB2 = 132, 133, 134, 135
        A(f"v_lshlrev_b32 {v(vKA)}, 4, v0")
        A(f"v_subrev_u32 {v(vKB)}, 16, {v(vKA)}")
        A(f"v_subrev_u32 {v(vKA)}, 32, {v(vKA)}")
        A(f"v_and_b32 {v(vKA2)}, 1, v1")
        A(f"v_lshlrev_b32 {v(vKA2)}, 4, {v(vKA2)}")
        A(f"v_add_u32 {v(vKB2)}, 4080, {v(vKA2)}")
        vTPW, vWw, vTPR, vStO, vTR0, vTR1, vKW = 136, 137, 138, 139, 140, 141, 142
        A(f"v_add_u32 {v(vKW + 1)}, {4096 + L_KC}, {v(vKA2)}")
        A(f"v_add_u32 {v(vKA2)}, 4064, {v(vKA2)}")
        A(f"v_lshlrev_b32 {v(vKW)}, 4, v0")
        A(f"v_add_u32 {v(vKW)}, {L_KC}, {v(vKW)}")
        A(f"v_mul_u32_u24 {v(vTPW)}, 1088, {v(vC)}")
        A(f"v_lshl_add_u32 {v(vTPW)}, {v(vRG)}, 3, {v(vTPW)}")
        A(f"s_lshl_b32 {s(t0)}, {s(S_WV)}, 6")
        A(f"v_add_u32 {v(vTPW)}, {s(t0)}, {v(vTPW)}")
        A(f"s_mul_i32 {s(t1)}, {s(S_WV)}, {4 * 1088}")
        A(f"v_add_u32 {v(vWw)}, {s(t1)}, {v(vL16)}")
        A(f"v_lshrrev_b32 {v(vStO)}, 4, v0")
        A(f"v_mul_u32_u24 {v(vTPR)}, 272, {v(vStO)}")
        A(f"v_and_b32 {v(vx)}, 15, v0")
        A(f"v_lshl_add_u32 {v(vTPR)}, {v(vx)}, 4, {v(vTPR)}")
        A(f"v_lshlrev_b32 {v(vStO)}, 13, {v(vStO)}")
        A(f"v_lshl_add_u32 {v(vStO)}, {v(vx)}, 4, {v(vStO)}")
        A(f"v_lshrrev_b32 {v(vTR0)}, 5, v1")
        A(f"v_mul_lo_u32 {v(vTR0)}, {v(vTR0)}, {s(sA)}")
        A(f"v_bfe_u32 {v(vx)}, v1, 2, 2")
        A(f"v_add_u32 {v(vTR0)}, {v(vTR0)}, {v(vx)}")
        A(f"v_mul_u32_u24 {v(vTR0)}, 1088, {v(vTR0)}")
        A(f"v_bfe_u32 {v(vx)}, v1, 4, 1")
        A(f"v_lshl_add_u32 {v(vTR0)}, {v(vx)}, 5, {v(vTR0)}")
        A(f"v_and_b32 {v(vx)}, 3, v1")
        A(f"v_lshl_add_u32 {v(vTR0)}, {v(vx)}, 3, {v(vTR0)}")
        A(f"v_add_u32 {v(vTR0)}, {s(t0)}, {v(vTR0)}")
        A(f"v_add_u32 {v(vTR1)}, {s(sR1)}, {v(vTR0)}")
        sTile = S_OFF
        A(f"s_lshl_b32 {s(sTile)}, {s(S_J)}, 18")
        A(f"s_lshl_b32 {s(t0)}, {s(S_RB)}, 8")
        A(f"s_add_u32 {s(sTile)}, {s(sTile)}, {s(t0)}")
        A(f"v_lshlrev_b32 {v(vRow)}, 2, {v(vRow)}")
        A("v_mov_b32 v240, 0")
        A("v_mov_b32 v241, 0")
        A("v_lshlrev_b32 v242, 3, v1")
        for e in range(2):
            A(f"ds_write_b64 v242, v[240:241] offset:{L_UR + 4608 * e + 4096}")

        KG = [120, 126, 176, 246] if self.o.get("k_early", 1) else [vKD + 8 * g_ for g_ in range(4)]

        def k_loads():
            for e in range(2):
                R = R_B if e == 0 else R_C
                for ps in range(2):
                    b = KG[2 * e + ps]
                    A(f"buffer_load_dwordx4 {v(b, 4)}, {v(vKA if ps == 0 else vKA2)}, {s(R, 4)}, 0 offen")
                    A(f"buffer_load_dwordx2 {v(b + 4, 2)}, {v(vKB if ps == 0 else vKB2)}, {s(R, 4)}, 0 offen")

        if self.o.get("wraw_early", 0):
            vW = 216

        def w_raw_loads():
            for i in range(4):
                A(f"buffer_load_dwordx4 {v(vW + 4 * i, 4)}, {v(vWa)}, {s(R_D, 4)}, 0 offen")
                if i < 3:
                    A(f"v_add_u32 {v(vWa)}, {s(sStride)}, {v(vWa)}")

        if self.o.get("k_early", 1):
            k_loads()
        if self.o.get("wraw_early", 0):
            w_raw_loads()
        TT, AC, VU, vO = 144, 184, 200, 232
        if self.o.get("p_dot2", 1):
            A.await_regs(v(vK, 20), v(vSH, 16))
            self.stamp(21)
            for p in range(4):
                for e, sel in ((0, S_PERM_LO), (1, S_PERM_HI)):
                    for i in range(4):
                        A(f"v_perm_b32 {v(TT + 8 * p + 4 * e + i)}, {v(vK + 4 * i + p)}, {v(vK + 4 * (i + 1) + p)}, {s(sel)}")
            for row in range(2):
                for p in range(4):
                    for e in range(2):
                        w = vSH + 2 * (2 * p + e)
                        A(f"v_dot2_f32_bf16 {v(AC + 4 * p + 2 * row + e)}, {v(TT + 8 * p + 4 * e + row)}, {v(w + 1)}, 0")
            for row in range(2):
                for p in range(4):
                    for e in range(2):
                        w = vSH + 2 * (2 * p + e)
                        d = AC + 4 * p + 2 * row + e
                        A(f"v_dot2_f32_bf16 {v(d)}, {v(TT + 8 * p + 4 * e + 2 + row)}, {v(w)}, {v(d)}")
            for row in range(2):
                for p in range(4):
                    src = vV + 4 * row + p
                    A(f"v_lshlrev_b32 {v(VU + 4 * p + 2 * row)}, 16, {v(src)}")
                    A(f"v_and_b32 {v(VU + 4 * p + 2 * row + 1)}, {s(S_MASKHI)}, {v(src)}")
            for p in range(4):
                for row in range(2):
                    acc = AC + 4 * p + 2 * row
                    A(f"v_pk_mul_f32 {v(acc, 2)}, {v(acc, 2)}, {v(VU + 4 * p + 2 * row, 2)}")
            for p in range(4):
                for row in range(2):
                    acc = AC + 4 * p + 2 * row
                    A(f"v_cvt_pk_bf16_f32 {v(vO + 2 * p + row)}, {v(acc)}, {v(acc + 1)}")
        for p in range(4):
            A(f"ds_write_b64 {v(vTPW)}, {v(vO + 2 * p, 2)} offset:{L_TPK + 272 * p}")
        self.stamp(22)
        A(f"v_add_u32 {v(vx)}, {L_TPQ}, {v(vTPW)}")
        A.await_regs(v(vQO, 8))
        for p in range(4):
            A(f"ds_write2_b32 {v(vx)}, {v(vQO + p)}, {v(vQO + 4 + p)} offset0:{68 * p} offset1:{68 * p + 1}")
        A.await_regs(v(vQ, 16))
        m, q2 = 240, 244
        A(f"s_mov_b32 {s(t2)}, 0x3f803f80")
        for i in range(16):
            d1, d2 = m + (i & 1), q2 + (i & 1)
            A(f"v_dot2_f32_bf16 {v(d1)}, {v(vQ + i)}, {s(t2)}, {'0' if i < 2 else v(d1)}")
            A(f"v_dot2_f32_bf16 {v(d2)}, {v(vQ + i)}, {v(vQ + i)}, {'0' if i < 2 else v(d2)}")
        A(f"v_add_f32 {v(m)}, {v(m)}, {v(m + 1)}")
        A(f"v_add_f32 {v(q2)}, {v(q2)}, {v(q2 + 1)}")
        for mod in ("quad_perm:[1,0,3,2]", "quad_perm:[2,3,0,1]", "row_half_mirror", "row_mirror"):
            for c_ in (m, q2):
                A(f"v_add_f32_dpp {v(c_)}, {v(c_)}, {v(c_)} {mod} row_mask:0xf bank_mask:0xf")
        A(f"s_mov_b32 {s(t0)}, 0x{f32bits(1.0 / 448):08x}")
        A(f"s_mov_b32 {s(t1)}, 0x{f32bits(1e-5):08x}")
        A(f"v_mul_f32 {v(m)}, {s(t0)}, {v(m)}")
        A(f"v_mul_f32 {v(q2)}, {s(t0)}, {v(q2)}")
        A(f"v_fma_f32 {v(q2)}, -{v(m)}, {v(m)}, {v(q2)}")
        A(f"v_max_f32 {v(q2)}, 0, {v(q2)}")
        A(f"v_add_f32 {v(q2)}, {s(t1)}, {v(q2)}")
        A(f"v_rsq_f32 {v(q2)}, {v(q2)}")
        L_MP = L_TPN
        A(f"s_mov_b32 {s(t1)}, 0x{f32bits(-LOG2E):08x}")
        A.await_regs(v(vSC, 3))
        for i in range(3):
            A(f"v_lshlrev_b32 {v(vSC + i)}, 16, {v(vSC + i)}")
        for i in range(3):
            A(f"v_mul_f32 {v(vMT + i)}, {s(t1)}, {v(vSC + i)}")
        for i in range(3):
            A(f"v_exp_f32 {v(vMT + i)}, {v(vMT + i)}")
        for i in range(3):
            A(f"v_add_f32 {v(vMT + i)}, 1.0, {v(vMT + i)}")
        for i in range(3):
            A(f"v_rcp_f32 {v(vMT + i)}, {v(vMT + i)}")
        A(f"s_lshl_b32 {s(t2)}, {s(S_WV)}, 2")
        A(f"v_lshrrev_b32 {v(vCa)}, 4, v1")
        A(f"v_add_u32 {v(vCa)}, {s(t2)}, {v(vCa)}")
        for i in range(3):
            A(f"v_mul_f32 {v(vSC + i)}, {v(vSC + i)}, {v(vMT + i)}")
        A(f"v_mul_u32_u24 {v(vCa)}, 272, {v(vCa)}")
        A(f"v_and_b32 {v(vMa)}, 7, v1")
        for i in range(3):
            A(f"v_cvt_pk_bf16_f32 {v(vSC + i)}, {v(vSC + i)}, {v(vSC + i)}")
        A(f"v_lshl_add_u32 {v(vCa)}, {v(vMa)}, 5, {v(vCa)}")
        for i in range(3):
            A(f"v_and_b32 {v(vSC + i)}, {s(S_MASKHI)}, {v(vSC + i)}")
        A(f"v_add_u32 {v(vCa)}, {L_MP}, {v(vCa)}")
        A.await_regs(v(vM, 12))
        for i in range(3):
            for k in range(4):
                A(f"v_lshlrev_b32 {v(vMT + 2 * k)}, 16, {v(vM + 4 * i + k)}")
                A(f"v_and_b32 {v(vMT + 2 * k + 1)}, {s(S_MASKHI)}, {v(vM + 4 * i + k)}")
            sc = vSC + i
            base, e = (sc, 0) if sc % 2 == 0 else (sc - 1, 1)
            for k in range(4):
                if i == 0:
                    A(f"v_pk_mul_f32 {v(vMA + 2 * k, 2)}, {v(vMT + 2 * k, 2)}, {v(base, 2)} op_sel:[0,{e}] op_sel_hi:[1,{e}]")
                else:
                    A(f"v_pk_fma_f32 {v(vMA + 2 * k, 2)}, {v(vMT + 2 * k, 2)}, {v(base, 2)}, {v(vMA + 2 * k, 2)} op_sel:[0,{e},0] op_sel_hi:[1,{e},1]")
        for k in range(8):
            A(f"v_add_f32_dpp {v(vMA + k)}, {v(vMA + k)}, {v(vMA + k)} row_ror:8 row_mask:0xf bank_mask:0xf")
        A(f"ds_write_b128 {v(vCa)}, {v(vMA, 4)}")
        A(f"ds_write_b128 {v(vCa)}, {v(vMA + 4, 4)} offset:16")
        A.barrier()
        self.stamp(23)
        vRB = 16
        for i in range(2):
            A(f"ds_read_b128 {v(vRB + 4 * i, 4)}, {v(vTPR)} offset:{L_TPK + 4352 * i}")
        for i in range(2):
            A(f"ds_read_b128 {v(vRB + 8 + 4 * i, 4)}, {v(vTPR)} offset:{L_TPQ + 4352 * i}")
        A(f"v_mul_f32 {v(m)}, {v(m)}, {v(q2)}")
        vF0, vJ = 100, 118
        A(f"v_lshlrev_b32 {v(vJ)}, 2, v1")
        A(f"v_add_u32 {v(vJ + 1)}, {L_TPN}, {v(vJ)}")
        for g_ in range(16):
            A(f"ds_read_b32 {v(vF0 + g_)}, {v(vJ + 1)} offset:{272 * g_}")
        A(f"s_mul_i32 {s(sRS)}, {s(sRS)}, {MPL}")
        A(f"s_lshl_b32 {s(sCG)}, {s(sCG)}, 8")
        A(f"s_add_u32 {s(sRS)}, {s(sRS)}, {s(sCG)}")
        A(f"s_add_u32 {s(sRS)}, {s(sRS)}, {MODF}")
        A.await_regs(v(vF0, 16))
        for stp in (8, 4, 2, 1):
            for g_ in range(stp):
                A(f"v_add_f32 {v(vF0 + g_)}, {v(vF0 + g_)}, {v(vF0 + g_ + stp)}")
        A(f"s_add_u32 {s(t0)}, {s(sTile)}, {KVP}")
        A(f"s_add_u32 {s(t1)}, {s(sTile)}, {KVP + 131072}")
        A(f"s_add_u32 {s(t2)}, {s(sTile)}, {QP}")
        A(f"s_add_u32 {s(u0)}, {s(sTile)}, {QP + 131072}")
        A.await_regs(v(vRB, 8))
        A(f"buffer_store_dwordx4 {v(vRB, 4)}, {v(vStO)}, {s(R_WS, 4)}, {s(t0)} offen sc1")
        A(f"buffer_store_dwordx4 {v(vRB + 4, 4)}, {v(vStO)}, {s(R_WS, 4)}, {s(t1)} offen sc1")
        A.await_regs(v(vRB + 8, 8))
        A(f"buffer_store_dwordx4 {v(vRB + 8, 4)}, {v(vStO)}, {s(R_WS, 4)}, {s(t2)} offen sc1")
        A(f"buffer_store_dwordx4 {v(vRB + 12, 4)}, {v(vStO)}, {s(R_WS, 4)}, {s(u0)} offen sc1")
        A(f"s_mov_b32 {s(t0)}, {STR}")
        A(f"s_mov_b32 {s(t1)}, {STM}")
        A(f"s_mov_b32 exec_lo, 0x00010001")
        A(f"s_mov_b32 exec_hi, 0x00010001")
        A(f"buffer_store_dword {v(q2)}, {v(vRow)}, {s(R_WS, 4)}, {s(t0)} offen sc1")
        A(f"buffer_store_dword {v(m)}, {v(vRow)}, {s(R_WS, 4)}, {s(t1)} offen sc1")
        A("s_mov_b64 exec, -1")
        skipm = self.lab("ms")
        A(f"s_cmp_lg_u32 {s(S_WV)}, 0")
        A(f"s_cbranch_scc1 {skipm}")
        A.cond_begin()
        A(f"buffer_store_dword {v(100)}, {v(118)}, {s(R_WS, 4)}, {s(sRS)} offen sc1")
        A.cond_end()
        A.label(skipm)
        self.stamp(24)
        def batch2():
            if not self.o.get("k_early", 1):
                k_loads()
            if not self.o.get("wraw_early", 0):
                w_raw_loads()

        mark = A.vm_count
        if not self.o.get("b2_late", 1):
            batch2()
        A(f"s_add_u32 {s(S_NONCE)}, {s(S_NONCE)}, 1")
        A(f"s_lshl_b32 {s(t0)}, {s(S_CP)}, 7")
        A(f"s_add_u32 {s(t0)}, {s(t0)}, {FL + F1 * 128}")
        A.wait_vm(A.vm_count - mark)
        A.barrier()
        self.flag_store(t0)
        if self.o.get("b2_late", 1):
            batch2()
        self.stamp(3)
        vx4 = 48
        for e in range(2):
            for ps in range(2):
                b = KG[2 * e + ps]
                base = e * 4 * CS
                ad = vKW + ps
                A.await_regs(v(b, 6))
                for i in range(4):
                    A(f"v_alignbit_b32 {v(vx4 + i)}, {v(b + i + 1)}, {v(b + i)}, 16")
                for i in range(4):
                    A(f"v_mov_b32 {v(vx4 + 4 + i)}, {v(b + i + 1)}")
                for i in range(4):
                    A(f"v_alignbit_b32 {v(vx4 + 8 + i)}, {v(b + i + 2)}, {v(b + i + 1)}, 16")
                A(f"ds_write_b128 {v(ad)}, {v(b, 4)} offset:{base}")
                A(f"ds_write_b128 {v(ad)}, {v(vx4, 4)} offset:{base + CS}")
                A(f"ds_write_b128 {v(ad)}, {v(vx4 + 4, 4)} offset:{base + 2 * CS}")
                A(f"ds_write_b128 {v(ad)}, {v(vx4 + 8, 4)} offset:{base + 3 * CS}")
        A.await_regs(v(vW, 16))
        for i in range(4):
            A(f"ds_write_b128 {v(vWw)}, {v(vW + 4 * i, 4)} offset:{L_WB + 1088 * i}")
        A.barrier()
        self.stamp(25)
        for i in range(4):
            A(f"ds_read_b64_tr_b16 {v(220 + 4 * i, 2)}, {v(vTR0)} offset:{L_WB + 256 * i}")
            A(f"ds_read_b64_tr_b16 {v(220 + 4 * i + 2, 2)}, {v(vTR1)} offset:{L_WB + 256 * i}")
        self.wr = dict(sWB=sWB, sD0=sD0, sDS=sDS)
        if self.o.get("w_early", 1):
            self.w_stores()
        self.stamp(26)

    def w_stores(self):
        A = self.A
        vF, sD0, sDS = 220, self.wr["sD0"], self.wr["sDS"]
        A.await_regs(v(vF, 16))
        for i in range(3):
            A(f"buffer_store_dwordx4 {v(vF + 4 * i, 4)}, v4, {s(R_WS, 4)}, {s(sD0)} offen sc1")
            A(f"s_add_u32 {s(sD0)}, {s(sD0)}, {s(sDS)}")
        skip = self.lab("w4")
        A(f"s_cmp_ge_u32 {s(S_WV)}, 2")
        A(f"s_cbranch_scc1 {skip}")
        A.cond_begin()
        A(f"buffer_store_dwordx4 {v(vF + 12, 4)}, v4, {s(R_WS, 4)}, {s(sD0)} offen sc1")
        A.cond_end()
        A.label(skip)

    def poll2_issue(self, va, vb, vt):
        A = self.A
        A(f"buffer_load_dword {v(vt)}, {v(va)}, {s(R_WS, 4)}, 0 offen sc1")
        A(f"buffer_load_dword {v(vt + 1)}, {v(vb)}, {s(R_WS, 4)}, 0 offen sc1")

    def poll1_check(self, va, vt):
        A = self.A
        done = self.lab("p1d")
        A(f"v_cmp_ne_u32 vcc, {s(S_NONCE)}, {v(vt)}")
        A("s_nop 1")
        A("s_cmp_eq_u64 vcc, 0")
        A(f"s_cbranch_scc1 {done}")
        st = A.snapshot()
        self.poll(va, vt)
        A.restore(st)
        A.label(done)

    def poll2_check(self, va, vb, vt):
        A = self.A
        loop, done = self.lab("p2"), self.lab("p2d")
        A(f"v_cmp_ne_u32 vcc, {s(S_NONCE)}, {v(vt)}")
        A(f"v_cmp_ne_u32 {s(S_SPIN + 2, 2)}, {s(S_NONCE)}, {v(vt + 1)}")
        A(f"s_mov_b32 {s(S_SPIN)}, 0")
        A("s_nop 1")
        A(f"s_or_b64 vcc, vcc, {s(S_SPIN + 2, 2)}")
        A("s_cmp_eq_u64 vcc, 0")
        A(f"s_cbranch_scc1 {done}")
        st = A.snapshot()
        A.label(loop)
        A(f"buffer_load_dword {v(vt)}, {v(va)}, {s(R_WS, 4)}, 0 offen sc1")
        A(f"buffer_load_dword {v(vt + 1)}, {v(vb)}, {s(R_WS, 4)}, 0 offen sc1")
        A.wait_vm(0)
        A(f"v_cmp_ne_u32 vcc, {s(S_NONCE)}, {v(vt)}")
        A(f"v_cmp_ne_u32 {s(S_SPIN + 2, 2)}, {s(S_NONCE)}, {v(vt + 1)}")
        A(f"s_add_u32 {s(S_SPIN)}, {s(S_SPIN)}, 1")
        A("s_nop 1")
        A(f"s_or_b64 vcc, vcc, {s(S_SPIN + 2, 2)}")
        A("s_cmp_eq_u64 vcc, 0")
        A(f"s_cbranch_scc1 {done}")
        A(f"s_cmp_lt_u32 {s(S_SPIN)}, {SPIN_MAX}")
        A(f"s_cbranch_scc1 {loop}")
        A.restore(st)
        A.label(done)

    def phase_a(self):
        A = self.A
        T = S_T
        t0, t1, t2 = T, T + 1, T + 2
        vPa, vPt, vx, vy = 2, 3, 16, 17
        A(f"v_min_u32 {v(vPa)}, 55, v1")
        A(f"s_mul_i32 {s(t0)}, {s(S_WV)}, 56")
        A(f"v_add_u32 {v(vPa)}, {s(t0)}, {v(vPa)}")
        A(f"v_lshlrev_b32 {v(vPa)}, 7, {v(vPa)}")
        A(f"v_add_u32 {v(vPa)}, {FL + F1 * 128}, {v(vPa)}")
        vL16 = 4
        sKV = S_OFF + 2
        A(f"s_lshl_b32 {s(sKV)}, {s(S_CP)}, 13")
        A(f"s_lshl_b32 {s(t2)}, {s(S_WV)}, 11")
        A(f"s_add_u32 {s(sKV)}, {s(sKV)}, {s(t2)}")
        vUW, vaA, vaB = 5, 6, 7
        A(f"s_lshl_b32 {s(t0)}, {s(S_WV)}, 10")
        A(f"s_sub_u32 {s(t0)}, {4088 - 512}, {s(t0)}")
        A(f"v_lshlrev_b32 {v(vx)}, 3, v1")
        A(f"v_sub_u32 {v(vUW)}, {s(t0)}, {v(vx)}")
        A(f"v_and_b32 {v(vx)}, 15, v1")
        A(f"v_add_u32 {v(vx)}, 1, {v(vx)}")
        A(f"v_and_b32 {v(vy)}, 3, {v(vx)}")
        A(f"v_sub_u32 {v(vx)}, {v(vx)}, {v(vy)}")
        A(f"v_lshlrev_b32 {v(vx)}, 1, {v(vx)}")
        A(f"v_mul_u32_u24 {v(vy)}, {CS}, {v(vy)}")
        A(f"v_add_u32 {v(vaA)}, {v(vx)}, {v(vy)}")
        A(f"v_lshrrev_b32 {v(vy)}, 4, v1")
        A(f"v_lshl_add_u32 {v(vaA)}, {v(vy)}, 4, {v(vaA)}")
        A(f"s_lshr_b32 {s(t0)}, {s(S_WV)}, 1")
        A(f"s_and_b32 {s(t1)}, {s(S_WV)}, 1")
        A(f"s_mul_i32 {s(t2)}, {s(t0)}, {4 * CS}")
        A(f"s_lshl_b32 {s(t1)}, {s(t1)}, 8")
        A(f"s_add_u32 {s(t2)}, {s(t2)}, {s(t1)}")
        A(f"s_add_u32 {s(t2)}, {s(t2)}, {L_KC}")
        A(f"v_add_u32 {v(vaA)}, {s(t2)}, {v(vaA)}")
        A(f"v_and_b32 {v(vx)}, 15, v1")
        A(f"v_lshlrev_b32 {v(vx)}, 5, {v(vx)}")
        A(f"v_lshlrev_b32 {v(vy)}, 4, {v(vy)}")
        A(f"v_sub_u32 {v(vaB)}, {v(vy)}, {v(vx)}")
        A(f"s_mul_i32 {s(t2)}, {s(t0)}, 4608")
        A(f"s_add_u32 {s(t2)}, {s(t2)}, {s(t1)}")
        A(f"s_add_u32 {s(t2)}, {s(t2)}, {L_UR + 480}")
        A(f"v_add_u32 {v(vaB)}, {s(t2)}, {v(vaB)}")
        vPW, vPM, vPR = 18, 19, 20
        A(f"s_lshl_b32 {s(t0)}, {s(S_J)}, 3")
        A(f"s_lshl_b32 {s(t1)}, {s(S_WV)}, 1")
        A(f"s_add_u32 {s(t0)}, {s(t0)}, {s(t1)}")
        A(f"s_mul_i32 {s(t0)}, {s(t0)}, 147")
        A(f"s_lshr_b32 {s(t0)}, {s(t0)}, 11")
        A(f"v_min_u32 {v(vx)}, 27, v1")
        A(f"v_lshl_add_u32 {v(vPW)}, {v(vx)}, 2, {s(t0)}")
        A(f"s_mul_i32 {s(t1)}, {s(S_WV)}, 28")
        A(f"s_add_u32 {s(t1)}, {s(t1)}, {112 - 32}")
        A(f"v_min_u32 {v(vy)}, 59, v1")
        A(f"v_add_u32 {v(vy)}, {s(t1)}, {v(vy)}")
        A(f"v_cmp_gt_u32 vcc, 32, v1")
        A(f"v_cndmask_b32 {v(vPW)}, {v(vy)}, {v(vPW)}, vcc")
        A(f"v_lshlrev_b32 {v(vPW)}, 7, {v(vPW)}")
        A(f"v_add_u32 {v(vPW)}, {FL + FQ * 128}, {v(vPW)}")
        A(f"s_add_u32 {s(t1)}, {s(sKV)}, {KVP}")
        self.poll(vPa, vPt)
        A.barrier()
        if self.o.get("w_early", 1):
            A(f"s_lshl_b32 {s(t0)}, {s(self.wr['sWB'])}, 7")
            A(f"s_add_u32 {s(t0)}, {s(t0)}, {FL + FQ * 128}")
            self.flag_store(t0)
        self.stamp(5)
        vKV = 8
        for h in range(2):
            A(f"buffer_load_dwordx4 {v(vKV + 4 * h, 4)}, {v(vL16)}, {s(R_WS, 4)}, {s(t1)} offen offset:{1024 * h} sc1")
        RA = Rec()
        f0, f1, f2, fx, fy = T + 15, T + 16, T + 17, 184, 185
        vQn, vRs, vMs = 144, 152, 160
        RA(f"s_add_u32 {s(f1)}, {s(sKV)}, {QP}")
        for h in range(2):
            RA(f"buffer_load_dwordx4 {v(vQn + 4 * h, 4)}, {v(vL16)}, {s(R_WS, 4)}, {s(f1)} offen offset:{1024 * h} sc1")
        RA(f"s_lshl_b32 {s(f0)}, {s(S_WV)}, 11")
        RA(f"s_add_u32 {s(f1)}, {s(f0)}, {STR}")
        RA(f"s_add_u32 {s(f2)}, {s(f0)}, {STM}")
        for h in range(2):
            RA(f"buffer_load_dwordx4 {v(vRs + 4 * h, 4)}, {v(vL16)}, {s(R_WS, 4)}, {s(f1)} offen offset:{1024 * h} sc1")
            RA(f"buffer_load_dwordx4 {v(vMs + 4 * h, 4)}, {v(vL16)}, {s(R_WS, 4)}, {s(f2)} offen offset:{1024 * h} sc1")
        vPS, vPA, vPG, vPD, vPar = 168, 170, 172, 174, 176
        vMP, vPP, vGP = 186, 188, 208
        RA(f"v_lshrrev_b32 {v(fx)}, 3, v1")
        RA(f"v_mul_u32_u24 {v(fx)}, 1792, {v(fx)}")
        RA(f"v_and_b32 {v(fy)}, 7, v1")
        RA(f"v_cmp_gt_u32 vcc, 5, {v(fy)}")
        RA(f"v_mul_u32_u24 {v(fy)}, {MPL}, {v(fy)}")
        RA(f"v_add_u32 {v(fx)}, {v(fx)}, {v(fy)}")
        RA(f"s_lshl_b32 {s(f0)}, {s(S_CP)}, 3")
        RA(f"s_add_u32 {s(f0)}, {s(f0)}, {MODF}")
        RA(f"v_add_u32 {v(fx)}, {s(f0)}, {v(fx)}")
        RA(f"v_mov_b32 {v(fy)}, 0x80000000")
        RA(f"v_cndmask_b32 {v(fx)}, {v(fy)}, {v(fx)}, vcc")
        RA(f"buffer_load_dwordx2 {v(vMP, 2)}, {v(fx)}, {s(R_WS, 4)}, 0 offen sc1")
        self.A = RA
        self.srd(R_A, P_D, 896)
        self.A = A
        RA(f"s_lshl_b32 {s(f0)}, {s(S_CP)}, 2")
        RA(f"v_mov_b32 {v(fy)}, {s(f0)}")
        RA(f"buffer_load_dword {v(vPD + 1)}, {v(fy)}, {s(R_A, 4)}, 0 offen")
        if not self.o.get("w_early", 1):
            self.w_stores()
        vP = 22
        A.await_regs(v(vKV, 8))
        for h in range(2):
            d = vKV + 4 * h
            for e, sel in ((0, S_PERM_LO), (1, S_PERM_HI)):
                o = vP + 4 * h + 2 * e
                A(f"v_perm_b32 {v(o)}, {v(d + 2)}, {v(d + 3)}, {s(sel)}")
                A(f"v_perm_b32 {v(o + 1)}, {v(d)}, {v(d + 1)}, {s(sel)}")
        for h in range(2):
            for e in range(2):
                o = vP + 4 * h + 2 * e
                A(f"ds_write_b64 {v(vUW)}, {v(o, 2)} offset:{L_UR + 4608 * e + (512 if h == 0 else 0)}")
        A.barrier()
        self.stamp(6)
        ACC = 32
        BS = [64, 96]
        AR = 128

        def ldB(rp, m):
            A(f"ds_read_b128 {v(BS[rp & 1] + 4 * m, 4)}, {v(vaB)} offset:{64 * rp + 512 * (7 - m)}")

        def ldA(idx):
            rp, q = divmod(idx, 8)
            r = AR + 4 * (idx % 4)
            A(f"ds_read_b64 {v(r, 2)}, {v(vaA)} offset:{64 * rp + 512 * q}")
            A(f"ds_read_b64 {v(r + 2, 2)}, {v(vaA)} offset:{64 * rp + 512 * q + 8}")

        ldA(0)
        for m in range(8):
            ldB(0, m)
        ldA(1)
        ldA(2)
        RB = Rec()
        vRW, vRR, vSt = 183, 19, 182
        RB(f"v_and_b32 {v(fx)}, 15, v1")
        RB(f"v_mul_u32_u24 {v(vRW)}, 80, {v(fx)}")
        RB(f"v_lshrrev_b32 {v(fy)}, 4, v1")
        RB(f"v_lshl_add_u32 {v(vRW)}, {v(fy)}, 4, {v(vRW)}")
        RB(f"s_mul_i32 {s(f0)}, {s(S_WV)}, 10240")
        RB(f"s_add_u32 {s(f0)}, {s(f0)}, {L_RED}")
        RB(f"v_add_u32 {v(vRW)}, {s(f0)}, {v(vRW)}")
        RB(f"v_mul_u32_u24 {v(vSt)}, 57344, {v(fy)}")
        RB(f"v_lshl_add_u32 {v(vSt)}, {v(fx)}, 4, {v(vSt)}")
        RB(f"v_lshrrev_b32 {v(fx)}, 2, v1")
        RB(f"v_mul_u32_u24 {v(vRR)}, 80, {v(fx)}")
        RB(f"v_and_b32 {v(fy)}, 3, v1")
        RB(f"v_lshl_add_u32 {v(vRR)}, {v(fy)}, 4, {v(vRR)}")
        RB(f"s_mul_i32 {s(f0)}, {s(S_WV)}, 2560")
        RB(f"s_add_u32 {s(f0)}, {s(f0)}, {L_RED}")
        RB(f"v_add_u32 {v(vRR)}, {s(f0)}, {v(vRR)}")
        sX = S_OFF + 3
        RB(f"s_mul_i32 {s(sX)}, {s(S_WV)}, {2 * 229376}")
        RB(f"s_lshl_b32 {s(f0)}, {s(S_CP)}, 8")
        RB(f"s_add_u32 {s(sX)}, {s(sX)}, {s(f0)}")
        RB(f"s_add_u32 {s(sX)}, {s(sX)}, {X1P}")
        RB(f"s_add_u32 {s(S_OFF + 4)}, {s(sX)}, 229376")
        U, Q, N = 216, 232, 200
        RB.await_regs(v(vMP, 2))
        for mod in ("quad_perm:[1,0,3,2]", "quad_perm:[2,3,0,1]", "row_half_mirror"):
            for k in range(2):
                RB(f"v_add_f32_dpp {v(vMP + k)}, {v(vMP + k)}, {v(vMP + k)} {mod} row_mask:0xf bank_mask:0xf")
        RB(f"v_cvt_pk_bf16_f32 {v(vMP)}, {v(vMP)}, {v(vMP + 1)}")
        r0, r1, r2 = T + 12, T + 13, T + 14
        RB(f"v_readlane_b32 {s(r0)}, {v(vMP)}, 0")
        RB(f"v_readlane_b32 {s(r1)}, {v(vMP)}, 8")
        RB(f"v_readlane_b32 {s(r2)}, {v(vMP)}, 16")
        for reg, sr in ((vPS, r0), (vPA, r1), (vPG, r2)):
            RB(f"v_lshlrev_b32 {v(reg)}, 16, {s(sr)}")
            RB(f"v_mov_b32 {v(reg + 1)}, {s(sr)}")
        for reg in (vPS, vPA, vPG):
            RB(f"v_and_b32 {v(reg + 1)}, {s(S_MASKHI)}, {v(reg + 1)}")
        RB(f"v_add_f32 {v(vPA)}, 1.0, {v(vPA)}")
        RB(f"v_add_f32 {v(vPA + 1)}, 1.0, {v(vPA + 1)}")
        RB(f"v_cvt_pk_bf16_f32 {v(vPA)}, {v(vPA)}, {v(vPA + 1)}")
        RB(f"v_and_b32 {v(vPA + 1)}, {s(S_MASKHI)}, {v(vPA)}")
        RB(f"v_lshlrev_b32 {v(vPA)}, 16, {v(vPA)}")
        RB.await_regs(v(vQn, 8), v(vRs, 8), v(vMs, 8), v(vPD + 1))
        RB(f"v_lshlrev_b32 {v(vPD)}, 16, {v(vPD + 1)}")
        RB(f"v_and_b32 {v(vPD + 1)}, {s(S_MASKHI)}, {v(vPD + 1)}")
        for h in range(2):
            for e in range(2):
                for r in range(4):
                    for dst, src in ((U, vKV), (Q, vQn)):
                        d = dst + 8 * h + 4 * e + r
                        if e == 0:
                            RB(f"v_lshlrev_b32 {v(d)}, 16, {v(src + 4 * h + r)}")
                        else:
                            RB(f"v_and_b32 {v(d)}, {s(S_MASKHI)}, {v(src + 4 * h + r)}")
        for h in range(2):
            for e in range(2):
                for k in (0, 2):
                    o = 8 * h + 4 * e + k
                    RB(f"v_pk_fma_f32 {v(N + o, 2)}, {v(Q + o, 2)}, {v(vRs + 4 * h + k, 2)}, {v(vMs + 4 * h + k, 2)} neg_lo:[0,0,1] neg_hi:[0,0,1]")
        for h in range(2):
            for e in range(2):
                for k in (0, 2):
                    o = 8 * h + 4 * e + k
                    RB(f"v_pk_fma_f32 {v(N + o, 2)}, {v(N + o, 2)}, {v(vPA, 2)}, {v(vPS, 2)} op_sel:[0,{e},{e}] op_sel_hi:[1,{e},{e}]")
        for h in range(2):
            for e in range(2):
                for k in (0, 2):
                    o = 8 * h + 4 * e + k
                    RB(f"v_pk_mul_f32 {v(N + o, 2)}, {v(N + o, 2)}, {v(vPG, 2)} op_sel:[0,{e}] op_sel_hi:[1,{e}]")
        nm = 0
        self.bg_setup()
        for rp in range(4):
            for q in range(8):
                idx = rp * 8 + q
                ar = AR + 4 * (idx % 4)
                first = True
                for n in range(q, 8):
                    c = "0" if (rp == 0 and q == 0) else v(ACC + 4 * n, 4)
                    if first:
                        regs = [v(ar, 4)]
                        if q == 0:
                            regs.append(v(BS[rp & 1], 32))
                        A.await_regs(*regs)
                    A(f"v_mfma_f32_16x16x32_bf16 {v(ACC + 4 * n, 4)}, {v(ar, 4)}, {v(BS[rp & 1] + 4 * (n - q), 4)}, {c}")
                    nm += 1
                    if first:
                        first = False
                        if idx + 3 < 32:
                            ldA(idx + 3)
                        if rp < 3 and 0 <= q <= 3:
                            ldB(rp + 1, 2 * q)
                            ldB(rp + 1, 2 * q + 1)
                    if rp == 0:
                        RA.play(A, 2)
                    if rp >= 2 and len(RB.items) > self.o.get("rb_keep", 16):
                        RB.play(A, min(self.o.get("fill_rate", 2), len(RB.items) - self.o.get("rb_keep", 16)))
        RA.play(A, 10 ** 6)
        RB.play(A, 10 ** 6)
        self.stamp(7)
        for n in range(8):
            A(f"ds_write_b128 {v(vRW)}, {v(ACC + 4 * n, 4)} offset:{1280 * n}")
        if self.o.get("w_early", 1):
            A.barrier()
        else:
            A.wait_vm(0)
            A.barrier()
            A(f"s_lshl_b32 {s(t0)}, {s(self.wr['sWB'])}, 7")
            A(f"s_add_u32 {s(t0)}, {s(t0)}, {FL + FQ * 128}")
            self.flag_store(t0)
        self.stamp(30)
        vY = 96
        for h in range(2):
            for w in range(4):
                A(f"ds_read_b128 {v(vY + 16 * h + 4 * w, 4)}, {v(vRR)} offset:{10240 * w + 1280 * h}")
        vOut = 128
        for h in range(2):
            A.await_regs(v(vY + 16 * h, 16))
            ys = [(e, k, vY + 16 * h + 8 * e + k, 8 * h + 4 * e + k) for e in range(2) for k in (0, 2)]
            for e, k, y, o in ys:
                A(f"v_pk_add_f32 {v(y, 2)}, {v(y, 2)}, {v(y + 4, 2)}")
            for e, k, y, o in ys:
                A(f"v_pk_fma_f32 {v(y, 2)}, {v(U + o, 2)}, {v(vPD, 2)}, {v(y, 2)} op_sel:[0,{e},0] op_sel_hi:[1,{e},1]")
            for e, k, y, o in ys:
                A(f"v_pk_fma_f32 {v(y, 2)}, {v(N + o, 2)}, {v(y, 2)}, {v(Q + o, 2)}")
            for r in range(4):
                A(f"v_cvt_pk_bf16_f32 {v(vOut + 4 * h + r)}, {v(vY + 16 * h + r)}, {v(vY + 16 * h + 8 + r)}")
            A(f"buffer_store_dwordx4 {v(vOut + 4 * h, 4)}, {v(vSt)}, {s(R_WS, 4)}, {s(sX if h == 0 else S_OFF + 4)} offen sc1")
        self.stamp(8)
        A(f"s_lshl_b32 {s(t0)}, {s(S_CP)}, 7")
        A(f"s_add_u32 {s(t0)}, {s(t0)}, {FL + F2 * 128}")
        mark = A.vm_count
        A(f"buffer_load_dword {v(vPR)}, {v(vPW)}, {s(R_WS, 4)}, 0 offen sc1")
        A(f"v_lshlrev_b32 {v(vx)}, 3, v0")
        for pl in range(5):
            A(f"s_mov_b32 {s(t1)}, {MODF + pl * MPL + 4 * 1792}")
            A(f"s_mov_b32 {s(t2)}, {MODF + pl * MPL + 3 * 1792}")
            A(f"buffer_load_dwordx2 {v(vPP + 4 * pl, 2)}, {v(vx)}, {s(R_WS, 4)}, {s(t1)} offen sc1")
            A(f"buffer_load_dwordx2 {v(vPP + 4 * pl + 2, 2)}, {v(vx)}, {s(R_WS, 4)}, {s(t2)} offen sc1")
        A(f"v_lshlrev_b32 {v(vy)}, 2, v1")
        A(f"s_lshl_b32 {s(T + 3)}, {s(S_J)}, 8")
        for pl in range(5):
            A(f"s_add_u32 {s(t1)}, {s(T + 3)}, {MODF + pl * MPL + 5 * 1792}")
            A(f"buffer_load_dword {v(vGP + pl)}, {v(vy)}, {s(R_WS, 4)}, {s(t1)} offen sc1")
        A.wait_vm(0)
        A.barrier()
        self.flag_store(t0)
        A.await_regs(v(vPP, 20), v(vGP, 5))
        for pl in (1, 3):
            A(f"v_pk_add_f32 {v(vPP + 4 * pl - 4, 2)}, {v(vPP + 4 * pl - 4, 2)}, {v(vPP + 4 * pl, 2)}")
            A(f"v_pk_add_f32 {v(vPP + 4 * pl - 2, 2)}, {v(vPP + 4 * pl - 2, 2)}, {v(vPP + 4 * pl + 2, 2)}")
            A(f"v_add_f32 {v(vGP + pl - 1)}, {v(vGP + pl - 1)}, {v(vGP + pl)}")
        A(f"v_pk_add_f32 {v(vPP, 2)}, {v(vPP, 2)}, {v(vPP + 8, 2)}")
        A(f"v_pk_add_f32 {v(vPP + 2, 2)}, {v(vPP + 2, 2)}, {v(vPP + 10, 2)}")
        A(f"v_add_f32 {v(vGP)}, {v(vGP)}, {v(vGP + 2)}")
        A(f"v_pk_add_f32 {v(vPP, 2)}, {v(vPP, 2)}, {v(vPP + 16, 2)}")
        A(f"v_pk_add_f32 {v(vPP + 2, 2)}, {v(vPP + 2, 2)}, {v(vPP + 18, 2)}")
        A(f"v_add_f32 {v(vGP)}, {v(vGP)}, {v(vGP + 4)}")
        A(f"v_cvt_pk_bf16_f32 {v(vPar)}, {v(vPP)}, {v(vPP + 1)}")
        A(f"v_cvt_pk_bf16_f32 {v(vPar + 2)}, {v(vPP + 2)}, {v(vPP + 3)}")
        A(f"v_cvt_pk_bf16_f32 {v(vPar + 4)}, {v(vGP)}, {v(vGP)}")
        A(f"v_and_b32 {v(vPar + 1)}, {s(S_MASKHI)}, {v(vPar)}")
        A(f"v_lshlrev_b32 {v(vPar)}, 16, {v(vPar)}")
        A(f"v_and_b32 {v(vPar + 3)}, {s(S_MASKHI)}, {v(vPar + 2)}")
        A(f"v_lshlrev_b32 {v(vPar + 2)}, 16, {v(vPar + 2)}")
        A(f"v_and_b32 {v(vPar + 4)}, {s(S_MASKHI)}, {v(vPar + 4)}")
        A(f"v_add_f32 {v(vPar)}, 1.0, {v(vPar)}")
        A(f"v_add_f32 {v(vPar + 1)}, 1.0, {v(vPar + 1)}")
        A(f"v_cvt_pk_bf16_f32 {v(vPar)}, {v(vPar)}, {v(vPar + 1)}")
        A(f"v_and_b32 {v(vPar + 1)}, {s(S_MASKHI)}, {v(vPar)}")
        A(f"v_lshlrev_b32 {v(vPar)}, 16, {v(vPar)}")
        A(f"s_mov_b32 {s(t2)}, 0x{f32bits(LOG2E):08x}")
        A(f"v_lshlrev_b32 {v(vx)}, 4, v0")
        A(f"v_add_u32 {v(vx)}, {L_PAR}, {v(vx)}")
        A(f"v_lshlrev_b32 {v(vy)}, 2, v1")
        A(f"v_add_u32 {v(vy)}, {L_GB}, {v(vy)}")
        for r_ in range(vPar, vPar + 4):
            A(f"v_mul_f32 {v(r_)}, {s(t2)}, {v(r_)}")
        A(f"ds_write_b128 {v(vx)}, {v(vPar, 4)}")
        A(f"ds_write_b32 {v(vy)}, {v(vPar + 4)}")
        self.poll1_check(vPW, vPR)
        self.bg_emit(self.n_burst_t2)
        self.stamp(9)

    def phase_b(self):
        A = self.A
        T = S_T
        t0, t1, t2 = T, T + 1, T + 2
        vPa, vPt = 2, 4
        A(f"v_min_u32 {v(vPa)}, 55, v1")
        A(f"s_mul_i32 {s(t0)}, {s(S_WV)}, 56")
        A(f"v_add_u32 {v(vPa)}, {s(t0)}, {v(vPa)}")
        A(f"v_lshlrev_b32 {v(vPa)}, 7, {v(vPa)}")
        A(f"v_add_u32 {v(vPa)}, {FL + F2 * 128}, {v(vPa)}")
        self.poll(vPa, vPt)
        A.barrier()
        self.stamp(10)
        A(f"s_lshr_b32 {s(t0)}, {s(S_WV)}, 1")
        A(f"s_lshl_b32 {s(t0)}, {s(t0)}, 10")
        A(f"v_add_u32 v{V_W2O[0]}, {s(t0)}, v{V_L16}")
        A(f"s_sub_u32 {s(t0)}, 1024, {s(t0)}")
        A(f"v_add_u32 v{V_W2O[1]}, {s(t0)}, v{V_L16}")
        vL16 = 4
        A(f"v_lshlrev_b32 {v(vL16)}, 4, v1")
        A(f"s_mul_i32 {s(t1)}, {s(S_WV)}, 14336")
        A(f"s_mul_i32 {s(t0)}, {s(S_RB)}, 57344")
        A(f"s_add_u32 {s(t0)}, {s(t0)}, {s(t1)}")
        A(f"s_add_u32 {s(t0)}, {s(t0)}, {X1P}")
        A(f"s_add_u32 {s(t1)}, {s(t1)}, {L_XD}")
        A(f"s_mov_b32 m0, {s(t1)}")
        for i in range(14):
            if i and i % 4 == 0:
                A(f"s_add_u32 {s(t0)}, {s(t0)}, 4096")
                A(f"s_add_u32 m0, m0, 4096")
            A.dma(f"buffer_load_dwordx4 {v(vL16)}, {s(R_WS, 4)}, {s(t0)} offen offset:{1024 * (i % 4)} sc1 lds", f"x{i}")
        skip = self.lab("ep")
        A(f"s_cmp_lg_u32 {s(S_CP)}, 0")
        A(f"s_cbranch_scc1 {skip}")
        A.cond_begin()
        A(f"s_mov_b32 {s(t0)}, 0")
        self.flag_store(t0)
        A.cond_end()
        A.label(skip)
        if self.o.get("pretouch", 0):
            A(f"s_mul_i32 {s(t0)}, {s(S_RB)}, 112")
            A(f"s_lshl_b32 {s(t2)}, {s(S_J)}, 4")
            A(f"s_add_u32 {s(t0)}, {s(t0)}, {s(t2)}")
            A(f"s_lshl_b32 {s(t2)}, {s(S_WV)}, 2")
            A(f"s_add_u32 {s(t0)}, {s(t0)}, {s(t2)}")
            A(f"s_lshl_b32 {s(t0)}, {s(t0)}, 11")
            A(f"s_add_u32 {s(t0)}, {s(t0)}, {HF}")
            A(f"v_lshlrev_b32 v6, 7, v1")
            A(f"buffer_load_dword v252, v6, {s(R_WS, 4)}, {s(t0)} offen")
        X = 88
        vXR = 5
        A(f"v_lshlrev_b32 {v(vXR)}, 2, v1")
        A(f"v_add_u32 {v(vXR)}, {s(t1)}, {v(vXR)}")

        XR = 72

        def ldX(g):
            A.need(f"x{g}")
            r = XR + 4 * (g % 4)
            A(f"ds_read2st64_b32 {v(r, 2)}, {v(vXR)} offset0:{4 * g} offset1:{4 * g + 1}")
            A(f"ds_read2st64_b32 {v(r + 2, 2)}, {v(vXR)} offset0:{4 * g + 2} offset1:{4 * g + 3}")

        vS = 8
        for g in range(3):
            ldX(g)
        self.stamp(27)
        for g in range(14):
            src = XR + 4 * (g % 4)
            A.await_regs(v(src, 4))
            if g + 3 < 14:
                ldX(g + 3)
            for k in range(4):
                e = 4 * g + k
                r = X + 2 * e
                A(f"v_lshlrev_b32 {v(r)}, 16, {v(src + k)}")
                A(f"v_and_b32 {v(r + 1)}, {s(S_MASKHI)}, {v(src + k)}")
            for k in range(4):
                e = 4 * g + k
                r = X + 2 * e
                s1, s2 = vS + 2 * (e & 1), vS + 4 + 2 * (e & 1)
                if e < 2:
                    A(f"v_mov_b32 {v(s1)}, {v(r)}")
                    A(f"v_mov_b32 {v(s1 + 1)}, {v(r + 1)}")
                    A(f"v_pk_mul_f32 {v(s2, 2)}, {v(r, 2)}, {v(r, 2)}")
                else:
                    A(f"v_pk_add_f32 {v(s1, 2)}, {v(s1, 2)}, {v(r, 2)}")
                    A(f"v_pk_fma_f32 {v(s2, 2)}, {v(r, 2)}, {v(r, 2)}, {v(s2, 2)}")
            if g >= 14 - self.o.get("n_bstat", 11):
                self.bg_emit(1)
        A(f"v_pk_add_f32 {v(vS, 2)}, {v(vS, 2)}, {v(vS + 2, 2)}")
        A(f"v_pk_add_f32 {v(vS + 4, 2)}, {v(vS + 4, 2)}, {v(vS + 6, 2)}")
        A(f"v_add_f32 {v(vS)}, {v(vS)}, {v(vS + 1)}")
        A(f"v_add_f32 {v(vS + 1)}, {v(vS + 4)}, {v(vS + 5)}")
        vSW = 5
        A(f"v_lshlrev_b32 {v(vSW)}, 3, v1")
        A(f"v_add_u32 {v(vSW)}, {L_STAT}, {v(vSW)}")
        A(f"s_lshl_b32 {s(t0)}, {s(S_WV)}, 9")
        A(f"v_add_u32 v6, {s(t0)}, {v(vSW)}")
        A(f"ds_write_b64 v6, {v(vS, 2)}")
        self.stamp(28)
        vPb = 6
        vHW = 7
        A(f"v_lshrrev_b32 v22, 5, v1")
        A(f"v_lshlrev_b32 {v(vHW)}, 10, v22")
        A(f"v_and_b32 v22, 31, v1")
        A(f"v_lshl_add_u32 {v(vHW)}, v22, 4, {v(vHW)}")
        A(f"s_mul_i32 {s(t0)}, {s(S_WV)}, {7 * 2048}")
        A(f"v_add_u32 {v(vHW)}, {s(t0)}, {v(vHW)}")
        A(f"s_mul_i32 {s(t0)}, {s(S_WV)}, 896")
        A(f"s_add_u32 {s(t0)}, {s(t0)}, {L_PAR}")
        A.barrier()
        for w in range(4):
            A(f"ds_read_b64 {v(16 + 2 * w, 2)}, {v(vSW)} offset:{512 * w}")
        A(f"v_mov_b32 {v(vPb)}, {s(t0)}")
        def PRq(e):
            k = e % 12
            return 24 + 4 * k if k < 8 else 72 + 4 * (k - 8)
        OUT = 56

        def ldP(e):
            if self.o.get("b_nopar"):
                return
            A(f"ds_read_b128 {v(PRq(e), 4)}, {v(vPb)} offset:{16 * e}")

        for e in range(8):
            ldP(e)
        A("v_pk_add_f32 v[16:17], v[16:17], v[18:19]")
        A("v_pk_add_f32 v[20:21], v[20:21], v[22:23]")
        A("v_pk_add_f32 v[16:17], v[16:17], v[20:21]")
        A(f"s_mov_b32 {s(t0)}, 0x{f32bits(1.0 / 448):08x}")
        A(f"s_mov_b32 {s(t1)}, 0x{f32bits(1e-5):08x}")
        A(f"v_mul_f32 v16, {s(t0)}, v16")
        A(f"v_mul_f32 v17, {s(t0)}, v17")
        A("v_fma_f32 v17, -v16, v16, v17")
        A("v_max_f32 v17, 0, v17")
        A(f"v_add_f32 v17, {s(t1)}, v17")
        vR, vM = 18, 20
        A(f"v_rsq_f32 {v(vR)}, v17")
        A(f"v_mul_f32 {v(vM)}, v16, {v(vR)}")
        pass
        for e0 in range(0, 56, 4):
            A.await_regs(*[v(PRq(e0 + k), 4) for k in range(4)])
            for k in range(8, 12):
                if e0 + k < 56:
                    ldP(e0 + k)
            for e in range(e0, e0 + 4):
                r = X + 2 * e
                A(f"v_pk_fma_f32 {v(r, 2)}, {v(r, 2)}, {v(vR, 2)}, {v(vM, 2)} op_sel_hi:[1,0,0] neg_lo:[0,0,1] neg_hi:[0,0,1]")
            for e in range(e0, e0 + 4):
                r = X + 2 * e
                p = PRq(e)
                A(f"v_pk_fma_f32 {v(r, 2)}, {v(r, 2)}, {v(p, 2)}, {v(p + 2, 2)}")
            sp, k0 = divmod(e0, 8)
            o = OUT + 8 * (sp & 1)
            for e in range(e0, e0 + 4):
                r = X + 2 * e
                A(f"v_cvt_pk_bf16_f32 {v(o + e % 8)}, {v(r)}, {v(r + 1)}")
            if not self.o.get("b_nowr"):
                A(f"ds_write_b128 {v(vHW)}, {v(o + k0, 4)} offset:{L_H2 + 2048 * sp + (512 if k0 else 0)}")
            nbn = self.o.get("n_bnorm", 27)
            g_ = e0 // 4
            self.bg_emit(nbn * (g_ + 1) // 14 - nbn * g_ // 14)
        while self.bg_left("w1") > 0:
            self.bg_emit(1)
        A.barrier()
        self.stamp(11)

    def w2reg(self, f):
        if f < 41:
            return v(88 + 4 * f, 4)
        if f < 49:
            return a(224 + 4 * (f - 41), 4)
        return a(4 * (f - 49), 4)

    def bg_setup(self):
        A = self.A
        t0, t1 = S_T, S_T + 1
        A(f"s_lshl_b32 {s(t0)}, {s(S_J)}, 3")
        A(f"s_lshl_b32 {s(t1)}, {s(S_WV)}, 1")
        A(f"s_add_u32 {s(t0)}, {s(t0)}, {s(t1)}")
        A(f"s_mul_i32 {s(S_W1B)}, {s(t0)}, {28 * 1024}")
        A(f"s_add_u32 {s(S_W1B)}, {s(S_W1B)}, {W1F}")
        A(f"s_lshl_b32 {s(t0)}, {s(S_J)}, 2")
        A(f"s_add_u32 {s(t0)}, {s(t0)}, {s(S_WV)}")
        A(f"s_mul_i32 {s(S_W2B)}, {s(t0)}, {56 * 1024}")
        A(f"s_add_u32 {s(S_W2B)}, {s(S_W2B)}, {W2F}")
        A(f"v_lshlrev_b32 v{V_L16}, 4, v1")
        self.bgq = [("w1", f) for f in range(56)] + [("w2", f) for f in self.w2_order]
        self.bg_cur = {"w1": 0, "w2": 0}

    def bg_emit(self, n=1):
        A = self.A
        if self.o["nobg"]:
            del self.bgq[:n]
            return
        for _ in range(n):
            if not self.bgq:
                return
            kind, f = self.bgq.pop(0)
            base = S_W1B if kind == "w1" else S_W2B
            blk = f // 4
            if blk != self.bg_cur[kind]:
                d = (blk - self.bg_cur[kind]) * 4096
                A(f"s_add_u32 {s(base)}, {s(base)}, {d}" if d > 0 else f"s_sub_u32 {s(base)}, {s(base)}, {-d}")
                self.bg_cur[kind] = blk
            if kind == "w1":
                A(f"buffer_load_dwordx4 {a(4 * f, 4)}, v{V_L16}, {s(R_WS, 4)}, {s(base)} offen offset:{1024 * (f % 4)} sc1")
            else:
                A(f"buffer_load_dwordx4 {self.w2reg(f)}, v{V_W2O[f & 1]}, {s(R_WS, 4)}, {s(base)} offen offset:{2048 * ((f % 4) >> 1)} sc1")

    def bg_left(self, kind):
        return sum(1 for k, _ in self.bgq if k == kind)

    def phase_c(self):
        A = self.A
        t0 = S_T
        if self.o.get("force_global", 1):
            self.phase_c_body(" sc1")
            return
        glob, join = self.lab("cglob"), self.lab("cjoin")
        A(f"s_cmp_eq_u32 {s(S_LOCAL)}, 0")
        A(f"s_cbranch_scc1 {glob}")
        st, q, cur = A.snapshot(), list(self.bgq), dict(self.bg_cur)
        self.phase_c_body("")
        A(f"s_branch {join}")
        A.restore(st)
        self.bgq, self.bg_cur = q, cur
        A.label(glob)
        self.phase_c_body(" sc1")
        A.label(join)

    def phase_c_body(self, sc):
        A = self.A
        T = S_T
        t0, t1 = T, T + 1
        sH, sH2 = S_OFF + 5, S_OFF + 7
        A(f"s_mul_i32 {s(t0)}, {s(S_RB)}, 112")
        A(f"s_lshl_b32 {s(t1)}, {s(S_J)}, 4")
        A(f"s_add_u32 {s(t0)}, {s(t0)}, {s(t1)}")
        A(f"s_lshl_b32 {s(t1)}, {s(S_WV)}, 2")
        A(f"s_add_u32 {s(t0)}, {s(t0)}, {s(t1)}")
        A(f"s_lshl_b32 {s(sH)}, {s(t0)}, 11")
        A(f"s_add_u32 {s(sH)}, {s(sH)}, {HF}")
        A(f"s_add_u32 {s(sH2)}, {s(sH)}, 4096")
        sC = S_OFF + 6
        A(f"s_mov_b32 {s(sC)}, 0x{f32bits(LOG2E):08x}")
        ACC = [24, 40]
        NR = 6
        RING = 4
        TMP = 68
        OUT = 76

        def ring(i):
            k = i % NR
            return RING + 4 * k if k < 5 else 56

        def store(g, off):
            base, o = (sH2, off - 4096) if off >= 4096 else (sH, off)
            return f"buffer_store_dwordx4 {v(OUT + 4 * g, 4)}, v{V_L16}, {s(R_WS, 4)}, {s(base)} offen offset:{o}{sc}"

        def silu_ops(tile):
            ft, th = divmod(tile, 2)
            acc = ACC[tile & 1]
            seq = []
            lag = (0, 2, 3, 5)
            for step in range(16 + lag[-1] + 2):
                for k in range(4):
                    i = step - lag[k]
                    if 0 <= i < 16:
                        x, tmp = acc + i, TMP + (i % 8)
                        if k == 0:
                            seq.append((8, f"v_exp_f32 {v(tmp)}, -{v(x)}"))
                        elif k == 1:
                            seq.append((4, f"v_fma_f32 {v(tmp)}, {v(tmp)}, {s(sC)}, {s(sC)}"))
                        elif k == 2:
                            seq.append((8, f"v_rcp_f32 {v(tmp)}, {v(tmp)}"))
                        else:
                            seq.append((4, f"v_mul_f32 {v(x)}, {v(x)}, {v(tmp)}"))
                i = step - lag[-1] - 1
                if 0 <= i < 16 and i % 2 == 1:
                    g, kk = divmod(i // 2, 4)
                    seq.append((4, f"v_cvt_pk_bf16_f32 {v(OUT + 4 * g + kk)}, {v(acc + i - 1)}, {v(acc + i)}"))
                    if kk == 3:
                        off = (2 * (2 * ft + g) + th) * 1024
                        seq.append((4, store(g, off)))
            return seq

        def ldH(idx):
            tile, st = divmod(idx, 28)
            th = tile & 1
            A(f"ds_read_b128 {v(ring(idx), 4)}, v{V_L16} offset:{L_H2 + 2048 * st + 1024 * th}")

        for i_ in range(NR - 2):
            ldH(i_)
        pend = []
        nbg = self.n_bg_c
        done_bg = 0
        CAP = self.o.get("c_cap", 26)
        for tile in range(4):
            ft = tile >> 1
            acc = ACC[tile & 1]
            for st in range(28):
                idx = tile * 28 + st
                fixed = 0
                if idx % 2 == 0:
                    A.await_regs(*[v(ring(i_), 4) for i_ in (idx, idx + 1) if i_ < 112])
                c = "0" if st == 0 else v(acc, 16)
                A(f"v_mfma_f32_32x32x16_bf16 {v(acc, 16)}, {a(4 * (28 * ft + st), 4)}, {v(ring(idx), 4)}, {c}")
                if idx % 2 == 0:
                    for i_ in (idx + NR - 2, idx + NR - 1):
                        if i_ < 112:
                            ldH(i_)
                            fixed += 4
                else:
                    fixed += 4
                    while done_bg < nbg * (idx + 1) // 112 and self.bgq:
                        assert self.bgq[0][0] == "w1" or self.bgq[0][1] < 49 or idx >= 36
                        self.bg_emit(1)
                        done_bg += 1
                        fixed += 5
                if pend and st >= 2:
                    left_slots = 28 - st
                    need = sum(c_ for c_, _ in pend) - (left_slots - 1) * (CAP - 6)
                    spent = 0
                    while pend and (spent + fixed + pend[0][0] <= CAP or spent < need):
                        cst, ins = pend.pop(0)
                        A(ins)
                        spent += cst
            for cst, ins in pend:
                A(ins)
            pend = silu_ops(tile)
        for _, ins in pend:
            A(ins)
        self.stamp(12)
        A.wait_vm(0)
        A.barrier()
        A(f"s_lshl_b32 {s(t0)}, {s(S_RB)}, 3")
        A(f"s_add_u32 {s(t0)}, {s(t0)}, {s(S_J)}")
        A(f"s_lshl_b32 {s(t0)}, {s(t0)}, 7")
        A(f"s_add_u32 {s(t0)}, {s(t0)}, {FL + F3 * 128}")
        self.flag_store(t0, sc=sc)
        self.bg_emit(len(self.bgq))
        self.stamp(13)

    def phase_d(self):
        A = self.A
        T = S_T
        t0, t1 = T, T + 1
        vPa, vPt = 2, 4
        A(f"v_min_u32 {v(vPa)}, 6, v1")
        A(f"s_lshl_b32 {s(t0)}, {s(S_RB)}, 3")
        A(f"v_add_u32 {v(vPa)}, {s(t0)}, {v(vPa)}")
        A(f"v_lshlrev_b32 {v(vPa)}, 7, {v(vPa)}")
        A(f"v_add_u32 {v(vPa)}, {FL + F3 * 128}, {v(vPa)}")
        self.poll(vPa, vPt)
        self.stamp(14)
        sH = S_OFF
        A(f"s_mul_i32 {s(t0)}, {s(S_RB)}, 112")
        A(f"s_mul_i32 {s(t1)}, {s(S_WV)}, 28")
        A(f"s_add_u32 {s(t0)}, {s(t0)}, {s(t1)}")
        A(f"s_lshl_b32 {s(sH)}, {s(t0)}, 11")
        A(f"s_add_u32 {s(sH)}, {s(sH)}, {HF}")
        NSLOT = 49
        HB = 28
        hl = {0: " sc1", 1: "", 2: " nt", 3: " sc0"}[self.o.get("hload", 0)]
        vH = 4
        A(f"s_and_b32 {s(t0)}, {s(S_WV)}, 1")
        A(f"s_lshl_b32 {s(t0)}, {s(t0)}, 10")
        A(f"v_add_u32 {v(vH)}, {s(t0)}, v{V_L16}")
        A(f"s_sub_u32 {s(t0)}, 1024, {s(t0)}")
        A(f"v_add_u32 {v(vH + 1)}, {s(t0)}, v{V_L16}")

        def hreg(i):
            return a(HB + 4 * (i % NSLOT), 4)

        def ldH(i):
            if i % 4 == 0 and i:
                A(f"s_add_u32 {s(sH)}, {s(sH)}, 4096")
            A(f"buffer_load_dwordx4 {hreg(i)}, {v(vH + (i & 1))}, {s(R_WS, 4)}, {s(sH)} offen offset:{2048 * ((i % 4) >> 1)}{hl}")

        PRE = self.o.get("d_pre", 12)
        for i in range(PRE):
            ldH(i)
        vWr, vRd, vG, vX, vO, vt = 8, 11, 12, 13, 14, 15
        for x in range(1, 4):
            A(f"s_xor_b32 {s(t0)}, {s(S_WV)}, {x}")
            A(f"s_mul_i32 {s(t0)}, {s(t0)}, 12288")
            A(f"s_add_u32 {s(t0)}, {s(t0)}, {L_RED2 + (x - 1) * 4096}")
            A(f"v_add_u32 {v(vWr + x - 1)}, {s(t0)}, v{V_L16}")
        A(f"s_mul_i32 {s(t0)}, {s(S_WV)}, 12288")
        A(f"s_add_u32 {s(t0)}, {s(t0)}, {L_RED2}")
        A(f"v_add_u32 {v(vRd)}, {s(t0)}, v{V_L16}")
        A(f"s_lshr_b32 {s(t0)}, {s(S_WV)}, 1")
        A(f"s_and_b32 {s(t1)}, {s(S_WV)}, 1")
        A(f"v_lshrrev_b32 {v(vt)}, 5, v1")
        t2, t3 = T + 2, T + 3
        A(f"s_lshl_b32 {s(t2)}, {s(t0)}, 7")
        A(f"s_add_u32 {s(t2)}, {s(t2)}, {L_GB}")
        A(f"v_lshl_add_u32 {v(vG)}, {v(vt)}, 4, {s(t2)}")
        A(f"s_lshl_b32 {s(t2)}, {s(S_J)}, 13")
        A(f"s_lshl_b32 {s(t3)}, {s(t0)}, 12")
        A(f"s_add_u32 {s(t2)}, {s(t2)}, {s(t3)}")
        A(f"s_lshl_b32 {s(t3)}, {s(t1)}, 7")
        A(f"s_add_u32 {s(t2)}, {s(t2)}, {s(t3)}")
        A(f"s_add_u32 {s(t2)}, {s(t2)}, {L_XD}")
        A(f"v_lshl_add_u32 {v(vX)}, {v(vt)}, 9, {s(t2)}")
        A(f"v_and_b32 {v(vO)}, 31, v1")
        A(f"v_lshl_add_u32 {v(vX)}, {v(vO)}, 2, {v(vX)}")
        A(f"s_lshl_b32 {s(t2)}, {s(S_RB)}, 6")
        A(f"s_lshl_b32 {s(t3)}, {s(t1)}, 5")
        A(f"s_add_u32 {s(t2)}, {s(t2)}, {s(t3)}")
        A(f"v_add_u32 {v(vO)}, {s(t2)}, {v(vO)}")
        A(f"v_mul_u32_u24 {v(vO)}, 896, {v(vO)}")
        A(f"s_lshl_b32 {s(t2)}, {s(S_J)}, 7")
        A(f"s_lshl_b32 {s(t3)}, {s(t0)}, 6")
        A(f"s_add_u32 {s(t2)}, {s(t2)}, {s(t3)}")
        A(f"v_lshl_add_u32 {v(vt)}, {v(vt)}, 4, {s(t2)}")
        A(f"v_add_u32 {v(vO)}, {v(vO)}, {v(vt)}")
        self.srd(R_A, P_OUT, 2048 * 896)
        ACC = 24
        nxt = PRE
        LAG = self.o.get("d_lag", 6)
        late = []
        for st in range(28):
            for _ in range(2):
                if nxt < 56:
                    ldH(nxt)
                    nxt += 1
            for e1 in range(2):
                i = 2 * st + e1
                for e in range(2):
                    acc = ACC + 16 * (2 * e + e1)
                    c = "0" if st == 0 else v(acc, 16)
                    if e == 0 and e1 == 0 and st >= 28 - LAG:
                        late.append(f"v_mfma_f32_32x32x16_bf16 {v(acc, 16)}, {self.w2reg(2 * st + e)}, {hreg(i)}, {c}")
                        continue
                    if self.o.get("d_nomfma"):
                        A.await_regs(hreg(i))
                        continue
                    A(f"v_mfma_f32_32x32x16_bf16 {v(acc, 16)}, {self.w2reg(2 * st + e)}, {hreg(i)}, {c}")
        self.stamp(15)
        GB, XP = 16, 88
        GB = 104
        X1 = 120
        PT = 144
        for g in range(4):
            A(f"ds_read_b128 {v(GB + 4 * g, 4)}, {v(vG)} offset:{32 * g}")
            A(f"ds_read2st64_b32 {v(X1 + 2 * g, 2)}, {v(vX)} offset0:{4 * g} offset1:{4 * g + 1}")
        for x in range(1, 4):
            for g in range(4):
                if late and g % 2 == 0:
                    A(late.pop(0))
                A(f"ds_write_b128 {v(vWr + x - 1)}, {v(ACC + 16 * x + 4 * g, 4)} offset:{1024 * g}")
        for ins in late:
            A(ins)
        for k in range(8):
            A(f"v_lshlrev_b32 {v(128 + 2 * k)}, 16, {v(X1 + k)}")
            A(f"v_and_b32 {v(129 + 2 * k)}, {s(S_MASKHI)}, {v(X1 + k)}")
        self.stamp(17)
        A.barrier()
        self.stamp(18)
        for k in range(3):
            for g in range(4):
                A(f"ds_read_b128 {v(PT + 16 * k + 4 * g, 4)}, {v(vRd)} offset:{4096 * k + 1024 * g}")
        for k in range(3):
            A.await_regs(v(PT + 16 * k, 16))
            for i in range(8):
                A(f"v_pk_add_f32 {v(ACC + 2 * i, 2)}, {v(ACC + 2 * i, 2)}, {v(PT + 16 * k + 2 * i, 2)}")
        for i in range(8):
            A(f"v_pk_fma_f32 {v(ACC + 2 * i, 2)}, {v(ACC + 2 * i, 2)}, {v(GB + 2 * i, 2)}, {v(128 + 2 * i, 2)}")
        OUT = 192
        for i in range(8):
            A(f"v_cvt_pk_bf16_f32 {v(OUT + i)}, {v(ACC + 2 * i)}, {v(ACC + 2 * i + 1)}")
        for k in (0, 2):
            for i in range(2):
                A(f"v_permlane32_swap_b32 {v(OUT + 2 * k + i)}, {v(OUT + 2 * k + 2 + i)}")
        for k in (0, 2):
            osc = {0: "", 1: " sc1", 2: " nt", 3: " sc0 sc1"}[self.o.get("out_sc", 2)]
            A(f"buffer_store_dwordx4 {v(OUT + 2 * k, 4)}, {v(vO)}, {s(R_A, 4)}, 0 offen offset:{16 * k}{osc}")
        self.stamp(16)

    def helper(self):
        A = self.A
        T = S_T
        t0, t1, t2 = T + 4, T + 5, T + 6
        sH = S_RB
        A.label("L_helper")
        A(f"s_lshl_b32 {s(t0)}, {s(T + 1)}, 3")
        A(f"s_add_u32 {s(sH)}, {s(t0)}, {s(T)}")
        A(f"s_cmp_ge_u32 {s(sH)}, 21")
        A("s_cbranch_scc1 L_helper_flag")
        st_h = A.snapshot()
        self.srd(R_A, P_WM, 448 * 5376)
        self.srd(R_B, P_C, 896)
        A("v_lshrrev_b32 v2, 4, v0")
        A("v_and_b32 v3, 15, v0")
        A("v_mul_u32_u24 v4, 5376, v2")
        A("v_lshl_add_u32 v4, v3, 4, v4")
        A(f"s_lshl_b32 {s(t0)}, {s(sH)}, 8")
        A(f"v_add_u32 v4, {s(t0)}, v4")
        A("v_lshlrev_b32 v5, 2, v0")
        A(f"buffer_load_dword v6, v5, {s(R_B, 4)}, 0 offen")
        W = 16
        A(f"s_mov_b32 {s(t0)}, 0")
        for i in range(28):
            A(f"buffer_load_dwordx4 {v(W + 4 * i, 4)}, v4, {s(R_A, 4)}, {s(t0)} offen")
            if i < 27:
                A(f"s_add_u32 {s(t0)}, {s(t0)}, {16 * 5376}")
        A(f"s_mov_b32 {s(t1)}, 0x{f32bits(-1.4426950408889634):08x}")
        A("v_lshlrev_b32 v8, 16, v6")
        A(f"v_and_b32 v9, {s(S_MASKHI)}, v6")
        for r in (8, 9):
            A(f"v_mul_f32 {v(r + 2)}, {s(t1)}, {v(r)}")
        for r in (8, 9):
            A(f"v_exp_f32 {v(r + 2)}, {v(r + 2)}")
        for r in (8, 9):
            A(f"v_add_f32 {v(r + 2)}, 1.0, {v(r + 2)}")
        for r in (8, 9):
            A(f"v_rcp_f32 {v(r + 2)}, {v(r + 2)}")
        for r in (8, 9):
            A(f"v_mul_f32 {v(r)}, {v(r)}, {v(r + 2)}")
        A("v_cvt_pk_bf16_f32 v6, v8, v9")
        A("v_lshlrev_b32 v8, 16, v6")
        A(f"v_and_b32 v9, {s(S_MASKHI)}, v6")
        A("v_lshlrev_b32 v7, 3, v0")
        A(f"ds_write_b64 v7, v[8:9] offset:{L_SC}")
        A.barrier()
        A("v_lshlrev_b32 v7, 2, v2")
        SC = 128
        for i in range(28):
            A(f"ds_read_b32 {v(SC + 2 * i)}, v7 offset:{L_SC + 64 * i}")
        AC = 192
        U = 200
        for i in range(28):
            for k in range(4):
                src = W + 4 * i + k
                u = U + 2 * k
                A(f"v_lshlrev_b32 {v(u)}, 16, {v(src)}")
                A(f"v_and_b32 {v(u + 1)}, {s(S_MASKHI)}, {v(src)}")
            for k in range(4):
                u = U + 2 * k
                if i == 0:
                    A(f"v_pk_mul_f32 {v(AC + 2 * k, 2)}, {v(u, 2)}, {v(SC + 2 * i, 2)} op_sel_hi:[1,0]")
                else:
                    A(f"v_pk_fma_f32 {v(AC + 2 * k, 2)}, {v(u, 2)}, {v(SC + 2 * i, 2)}, {v(AC + 2 * k, 2)} op_sel_hi:[1,0,1]")
        A("v_mul_u32_u24 v7, 528, v2")
        A("v_lshl_add_u32 v7, v3, 5, v7")
        A(f"ds_write_b128 v7, {v(AC, 4)} offset:{L_MR}")
        A(f"ds_write_b128 v7, {v(AC + 4, 4)} offset:{L_MR + 16}")
        A.barrier()
        A("v_and_b32 v8, 127, v0")
        A("v_lshlrev_b32 v7, 2, v8")
        for g in range(16):
            A(f"ds_read_b32 {v(16 + g)}, v7 offset:{L_MR + 528 * g}")
        for stp in (8, 4, 2, 1):
            for g in range(stp):
                A(f"v_add_f32 {v(16 + g)}, {v(16 + g)}, {v(16 + g + stp)}")
        A("v_cvt_pk_bf16_f32 v16, v16, v16")
        A(f"v_and_b32 v16, {s(S_MASKHI)}, v16")
        A("v_add_f32 v17, 1.0, v16")
        A("v_cvt_pk_bf16_f32 v17, v17, v17")
        A(f"v_and_b32 v17, {s(S_MASKHI)}, v17")
        A(f"s_lshl_b32 {s(t0)}, {s(sH)}, 7")
        A(f"v_add_u32 v8, {s(t0)}, v8")
        A("v_subrev_u32 v9, 448, v8")
        A("v_subrev_u32 v10, 1792, v8")
        A("v_min_u32 v9, v9, v10")
        A("v_mov_b32 v11, 448")
        A("v_cmp_lt_u32 vcc, v9, v11")
        A("s_nop 1")
        A("v_cndmask_b32 v16, v16, v17, vcc")
        A("v_lshlrev_b32 v8, 2, v8")
        A(f"s_mov_b32 {s(t0)}, {MODF}")
        skip = self.lab("ms")
        A(f"s_cmp_ge_u32 {s(S_WV)}, 2")
        A(f"s_cbranch_scc1 {skip}")
        A.cond_begin()
        A(f"buffer_store_dword v16, v8, {s(R_WS, 4)}, {s(t0)} offen sc1")
        A.cond_end()
        A.label(skip)
        A.wait_vm(0)
        A.barrier()
        A.label("L_helper_flag")
        A.wait_lgkm0()
        A(f"s_add_u32 {s(S_NONCE)}, {s(S_NONCE)}, 1")
        A(f"s_lshl_b32 {s(t0)}, {s(sH)}, 7")
        A(f"s_add_u32 {s(t0)}, {s(t0)}, {FL + FM * 128}")
        self.flag_store(t0)
        self.stamp(3)
        if self.o.get("helper_warm", 0):
            A("v_min_u32 v2, 55, v1")
            A(f"s_mul_i32 {s(t0)}, {s(S_WV)}, 56")
            A(f"v_add_u32 v2, {s(t0)}, v2")
            A("v_lshlrev_b32 v2, 7, v2")
            A(f"v_add_u32 v2, {FL + self.o.get('warm_flag', F2) * 128}, v2")
            A(f"s_lshr_b32 {s(t0)}, s2, 3")
            A(f"s_sub_u32 {s(t0)}, {s(t0)}, 28")
            A(f"s_lshl_b32 {s(t0)}, {s(t0)}, 2")
            A(f"s_add_u32 {s(t0)}, {s(t0)}, {s(S_WV)}")
            A("v_lshlrev_b32 v4, 7, v1")
            A(f"s_and_b32 {s(t1)}, s2, 7")
            A(f"s_mul_i32 {s(t1)}, {s(t1)}, {4 * 229376}")
            A(f"s_mul_i32 {s(t2)}, {s(t0)}, {448 * 128}")
            A(f"s_add_u32 {s(t1)}, {s(t1)}, {s(t2)}")
            A(f"s_add_u32 {s(t1)}, {s(t1)}, {HF}")
            self.poll(2, 3)
            for k in range(7):
                A(f"buffer_load_dword {v(32 + k)}, v4, {s(R_WS, 4)}, {s(t1)} offen")
                A(f"s_add_u32 {s(t1)}, {s(t1)}, {64 * 128}")
            A.wait_vm(0)
        self.stamp(4)
        self.stamp_flush()
        A("s_endpgm")

    def build(self):
        A = self.A
        self.prologue()
        if self.stamps:
            A("v_mov_b32 v255, 0")
            A("v_writelane_b32 v255, s76, 31")
        st = A.snapshot()
        self.stamp(0)
        self.phase_p()
        stages = [("p", None), ("a", self.phase_a), ("b", self.phase_b), ("c", self.phase_c), ("d", self.phase_d)]
        done = self.stop == "p"
        for name, fn in stages[1:]:
            if done:
                break
            fn()
            done = self.stop == name
        self.stamp_flush()
        A("s_endpgm")
        A.label("L_exit")
        A("s_endpgm")
        A.label("L_code_end")
        return A.text()


def f32bits(x):
    import struct
    return struct.unpack("<I", struct.pack("<f", x))[0]


HEADER = """; Fused adaLN + H3 long convolution + SiLU MLP, one persistent launch (generated by gen/gen.py).
; Kernarg: q k v shift_k ssm_k ssm_D B_x w1 w2 c w_mod out debug ws (8-byte pointers).
; @launch grid=(224,1,1) block=(256,1,1) lds={lds}
.amdgcn_target "amdgcn-amd-amdhsa--gfx950"
.text
.globl {name}
.p2align 8
.type {name},@function
{name}:
"""

FOOTER = """.section .rodata,"a"
.p2align 6
.amdhsa_kernel {name}
  .amdhsa_next_free_vgpr 512
  .amdhsa_next_free_sgpr 102
  .amdhsa_accum_offset 256
  .amdhsa_group_segment_fixed_size 0
  .amdhsa_kernarg_size 112
  .amdhsa_user_sgpr_count 2
  .amdhsa_user_sgpr_kernarg_segment_ptr 1
  .amdhsa_system_sgpr_workgroup_id_x 1
  .amdhsa_float_denorm_mode_32 3
.end_amdhsa_kernel
"""


def main():
    ap = argparse.ArgumentParser()
    ap.add_argument("--stop", default=None)
    ap.add_argument("--stamps", action="store_true")
    ap.add_argument("-o", default="/dev/stdout")
    ap.add_argument("--opt", action="append", default=[])
    args = ap.parse_args()
    opts = {}
    for kv in args.opt:
        k, val = kv.split("=")
        opts[k] = int(val)
    g = Gen(stop=args.stop, stamps=args.stamps, opts=opts)
    body = g.build()
    txt = HEADER.format(name=NAME, lds=LDS_END) + body + FOOTER.format(name=NAME)
    with open(args.o, "w") as f:
        f.write(txt)
    print(f"instructions: {g.A.n_ins}, auto nops: {g.A.n_nops}, lds {LDS_END}", file=sys.stderr)


if __name__ == "__main__":
    main()
```
